```python
import torch

def _softmax(x, axis=-1):
    return torch.softmax(x, dim=axis)
def _gelu(x):
    return torch.nn.functional.gelu(x, approximate="tanh")
def _silu(x):
    return torch.nn.functional.silu(x)
def _sigmoid(x):
    return torch.sigmoid(x)
def _layernorm(x, axis=-1, eps=1e-5):
    m = x.mean(dim=axis, keepdim=True)
    v = x.var(dim=axis, keepdim=True, unbiased=False)
    return (x - m) / torch.sqrt(v + eps)
def _scatter_add(tgt, idx, src, axis=0):
    return tgt.clone().index_add_(axis, idx, src)
def _segment_sum(src, seg, n):
    out = torch.zeros((n,) + src.shape[1:], dtype=src.dtype)
    return out.index_add_(0, seg, src)
def _pad(x, pw):
    flat = tuple(v for pair in reversed(pw) for v in pair)
    return torch.nn.functional.pad(x, flat)

kernel_name = 'gated_mix__softmax_full_mha__swiglu_ffn__prompt'

def setup_inputs():

    _w = (lambda a: (lambda t: t.to(torch.bfloat16) if t.is_floating_point() else t)(torch.as_tensor(a)))
    def _A_setup():
        B, S, D = 1, 2048, 512
        return {
            "x": _w((lambda *s: torch.randn(*s, dtype=torch.bfloat16) * 0.05)(B, S, D)),
            "wqkv": _w((lambda *s: torch.randn(*s, dtype=torch.bfloat16) * 0.8)(D, 3 * D)),
            "wo": _w((lambda *s: torch.randn(*s, dtype=torch.bfloat16) * 0.05)(D, D)),
        }
    _A_in = _A_setup()

    def _B_setup():
        B, S, D, F = 1, 2048, 512, 1792
        return {
            "x": _w((lambda *s: torch.randn(*s, dtype=torch.bfloat16) * 0.05)(B, S, D)),
            "w_gate": _w((lambda *s: torch.randn(*s, dtype=torch.bfloat16) * 0.1)(D, F)),
            "w_up": _w((lambda *s: torch.randn(*s, dtype=torch.bfloat16) * 0.1)(D, F)),
            "w_down": _w((lambda *s: torch.randn(*s, dtype=torch.bfloat16) * 0.1)(F, D)),
        }
    _B_in = _B_setup()

    return {
        "A_x": _A_in["x"],
        "A_wqkv": _A_in["wqkv"],
        "A_wo": _A_in["wo"],
        "B_x": _B_in["x"],
        "B_w_gate": _B_in["w_gate"],
        "B_w_up": _B_in["w_up"],
        "B_w_down": _B_in["w_down"],
        "gate_w": _w((lambda *s: torch.randn(*s, dtype=torch.bfloat16) * 0.05)(512) * 16.0),
    }

def reference(A_x, A_wqkv, A_wo, B_x, B_w_gate, B_w_up, B_w_down, gate_w):
    def _A_ref(x, wqkv, wo):
        B, S, D = x.shape
        H = 32; Dh = D // H
        qkv = (lambda x, *d: x.permute(*d))((x @ wqkv).reshape(B, S, 3, H, Dh), 2, 0, 3, 1, 4)
        q, k, v = qkv[0], qkv[1], qkv[2]
        scale = Dh ** -0.5
        scores = torch.einsum("bhqd,bhkd->bhqk", q, k) * scale
        p = _softmax(scores, axis=-1)
        o = torch.einsum("bhqk,bhkd->bhqd", p, v)
        return (lambda x, *d: x.permute(*d))(o, 0, 2, 1, 3).reshape(B, S, D) @ wo

    def _B_ref(x, w_gate, w_up, w_down):
        g = _silu(x @ w_gate)
        u = x @ w_up
        return (g * u) @ w_down

    x = A_x
    g = _sigmoid((x * gate_w).sum(-1, keepdims=True))
    a = _A_ref(x, A_wqkv, A_wo)
    b = _B_ref(x, B_w_gate, B_w_up, B_w_down)
    return g * a + (1 - g) * b
```

```python
import sys, subprocess, argparse

NAME = "gated_mix__softmax_full_mha__swiglu_ffn__prompt"
KN = NAME + "_kernel"

WS_KV, WS_Q, WS_HO = 0, 0x400000, 0x600000
WS_NRM, WS_G = 0xF00000, 0xF04000
WS_FKV, WS_FH, WS_FO = 0xF08000, 0xF09000, 0xF0A000
WS_STAMP = 0x1000000
WS_SIZE = 0x1100000
QSCALE = 0x3EB8AA3B
NLOG2E = 0xBFB8AA3B
THR2 = 0x45548000


class Opt:
    stamps = False
    hint_step = 8
    f_fill_early = False
    force_slow = False
    prio_a_qkv = 3
    prio_a_att = 1
    prio_f = 2
    prio_f_late = 0
    late_iter = 99


O = Opt()


class Asm:
    def __init__(self):
        self.L = []

    def __call__(self, s):
        for x in s.strip("\n").split("\n"):
            self.L.append("    " + x.strip())

    def label(self, l):
        self.L.append(l + ":")

    def raw(self, s):
        self.L.append(s)


E = Asm()


def vr(a, n):
    return f"v[{a}:{a+n-1}]"


def srd(base, size):
    E(f"s_mov_b32 s{base+2}, {size:#x}")
    E(f"s_mov_b32 s{base+3}, 0x20000")


S_WAVE = 3
X, W1, WU, WS, DBG, WD, WO, OUT, GW = 12, 16, 20, 24, 28, 32, 36, 40, 44
def sr(b): return f"s[{b}:{b+3}]"
S_TAG = 48
S_W1K = 49
S_T0, S_T1, S_T2, S_T3 = 50, 51, 52, 53
S_XK, S_XB, S_WK, S_WB = 54, 55, 56, 57
S_CNT = 58
S_A, S_B, S_C, S_D = 59, 60, 61, 62
S_SLOT = 63
S_VM = 64
S_SPIN = 66
S_STAMP = 70


def stamp(i):
    if O.stamps:
        E(f"s_memrealtime s[{S_STAMP+2*i}:{S_STAMP+2*i+1}]")
        E("s_waitcnt lgkmcnt(0)")


def flush_stamps(idx, lab):
    if not O.stamps:
        return
    E(f"s_cmp_lg_u32 s{S_WAVE}, 0")
    E(f"s_cbranch_scc1 {lab}")
    E(f"s_lshl_b32 s{S_T0}, s2, 6")
    E(f"s_add_u32 s{S_T0}, s{S_T0}, {WS_STAMP:#x}")
    E("s_mov_b64 exec, 1")
    E("v_mov_b32 v1, 0")
    for i in idx:
        E(f"v_mov_b32 v2, s{S_STAMP+2*i}")
        E(f"buffer_store_dword v2, v1, {sr(WS)}, s{S_T0} offen offset:{4*i}")
    E("s_waitcnt vmcnt(0)")
    E.label(lab)


class VM:
    def __init__(self):
        self.q = []

    def issue(self, tag, n=1):
        self.q += [tag] * n

    def need(self, *tags):
        last = -1
        for i, t in enumerate(self.q):
            if t in tags:
                last = i
        for t in tags:
            assert t in self.q, t
        return len(self.q) - 1 - last


def poll(lab, voff_reg, soff, nlanes_desc=""):
    E(f"s_mov_b32 s{S_SPIN}, 0x40000")
    E.label(lab)
    E(f"buffer_load_dword v11, v{voff_reg}, {sr(WS)}, {soff} offen sc1")
    E("s_waitcnt vmcnt(0)")
    E(f"v_cmp_ne_u32 vcc, s{S_TAG}, v11")
    E("s_nop 4")
    E("s_cmp_eq_u64 vcc, 0")
    E(f"s_cbranch_scc1 {lab}_ok")
    E("s_sleep 2")
    E(f"s_sub_u32 s{S_SPIN}, s{S_SPIN}, 1")
    E(f"s_cmp_lg_u32 s{S_SPIN}, 0")
    E(f"s_cbranch_scc1 {lab}")
    E.label(lab + "_ok")


def get_tag(lab):
    E(f"s_mov_b32 s{S_SPIN}, 0x40000")
    E("v_mov_b32 v10, 0")
    E.label(lab)
    E(f"buffer_load_dword v11, v10, {sr(DBG)}, 0 offen sc1")
    E("s_waitcnt vmcnt(0)")
    E(f"v_readfirstlane_b32 s{S_TAG}, v11")
    E("s_nop 3")
    E(f"s_cmp_lg_u32 s{S_TAG}, 0")
    E(f"s_cbranch_scc1 {lab}_ok")
    E("s_sleep 4")
    E(f"s_sub_u32 s{S_SPIN}, s{S_SPIN}, 1")
    E(f"s_cmp_lg_u32 s{S_SPIN}, 0")
    E(f"s_cbranch_scc1 {lab}")
    E.label(lab + "_ok")


def put_flag(soff_sgpr):
    E("s_mov_b64 exec, 1")
    E("v_mov_b32 v10, 0")
    E(f"v_mov_b32 v11, s{S_TAG}")
    E(f"buffer_store_dword v11, v10, {sr(WS)}, s{soff_sgpr} offen sc0 sc1")
    E("s_mov_b64 exec, -1")


def dpp_max(regs):
    for ctl in ("row_shr:1", "row_shr:2", "row_shr:4", "row_shr:8",
                "row_bcast:15 row_mask:0xa", "row_bcast:31 row_mask:0xc"):
        E("s_nop 1")
        for r in regs:
            m = "" if "row_mask" in ctl else " row_mask:0xf"
            E(f"v_max_f32_dpp v{r}, v{r}, v{r} {ctl}{m} bank_mask:0xf")


A_XS, A_WS0, A_WSZ = 8192, 24576, 12288


def a_dma_x(u, vm):
    E(f"s_add_u32 m0, s{S_W1K}, {(u % 3) * A_XS}")
    E(f"s_add_u32 s{S_T0}, s{S_XB}, s{S_XK}")
    E(f"buffer_load_dwordx4 v1, {sr(X)}, s{S_T0} offen lds")
    E(f"s_add_u32 s{S_XK}, s{S_XK}, 128")
    E(f"s_and_b32 s{S_XK}, s{S_XK}, 1023")
    vm.issue(("x", u))


def a_dma_w(s, vm, vwave):
    base = A_WS0 + (s % 4) * A_WSZ
    E(f"s_add_u32 m0, s{S_W1K}, {base}")
    E(f"s_add_u32 s{S_T0}, s{S_WB}, s{S_WK}")
    E(f"buffer_load_dwordx4 v2, {sr(W1)}, s{S_T0} offen lds")
    vm.issue(("w", s))
    if vwave == "both":
        E(f"s_cbranch_vccz A_pw{s}")
        E(f"s_add_u32 m0, s{S_W1K}, {base + 3072}")
        E("s_nop 0")
        E(f"buffer_load_dwordx4 v2, {sr(W1)}, s{S_T0} offen offset:1024 lds")
        E.label(f"A_pw{s}")
    elif vwave:
        E(f"s_add_u32 m0, s{S_W1K}, {base + 3072}")
        E("s_nop 0")
        E(f"buffer_load_dwordx4 v2, {sr(W1)}, s{S_T0} offen offset:1024 lds")
        vm.issue(("w", s))
    E(f"s_add_u32 s{S_WK}, s{S_WK}, 98304")
    E(f"s_cmp_eq_u32 s{S_WK}, {16 * 98304}")
    E(f"s_cselect_b32 s{S_WK}, 0, s{S_WK}")


def a_prologue():
    E(f"s_load_dwordx2 s[{X}:{X+1}], s[0:1], 0")
    E(f"s_load_dwordx2 s[{W1}:{W1+1}], s[0:1], 8")
    E(f"s_load_dwordx2 s[{WS}:{WS+1}], s[0:1], 80")
    E(f"s_load_dwordx2 s[{DBG}:{DBG+1}], s[0:1], 72")
    E("v_lshrrev_b32 v8, 6, v0")
    E("v_lshrrev_b32 v9, 3, v0")
    E("v_lshrrev_b32 v10, 4, v0")
    E(f"v_readfirstlane_b32 s{S_WAVE}, v8")
    E("v_xor_b32 v11, v10, v0")
    E("v_and_b32 v11, 7, v11")
    E("v_lshlrev_b32 v11, 4, v11")
    E("v_lshl_add_u32 v1, v9, 10, v11")
    srd(X, 0x200000)
    srd(W1, 0x180000)
    E(f"s_lshr_b32 s{S_T0}, s2, 3")
    E(f"s_and_b32 s{S_T1}, s{S_T0}, 7")
    E(f"s_lshr_b32 s{S_T0}, s{S_T0}, 3")
    E(f"s_and_b32 s{S_A}, s2, 3")
    E(f"s_lshl_b32 s{S_A}, s{S_A}, 3")
    E(f"s_add_u32 s{S_A}, s{S_A}, s{S_T1}")
    E(f"s_and_b32 s{S_B}, s2, 4")
    E(f"s_add_u32 s{S_B}, s{S_B}, s{S_T0}")
    E(f"s_lshl_b32 s{S_T0}, s{S_T0}, 1")
    E(f"s_add_u32 s{S_T0}, s{S_T0}, s{S_T1}")
    E(f"s_and_b32 s{S_T0}, s{S_T0}, 7")
    E(f"s_lshl_b32 s{S_XK}, s{S_T0}, 7")
    E(f"s_mul_i32 s{S_WK}, s{S_T0}, {2 * 98304}")
    E(f"s_lshl_b32 s{S_XB}, s{S_A}, 16")
    E(f"s_lshl_b32 s{S_WB}, s{S_B}, 7")
    E(f"s_lshl_b32 s{S_W1K}, s{S_WAVE}, 10")
    E("v_and_b32 v9, 31, v9")
    E("v_mul_u32_u24 v9, 0xc00, v9")
    E("v_and_b32 v10, 1, v10")
    E("v_lshlrev_b32 v10, 2, v10")
    E("v_xor_b32 v10, v10, v0")
    E("v_and_b32 v10, 7, v10")
    E("v_lshl_add_u32 v9, v10, 4, v9")
    E("v_lshrrev_b32 v10, 8, v0")
    E("v_lshl_add_u32 v2, v10, 10, v9")
    E("v_cmp_eq_u32 vcc, 1, v10")
    E(f"s_setprio {O.prio_a_qkv}")
    E("s_waitcnt lgkmcnt(0)")
    vm = VM()
    a_dma_x(0, vm)
    a_dma_w(0, vm, "both")
    a_dma_w(1, vm, "both")
    a_dma_x(1, vm)
    a_dma_w(2, vm, "both")
    a_dma_w(3, vm, "both")
    a_dma_x(2, vm)
    srd(WS, WS_SIZE)
    srd(DBG, 256)


def a_qkv(vwave):
    p = "AV" if vwave else "AQ"
    vm = VM()
    n = 2 if vwave else 1
    for t in (("x", 0), ("w", 0), ("w", 1), ("x", 1), ("w", 2), ("w", 3), ("x", 2)):
        vm.issue(t, n if t[0] == "w" else 1)
    E("v_and_b32 v8, 31, v0")
    if vwave:
        E("v_and_b32 v9, 0x13, v8")
        E("v_lshlrev_b32 v10, 1, v8")
        E("v_and_b32 v10, 8, v10")
        E("v_or_b32 v9, v9, v10")
        E("v_lshrrev_b32 v10, 1, v8")
        E("v_and_b32 v10, 4, v10")
        E("v_or_b32 v8, v9, v10")
    E("v_lshrrev_b32 v9, 1, v8")
    E("v_and_b32 v9, 7, v9")
    E("v_bfe_u32 v10, v0, 5, 1")
    E("v_xor_b32 v9, v9, v10")
    E("v_lshlrev_b32 v9, 4, v9")
    E("v_lshl_add_u32 v9, v8, 7, v9")
    E("v_bfe_u32 v8, v0, 6, 1")
    E("v_lshl_add_u32 v3, v8, 12, v9")
    for ks in (1, 2, 3):
        E(f"v_xor_b32 v{3+ks}, {32*ks}, v3")
    E("v_bfe_u32 v8, v0, 2, 2")
    E("v_lshl_add_u32 v9, v10, 3, v8")
    E("v_lshlrev_b32 v9, 7, v9")
    E("v_bfe_u32 v10, v0, 7, 1")
    E("v_lshrrev_b32 v8, 1, v8")
    E("v_xor_b32 v8, v8, v10")
    E("v_lshl_add_u32 v9, v8, 6, v9")
    E("v_bfe_u32 v8, v0, 4, 1")
    E("v_lshl_add_u32 v9, v8, 5, v9")
    E("v_and_b32 v8, 3, v0")
    E("v_lshl_add_u32 v9, v8, 3, v9")
    E(f"v_add_u32 v7, {A_WS0}, v9")
    segs = (2,) if vwave else (0, 1)

    def reads(s):
        b = 16 + 24 * (s & 1)
        for kk in (0, 1):
            E(f"ds_read_b128 {vr(b+4*kk,4)}, v{3 + 2*(s&1) + kk} offset:{((s//2) % 3) * A_XS}")
        for si, sg in enumerate(segs):
            for kk in (0, 1):
                for q in (0, 1):
                    off = (s % 4) * A_WSZ + sg * 4096 + kk * 2048 + q * 512
                    E(f"ds_read_b64_tr_b16 {vr(b+8+8*si+4*kk+2*q,2)}, v7 offset:{off}")

    def mfmas(s):
        b = 16 + 24 * (s & 1)
        for kk in (0, 1):
            for si, sg in enumerate(segs):
                acc = vr(64 + 16 * si, 16)
                c = "0" if (s == 0 and kk == 0) else acc
                xf, wf = vr(b + 4*kk, 4), vr(b + 8 + 8*si + 4*kk, 4)
                if vwave:
                    E(f"v_mfma_f32_32x32x16_bf16 {acc}, {xf}, {wf}, {c}")
                else:
                    E(f"v_mfma_f32_32x32x16_bf16 {acc}, {wf}, {xf}, {c}")

    E(f"s_waitcnt vmcnt({vm.need(('x',0),('w',0))})")
    E("s_barrier")
    stamp(1)
    reads(0)
    for s in range(16):
        if s < 15:
            E(f"s_waitcnt vmcnt({vm.need(('x',(s+1)//2),('w',s+1))}) lgkmcnt(0)")
            E("s_barrier")
            if s + 4 <= 15:
                a_dma_w(s + 4, vm, vwave)
            if s % 2 == 1 and (s + 1) // 2 + 2 <= 7:
                a_dma_x((s + 1) // 2 + 2, vm)
            reads(s + 1)
        else:
            E("s_waitcnt lgkmcnt(0)")
        mfmas(s)
        if s == O.hint_step and not vwave:
            E(f"s_or_b32 s{S_T0}, s2, s{S_WAVE}")
            E(f"s_cbranch_scc1 A_notag")
            E(f"s_memrealtime s[{S_T0}:{S_T1}]")
            E("s_waitcnt lgkmcnt(0)")
            E(f"s_or_b32 s{S_T0}, s{S_T0}, 1")
            E("s_mov_b64 exec, 1")
            E("v_mov_b32 v10, 0")
            E(f"v_mov_b32 v11, s{S_T0}")
            E(f"buffer_store_dword v11, v10, {sr(DBG)}, 0 offen sc0 sc1")
            E("s_waitcnt vmcnt(0)")
            E("s_mov_b64 exec, -1")
            E.label("A_notag")
    stamp(2)
    E(f"s_and_b32 s{S_T0}, s{S_WAVE}, 1")
    E(f"s_lshl_b32 s{S_T1}, s{S_A}, 1")
    E(f"s_add_u32 s{S_T0}, s{S_T0}, s{S_T1}")
    E(f"s_bfe_u32 s{S_T1}, s{S_WAVE}, 0x10001")
    E(f"s_lshl_b32 s{S_T2}, s{S_B}, 1")
    E(f"s_add_u32 s{S_T1}, s{S_T1}, s{S_T2}")
    E("v_and_b32 v8, 63, v0")
    if vwave:
        E("v_and_b32 v9, 15, v8")
        E("v_lshlrev_b32 v9, 4, v9")
        E("v_bfe_u32 v10, v8, 5, 1")
        E("v_lshl_add_u32 v9, v10, 8, v9")
        E("v_bfe_u32 v10, v8, 4, 1")
        E("v_lshl_add_u32 v9, v10, 17, v9")
        E(f"s_lshl_b32 s{S_T1}, s{S_T1}, 18")
        E(f"s_lshl_b32 s{S_T0}, s{S_T0}, 11")
        E(f"s_add_u32 s{S_T0}, s{S_T0}, s{S_T1}")
        E("s_nop 7")
        for i in range(8):
            E(f"v_cvt_pk_bf16_f32 v{16+i}, v{64+2*i}, v{65+2*i}")
        E(f"buffer_store_dwordx4 v[16:19], v9, {sr(WS)}, s{S_T0} offen offset:1024 sc0 sc1")
        E(f"buffer_store_dwordx4 v[20:23], v9, {sr(WS)}, s{S_T0} offen offset:1536 sc0 sc1")
    else:
        E("v_lshlrev_b32 v9, 4, v8")
        E(f"s_lshl_b32 s{S_T2}, s{S_T1}, 18")
        E(f"s_lshl_b32 s{S_T3}, s{S_T0}, 11")
        E(f"s_add_u32 s{S_T2}, s{S_T2}, s{S_T3}")
        E(f"s_lshr_b32 s{S_T3}, s{S_T2}, 1")
        E(f"s_add_u32 s{S_T3}, s{S_T3}, {WS_Q:#x}")
        E(f"s_add_u32 s{S_C}, s{S_T2}, 0x20000")
        E(f"s_add_u32 s{S_D}, s{S_T3}, 0x10000")
        E(f"s_mov_b32 s{S_CNT}, {QSCALE:#x}")
        E("s_nop 7")
        for i in range(8):
            E(f"v_cvt_pk_bf16_f32 v{16+i}, v{80+2*i}, v{81+2*i}")
        E(f"buffer_store_dwordx4 v[16:19], v9, {sr(WS)}, s{S_T2} offen sc0 sc1")
        E(f"buffer_store_dwordx4 v[20:23], v9, {sr(WS)}, s{S_C} offen sc0 sc1")
        for i in range(16):
            E(f"v_mul_f32 v{64+i}, s{S_CNT}, v{64+i}")
        for i in range(8):
            E(f"v_cvt_pk_bf16_f32 v{24+i}, v{64+2*i}, v{65+2*i}")
        E(f"buffer_store_dwordx4 v[24:27], v9, {sr(WS)}, s{S_T3} offen sc0 sc1")
        E(f"buffer_store_dwordx4 v[28:31], v9, {sr(WS)}, s{S_D} offen sc0 sc1")
        for g in range(4):
            E(f"v_mul_f32 v{32+g}, v{64+8*g}, v{64+8*g}")
        for i in range(1, 8):
            for g in range(4):
                E(f"v_fmac_f32 v{32+g}, v{64+8*g+i}, v{64+8*g+i}")
        E("s_nop 1")
        E("v_permlane32_swap_b32 v32, v33")
        E("v_permlane32_swap_b32 v34, v35")
        E("s_nop 1")
        E("v_add_f32 v32, v32, v33")
        E("v_add_f32 v33, v34, v35")
        dpp_max((32, 33))
        E(f"s_lshl_b32 s{S_T1}, s{S_T1}, 9")
        E(f"s_lshl_b32 s{S_T0}, s{S_T0}, 3")
        E(f"s_add_u32 s{S_T0}, s{S_T0}, s{S_T1}")
        E(f"s_add_u32 s{S_T0}, s{S_T0}, {WS_NRM:#x}")
        E("v_mov_b32 v10, 0")
        E("s_brev_b64 exec, 1")
        E(f"buffer_store_dwordx2 v[32:33], v10, {sr(WS)}, s{S_T0} offen sc0 sc1")
        E("s_mov_b64 exec, -1")


S0, S1, OA, QF, K0, K1, V0, V1, IDX, VK, VV, VD, VKB, VVB = 16, 32, 48, 64, 68, 72, 76, 84, 92, 93, 94, 95, 96, 97
KVS = 16384


def a_kv_dma():
    E(f"s_add_u32 m0, s{S_XK}, s{S_W1K}")
    E(f"s_add_u32 s{S_T0}, s{S_WB}, s{S_WK}")
    E(f"buffer_load_dwordx4 v{VD}, {sr(WS)}, s{S_T0} offen sc1 lds")
    E(f"buffer_load_dwordx4 v{VD}, {sr(WS)}, s{S_T0} offen offset:1024 sc1 lds")
    E(f"s_add_u32 s{S_WK}, s{S_WK}, {KVS}")
    E(f"s_and_b32 s{S_WK}, s{S_WK}, {8*KVS-1:#x}")
    E(f"s_add_u32 s{S_XK}, s{S_XK}, {KVS}")


def a_attention():
    E(f"s_cmp_lg_u32 s{S_WAVE}, 0")
    E("s_cbranch_scc1 A_pub1")
    get_tag("A_tag")
    E.label("A_pub1")
    E("s_waitcnt vmcnt(0)")
    E("s_barrier")
    stamp(3)
    E(f"s_and_b32 s{S_C}, s2, 7")
    E(f"s_lshr_b32 s{S_T0}, s2, 6")
    E(f"s_lshl_b32 s{S_D}, s{S_C}, 2")
    E(f"s_add_u32 s{S_D}, s{S_D}, s{S_T0}")
    E(f"s_cmp_lg_u32 s{S_WAVE}, 0")
    E("s_cbranch_scc1 A_wait1")
    E(f"s_lshl_b32 s{S_T0}, s{S_B}, 7")
    E(f"s_lshl_b32 s{S_T1}, s{S_A}, 2")
    E(f"s_add_u32 s{S_T0}, s{S_T0}, s{S_T1}")
    E(f"s_add_u32 s{S_T0}, s{S_T0}, {WS_FKV:#x}")
    put_flag(S_T0)
    E("v_and_b32 v10, 31, v0")
    E("v_lshlrev_b32 v10, 2, v10")
    E(f"s_lshl_b32 s{S_T0}, s{S_C}, 7")
    E(f"s_add_u32 s{S_T0}, s{S_T0}, {WS_FKV:#x}")
    poll("A_pollkv", 10, f"s{S_T0}")
    E.label("A_wait1")
    E(f"s_bfe_u32 s{S_A}, s2, 0x30003")
    E("v_and_b32 v8, 63, v0")
    E(f"v_lshlrev_b32 v{VKB}, 4, v8")
    E(f"s_lshl_b32 s{S_W1K}, s{S_WAVE}, 11")
    E(f"v_add_u32 v{VD}, s{S_W1K}, v{VKB}")
    E(f"s_lshl_b32 s{S_WB}, s{S_D}, 17")
    E(f"s_lshl_b32 s{S_WK}, s{S_A}, 14")
    E(f"s_mov_b32 s{S_XK}, 0")
    E(f"s_lshl_b32 s{S_T1}, s{S_A}, 3")
    E(f"s_add_u32 s{S_B}, s{S_T1}, s{S_WAVE}")
    E(f"s_lshl_b32 s{S_T1}, s{S_B}, 10")
    E(f"s_lshl_b32 s{S_T2}, s{S_D}, 16")
    E(f"s_add_u32 s{S_T1}, s{S_T1}, s{S_T2}")
    E(f"s_add_u32 s{S_T1}, s{S_T1}, {WS_Q:#x}")
    E(f"s_lshr_b32 s{S_T2}, s{S_D}, 1")
    E(f"s_lshl_b32 s{S_T2}, s{S_T2}, 9")
    E(f"s_add_u32 s{S_T2}, s{S_T2}, {WS_NRM:#x}")
    E("v_lshlrev_b32 v9, 3, v8")
    E("v_mov_b32 v10, 0")
    E("s_barrier")
    stamp(4)
    E(f"buffer_load_dword v14, v10, {sr(DBG)}, 0 offen sc1")
    E(f"buffer_load_dwordx4 {vr(QF,4)}, v{VKB}, {sr(WS)}, s{S_T1} offen sc1")
    E(f"buffer_load_dwordx2 v[12:13], v9, {sr(WS)}, s{S_T2} offen sc1")
    for c in range(5):
        a_kv_dma()
    E(f"s_mov_b32 s{S_XK}, 0")
    E(f"s_setprio {O.prio_a_att}")
    E("v_and_b32 v9, 15, v8")
    E("v_lshlrev_b32 v9, 4, v9")
    E("v_bfe_u32 v10, v8, 5, 1")
    E("v_lshl_add_u32 v9, v10, 8, v9")
    E(f"v_add_u32 v{VVB}, 1024, v9")
    E(f"v_mov_b32 v{VK}, v{VKB}")
    E(f"v_mov_b32 v{VV}, v{VVB}")
    E(f"v_mov_b32 v{IDX}, 0xdddddddd")
    for i in range(16):
        E(f"v_mov_b32 v{V0+i}, 0x3f803f80")
    for i in range(16):
        E(f"v_mov_b32 v{OA+i}, 0")
    for i in range(8, 16):
        E(f"v_mov_b32 v{S1+i}, 0")
    E(f"s_mov_b32 s{S_VM}, 0xffff")
    E(f"s_mov_b32 s{S_VM+1}, 0xffff")
    E(f"s_mov_b32 s{S_SLOT}, 0")
    E(f"s_mov_b32 s{S_CNT}, 0")
    E("s_waitcnt vmcnt(10)")
    E(f"v_readfirstlane_b32 s{S_TAG}, v14")
    dpp_max((12, 13))
    E("s_nop 0")
    E("v_mul_f32 v12, v12, v13")
    E("s_nop 0")
    E(f"v_readlane_b32 s{S_T0}, v12, 63")
    E("s_waitcnt vmcnt(8)")
    E("s_barrier")
    stamp(5)
    E(f"s_cmp_gt_u32 s{S_T0}, {THR2:#x}")
    if O.force_slow:
        E("s_branch A_slow")
    E("s_cbranch_scc1 A_slow")

    def chunk_turn():
        E("s_waitcnt vmcnt(0)")
        E("s_barrier")
        E(f"s_add_u32 s{S_T0}, s{S_CNT}, -1")
        E(f"s_cmp_gt_u32 s{S_T0}, 2")
        lab = f"A_nf{len(E.L)}"
        E(f"s_cbranch_scc1 {lab}")
        a_kv_dma()
        E.label(lab)
        E(f"s_add_u32 s{S_SLOT}, s{S_SLOT}, {KVS}")
        E(f"s_cmp_eq_u32 s{S_SLOT}, {5*KVS}")
        E(f"s_cselect_b32 s{S_SLOT}, 0, s{S_SLOT}")

    def vreads(dst, off):
        E(f"s_mov_b64 exec, s[{S_VM}:{S_VM+1}]")
        E(f"ds_read_b128 {vr(dst,4)}, v{VV} offset:{off}")
        E(f"ds_read_b128 {vr(dst+4,4)}, v{VV} offset:{off+512}")
        E("s_mov_b64 exec, -1")

    E(f"ds_read_b128 {vr(K0,4)}, v{VK}")
    E(f"ds_read_b128 {vr(K1,4)}, v{VK} offset:2048")
    vreads(V0, 0)
    E("s_waitcnt lgkmcnt(0)")
    E(f"v_mfma_f32_32x32x16_bf16 {vr(S0,16)}, {vr(K0,4)}, {vr(QF,4)}, 0")
    E("s_nop 15")
    E.raw(".p2align 6")
    E.label("A_loop")
    for t in range(8):
        p = t & 1
        Sc, Sn = (S0, S1) if p == 0 else (S1, S0)
        Vc, Vn = (V0, V1) if p == 0 else (V1, V0)
        Kc, Kn = (K0, K1) if p == 0 else (K1, K0)
        if t == 6:
            chunk_turn()
            E(f"v_add_u32 v{VK}, s{S_SLOT}, v{VKB}")
        if t == 7:
            E(f"v_add_u32 v{VV}, s{S_SLOT}, v{VVB}")
        ex = lambda a, b: [E(f"v_exp_f32 v{Sc+i}, v{Sc+i}") for i in range(a, b)]
        ex(0, 2)
        E(f"v_smfmac_f32_32x32x32_bf16 {vr(OA,16)}, {vr(Vn+4,4)}, {vr(Sn+8,8)}, v{IDX}")
        E("s_waitcnt lgkmcnt(0)")
        ex(2, 6)
        E(f"v_mfma_f32_32x32x16_bf16 {vr(Sn,16)}, {vr(Kn,4)}, {vr(QF,4)}, 0")
        vreads(Vn, ((t + 1) % 8) * 2048)
        E(f"ds_read_b128 {vr(Kc,4)}, v{VK} offset:{((t + 2) % 8) * 2048}")
        ex(6, 10)
        E(f"v_smfmac_f32_32x32x32_bf16 {vr(OA,16)}, {vr(Vc,4)}, {vr(Sc,8)}, v{IDX}")
        ex(10, 16)
    E(f"s_add_u32 s{S_CNT}, s{S_CNT}, 1")
    E(f"s_cmp_lt_u32 s{S_CNT}, 8")
    E("s_cbranch_scc1 A_loop")
    E("s_nop 1")
    E(f"v_smfmac_f32_32x32x32_bf16 {vr(OA,16)}, {vr(V1+4,4)}, {vr(S1+8,8)}, v{IDX}")
    E.label("A_fin")
    E("s_waitcnt lgkmcnt(0)")
    stamp(6)
    E(f"s_mul_i32 s{S_T0}, s{S_B}, 144")
    E(f"s_add_u32 s{S_T0}, s{S_T0}, s{S_D}")
    E(f"s_lshl_b32 s{S_T0}, s{S_T0}, 10")
    E(f"s_add_u32 s{S_T0}, s{S_T0}, {WS_HO + 112*1024:#x}")
    E(f"s_lshl_b32 s{S_T1}, s{S_B}, 7")
    E(f"s_lshl_b32 s{S_T2}, s{S_D}, 2")
    E(f"s_add_u32 s{S_T1}, s{S_T1}, s{S_T2}")
    E(f"s_add_u32 s{S_T1}, s{S_T1}, {WS_FO:#x}")
    E("s_nop 7")
    E(f"v_rcp_f32 v12, v{OA+8}")
    E("s_nop 0")
    for i in range(8):
        E(f"v_mul_f32 v{OA+i}, v12, v{OA+i}")
    for i in range(4):
        E(f"v_cvt_pk_bf16_f32 v{16+i}, v{OA+2*i}, v{OA+2*i+1}")
    E(f"buffer_store_dwordx4 v[16:19], v{VKB}, {sr(WS)}, s{S_T0} offen sc0 sc1")
    E("s_waitcnt vmcnt(0)")
    put_flag(S_T1)
    stamp(7)
    flush_stamps(range(8), "A_st")
    E("s_endpgm")

    E.label("A_slow")
    M, T = 12, 13
    E(f"v_mov_b32 v{M}, 0xff7fffff")
    E.label("A_sloop")
    E(f"s_mov_b32 s{S_T3}, 0")
    E.label("A_stile")
    E(f"ds_read_b128 {vr(K0,4)}, v{VK}")
    vreads(V0, 0)
    E("s_waitcnt lgkmcnt(0)")
    E(f"v_mfma_f32_32x32x16_bf16 {vr(S0,16)}, {vr(K0,4)}, {vr(QF,4)}, 0")
    E(f"v_add_u32 v{VK}, 2048, v{VK}")
    E(f"v_add_u32 v{VV}, 2048, v{VV}")
    E("s_nop 15")
    E(f"v_max3_f32 v{T}, v{S0}, v{S0+1}, v{M}")
    for i in range(1, 8):
        E(f"v_max3_f32 v{T}, v{S0+2*i}, v{S0+2*i+1}, v{T}")
    E(f"v_mov_b32 v14, v{T}")
    E("s_nop 1")
    E(f"v_permlane32_swap_b32 v{T}, v14")
    E("s_nop 1")
    E(f"v_max_f32 v{T}, v{T}, v14")
    E(f"v_sub_f32 v14, v{M}, v{T}")
    E("v_exp_f32 v14, v14")
    E(f"v_mov_b32 v{M}, v{T}")
    for i in range(16):
        E(f"v_sub_f32 v{S0+i}, v{S0+i}, v{T}")
    for i in range(16):
        E(f"v_exp_f32 v{S0+i}, v{S0+i}")
    for i in range(16):
        E(f"v_mul_f32 v{OA+i}, v14, v{OA+i}")
    E("s_nop 1")
    E(f"v_smfmac_f32_32x32x32_bf16 {vr(OA,16)}, {vr(V0,4)}, {vr(S0,8)}, v{IDX}")
    E(f"v_smfmac_f32_32x32x32_bf16 {vr(OA,16)}, {vr(V0+4,4)}, {vr(S0+8,8)}, v{IDX}")
    E(f"s_add_u32 s{S_T3}, s{S_T3}, 1")
    E(f"s_cmp_lt_u32 s{S_T3}, 8")
    E("s_cbranch_scc1 A_stile")
    chunk_turn()
    E(f"v_add_u32 v{VK}, s{S_SLOT}, v{VKB}")
    E(f"v_add_u32 v{VV}, s{S_SLOT}, v{VVB}")
    E(f"s_add_u32 s{S_CNT}, s{S_CNT}, 1")
    E(f"s_cmp_lt_u32 s{S_CNT}, 8")
    E("s_cbranch_scc1 A_sloop")
    E("s_branch A_fin")


F_XS, F_WS0, F_WSZ = 16384, 32768, 16384
WROW = 3584


def f_dma_x(u, vm):
    E(f"s_add_u32 m0, s{S_W1K}, {(u % 2) * F_XS}")
    E(f"s_add_u32 s{S_T0}, s{S_XB}, s{S_XK}")
    E(f"buffer_load_dwordx4 v1, {sr(X)}, s{S_T0} offen lds")
    E(f"s_add_u32 m0, s{S_W1K}, {(u % 2) * F_XS + 8192}")
    E(f"s_add_u32 s{S_T0}, s{S_T0}, 0x10000")
    E(f"buffer_load_dwordx4 v1, {sr(X)}, s{S_T0} offen lds")
    E(f"s_add_u32 s{S_XK}, s{S_XK}, 128")
    E(f"s_and_b32 s{S_XK}, s{S_XK}, 1023")
    vm.issue(("x", u), 2)


def f_dma_w(s, vm):
    base = F_WS0 + (s % 3) * F_WSZ
    E(f"s_add_u32 m0, s{S_W1K}, {base}")
    E("s_nop 0")
    E(f"buffer_load_dwordx4 v2, {sr(W1)}, s{S_WK} offen lds")
    E(f"s_add_u32 m0, s{S_W1K}, {base + 8192}")
    E("s_nop 0")
    E(f"buffer_load_dwordx4 v3, {sr(WU)}, s{S_WK} offen lds")
    E(f"s_add_u32 s{S_WK}, s{S_WK}, {32 * WROW}")
    E(f"s_cmp_eq_u32 s{S_WK}, {512 * WROW}")
    E(f"s_cselect_b32 s{S_WK}, 0, s{S_WK}")
    vm.issue(("w", s), 2)


def f_prologue():
    E("s_cmp_ge_u32 s2, 512")
    E("s_cbranch_scc1 L_end")
    stamp(0)
    E(f"s_load_dwordx2 s[{X}:{X+1}], s[0:1], 0")
    E(f"s_load_dwordx2 s[{W1}:{W1+1}], s[0:1], 32")
    E(f"s_load_dwordx2 s[{WU}:{WU+1}], s[0:1], 40")
    E(f"s_load_dwordx2 s[{WS}:{WS+1}], s[0:1], 80")
    E(f"s_load_dwordx2 s[{DBG}:{DBG+1}], s[0:1], 72")
    E(f"s_load_dwordx2 s[{WD}:{WD+1}], s[0:1], 48")
    E(f"s_load_dwordx2 s[{WO}:{WO+1}], s[0:1], 16")
    E(f"s_load_dwordx2 s[{OUT}:{OUT+1}], s[0:1], 64")
    E(f"s_load_dwordx2 s[{GW}:{GW+1}], s[0:1], 56")
    E("v_lshrrev_b32 v8, 6, v0")
    E(f"s_bfe_u32 s{S_C}, s2, 0x50003")
    E(f"v_readfirstlane_b32 s{S_WAVE}, v8")
    E(f"s_cmp_ge_u32 s{S_C}, 28")
    E("s_cbranch_scc0 F_main")
    E("s_getpc_b64 s[4:5]")
    E.label("F_pc")
    E(f"s_add_u32 s4, s4, CODE_START - F_pc")
    E("s_addc_u32 s5, s5, -1")
    E("s_mov_b32 s6, CODE_END - CODE_START")
    E("s_mov_b32 s7, 0x20000")
    E("v_lshlrev_b32 v9, 7, v0")
    E("buffer_load_dword v120, v9, s[4:7], 0 offen")
    E("s_branch F_main")


def f_main():
    E.label("F_main")
    srd(X, 0x200000); srd(W1, 512 * WROW); srd(WU, 512 * WROW); srd(WS, WS_SIZE); srd(DBG, 256)
    srd(WD, 1792 * 1024); srd(WO, 512 * 1024); srd(OUT, 0x200000); srd(GW, 1024)
    E(f"s_lshl_b32 s{S_W1K}, s{S_WAVE}, 10")
    E(f"s_setprio {O.prio_f}")
    E("v_lshrrev_b32 v9, 3, v0")
    E("v_lshrrev_b32 v10, 4, v0")
    E("v_xor_b32 v11, v10, v0")
    E("v_and_b32 v11, 7, v11")
    E("v_lshlrev_b32 v11, 4, v11")
    E("v_lshl_add_u32 v1, v9, 10, v11")
    E("s_waitcnt lgkmcnt(0)")
    E(f"s_cmp_ge_u32 s{S_C}, 28")
    E("s_cbranch_scc1 F_gate")
    E(f"s_and_b32 s{S_T0}, s{S_C}, 3")
    E(f"s_lshr_b32 s{S_T1}, s{S_C}, 2")
    E(f"s_and_b32 s{S_A}, s2, 3")
    E(f"s_lshl_b32 s{S_A}, s{S_A}, 2")
    E(f"s_add_u32 s{S_A}, s{S_A}, s{S_T0}")
    E(f"s_bfe_u32 s{S_B}, s2, 0x10002")
    E(f"s_mul_i32 s{S_B}, s{S_B}, 7")
    E(f"s_add_u32 s{S_B}, s{S_B}, s{S_T1}")
    E(f"s_lshl_b32 s{S_T0}, s{S_T0}, 1")
    E(f"s_add_u32 s{S_T0}, s{S_T0}, s{S_T1}")
    E(f"s_and_b32 s{S_T0}, s{S_T0}, 7")
    E(f"s_lshl_b32 s{S_XK}, s{S_T0}, 7")
    E(f"s_mul_i32 s{S_WK}, s{S_T0}, {64 * WROW}")
    E(f"s_lshl_b32 s{S_XB}, s{S_A}, 17")
    E(f"v_mul_u32_u24 v9, {WROW}, v10")
    E("v_bfe_u32 v11, v0, 1, 3")
    E("v_and_b32 v10, 3, v10")
    E("v_xor_b32 v11, v11, v10")
    E("v_lshl_add_u32 v9, v11, 5, v9")
    E("v_and_b32 v11, 1, v0")
    E("v_lshl_add_u32 v9, v11, 4, v9")
    E(f"s_lshl_b32 s{S_T0}, s{S_B}, 8")
    E(f"v_add_u32 v2, s{S_T0}, v9")
    E("v_xor_b32 v3, 128, v2")
    vm = VM()

    def fill():
        f_dma_x(0, vm); f_dma_w(0, vm); f_dma_w(1, vm); f_dma_x(1, vm); f_dma_w(2, vm)

    if O.f_fill_early:
        fill()
    E("v_and_b32 v8, 31, v0")
    E("v_lshrrev_b32 v9, 1, v8")
    E("v_and_b32 v9, 7, v9")
    E("v_bfe_u32 v10, v0, 5, 1")
    E("v_xor_b32 v9, v9, v10")
    E("v_lshlrev_b32 v9, 4, v9")
    E("v_lshl_add_u32 v9, v8, 7, v9")
    E("v_bfe_u32 v8, v0, 6, 1")
    E("v_lshl_add_u32 v4, v8, 13, v9")
    for ks in (1, 2, 3):
        E(f"v_xor_b32 v{4+ks}, {32*ks}, v4")
    E("v_bfe_u32 v8, v0, 2, 2")
    E("v_lshl_add_u32 v9, v10, 3, v8")
    E("v_lshlrev_b32 v9, 8, v9")
    E("v_bfe_u32 v10, v0, 4, 1")
    E("v_lshl_add_u32 v9, v10, 13, v9")
    E("v_lshlrev_b32 v10, 2, v10")
    E("v_xor_b32 v8, v8, v10")
    E("v_lshrrev_b32 v10, 7, v0")
    E("v_lshlrev_b32 v10, 1, v10")
    E("v_xor_b32 v8, v8, v10")
    E("v_lshl_add_u32 v9, v8, 5, v9")
    E("v_and_b32 v8, 3, v0")
    E("v_lshl_add_u32 v9, v8, 3, v9")
    E(f"v_add_u32 v8, {F_WS0}, v9")
    E("v_xor_b32 v9, 32, v8")
    E(f"s_cmp_lg_u32 s{S_WAVE}, 0")
    E("s_cbranch_scc1 F_go")
    get_tag("F_tag")
    E.label("F_go")
    if not O.f_fill_early:
        E("s_barrier")
        fill()
    stamp(1)

    def reads(s, kk):
        b = 16 + 16 * kk
        u = s // 2
        for rbk in (0, 1):
            E(f"ds_read_b128 {vr(b+4*rbk,4)}, v{4 + 2*(s&1) + kk} offset:{(u % 2) * F_XS + rbk * 4096}")
        for bb in (0, 1):
            for q in (0, 1):
                E(f"ds_read_b64_tr_b16 {vr(b+8+4*bb+2*q,2)}, v{8+bb} offset:{(s % 3) * F_WSZ + kk * 4096 + q * 1024}")

    def mfmas(s, kk):
        b = 16 + 16 * kk
        for rbk in (0, 1):
            for bb in (0, 1):
                acc = vr(64 + 16 * (2 * rbk + bb), 16)
                c = "0" if (s == 0 and kk == 0) else acc
                E(f"v_mfma_f32_32x32x16_bf16 {acc}, {vr(b+8+4*bb,4)}, {vr(b+4*rbk,4)}, {c}")

    E(f"s_waitcnt vmcnt({vm.need(('x',0),('w',0))})")
    E("s_barrier")
    stamp(2)
    reads(0, 0)
    reads(0, 1)
    for s in range(16):
        E("s_waitcnt lgkmcnt(6)")
        mfmas(s, 0)
        if s < 15:
            E(f"s_waitcnt vmcnt({vm.need(('x',(s+1)//2),('w',s+1))}) lgkmcnt(0)")
            E("s_barrier")
            if s + 3 <= 15:
                f_dma_w(s + 3, vm)
            if s % 2 == 1 and (s + 1) // 2 + 1 <= 7:
                f_dma_x((s + 1) // 2 + 1, vm)
            reads(s + 1, 0)
            mfmas(s, 1)
            reads(s + 1, 1)
        else:
            E("s_waitcnt lgkmcnt(0)")
            mfmas(s, 1)
    stamp(3)
    E(f"s_and_b32 s{S_T0}, s{S_WAVE}, 1")
    E(f"s_lshl_b32 s{S_T0}, s{S_T0}, 1")
    E(f"s_lshl_b32 s{S_T1}, s{S_A}, 2")
    E(f"s_add_u32 s{S_T0}, s{S_T0}, s{S_T1}")
    E(f"s_mul_i32 s{S_T0}, s{S_T0}, 144")
    E(f"s_lshl_b32 s{S_T1}, s{S_B}, 3")
    E(f"s_add_u32 s{S_T0}, s{S_T0}, s{S_T1}")
    E(f"s_and_b32 s{S_T1}, s{S_WAVE}, 6")
    E(f"s_add_u32 s{S_T0}, s{S_T0}, s{S_T1}")
    E(f"s_lshl_b32 s{S_T0}, s{S_T0}, 10")
    E(f"s_add_u32 s{S_T0}, s{S_T0}, {WS_HO:#x}")
    E(f"s_add_u32 s{S_T1}, s{S_T0}, {144 * 1024}")
    E(f"s_mov_b32 s{S_T2}, {NLOG2E:#x}")
    E(f"s_mov_b32 s{S_T3}, {NLOG2E:#x}")
    E("v_and_b32 v10, 63, v0")
    E("v_lshlrev_b32 v10, 4, v10")
    E("v_mov_b32 v12, 1.0")
    E("v_mov_b32 v13, 1.0")
    E("s_nop 4")
    for tl in range(4):
        a = 64 + 16 * tl
        t = 16 + 8 * (tl & 1)
        pk = 32 + 4 * tl
        for i in range(4):
            E(f"v_pk_mul_f32 {vr(t+2*i,2)}, {vr(a+2*i,2)}, s[{S_T2}:{S_T3}]")
        for i in range(8):
            E(f"v_exp_f32 v{t+i}, v{t+i}")
        for i in range(4):
            E(f"v_pk_mul_f32 {vr(a+2*i,2)}, {vr(a+2*i,2)}, {vr(a+8+2*i,2)}")
        for i in range(4):
            E(f"v_pk_add_f32 {vr(t+2*i,2)}, {vr(t+2*i,2)}, v[12:13]")
        for i in range(8):
            E(f"v_rcp_f32 v{t+i}, v{t+i}")
        E("s_nop 0")
        for i in range(4):
            E(f"v_pk_mul_f32 {vr(a+2*i,2)}, {vr(a+2*i,2)}, {vr(t+2*i,2)}")
        for i in range(4):
            E(f"v_cvt_pk_bf16_f32 v{pk+i}, v{a+2*i}, v{a+2*i+1}")
        E(f"buffer_store_dwordx4 {vr(pk,4)}, v10, {sr(WS)}, s{S_T0 + (tl >> 1)} offen offset:{(tl & 1) * 1024} sc0 sc1")
    E(f"s_lshl_b32 s{S_T0}, s{S_A}, 7")
    E(f"s_lshl_b32 s{S_T1}, s{S_B}, 2")
    E(f"s_add_u32 s{S_T0}, s{S_T0}, s{S_T1}")
    E.label("F_pub")
    E(f"s_add_u32 s{S_T0}, s{S_T0}, {WS_FH:#x}")
    E("s_waitcnt vmcnt(0)")
    E("s_barrier")
    stamp(4)
    E(f"s_and_b32 s{S_A}, s2, 7")
    E(f"s_lshl_b32 s{S_A}, s{S_A}, 2")
    E(f"s_and_b32 s{S_T1}, s{S_C}, 3")
    E(f"s_add_u32 s{S_A}, s{S_A}, s{S_T1}")
    E(f"s_lshr_b32 s{S_B}, s{S_C}, 2")
    E(f"s_cmp_lg_u32 s{S_WAVE}, 0")
    E("s_cbranch_scc1 F_wait2")
    put_flag(S_T0)
    E("v_and_b32 v10, 15, v0")
    E("v_lshlrev_b32 v10, 2, v10")
    E(f"s_lshr_b32 s{S_T0}, s{S_A}, 1")
    E(f"s_lshl_b32 s{S_T0}, s{S_T0}, 7")
    E(f"s_add_u32 s{S_T0}, s{S_T0}, {WS_FH:#x}")
    poll("F_pollh", 10, f"s{S_T0}")
    E.label("F_wait2")
    E("v_and_b32 v8, 63, v0")
    E("v_lshlrev_b32 v12, 4, v8")
    E(f"s_and_b32 s{S_T0}, s{S_WAVE}, 1")
    E(f"s_mul_i32 s{S_T1}, s{S_T0}, 144")
    E(f"s_lshr_b32 s{S_T2}, s{S_WAVE}, 1")
    E(f"s_add_u32 s{S_T1}, s{S_T1}, s{S_T2}")
    E(f"s_lshl_b32 s{S_T1}, s{S_T1}, 10")
    E(f"v_add_u32 v1, s{S_T1}, v12")
    E(f"s_lshl_b32 s{S_T1}, s{S_T0}, 2")
    E(f"s_add_u32 s{S_T1}, s{S_T1}, s{S_T2}")
    E(f"s_lshl_b32 s{S_D}, s{S_T1}, 10")
    E("v_bfe_u32 v10, v0, 4, 1")
    E("v_lshlrev_b32 v9, 2, v10")
    E("v_xor_b32 v9, v9, v0")
    E("v_and_b32 v9, 7, v9")
    E("v_lshlrev_b32 v9, 4, v9")
    E("v_lshrrev_b32 v11, 3, v0")
    E("v_lshl_add_u32 v9, v11, 10, v9")
    E(f"s_lshl_b32 s{S_T1}, s{S_B}, 7")
    E(f"v_add_u32 v2, s{S_T1}, v9")
    E(f"s_lshl_b32 s{S_T0}, s{S_T0}, 12")
    E(f"s_lshr_b32 s{S_T1}, s{S_WAVE}, 2")
    E(f"s_lshl_b32 s{S_T1}, s{S_T1}, 11")
    E(f"s_add_u32 s{S_T0}, s{S_T0}, s{S_T1}")
    E(f"v_add_u32 v4, s{S_T0}, v12")
    E("v_bfe_u32 v8, v0, 2, 2")
    E("v_bfe_u32 v9, v0, 5, 1")
    E("v_lshl_add_u32 v9, v9, 2, v8")
    E("v_lshrrev_b32 v11, 8, v0")
    E("v_lshl_add_u32 v9, v11, 5, v9")
    E("v_lshlrev_b32 v9, 7, v9")
    E("v_lshrrev_b32 v8, 1, v8")
    E("v_bfe_u32 v11, v0, 7, 1")
    E("v_xor_b32 v8, v8, v11")
    E("v_lshl_add_u32 v9, v8, 6, v9")
    E("v_lshl_add_u32 v9, v10, 5, v9")
    E("v_and_b32 v8, 3, v0")
    E("v_lshl_add_u32 v9, v8, 3, v9")
    E("v_add_u32 v5, 8192, v9")
    _m_fix_base()
    E(f"s_mul_i32 s{S_T0}, s{S_B}, 7")
    E(f"s_lshr_b32 s{S_T0}, s{S_T0}, 1")
    E(f"s_and_b32 s{S_T1}, s{S_C}, 3")
    E(f"s_mul_i32 s{S_T1}, s{S_T1}, 7")
    E(f"s_add_u32 s{S_T0}, s{S_T0}, s{S_T1}")
    E(f"s_cmp_ge_u32 s{S_T0}, 28")
    E(f"s_cselect_b32 s{S_T1}, 28, 0")
    E(f"s_sub_u32 s{S_XK}, s{S_T0}, s{S_T1}")
    E("s_barrier")
    stamp(5)

    def dma(slot, wsrd, wrap):
        E(f"s_add_u32 m0, s{S_D}, {slot * 16384}")
        E(f"s_lshl_b32 s{S_T0}, s{S_XK}, 12")
        E(f"s_add_u32 s{S_T0}, s{S_T0}, s{S_XB}")
        E(f"buffer_load_dwordx4 v1, {sr(WS)}, s{S_T0} offen sc1 lds")
        E(f"s_add_u32 m0, s{S_W1K}, {slot * 16384 + 8192}")
        E(f"s_lshl_b32 s{S_T0}, s{S_XK}, 16")
        E(f"buffer_load_dwordx4 v2, {sr(wsrd)}, s{S_T0} offen lds")
        E(f"s_add_u32 s{S_XK}, s{S_XK}, 1")
        if wrap:
            E(f"s_cmp_eq_u32 s{S_XK}, 28")
            E(f"s_cselect_b32 s{S_XK}, 0, s{S_XK}")

    def greads(slot):
        b = 16 + 16 * (slot & 1)
        for kk in (0, 1):
            E(f"ds_read_b128 {vr(b+4*kk,4)}, v4 offset:{slot * 16384 + kk * 1024}")
        for kk in (0, 1):
            for q in (0, 1):
                E(f"ds_read_b64_tr_b16 {vr(b+8+4*kk+2*q,2)}, v5 offset:{slot * 16384 + kk * 2048 + q * 1024}")

    def block(acc, wsrd, refill, wrap):
        for t in range(4):
            b = 16 + 16 * (t & 1)
            if refill or t < 3:
                n = 4 if refill else (2 - t) * 2
                E(f"s_waitcnt vmcnt({n}) lgkmcnt(0)")
                E("s_barrier")
                if refill:
                    dma(t, wsrd, wrap)
                greads((t + 1) % 4)
            else:
                E("s_waitcnt lgkmcnt(0)")
            for kk in (0, 1):
                E(f"v_mfma_f32_32x32x16_bf16 {vr(acc,16)}, {vr(b+8+4*kk,4)}, {vr(b+4*kk,4)}, {vr(acc,16)}")

    for t in range(4):
        dma(t, WD, True)
    for i in range(32):
        E(f"v_mov_b32 v{64+i}, 0")
    E(f"s_mov_b32 s{S_CNT}, 0")
    E("s_waitcnt vmcnt(6)")
    E("s_barrier")
    greads(0)
    E.label("F_dloop")
    if O.late_iter <= 5:
        E(f"s_cmp_lg_u32 s{S_CNT}, {O.late_iter}")
        E("s_cbranch_scc1 F_nolow")
        E(f"s_setprio {O.prio_f_late}")
        E.label("F_nolow")
    block(64, WD, True, True)
    E(f"s_add_u32 s{S_CNT}, s{S_CNT}, 1")
    E(f"s_cmp_lt_u32 s{S_CNT}, 6")
    E("s_cbranch_scc1 F_dloop")
    if O.late_iter == 6:
        E(f"s_setprio {O.prio_f_late}")
    block(64, WD, False, False)
    stamp(6)
    E("v_and_b32 v8, 31, v0")
    E("v_bfe_u32 v9, v0, 6, 1")
    E("v_lshl_add_u32 v8, v9, 5, v8")
    E("v_lshlrev_b32 v9, 2, v8")
    E(f"s_lshl_b32 s{S_T0}, s{S_A}, 8")
    E(f"s_add_u32 s{S_T0}, s{S_T0}, {WS_G:#x}")
    E(f"buffer_load_dword v14, v9, {sr(WS)}, s{S_T0} offen sc1")
    E(f"s_cmp_lg_u32 s{S_WAVE}, 0")
    E("s_cbranch_scc1 F_wait3")
    E("v_lshlrev_b32 v10, 2, v0")
    E(f"s_lshl_b32 s{S_T0}, s{S_A}, 8")
    E(f"s_add_u32 s{S_T0}, s{S_T0}, {WS_FO:#x}")
    poll("F_pollo", 10, f"s{S_T0}")
    E.label("F_wait3")
    E(f"s_add_u32 s{S_XB}, s{S_XB}, {112 * 1024}")
    E(f"s_mov_b32 s{S_XK}, 0")
    E(f"s_setprio {O.prio_f}")
    E("s_barrier")
    stamp(7)
    for t in range(4):
        dma(t, WO, False)
    E("s_waitcnt vmcnt(6)")
    E("s_barrier")
    greads(0)
    block(80, WO, True, False)
    block(80, WO, False, False)
    stamp(8)
    E("v_lshlrev_b32 v8, 10, v8")
    E("v_bfe_u32 v9, v0, 5, 1")
    E("v_lshl_add_u32 v8, v9, 4, v8")
    E("v_bfe_u32 v9, v0, 7, 1")
    E("v_lshl_add_u32 v8, v9, 6, v8")
    E("v_lshrrev_b32 v9, 8, v0")
    E("v_lshl_add_u32 v8, v9, 5, v8")
    E(f"s_lshl_b32 s{S_T0}, s{S_A}, 16")
    E(f"s_lshl_b32 s{S_T1}, s{S_B}, 7")
    E(f"s_add_u32 s{S_T0}, s{S_T0}, s{S_T1}")
    E(f"s_lshl_b32 s{S_T1}, s{S_WAVE}, 11")
    E(f"s_add_u32 s{S_T1}, s{S_T1}, 65536")
    E(f"s_xor_b32 s{S_T2}, s{S_T1}, 8192")
    E(f"v_add_u32 v10, s{S_T1}, v12")
    E(f"v_add_u32 v11, s{S_T2}, v12")
    E("v_sub_f32 v15, 1.0, v14")
    E("s_nop 4")
    for i in range(16):
        E(f"v_mul_f32 v{64+i}, v15, v{64+i}")
    for i in range(16):
        E(f"v_fmac_f32 v{64+i}, v14, v{80+i}")
    E(f"s_cmp_ge_u32 s{S_WAVE}, 4")
    E("s_cbranch_scc1 F_hi")
    E("ds_write_b128 v10, v[72:75]")
    E("ds_write_b128 v10, v[76:79] offset:1024")
    E("s_branch F_x")
    E.label("F_hi")
    E("ds_write_b128 v10, v[64:67]")
    E("ds_write_b128 v10, v[68:71] offset:1024")
    E("s_nop 1")
    for i in range(8):
        E(f"v_mov_b32 v{64+i}, v{72+i}")
    E.label("F_x")
    E("s_waitcnt lgkmcnt(0)")
    E("s_barrier")
    E("ds_read_b128 v[80:83], v11")
    E("ds_read_b128 v[84:87], v11 offset:1024")
    E("s_waitcnt lgkmcnt(0)")
    for i in range(8):
        E(f"v_add_f32 v{64+i}, v{64+i}, v{80+i}")
    for i in range(4):
        E(f"v_cvt_pk_bf16_f32 v{16+i}, v{64+2*i}, v{65+2*i}")
    E("s_nop 1")
    E("v_permlane32_swap_b32 v16, v18")
    E("v_permlane32_swap_b32 v17, v19")
    E(f"buffer_store_dwordx4 v[16:19], v8, {sr(OUT)}, s{S_T0} offen")
    stamp(9)
    flush_stamps(range(10), "F_st")
    E("s_endpgm")

    E.label("F_gate")
    E(f"s_and_b32 s{S_A}, s2, 7")
    E(f"s_lshl_b32 s{S_A}, s{S_A}, 2")
    E(f"s_add_u32 s{S_A}, s{S_A}, s{S_C}")
    E(f"s_sub_u32 s{S_A}, s{S_A}, 28")
    E(f"s_lshl_b32 s{S_T0}, s{S_A}, 16")
    E("v_and_b32 v10, 7, v0")
    E("v_lshlrev_b32 v10, 4, v10")
    E("v_lshl_add_u32 v11, v9, 10, v10")
    for i in range(8):
        E(f"buffer_load_dwordx4 {vr(16+4*i,4)}, v11, {sr(X)}, s{S_T0} offen offset:{128*i}")
    for i in range(8):
        E(f"buffer_load_dwordx4 {vr(48+4*i,4)}, v10, {sr(GW)}, 0 offen offset:{128*i}")
    E("v_mov_b32 v12, 0")
    E("v_mov_b32 v13, 0")
    E("s_waitcnt vmcnt(0)")
    for i in range(32):
        E(f"v_dot2_f32_bf16 v{12 + (i & 1)}, v{16+i}, v{48+i}, v{12 + (i & 1)}")
        if i % 2 == 1:
            E("s_nop 0")
    E("s_nop 2")
    E("v_add_f32 v12, v12, v13")
    for ctl in ("quad_perm:[1,0,3,2]", "quad_perm:[2,3,0,1]", "row_half_mirror"):
        E("s_nop 1")
        E(f"v_add_f32_dpp v12, v12, v12 {ctl} row_mask:0xf bank_mask:0xf")
    E(f"v_mul_f32 v12, {NLOG2E:#x}, v12")
    E("v_exp_f32 v12, v12")
    E("s_nop 0")
    E("v_add_f32 v12, 1.0, v12")
    E("v_rcp_f32 v12, v12")
    E("v_lshlrev_b32 v11, 2, v9")
    E(f"s_lshl_b32 s{S_T0}, s{S_A}, 8")
    E(f"s_add_u32 s{S_T0}, s{S_T0}, {WS_G:#x}")
    E("v_cmp_eq_u32 vcc, 0, v10")
    E("s_nop 4")
    E("s_mov_b64 exec, vcc")
    E(f"buffer_store_dword v12, v11, {sr(WS)}, s{S_T0} offen sc0 sc1")
    E("s_mov_b64 exec, -1")
    E(f"s_cmp_lg_u32 s{S_WAVE}, 0")
    E("s_cbranch_scc1 F_gate2")
    get_tag("F_tag2")
    E.label("F_gate2")
    for i in (1, 2, 3):
        stamp(i)
    E(f"s_lshr_b32 s{S_T0}, s{S_A}, 1")
    E(f"s_lshl_b32 s{S_T0}, s{S_T0}, 7")
    E(f"s_and_b32 s{S_T1}, s{S_A}, 1")
    E(f"s_lshl_b32 s{S_T1}, s{S_T1}, 2")
    E(f"s_add_u32 s{S_T0}, s{S_T0}, s{S_T1}")
    E(f"s_add_u32 s{S_T0}, s{S_T0}, 56")
    E("s_branch F_pub")


def _m_fix_base():
    E(f"s_mul_i32 s{S_XB}, s{S_A}, {288 * 1024}")
    E(f"s_add_u32 s{S_XB}, s{S_XB}, {WS_HO:#x}")


HEADER = """; Kernarg layout (88 bytes, ptrs only, base s[0:1]):
; @launch grid=(512,1,1) block=(512,1,1) lds=81920
.amdgcn_target "amdgcn-amd-amdhsa--gfx950"
.text
.globl {kn}
.p2align 8
.type {kn},@function
{kn}:
CODE_START:
"""

FOOTER = """CODE_END:
.section .rodata,"a"
.p2align 6
.amdhsa_kernel {kn}
  .amdhsa_next_free_vgpr 128
  .amdhsa_next_free_sgpr 102
  .amdhsa_accum_offset 128
  .amdhsa_group_segment_fixed_size 0
  .amdhsa_kernarg_size 88
  .amdhsa_user_sgpr_count 2
  .amdhsa_user_sgpr_kernarg_segment_ptr 1
  .amdhsa_system_sgpr_workgroup_id_x 1
.end_amdhsa_kernel
"""


def generate():
    E.L = []
    E("s_cmp_ge_u32 s2, 256")
    E("s_cbranch_scc1 F_entry")
    stamp(0)
    a_prologue()
    E("s_cbranch_vccnz A_vwave")
    E("s_branch A_qwave")
    E.label("F_entry")
    f_prologue()
    E.label("L_end")
    E("s_endpgm")
    E.label("A_qwave")
    a_qkv(False)
    E("s_branch A_att")
    E.label("A_vwave")
    a_qkv(True)
    E.label("A_att")
    a_attention()
    f_main()
    return HEADER.format(kn=KN) + "\n".join(E.L) + "\n" + FOOTER.format(kn=KN)


if __name__ == "__main__":
    ap = argparse.ArgumentParser()
    ap.add_argument("-o", default="k.s")
    ap.add_argument("--set", action="append", default=[])
    a = ap.parse_args()
    for kv in a.set:
        k, v = kv.split("=")
        assert hasattr(O, k), k
        setattr(O, k, type(getattr(O, k))(int(v)))
    s = generate()
    open(a.o, "w").write(s)
    sys.path.insert(0, "cdna_kernels")
    from cdna_launch import with_harness_metadata, address_register_problem
    h = a.o[:-2] + ".harness.s"
    co = a.o[:-2] + ".co"
    open(h, "w").write(with_harness_metadata(s, KN, 11, launch_lists=True))
    r = subprocess.run(["clang", "-x", "assembler", "-target", "amdgcn-amd-amdhsa", "-mcpu=gfx950", h, "-o", co],
                       capture_output=True, text=True)
    if r.returncode:
        print(r.stderr[:4000]); sys.exit(1)
    p = address_register_problem(co, KN)
    print("check:", p)
    r = subprocess.run(f"llvm-nm {co} | grep -E 'CODE_|A_qwave|A_vwave|A_att|A_loop|A_fin|A_slow|F_entry|F_main|F_pub|F_dloop|F_gate$' | sort", shell=True, capture_output=True, text=True)
    print(r.stdout)
```

```python
import sys, subprocess, argparse

NAME = "gated_mix__softmax_full_mha__swiglu_ffn__prompt"
KN = NAME + "_kernel"

WS_KV, WS_Q, WS_HO = 0, 0x400000, 0x600000
WS_NRM, WS_G = 0xF00000, 0xF04000
WS_FKV, WS_FH, WS_FO = 0xF08000, 0xF09000, 0xF0A000
WS_STAMP = 0x1000000
WS_SIZE = 0x1100000
QSCALE = 0x3EB8AA3B
NLOG2E = 0xBFB8AA3B
THR2 = 0x45548000


class Opt:
    stamps = False
    hint_step = 8
    f_fill_early = False
    force_slow = False
    prio_a_qkv = 3
    prio_a_att = 1
    prio_f = 2
    prio_f_late = 0
    zrows = 1
    toggle = 0
    att_iters = 8
    prio_silu = 3
    gate_late = 1
    h_sc1 = 1
    no_f = 0
    late_iter = 99


O = Opt()


class Asm:
    def __init__(self):
        self.L = []

    def __call__(self, s):
        for x in s.strip("\n").split("\n"):
            self.L.append("    " + x.strip())

    def label(self, l):
        self.L.append(l + ":")

    def raw(self, s):
        self.L.append(s)


E = Asm()


def vr(a, n):
    return f"v[{a}:{a+n-1}]"


def srd(base, size):
    E(f"s_mov_b32 s{base+2}, {size:#x}")
    E(f"s_mov_b32 s{base+3}, 0x20000")


S_WAVE = 3
X, W1, WU, WS, DBG, WD, WO, OUT, GW = 12, 16, 20, 24, 28, 32, 36, 40, 44
def sr(b): return f"s[{b}:{b+3}]"
S_TAG = 48
S_W1K = 49
S_T0, S_T1, S_T2, S_T3 = 50, 51, 52, 53
S_XK, S_XB, S_WK, S_WB = 54, 55, 56, 57
S_CNT = 58
S_A, S_B, S_C, S_D = 59, 60, 61, 62
S_SLOT = 63
S_VM = 64
S_SPIN = 66
S_STAMP = 70


def stamp(i):
    if O.stamps:
        E(f"s_memrealtime s[{S_STAMP+2*i}:{S_STAMP+2*i+1}]")
        E(f"s_memtime s[68:69]")
        E("s_waitcnt lgkmcnt(0)")
        E(f"s_mov_b32 s{S_STAMP+2*i+1}, s68")


def cstamp(i):
    if O.stamps:
        E(f"s_memtime s[{S_STAMP+2*i}:{S_STAMP+2*i+1}]")
        E("s_waitcnt lgkmcnt(0)")


def flush_stamps(idx, lab):
    if not O.stamps:
        return
    E(f"s_cmp_lg_u32 s{S_WAVE}, 0")
    E(f"s_cbranch_scc1 {lab}")
    E(f"s_lshl_b32 s{S_T0}, s2, 7")
    E(f"s_add_u32 s{S_T0}, s{S_T0}, {WS_STAMP:#x}")
    E("s_mov_b64 exec, 1")
    E("v_mov_b32 v1, 0")
    for i in idx:
        E(f"v_mov_b32 v2, s{S_STAMP+2*i}")
        E(f"buffer_store_dword v2, v1, {sr(WS)}, s{S_T0} offen offset:{4*i}")
        E(f"v_mov_b32 v3, s{S_STAMP+2*i+1}")
        E(f"buffer_store_dword v3, v1, {sr(WS)}, s{S_T0} offen offset:{64+4*i}")
    E("s_waitcnt vmcnt(0)")
    E.label(lab)


class VM:
    def __init__(self):
        self.q = []

    def issue(self, tag, n=1):
        self.q += [tag] * n

    def need(self, *tags):
        last = -1
        for i, t in enumerate(self.q):
            if t in tags:
                last = i
        for t in tags:
            assert t in self.q, t
        return len(self.q) - 1 - last


def poll(lab, voff_reg, soff, nlanes_desc=""):
    E(f"s_mov_b32 s{S_SPIN}, 0x40000")
    E.label(lab)
    E(f"buffer_load_dword v11, v{voff_reg}, {sr(WS)}, {soff} offen sc1")
    E("s_waitcnt vmcnt(0)")
    E(f"v_cmp_ne_u32 vcc, s{S_TAG}, v11")
    E("s_nop 4")
    E("s_cmp_eq_u64 vcc, 0")
    E(f"s_cbranch_scc1 {lab}_ok")
    E("s_sleep 2")
    E(f"s_sub_u32 s{S_SPIN}, s{S_SPIN}, 1")
    E(f"s_cmp_lg_u32 s{S_SPIN}, 0")
    E(f"s_cbranch_scc1 {lab}")
    E.label(lab + "_ok")


def get_tag(lab):
    E(f"s_mov_b32 s{S_SPIN}, 0x40000")
    E("v_mov_b32 v10, 0")
    E.label(lab)
    E(f"buffer_load_dword v11, v10, {sr(DBG)}, 0 offen sc1")
    E("s_waitcnt vmcnt(0)")
    E(f"v_readfirstlane_b32 s{S_TAG}, v11")
    E("s_nop 3")
    E(f"s_cmp_lg_u32 s{S_TAG}, 0")
    E(f"s_cbranch_scc1 {lab}_ok")
    E("s_sleep 4")
    E(f"s_sub_u32 s{S_SPIN}, s{S_SPIN}, 1")
    E(f"s_cmp_lg_u32 s{S_SPIN}, 0")
    E(f"s_cbranch_scc1 {lab}")
    E.label(lab + "_ok")


def put_flag(soff_sgpr):
    E("s_mov_b64 exec, 1")
    E("v_mov_b32 v10, 0")
    E(f"v_mov_b32 v11, s{S_TAG}")
    E(f"buffer_store_dword v11, v10, {sr(WS)}, s{soff_sgpr} offen sc0 sc1")
    E("s_mov_b64 exec, -1")


def dpp_max(regs):
    for ctl in ("row_shr:1", "row_shr:2", "row_shr:4", "row_shr:8",
                "row_bcast:15 row_mask:0xa", "row_bcast:31 row_mask:0xc"):
        E("s_nop 1")
        for r in regs:
            m = "" if "row_mask" in ctl else " row_mask:0xf"
            E(f"v_max_f32_dpp v{r}, v{r}, v{r} {ctl}{m} bank_mask:0xf")


A_XS, A_WS0, A_WSZ = 8192, 24576, 12288


def a_dma_x(u, vm):
    E(f"s_add_u32 m0, s{S_W1K}, {(u % 3) * A_XS}")
    E(f"s_add_u32 s{S_T0}, s{S_XB}, s{S_XK}")
    E(f"buffer_load_dwordx4 v1, {sr(X)}, s{S_T0} offen lds")
    E(f"s_add_u32 s{S_XK}, s{S_XK}, 128")
    E(f"s_and_b32 s{S_XK}, s{S_XK}, 1023")
    vm.issue(("x", u))


def a_dma_w(s, vm, vwave):
    base = A_WS0 + (s % 4) * A_WSZ
    E(f"s_add_u32 m0, s{S_W1K}, {base}")
    E(f"s_add_u32 s{S_T0}, s{S_WB}, s{S_WK}")
    E(f"buffer_load_dwordx4 v2, {sr(W1)}, s{S_T0} offen lds")
    vm.issue(("w", s))
    if vwave == "both":
        E(f"s_cbranch_vccz A_pw{s}")
        E(f"s_add_u32 m0, s{S_W1K}, {base + 3072}")
        E("s_nop 0")
        E(f"buffer_load_dwordx4 v2, {sr(W1)}, s{S_T0} offen offset:1024 lds")
        E.label(f"A_pw{s}")
    elif vwave:
        E(f"s_add_u32 m0, s{S_W1K}, {base + 3072}")
        E("s_nop 0")
        E(f"buffer_load_dwordx4 v2, {sr(W1)}, s{S_T0} offen offset:1024 lds")
        vm.issue(("w", s))
    E(f"s_add_u32 s{S_WK}, s{S_WK}, 98304")
    E(f"s_cmp_eq_u32 s{S_WK}, {16 * 98304}")
    E(f"s_cselect_b32 s{S_WK}, 0, s{S_WK}")


def a_prologue():
    E(f"s_load_dwordx2 s[{X}:{X+1}], s[0:1], 0")
    E(f"s_load_dwordx2 s[{W1}:{W1+1}], s[0:1], 8")
    E(f"s_load_dwordx2 s[{WS}:{WS+1}], s[0:1], 80")
    E(f"s_load_dwordx2 s[{DBG}:{DBG+1}], s[0:1], 72")
    E("v_lshrrev_b32 v8, 6, v0")
    E("v_lshrrev_b32 v9, 3, v0")
    E("v_lshrrev_b32 v10, 4, v0")
    E(f"v_readfirstlane_b32 s{S_WAVE}, v8")
    E("v_xor_b32 v11, v10, v0")
    E("v_and_b32 v11, 7, v11")
    E("v_lshlrev_b32 v11, 4, v11")
    E("v_lshl_add_u32 v1, v9, 10, v11")
    srd(X, 0x200000)
    srd(W1, 0x180000)
    E(f"s_lshr_b32 s{S_T0}, s2, 3")
    E(f"s_and_b32 s{S_T1}, s{S_T0}, 7")
    E(f"s_lshr_b32 s{S_T0}, s{S_T0}, 3")
    E(f"s_and_b32 s{S_A}, s2, 3")
    E(f"s_lshl_b32 s{S_A}, s{S_A}, 3")
    E(f"s_add_u32 s{S_A}, s{S_A}, s{S_T1}")
    E(f"s_and_b32 s{S_B}, s2, 4")
    E(f"s_add_u32 s{S_B}, s{S_B}, s{S_T0}")
    E(f"s_lshl_b32 s{S_T0}, s{S_T0}, 1")
    E(f"s_add_u32 s{S_T0}, s{S_T0}, s{S_T1}")
    E(f"s_and_b32 s{S_T0}, s{S_T0}, 7")
    E(f"s_lshl_b32 s{S_XK}, s{S_T0}, 7")
    E(f"s_mul_i32 s{S_WK}, s{S_T0}, {2 * 98304}")
    E(f"s_lshl_b32 s{S_XB}, s{S_A}, 16")
    E(f"s_lshl_b32 s{S_WB}, s{S_B}, 7")
    E(f"s_lshl_b32 s{S_W1K}, s{S_WAVE}, 10")
    E("v_and_b32 v9, 31, v9")
    E("v_mul_u32_u24 v9, 0xc00, v9")
    E("v_and_b32 v10, 1, v10")
    E("v_lshlrev_b32 v10, 2, v10")
    E("v_xor_b32 v10, v10, v0")
    E("v_and_b32 v10, 7, v10")
    E("v_lshl_add_u32 v9, v10, 4, v9")
    E("v_lshrrev_b32 v10, 8, v0")
    E("v_lshl_add_u32 v2, v10, 10, v9")
    E("v_cmp_eq_u32 vcc, 1, v10")
    E(f"s_setprio {O.prio_a_qkv}")
    E("s_waitcnt lgkmcnt(0)")
    vm = VM()
    a_dma_x(0, vm)
    a_dma_w(0, vm, "both")
    a_dma_w(1, vm, "both")
    a_dma_x(1, vm)
    a_dma_w(2, vm, "both")
    a_dma_w(3, vm, "both")
    a_dma_x(2, vm)
    srd(WS, WS_SIZE)
    srd(DBG, 256)


def a_qkv(vwave):
    p = "AV" if vwave else "AQ"
    vm = VM()
    n = 2 if vwave else 1
    for t in (("x", 0), ("w", 0), ("w", 1), ("x", 1), ("w", 2), ("w", 3), ("x", 2)):
        vm.issue(t, n if t[0] == "w" else 1)
    E("v_and_b32 v8, 31, v0")
    if vwave:
        E("v_and_b32 v9, 0x13, v8")
        E("v_lshlrev_b32 v10, 1, v8")
        E("v_and_b32 v10, 8, v10")
        E("v_or_b32 v9, v9, v10")
        E("v_lshrrev_b32 v10, 1, v8")
        E("v_and_b32 v10, 4, v10")
        E("v_or_b32 v8, v9, v10")
    E("v_lshrrev_b32 v9, 1, v8")
    E("v_and_b32 v9, 7, v9")
    E("v_bfe_u32 v10, v0, 5, 1")
    E("v_xor_b32 v9, v9, v10")
    E("v_lshlrev_b32 v9, 4, v9")
    E("v_lshl_add_u32 v9, v8, 7, v9")
    E("v_bfe_u32 v8, v0, 6, 1")
    E("v_lshl_add_u32 v3, v8, 12, v9")
    for ks in (1, 2, 3):
        E(f"v_xor_b32 v{3+ks}, {32*ks}, v3")
    E("v_bfe_u32 v8, v0, 2, 2")
    E("v_lshl_add_u32 v9, v10, 3, v8")
    E("v_lshlrev_b32 v9, 7, v9")
    E("v_bfe_u32 v10, v0, 7, 1")
    E("v_lshrrev_b32 v8, 1, v8")
    E("v_xor_b32 v8, v8, v10")
    E("v_lshl_add_u32 v9, v8, 6, v9")
    E("v_bfe_u32 v8, v0, 4, 1")
    E("v_lshl_add_u32 v9, v8, 5, v9")
    E("v_and_b32 v8, 3, v0")
    E("v_lshl_add_u32 v9, v8, 3, v9")
    E(f"v_add_u32 v7, {A_WS0}, v9")
    segs = (2,) if vwave else (0, 1)

    def reads(s):
        b = 16 + 24 * (s & 1)
        for kk in (0, 1):
            E(f"ds_read_b128 {vr(b+4*kk,4)}, v{3 + 2*(s&1) + kk} offset:{((s//2) % 3) * A_XS}")
        for si, sg in enumerate(segs):
            for kk in (0, 1):
                for q in (0, 1):
                    off = (s % 4) * A_WSZ + sg * 4096 + kk * 2048 + q * 512
                    E(f"ds_read_b64_tr_b16 {vr(b+8+8*si+4*kk+2*q,2)}, v7 offset:{off}")

    def mfmas(s):
        b = 16 + 24 * (s & 1)
        for kk in (0, 1):
            for si, sg in enumerate(segs):
                acc = vr(64 + 16 * si, 16)
                c = "0" if (s == 0 and kk == 0) else acc
                xf, wf = vr(b + 4*kk, 4), vr(b + 8 + 8*si + 4*kk, 4)
                if vwave:
                    E(f"v_mfma_f32_32x32x16_bf16 {acc}, {xf}, {wf}, {c}")
                else:
                    E(f"v_mfma_f32_32x32x16_bf16 {acc}, {wf}, {xf}, {c}")

    E(f"s_waitcnt vmcnt({vm.need(('x',0),('w',0))})")
    E("s_barrier")
    stamp(1)
    reads(0)
    for s in range(16):
        if s < 15:
            E(f"s_waitcnt vmcnt({vm.need(('x',(s+1)//2),('w',s+1))}) lgkmcnt(0)")
            E("s_barrier")
            if s + 4 <= 15:
                a_dma_w(s + 4, vm, vwave)
            if s % 2 == 1 and (s + 1) // 2 + 2 <= 7:
                a_dma_x((s + 1) // 2 + 2, vm)
            reads(s + 1)
        else:
            E("s_waitcnt lgkmcnt(0)")
        mfmas(s)
        if s == O.hint_step and not vwave:
            E(f"s_or_b32 s{S_T0}, s2, s{S_WAVE}")
            E(f"s_cbranch_scc1 A_notag")
            E(f"s_memrealtime s[{S_T0}:{S_T1}]")
            E("s_waitcnt lgkmcnt(0)")
            E(f"s_or_b32 s{S_T0}, s{S_T0}, 1")
            E("s_mov_b64 exec, 1")
            E("v_mov_b32 v10, 0")
            E(f"v_mov_b32 v11, s{S_T0}")
            E(f"buffer_store_dword v11, v10, {sr(DBG)}, 0 offen sc0 sc1")
            E("s_waitcnt vmcnt(0)")
            E("s_mov_b64 exec, -1")
            E.label("A_notag")
    stamp(2)
    E(f"s_and_b32 s{S_T0}, s{S_WAVE}, 1")
    E(f"s_lshl_b32 s{S_T1}, s{S_A}, 1")
    E(f"s_add_u32 s{S_T0}, s{S_T0}, s{S_T1}")
    E(f"s_bfe_u32 s{S_T1}, s{S_WAVE}, 0x10001")
    E(f"s_lshl_b32 s{S_T2}, s{S_B}, 1")
    E(f"s_add_u32 s{S_T1}, s{S_T1}, s{S_T2}")
    E("v_and_b32 v8, 63, v0")
    if vwave:
        E("v_and_b32 v9, 15, v8")
        E("v_lshlrev_b32 v9, 4, v9")
        E("v_bfe_u32 v10, v8, 5, 1")
        E("v_lshl_add_u32 v9, v10, 8, v9")
        E("v_bfe_u32 v10, v8, 4, 1")
        E("v_lshl_add_u32 v9, v10, 17, v9")
        E(f"s_lshl_b32 s{S_T1}, s{S_T1}, 18")
        E(f"s_lshl_b32 s{S_T0}, s{S_T0}, 11")
        E(f"s_add_u32 s{S_T0}, s{S_T0}, s{S_T1}")
        E("s_nop 7")
        for i in range(8):
            E(f"v_cvt_pk_bf16_f32 v{16+i}, v{64+2*i}, v{65+2*i}")
        E(f"buffer_store_dwordx4 v[16:19], v9, {sr(WS)}, s{S_T0} offen offset:1024 sc0 sc1")
        E(f"buffer_store_dwordx4 v[20:23], v9, {sr(WS)}, s{S_T0} offen offset:1536 sc0 sc1")
    else:
        E("v_lshlrev_b32 v9, 4, v8")
        E(f"s_lshl_b32 s{S_T2}, s{S_T1}, 18")
        E(f"s_lshl_b32 s{S_T3}, s{S_T0}, 11")
        E(f"s_add_u32 s{S_T2}, s{S_T2}, s{S_T3}")
        E(f"s_lshr_b32 s{S_T3}, s{S_T2}, 1")
        E(f"s_add_u32 s{S_T3}, s{S_T3}, {WS_Q:#x}")
        E(f"s_add_u32 s{S_C}, s{S_T2}, 0x20000")
        E(f"s_add_u32 s{S_D}, s{S_T3}, 0x10000")
        E(f"s_mov_b32 s{S_CNT}, {QSCALE:#x}")
        E("s_nop 7")
        for i in range(8):
            E(f"v_cvt_pk_bf16_f32 v{16+i}, v{80+2*i}, v{81+2*i}")
        E(f"buffer_store_dwordx4 v[16:19], v9, {sr(WS)}, s{S_T2} offen sc0 sc1")
        E(f"buffer_store_dwordx4 v[20:23], v9, {sr(WS)}, s{S_C} offen sc0 sc1")
        for i in range(16):
            E(f"v_mul_f32 v{64+i}, s{S_CNT}, v{64+i}")
        for i in range(8):
            E(f"v_cvt_pk_bf16_f32 v{24+i}, v{64+2*i}, v{65+2*i}")
        E(f"buffer_store_dwordx4 v[24:27], v9, {sr(WS)}, s{S_T3} offen sc0 sc1")
        E(f"buffer_store_dwordx4 v[28:31], v9, {sr(WS)}, s{S_D} offen sc0 sc1")
        for g in range(4):
            E(f"v_mul_f32 v{32+g}, v{64+8*g}, v{64+8*g}")
        for i in range(1, 8):
            for g in range(4):
                E(f"v_fmac_f32 v{32+g}, v{64+8*g+i}, v{64+8*g+i}")
        E("s_nop 1")
        E("v_permlane32_swap_b32 v32, v33")
        E("v_permlane32_swap_b32 v34, v35")
        E("s_nop 1")
        E("v_add_f32 v32, v32, v33")
        E("v_add_f32 v33, v34, v35")
        dpp_max((32, 33))
        E(f"s_lshl_b32 s{S_T1}, s{S_T1}, 9")
        E(f"s_lshl_b32 s{S_T0}, s{S_T0}, 3")
        E(f"s_add_u32 s{S_T0}, s{S_T0}, s{S_T1}")
        E(f"s_add_u32 s{S_T0}, s{S_T0}, {WS_NRM:#x}")
        E("v_mov_b32 v10, 0")
        E("s_brev_b64 exec, 1")
        E(f"buffer_store_dwordx2 v[32:33], v10, {sr(WS)}, s{S_T0} offen sc0 sc1")
        E("s_mov_b64 exec, -1")


S0, S1, OA, QF, K0, K1, V0, V1, IDX, VK, VV, VD, VKB, VVB = 16, 32, 48, 64, 68, 72, 76, 84, 92, 93, 94, 95, 96, 97
KVS = 16384


def a_kv_dma():
    E(f"s_add_u32 m0, s{S_XK}, s{S_W1K}")
    E(f"s_add_u32 s{S_T0}, s{S_WB}, s{S_WK}")
    E(f"buffer_load_dwordx4 v{VD}, {sr(WS)}, s{S_T0} offen sc1 lds")
    E(f"buffer_load_dwordx4 v{VD}, {sr(WS)}, s{S_T0} offen offset:1024 sc1 lds")
    E(f"s_add_u32 s{S_WK}, s{S_WK}, {KVS}")
    E(f"s_and_b32 s{S_WK}, s{S_WK}, {8*KVS-1:#x}")
    E(f"s_add_u32 s{S_XK}, s{S_XK}, {KVS}")


def a_attention():
    E(f"s_cmp_lg_u32 s{S_WAVE}, 0")
    E("s_cbranch_scc1 A_pub1")
    get_tag("A_tag")
    E.label("A_pub1")
    E("s_waitcnt vmcnt(0)")
    E("s_barrier")
    stamp(3)
    E(f"s_and_b32 s{S_C}, s2, 7")
    E(f"s_lshr_b32 s{S_T0}, s2, 6")
    E(f"s_lshl_b32 s{S_D}, s{S_C}, 2")
    E(f"s_add_u32 s{S_D}, s{S_D}, s{S_T0}")
    E(f"s_cmp_lg_u32 s{S_WAVE}, 0")
    E("s_cbranch_scc1 A_wait1")
    E(f"s_lshl_b32 s{S_T0}, s{S_B}, 7")
    E(f"s_lshl_b32 s{S_T1}, s{S_A}, 2")
    E(f"s_add_u32 s{S_T0}, s{S_T0}, s{S_T1}")
    E(f"s_add_u32 s{S_T0}, s{S_T0}, {WS_FKV:#x}")
    put_flag(S_T0)
    E("v_and_b32 v10, 31, v0")
    E("v_lshlrev_b32 v10, 2, v10")
    E(f"s_lshl_b32 s{S_T0}, s{S_C}, 7")
    E(f"s_add_u32 s{S_T0}, s{S_T0}, {WS_FKV:#x}")
    poll("A_pollkv", 10, f"s{S_T0}")
    E.label("A_wait1")
    E(f"s_bfe_u32 s{S_A}, s2, 0x30003")
    E("v_and_b32 v8, 63, v0")
    E(f"v_lshlrev_b32 v{VKB}, 4, v8")
    E(f"s_lshl_b32 s{S_W1K}, s{S_WAVE}, 11")
    E(f"v_add_u32 v{VD}, s{S_W1K}, v{VKB}")
    E(f"s_lshl_b32 s{S_WB}, s{S_D}, 17")
    E(f"s_lshl_b32 s{S_WK}, s{S_A}, 14")
    E(f"s_mov_b32 s{S_XK}, 0")
    E(f"s_lshl_b32 s{S_T1}, s{S_A}, 3")
    E(f"s_add_u32 s{S_B}, s{S_T1}, s{S_WAVE}")
    E(f"s_lshl_b32 s{S_T1}, s{S_B}, 10")
    E(f"s_lshl_b32 s{S_T2}, s{S_D}, 16")
    E(f"s_add_u32 s{S_T1}, s{S_T1}, s{S_T2}")
    E(f"s_add_u32 s{S_T1}, s{S_T1}, {WS_Q:#x}")
    E(f"s_lshr_b32 s{S_T2}, s{S_D}, 1")
    E(f"s_lshl_b32 s{S_T2}, s{S_T2}, 9")
    E(f"s_add_u32 s{S_T2}, s{S_T2}, {WS_NRM:#x}")
    E("v_lshlrev_b32 v9, 3, v8")
    E("v_mov_b32 v10, 0")
    E("s_barrier")
    stamp(4)
    E(f"buffer_load_dword v14, v10, {sr(DBG)}, 0 offen sc1")
    E(f"buffer_load_dwordx4 {vr(QF,4)}, v{VKB}, {sr(WS)}, s{S_T1} offen sc1")
    E(f"buffer_load_dwordx2 v[12:13], v9, {sr(WS)}, s{S_T2} offen sc1")
    for c in range(5):
        a_kv_dma()
    E(f"s_mov_b32 s{S_XK}, 0")
    E(f"s_setprio {O.prio_a_att}")
    E("v_and_b32 v9, 15, v8")
    E("v_lshlrev_b32 v9, 4, v9")
    E("v_bfe_u32 v10, v8, 5, 1")
    E("v_lshl_add_u32 v9, v10, 8, v9")
    E(f"v_add_u32 v{VVB}, 1024, v9")
    E(f"v_mov_b32 v{VK}, v{VKB}")
    E(f"v_mov_b32 v{VV}, v{VVB}")
    E(f"v_mov_b32 v{IDX}, 0xdddddddd")
    if O.zrows:
        E("v_and_b32 v9, 27, v8")
        E("v_cmp_eq_u32 vcc, 16, v9")
        E("v_mov_b32 v9, 0x3f803f80")
        E("s_nop 0")
        E(f"v_cndmask_b32 v{V0}, 0, v9, vcc")
    else:
        E(f"v_mov_b32 v{V0}, 0x3f803f80")
    for i in range(1, 16):
        E(f"v_mov_b32 v{V0+i}, v{V0}")
    for i in range(16):
        E(f"v_mov_b32 v{OA+i}, 0")
    for i in range(8, 16):
        E(f"v_mov_b32 v{S1+i}, 0")
    E(f"s_mov_b32 s{S_VM}, 0xffff")
    E(f"s_mov_b32 s{S_VM+1}, 0xffff")
    E(f"s_mov_b32 s{S_SLOT}, 0")
    E(f"s_mov_b32 s{S_CNT}, 0")
    E("s_waitcnt vmcnt(10)")
    E(f"v_readfirstlane_b32 s{S_TAG}, v14")
    dpp_max((12, 13))
    E("s_nop 0")
    E("v_mul_f32 v12, v12, v13")
    E("s_nop 0")
    E(f"v_readlane_b32 s{S_T0}, v12, 63")
    E("s_waitcnt vmcnt(8)")
    E("s_barrier")
    stamp(5)
    E(f"s_cmp_gt_u32 s{S_T0}, {THR2:#x}")
    if O.force_slow:
        E("s_branch A_slow")
    E("s_cbranch_scc1 A_slow")

    def chunk_turn():
        E("s_waitcnt vmcnt(0)")
        E("s_barrier")
        E(f"s_add_u32 s{S_T0}, s{S_CNT}, -1")
        E(f"s_cmp_gt_u32 s{S_T0}, 2")
        lab = f"A_nf{len(E.L)}"
        E(f"s_cbranch_scc1 {lab}")
        a_kv_dma()
        E.label(lab)
        E(f"s_add_u32 s{S_SLOT}, s{S_SLOT}, {KVS}")
        E(f"s_cmp_eq_u32 s{S_SLOT}, {5*KVS}")
        E(f"s_cselect_b32 s{S_SLOT}, 0, s{S_SLOT}")

    def vreads(dst, off):
        E(f"s_mov_b64 exec, s[{S_VM}:{S_VM+1}]")
        E(f"ds_read_b128 {vr(dst,4)}, v{VV} offset:{off}")
        E(f"ds_read_b128 {vr(dst+4,4)}, v{VV} offset:{off+512}")
        E("s_mov_b64 exec, -1")

    E(f"ds_read_b128 {vr(K0,4)}, v{VK}")
    E(f"ds_read_b128 {vr(K1,4)}, v{VK} offset:2048")
    vreads(V0, 0)
    E("s_waitcnt lgkmcnt(0)")
    E(f"v_mfma_f32_32x32x16_bf16 {vr(S0,16)}, {vr(K0,4)}, {vr(QF,4)}, 0")
    E("s_nop 15")
    E.raw(".p2align 6")
    E.label("A_loop")
    for t in range(8):
        p = t & 1
        Sc, Sn = (S0, S1) if p == 0 else (S1, S0)
        Vc, Vn = (V0, V1) if p == 0 else (V1, V0)
        Kc, Kn = (K0, K1) if p == 0 else (K1, K0)
        if t == 6:
            chunk_turn()
            E(f"v_add_u32 v{VK}, s{S_SLOT}, v{VKB}")
        if t == 7:
            E(f"v_add_u32 v{VV}, s{S_SLOT}, v{VVB}")
        ex = lambda a, b: [E(f"v_exp_f32 v{Sc+i}, v{Sc+i}") for i in range(a, b)]
        def mm(x):
            if O.toggle: E(f"s_setprio {O.toggle}")
            E(x)
            if O.toggle: E(f"s_setprio {O.prio_a_att}")
        ex(0, 2)
        mm(f"v_smfmac_f32_32x32x32_bf16 {vr(OA,16)}, {vr(Vn+4,4)}, {vr(Sn+8,8)}, v{IDX}")
        E("s_waitcnt lgkmcnt(0)")
        ex(2, 6)
        mm(f"v_mfma_f32_32x32x16_bf16 {vr(Sn,16)}, {vr(Kn,4)}, {vr(QF,4)}, 0")
        vreads(Vn, ((t + 1) % 8) * 2048)
        E(f"ds_read_b128 {vr(Kc,4)}, v{VK} offset:{((t + 2) % 8) * 2048}")
        ex(6, 10)
        mm(f"v_smfmac_f32_32x32x32_bf16 {vr(OA,16)}, {vr(Vc,4)}, {vr(Sc,8)}, v{IDX}")
        ex(10, 16)
    E(f"s_add_u32 s{S_CNT}, s{S_CNT}, 1")
    E(f"s_cmp_lt_u32 s{S_CNT}, {O.att_iters}")
    E("s_cbranch_scc1 A_loop")
    E("s_nop 1")
    E(f"v_smfmac_f32_32x32x32_bf16 {vr(OA,16)}, {vr(V1+4,4)}, {vr(S1+8,8)}, v{IDX}")
    E.label("A_fin")
    E("s_waitcnt lgkmcnt(0)")
    stamp(6)
    E(f"s_mul_i32 s{S_T0}, s{S_B}, 144")
    E(f"s_add_u32 s{S_T0}, s{S_T0}, s{S_D}")
    E(f"s_lshl_b32 s{S_T0}, s{S_T0}, 10")
    E(f"s_add_u32 s{S_T0}, s{S_T0}, {WS_HO + 112*1024:#x}")
    E(f"s_lshl_b32 s{S_T1}, s{S_B}, 7")
    E(f"s_lshl_b32 s{S_T2}, s{S_D}, 2")
    E(f"s_add_u32 s{S_T1}, s{S_T1}, s{S_T2}")
    E(f"s_add_u32 s{S_T1}, s{S_T1}, {WS_FO:#x}")
    E("s_nop 7")
    E(f"v_rcp_f32 v12, v{OA+8}")
    E("s_nop 0")
    for i in range(8):
        E(f"v_mul_f32 v{OA+i}, v12, v{OA+i}")
    for i in range(4):
        E(f"v_cvt_pk_bf16_f32 v{16+i}, v{OA+2*i}, v{OA+2*i+1}")
    E(f"buffer_store_dwordx4 v[16:19], v{VKB}, {sr(WS)}, s{S_T0} offen sc0 sc1")
    E("s_waitcnt vmcnt(0)")
    put_flag(S_T1)
    stamp(7)
    flush_stamps(range(8), "A_st")
    E("s_endpgm")

    E.label("A_slow")
    M, T = 12, 13
    E(f"v_mov_b32 v{M}, 0xff7fffff")
    E.label("A_sloop")
    E(f"s_mov_b32 s{S_T3}, 0")
    E.label("A_stile")
    E(f"ds_read_b128 {vr(K0,4)}, v{VK}")
    vreads(V0, 0)
    E("s_waitcnt lgkmcnt(0)")
    E(f"v_mfma_f32_32x32x16_bf16 {vr(S0,16)}, {vr(K0,4)}, {vr(QF,4)}, 0")
    E(f"v_add_u32 v{VK}, 2048, v{VK}")
    E(f"v_add_u32 v{VV}, 2048, v{VV}")
    E("s_nop 15")
    E(f"v_max3_f32 v{T}, v{S0}, v{S0+1}, v{M}")
    for i in range(1, 8):
        E(f"v_max3_f32 v{T}, v{S0+2*i}, v{S0+2*i+1}, v{T}")
    E(f"v_mov_b32 v14, v{T}")
    E("s_nop 1")
    E(f"v_permlane32_swap_b32 v{T}, v14")
    E("s_nop 1")
    E(f"v_max_f32 v{T}, v{T}, v14")
    E(f"v_sub_f32 v14, v{M}, v{T}")
    E("v_exp_f32 v14, v14")
    E(f"v_mov_b32 v{M}, v{T}")
    for i in range(16):
        E(f"v_sub_f32 v{S0+i}, v{S0+i}, v{T}")
    for i in range(16):
        E(f"v_exp_f32 v{S0+i}, v{S0+i}")
    for i in range(16):
        E(f"v_mul_f32 v{OA+i}, v14, v{OA+i}")
    E("s_nop 1")
    E(f"v_smfmac_f32_32x32x32_bf16 {vr(OA,16)}, {vr(V0,4)}, {vr(S0,8)}, v{IDX}")
    E(f"v_smfmac_f32_32x32x32_bf16 {vr(OA,16)}, {vr(V0+4,4)}, {vr(S0+8,8)}, v{IDX}")
    E(f"s_add_u32 s{S_T3}, s{S_T3}, 1")
    E(f"s_cmp_lt_u32 s{S_T3}, 8")
    E("s_cbranch_scc1 A_stile")
    chunk_turn()
    E(f"v_add_u32 v{VK}, s{S_SLOT}, v{VKB}")
    E(f"v_add_u32 v{VV}, s{S_SLOT}, v{VVB}")
    E(f"s_add_u32 s{S_CNT}, s{S_CNT}, 1")
    E(f"s_cmp_lt_u32 s{S_CNT}, 8")
    E("s_cbranch_scc1 A_sloop")
    E("s_branch A_fin")


F_XS, F_WS0, F_WSZ = 16384, 32768, 16384
WROW = 3584


def f_dma_x(u, vm):
    E(f"s_add_u32 m0, s{S_W1K}, {(u % 2) * F_XS}")
    E(f"s_add_u32 s{S_T0}, s{S_XB}, s{S_XK}")
    E(f"buffer_load_dwordx4 v1, {sr(X)}, s{S_T0} offen lds")
    E(f"s_add_u32 m0, s{S_W1K}, {(u % 2) * F_XS + 8192}")
    E(f"s_add_u32 s{S_T0}, s{S_T0}, 0x10000")
    E(f"buffer_load_dwordx4 v1, {sr(X)}, s{S_T0} offen lds")
    E(f"s_add_u32 s{S_XK}, s{S_XK}, 128")
    E(f"s_and_b32 s{S_XK}, s{S_XK}, 1023")
    vm.issue(("x", u), 2)


def f_dma_w(s, vm):
    base = F_WS0 + (s % 3) * F_WSZ
    E(f"s_add_u32 m0, s{S_W1K}, {base}")
    E("s_nop 0")
    E(f"buffer_load_dwordx4 v2, {sr(W1)}, s{S_WK} offen lds")
    E(f"s_add_u32 m0, s{S_W1K}, {base + 8192}")
    E("s_nop 0")
    E(f"buffer_load_dwordx4 v3, {sr(WU)}, s{S_WK} offen lds")
    E(f"s_add_u32 s{S_WK}, s{S_WK}, {32 * WROW}")
    E(f"s_cmp_eq_u32 s{S_WK}, {512 * WROW}")
    E(f"s_cselect_b32 s{S_WK}, 0, s{S_WK}")
    vm.issue(("w", s), 2)


def f_prologue():
    E("s_cmp_ge_u32 s2, 512")
    E("s_cbranch_scc1 L_end")
    stamp(0)
    E(f"s_load_dwordx2 s[{X}:{X+1}], s[0:1], 0")
    E(f"s_load_dwordx2 s[{W1}:{W1+1}], s[0:1], 32")
    E(f"s_load_dwordx2 s[{WU}:{WU+1}], s[0:1], 40")
    E(f"s_load_dwordx2 s[{WS}:{WS+1}], s[0:1], 80")
    E(f"s_load_dwordx2 s[{DBG}:{DBG+1}], s[0:1], 72")
    E(f"s_load_dwordx2 s[{WD}:{WD+1}], s[0:1], 48")
    E(f"s_load_dwordx2 s[{WO}:{WO+1}], s[0:1], 16")
    E(f"s_load_dwordx2 s[{OUT}:{OUT+1}], s[0:1], 64")
    E(f"s_load_dwordx2 s[{GW}:{GW+1}], s[0:1], 56")
    E("v_lshrrev_b32 v8, 6, v0")
    E(f"s_bfe_u32 s{S_C}, s2, 0x50003")
    E(f"v_readfirstlane_b32 s{S_WAVE}, v8")
    E(f"s_cmp_ge_u32 s{S_C}, 28")
    E("s_cbranch_scc0 F_main")
    E("s_getpc_b64 s[4:5]")
    E.label("F_pc")
    E(f"s_add_u32 s4, s4, CODE_START - F_pc")
    E("s_addc_u32 s5, s5, -1")
    E("s_mov_b32 s6, CODE_END - CODE_START")
    E("s_mov_b32 s7, 0x20000")
    E("v_lshlrev_b32 v9, 7, v0")
    E("buffer_load_dword v120, v9, s[4:7], 0 offen")
    E("s_branch F_main")


def f_main():
    E.label("F_main")
    srd(X, 0x200000); srd(W1, 512 * WROW); srd(WU, 512 * WROW); srd(WS, WS_SIZE); srd(DBG, 256)
    srd(WD, 1792 * 1024); srd(WO, 512 * 1024); srd(OUT, 0x200000); srd(GW, 1024)
    E(f"s_lshl_b32 s{S_W1K}, s{S_WAVE}, 10")
    E(f"s_setprio {O.prio_f}")
    E("v_lshrrev_b32 v9, 3, v0")
    E("v_lshrrev_b32 v10, 4, v0")
    E("v_xor_b32 v11, v10, v0")
    E("v_and_b32 v11, 7, v11")
    E("v_lshlrev_b32 v11, 4, v11")
    E("v_lshl_add_u32 v1, v9, 10, v11")
    E("s_waitcnt lgkmcnt(0)")
    E(f"s_cmp_ge_u32 s{S_C}, 28")
    E("s_cbranch_scc1 F_gate")
    E(f"s_and_b32 s{S_T0}, s{S_C}, 3")
    E(f"s_lshr_b32 s{S_T1}, s{S_C}, 2")
    E(f"s_and_b32 s{S_A}, s2, 3")
    E(f"s_lshl_b32 s{S_A}, s{S_A}, 2")
    E(f"s_add_u32 s{S_A}, s{S_A}, s{S_T0}")
    E(f"s_bfe_u32 s{S_B}, s2, 0x10002")
    E(f"s_mul_i32 s{S_B}, s{S_B}, 7")
    E(f"s_add_u32 s{S_B}, s{S_B}, s{S_T1}")
    E(f"s_lshl_b32 s{S_T0}, s{S_T0}, 1")
    E(f"s_add_u32 s{S_T0}, s{S_T0}, s{S_T1}")
    E(f"s_and_b32 s{S_T0}, s{S_T0}, 7")
    E(f"s_lshl_b32 s{S_XK}, s{S_T0}, 7")
    E(f"s_mul_i32 s{S_WK}, s{S_T0}, {64 * WROW}")
    E(f"s_lshl_b32 s{S_XB}, s{S_A}, 17")
    E(f"v_mul_u32_u24 v9, {WROW}, v10")
    E("v_bfe_u32 v11, v0, 1, 3")
    E("v_and_b32 v10, 3, v10")
    E("v_xor_b32 v11, v11, v10")
    E("v_lshl_add_u32 v9, v11, 5, v9")
    E("v_and_b32 v11, 1, v0")
    E("v_lshl_add_u32 v9, v11, 4, v9")
    E(f"s_lshl_b32 s{S_T0}, s{S_B}, 8")
    E(f"v_add_u32 v2, s{S_T0}, v9")
    E("v_xor_b32 v3, 128, v2")
    vm = VM()

    def fill():
        f_dma_x(0, vm); f_dma_w(0, vm); f_dma_w(1, vm); f_dma_x(1, vm); f_dma_w(2, vm)

    if O.f_fill_early:
        fill()
    E("v_and_b32 v8, 31, v0")
    E("v_lshrrev_b32 v9, 1, v8")
    E("v_and_b32 v9, 7, v9")
    E("v_bfe_u32 v10, v0, 5, 1")
    E("v_xor_b32 v9, v9, v10")
    E("v_lshlrev_b32 v9, 4, v9")
    E("v_lshl_add_u32 v9, v8, 7, v9")
    E("v_bfe_u32 v8, v0, 6, 1")
    E("v_lshl_add_u32 v4, v8, 13, v9")
    for ks in (1, 2, 3):
        E(f"v_xor_b32 v{4+ks}, {32*ks}, v4")
    E("v_bfe_u32 v8, v0, 2, 2")
    E("v_lshl_add_u32 v9, v10, 3, v8")
    E("v_lshlrev_b32 v9, 8, v9")
    E("v_bfe_u32 v10, v0, 4, 1")
    E("v_lshl_add_u32 v9, v10, 13, v9")
    E("v_lshlrev_b32 v10, 2, v10")
    E("v_xor_b32 v8, v8, v10")
    E("v_lshrrev_b32 v10, 7, v0")
    E("v_lshlrev_b32 v10, 1, v10")
    E("v_xor_b32 v8, v8, v10")
    E("v_lshl_add_u32 v9, v8, 5, v9")
    E("v_and_b32 v8, 3, v0")
    E("v_lshl_add_u32 v9, v8, 3, v9")
    E(f"v_add_u32 v8, {F_WS0}, v9")
    E("v_xor_b32 v9, 32, v8")
    E(f"s_cmp_lg_u32 s{S_WAVE}, 0")
    E("s_cbranch_scc1 F_go")
    get_tag("F_tag")
    E.label("F_go")
    if not O.f_fill_early:
        E("s_barrier")
        fill()
    stamp(1)

    def reads(s, kk):
        b = 16 + 16 * kk
        u = s // 2
        for rbk in (0, 1):
            E(f"ds_read_b128 {vr(b+4*rbk,4)}, v{4 + 2*(s&1) + kk} offset:{(u % 2) * F_XS + rbk * 4096}")
        for bb in (0, 1):
            for q in (0, 1):
                E(f"ds_read_b64_tr_b16 {vr(b+8+4*bb+2*q,2)}, v{8+bb} offset:{(s % 3) * F_WSZ + kk * 4096 + q * 1024}")

    def mfmas(s, kk):
        b = 16 + 16 * kk
        for rbk in (0, 1):
            for bb in (0, 1):
                acc = vr(64 + 16 * (2 * rbk + bb), 16)
                c = "0" if (s == 0 and kk == 0) else acc
                E(f"v_mfma_f32_32x32x16_bf16 {acc}, {vr(b+8+4*bb,4)}, {vr(b+4*rbk,4)}, {c}")

    E(f"s_waitcnt vmcnt({vm.need(('x',0),('w',0))})")
    E("s_barrier")
    stamp(2)
    reads(0, 0)
    reads(0, 1)
    for s in range(16):
        E("s_waitcnt lgkmcnt(6)")
        mfmas(s, 0)
        if s < 15:
            E(f"s_waitcnt vmcnt({vm.need(('x',(s+1)//2),('w',s+1))}) lgkmcnt(0)")
            E("s_barrier")
            if s + 3 <= 15:
                f_dma_w(s + 3, vm)
            if s % 2 == 1 and (s + 1) // 2 + 1 <= 7:
                f_dma_x((s + 1) // 2 + 1, vm)
            reads(s + 1, 0)
            mfmas(s, 1)
            if s in (3, 7, 11):
                stamp(10 + s // 4)
            reads(s + 1, 1)
        else:
            E("s_waitcnt lgkmcnt(0)")
            mfmas(s, 1)
    stamp(3)
    E(f"s_setprio {O.prio_silu}")
    E(f"s_and_b32 s{S_T0}, s{S_WAVE}, 1")
    E(f"s_lshl_b32 s{S_T0}, s{S_T0}, 1")
    E(f"s_lshl_b32 s{S_T1}, s{S_A}, 2")
    E(f"s_add_u32 s{S_T0}, s{S_T0}, s{S_T1}")
    E(f"s_mul_i32 s{S_T0}, s{S_T0}, 144")
    E(f"s_lshl_b32 s{S_T1}, s{S_B}, 3")
    E(f"s_add_u32 s{S_T0}, s{S_T0}, s{S_T1}")
    E(f"s_and_b32 s{S_T1}, s{S_WAVE}, 6")
    E(f"s_add_u32 s{S_T0}, s{S_T0}, s{S_T1}")
    E(f"s_lshl_b32 s{S_T0}, s{S_T0}, 10")
    E(f"s_add_u32 s{S_T0}, s{S_T0}, {WS_HO:#x}")
    E(f"s_add_u32 s{S_T1}, s{S_T0}, {144 * 1024}")
    E(f"s_mov_b32 s{S_T2}, {NLOG2E:#x}")
    E(f"s_mov_b32 s{S_T3}, {NLOG2E:#x}")
    E("v_and_b32 v10, 63, v0")
    E("v_lshlrev_b32 v10, 4, v10")
    E("v_mov_b32 v12, 1.0")
    E("v_mov_b32 v13, 1.0")
    E("s_nop 4")
    for tl in range(4):
        a = 64 + 16 * tl
        t = 16 + 8 * (tl & 1)
        pk = 32 + 4 * tl
        for i in range(4):
            E(f"v_pk_mul_f32 {vr(t+2*i,2)}, {vr(a+2*i,2)}, s[{S_T2}:{S_T3}]")
        for i in range(8):
            E(f"v_exp_f32 v{t+i}, v{t+i}")
        for i in range(4):
            E(f"v_pk_mul_f32 {vr(a+2*i,2)}, {vr(a+2*i,2)}, {vr(a+8+2*i,2)}")
        for i in range(4):
            E(f"v_pk_add_f32 {vr(t+2*i,2)}, {vr(t+2*i,2)}, v[12:13]")
        for i in range(8):
            E(f"v_rcp_f32 v{t+i}, v{t+i}")
        E("s_nop 0")
        for i in range(4):
            E(f"v_pk_mul_f32 {vr(a+2*i,2)}, {vr(a+2*i,2)}, {vr(t+2*i,2)}")
        for i in range(4):
            E(f"v_cvt_pk_bf16_f32 v{pk+i}, v{a+2*i}, v{a+2*i+1}")
        E(f"buffer_store_dwordx4 {vr(pk,4)}, v10, {sr(WS)}, s{S_T0 + (tl >> 1)} offen offset:{(tl & 1) * 1024} sc0 sc1")
    E(f"s_lshl_b32 s{S_T0}, s{S_A}, 7")
    E(f"s_lshl_b32 s{S_T1}, s{S_B}, 2")
    E(f"s_add_u32 s{S_T0}, s{S_T0}, s{S_T1}")
    E.label("F_pub")
    E(f"s_add_u32 s{S_T0}, s{S_T0}, {WS_FH:#x}")
    E("s_waitcnt vmcnt(0)")
    E("s_barrier")
    stamp(4)
    E(f"s_and_b32 s{S_A}, s2, 7")
    E(f"s_lshl_b32 s{S_A}, s{S_A}, 2")
    E(f"s_and_b32 s{S_T1}, s{S_C}, 3")
    E(f"s_add_u32 s{S_A}, s{S_A}, s{S_T1}")
    E(f"s_lshr_b32 s{S_B}, s{S_C}, 2")
    E(f"s_cmp_lg_u32 s{S_WAVE}, 0")
    E("s_cbranch_scc1 F_wait2")
    put_flag(S_T0)
    E("v_and_b32 v10, 15, v0")
    E("v_lshlrev_b32 v10, 2, v10")
    E(f"s_lshr_b32 s{S_T0}, s{S_A}, 1")
    E(f"s_lshl_b32 s{S_T0}, s{S_T0}, 7")
    E(f"s_add_u32 s{S_T0}, s{S_T0}, {WS_FH:#x}")
    poll("F_pollh", 10, f"s{S_T0}")
    E.label("F_wait2")
    E("v_and_b32 v8, 63, v0")
    E("v_lshlrev_b32 v12, 4, v8")
    E(f"s_and_b32 s{S_T0}, s{S_WAVE}, 1")
    E(f"s_mul_i32 s{S_T1}, s{S_T0}, 144")
    E(f"s_lshr_b32 s{S_T2}, s{S_WAVE}, 1")
    E(f"s_add_u32 s{S_T1}, s{S_T1}, s{S_T2}")
    E(f"s_lshl_b32 s{S_T1}, s{S_T1}, 10")
    E(f"v_add_u32 v1, s{S_T1}, v12")
    E(f"s_lshl_b32 s{S_T1}, s{S_T0}, 2")
    E(f"s_add_u32 s{S_T1}, s{S_T1}, s{S_T2}")
    E(f"s_lshl_b32 s{S_D}, s{S_T1}, 10")
    E("v_bfe_u32 v10, v0, 4, 1")
    E("v_lshlrev_b32 v9, 2, v10")
    E("v_xor_b32 v9, v9, v0")
    E("v_and_b32 v9, 7, v9")
    E("v_lshlrev_b32 v9, 4, v9")
    E("v_lshrrev_b32 v11, 3, v0")
    E("v_lshl_add_u32 v9, v11, 10, v9")
    E(f"s_lshl_b32 s{S_T1}, s{S_B}, 7")
    E(f"v_add_u32 v2, s{S_T1}, v9")
    E(f"s_lshl_b32 s{S_T0}, s{S_T0}, 12")
    E(f"s_lshr_b32 s{S_T1}, s{S_WAVE}, 2")
    E(f"s_lshl_b32 s{S_T1}, s{S_T1}, 11")
    E(f"s_add_u32 s{S_T0}, s{S_T0}, s{S_T1}")
    E(f"v_add_u32 v4, s{S_T0}, v12")
    E("v_bfe_u32 v8, v0, 2, 2")
    E("v_bfe_u32 v9, v0, 5, 1")
    E("v_lshl_add_u32 v9, v9, 2, v8")
    E("v_lshrrev_b32 v11, 8, v0")
    E("v_lshl_add_u32 v9, v11, 5, v9")
    E("v_lshlrev_b32 v9, 7, v9")
    E("v_lshrrev_b32 v8, 1, v8")
    E("v_bfe_u32 v11, v0, 7, 1")
    E("v_xor_b32 v8, v8, v11")
    E("v_lshl_add_u32 v9, v8, 6, v9")
    E("v_lshl_add_u32 v9, v10, 5, v9")
    E("v_and_b32 v8, 3, v0")
    E("v_lshl_add_u32 v9, v8, 3, v9")
    E("v_add_u32 v5, 8192, v9")
    _m_fix_base()
    E(f"s_mul_i32 s{S_T0}, s{S_B}, 7")
    E(f"s_lshr_b32 s{S_T0}, s{S_T0}, 1")
    E(f"s_and_b32 s{S_T1}, s{S_C}, 3")
    E(f"s_mul_i32 s{S_T1}, s{S_T1}, 7")
    E(f"s_add_u32 s{S_T0}, s{S_T0}, s{S_T1}")
    E(f"s_cmp_ge_u32 s{S_T0}, 28")
    E(f"s_cselect_b32 s{S_T1}, 28, 0")
    E(f"s_sub_u32 s{S_XK}, s{S_T0}, s{S_T1}")
    E(f"s_setprio {O.prio_f}")
    E("s_barrier")
    stamp(5)

    def dma(slot, wsrd, wrap):
        E(f"s_add_u32 m0, s{S_D}, {slot * 16384}")
        E(f"s_lshl_b32 s{S_T0}, s{S_XK}, 12")
        E(f"s_add_u32 s{S_T0}, s{S_T0}, s{S_XB}")
        E(f"buffer_load_dwordx4 v1, {sr(WS)}, s{S_T0} offen {'sc1 ' if O.h_sc1 else ''}lds")
        E(f"s_add_u32 m0, s{S_W1K}, {slot * 16384 + 8192}")
        E(f"s_lshl_b32 s{S_T0}, s{S_XK}, 16")
        E(f"buffer_load_dwordx4 v2, {sr(wsrd)}, s{S_T0} offen lds")
        E(f"s_add_u32 s{S_XK}, s{S_XK}, 1")
        if wrap:
            E(f"s_cmp_eq_u32 s{S_XK}, 28")
            E(f"s_cselect_b32 s{S_XK}, 0, s{S_XK}")

    def greads(slot):
        b = 16 + 16 * (slot & 1)
        for kk in (0, 1):
            E(f"ds_read_b128 {vr(b+4*kk,4)}, v4 offset:{slot * 16384 + kk * 1024}")
        for kk in (0, 1):
            for q in (0, 1):
                E(f"ds_read_b64_tr_b16 {vr(b+8+4*kk+2*q,2)}, v5 offset:{slot * 16384 + kk * 2048 + q * 1024}")

    def block(acc, wsrd, refill, wrap):
        for t in range(4):
            b = 16 + 16 * (t & 1)
            if refill or t < 3:
                n = 4 if refill else (2 - t) * 2
                E(f"s_waitcnt vmcnt({n}) lgkmcnt(0)")
                E("s_barrier")
                if refill:
                    dma(t, wsrd, wrap)
                greads((t + 1) % 4)
            else:
                E("s_waitcnt lgkmcnt(0)")
            for kk in (0, 1):
                E(f"v_mfma_f32_32x32x16_bf16 {vr(acc,16)}, {vr(b+8+4*kk,4)}, {vr(b+4*kk,4)}, {vr(acc,16)}")

    for t in range(4):
        dma(t, WD, True)
    for i in range(32):
        E(f"v_mov_b32 v{64+i}, 0")
    E(f"s_mov_b32 s{S_CNT}, 0")
    E("s_waitcnt vmcnt(6)")
    E("s_barrier")
    greads(0)
    E.label("F_dloop")
    if O.late_iter <= 5:
        E(f"s_cmp_lg_u32 s{S_CNT}, {O.late_iter}")
        E("s_cbranch_scc1 F_nolow")
        E(f"s_setprio {O.prio_f_late}")
        E.label("F_nolow")
    block(64, WD, True, True)
    E(f"s_add_u32 s{S_CNT}, s{S_CNT}, 1")
    E(f"s_cmp_lt_u32 s{S_CNT}, 6")
    E("s_cbranch_scc1 F_dloop")
    if O.late_iter == 6:
        E(f"s_setprio {O.prio_f_late}")
    block(64, WD, False, False)
    stamp(6)
    E("v_and_b32 v8, 31, v0")
    E("v_bfe_u32 v9, v0, 6, 1")
    E("v_lshl_add_u32 v8, v9, 5, v8")
    E("v_lshlrev_b32 v9, 2, v8")
    E(f"s_lshl_b32 s{S_T0}, s{S_A}, 8")
    E(f"s_add_u32 s{S_T0}, s{S_T0}, {WS_G:#x}")
    E(f"buffer_load_dword v14, v9, {sr(WS)}, s{S_T0} offen sc1")
    E(f"s_cmp_lg_u32 s{S_WAVE}, 0")
    E("s_cbranch_scc1 F_wait3")
    E("v_lshlrev_b32 v10, 2, v0")
    E(f"s_lshl_b32 s{S_T0}, s{S_A}, 8")
    E(f"s_add_u32 s{S_T0}, s{S_T0}, {WS_FO:#x}")
    poll("F_pollo", 10, f"s{S_T0}")
    E.label("F_wait3")
    E(f"s_add_u32 s{S_XB}, s{S_XB}, {112 * 1024}")
    E(f"s_mov_b32 s{S_XK}, 0")
    E(f"s_setprio 3")
    E("s_barrier")
    stamp(7)
    for t in range(4):
        dma(t, WO, False)
    E("s_waitcnt vmcnt(6)")
    E("s_barrier")
    greads(0)
    block(80, WO, True, False)
    block(80, WO, False, False)
    stamp(8)
    E("v_lshlrev_b32 v8, 10, v8")
    E("v_bfe_u32 v9, v0, 5, 1")
    E("v_lshl_add_u32 v8, v9, 4, v8")
    E("v_bfe_u32 v9, v0, 7, 1")
    E("v_lshl_add_u32 v8, v9, 6, v8")
    E("v_lshrrev_b32 v9, 8, v0")
    E("v_lshl_add_u32 v8, v9, 5, v8")
    E(f"s_lshl_b32 s{S_T0}, s{S_A}, 16")
    E(f"s_lshl_b32 s{S_T1}, s{S_B}, 7")
    E(f"s_add_u32 s{S_T0}, s{S_T0}, s{S_T1}")
    E(f"s_lshl_b32 s{S_T1}, s{S_WAVE}, 11")
    E(f"s_add_u32 s{S_T1}, s{S_T1}, 65536")
    E(f"s_xor_b32 s{S_T2}, s{S_T1}, 8192")
    E(f"v_add_u32 v10, s{S_T1}, v12")
    E(f"v_add_u32 v11, s{S_T2}, v12")
    E("v_sub_f32 v15, 1.0, v14")
    E("s_nop 4")
    for i in range(16):
        E(f"v_mul_f32 v{64+i}, v15, v{64+i}")
    for i in range(16):
        E(f"v_fmac_f32 v{64+i}, v14, v{80+i}")
    E(f"s_cmp_ge_u32 s{S_WAVE}, 4")
    E("s_cbranch_scc1 F_hi")
    E("ds_write_b128 v10, v[72:75]")
    E("ds_write_b128 v10, v[76:79] offset:1024")
    E("s_branch F_x")
    E.label("F_hi")
    E("ds_write_b128 v10, v[64:67]")
    E("ds_write_b128 v10, v[68:71] offset:1024")
    E("s_nop 1")
    for i in range(8):
        E(f"v_mov_b32 v{64+i}, v{72+i}")
    E.label("F_x")
    E("s_waitcnt lgkmcnt(0)")
    E("s_barrier")
    E("ds_read_b128 v[80:83], v11")
    E("ds_read_b128 v[84:87], v11 offset:1024")
    E("s_waitcnt lgkmcnt(0)")
    for i in range(8):
        E(f"v_add_f32 v{64+i}, v{64+i}, v{80+i}")
    for i in range(4):
        E(f"v_cvt_pk_bf16_f32 v{16+i}, v{64+2*i}, v{65+2*i}")
    E("s_nop 1")
    E("v_permlane32_swap_b32 v16, v18")
    E("v_permlane32_swap_b32 v17, v19")
    E(f"buffer_store_dwordx4 v[16:19], v8, {sr(OUT)}, s{S_T0} offen")
    stamp(9)
    flush_stamps(range(13), "F_st")
    E("s_endpgm")

    E.label("F_gate")
    if O.gate_late:
        get_tag("F_tag3")
    E(f"s_and_b32 s{S_A}, s2, 7")
    E(f"s_lshl_b32 s{S_A}, s{S_A}, 2")
    E(f"s_add_u32 s{S_A}, s{S_A}, s{S_C}")
    E(f"s_sub_u32 s{S_A}, s{S_A}, 28")
    E(f"s_lshl_b32 s{S_T0}, s{S_A}, 16")
    E("v_and_b32 v10, 7, v0")
    E("v_lshlrev_b32 v10, 4, v10")
    E("v_lshl_add_u32 v11, v9, 10, v10")
    for i in range(8):
        E(f"buffer_load_dwordx4 {vr(16+4*i,4)}, v11, {sr(X)}, s{S_T0} offen offset:{128*i}")
    for i in range(8):
        E(f"buffer_load_dwordx4 {vr(48+4*i,4)}, v10, {sr(GW)}, 0 offen offset:{128*i}")
    E("v_mov_b32 v12, 0")
    E("v_mov_b32 v13, 0")
    E("s_waitcnt vmcnt(0)")
    for i in range(32):
        E(f"v_dot2_f32_bf16 v{12 + (i & 1)}, v{16+i}, v{48+i}, v{12 + (i & 1)}")
        if i % 2 == 1:
            E("s_nop 0")
    E("s_nop 2")
    E("v_add_f32 v12, v12, v13")
    for ctl in ("quad_perm:[1,0,3,2]", "quad_perm:[2,3,0,1]", "row_half_mirror"):
        E("s_nop 1")
        E(f"v_add_f32_dpp v12, v12, v12 {ctl} row_mask:0xf bank_mask:0xf")
    E(f"v_mul_f32 v12, {NLOG2E:#x}, v12")
    E("v_exp_f32 v12, v12")
    E("s_nop 0")
    E("v_add_f32 v12, 1.0, v12")
    E("v_rcp_f32 v12, v12")
    E("v_lshlrev_b32 v11, 2, v9")
    E(f"s_lshl_b32 s{S_T0}, s{S_A}, 8")
    E(f"s_add_u32 s{S_T0}, s{S_T0}, {WS_G:#x}")
    E("v_cmp_eq_u32 vcc, 0, v10")
    E("s_nop 4")
    E("s_mov_b64 exec, vcc")
    E(f"buffer_store_dword v12, v11, {sr(WS)}, s{S_T0} offen sc0 sc1")
    E("s_mov_b64 exec, -1")
    E(f"s_cmp_lg_u32 s{S_WAVE}, 0")
    E("s_cbranch_scc1 F_gate2")
    get_tag("F_tag2")
    E.label("F_gate2")
    for i in (1, 2, 3, 10, 11, 12):
        stamp(i)
    E(f"s_lshr_b32 s{S_T0}, s{S_A}, 1")
    E(f"s_lshl_b32 s{S_T0}, s{S_T0}, 7")
    E(f"s_and_b32 s{S_T1}, s{S_A}, 1")
    E(f"s_lshl_b32 s{S_T1}, s{S_T1}, 2")
    E(f"s_add_u32 s{S_T0}, s{S_T0}, s{S_T1}")
    E(f"s_add_u32 s{S_T0}, s{S_T0}, 56")
    E("s_branch F_pub")


def _m_fix_base():
    E(f"s_mul_i32 s{S_XB}, s{S_A}, {288 * 1024}")
    E(f"s_add_u32 s{S_XB}, s{S_XB}, {WS_HO:#x}")


HEADER = """; Kernarg layout (88 bytes, ptrs only, base s[0:1]):
; @launch grid=(512,1,1) block=(512,1,1) lds=81920
.amdgcn_target "amdgcn-amd-amdhsa--gfx950"
.text
.globl {kn}
.p2align 8
.type {kn},@function
{kn}:
CODE_START:
"""

FOOTER = """CODE_END:
.section .rodata,"a"
.p2align 6
.amdhsa_kernel {kn}
  .amdhsa_next_free_vgpr 128
  .amdhsa_next_free_sgpr 102
  .amdhsa_accum_offset 128
  .amdhsa_group_segment_fixed_size 0
  .amdhsa_kernarg_size 88
  .amdhsa_user_sgpr_count 2
  .amdhsa_user_sgpr_kernarg_segment_ptr 1
  .amdhsa_system_sgpr_workgroup_id_x 1
.end_amdhsa_kernel
"""


def generate():
    E.L = []
    E("s_cmp_ge_u32 s2, 256")
    E("s_cbranch_scc1 F_entry")
    stamp(0)
    a_prologue()
    E("s_cbranch_vccnz A_vwave")
    E("s_branch A_qwave")
    E.label("F_entry")
    f_prologue()
    E.label("L_end")
    E("s_endpgm")
    E.label("A_qwave")
    a_qkv(False)
    E("s_branch A_att")
    E.label("A_vwave")
    a_qkv(True)
    E.label("A_att")
    a_attention()
    f_main()
    return HEADER.format(kn=KN) + "\n".join(E.L) + "\n" + FOOTER.format(kn=KN)


if __name__ == "__main__":
    ap = argparse.ArgumentParser()
    ap.add_argument("-o", default="k.s")
    ap.add_argument("--set", action="append", default=[])
    a = ap.parse_args()
    for kv in a.set:
        k, v = kv.split("=")
        assert hasattr(O, k), k
        setattr(O, k, type(getattr(O, k))(int(v)))
    s = generate()
    open(a.o, "w").write(s)
    sys.path.insert(0, "cdna_kernels")
    from cdna_launch import with_harness_metadata, address_register_problem
    h = a.o[:-2] + ".harness.s"
    co = a.o[:-2] + ".co"
    open(h, "w").write(with_harness_metadata(s, KN, 11, launch_lists=True))
    r = subprocess.run(["clang", "-x", "assembler", "-target", "amdgcn-amd-amdhsa", "-mcpu=gfx950", h, "-o", co],
                       capture_output=True, text=True)
    if r.returncode:
        print(r.stderr[:4000]); sys.exit(1)
    p = address_register_problem(co, KN)
    print("check:", p)
    r = subprocess.run(f"llvm-nm {co} | grep -E 'CODE_|A_qwave|A_vwave|A_att|A_loop|A_fin|A_slow|F_entry|F_main|F_pub|F_dloop|F_gate$' | sort", shell=True, capture_output=True, text=True)
    print(r.stdout)
```

```python
import sys, subprocess, argparse

NAME = "gated_mix__softmax_full_mha__swiglu_ffn__prompt"
KN = NAME + "_kernel"

WS_KV, WS_Q, WS_HO = 0, 0x400000, 0x600000
WS_NRM, WS_G = 0xF10000, 0xF04000
WS_FKV, WS_FH, WS_FO, WS_FS = 0xF08000, 0xF0C000, 0xF20000, 0xF07000
WS_STAMP = 0x1000000
WS_SIZE = 0x1100000
QSCALE = 0x3EB8AA3B
NLOG2E = 0xBFB8AA3B
THR2 = 0x45548000


class Opt:
    stamps = False
    hint_step = 17
    f_fill_early = False
    force_slow = False
    prio_a_qkv = 3
    prio_a_att = 2
    prio_f = 0
    prio_f_late = 0
    zrows = 1
    toggle = 0
    touch_gu = 0
    touch = 0
    warm_steps = 0
    f_rot = 1
    a_exit = 0
    kv_rot = 0
    ga = 3
    gb = 5
    gc = 5
    kv_first = 2
    wd_t0 = 3
    wo_t = 1
    f_touch = 0
    f_touch2 = 99
    bal = 4
    pace_from = 99
    prio_up = -1
    prio_dn = -1
    boost_mask = 0
    prio_boost = 1
    hint1 = -1
    f_wd = 1
    pair = 1
    dn_stamps = 0
    wo_early = 1
    only_down = 0
    d_rot = 0
    h_touch = 1
    att_iters = 8
    prio_silu = 3
    gate_late = 1
    h_sc1 = 1
    no_f = 0
    late_iter = 99


O = Opt()


class Asm:
    def __init__(self):
        self.L = []

    def __call__(self, s):
        for x in s.strip("\n").split("\n"):
            self.L.append("    " + x.strip())

    def label(self, l):
        self.L.append(l + ":")

    def raw(self, s):
        self.L.append(s)


E = Asm()


def vr(a, n):
    return f"v[{a}:{a+n-1}]"


def srd(base, size):
    E(f"s_mov_b32 s{base+2}, {size:#x}")
    E(f"s_mov_b32 s{base+3}, 0x20000")


S_WAVE = 3
X, W1, WU, WS, DBG, WD, WO, OUT, GW = 12, 16, 20, 24, 28, 32, 36, 40, 44
def sr(b): return f"s[{b}:{b+3}]"
S_TAG = 48
S_W1K = 49
S_T0, S_T1, S_T2, S_T3 = 50, 51, 52, 53
S_XK, S_XB, S_WK, S_WB = 54, 55, 56, 57
S_CNT = 58
S_A, S_B, S_C, S_D = 59, 60, 61, 62
S_SLOT = 63
S_VM = 64
S_SPIN = 66
S_STAMP = 70


def stamp(i):
    if O.stamps:
        E(f"s_memrealtime s[{S_STAMP+2*i}:{S_STAMP+2*i+1}]")
        E(f"s_memtime s[68:69]")
        E("s_waitcnt lgkmcnt(0)")
        E(f"s_mov_b32 s{S_STAMP+2*i+1}, s68")


def cstamp(i):
    if O.stamps:
        E(f"s_memtime s[{S_STAMP+2*i}:{S_STAMP+2*i+1}]")
        E("s_waitcnt lgkmcnt(0)")


def flush_stamps(idx, lab):
    if not O.stamps:
        return
    E(f"s_cmp_lg_u32 s{S_WAVE}, 0")
    E(f"s_cbranch_scc1 {lab}")
    E(f"s_lshl_b32 s{S_T0}, s2, 7")
    E(f"s_add_u32 s{S_T0}, s{S_T0}, {WS_STAMP:#x}")
    E("s_mov_b64 exec, 1")
    E("v_mov_b32 v1, 0")
    for i in idx:
        E(f"v_mov_b32 v2, s{S_STAMP+2*i}")
        E(f"buffer_store_dword v2, v1, {sr(WS)}, s{S_T0} offen offset:{4*i}")
        E(f"v_mov_b32 v3, s{S_STAMP+2*i+1}")
        E(f"buffer_store_dword v3, v1, {sr(WS)}, s{S_T0} offen offset:{64+4*i}")
    E("s_waitcnt vmcnt(0)")
    E.label(lab)


class VM:
    def __init__(self):
        self.q = []

    def issue(self, tag, n=1):
        self.q += [tag] * n

    def need(self, *tags):
        last = -1
        for i, t in enumerate(self.q):
            if t in tags:
                last = i
        for t in tags:
            assert t in self.q, t
        return len(self.q) - 1 - last


def poll(lab, voff_reg, soff, nlanes_desc=""):
    E(f"s_mov_b32 s{S_SPIN}, 0x40000")
    E.label(lab)
    E(f"buffer_load_dword v11, v{voff_reg}, {sr(WS)}, {soff} offen sc1")
    E("s_waitcnt vmcnt(0)")
    E(f"v_cmp_ne_u32 vcc, s{S_TAG}, v11")
    E("s_nop 4")
    E("s_cmp_eq_u64 vcc, 0")
    E(f"s_cbranch_scc1 {lab}_ok")
    E("s_sleep 2")
    E(f"s_sub_u32 s{S_SPIN}, s{S_SPIN}, 1")
    E(f"s_cmp_lg_u32 s{S_SPIN}, 0")
    E(f"s_cbranch_scc1 {lab}")
    E.label(lab + "_ok")


def get_tag(lab, sleep=4):
    E(f"s_mov_b32 s{S_SPIN}, 0x40000")
    E("v_mov_b32 v10, 0")
    E.label(lab)
    E(f"buffer_load_dword v11, v10, {sr(DBG)}, 0 offen sc1")
    E("s_waitcnt vmcnt(0)")
    E(f"v_readfirstlane_b32 s{S_TAG}, v11")
    E("s_nop 3")
    E(f"s_cmp_lg_u32 s{S_TAG}, 0")
    E(f"s_cbranch_scc1 {lab}_ok")
    E(f"s_sleep {sleep}")
    E(f"s_sub_u32 s{S_SPIN}, s{S_SPIN}, 1")
    E(f"s_cmp_lg_u32 s{S_SPIN}, 0")
    E(f"s_cbranch_scc1 {lab}")
    E.label(lab + "_ok")


def put_flag(soff_sgpr):
    E("s_mov_b64 exec, 1")
    E("v_mov_b32 v10, 0")
    E(f"v_mov_b32 v11, s{S_TAG}")
    E(f"buffer_store_dword v11, v10, {sr(WS)}, s{soff_sgpr} offen sc0 sc1")
    E("s_mov_b64 exec, -1")


def wg_store(lab, cond, val_lines, off):
    cond()
    E(f"s_cbranch_scc1 {lab}")
    val_lines()
    E("s_mov_b64 exec, 1")
    E(f"v_mov_b32 v10, {off}")
    E(f"v_mov_b32 v11, s{S_T0}")
    E(f"buffer_store_dword v11, v10, {sr(DBG)}, 0 offen sc0 sc1")
    E("s_mov_b64 exec, -1")
    E.label(lab)


def hint(lab="A_nohint", word=0, early=None):
    E(f"s_lshr_b32 s{S_T0}, s2, 3")
    E(f"s_or_b32 s{S_T0}, s{S_T0}, s{S_WAVE}")
    E(f"s_cbranch_scc1 {lab}")
    if (O.hint_step if early is None else early) < 16:
        E(f"v_readfirstlane_b32 s{S_TAG}, v14")
        E("s_nop 3")
        E(f"s_cmp_lg_u32 s{S_TAG}, 0")
        E(f"s_cbranch_scc1 {lab}_t_ok")
        get_tag(lab + "_t")
    E(f"s_lshl_b32 s{S_T1}, s2, 7")
    E(f"s_add_u32 s{S_T1}, s{S_T1}, {WS_FS + 1024 * word:#x}")
    put_flag(S_T1)
    E.label(lab)


def wait_start(lab, word=0, tag=True):
    if tag:
        get_tag(lab + "_t", 16)
    E("v_mov_b32 v10, 0")
    E(f"s_and_b32 s{S_T0}, s2, 7")
    E(f"s_lshl_b32 s{S_T0}, s{S_T0}, 7")
    E(f"s_add_u32 s{S_T0}, s{S_T0}, {WS_FS + 1024 * word:#x}")
    poll(lab, 10, f"s{S_T0}")


def dpp_max(regs):
    for ctl in ("row_shr:1", "row_shr:2", "row_shr:4", "row_shr:8",
                "row_bcast:15 row_mask:0xa", "row_bcast:31 row_mask:0xc"):
        E("s_nop 1")
        for r in regs:
            m = "" if "row_mask" in ctl else " row_mask:0xf"
            E(f"v_max_f32_dpp v{r}, v{r}, v{r} {ctl}{m} bank_mask:0xf")


A_XS, A_WS0, A_WSZ = 8192, 24576, 12288


def a_dma_x(u, vm):
    E(f"s_add_u32 m0, s{S_W1K}, {(u % 3) * A_XS}")
    E(f"s_add_u32 s{S_T0}, s{S_XB}, s{S_XK}")
    E(f"buffer_load_dwordx4 v1, {sr(X)}, s{S_T0} offen lds")
    E(f"s_add_u32 s{S_XK}, s{S_XK}, 128")
    E(f"s_and_b32 s{S_XK}, s{S_XK}, 1023")
    vm.issue(("x", u))


def a_dma_w(s, vm, vwave):
    base = A_WS0 + (s % 4) * A_WSZ
    E(f"s_add_u32 m0, s{S_W1K}, {base}")
    E(f"s_add_u32 s{S_T0}, s{S_WB}, s{S_WK}")
    E(f"buffer_load_dwordx4 v2, {sr(W1)}, s{S_T0} offen lds")
    vm.issue(("w", s))
    if vwave == "both":
        E(f"s_cbranch_vccz A_pw{s}")
        E(f"s_add_u32 m0, s{S_W1K}, {base + 3072}")
        E("s_nop 0")
        E(f"buffer_load_dwordx4 v2, {sr(W1)}, s{S_T0} offen offset:1024 lds")
        E.label(f"A_pw{s}")
    elif vwave:
        E(f"s_add_u32 m0, s{S_W1K}, {base + 3072}")
        E("s_nop 0")
        E(f"buffer_load_dwordx4 v2, {sr(W1)}, s{S_T0} offen offset:1024 lds")
        vm.issue(("w", s))
    E(f"s_add_u32 s{S_WK}, s{S_WK}, 98304")
    E(f"s_cmp_eq_u32 s{S_WK}, {16 * 98304}")
    E(f"s_cselect_b32 s{S_WK}, 0, s{S_WK}")


def a_prologue():
    E(f"s_load_dwordx2 s[{X}:{X+1}], s[0:1], 0")
    E(f"s_load_dwordx2 s[{W1}:{W1+1}], s[0:1], 8")
    E(f"s_load_dwordx2 s[{WS}:{WS+1}], s[0:1], 80")
    E(f"s_load_dwordx2 s[{DBG}:{DBG+1}], s[0:1], 72")
    E("v_lshrrev_b32 v8, 6, v0")
    E("v_lshrrev_b32 v9, 3, v0")
    E("v_lshrrev_b32 v10, 4, v0")
    E(f"v_readfirstlane_b32 s{S_WAVE}, v8")
    E("v_xor_b32 v11, v10, v0")
    E("v_and_b32 v11, 7, v11")
    E("v_lshlrev_b32 v11, 4, v11")
    E("v_lshl_add_u32 v1, v9, 10, v11")
    srd(X, 0x200000)
    srd(W1, 0x180000)
    E(f"s_lshr_b32 s{S_T0}, s2, 3")
    E(f"s_and_b32 s{S_T1}, s{S_T0}, 7")
    E(f"s_lshr_b32 s{S_T0}, s{S_T0}, 3")
    E(f"s_and_b32 s{S_A}, s2, 3")
    E(f"s_lshl_b32 s{S_A}, s{S_A}, 3")
    E(f"s_add_u32 s{S_A}, s{S_A}, s{S_T1}")
    E(f"s_and_b32 s{S_B}, s2, 4")
    E(f"s_add_u32 s{S_B}, s{S_B}, s{S_T0}")
    E(f"s_lshl_b32 s{S_T0}, s{S_T0}, 1")
    E(f"s_add_u32 s{S_T0}, s{S_T0}, s{S_T1}")
    E(f"s_and_b32 s{S_T0}, s{S_T0}, 7")
    E(f"s_lshl_b32 s{S_XK}, s{S_T0}, 7")
    E(f"s_mul_i32 s{S_WK}, s{S_T0}, {2 * 98304}")
    E(f"s_lshl_b32 s{S_XB}, s{S_A}, 16")
    E(f"s_lshl_b32 s{S_WB}, s{S_B}, 7")
    E(f"s_lshl_b32 s{S_W1K}, s{S_WAVE}, 10")
    E("v_and_b32 v9, 31, v9")
    E("v_mul_u32_u24 v9, 0xc00, v9")
    E("v_and_b32 v10, 1, v10")
    E("v_lshlrev_b32 v10, 2, v10")
    E("v_xor_b32 v10, v10, v0")
    E("v_and_b32 v10, 7, v10")
    E("v_lshl_add_u32 v9, v10, 4, v9")
    E("v_lshrrev_b32 v10, 8, v0")
    E("v_lshl_add_u32 v2, v10, 10, v9")
    E("v_cmp_eq_u32 vcc, 1, v10")
    E(f"s_setprio {O.prio_a_qkv}")
    E("s_waitcnt lgkmcnt(0)")
    vm = VM()
    a_dma_x(0, vm)
    a_dma_w(0, vm, "both")
    a_dma_w(1, vm, "both")
    a_dma_x(1, vm)
    a_dma_w(2, vm, "both")
    a_dma_w(3, vm, "both")
    a_dma_x(2, vm)
    srd(WS, WS_SIZE)
    srd(DBG, 256)


def a_qkv(vwave):
    p = "AV" if vwave else "AQ"
    if O.touch:
        E(f"s_load_dwordx2 s[{WU}:{WU+1}], s[0:1], {40 if vwave else 32}")
        E(f"s_load_dwordx2 s[{WD}:{WD+1}], s[0:1], 48")
        E(f"s_load_dwordx2 s[{WO}:{WO+1}], s[0:1], 16")
        srd(WU, 512 * 3584); srd(WD, 1792 * 1024); srd(WO, 512 * 1024)
    vm = VM()
    n = 2 if vwave else 1
    for t in (("x", 0), ("w", 0), ("w", 1), ("x", 1), ("w", 2), ("w", 3), ("x", 2)):
        vm.issue(t, n if t[0] == "w" else 1)
    E("v_and_b32 v8, 31, v0")
    if vwave:
        E("v_and_b32 v9, 0x13, v8")
        E("v_lshlrev_b32 v10, 1, v8")
        E("v_and_b32 v10, 8, v10")
        E("v_or_b32 v9, v9, v10")
        E("v_lshrrev_b32 v10, 1, v8")
        E("v_and_b32 v10, 4, v10")
        E("v_or_b32 v8, v9, v10")
    E("v_lshrrev_b32 v9, 1, v8")
    E("v_and_b32 v9, 7, v9")
    E("v_bfe_u32 v10, v0, 5, 1")
    E("v_xor_b32 v9, v9, v10")
    E("v_lshlrev_b32 v9, 4, v9")
    E("v_lshl_add_u32 v9, v8, 7, v9")
    E("v_bfe_u32 v8, v0, 6, 1")
    E("v_lshl_add_u32 v3, v8, 12, v9")
    for ks in (1, 2, 3):
        E(f"v_xor_b32 v{3+ks}, {32*ks}, v3")
    E("v_bfe_u32 v8, v0, 2, 2")
    E("v_lshl_add_u32 v9, v10, 3, v8")
    E("v_lshlrev_b32 v9, 7, v9")
    E("v_bfe_u32 v10, v0, 7, 1")
    E("v_lshrrev_b32 v8, 1, v8")
    E("v_xor_b32 v8, v8, v10")
    E("v_lshl_add_u32 v9, v8, 6, v9")
    E("v_bfe_u32 v8, v0, 4, 1")
    E("v_lshl_add_u32 v9, v8, 5, v9")
    E("v_and_b32 v8, 3, v0")
    E("v_lshl_add_u32 v9, v8, 3, v9")
    E(f"v_add_u32 v7, {A_WS0}, v9")
    segs = (2,) if vwave else (0, 1)
    if O.touch_gu:
        E(f"s_lshr_b32 s{S_T0}, s2, 3")
        E(f"s_lshl_b32 s{S_T0}, s{S_T0}, 2")
        E(f"s_and_b32 s{S_T1}, s{S_WAVE}, 3")
        E(f"s_add_u32 s{S_T0}, s{S_T0}, s{S_T1}")
        E(f"s_mul_i32 s{S_T0}, s{S_T0}, {2 * 3584}")
        E(f"s_bfe_u32 s{S_T1}, s2, 0x10002")
        E(f"s_mul_i32 s{S_T1}, s{S_T1}, 1792")
        E(f"s_add_u32 s{S_T0}, s{S_T0}, s{S_T1}")
        E("v_bfe_u32 v8, v0, 4, 1")
        E("v_mul_u32_u24 v8, 3584, v8")
        E("v_and_b32 v9, 15, v0")
        E("v_lshl_add_u32 v8, v9, 7, v8")
        E(f"v_add_u32 v98, s{S_T0}, v8")

    def reads(s):
        b = 16 + 24 * (s & 1)
        L = []
        for kk in (0, 1):
            L.append(f"ds_read_b128 {vr(b+4*kk,4)}, v{3 + 2*(s&1) + kk} offset:{((s//2) % 3) * A_XS}")
            for si, sg in enumerate(segs):
                for q in (0, 1):
                    off = (s % 4) * A_WSZ + sg * 4096 + kk * 2048 + q * 512
                    L.append(f"ds_read_b64_tr_b16 {vr(b+8+8*si+4*kk+2*q,2)}, v7 offset:{off}")
        return L

    def mfmas(s):
        b = 16 + 24 * (s & 1)
        L = []
        for kk in (0, 1):
            for si, sg in enumerate(segs):
                acc = vr(64 + 16 * si, 16)
                c = "0" if (s == 0 and kk == 0) else acc
                xf, wf = vr(b + 4*kk, 4), vr(b + 8 + 8*si + 4*kk, 4)
                if vwave:
                    L.append(f"v_mfma_f32_32x32x16_bf16 {acc}, {xf}, {wf}, {c}")
                else:
                    L.append(f"v_mfma_f32_32x32x16_bf16 {acc}, {wf}, {xf}, {c}")
        return L

    if not vwave:
        def tagval():
            E(f"s_memrealtime s[{S_T0}:{S_T1}]")
            E("s_waitcnt lgkmcnt(0)")
            E(f"s_or_b32 s{S_T0}, s{S_T0}, 1")
        wg_store("A_notag", lambda: E(f"s_or_b32 s{S_T0}, s2, s{S_WAVE}"), tagval, "0")
    E(f"s_waitcnt vmcnt({vm.need(('x',0),('w',0))}) lgkmcnt(0)")
    E("s_barrier")
    stamp(1)
    for x in reads(0):
        E(x)
    for s in range(16):
        M = mfmas(s)
        if s < 15:
            E(f"s_waitcnt vmcnt({vm.need(('x',(s+1)//2),('w',s+1))}) lgkmcnt(0)")
            E("s_barrier")
            E(M.pop(0))
            R = reads(s + 1)
            per = 3
            while R or M:
                for x in R[:per]:
                    E(x)
                R = R[per:]
                if M:
                    E(M.pop(0))
            if s + 4 <= 15:
                a_dma_w(s + 4, vm, vwave)
            if s % 2 == 1 and (s + 1) // 2 + 2 <= 7:
                a_dma_x((s + 1) // 2 + 2, vm)
            if s == 1 and not vwave:
                E("v_mov_b32 v10, 0")
                E(f"buffer_load_dword v14, v10, {sr(DBG)}, 0 offen sc1")
                vm.issue("tag")
            if s == 12 and O.touch_gu:
                E("s_mov_b32 exec_hi, 0")
                E(f"buffer_load_dword v15, v98, {sr(WU)}, 0 offen")
                E("s_mov_b32 exec_hi, -1")
                vm.issue("t")
        else:
            E("s_waitcnt lgkmcnt(0)")
            for x in M:
                E(x)
        if s == O.hint_step and not vwave:
            hint()
        if s == O.hint1 and not vwave:
            hint("A_nohint1", 1, O.hint1)
        if s == O.hint_step and O.a_exit:
            E("s_endpgm")
    stamp(2)
    E(f"s_and_b32 s{S_T0}, s{S_WAVE}, 1")
    E(f"s_lshl_b32 s{S_T1}, s{S_A}, 1")
    E(f"s_add_u32 s{S_T0}, s{S_T0}, s{S_T1}")
    E(f"s_bfe_u32 s{S_T1}, s{S_WAVE}, 0x10001")
    E(f"s_lshl_b32 s{S_T2}, s{S_B}, 1")
    E(f"s_add_u32 s{S_T1}, s{S_T1}, s{S_T2}")
    E("v_and_b32 v8, 63, v0")
    if vwave:
        E("v_and_b32 v9, 15, v8")
        E("v_lshlrev_b32 v9, 4, v9")
        E("v_bfe_u32 v10, v8, 5, 1")
        E("v_lshl_add_u32 v9, v10, 8, v9")
        E("v_bfe_u32 v10, v8, 4, 1")
        E("v_lshl_add_u32 v9, v10, 17, v9")
        E(f"s_lshl_b32 s{S_T1}, s{S_T1}, 18")
        E(f"s_lshl_b32 s{S_T0}, s{S_T0}, 11")
        E(f"s_add_u32 s{S_T0}, s{S_T0}, s{S_T1}")
        E("s_nop 7")
        for i in range(8):
            E(f"v_cvt_pk_bf16_f32 v{16+i}, v{64+2*i}, v{65+2*i}")
        E(f"buffer_store_dwordx4 v[16:19], v9, {sr(WS)}, s{S_T0} offen offset:1024 sc0 sc1")
        E(f"buffer_store_dwordx4 v[20:23], v9, {sr(WS)}, s{S_T0} offen offset:1536 sc0 sc1")
    else:
        E("v_lshlrev_b32 v9, 4, v8")
        E(f"s_lshl_b32 s{S_T2}, s{S_T1}, 18")
        E(f"s_lshl_b32 s{S_T3}, s{S_T0}, 11")
        E(f"s_add_u32 s{S_T2}, s{S_T2}, s{S_T3}")
        E(f"s_lshr_b32 s{S_T3}, s{S_T2}, 1")
        E(f"s_add_u32 s{S_T3}, s{S_T3}, {WS_Q:#x}")
        E(f"s_add_u32 s{S_C}, s{S_T2}, 0x20000")
        E(f"s_add_u32 s{S_D}, s{S_T3}, 0x10000")
        E(f"s_mov_b32 s{S_CNT}, {QSCALE:#x}")
        E("s_nop 7")
        for i in range(8):
            E(f"v_cvt_pk_bf16_f32 v{16+i}, v{80+2*i}, v{81+2*i}")
        E(f"buffer_store_dwordx4 v[16:19], v9, {sr(WS)}, s{S_T2} offen sc0 sc1")
        E(f"buffer_store_dwordx4 v[20:23], v9, {sr(WS)}, s{S_C} offen sc0 sc1")
        for i in range(16):
            E(f"v_mul_f32 v{64+i}, s{S_CNT}, v{64+i}")
        for i in range(8):
            E(f"v_cvt_pk_bf16_f32 v{24+i}, v{64+2*i}, v{65+2*i}")
        E(f"buffer_store_dwordx4 v[24:27], v9, {sr(WS)}, s{S_T3} offen sc0 sc1")
        E(f"buffer_store_dwordx4 v[28:31], v9, {sr(WS)}, s{S_D} offen sc0 sc1")
        for g in range(4):
            E(f"v_mul_f32 v{32+g}, v{64+8*g}, v{64+8*g}")
        for i in range(1, 8):
            for g in range(4):
                E(f"v_fmac_f32 v{32+g}, v{64+8*g+i}, v{64+8*g+i}")
        E("s_nop 1")
        E("v_permlane32_swap_b32 v32, v33")
        E("v_permlane32_swap_b32 v34, v35")
        E("s_nop 1")
        E("v_add_f32 v32, v32, v33")
        E("v_add_f32 v33, v34, v35")
        dpp_max((32, 33))
        E(f"s_lshl_b32 s{S_T1}, s{S_T1}, 12")
        E(f"s_lshl_b32 s{S_T0}, s{S_T0}, 6")
        E(f"s_add_u32 s{S_T0}, s{S_T0}, s{S_T1}")
        E(f"s_add_u32 s{S_T0}, s{S_T0}, {WS_NRM:#x}")
        E("v_mov_b32 v10, 0")
        E("s_brev_b64 exec, 1")
        E(f"buffer_store_dwordx2 v[32:33], v10, {sr(WS)}, s{S_T0} offen sc0 sc1")
        E("s_mov_b64 exec, -1")


S0, S1, OA, OB, QX, QY, K0, K1, V0, V1 = 16, 32, 48, 64, 80, 84, 88, 92, 96, 104
IDX, VK, VV, VD, VKB, VVB, VT, VL = 112, 113, 114, 115, 116, 117, 118, 119
KVS = 16384


def a_kv_dma():
    E(f"s_add_u32 m0, s{S_XK}, s{S_W1K}")
    E(f"s_add_u32 s{S_T0}, s{S_WB}, s{S_WK}")
    E(f"buffer_load_dwordx4 v{VD}, {sr(WS)}, s{S_T0} offen sc1 lds")
    E(f"buffer_load_dwordx4 v{VD}, {sr(WS)}, s{S_T0} offen offset:1024 sc1 lds")
    E(f"s_add_u32 s{S_WK}, s{S_WK}, {KVS}")
    E(f"s_and_b32 s{S_WK}, s{S_WK}, {8*KVS-1:#x}")
    E(f"s_add_u32 s{S_XK}, s{S_XK}, {KVS}")
    E(f"s_cmp_eq_u32 s{S_XK}, {5*KVS}")
    E(f"s_cselect_b32 s{S_XK}, 0, s{S_XK}")


def a_attention():
    E(f"s_and_b32 s{S_C}, s2, 7")
    E(f"s_lshr_b32 s{S_T0}, s2, 6")
    E(f"s_lshl_b32 s{S_D}, s{S_C}, 2")
    E(f"s_add_u32 s{S_D}, s{S_D}, s{S_T0}")
    E(f"s_lshl_b32 s{S_T0}, s{S_B}, 11")
    E(f"s_lshl_b32 s{S_T1}, s{S_A}, 6")
    E(f"s_add_u32 s{S_T0}, s{S_T0}, s{S_T1}")
    E(f"s_add_u32 s{S_XB}, s{S_T0}, {WS_FKV:#x}")
    E(f"s_bfe_u32 s{S_A}, s2, 0x30003")
    E("v_and_b32 v8, 63, v0")
    E(f"v_lshlrev_b32 v{VL}, 4, v8")
    E(f"s_lshl_b32 s{S_W1K}, s{S_WAVE}, 11")
    E(f"v_add_u32 v{VD}, s{S_W1K}, v{VL}")
    E(f"s_lshl_b32 s{S_WB}, s{S_D}, 17")
    if O.kv_rot:
        E(f"s_lshl_b32 s{S_WK}, s{S_A}, 14")
    else:
        E(f"s_mov_b32 s{S_WK}, 0")
    E(f"s_mov_b32 s{S_XK}, 0")
    E(f"s_lshl_b32 s{S_T1}, s{S_A}, 3")
    E(f"s_and_b32 s{S_T2}, s{S_WAVE}, 3")
    E(f"s_lshl_b32 s{S_T2}, s{S_T2}, 1")
    E(f"s_add_u32 s{S_B}, s{S_T1}, s{S_T2}")
    E(f"s_lshl_b32 s{S_T1}, s{S_B}, 10")
    E(f"s_lshl_b32 s{S_T2}, s{S_D}, 16")
    E(f"s_add_u32 s{S_T1}, s{S_T1}, s{S_T2}")
    E(f"s_add_u32 s4, s{S_T1}, {WS_Q:#x}")
    E(f"s_lshr_b32 s{S_T2}, s{S_D}, 1")
    E(f"s_lshl_b32 s{S_T2}, s{S_T2}, 12")
    E(f"s_add_u32 s5, s{S_T2}, {WS_NRM:#x}")
    E(f"s_lshr_b32 s{S_T0}, s{S_WAVE}, 2")
    E(f"s_lshl_b32 s{S_T0}, s{S_T0}, 11")
    E(f"v_add_u32 v{VKB}, s{S_T0}, v{VL}")
    E("v_and_b32 v9, 15, v8")
    E("v_lshlrev_b32 v9, 4, v9")
    E("v_bfe_u32 v10, v8, 5, 1")
    E("v_lshl_add_u32 v9, v10, 8, v9")
    E(f"s_add_u32 s{S_T0}, s{S_T0}, 1024")
    E(f"v_add_u32 v{VVB}, s{S_T0}, v9")
    E(f"v_mov_b32 v{VK}, v{VKB}")
    E(f"v_mov_b32 v{VV}, v{VVB}")
    E(f"v_mov_b32 v{IDX}, 0xdddddddd")
    E("v_and_b32 v9, 27, v8")
    E("v_cmp_eq_u32 vcc, 16, v9")
    E("v_mov_b32 v9, 0x3f803f80")
    E("s_nop 0")
    E(f"v_cndmask_b32 v{V0}, 0, v9, vcc")
    for i in range(1, 16):
        E(f"v_mov_b32 v{V0+i}, v{V0}")
    if O.touch:
        E(f"s_lshr_b32 s{S_T0}, s2, 3")
        E(f"s_lshl_b32 s{S_T0}, s{S_T0}, 3")
        E(f"s_add_u32 s{S_T0}, s{S_T0}, s{S_WAVE}")
        E(f"s_lshl_b32 s{S_T0}, s{S_T0}, 11")
        E(f"v_lshlrev_b32 v{VT}, 7, v8")
        E(f"v_add_u32 v{VT}, s{S_T0}, v{VT}")
    E(f"s_mov_b32 s{S_VM}, 0xffff")
    E(f"s_mov_b32 s{S_VM+1}, 0xffff")
    E(f"s_mov_b32 s{S_SLOT}, 0")
    E(f"s_mov_b32 s{S_CNT}, 0")
    E("v_lshlrev_b32 v9, 6, v8")
    E("s_waitcnt vmcnt(0)")
    E("s_barrier")
    stamp(3)
    E(f"s_cmp_lg_u32 s{S_WAVE}, 0")
    E("s_cbranch_scc1 A_wait1")
    E(f"v_readfirstlane_b32 s{S_TAG}, v14")
    E("s_nop 3")
    E(f"s_cmp_lg_u32 s{S_TAG}, 0")
    E("s_cbranch_scc1 A_tag_ok")
    get_tag("A_tag")
    put_flag(S_XB)
    if O.hint_step == 16:
        hint()
    E("v_and_b32 v10, 31, v0")
    E("v_lshlrev_b32 v10, 6, v10")
    E(f"s_lshl_b32 s{S_T0}, s{S_C}, 11")
    E(f"s_add_u32 s{S_T0}, s{S_T0}, {WS_FKV:#x}")
    poll("A_pollkv", 10, f"s{S_T0}")
    if O.hint_step == 17:
        hint()
    E.label("A_wait1")
    for i in range(32):
        E(f"v_mov_b32 v{OA+i}, 0")
    for i in range(8, 16):
        E(f"v_mov_b32 v{S1+i}, 0")
    E("v_mov_b32 v10, 0")
    E("s_barrier")
    stamp(4)
    a_kv_dma()
    E(f"buffer_load_dwordx4 {vr(QX,4)}, v{VL}, {sr(WS)}, s4 offen sc1")
    E(f"buffer_load_dwordx4 {vr(QY,4)}, v{VL}, {sr(WS)}, s4 offen offset:1024 sc1")
    E(f"buffer_load_dwordx2 v[12:13], v9, {sr(WS)}, s5 offen sc1")
    E(f"buffer_load_dword v14, v10, {sr(DBG)}, 0 offen sc1")
    for c in range(1, O.kv_first):
        a_kv_dma()
    E(f"s_setprio {O.prio_a_att}")
    E(f"s_waitcnt vmcnt({2*O.kv_first - (4 if O.pair else 2)})")
    E("s_barrier")
    stamp(5)

    def vreads(dst, off):
        E(f"s_mov_b64 exec, s[{S_VM}:{S_VM+1}]")
        E(f"ds_read_b128 {vr(dst,4)}, v{VV} offset:{off}")
        E(f"ds_read_b128 {vr(dst+4,4)}, v{VV} offset:{off+512}")
        E("s_mov_b64 exec, -1")

    E(f"ds_read_b128 {vr(K0,4)}, v{VK}")
    vreads(V0, 0)
    E(f"v_readfirstlane_b32 s{S_TAG}, v14")
    dpp_max((12, 13))
    E("s_nop 0")
    E("v_mul_f32 v12, v12, v13")
    E("s_waitcnt lgkmcnt(0)")
    E(f"v_readlane_b32 s{S_T0}, v12, 63")
    E(f"v_mfma_f32_32x32x16_bf16 {vr(S0,16)}, {vr(K0,4)}, {vr(QX,4)}, 0")
    E("s_nop 3")
    E(f"s_cmp_gt_u32 s{S_T0}, {THR2:#x}")
    if O.force_slow:
        E("s_branch A_slow")
    E("s_cbranch_scc1 A_slow")
    E("s_nop 7")

    def chunk_turn():
        E("s_waitcnt vmcnt(0)")
        E("s_barrier")
        E(f"s_cmp_gt_u32 s{S_CNT}, {7 - O.kv_first}")
        lab = f"A_nf{len(E.L)}"
        E(f"s_cbranch_scc1 {lab}")
        a_kv_dma()
        E.label(lab)
        if O.touch:
            E(f"s_sub_u32 s{S_T0}, s{S_CNT}, {O.wd_t0}")
            E(f"s_lshl_b32 s{S_T0}, s{S_T0}, 19")
            E("s_mov_b64 exec, 0xffff")
            E(f"s_cmp_gt_u32 s{S_T0}, {3 << 19}")
            E(f"s_cbranch_scc1 {lab}t")
            E(f"buffer_load_dword v15, v{VT}, {sr(WD)}, s{S_T0} offen")
            E.label(lab + "t")
            E(f"s_cmp_lg_u32 s{S_CNT}, {O.wo_t}")
            E(f"s_cbranch_scc1 {lab}u")
            E(f"buffer_load_dword v15, v{VT}, {sr(WO)}, 0 offen")
            E.label(lab + "u")
            E("s_mov_b64 exec, -1")
        E(f"s_add_u32 s{S_SLOT}, s{S_SLOT}, {KVS}")
        E(f"s_cmp_eq_u32 s{S_SLOT}, {5*KVS}")
        E(f"s_cselect_b32 s{S_SLOT}, 0, s{S_SLOT}")
        E(f"v_add_u32 v{VK}, s{S_SLOT}, v{VKB}")
        E(f"v_add_u32 v{VV}, s{S_SLOT}, v{VVB}")

    NT = 16 if O.pair else 8

    def next_slot():
        E(f"s_add_u32 s{S_SLOT}, s{S_SLOT}, {KVS}")
        E(f"s_cmp_eq_u32 s{S_SLOT}, {5*KVS}")
        E(f"s_cselect_b32 s{S_SLOT}, 0, s{S_SLOT}")
        E(f"v_add_u32 v{VK}, s{S_SLOT}, v{VKB}")
        E(f"v_add_u32 v{VV}, s{S_SLOT}, v{VVB}")

    def refill(lab, lo, hi):
        if lo == hi:
            E(f"s_cmp_lg_u32 s{S_CNT}, {lo}")
        else:
            E(f"s_cmp_gt_u32 s{S_CNT}, {hi}")
        E(f"s_cbranch_scc1 {lab}")
        a_kv_dma()
        E.label(lab)

    E.raw(".p2align 6")
    E.label("A_loop")
    ga, gb, gc = O.ga, O.ga + O.gb, O.ga + O.gb + O.gc
    for t in range(NT):
        blk, kt = t & 1, (t >> 1) & 3
        Sc, Sn = (S0, S1) if blk == 0 else (S1, S0)
        Oc, On = (OA, OB) if blk == 0 else (OB, OA)
        Vk, Vo = (V0, V1) if kt & 1 == 0 else (V1, V0)
        Kk, Ko = (K0, K1) if kt & 1 == 0 else (K1, K0)
        if not O.pair:
            if t == 6:
                chunk_turn()
        elif t == 6:
            next_slot()
        elif t == 14:
            E("s_waitcnt vmcnt(0)")
            E("s_barrier")
            next_slot()
        ex = lambda a, b: [E(f"v_exp_f32 v{Sc+i}, v{Sc+i}") for i in range(a, b)]
        ph = ((t + 2) % NT) * 8 // NT
        prf = lambda ph: {0: O.prio_a_att, 4: 3 - ph // 2, 2: O.prio_a_att + (1 if ph < 4 else 0), 3: O.prio_a_att + [2, 2, 2, 1, 1, 1, 0, 0][ph]}[O.bal]
        pr = prf(ph)
        if O.bal and not O.toggle and pr != prf(((t + 1) % NT) * 8 // NT):
            E(f"s_setprio {pr}")

        def mm(x):
            if O.toggle: E(f"s_setprio {O.toggle}")
            E(x)
            if O.toggle: E(f"s_setprio {pr}")
        ex(0, ga)
        mm(f"v_smfmac_f32_32x32x32_bf16 {vr(On,16)}, {vr((Vo if blk == 0 else Vk) + 4,4)}, {vr(Sn+8,8)}, v{IDX}")
        if blk == 0:
            off = ((kt + 1) % 4) * 4096
            E(f"ds_read_b128 {vr(Ko,4)}, v{VK} offset:{off}")
            vreads(Vo, off)
        ex(ga, gb)
        if blk == 1:
            E("s_waitcnt lgkmcnt(0)")
        mm(f"v_mfma_f32_32x32x16_bf16 {vr(Sn,16)}, {vr(Kk if blk == 0 else Ko,4)}, {vr(QY if blk == 0 else QX,4)}, 0")
        ex(gb, gc)
        mm(f"v_smfmac_f32_32x32x32_bf16 {vr(Oc,16)}, {vr(Vk,4)}, {vr(Sc,8)}, v{IDX}")
        if O.pair and t == 15:
            refill("A_rf0", 0, 1)
        if O.pair and t == 1:
            refill("A_rf1", 2, 2)
        if O.pair and O.kv_first < 5 and t in (3, 5, 7)[:5 - O.kv_first]:
            refill(f"A_rf{t}", 0, 0)
        ex(gc, 16)
    E(f"s_add_u32 s{S_CNT}, s{S_CNT}, 1")
    E(f"s_cmp_lt_u32 s{S_CNT}, {O.att_iters * 8 // NT}")
    E("s_cbranch_scc1 A_loop")
    E("s_nop 1")
    E(f"v_smfmac_f32_32x32x32_bf16 {vr(OB,16)}, {vr(V1+4,4)}, {vr(S1+8,8)}, v{IDX}")
    E.label("A_fin")
    stamp(6)
    E("s_setprio 3")
    E(f"s_lshr_b32 s{S_T3}, s{S_WAVE}, 2")
    E(f"s_add_u32 s{S_B}, s{S_B}, s{S_T3}")
    E(f"s_lshl_b32 s{S_T1}, s{S_WAVE}, 12")
    E(f"s_xor_b32 s{S_T2}, s{S_T1}, 16384")
    E(f"v_add_u32 v10, s{S_T1}, v{VL}")
    E(f"v_add_u32 v11, s{S_T2}, v{VL}")
    E(f"s_mul_i32 s{S_T0}, s{S_B}, 144")
    E(f"s_add_u32 s{S_T0}, s{S_T0}, s{S_D}")
    E(f"s_lshl_b32 s{S_T0}, s{S_T0}, 10")
    E(f"s_add_u32 s{S_T0}, s{S_T0}, {WS_HO + 112*1024:#x}")
    E(f"s_lshl_b32 s{S_T1}, s{S_B}, 11")
    E(f"s_lshl_b32 s{S_T2}, s{S_D}, 6")
    E(f"s_add_u32 s{S_T1}, s{S_T1}, s{S_T2}")
    E(f"s_add_u32 s{S_T1}, s{S_T1}, {WS_FO:#x}")
    E(f"s_cmp_lg_u32 s{S_T3}, 0")
    E("s_cbranch_scc1 A_hi")
    for i in range(3):
        E(f"ds_write_b128 v10, {vr(OB+4*i,4)} offset:{1024*i}")
    E("s_branch A_x")
    E.label("A_hi")
    for i in range(3):
        E(f"ds_write_b128 v10, {vr(OA+4*i,4)} offset:{1024*i}")
    E("s_nop 1")
    for i in range(9):
        E(f"v_mov_b32 v{OA+i}, v{OB+i}")
    E.label("A_x")
    E("s_waitcnt lgkmcnt(0)")
    E("s_barrier")
    E(f"ds_read_b128 {vr(S0+8,4)}, v11 offset:2048")
    E(f"ds_read_b128 {vr(S0,4)}, v11")
    E(f"ds_read_b128 {vr(S0+4,4)}, v11 offset:1024")
    E("s_waitcnt lgkmcnt(2)")
    E(f"v_add_f32 v12, v{OA+8}, v{S0+8}")
    E("v_rcp_f32 v12, v12")
    E("s_waitcnt lgkmcnt(0)")
    for i in range(8):
        E(f"v_add_f32 v{OA+i}, v{OA+i}, v{S0+i}")
    for i in range(8):
        E(f"v_mul_f32 v{OA+i}, v12, v{OA+i}")
    for i in range(4):
        E(f"v_cvt_pk_bf16_f32 v{S1+i}, v{OA+2*i}, v{OA+2*i+1}")
    E(f"buffer_store_dwordx4 {vr(S1,4)}, v{VL}, {sr(WS)}, s{S_T0} offen sc0 sc1")
    E("s_waitcnt vmcnt(0)")
    put_flag(S_T1)
    stamp(7)
    flush_stamps(range(8), "A_st")
    E("s_endpgm")

    E.label("A_slow")
    MX, MY, T, AL = 4, 5, 6, 7
    E(f"v_mov_b32 v{MX}, 0xff7fffff")
    E(f"v_mov_b32 v{MY}, 0xff7fffff")
    E.label("A_sloop")
    E(f"s_mov_b32 s{S_T3}, 0")
    E.label("A_stile")
    E(f"ds_read_b128 {vr(K0,4)}, v{VK}")
    vreads(V0, 0)
    E(f"v_add_u32 v{VK}, 4096, v{VK}")
    E(f"v_add_u32 v{VV}, 4096, v{VV}")
    E("s_waitcnt lgkmcnt(0)")
    for (M, Q, Oc) in ((MX, QX, OA), (MY, QY, OB)):
        E(f"v_mfma_f32_32x32x16_bf16 {vr(S0,16)}, {vr(K0,4)}, {vr(Q,4)}, 0")
        E("s_nop 15")
        E(f"v_max3_f32 v{T}, v{S0}, v{S0+1}, v{M}")
        for i in range(1, 8):
            E(f"v_max3_f32 v{T}, v{S0+2*i}, v{S0+2*i+1}, v{T}")
        E(f"v_mov_b32 v{AL}, v{T}")
        E("s_nop 1")
        E(f"v_permlane32_swap_b32 v{T}, v{AL}")
        E("s_nop 1")
        E(f"v_max_f32 v{T}, v{T}, v{AL}")
        E(f"v_sub_f32 v{AL}, v{M}, v{T}")
        E(f"v_exp_f32 v{AL}, v{AL}")
        E(f"v_mov_b32 v{M}, v{T}")
        for i in range(16):
            E(f"v_sub_f32 v{S0+i}, v{S0+i}, v{T}")
        for i in range(16):
            E(f"v_exp_f32 v{S0+i}, v{S0+i}")
        for i in range(9):
            E(f"v_mul_f32 v{Oc+i}, v{AL}, v{Oc+i}")
        E("s_nop 1")
        E(f"v_smfmac_f32_32x32x32_bf16 {vr(Oc,16)}, {vr(V0,4)}, {vr(S0,8)}, v{IDX}")
        E(f"v_smfmac_f32_32x32x32_bf16 {vr(Oc,16)}, {vr(V0+4,4)}, {vr(S0+8,8)}, v{IDX}")
    E(f"s_add_u32 s{S_T3}, s{S_T3}, 1")
    E(f"s_cmp_lt_u32 s{S_T3}, 4")
    E("s_cbranch_scc1 A_stile")
    chunk_turn()
    E(f"s_add_u32 s{S_CNT}, s{S_CNT}, 1")
    E(f"s_cmp_lt_u32 s{S_CNT}, 8")
    E("s_cbranch_scc1 A_sloop")
    E(f"s_lshl_b32 s{S_T1}, s{S_WAVE}, 10")
    E(f"s_add_u32 s{S_T1}, s{S_T1}, 65536")
    E(f"s_xor_b32 s{S_T2}, s{S_T1}, 4096")
    E(f"v_add_u32 v10, s{S_T1}, v{VL}")
    E(f"v_add_u32 v11, s{S_T2}, v{VL}")
    E(f"ds_write_b64 v10, v[{MX}:{MY}]")
    E("s_waitcnt lgkmcnt(0)")
    E("s_barrier")
    E(f"ds_read_b64 v[{T}:{AL}], v11")
    E("s_waitcnt lgkmcnt(0)")
    for (M, P, Oc) in ((MX, T, OA), (MY, AL, OB)):
        E(f"v_max_f32 v{P}, v{P}, v{M}")
        E(f"v_sub_f32 v{P}, v{M}, v{P}")
        E(f"v_exp_f32 v{P}, v{P}")
        E("s_nop 0")
        for i in range(9):
            E(f"v_mul_f32 v{Oc+i}, v{P}, v{Oc+i}")
    E("s_branch A_fin")


F_XS, F_WS0, F_WSZ = 16384, 32768, 16384
WROW = 3584


def f_dma_x(u, vm):
    E(f"s_add_u32 m0, s{S_W1K}, {(u % 2) * F_XS}")
    E(f"s_add_u32 s{S_T0}, s{S_XB}, s{S_XK}")
    E(f"buffer_load_dwordx4 v1, {sr(X)}, s{S_T0} offen lds")
    E(f"s_add_u32 m0, s{S_W1K}, {(u % 2) * F_XS + 8192}")
    E(f"s_add_u32 s{S_T0}, s{S_T0}, 0x10000")
    E(f"buffer_load_dwordx4 v1, {sr(X)}, s{S_T0} offen lds")
    E(f"s_add_u32 s{S_XK}, s{S_XK}, 128")
    E(f"s_and_b32 s{S_XK}, s{S_XK}, 1023")
    vm.issue(("x", u), 2)


def f_dma_w(s, vm):
    base = F_WS0 + (s % 3) * F_WSZ
    E(f"s_add_u32 m0, s{S_W1K}, {base}")
    E("s_nop 0")
    E(f"buffer_load_dwordx4 v2, {sr(W1)}, s{S_WK} offen lds")
    E(f"s_add_u32 m0, s{S_W1K}, {base + 8192}")
    E("s_nop 0")
    E(f"buffer_load_dwordx4 v3, {sr(WU)}, s{S_WK} offen lds")
    E(f"s_add_u32 s{S_WK}, s{S_WK}, {32 * WROW}")
    E(f"s_cmp_eq_u32 s{S_WK}, {512 * WROW}")
    E(f"s_cselect_b32 s{S_WK}, 0, s{S_WK}")
    vm.issue(("w", s), 2)


def f_prologue():
    E(f"s_cmp_ge_u32 s2, {256 if O.no_f else 512}")
    E("s_cbranch_scc1 L_end")
    stamp(0)
    E(f"s_load_dwordx2 s[{X}:{X+1}], s[0:1], 0")
    E(f"s_load_dwordx2 s[{W1}:{W1+1}], s[0:1], 32")
    E(f"s_load_dwordx2 s[{WU}:{WU+1}], s[0:1], 40")
    E(f"s_load_dwordx2 s[{WS}:{WS+1}], s[0:1], 80")
    E(f"s_load_dwordx2 s[{DBG}:{DBG+1}], s[0:1], 72")
    E(f"s_load_dwordx2 s[{WD}:{WD+1}], s[0:1], 48")
    E(f"s_load_dwordx2 s[{WO}:{WO+1}], s[0:1], 16")
    E(f"s_load_dwordx2 s[{OUT}:{OUT+1}], s[0:1], 64")
    E(f"s_load_dwordx2 s[{GW}:{GW+1}], s[0:1], 56")
    E("v_lshrrev_b32 v8, 6, v0")
    E(f"s_bfe_u32 s{S_C}, s2, 0x50003")
    E(f"v_readfirstlane_b32 s{S_WAVE}, v8")
    E(f"s_cmp_ge_u32 s{S_C}, 28")
    E("s_cbranch_scc0 F_main")
    E("s_getpc_b64 s[4:5]")
    E.label("F_pc")
    E(f"s_add_u32 s4, s4, CODE_START - F_pc")
    E("s_addc_u32 s5, s5, -1")
    E("s_mov_b32 s6, CODE_END - CODE_START")
    E("s_mov_b32 s7, 0x20000")
    E("v_lshlrev_b32 v9, 7, v0")
    E("buffer_load_dword v120, v9, s[4:7], 0 offen")
    E("s_branch F_main")


def f_main():
    E.label("F_main")
    srd(X, 0x200000); srd(W1, 512 * WROW); srd(WU, 512 * WROW); srd(WS, WS_SIZE); srd(DBG, 256)
    srd(WD, 1792 * 1024); srd(WO, 512 * 1024); srd(OUT, 0x200000); srd(GW, 1024)
    E(f"s_lshl_b32 s{S_W1K}, s{S_WAVE}, 10")
    E(f"s_setprio {O.prio_f if O.prio_up < 0 else O.prio_up}")
    E("v_lshrrev_b32 v9, 3, v0")
    E("v_lshrrev_b32 v10, 4, v0")
    E("v_xor_b32 v11, v10, v0")
    E("v_and_b32 v11, 7, v11")
    E("v_lshlrev_b32 v11, 4, v11")
    E("v_lshl_add_u32 v1, v9, 10, v11")
    E("s_waitcnt lgkmcnt(0)")
    if O.only_down:
        stamp(1); stamp(2); stamp(3); stamp(10); stamp(11); stamp(12)
        E("s_branch F_pub")
    if O.warm_steps:
        E(f"s_cmp_lt_u32 s{S_WAVE}, 4")
        E(f"s_cselect_b32 s4, s{W1}, s{WU}")
        E(f"s_cselect_b32 s5, s{W1+1}, s{WU+1}")
        E(f"s_mul_i32 s{S_T0}, s{S_C}, {WROW}")
        E(f"s_bfe_u32 s{S_T1}, s2, 0x10002")
        E(f"s_mul_i32 s{S_T1}, s{S_T1}, 1792")
        E(f"s_add_u32 s{S_T0}, s{S_T0}, s{S_T1}")
        E(f"s_and_b32 s{S_T1}, s{S_WAVE}, 3")
        E(f"s_mul_i32 s{S_T1}, s{S_T1}, 448")
        E(f"s_add_u32 s{S_T0}, s{S_T0}, s{S_T1}")
        E(f"s_add_u32 s4, s4, s{S_T0}")
        E("s_addc_u32 s5, s5, 0")
        E(f"s_mov_b32 s{S_CNT}, {O.warm_steps}")
        E.label("F_warm")
        for i in range(7):
            E(f"s_load_dword s6, s[4:5], {64*i}")
        E(f"s_add_u32 s4, s4, {32 * WROW}")
        E("s_addc_u32 s5, s5, 0")
        E(f"s_sub_u32 s{S_CNT}, s{S_CNT}, 1")
        E(f"s_cmp_lg_u32 s{S_CNT}, 0")
        E("s_cbranch_scc1 F_warm")
        E("s_waitcnt lgkmcnt(0)")
    if O.f_touch:
        E(f"s_lshl_b32 s{S_T0}, s{S_C}, 2")
        E(f"s_and_b32 s{S_T1}, s{S_WAVE}, 3")
        E(f"s_add_u32 s{S_T0}, s{S_T0}, s{S_T1}")
        E(f"s_mul_i32 s{S_T0}, s{S_T0}, {2 * 3584}")
        E(f"s_bfe_u32 s{S_T1}, s2, 0x10002")
        E(f"s_mul_i32 s{S_T1}, s{S_T1}, 1792")
        E(f"s_add_u32 s{S_T0}, s{S_T0}, s{S_T1}")
        E("v_bfe_u32 v12, v0, 4, 1")
        E("v_mul_u32_u24 v12, 3584, v12")
        E("v_and_b32 v13, 15, v0")
        E("v_lshl_add_u32 v12, v13, 7, v12")
        E(f"v_add_u32 v13, s{S_T0}, v12")
        E(f"s_cmp_lt_u32 s{S_WAVE}, 4")
        E(f"s_cselect_b32 s4, s{W1}, s{WU}")
        E(f"s_cselect_b32 s5, s{W1+1}, s{WU+1}")
        E(f"s_mov_b32 s6, {512 * WROW}")
        E("s_mov_b32 s7, 0x20000")
        E("s_mov_b64 exec, 1")
        E(f"buffer_load_dword v15, v13, s[4:7], 0 offen")
        E("s_waitcnt vmcnt(0)")
        E("s_mov_b64 exec, 0x3fff3fff")
        E(f"buffer_load_dword v15, v13, s[4:7], 0 offen")
        E("s_mov_b64 exec, -1")
    E(f"s_cmp_ge_u32 s{S_C}, 28")
    E("s_cbranch_scc1 F_gate")
    E(f"s_and_b32 s{S_T0}, s{S_C}, 3")
    E(f"s_lshr_b32 s{S_T1}, s{S_C}, 2")
    E(f"s_and_b32 s{S_A}, s2, 3")
    E(f"s_lshl_b32 s{S_A}, s{S_A}, 2")
    E(f"s_add_u32 s{S_A}, s{S_A}, s{S_T0}")
    E(f"s_bfe_u32 s{S_B}, s2, 0x10002")
    E(f"s_mul_i32 s{S_B}, s{S_B}, 7")
    E(f"s_add_u32 s{S_B}, s{S_B}, s{S_T1}")
    E(f"s_lshl_b32 s{S_T0}, s{S_T0}, 1")
    E(f"s_add_u32 s{S_T0}, s{S_T0}, s{S_T1}")
    E(f"s_and_b32 s{S_T0}, s{S_T0}, {7 if O.f_rot else 0}")
    E(f"s_lshl_b32 s{S_XK}, s{S_T0}, 7")
    E(f"s_mul_i32 s{S_WK}, s{S_T0}, {64 * WROW}")
    E(f"s_lshl_b32 s{S_XB}, s{S_A}, 17")
    E(f"v_mul_u32_u24 v9, {WROW}, v10")
    E("v_bfe_u32 v11, v0, 1, 3")
    E("v_and_b32 v10, 3, v10")
    E("v_xor_b32 v11, v11, v10")
    E("v_lshl_add_u32 v9, v11, 5, v9")
    E("v_and_b32 v11, 1, v0")
    E("v_lshl_add_u32 v9, v11, 4, v9")
    E(f"s_lshl_b32 s{S_T0}, s{S_B}, 8")
    E(f"v_add_u32 v2, s{S_T0}, v9")
    E("v_xor_b32 v3, 128, v2")
    vm = VM()

    def fill():
        f_dma_x(0, vm); f_dma_w(0, vm); f_dma_w(1, vm); f_dma_x(1, vm); f_dma_w(2, vm)

    if O.f_fill_early:
        fill()
    E("v_and_b32 v8, 31, v0")
    E("v_lshrrev_b32 v9, 1, v8")
    E("v_and_b32 v9, 7, v9")
    E("v_bfe_u32 v10, v0, 5, 1")
    E("v_xor_b32 v9, v9, v10")
    E("v_lshlrev_b32 v9, 4, v9")
    E("v_lshl_add_u32 v9, v8, 7, v9")
    E("v_bfe_u32 v8, v0, 6, 1")
    E("v_lshl_add_u32 v4, v8, 13, v9")
    for ks in (1, 2, 3):
        E(f"v_xor_b32 v{4+ks}, {32*ks}, v4")
    E("v_bfe_u32 v8, v0, 2, 2")
    E("v_lshl_add_u32 v9, v10, 3, v8")
    E("v_lshlrev_b32 v9, 8, v9")
    E("v_bfe_u32 v10, v0, 4, 1")
    E("v_lshl_add_u32 v9, v10, 13, v9")
    E("v_lshlrev_b32 v10, 2, v10")
    E("v_xor_b32 v8, v8, v10")
    E("v_lshrrev_b32 v10, 7, v0")
    E("v_lshlrev_b32 v10, 1, v10")
    E("v_xor_b32 v8, v8, v10")
    E("v_lshl_add_u32 v9, v8, 5, v9")
    E("v_and_b32 v8, 3, v0")
    E("v_lshl_add_u32 v9, v8, 3, v9")
    E(f"v_add_u32 v8, {F_WS0}, v9")
    E("v_xor_b32 v9, 32, v8")
    E(f"s_cmp_lg_u32 s{S_WAVE}, 0")
    E("s_cbranch_scc1 F_go")
    wait_start("F_tag", 1 if O.hint1 >= 0 else 0)
    E.label("F_go")
    if not O.f_fill_early:
        E("s_barrier")
        fill()
    stamp(1)

    def reads(s, kk):
        b = 16 + 16 * kk
        u = s // 2
        L = []
        for i in (0, 1):
            L.append(f"ds_read_b128 {vr(b+4*i,4)}, v{4 + 2*(s&1) + kk} offset:{(u % 2) * F_XS + i * 4096}")
            for q in (0, 1):
                L.append(f"ds_read_b64_tr_b16 {vr(b+8+4*i+2*q,2)}, v{8+i} offset:{(s % 3) * F_WSZ + kk * 4096 + q * 1024}")
        return L

    def mfmas(s, kk):
        b = 16 + 16 * kk
        L = []
        for rbk, bb in ((0, 0), (0, 1), (1, 1), (1, 0)):
            acc = vr(64 + 16 * (2 * rbk + bb), 16)
            c = "0" if (s == 0 and kk == 0) else acc
            L.append(f"v_mfma_f32_32x32x16_bf16 {acc}, {vr(b+8+4*bb,4)}, {vr(b+4*rbk,4)}, {c}")
        return L

    E(f"s_waitcnt vmcnt({vm.need(('x',0),('w',0))})")
    E("s_barrier")
    stamp(2)
    for x in reads(0, 0):
        E(x)
    def paced(s, kk):
        M, R = mfmas(s, kk), reads(s, kk)
        [E(x) for x in R[:3]]; E("s_waitcnt lgkmcnt(0)"); E(M[0])
        [E(x) for x in R[4:]]; E("s_waitcnt lgkmcnt(0)"); E(M[1])
        E(R[3]); E("s_waitcnt lgkmcnt(0)"); E(M[2]); E(M[3])

    for s in range(16):
        if s > O.pace_from:
            paced(s, 0)
            paced(s, 1)
            if s < 15:
                E(f"s_waitcnt vmcnt({vm.need(('x',(s+1)//2),('w',s+1))})")
                E("s_barrier")
                if s + 3 <= 15:
                    f_dma_w(s + 3, vm)
                if s % 2 == 1 and (s + 1) // 2 + 1 <= 7:
                    f_dma_x((s + 1) // 2 + 1, vm)
                if s in (3, 7, 11):
                    stamp(10 + s // 4)
            continue
        if O.boost_mask and (s == 0 or ((O.boost_mask >> s) ^ (O.boost_mask >> (s - 1))) & 1):
            E(f"s_setprio {O.prio_boost if (O.boost_mask >> s) & 1 else O.prio_f}")
        M, R = mfmas(s, 0), reads(s, 1)
        E("s_waitcnt lgkmcnt(0)")
        E(M[0]); [E(x) for x in R[:3]]; E(M[1]); [E(x) for x in R[3:]]; E(M[2]); E(M[3])
        M = mfmas(s, 1)
        if s == 2 and O.hint1 >= 0:
            E("s_waitcnt lgkmcnt(0)")
            [E(x) for x in M]
            E(f"s_cmp_lg_u32 s{S_WAVE}, 0")
            E("s_cbranch_scc1 F_go2")
            wait_start("F_tag2", 0, False)
            E.label("F_go2")
            E("s_barrier")
            f_dma_w(3, vm); f_dma_w(4, vm); f_dma_x(2, vm); f_dma_w(5, vm)
            E(f"s_waitcnt vmcnt({vm.need(('w', 3))})")
            E("s_barrier")
            [E(x) for x in reads(3, 0)]
            continue
        if s < 15:
            E(f"s_waitcnt vmcnt({vm.need(('x',(s+1)//2),('w',s+1))}) lgkmcnt(0)")
            E("s_barrier")
            R = reads(s + 1, 0) if s + 1 <= O.pace_from else []
            E(M[0]); [E(x) for x in R[:3]]; E(M[1]); [E(x) for x in R[3:]]; E(M[2])
            hold = O.hint1 >= 0 and s < 2
            if s + 3 <= 15 and not hold:
                f_dma_w(s + 3, vm)
            E(M[3])
            if s % 2 == 1 and (s + 1) // 2 + 1 <= 7 and not hold:
                f_dma_x((s + 1) // 2 + 1, vm)
            if s == 13 and O.f_wd:
                E(f"s_lshl_b32 s{S_T0}, s{S_C}, 16")
                E("v_lshlrev_b32 v11, 7, v0")
                E(f"buffer_load_dword v15, v11, {sr(WD)}, s{S_T0} offen")
                vm.issue("wd")
            if s == O.f_touch2:
                E(f"s_mov_b32 s{S_T0}, {256 * 3584}")
                E("s_mov_b64 exec, 0x3fff3fff")
                E(f"buffer_load_dword v15, v13, s[4:7], s{S_T0} offen")
                E("s_mov_b64 exec, -1")
                vm.issue("t2")
            if s in (3, 7, 11) and not O.dn_stamps:
                stamp(10 + s // 4)
        else:
            E("s_waitcnt lgkmcnt(0)")
            [E(x) for x in M]
    stamp(3)
    if O.a_exit:
        flush_stamps(range(13), "F_st0")
        E("s_endpgm")
    E(f"s_setprio {O.prio_silu}")
    if O.wo_early:
        voff_w()
        E("s_barrier")
        wo_stage()
    E(f"s_and_b32 s{S_T0}, s{S_WAVE}, 1")
    E(f"s_lshl_b32 s{S_T0}, s{S_T0}, 1")
    E(f"s_lshl_b32 s{S_T1}, s{S_A}, 2")
    E(f"s_add_u32 s{S_T0}, s{S_T0}, s{S_T1}")
    E(f"s_mul_i32 s{S_T0}, s{S_T0}, 144")
    E(f"s_lshl_b32 s{S_T1}, s{S_B}, 3")
    E(f"s_add_u32 s{S_T0}, s{S_T0}, s{S_T1}")
    E(f"s_and_b32 s{S_T1}, s{S_WAVE}, 6")
    E(f"s_add_u32 s{S_T0}, s{S_T0}, s{S_T1}")
    E(f"s_lshl_b32 s{S_T0}, s{S_T0}, 10")
    E(f"s_add_u32 s{S_T0}, s{S_T0}, {WS_HO:#x}")
    E(f"s_add_u32 s{S_T1}, s{S_T0}, {144 * 1024}")
    E(f"s_mov_b32 s{S_T2}, {NLOG2E:#x}")
    E(f"s_mov_b32 s{S_T3}, {NLOG2E:#x}")
    E("v_and_b32 v10, 63, v0")
    E("v_lshlrev_b32 v10, 4, v10")
    E("v_mov_b32 v12, 1.0")
    E("v_mov_b32 v13, 1.0")
    E("s_nop 4")
    for tl in range(4):
        a = 64 + 16 * tl
        t = 16 + 8 * (tl & 1)
        pk = 32 + 4 * tl
        for i in range(4):
            E(f"v_pk_mul_f32 {vr(t+2*i,2)}, {vr(a+2*i,2)}, s[{S_T2}:{S_T3}]")
        for i in range(8):
            E(f"v_exp_f32 v{t+i}, v{t+i}")
        for i in range(4):
            E(f"v_pk_mul_f32 {vr(a+2*i,2)}, {vr(a+2*i,2)}, {vr(a+8+2*i,2)}")
        for i in range(4):
            E(f"v_pk_add_f32 {vr(t+2*i,2)}, {vr(t+2*i,2)}, v[12:13]")
        for i in range(8):
            E(f"v_rcp_f32 v{t+i}, v{t+i}")
        E("s_nop 0")
        for i in range(4):
            E(f"v_pk_mul_f32 {vr(a+2*i,2)}, {vr(a+2*i,2)}, {vr(t+2*i,2)}")
        for i in range(4):
            E(f"v_cvt_pk_bf16_f32 v{pk+i}, v{a+2*i}, v{a+2*i+1}")
        E(f"buffer_store_dwordx4 {vr(pk,4)}, v10, {sr(WS)}, s{S_T0 + (tl >> 1)} offen offset:{(tl & 1) * 1024} sc0 sc1")
    E(f"s_lshl_b32 s{S_T0}, s{S_A}, 10")
    E(f"s_lshl_b32 s{S_T1}, s{S_B}, 6")
    E(f"s_add_u32 s{S_T0}, s{S_T0}, s{S_T1}")
    E.label("F_pub")
    E(f"s_add_u32 s{S_T0}, s{S_T0}, {WS_FH:#x}")
    E("s_waitcnt vmcnt(0)")
    E("s_barrier")
    stamp(4)
    E(f"s_and_b32 s{S_A}, s2, 7")
    E(f"s_lshl_b32 s{S_A}, s{S_A}, 2")
    E(f"s_and_b32 s{S_T1}, s{S_C}, 3")
    E(f"s_add_u32 s{S_A}, s{S_A}, s{S_T1}")
    E(f"s_lshr_b32 s{S_B}, s{S_C}, 2")
    E(f"s_cmp_lg_u32 s{S_WAVE}, 0")
    if O.only_down:
        E("s_branch F_wait2")
    E("s_cbranch_scc1 F_wait2")
    put_flag(S_T0)
    E.label("F_wait2")
    E("v_and_b32 v8, 63, v0")
    E("v_lshlrev_b32 v12, 4, v8")
    E(f"s_and_b32 s{S_T0}, s{S_WAVE}, 1")
    E(f"s_mul_i32 s{S_T1}, s{S_T0}, 144")
    E(f"s_lshr_b32 s{S_T2}, s{S_WAVE}, 1")
    E(f"s_add_u32 s{S_T1}, s{S_T1}, s{S_T2}")
    E(f"s_lshl_b32 s{S_T1}, s{S_T1}, 10")
    E(f"v_add_u32 v1, s{S_T1}, v12")
    E(f"s_lshl_b32 s{S_T1}, s{S_T0}, 2")
    E(f"s_add_u32 s{S_T1}, s{S_T1}, s{S_T2}")
    E(f"s_lshl_b32 s{S_D}, s{S_T1}, 10")
    E("v_bfe_u32 v10, v0, 4, 1")
    if not O.wo_early:
        voff_w()
    E(f"s_lshl_b32 s{S_T0}, s{S_T0}, 12")
    E(f"s_lshr_b32 s{S_T1}, s{S_WAVE}, 2")
    E(f"s_lshl_b32 s{S_T1}, s{S_T1}, 11")
    E(f"s_add_u32 s{S_T0}, s{S_T0}, s{S_T1}")
    E(f"v_add_u32 v4, s{S_T0}, v12")
    E("v_bfe_u32 v8, v0, 2, 2")
    E("v_bfe_u32 v9, v0, 5, 1")
    E("v_lshl_add_u32 v9, v9, 2, v8")
    E("v_lshrrev_b32 v11, 8, v0")
    E("v_lshl_add_u32 v9, v11, 5, v9")
    E("v_lshlrev_b32 v9, 7, v9")
    E("v_lshrrev_b32 v8, 1, v8")
    E("v_bfe_u32 v11, v0, 7, 1")
    E("v_xor_b32 v8, v8, v11")
    E("v_lshl_add_u32 v9, v8, 6, v9")
    E("v_lshl_add_u32 v9, v10, 5, v9")
    E("v_and_b32 v8, 3, v0")
    E("v_lshl_add_u32 v9, v8, 3, v9")
    E("v_add_u32 v5, 8192, v9")
    _m_fix_base()
    E(f"s_mul_i32 s{S_T0}, s{S_B}, 7")
    E(f"s_lshr_b32 s{S_T0}, s{S_T0}, 1")
    E(f"s_and_b32 s{S_T1}, s{S_C}, 3")
    E(f"s_mul_i32 s{S_T1}, s{S_T1}, 7")
    E(f"s_add_u32 s{S_T0}, s{S_T0}, s{S_T1}")
    E(f"s_cmp_ge_u32 s{S_T0}, 28")
    E(f"s_cselect_b32 s{S_T1}, 28, 0")
    E(f"s_sub_u32 s{S_XK}, s{S_T0}, s{S_T1}")
    if not O.d_rot:
        E(f"s_mov_b32 s{S_XK}, 0")
    if O.h_touch:
        E(f"s_lshl_b32 s{S_T0}, s{S_B}, 3")
        E(f"s_add_u32 s{S_T0}, s{S_T0}, s{S_WAVE}")
        E(f"s_mul_i32 s{S_T0}, s{S_T0}, 1792")
        E(f"s_add_u32 s{S_T2}, s{S_T0}, s{S_XB}")
        E("v_and_b32 v8, 15, v0")
        E("v_lshlrev_b32 v8, 7, v8")
        E("v_bfe_u32 v9, v0, 4, 1")
        E(f"v_mul_u32_u24 v9, {144 * 1024}, v9")
        E("v_add_u32 v8, v8, v9")
    if not O.wo_early:
        wo_stage()
    E(f"s_lshr_b32 s{S_T1}, s{S_WAVE}, 2")
    E(f"s_mul_i32 s{S_T0}, s{S_T1}, 28672")
    E(f"s_sub_u32 s{S_T0}, s{S_T0}, 8192")
    E(f"v_add_u32 v9, s{S_T0}, v5")
    E(f"s_setprio {O.prio_f if O.prio_dn < 0 else O.prio_dn}")
    if not O.wo_early:
        E("s_waitcnt vmcnt(0)")
        E("s_barrier")
    wf = lambda k: (48 + 4 * k) if k < 4 else (80 + 4 * (k - 4))
    for k in range(16):
        for q in (0, 1):
            E(f"ds_read_b64_tr_b16 {vr(wf(k) + 2*q, 2)}, v9 offset:{k * 2048 + q * 1024}")
    E(f"s_cmp_lg_u32 s{S_WAVE}, 0")
    if O.only_down:
        E("s_branch F_wait2b")
    E("s_cbranch_scc1 F_wait2b")
    E("v_and_b32 v10, 15, v0")
    E("v_lshlrev_b32 v10, 6, v10")
    E(f"s_lshr_b32 s{S_T0}, s{S_A}, 1")
    E(f"s_lshl_b32 s{S_T0}, s{S_T0}, 10")
    E(f"s_add_u32 s{S_T0}, s{S_T0}, {WS_FH:#x}")
    poll("F_pollh", 10, f"s{S_T0}")
    E.label("F_wait2b")
    E("s_waitcnt lgkmcnt(0)")
    E("s_barrier")
    stamp(5)

    def dma(slot, wsrd, wrap):
        E(f"s_add_u32 m0, s{S_D}, {slot * 16384}")
        E(f"s_lshl_b32 s{S_T0}, s{S_XK}, 12")
        E(f"s_add_u32 s{S_T0}, s{S_T0}, s{S_XB}")
        E(f"buffer_load_dwordx4 v1, {sr(WS)}, s{S_T0} offen {'sc1 ' if O.h_sc1 else ''}lds")
        E(f"s_add_u32 m0, s{S_W1K}, {slot * 16384 + 8192}")
        E(f"s_lshl_b32 s{S_T0}, s{S_XK}, 16")
        E(f"buffer_load_dwordx4 v2, {sr(wsrd)}, s{S_T0} offen lds")
        E(f"s_add_u32 s{S_XK}, s{S_XK}, 1")
        if wrap:
            E(f"s_cmp_eq_u32 s{S_XK}, 28")
            E(f"s_cselect_b32 s{S_XK}, 0, s{S_XK}")

    def greads(slot):
        b = 16 + 16 * (slot & 1)
        L = []
        for kk in (0, 1):
            L.append(f"ds_read_b128 {vr(b+4*kk,4)}, v4 offset:{slot * 16384 + kk * 1024}")
            for q in (0, 1):
                L.append(f"ds_read_b64_tr_b16 {vr(b+8+4*kk+2*q,2)}, v5 offset:{slot * 16384 + kk * 2048 + q * 1024}")
        return L

    def block(acc, wsrd, refill, wrap):
        for t in range(4):
            b = 16 + 16 * (t & 1)
            M = [f"v_mfma_f32_32x32x16_bf16 {vr(acc,16)}, {vr(b+8+4*kk,4)}, {vr(b+4*kk,4)}, {vr(acc,16)}" for kk in (0, 1)]
            if refill or t < 3:
                n = 4 if refill else (2 - t) * 2
                E(f"s_waitcnt vmcnt({n}) lgkmcnt(0)")
                E("s_barrier")
                R = greads((t + 1) % 4)
                E(M[0]); [E(x) for x in R[:3]]; E(M[1]); [E(x) for x in R[3:]]
                if refill:
                    dma(t, wsrd, wrap)
            else:
                E("s_waitcnt lgkmcnt(0)")
                [E(x) for x in M]

    if O.h_touch:
        E("s_mov_b64 exec, 0x3fff3fff")
        E(f"buffer_load_dword v15, v8, {sr(WS)}, s{S_T2} offen sc1")
        E("s_mov_b64 exec, -1")
    for t in range(4):
        dma(t, WD, True)
    for i in range(16):
        E(f"v_mov_b32 v{64+i}, 0")
    E(f"s_mov_b32 s{S_CNT}, 0")
    E("s_waitcnt vmcnt(6)")
    E("s_barrier")
    [E(x) for x in greads(0)]
    E.label("F_dloop")
    if O.late_iter <= 5:
        E(f"s_cmp_lg_u32 s{S_CNT}, {O.late_iter}")
        E("s_cbranch_scc1 F_nolow")
        E(f"s_setprio {O.prio_f_late}")
        E.label("F_nolow")
    if O.dn_stamps:
        for i in range(3):
            E(f"s_cmp_lg_u32 s{S_CNT}, {2 * i + 1}")
            E(f"s_cbranch_scc1 F_ds{i}")
            stamp(10 + i)
            E.label(f"F_ds{i}")
    block(64, WD, True, True)
    E(f"s_add_u32 s{S_CNT}, s{S_CNT}, 1")
    E(f"s_cmp_lt_u32 s{S_CNT}, 6")
    E("s_cbranch_scc1 F_dloop")
    if O.late_iter == 6:
        E(f"s_setprio {O.prio_f_late}")
    block(64, WD, False, False)
    stamp(6)
    if O.only_down:
        flush_stamps(range(13), "F_st1")
        E("s_endpgm")
    E("v_and_b32 v8, 31, v0")
    E("v_bfe_u32 v9, v0, 6, 1")
    E("v_lshl_add_u32 v8, v9, 5, v8")
    E("v_lshlrev_b32 v9, 2, v8")
    E(f"s_lshl_b32 s{S_T0}, s{S_A}, 8")
    E(f"s_add_u32 s{S_T0}, s{S_T0}, {WS_G:#x}")
    E(f"buffer_load_dword v14, v9, {sr(WS)}, s{S_T0} offen sc1")
    E(f"s_lshr_b32 s{S_T1}, s{S_WAVE}, 2")
    E(f"s_bfe_u32 s{S_T2}, s{S_WAVE}, 0x10001")
    E(f"s_lshl_b32 s{S_T2}, s{S_T2}, 4")
    E(f"s_add_u32 s{S_T2}, s{S_T2}, s{S_T1}")
    E(f"s_and_b32 s{S_T3}, s{S_WAVE}, 1")
    E(f"s_lshl_b32 s{S_D}, s{S_T3}, 5")
    E(f"s_add_u32 s{S_D}, s{S_D}, s{S_T2}")
    E(f"s_lshl_b32 s{S_D}, s{S_D}, 10")
    E(f"s_mul_i32 s{S_T0}, s{S_T3}, 144")
    E(f"s_add_u32 s{S_T0}, s{S_T0}, s{S_T2}")
    E(f"s_add_u32 s{S_T0}, s{S_T0}, 112")
    E(f"s_lshl_b32 s{S_T0}, s{S_T0}, 10")
    E(f"s_add_u32 s{S_XB}, s{S_XB}, s{S_T0}")
    E(f"s_lshl_b32 s{S_T3}, s{S_T3}, 15")
    E(f"s_lshl_b32 s{S_T1}, s{S_T1}, 14")
    E(f"s_add_u32 s{S_T3}, s{S_T3}, s{S_T1}")
    E(f"v_add_u32 v4, s{S_T3}, v12")
    out_addr()
    E("s_waitcnt vmcnt(0)")
    E("v_sub_f32 v15, 1.0, v14")
    for i in range(16):
        E(f"v_mul_f32 v{64+i}, v15, v{64+i}")
    E(f"s_cmp_lg_u32 s{S_WAVE}, 0")
    E("s_cbranch_scc1 F_wait3")
    E("v_lshlrev_b32 v10, 6, v0")
    E(f"s_lshl_b32 s{S_T0}, s{S_A}, 12")
    E(f"s_add_u32 s{S_T0}, s{S_T0}, {WS_FO:#x}")
    poll("F_pollo", 10, f"s{S_T0}")
    E.label("F_wait3")
    E(f"s_setprio 3")
    E("s_waitcnt lgkmcnt(0)")
    E("s_barrier")
    stamp(7)
    for i in range(8):
        E(f"s_add_u32 m0, s{S_D}, {i * 2048}")
        E(f"s_add_u32 s{S_T0}, s{S_XB}, {i * 2048}")
        E(f"buffer_load_dwordx4 v12, {sr(WS)}, s{S_T0} offen sc1 lds")
    for half in (0, 1):
        E(f"s_waitcnt vmcnt({4 - 4 * half})")
        E("s_barrier")
        for k in range(4):
            E(f"ds_read_b128 {vr(32 + 4*k, 4)}, v4 offset:{(8 * half + k) * 1024}")
        for k in range(8):
            E(f"s_waitcnt lgkmcnt({min(3, 7 - k)})")
            E(f"v_mfma_f32_32x32x16_bf16 v[16:31], {vr(wf(8*half + k), 4)}, {vr(32 + 4*(k % 4), 4)}, {'0' if half + k == 0 else 'v[16:31]'}")
            if k < 4:
                E(f"ds_read_b128 {vr(32 + 4*k, 4)}, v4 offset:{(8 * half + 4 + k) * 1024}")
    stamp(8)
    E("s_nop 11")
    for i in range(16):
        E(f"v_fmac_f32 v{64+i}, v14, v{16+i}")
    E(f"s_cmp_ge_u32 s{S_WAVE}, 4")
    E("s_cbranch_scc1 F_hi")
    E("ds_write_b128 v6, v[72:75]")
    E("ds_write_b128 v6, v[76:79] offset:1024")
    E("s_branch F_x")
    E.label("F_hi")
    E("ds_write_b128 v6, v[64:67]")
    E("ds_write_b128 v6, v[68:71] offset:1024")
    E("s_nop 1")
    for i in range(8):
        E(f"v_mov_b32 v{64+i}, v{72+i}")
    E.label("F_x")
    E("s_waitcnt lgkmcnt(0)")
    E("s_barrier")
    E("ds_read_b128 v[80:83], v7")
    E("ds_read_b128 v[84:87], v7 offset:1024")
    E("s_waitcnt lgkmcnt(0)")
    for i in range(8):
        E(f"v_add_f32 v{64+i}, v{64+i}, v{80+i}")
    for i in range(4):
        E(f"v_cvt_pk_bf16_f32 v{16+i}, v{64+2*i}, v{65+2*i}")
    E("s_nop 1")
    E("v_permlane32_swap_b32 v16, v18")
    E("v_permlane32_swap_b32 v17, v19")
    E(f"buffer_store_dwordx4 v[16:19], v8, {sr(OUT)}, s{S_XK} offen")
    stamp(9)
    flush_stamps(range(13), "F_st")
    E("s_endpgm")

    E.label("F_gate")
    if O.a_exit:
        E("s_endpgm")
    E(f"s_cmp_lg_u32 s{S_WAVE}, 0")
    E("s_cbranch_scc1 F_gate1")
    wait_start("F_tag3")
    E.label("F_gate1")
    E("s_setprio 3")
    E("s_barrier")
    E(f"s_and_b32 s{S_A}, s2, 7")
    E(f"s_lshl_b32 s{S_A}, s{S_A}, 2")
    E(f"s_add_u32 s{S_A}, s{S_A}, s{S_C}")
    E(f"s_sub_u32 s{S_A}, s{S_A}, 28")
    E(f"s_lshl_b32 s{S_T0}, s{S_A}, 16")
    E("v_and_b32 v10, 7, v0")
    E("v_lshlrev_b32 v10, 4, v10")
    E("v_lshl_add_u32 v11, v9, 10, v10")
    for i in range(8):
        E(f"buffer_load_dwordx4 {vr(16+4*i,4)}, v11, {sr(X)}, s{S_T0} offen offset:{128*i}")
    for i in range(8):
        E(f"buffer_load_dwordx4 {vr(48+4*i,4)}, v10, {sr(GW)}, 0 offen offset:{128*i}")
    E("v_mov_b32 v12, 0")
    E("v_mov_b32 v13, 0")
    E("s_waitcnt vmcnt(0)")
    for i in range(32):
        E(f"v_dot2_f32_bf16 v{12 + (i & 1)}, v{16+i}, v{48+i}, v{12 + (i & 1)}")
        if i % 2 == 1:
            E("s_nop 0")
    E("s_nop 2")
    E("v_add_f32 v12, v12, v13")
    for ctl in ("quad_perm:[1,0,3,2]", "quad_perm:[2,3,0,1]", "row_half_mirror"):
        E("s_nop 1")
        E(f"v_add_f32_dpp v12, v12, v12 {ctl} row_mask:0xf bank_mask:0xf")
    E(f"v_mul_f32 v12, {NLOG2E:#x}, v12")
    E("v_exp_f32 v12, v12")
    E("s_nop 0")
    E("v_add_f32 v12, 1.0, v12")
    E("v_rcp_f32 v12, v12")
    E("v_lshlrev_b32 v11, 2, v9")
    E(f"s_lshl_b32 s{S_T0}, s{S_A}, 8")
    E(f"s_add_u32 s{S_T0}, s{S_T0}, {WS_G:#x}")
    E("v_cmp_eq_u32 vcc, 0, v10")
    E("s_nop 4")
    E("s_mov_b64 exec, vcc")
    E(f"buffer_store_dword v12, v11, {sr(WS)}, s{S_T0} offen sc0 sc1")
    E("s_mov_b64 exec, -1")
    if O.f_wd:
        E(f"s_and_b32 s{S_T0}, s{S_C}, 3")
        E(f"s_lshl_b32 s{S_T0}, s{S_T0}, 17")
        E(f"s_add_u32 s{S_T1}, s{S_T0}, 0x10000")
        E("v_lshlrev_b32 v11, 7, v0")
        E(f"buffer_load_dword v15, v11, {sr(WO)}, s{S_T0} offen")
        E(f"buffer_load_dword v15, v11, {sr(WO)}, s{S_T1} offen")
    if O.wo_early:
        voff_w()
        wo_stage()
    for i in (1, 2, 3, 10, 11, 12):
        stamp(i)
    E(f"s_lshr_b32 s{S_T0}, s{S_A}, 1")
    E(f"s_lshl_b32 s{S_T0}, s{S_T0}, 10")
    E(f"s_and_b32 s{S_T1}, s{S_A}, 1")
    E(f"s_lshl_b32 s{S_T1}, s{S_T1}, 6")
    E(f"s_add_u32 s{S_T0}, s{S_T0}, s{S_T1}")
    E(f"s_add_u32 s{S_T0}, s{S_T0}, {14 * 64}")
    E("s_branch F_pub")


def out_addr():
    E("v_lshlrev_b32 v8, 10, v8")
    E("v_bfe_u32 v9, v0, 5, 1")
    E("v_lshl_add_u32 v8, v9, 4, v8")
    E("v_bfe_u32 v9, v0, 7, 1")
    E("v_lshl_add_u32 v8, v9, 6, v8")
    E("v_lshrrev_b32 v9, 8, v0")
    E("v_lshl_add_u32 v8, v9, 5, v8")
    E(f"s_lshl_b32 s{S_XK}, s{S_A}, 16")
    E(f"s_lshl_b32 s{S_T1}, s{S_B}, 7")
    E(f"s_add_u32 s{S_XK}, s{S_XK}, s{S_T1}")
    E(f"s_lshl_b32 s{S_T1}, s{S_WAVE}, 11")
    E(f"s_add_u32 s{S_T1}, s{S_T1}, 65536")
    E(f"s_xor_b32 s{S_T2}, s{S_T1}, 8192")
    E(f"v_add_u32 v6, s{S_T1}, v12")
    E(f"v_add_u32 v7, s{S_T2}, v12")


def voff_w():
    E("v_bfe_u32 v2, v0, 4, 1")
    E("v_lshlrev_b32 v2, 2, v2")
    E("v_xor_b32 v2, v2, v0")
    E("v_and_b32 v2, 7, v2")
    E("v_lshlrev_b32 v2, 4, v2")
    E("v_lshrrev_b32 v11, 3, v0")
    E("v_lshl_add_u32 v2, v11, 10, v2")
    E(f"s_lshr_b32 s{S_T1}, s{S_C}, 2")
    E(f"s_lshl_b32 s{S_T1}, s{S_T1}, 7")
    E(f"v_add_u32 v2, s{S_T1}, v2")


def wo_stage():
    for i in range(8):
        E(f"s_add_u32 m0, s{S_W1K}, {i * 8192}")
        E(f"s_mov_b32 s{S_T0}, {i * 65536}")
        E(f"buffer_load_dwordx4 v2, {sr(WO)}, s{S_T0} offen lds")


def _m_fix_base():
    E(f"s_mul_i32 s{S_XB}, s{S_A}, {288 * 1024}")
    E(f"s_add_u32 s{S_XB}, s{S_XB}, {WS_HO:#x}")


HEADER = """; Kernarg layout (88 bytes, ptrs only, base s[0:1]):
; @launch grid=(512,1,1) block=(512,1,1) lds=81920
.amdgcn_target "amdgcn-amd-amdhsa--gfx950"
.text
.globl {kn}
.p2align 8
.type {kn},@function
{kn}:
CODE_START:
"""

FOOTER = """CODE_END:
.section .rodata,"a"
.p2align 6
.amdhsa_kernel {kn}
  .amdhsa_next_free_vgpr 128
  .amdhsa_next_free_sgpr 102
  .amdhsa_accum_offset 128
  .amdhsa_group_segment_fixed_size 0
  .amdhsa_kernarg_size 88
  .amdhsa_user_sgpr_count 2
  .amdhsa_user_sgpr_kernarg_segment_ptr 1
  .amdhsa_system_sgpr_workgroup_id_x 1
.end_amdhsa_kernel
"""


def generate():
    E.L = []
    E("s_cmp_ge_u32 s2, 256")
    E("s_cbranch_scc1 F_entry")
    stamp(0)
    if O.only_down:
        E("s_endpgm")
    a_prologue()
    E("s_cbranch_vccnz A_vwave")
    E("s_branch A_qwave")
    E.label("F_entry")
    f_prologue()
    E.label("L_end")
    E("s_endpgm")
    E.label("A_qwave")
    a_qkv(False)
    E("s_branch A_att")
    E.label("A_vwave")
    a_qkv(True)
    E.label("A_att")
    a_attention()
    f_main()
    return HEADER.format(kn=KN) + "\n".join(E.L) + "\n" + FOOTER.format(kn=KN)


if __name__ == "__main__":
    ap = argparse.ArgumentParser()
    ap.add_argument("-o", default="k.s")
    ap.add_argument("--set", action="append", default=[])
    a = ap.parse_args()
    for kv in a.set:
        k, v = kv.split("=")
        assert hasattr(O, k), k
        setattr(O, k, type(getattr(O, k))(int(v)))
    s = generate()
    open(a.o, "w").write(s)
    sys.path.insert(0, "cdna_kernels")
    from cdna_launch import with_harness_metadata, address_register_problem
    h = a.o[:-2] + ".harness.s"
    co = a.o[:-2] + ".co"
    open(h, "w").write(with_harness_metadata(s, KN, 11, launch_lists=True))
    r = subprocess.run(["clang", "-x", "assembler", "-target", "amdgcn-amd-amdhsa", "-mcpu=gfx950", h, "-o", co],
                       capture_output=True, text=True)
    if r.returncode:
        print(r.stderr[:4000]); sys.exit(1)
    p = address_register_problem(co, KN)
    print("check:", p)
    r = subprocess.run(f"llvm-nm {co} | grep -E 'CODE_|A_qwave|A_vwave|A_att|A_loop|A_fin|A_slow|F_entry|F_main|F_pub|F_dloop|F_gate$' | sort", shell=True, capture_output=True, text=True)
    print(r.stdout)
```

```python
import sys, subprocess, argparse

NAME = "gated_mix__softmax_full_mha__swiglu_ffn__prompt"
KN = NAME + "_kernel"

WS_KV, WS_Q, WS_HO = 0, 0x400000, 0x600000
WS_NRM, WS_G = 0xF10000, 0xF04000
WS_FKV, WS_FH, WS_FO, WS_FS = 0xF08000, 0xF0C000, 0xF20000, 0xF07000
WS_STAMP = 0x1000000
WS_SIZE = 0x1100000
QSCALE = 0x3EB8AA3B
NLOG2E = 0xBFB8AA3B
THR2 = 0x45548000


class Opt:
    stamps = False
    hint_step = 17
    f_fill_early = False
    force_slow = False
    prio_a_qkv = 3
    prio_a_att = 2
    prio_f = 0
    prio_f_late = 0
    zrows = 1
    toggle = 0
    touch_gu = 0
    touch = 0
    warm_steps = 0
    f_rot = 1
    a_exit = 0
    kv_rot = 0
    ga = 3
    gb = 5
    gc = 5
    kv_first = 2
    wd_t0 = 3
    wo_t = 1
    f_touch = 0
    f_touch2 = 99
    bal = 4
    pace_from = 99
    prio_up = -1
    prio_dn = -1
    boost_mask = 0
    prio_boost = 1
    hint1 = -1
    f_wd = 1
    pair = 1
    dn_stamps = 0
    wo_early = 1
    scramble = 0
    dbg_out = 0
    only_down = 0
    d_rot = 0
    h_touch = 1
    att_iters = 8
    prio_silu = 3
    gate_late = 1
    h_sc1 = 1
    no_f = 0
    late_iter = 99


O = Opt()


class Asm:
    def __init__(self):
        self.L = []

    def __call__(self, s):
        for x in s.strip("\n").split("\n"):
            self.L.append("    " + x.strip())

    def label(self, l):
        self.L.append(l + ":")

    def raw(self, s):
        self.L.append(s)


E = Asm()


def vr(a, n):
    return f"v[{a}:{a+n-1}]"


def srd(base, size):
    E(f"s_mov_b32 s{base+2}, {size:#x}")
    E(f"s_mov_b32 s{base+3}, 0x20000")


S_WAVE = 3
X, W1, WU, WS, DBG, WD, WO, OUT, GW = 12, 16, 20, 24, 28, 32, 36, 40, 44
def sr(b): return f"s[{b}:{b+3}]"
S_TAG = 48
S_W1K = 49
S_T0, S_T1, S_T2, S_T3 = 50, 51, 52, 53
S_XK, S_XB, S_WK, S_WB = 54, 55, 56, 57
S_CNT = 58
S_A, S_B, S_C, S_D = 59, 60, 61, 62
S_SLOT = 63
S_VM = 64
S_SPIN = 66
S_STAMP = 70


def stamp(i):
    if O.stamps:
        E(f"s_memrealtime s[{S_STAMP+2*i}:{S_STAMP+2*i+1}]")
        E(f"s_memtime s[68:69]")
        E("s_waitcnt lgkmcnt(0)")
        E(f"s_mov_b32 s{S_STAMP+2*i+1}, s68")


def cstamp(i):
    if O.stamps:
        E(f"s_memtime s[{S_STAMP+2*i}:{S_STAMP+2*i+1}]")
        E("s_waitcnt lgkmcnt(0)")


def flush_stamps(idx, lab):
    if not O.stamps:
        return
    E(f"s_cmp_lg_u32 s{S_WAVE}, 0")
    E(f"s_cbranch_scc1 {lab}")
    E(f"s_lshl_b32 s{S_T0}, s2, 7")
    E(f"s_add_u32 s{S_T0}, s{S_T0}, {WS_STAMP:#x}")
    E("s_mov_b64 exec, 1")
    E("v_mov_b32 v1, 0")
    for i in idx:
        E(f"v_mov_b32 v2, s{S_STAMP+2*i}")
        E(f"buffer_store_dword v2, v1, {sr(WS)}, s{S_T0} offen offset:{4*i}")
        E(f"v_mov_b32 v3, s{S_STAMP+2*i+1}")
        E(f"buffer_store_dword v3, v1, {sr(WS)}, s{S_T0} offen offset:{64+4*i}")
    if O.dbg_out:
        E(f"s_and_b32 s{S_T0}, s2, 255")
        E(f"s_cmp_lg_u32 s{S_T0}, 77")
        E(f"s_cbranch_scc1 {lab}_d")
        sel, base = ((0, 1, 2, 5, 6, 7), 1) if lab.startswith("A") else ((1, 2, 3, 5, 6, 7, 9), 9)
        for n, i in enumerate(sel):
            E(f"v_mov_b32 v2, s{S_STAMP+2*i}")
            if n:
                E(f"v_subrev_u32 v2, s{S_STAMP}, v2")
            E(f"buffer_store_dword v2, v1, {sr(DBG)}, 0 offen offset:{4*(base+n)}")
        if lab.startswith("A"):
            E(f"s_sub_u32 s{S_T0}, s{S_STAMP+13}, s{S_STAMP+11}")
            E(f"v_mov_b32 v2, s{S_T0}")
            E(f"buffer_store_dword v2, v1, {sr(DBG)}, 0 offen offset:28")
        E.label(lab + "_d")
    E("s_waitcnt vmcnt(0)")
    E.label(lab)


class VM:
    def __init__(self):
        self.q = []

    def issue(self, tag, n=1):
        self.q += [tag] * n

    def need(self, *tags):
        last = -1
        for i, t in enumerate(self.q):
            if t in tags:
                last = i
        for t in tags:
            assert t in self.q, t
        return len(self.q) - 1 - last


def poll(lab, voff_reg, soff, nlanes_desc=""):
    E(f"s_mov_b32 s{S_SPIN}, 0x40000")
    E.label(lab)
    E(f"buffer_load_dword v11, v{voff_reg}, {sr(WS)}, {soff} offen sc1")
    E("s_waitcnt vmcnt(0)")
    E(f"v_cmp_ne_u32 vcc, s{S_TAG}, v11")
    E("s_nop 4")
    E("s_cmp_eq_u64 vcc, 0")
    E(f"s_cbranch_scc1 {lab}_ok")
    E("s_sleep 2")
    E(f"s_sub_u32 s{S_SPIN}, s{S_SPIN}, 1")
    E(f"s_cmp_lg_u32 s{S_SPIN}, 0")
    E(f"s_cbranch_scc1 {lab}")
    E.label(lab + "_ok")


def get_tag(lab, sleep=4):
    E(f"s_mov_b32 s{S_SPIN}, 0x40000")
    E("v_mov_b32 v10, 0")
    E.label(lab)
    E(f"buffer_load_dword v11, v10, {sr(DBG)}, 0 offen sc1")
    E("s_waitcnt vmcnt(0)")
    E(f"v_readfirstlane_b32 s{S_TAG}, v11")
    E("s_nop 3")
    E(f"s_cmp_lg_u32 s{S_TAG}, 0")
    E(f"s_cbranch_scc1 {lab}_ok")
    E(f"s_sleep {sleep}")
    E(f"s_sub_u32 s{S_SPIN}, s{S_SPIN}, 1")
    E(f"s_cmp_lg_u32 s{S_SPIN}, 0")
    E(f"s_cbranch_scc1 {lab}")
    E.label(lab + "_ok")


def put_flag(soff_sgpr):
    E("s_mov_b64 exec, 1")
    E("v_mov_b32 v10, 0")
    E(f"v_mov_b32 v11, s{S_TAG}")
    E(f"buffer_store_dword v11, v10, {sr(WS)}, s{soff_sgpr} offen sc0 sc1")
    E("s_mov_b64 exec, -1")


def wg_store(lab, cond, val_lines, off):
    cond()
    E(f"s_cbranch_scc1 {lab}")
    val_lines()
    E("s_mov_b64 exec, 1")
    E(f"v_mov_b32 v10, {off}")
    E(f"v_mov_b32 v11, s{S_T0}")
    E(f"buffer_store_dword v11, v10, {sr(DBG)}, 0 offen sc0 sc1")
    E("s_mov_b64 exec, -1")
    E.label(lab)


def hint(lab="A_nohint", word=0, early=None):
    E(f"s_lshr_b32 s{S_T0}, s2, 3")
    E(f"s_or_b32 s{S_T0}, s{S_T0}, s{S_WAVE}")
    E(f"s_cbranch_scc1 {lab}")
    if (O.hint_step if early is None else early) < 16:
        E(f"v_readfirstlane_b32 s{S_TAG}, v14")
        E("s_nop 3")
        E(f"s_cmp_lg_u32 s{S_TAG}, 0")
        E(f"s_cbranch_scc1 {lab}_t_ok")
        get_tag(lab + "_t")
    E(f"s_lshl_b32 s{S_T1}, s2, 7")
    E(f"s_add_u32 s{S_T1}, s{S_T1}, {WS_FS + 1024 * word:#x}")
    put_flag(S_T1)
    E.label(lab)


def wait_start(lab, word=0, tag=True):
    if tag:
        get_tag(lab + "_t", 16)
    E("v_mov_b32 v10, 0")
    E(f"s_and_b32 s{S_T0}, s2, 7")
    E(f"s_lshl_b32 s{S_T0}, s{S_T0}, 7")
    E(f"s_add_u32 s{S_T0}, s{S_T0}, {WS_FS + 1024 * word:#x}")
    poll(lab, 10, f"s{S_T0}")


def dpp_max(regs):
    for ctl in ("row_shr:1", "row_shr:2", "row_shr:4", "row_shr:8",
                "row_bcast:15 row_mask:0xa", "row_bcast:31 row_mask:0xc"):
        E("s_nop 1")
        for r in regs:
            m = "" if "row_mask" in ctl else " row_mask:0xf"
            E(f"v_max_f32_dpp v{r}, v{r}, v{r} {ctl}{m} bank_mask:0xf")


A_XS, A_WS0, A_WSZ = 8192, 24576, 12288


def a_dma_x(u, vm):
    E(f"s_add_u32 m0, s{S_W1K}, {(u % 3) * A_XS}")
    E(f"s_add_u32 s{S_T0}, s{S_XB}, s{S_XK}")
    E(f"buffer_load_dwordx4 v1, {sr(X)}, s{S_T0} offen lds")
    E(f"s_add_u32 s{S_XK}, s{S_XK}, 128")
    E(f"s_and_b32 s{S_XK}, s{S_XK}, 1023")
    vm.issue(("x", u))


def a_dma_w(s, vm, vwave):
    base = A_WS0 + (s % 4) * A_WSZ
    E(f"s_add_u32 m0, s{S_W1K}, {base}")
    E(f"s_add_u32 s{S_T0}, s{S_WB}, s{S_WK}")
    E(f"buffer_load_dwordx4 v2, {sr(W1)}, s{S_T0} offen lds")
    vm.issue(("w", s))
    if vwave == "both":
        E(f"s_cbranch_vccz A_pw{s}")
        E(f"s_add_u32 m0, s{S_W1K}, {base + 3072}")
        E("s_nop 0")
        E(f"buffer_load_dwordx4 v2, {sr(W1)}, s{S_T0} offen offset:1024 lds")
        E.label(f"A_pw{s}")
    elif vwave:
        E(f"s_add_u32 m0, s{S_W1K}, {base + 3072}")
        E("s_nop 0")
        E(f"buffer_load_dwordx4 v2, {sr(W1)}, s{S_T0} offen offset:1024 lds")
        vm.issue(("w", s))
    E(f"s_add_u32 s{S_WK}, s{S_WK}, 98304")
    E(f"s_cmp_eq_u32 s{S_WK}, {16 * 98304}")
    E(f"s_cselect_b32 s{S_WK}, 0, s{S_WK}")


def a_prologue():
    E(f"s_load_dwordx2 s[{X}:{X+1}], s[0:1], 0")
    E(f"s_load_dwordx2 s[{W1}:{W1+1}], s[0:1], 8")
    E(f"s_load_dwordx2 s[{WS}:{WS+1}], s[0:1], 80")
    E(f"s_load_dwordx2 s[{DBG}:{DBG+1}], s[0:1], 72")
    E("v_lshrrev_b32 v8, 6, v0")
    E("v_lshrrev_b32 v9, 3, v0")
    E("v_lshrrev_b32 v10, 4, v0")
    E(f"v_readfirstlane_b32 s{S_WAVE}, v8")
    E("v_xor_b32 v11, v10, v0")
    E("v_and_b32 v11, 7, v11")
    E("v_lshlrev_b32 v11, 4, v11")
    E("v_lshl_add_u32 v1, v9, 10, v11")
    srd(X, 0x200000)
    srd(W1, 0x180000)
    E(f"s_lshr_b32 s{S_T0}, s2, 3")
    E(f"s_and_b32 s{S_T1}, s{S_T0}, 7")
    E(f"s_lshr_b32 s{S_T0}, s{S_T0}, 3")
    E(f"s_and_b32 s{S_A}, s2, 3")
    E(f"s_lshl_b32 s{S_A}, s{S_A}, 3")
    E(f"s_add_u32 s{S_A}, s{S_A}, s{S_T1}")
    E(f"s_and_b32 s{S_B}, s2, 4")
    E(f"s_add_u32 s{S_B}, s{S_B}, s{S_T0}")
    E(f"s_lshl_b32 s{S_T0}, s{S_T0}, 1")
    E(f"s_add_u32 s{S_T0}, s{S_T0}, s{S_T1}")
    E(f"s_and_b32 s{S_T0}, s{S_T0}, 7")
    E(f"s_lshl_b32 s{S_XK}, s{S_T0}, 7")
    E(f"s_mul_i32 s{S_WK}, s{S_T0}, {2 * 98304}")
    E(f"s_lshl_b32 s{S_XB}, s{S_A}, 16")
    E(f"s_lshl_b32 s{S_WB}, s{S_B}, 7")
    E(f"s_lshl_b32 s{S_W1K}, s{S_WAVE}, 10")
    E("v_and_b32 v9, 31, v9")
    E("v_mul_u32_u24 v9, 0xc00, v9")
    E("v_and_b32 v10, 1, v10")
    E("v_lshlrev_b32 v10, 2, v10")
    E("v_xor_b32 v10, v10, v0")
    E("v_and_b32 v10, 7, v10")
    E("v_lshl_add_u32 v9, v10, 4, v9")
    E("v_lshrrev_b32 v10, 8, v0")
    E("v_lshl_add_u32 v2, v10, 10, v9")
    E("v_cmp_eq_u32 vcc, 1, v10")
    E(f"s_setprio {O.prio_a_qkv}")
    E("s_waitcnt lgkmcnt(0)")
    vm = VM()
    a_dma_x(0, vm)
    a_dma_w(0, vm, "both")
    a_dma_w(1, vm, "both")
    a_dma_x(1, vm)
    a_dma_w(2, vm, "both")
    a_dma_w(3, vm, "both")
    a_dma_x(2, vm)
    srd(WS, WS_SIZE)
    srd(DBG, 256)


def a_qkv(vwave):
    p = "AV" if vwave else "AQ"
    if O.touch:
        E(f"s_load_dwordx2 s[{WU}:{WU+1}], s[0:1], {40 if vwave else 32}")
        E(f"s_load_dwordx2 s[{WD}:{WD+1}], s[0:1], 48")
        E(f"s_load_dwordx2 s[{WO}:{WO+1}], s[0:1], 16")
        srd(WU, 512 * 3584); srd(WD, 1792 * 1024); srd(WO, 512 * 1024)
    vm = VM()
    n = 2 if vwave else 1
    for t in (("x", 0), ("w", 0), ("w", 1), ("x", 1), ("w", 2), ("w", 3), ("x", 2)):
        vm.issue(t, n if t[0] == "w" else 1)
    E("v_and_b32 v8, 31, v0")
    if vwave:
        E("v_and_b32 v9, 0x13, v8")
        E("v_lshlrev_b32 v10, 1, v8")
        E("v_and_b32 v10, 8, v10")
        E("v_or_b32 v9, v9, v10")
        E("v_lshrrev_b32 v10, 1, v8")
        E("v_and_b32 v10, 4, v10")
        E("v_or_b32 v8, v9, v10")
    E("v_lshrrev_b32 v9, 1, v8")
    E("v_and_b32 v9, 7, v9")
    E("v_bfe_u32 v10, v0, 5, 1")
    E("v_xor_b32 v9, v9, v10")
    E("v_lshlrev_b32 v9, 4, v9")
    E("v_lshl_add_u32 v9, v8, 7, v9")
    E("v_bfe_u32 v8, v0, 6, 1")
    E("v_lshl_add_u32 v3, v8, 12, v9")
    for ks in (1, 2, 3):
        E(f"v_xor_b32 v{3+ks}, {32*ks}, v3")
    E("v_bfe_u32 v8, v0, 2, 2")
    E("v_lshl_add_u32 v9, v10, 3, v8")
    E("v_lshlrev_b32 v9, 7, v9")
    E("v_bfe_u32 v10, v0, 7, 1")
    E("v_lshrrev_b32 v8, 1, v8")
    E("v_xor_b32 v8, v8, v10")
    E("v_lshl_add_u32 v9, v8, 6, v9")
    E("v_bfe_u32 v8, v0, 4, 1")
    E("v_lshl_add_u32 v9, v8, 5, v9")
    E("v_and_b32 v8, 3, v0")
    E("v_lshl_add_u32 v9, v8, 3, v9")
    E(f"v_add_u32 v7, {A_WS0}, v9")
    segs = (2,) if vwave else (0, 1)
    if O.touch_gu:
        E(f"s_lshr_b32 s{S_T0}, s2, 3")
        E(f"s_lshl_b32 s{S_T0}, s{S_T0}, 2")
        E(f"s_and_b32 s{S_T1}, s{S_WAVE}, 3")
        E(f"s_add_u32 s{S_T0}, s{S_T0}, s{S_T1}")
        E(f"s_mul_i32 s{S_T0}, s{S_T0}, {2 * 3584}")
        E(f"s_bfe_u32 s{S_T1}, s2, 0x10002")
        E(f"s_mul_i32 s{S_T1}, s{S_T1}, 1792")
        E(f"s_add_u32 s{S_T0}, s{S_T0}, s{S_T1}")
        E("v_bfe_u32 v8, v0, 4, 1")
        E("v_mul_u32_u24 v8, 3584, v8")
        E("v_and_b32 v9, 15, v0")
        E("v_lshl_add_u32 v8, v9, 7, v8")
        E(f"v_add_u32 v98, s{S_T0}, v8")

    def reads(s):
        b = 16 + 24 * (s & 1)
        L = []
        for kk in (0, 1):
            L.append(f"ds_read_b128 {vr(b+4*kk,4)}, v{3 + 2*(s&1) + kk} offset:{((s//2) % 3) * A_XS}")
            for si, sg in enumerate(segs):
                for q in (0, 1):
                    off = (s % 4) * A_WSZ + sg * 4096 + kk * 2048 + q * 512
                    L.append(f"ds_read_b64_tr_b16 {vr(b+8+8*si+4*kk+2*q,2)}, v7 offset:{off}")
        return L

    def mfmas(s):
        b = 16 + 24 * (s & 1)
        L = []
        for kk in (0, 1):
            for si, sg in enumerate(segs):
                acc = vr(64 + 16 * si, 16)
                c = "0" if (s == 0 and kk == 0) else acc
                xf, wf = vr(b + 4*kk, 4), vr(b + 8 + 8*si + 4*kk, 4)
                if vwave:
                    L.append(f"v_mfma_f32_32x32x16_bf16 {acc}, {xf}, {wf}, {c}")
                else:
                    L.append(f"v_mfma_f32_32x32x16_bf16 {acc}, {wf}, {xf}, {c}")
        return L

    if not vwave:
        def tagval():
            E(f"s_memrealtime s[{S_T0}:{S_T1}]")
            E("s_waitcnt lgkmcnt(0)")
            E(f"s_or_b32 s{S_T0}, s{S_T0}, 1")
        wg_store("A_notag", lambda: E(f"s_or_b32 s{S_T0}, s2, s{S_WAVE}"), tagval, "0")
    E(f"s_waitcnt vmcnt({vm.need(('x',0),('w',0))}) lgkmcnt(0)")
    E("s_barrier")
    stamp(1)
    for x in reads(0):
        E(x)
    for s in range(16):
        M = mfmas(s)
        if s < 15:
            E(f"s_waitcnt vmcnt({vm.need(('x',(s+1)//2),('w',s+1))}) lgkmcnt(0)")
            E("s_barrier")
            E(M.pop(0))
            R = reads(s + 1)
            per = 3
            while R or M:
                for x in R[:per]:
                    E(x)
                R = R[per:]
                if M:
                    E(M.pop(0))
            if s + 4 <= 15:
                a_dma_w(s + 4, vm, vwave)
            if s % 2 == 1 and (s + 1) // 2 + 2 <= 7:
                a_dma_x((s + 1) // 2 + 2, vm)
            if s == 1 and not vwave:
                E("v_mov_b32 v10, 0")
                E(f"buffer_load_dword v14, v10, {sr(DBG)}, 0 offen sc1")
                vm.issue("tag")
            if s == 12 and O.touch_gu:
                E("s_mov_b32 exec_hi, 0")
                E(f"buffer_load_dword v15, v98, {sr(WU)}, 0 offen")
                E("s_mov_b32 exec_hi, -1")
                vm.issue("t")
        else:
            E("s_waitcnt lgkmcnt(0)")
            for x in M:
                E(x)
        if s == O.hint_step and not vwave:
            hint()
        if s == O.hint1 and not vwave:
            hint("A_nohint1", 1, O.hint1)
        if s == O.hint_step and O.a_exit:
            E("s_endpgm")
    stamp(2)
    E(f"s_and_b32 s{S_T0}, s{S_WAVE}, 1")
    E(f"s_lshl_b32 s{S_T1}, s{S_A}, 1")
    E(f"s_add_u32 s{S_T0}, s{S_T0}, s{S_T1}")
    E(f"s_bfe_u32 s{S_T1}, s{S_WAVE}, 0x10001")
    E(f"s_lshl_b32 s{S_T2}, s{S_B}, 1")
    E(f"s_add_u32 s{S_T1}, s{S_T1}, s{S_T2}")
    E("v_and_b32 v8, 63, v0")
    if vwave:
        E("v_and_b32 v9, 15, v8")
        E("v_lshlrev_b32 v9, 4, v9")
        E("v_bfe_u32 v10, v8, 5, 1")
        E("v_lshl_add_u32 v9, v10, 8, v9")
        E("v_bfe_u32 v10, v8, 4, 1")
        E("v_lshl_add_u32 v9, v10, 17, v9")
        E(f"s_lshl_b32 s{S_T1}, s{S_T1}, 18")
        E(f"s_lshl_b32 s{S_T0}, s{S_T0}, 11")
        E(f"s_add_u32 s{S_T0}, s{S_T0}, s{S_T1}")
        E("s_nop 7")
        for i in range(8):
            E(f"v_cvt_pk_bf16_f32 v{16+i}, v{64+2*i}, v{65+2*i}")
        E(f"buffer_store_dwordx4 v[16:19], v9, {sr(WS)}, s{S_T0} offen offset:1024 sc0 sc1")
        E(f"buffer_store_dwordx4 v[20:23], v9, {sr(WS)}, s{S_T0} offen offset:1536 sc0 sc1")
    else:
        E("v_lshlrev_b32 v9, 4, v8")
        E(f"s_lshl_b32 s{S_T2}, s{S_T1}, 18")
        E(f"s_lshl_b32 s{S_T3}, s{S_T0}, 11")
        E(f"s_add_u32 s{S_T2}, s{S_T2}, s{S_T3}")
        E(f"s_lshr_b32 s{S_T3}, s{S_T2}, 1")
        E(f"s_add_u32 s{S_T3}, s{S_T3}, {WS_Q:#x}")
        E(f"s_add_u32 s{S_C}, s{S_T2}, 0x20000")
        E(f"s_add_u32 s{S_D}, s{S_T3}, 0x10000")
        E(f"s_mov_b32 s{S_CNT}, {QSCALE:#x}")
        E("s_nop 7")
        for i in range(8):
            E(f"v_cvt_pk_bf16_f32 v{16+i}, v{80+2*i}, v{81+2*i}")
        E(f"buffer_store_dwordx4 v[16:19], v9, {sr(WS)}, s{S_T2} offen sc0 sc1")
        E(f"buffer_store_dwordx4 v[20:23], v9, {sr(WS)}, s{S_C} offen sc0 sc1")
        for i in range(16):
            E(f"v_mul_f32 v{64+i}, s{S_CNT}, v{64+i}")
        for i in range(8):
            E(f"v_cvt_pk_bf16_f32 v{24+i}, v{64+2*i}, v{65+2*i}")
        E(f"buffer_store_dwordx4 v[24:27], v9, {sr(WS)}, s{S_T3} offen sc0 sc1")
        E(f"buffer_store_dwordx4 v[28:31], v9, {sr(WS)}, s{S_D} offen sc0 sc1")
        for g in range(4):
            E(f"v_mul_f32 v{32+g}, v{64+8*g}, v{64+8*g}")
        for i in range(1, 8):
            for g in range(4):
                E(f"v_fmac_f32 v{32+g}, v{64+8*g+i}, v{64+8*g+i}")
        E("s_nop 1")
        E("v_permlane32_swap_b32 v32, v33")
        E("v_permlane32_swap_b32 v34, v35")
        E("s_nop 1")
        E("v_add_f32 v32, v32, v33")
        E("v_add_f32 v33, v34, v35")
        dpp_max((32, 33))
        E(f"s_lshl_b32 s{S_T1}, s{S_T1}, 12")
        E(f"s_lshl_b32 s{S_T0}, s{S_T0}, 6")
        E(f"s_add_u32 s{S_T0}, s{S_T0}, s{S_T1}")
        E(f"s_add_u32 s{S_T0}, s{S_T0}, {WS_NRM:#x}")
        E("v_mov_b32 v10, 0")
        E("s_brev_b64 exec, 1")
        E(f"buffer_store_dwordx2 v[32:33], v10, {sr(WS)}, s{S_T0} offen sc0 sc1")
        E("s_mov_b64 exec, -1")


S0, S1, OA, OB, QX, QY, K0, K1, V0, V1 = 16, 32, 48, 64, 80, 84, 88, 92, 96, 104
IDX, VK, VV, VD, VKB, VVB, VT, VL = 112, 113, 114, 115, 116, 117, 118, 119
KVS = 16384


def a_kv_dma():
    E(f"s_add_u32 m0, s{S_XK}, s{S_W1K}")
    E(f"s_add_u32 s{S_T0}, s{S_WB}, s{S_WK}")
    E(f"buffer_load_dwordx4 v{VD}, {sr(WS)}, s{S_T0} offen sc1 lds")
    E(f"buffer_load_dwordx4 v{VD}, {sr(WS)}, s{S_T0} offen offset:1024 sc1 lds")
    E(f"s_add_u32 s{S_WK}, s{S_WK}, {KVS}")
    E(f"s_and_b32 s{S_WK}, s{S_WK}, {8*KVS-1:#x}")
    E(f"s_add_u32 s{S_XK}, s{S_XK}, {KVS}")
    E(f"s_cmp_eq_u32 s{S_XK}, {5*KVS}")
    E(f"s_cselect_b32 s{S_XK}, 0, s{S_XK}")


def a_attention():
    E(f"s_and_b32 s{S_C}, s2, 7")
    E(f"s_lshr_b32 s{S_T0}, s2, 6")
    E(f"s_lshl_b32 s{S_D}, s{S_C}, 2")
    E(f"s_add_u32 s{S_D}, s{S_D}, s{S_T0}")
    E(f"s_lshl_b32 s{S_T0}, s{S_B}, 11")
    E(f"s_lshl_b32 s{S_T1}, s{S_A}, 6")
    E(f"s_add_u32 s{S_T0}, s{S_T0}, s{S_T1}")
    E(f"s_add_u32 s{S_XB}, s{S_T0}, {WS_FKV:#x}")
    E(f"s_bfe_u32 s{S_A}, s2, 0x30003")
    E("v_and_b32 v8, 63, v0")
    E(f"v_lshlrev_b32 v{VL}, 4, v8")
    E(f"s_lshl_b32 s{S_W1K}, s{S_WAVE}, 11")
    E(f"v_add_u32 v{VD}, s{S_W1K}, v{VL}")
    E(f"s_lshl_b32 s{S_WB}, s{S_D}, 17")
    if O.kv_rot:
        E(f"s_lshl_b32 s{S_WK}, s{S_A}, 14")
    else:
        E(f"s_mov_b32 s{S_WK}, 0")
    E(f"s_mov_b32 s{S_XK}, 0")
    E(f"s_lshl_b32 s{S_T1}, s{S_A}, 3")
    E(f"s_and_b32 s{S_T2}, s{S_WAVE}, 3")
    E(f"s_lshl_b32 s{S_T2}, s{S_T2}, 1")
    E(f"s_add_u32 s{S_B}, s{S_T1}, s{S_T2}")
    E(f"s_lshl_b32 s{S_T1}, s{S_B}, 10")
    E(f"s_lshl_b32 s{S_T2}, s{S_D}, 16")
    E(f"s_add_u32 s{S_T1}, s{S_T1}, s{S_T2}")
    E(f"s_add_u32 s4, s{S_T1}, {WS_Q:#x}")
    E(f"s_lshr_b32 s{S_T2}, s{S_D}, 1")
    E(f"s_lshl_b32 s{S_T2}, s{S_T2}, 12")
    E(f"s_add_u32 s5, s{S_T2}, {WS_NRM:#x}")
    E(f"s_lshr_b32 s{S_T0}, s{S_WAVE}, 2")
    E(f"s_lshl_b32 s{S_T0}, s{S_T0}, 11")
    E(f"v_add_u32 v{VKB}, s{S_T0}, v{VL}")
    E("v_and_b32 v9, 15, v8")
    E("v_lshlrev_b32 v9, 4, v9")
    E("v_bfe_u32 v10, v8, 5, 1")
    E("v_lshl_add_u32 v9, v10, 8, v9")
    E(f"s_add_u32 s{S_T0}, s{S_T0}, 1024")
    E(f"v_add_u32 v{VVB}, s{S_T0}, v9")
    E(f"v_mov_b32 v{VK}, v{VKB}")
    E(f"v_mov_b32 v{VV}, v{VVB}")
    E(f"v_mov_b32 v{IDX}, 0xdddddddd")
    E("v_and_b32 v9, 27, v8")
    E("v_cmp_eq_u32 vcc, 16, v9")
    E("v_mov_b32 v9, 0x3f803f80")
    E("s_nop 0")
    E(f"v_cndmask_b32 v{V0}, 0, v9, vcc")
    for i in range(1, 16):
        E(f"v_mov_b32 v{V0+i}, v{V0}")
    if O.touch:
        E(f"s_lshr_b32 s{S_T0}, s2, 3")
        E(f"s_lshl_b32 s{S_T0}, s{S_T0}, 3")
        E(f"s_add_u32 s{S_T0}, s{S_T0}, s{S_WAVE}")
        E(f"s_lshl_b32 s{S_T0}, s{S_T0}, 11")
        E(f"v_lshlrev_b32 v{VT}, 7, v8")
        E(f"v_add_u32 v{VT}, s{S_T0}, v{VT}")
    E(f"s_mov_b32 s{S_VM}, 0xffff")
    E(f"s_mov_b32 s{S_VM+1}, 0xffff")
    E(f"s_mov_b32 s{S_SLOT}, 0")
    E(f"s_mov_b32 s{S_CNT}, 0")
    E("v_lshlrev_b32 v9, 6, v8")
    E("s_waitcnt vmcnt(0)")
    E("s_barrier")
    stamp(3)
    E(f"s_cmp_lg_u32 s{S_WAVE}, 0")
    E("s_cbranch_scc1 A_wait1")
    E(f"v_readfirstlane_b32 s{S_TAG}, v14")
    E("s_nop 3")
    E(f"s_cmp_lg_u32 s{S_TAG}, 0")
    E("s_cbranch_scc1 A_tag_ok")
    get_tag("A_tag")
    put_flag(S_XB)
    if O.hint_step == 16:
        hint()
    E("v_and_b32 v10, 31, v0")
    E("v_lshlrev_b32 v10, 6, v10")
    E(f"s_lshl_b32 s{S_T0}, s{S_C}, 11")
    E(f"s_add_u32 s{S_T0}, s{S_T0}, {WS_FKV:#x}")
    poll("A_pollkv", 10, f"s{S_T0}")
    if O.hint_step == 17:
        hint()
    E.label("A_wait1")
    for i in range(32):
        E(f"v_mov_b32 v{OA+i}, 0")
    for i in range(8, 16):
        E(f"v_mov_b32 v{S1+i}, 0")
    E("v_mov_b32 v10, 0")
    E("s_barrier")
    stamp(4)
    a_kv_dma()
    E(f"buffer_load_dwordx4 {vr(QX,4)}, v{VL}, {sr(WS)}, s4 offen sc1")
    E(f"buffer_load_dwordx4 {vr(QY,4)}, v{VL}, {sr(WS)}, s4 offen offset:1024 sc1")
    E(f"buffer_load_dwordx2 v[12:13], v9, {sr(WS)}, s5 offen sc1")
    E(f"buffer_load_dword v14, v10, {sr(DBG)}, 0 offen sc1")
    for c in range(1, O.kv_first):
        a_kv_dma()
    E(f"s_setprio {O.prio_a_att}")
    E(f"s_waitcnt vmcnt({2*O.kv_first - (4 if O.pair else 2)})")
    E("s_barrier")
    stamp(5)

    def vreads(dst, off):
        E(f"s_mov_b64 exec, s[{S_VM}:{S_VM+1}]")
        E(f"ds_read_b128 {vr(dst,4)}, v{VV} offset:{off}")
        E(f"ds_read_b128 {vr(dst+4,4)}, v{VV} offset:{off+512}")
        E("s_mov_b64 exec, -1")

    E(f"ds_read_b128 {vr(K0,4)}, v{VK}")
    vreads(V0, 0)
    E(f"v_readfirstlane_b32 s{S_TAG}, v14")
    dpp_max((12, 13))
    E("s_nop 0")
    E("v_mul_f32 v12, v12, v13")
    E("s_waitcnt lgkmcnt(0)")
    E(f"v_readlane_b32 s{S_T0}, v12, 63")
    E(f"v_mfma_f32_32x32x16_bf16 {vr(S0,16)}, {vr(K0,4)}, {vr(QX,4)}, 0")
    E("s_nop 3")
    E(f"s_cmp_gt_u32 s{S_T0}, {THR2:#x}")
    if O.force_slow:
        E("s_branch A_slow")
    E("s_cbranch_scc1 A_slow")
    E("s_nop 7")

    def chunk_turn():
        E("s_waitcnt vmcnt(0)")
        E("s_barrier")
        E(f"s_cmp_gt_u32 s{S_CNT}, {7 - O.kv_first}")
        lab = f"A_nf{len(E.L)}"
        E(f"s_cbranch_scc1 {lab}")
        a_kv_dma()
        E.label(lab)
        if O.touch:
            E(f"s_sub_u32 s{S_T0}, s{S_CNT}, {O.wd_t0}")
            E(f"s_lshl_b32 s{S_T0}, s{S_T0}, 19")
            E("s_mov_b64 exec, 0xffff")
            E(f"s_cmp_gt_u32 s{S_T0}, {3 << 19}")
            E(f"s_cbranch_scc1 {lab}t")
            E(f"buffer_load_dword v15, v{VT}, {sr(WD)}, s{S_T0} offen")
            E.label(lab + "t")
            E(f"s_cmp_lg_u32 s{S_CNT}, {O.wo_t}")
            E(f"s_cbranch_scc1 {lab}u")
            E(f"buffer_load_dword v15, v{VT}, {sr(WO)}, 0 offen")
            E.label(lab + "u")
            E("s_mov_b64 exec, -1")
        E(f"s_add_u32 s{S_SLOT}, s{S_SLOT}, {KVS}")
        E(f"s_cmp_eq_u32 s{S_SLOT}, {5*KVS}")
        E(f"s_cselect_b32 s{S_SLOT}, 0, s{S_SLOT}")
        E(f"v_add_u32 v{VK}, s{S_SLOT}, v{VKB}")
        E(f"v_add_u32 v{VV}, s{S_SLOT}, v{VVB}")

    NT = 16 if O.pair else 8

    def next_slot():
        E(f"s_add_u32 s{S_SLOT}, s{S_SLOT}, {KVS}")
        E(f"s_cmp_eq_u32 s{S_SLOT}, {5*KVS}")
        E(f"s_cselect_b32 s{S_SLOT}, 0, s{S_SLOT}")
        E(f"v_add_u32 v{VK}, s{S_SLOT}, v{VKB}")
        E(f"v_add_u32 v{VV}, s{S_SLOT}, v{VVB}")

    def refill(lab, lo, hi):
        if lo == hi:
            E(f"s_cmp_lg_u32 s{S_CNT}, {lo}")
        else:
            E(f"s_cmp_gt_u32 s{S_CNT}, {hi}")
        E(f"s_cbranch_scc1 {lab}")
        a_kv_dma()
        E.label(lab)

    E.raw(".p2align 6")
    E.label("A_loop")
    ga, gb, gc = O.ga, O.ga + O.gb, O.ga + O.gb + O.gc
    for t in range(NT):
        blk, kt = t & 1, (t >> 1) & 3
        Sc, Sn = (S0, S1) if blk == 0 else (S1, S0)
        Oc, On = (OA, OB) if blk == 0 else (OB, OA)
        Vk, Vo = (V0, V1) if kt & 1 == 0 else (V1, V0)
        Kk, Ko = (K0, K1) if kt & 1 == 0 else (K1, K0)
        if not O.pair:
            if t == 6:
                chunk_turn()
        elif t == 6:
            next_slot()
        elif t == 14:
            E("s_waitcnt vmcnt(0)")
            E("s_barrier")
            next_slot()
        ex = lambda a, b: [E(f"v_exp_f32 v{Sc+i}, v{Sc+i}") for i in range(a, b)]
        ph = ((t + 2) % NT) * 8 // NT
        prf = lambda ph: {0: O.prio_a_att, 4: 3 - ph // 2, 2: O.prio_a_att + (1 if ph < 4 else 0), 3: O.prio_a_att + [2, 2, 2, 1, 1, 1, 0, 0][ph]}[O.bal]
        pr = prf(ph)
        if O.bal and not O.toggle and pr != prf(((t + 1) % NT) * 8 // NT):
            E(f"s_setprio {pr}")

        def mm(x):
            if O.toggle: E(f"s_setprio {O.toggle}")
            E(x)
            if O.toggle: E(f"s_setprio {pr}")
        ex(0, ga)
        mm(f"v_smfmac_f32_32x32x32_bf16 {vr(On,16)}, {vr((Vo if blk == 0 else Vk) + 4,4)}, {vr(Sn+8,8)}, v{IDX}")
        if blk == 0:
            off = ((kt + 1) % 4) * 4096
            E(f"ds_read_b128 {vr(Ko,4)}, v{VK} offset:{off}")
            vreads(Vo, off)
        ex(ga, gb)
        if blk == 1:
            E("s_waitcnt lgkmcnt(0)")
        mm(f"v_mfma_f32_32x32x16_bf16 {vr(Sn,16)}, {vr(Kk if blk == 0 else Ko,4)}, {vr(QY if blk == 0 else QX,4)}, 0")
        ex(gb, gc)
        mm(f"v_smfmac_f32_32x32x32_bf16 {vr(Oc,16)}, {vr(Vk,4)}, {vr(Sc,8)}, v{IDX}")
        if O.pair and t == 15:
            refill("A_rf0", 0, 1)
        if O.pair and t == 1:
            refill("A_rf1", 2, 2)
        if O.pair and O.kv_first < 5 and t in (3, 5, 7)[:5 - O.kv_first]:
            refill(f"A_rf{t}", 0, 0)
        ex(gc, 16)
    E(f"s_add_u32 s{S_CNT}, s{S_CNT}, 1")
    E(f"s_cmp_lt_u32 s{S_CNT}, {O.att_iters * 8 // NT}")
    E("s_cbranch_scc1 A_loop")
    E("s_nop 1")
    E(f"v_smfmac_f32_32x32x32_bf16 {vr(OB,16)}, {vr(V1+4,4)}, {vr(S1+8,8)}, v{IDX}")
    E.label("A_fin")
    stamp(6)
    E("s_setprio 3")
    E(f"s_lshr_b32 s{S_T3}, s{S_WAVE}, 2")
    E(f"s_add_u32 s{S_B}, s{S_B}, s{S_T3}")
    E(f"s_lshl_b32 s{S_T1}, s{S_WAVE}, 12")
    E(f"s_xor_b32 s{S_T2}, s{S_T1}, 16384")
    E(f"v_add_u32 v10, s{S_T1}, v{VL}")
    E(f"v_add_u32 v11, s{S_T2}, v{VL}")
    E(f"s_mul_i32 s{S_T0}, s{S_B}, 144")
    E(f"s_add_u32 s{S_T0}, s{S_T0}, s{S_D}")
    E(f"s_lshl_b32 s{S_T0}, s{S_T0}, 10")
    E(f"s_add_u32 s{S_T0}, s{S_T0}, {WS_HO + 112*1024:#x}")
    E(f"s_lshl_b32 s{S_T1}, s{S_B}, 11")
    E(f"s_lshl_b32 s{S_T2}, s{S_D}, 6")
    E(f"s_add_u32 s{S_T1}, s{S_T1}, s{S_T2}")
    E(f"s_add_u32 s{S_T1}, s{S_T1}, {WS_FO:#x}")
    E(f"s_cmp_lg_u32 s{S_T3}, 0")
    E("s_cbranch_scc1 A_hi")
    for i in range(3):
        E(f"ds_write_b128 v10, {vr(OB+4*i,4)} offset:{1024*i}")
    E("s_branch A_x")
    E.label("A_hi")
    for i in range(3):
        E(f"ds_write_b128 v10, {vr(OA+4*i,4)} offset:{1024*i}")
    E("s_nop 1")
    for i in range(9):
        E(f"v_mov_b32 v{OA+i}, v{OB+i}")
    E.label("A_x")
    E("s_waitcnt lgkmcnt(0)")
    E("s_barrier")
    E(f"ds_read_b128 {vr(S0+8,4)}, v11 offset:2048")
    E(f"ds_read_b128 {vr(S0,4)}, v11")
    E(f"ds_read_b128 {vr(S0+4,4)}, v11 offset:1024")
    E("s_waitcnt lgkmcnt(2)")
    E(f"v_add_f32 v12, v{OA+8}, v{S0+8}")
    E("v_rcp_f32 v12, v12")
    E("s_waitcnt lgkmcnt(0)")
    for i in range(8):
        E(f"v_add_f32 v{OA+i}, v{OA+i}, v{S0+i}")
    for i in range(8):
        E(f"v_mul_f32 v{OA+i}, v12, v{OA+i}")
    for i in range(4):
        E(f"v_cvt_pk_bf16_f32 v{S1+i}, v{OA+2*i}, v{OA+2*i+1}")
    E(f"buffer_store_dwordx4 {vr(S1,4)}, v{VL}, {sr(WS)}, s{S_T0} offen sc0 sc1")
    E("s_waitcnt vmcnt(0)")
    put_flag(S_T1)
    stamp(7)
    flush_stamps(range(8), "A_st")
    E("s_endpgm")

    E.label("A_slow")
    MX, MY, T, AL = 4, 5, 6, 7
    E(f"v_mov_b32 v{MX}, 0xff7fffff")
    E(f"v_mov_b32 v{MY}, 0xff7fffff")
    E.label("A_sloop")
    E(f"s_mov_b32 s{S_T3}, 0")
    E.label("A_stile")
    E(f"ds_read_b128 {vr(K0,4)}, v{VK}")
    vreads(V0, 0)
    E(f"v_add_u32 v{VK}, 4096, v{VK}")
    E(f"v_add_u32 v{VV}, 4096, v{VV}")
    E("s_waitcnt lgkmcnt(0)")
    for (M, Q, Oc) in ((MX, QX, OA), (MY, QY, OB)):
        E(f"v_mfma_f32_32x32x16_bf16 {vr(S0,16)}, {vr(K0,4)}, {vr(Q,4)}, 0")
        E("s_nop 15")
        E(f"v_max3_f32 v{T}, v{S0}, v{S0+1}, v{M}")
        for i in range(1, 8):
            E(f"v_max3_f32 v{T}, v{S0+2*i}, v{S0+2*i+1}, v{T}")
        E(f"v_mov_b32 v{AL}, v{T}")
        E("s_nop 1")
        E(f"v_permlane32_swap_b32 v{T}, v{AL}")
        E("s_nop 1")
        E(f"v_max_f32 v{T}, v{T}, v{AL}")
        E(f"v_sub_f32 v{AL}, v{M}, v{T}")
        E(f"v_exp_f32 v{AL}, v{AL}")
        E(f"v_mov_b32 v{M}, v{T}")
        for i in range(16):
            E(f"v_sub_f32 v{S0+i}, v{S0+i}, v{T}")
        for i in range(16):
            E(f"v_exp_f32 v{S0+i}, v{S0+i}")
        for i in range(9):
            E(f"v_mul_f32 v{Oc+i}, v{AL}, v{Oc+i}")
        E("s_nop 1")
        E(f"v_smfmac_f32_32x32x32_bf16 {vr(Oc,16)}, {vr(V0,4)}, {vr(S0,8)}, v{IDX}")
        E(f"v_smfmac_f32_32x32x32_bf16 {vr(Oc,16)}, {vr(V0+4,4)}, {vr(S0+8,8)}, v{IDX}")
    E(f"s_add_u32 s{S_T3}, s{S_T3}, 1")
    E(f"s_cmp_lt_u32 s{S_T3}, 4")
    E("s_cbranch_scc1 A_stile")
    chunk_turn()
    E(f"s_add_u32 s{S_CNT}, s{S_CNT}, 1")
    E(f"s_cmp_lt_u32 s{S_CNT}, 8")
    E("s_cbranch_scc1 A_sloop")
    E(f"s_lshl_b32 s{S_T1}, s{S_WAVE}, 10")
    E(f"s_add_u32 s{S_T1}, s{S_T1}, 65536")
    E(f"s_xor_b32 s{S_T2}, s{S_T1}, 4096")
    E(f"v_add_u32 v10, s{S_T1}, v{VL}")
    E(f"v_add_u32 v11, s{S_T2}, v{VL}")
    E(f"ds_write_b64 v10, v[{MX}:{MY}]")
    E("s_waitcnt lgkmcnt(0)")
    E("s_barrier")
    E(f"ds_read_b64 v[{T}:{AL}], v11")
    E("s_waitcnt lgkmcnt(0)")
    for (M, P, Oc) in ((MX, T, OA), (MY, AL, OB)):
        E(f"v_max_f32 v{P}, v{P}, v{M}")
        E(f"v_sub_f32 v{P}, v{M}, v{P}")
        E(f"v_exp_f32 v{P}, v{P}")
        E("s_nop 0")
        for i in range(9):
            E(f"v_mul_f32 v{Oc+i}, v{P}, v{Oc+i}")
    E("s_branch A_fin")


F_XS, F_WS0, F_WSZ = 16384, 32768, 16384
WROW = 3584


def f_dma_x(u, vm):
    E(f"s_add_u32 m0, s{S_W1K}, {(u % 2) * F_XS}")
    E(f"s_add_u32 s{S_T0}, s{S_XB}, s{S_XK}")
    E(f"buffer_load_dwordx4 v1, {sr(X)}, s{S_T0} offen lds")
    E(f"s_add_u32 m0, s{S_W1K}, {(u % 2) * F_XS + 8192}")
    E(f"s_add_u32 s{S_T0}, s{S_T0}, 0x10000")
    E(f"buffer_load_dwordx4 v1, {sr(X)}, s{S_T0} offen lds")
    E(f"s_add_u32 s{S_XK}, s{S_XK}, 128")
    E(f"s_and_b32 s{S_XK}, s{S_XK}, 1023")
    vm.issue(("x", u), 2)


def f_dma_w(s, vm):
    base = F_WS0 + (s % 3) * F_WSZ
    E(f"s_add_u32 m0, s{S_W1K}, {base}")
    E("s_nop 0")
    E(f"buffer_load_dwordx4 v2, {sr(W1)}, s{S_WK} offen lds")
    E(f"s_add_u32 m0, s{S_W1K}, {base + 8192}")
    E("s_nop 0")
    E(f"buffer_load_dwordx4 v3, {sr(WU)}, s{S_WK} offen lds")
    E(f"s_add_u32 s{S_WK}, s{S_WK}, {32 * WROW}")
    E(f"s_cmp_eq_u32 s{S_WK}, {512 * WROW}")
    E(f"s_cselect_b32 s{S_WK}, 0, s{S_WK}")
    vm.issue(("w", s), 2)


def f_prologue():
    E(f"s_cmp_ge_u32 s2, {256 if O.no_f else 512}")
    E("s_cbranch_scc1 L_end")
    stamp(0)
    E(f"s_load_dwordx2 s[{X}:{X+1}], s[0:1], 0")
    E(f"s_load_dwordx2 s[{W1}:{W1+1}], s[0:1], 32")
    E(f"s_load_dwordx2 s[{WU}:{WU+1}], s[0:1], 40")
    E(f"s_load_dwordx2 s[{WS}:{WS+1}], s[0:1], 80")
    E(f"s_load_dwordx2 s[{DBG}:{DBG+1}], s[0:1], 72")
    E(f"s_load_dwordx2 s[{WD}:{WD+1}], s[0:1], 48")
    E(f"s_load_dwordx2 s[{WO}:{WO+1}], s[0:1], 16")
    E(f"s_load_dwordx2 s[{OUT}:{OUT+1}], s[0:1], 64")
    E(f"s_load_dwordx2 s[{GW}:{GW+1}], s[0:1], 56")
    E("v_lshrrev_b32 v8, 6, v0")
    E(f"s_bfe_u32 s{S_C}, s2, 0x50003")
    E(f"v_readfirstlane_b32 s{S_WAVE}, v8")
    E(f"s_cmp_ge_u32 s{S_C}, 28")
    E("s_cbranch_scc0 F_main")
    E("s_getpc_b64 s[4:5]")
    E.label("F_pc")
    E(f"s_add_u32 s4, s4, CODE_START - F_pc")
    E("s_addc_u32 s5, s5, -1")
    E("s_mov_b32 s6, CODE_END - CODE_START")
    E("s_mov_b32 s7, 0x20000")
    E("v_lshlrev_b32 v9, 7, v0")
    E("buffer_load_dword v120, v9, s[4:7], 0 offen")
    E("s_branch F_main")


def f_main():
    E.label("F_main")
    srd(X, 0x200000); srd(W1, 512 * WROW); srd(WU, 512 * WROW); srd(WS, WS_SIZE); srd(DBG, 256)
    srd(WD, 1792 * 1024); srd(WO, 512 * 1024); srd(OUT, 0x200000); srd(GW, 1024)
    E(f"s_lshl_b32 s{S_W1K}, s{S_WAVE}, 10")
    E(f"s_setprio {O.prio_f if O.prio_up < 0 else O.prio_up}")
    E("v_lshrrev_b32 v9, 3, v0")
    E("v_lshrrev_b32 v10, 4, v0")
    E("v_xor_b32 v11, v10, v0")
    E("v_and_b32 v11, 7, v11")
    E("v_lshlrev_b32 v11, 4, v11")
    E("v_lshl_add_u32 v1, v9, 10, v11")
    E("s_waitcnt lgkmcnt(0)")
    if O.only_down:
        stamp(1); stamp(2); stamp(3); stamp(10); stamp(11); stamp(12)
        E("s_branch F_pub")
    if O.warm_steps:
        E(f"s_cmp_lt_u32 s{S_WAVE}, 4")
        E(f"s_cselect_b32 s4, s{W1}, s{WU}")
        E(f"s_cselect_b32 s5, s{W1+1}, s{WU+1}")
        E(f"s_mul_i32 s{S_T0}, s{S_C}, {WROW}")
        E(f"s_bfe_u32 s{S_T1}, s2, 0x10002")
        E(f"s_mul_i32 s{S_T1}, s{S_T1}, 1792")
        E(f"s_add_u32 s{S_T0}, s{S_T0}, s{S_T1}")
        E(f"s_and_b32 s{S_T1}, s{S_WAVE}, 3")
        E(f"s_mul_i32 s{S_T1}, s{S_T1}, 448")
        E(f"s_add_u32 s{S_T0}, s{S_T0}, s{S_T1}")
        E(f"s_add_u32 s4, s4, s{S_T0}")
        E("s_addc_u32 s5, s5, 0")
        E(f"s_mov_b32 s{S_CNT}, {O.warm_steps}")
        E.label("F_warm")
        for i in range(7):
            E(f"s_load_dword s6, s[4:5], {64*i}")
        E(f"s_add_u32 s4, s4, {32 * WROW}")
        E("s_addc_u32 s5, s5, 0")
        E(f"s_sub_u32 s{S_CNT}, s{S_CNT}, 1")
        E(f"s_cmp_lg_u32 s{S_CNT}, 0")
        E("s_cbranch_scc1 F_warm")
        E("s_waitcnt lgkmcnt(0)")
    if O.f_touch:
        E(f"s_lshl_b32 s{S_T0}, s{S_C}, 2")
        E(f"s_and_b32 s{S_T1}, s{S_WAVE}, 3")
        E(f"s_add_u32 s{S_T0}, s{S_T0}, s{S_T1}")
        E(f"s_mul_i32 s{S_T0}, s{S_T0}, {2 * 3584}")
        E(f"s_bfe_u32 s{S_T1}, s2, 0x10002")
        E(f"s_mul_i32 s{S_T1}, s{S_T1}, 1792")
        E(f"s_add_u32 s{S_T0}, s{S_T0}, s{S_T1}")
        E("v_bfe_u32 v12, v0, 4, 1")
        E("v_mul_u32_u24 v12, 3584, v12")
        E("v_and_b32 v13, 15, v0")
        E("v_lshl_add_u32 v12, v13, 7, v12")
        E(f"v_add_u32 v13, s{S_T0}, v12")
        E(f"s_cmp_lt_u32 s{S_WAVE}, 4")
        E(f"s_cselect_b32 s4, s{W1}, s{WU}")
        E(f"s_cselect_b32 s5, s{W1+1}, s{WU+1}")
        E(f"s_mov_b32 s6, {512 * WROW}")
        E("s_mov_b32 s7, 0x20000")
        E("s_mov_b64 exec, 1")
        E(f"buffer_load_dword v15, v13, s[4:7], 0 offen")
        E("s_waitcnt vmcnt(0)")
        E("s_mov_b64 exec, 0x3fff3fff")
        E(f"buffer_load_dword v15, v13, s[4:7], 0 offen")
        E("s_mov_b64 exec, -1")
    E(f"s_cmp_ge_u32 s{S_C}, 28")
    E("s_cbranch_scc1 F_gate")
    E(f"s_and_b32 s{S_T0}, s{S_C}, 3")
    E(f"s_lshr_b32 s{S_T1}, s{S_C}, 2")
    E(f"s_and_b32 s{S_A}, s2, 3")
    E(f"s_lshl_b32 s{S_A}, s{S_A}, 2")
    E(f"s_add_u32 s{S_A}, s{S_A}, s{S_T0}")
    E(f"s_bfe_u32 s{S_B}, s2, 0x10002")
    E(f"s_mul_i32 s{S_B}, s{S_B}, 7")
    E(f"s_add_u32 s{S_B}, s{S_B}, s{S_T1}")
    E(f"s_lshl_b32 s{S_T0}, s{S_T0}, 1")
    E(f"s_add_u32 s{S_T0}, s{S_T0}, s{S_T1}")
    E(f"s_and_b32 s{S_T0}, s{S_T0}, {7 if O.f_rot else 0}")
    E(f"s_lshl_b32 s{S_XK}, s{S_T0}, 7")
    E(f"s_mul_i32 s{S_WK}, s{S_T0}, {64 * WROW}")
    E(f"s_lshl_b32 s{S_XB}, s{S_A}, 17")
    E(f"v_mul_u32_u24 v9, {WROW}, v10")
    E("v_bfe_u32 v11, v0, 1, 3")
    E("v_and_b32 v10, 3, v10")
    E("v_xor_b32 v11, v11, v10")
    E("v_lshl_add_u32 v9, v11, 5, v9")
    E("v_and_b32 v11, 1, v0")
    E("v_lshl_add_u32 v9, v11, 4, v9")
    E(f"s_lshl_b32 s{S_T0}, s{S_B}, 8")
    E(f"v_add_u32 v2, s{S_T0}, v9")
    E("v_xor_b32 v3, 128, v2")
    vm = VM()

    def fill():
        f_dma_x(0, vm); f_dma_w(0, vm); f_dma_w(1, vm); f_dma_x(1, vm); f_dma_w(2, vm)

    if O.f_fill_early:
        fill()
    E("v_and_b32 v8, 31, v0")
    E("v_lshrrev_b32 v9, 1, v8")
    E("v_and_b32 v9, 7, v9")
    E("v_bfe_u32 v10, v0, 5, 1")
    E("v_xor_b32 v9, v9, v10")
    E("v_lshlrev_b32 v9, 4, v9")
    E("v_lshl_add_u32 v9, v8, 7, v9")
    E("v_bfe_u32 v8, v0, 6, 1")
    E("v_lshl_add_u32 v4, v8, 13, v9")
    for ks in (1, 2, 3):
        E(f"v_xor_b32 v{4+ks}, {32*ks}, v4")
    E("v_bfe_u32 v8, v0, 2, 2")
    E("v_lshl_add_u32 v9, v10, 3, v8")
    E("v_lshlrev_b32 v9, 8, v9")
    E("v_bfe_u32 v10, v0, 4, 1")
    E("v_lshl_add_u32 v9, v10, 13, v9")
    E("v_lshlrev_b32 v10, 2, v10")
    E("v_xor_b32 v8, v8, v10")
    E("v_lshrrev_b32 v10, 7, v0")
    E("v_lshlrev_b32 v10, 1, v10")
    E("v_xor_b32 v8, v8, v10")
    E("v_lshl_add_u32 v9, v8, 5, v9")
    E("v_and_b32 v8, 3, v0")
    E("v_lshl_add_u32 v9, v8, 3, v9")
    E(f"v_add_u32 v8, {F_WS0}, v9")
    E("v_xor_b32 v9, 32, v8")
    E(f"s_cmp_lg_u32 s{S_WAVE}, 0")
    E("s_cbranch_scc1 F_go")
    wait_start("F_tag", 1 if O.hint1 >= 0 else 0)
    E.label("F_go")
    if not O.f_fill_early:
        E("s_barrier")
        fill()
    stamp(1)

    def reads(s, kk):
        b = 16 + 16 * kk
        u = s // 2
        L = []
        for i in (0, 1):
            L.append(f"ds_read_b128 {vr(b+4*i,4)}, v{4 + 2*(s&1) + kk} offset:{(u % 2) * F_XS + i * 4096}")
            for q in (0, 1):
                L.append(f"ds_read_b64_tr_b16 {vr(b+8+4*i+2*q,2)}, v{8+i} offset:{(s % 3) * F_WSZ + kk * 4096 + q * 1024}")
        return L

    def mfmas(s, kk):
        b = 16 + 16 * kk
        L = []
        for rbk, bb in ((0, 0), (0, 1), (1, 1), (1, 0)):
            acc = vr(64 + 16 * (2 * rbk + bb), 16)
            c = "0" if (s == 0 and kk == 0) else acc
            L.append(f"v_mfma_f32_32x32x16_bf16 {acc}, {vr(b+8+4*bb,4)}, {vr(b+4*rbk,4)}, {c}")
        return L

    E(f"s_waitcnt vmcnt({vm.need(('x',0),('w',0))})")
    E("s_barrier")
    stamp(2)
    for x in reads(0, 0):
        E(x)
    def paced(s, kk):
        M, R = mfmas(s, kk), reads(s, kk)
        [E(x) for x in R[:3]]; E("s_waitcnt lgkmcnt(0)"); E(M[0])
        [E(x) for x in R[4:]]; E("s_waitcnt lgkmcnt(0)"); E(M[1])
        E(R[3]); E("s_waitcnt lgkmcnt(0)"); E(M[2]); E(M[3])

    for s in range(16):
        if s > O.pace_from:
            paced(s, 0)
            paced(s, 1)
            if s < 15:
                E(f"s_waitcnt vmcnt({vm.need(('x',(s+1)//2),('w',s+1))})")
                E("s_barrier")
                if s + 3 <= 15:
                    f_dma_w(s + 3, vm)
                if s % 2 == 1 and (s + 1) // 2 + 1 <= 7:
                    f_dma_x((s + 1) // 2 + 1, vm)
                if s in (3, 7, 11):
                    stamp(10 + s // 4)
            continue
        if O.boost_mask and (s == 0 or ((O.boost_mask >> s) ^ (O.boost_mask >> (s - 1))) & 1):
            E(f"s_setprio {O.prio_boost if (O.boost_mask >> s) & 1 else O.prio_f}")
        M, R = mfmas(s, 0), reads(s, 1)
        E("s_waitcnt lgkmcnt(0)")
        E(M[0]); [E(x) for x in R[:3]]; E(M[1]); [E(x) for x in R[3:]]; E(M[2]); E(M[3])
        M = mfmas(s, 1)
        if s == 2 and O.hint1 >= 0:
            E("s_waitcnt lgkmcnt(0)")
            [E(x) for x in M]
            E(f"s_cmp_lg_u32 s{S_WAVE}, 0")
            E("s_cbranch_scc1 F_go2")
            wait_start("F_tag2", 0, False)
            E.label("F_go2")
            E("s_barrier")
            f_dma_w(3, vm); f_dma_w(4, vm); f_dma_x(2, vm); f_dma_w(5, vm)
            E(f"s_waitcnt vmcnt({vm.need(('w', 3))})")
            E("s_barrier")
            [E(x) for x in reads(3, 0)]
            continue
        if s < 15:
            E(f"s_waitcnt vmcnt({vm.need(('x',(s+1)//2),('w',s+1))}) lgkmcnt(0)")
            E("s_barrier")
            R = reads(s + 1, 0) if s + 1 <= O.pace_from else []
            E(M[0]); [E(x) for x in R[:3]]; E(M[1]); [E(x) for x in R[3:]]; E(M[2])
            hold = O.hint1 >= 0 and s < 2
            if s + 3 <= 15 and not hold:
                f_dma_w(s + 3, vm)
            E(M[3])
            if s % 2 == 1 and (s + 1) // 2 + 1 <= 7 and not hold:
                f_dma_x((s + 1) // 2 + 1, vm)
            if s == 13 and O.f_wd:
                E(f"s_lshl_b32 s{S_T0}, s{S_C}, 16")
                E("v_lshlrev_b32 v11, 7, v0")
                E(f"buffer_load_dword v15, v11, {sr(WD)}, s{S_T0} offen")
                vm.issue("wd")
            if s == O.f_touch2:
                E(f"s_mov_b32 s{S_T0}, {256 * 3584}")
                E("s_mov_b64 exec, 0x3fff3fff")
                E(f"buffer_load_dword v15, v13, s[4:7], s{S_T0} offen")
                E("s_mov_b64 exec, -1")
                vm.issue("t2")
            if s in (3, 7, 11) and not O.dn_stamps:
                stamp(10 + s // 4)
        else:
            E("s_waitcnt lgkmcnt(0)")
            [E(x) for x in M]
    stamp(3)
    if O.a_exit:
        flush_stamps(range(13), "F_st0")
        E("s_endpgm")
    E(f"s_setprio {O.prio_silu}")
    if O.wo_early:
        voff_w()
        E("s_barrier")
        wo_stage()
    E(f"s_and_b32 s{S_T0}, s{S_WAVE}, 1")
    E(f"s_lshl_b32 s{S_T0}, s{S_T0}, 1")
    E(f"s_lshl_b32 s{S_T1}, s{S_A}, 2")
    E(f"s_add_u32 s{S_T0}, s{S_T0}, s{S_T1}")
    E(f"s_mul_i32 s{S_T0}, s{S_T0}, 144")
    E(f"s_lshl_b32 s{S_T1}, s{S_B}, 3")
    E(f"s_add_u32 s{S_T0}, s{S_T0}, s{S_T1}")
    E(f"s_and_b32 s{S_T1}, s{S_WAVE}, 6")
    E(f"s_add_u32 s{S_T0}, s{S_T0}, s{S_T1}")
    E(f"s_lshl_b32 s{S_T0}, s{S_T0}, 10")
    E(f"s_add_u32 s{S_T0}, s{S_T0}, {WS_HO:#x}")
    E(f"s_add_u32 s{S_T1}, s{S_T0}, {144 * 1024}")
    E(f"s_mov_b32 s{S_T2}, {NLOG2E:#x}")
    E(f"s_mov_b32 s{S_T3}, {NLOG2E:#x}")
    E("v_and_b32 v10, 63, v0")
    E("v_lshlrev_b32 v10, 4, v10")
    E("v_mov_b32 v12, 1.0")
    E("v_mov_b32 v13, 1.0")
    E("s_nop 4")
    for tl in range(4):
        a = 64 + 16 * tl
        t = 16 + 8 * (tl & 1)
        pk = 32 + 4 * tl
        for i in range(4):
            E(f"v_pk_mul_f32 {vr(t+2*i,2)}, {vr(a+2*i,2)}, s[{S_T2}:{S_T3}]")
        for i in range(8):
            E(f"v_exp_f32 v{t+i}, v{t+i}")
        for i in range(4):
            E(f"v_pk_mul_f32 {vr(a+2*i,2)}, {vr(a+2*i,2)}, {vr(a+8+2*i,2)}")
        for i in range(4):
            E(f"v_pk_add_f32 {vr(t+2*i,2)}, {vr(t+2*i,2)}, v[12:13]")
        for i in range(8):
            E(f"v_rcp_f32 v{t+i}, v{t+i}")
        E("s_nop 0")
        for i in range(4):
            E(f"v_pk_mul_f32 {vr(a+2*i,2)}, {vr(a+2*i,2)}, {vr(t+2*i,2)}")
        for i in range(4):
            E(f"v_cvt_pk_bf16_f32 v{pk+i}, v{a+2*i}, v{a+2*i+1}")
        E(f"buffer_store_dwordx4 {vr(pk,4)}, v10, {sr(WS)}, s{S_T0 + (tl >> 1)} offen offset:{(tl & 1) * 1024} sc0 sc1")
    E(f"s_lshl_b32 s{S_T0}, s{S_A}, 10")
    E(f"s_lshl_b32 s{S_T1}, s{S_B}, 6")
    E(f"s_add_u32 s{S_T0}, s{S_T0}, s{S_T1}")
    E.label("F_pub")
    E(f"s_add_u32 s{S_T0}, s{S_T0}, {WS_FH:#x}")
    E("s_waitcnt vmcnt(0)")
    E("s_barrier")
    stamp(4)
    E(f"s_and_b32 s{S_A}, s2, 7")
    E(f"s_lshl_b32 s{S_A}, s{S_A}, 2")
    E(f"s_and_b32 s{S_T1}, s{S_C}, 3")
    E(f"s_add_u32 s{S_A}, s{S_A}, s{S_T1}")
    E(f"s_lshr_b32 s{S_B}, s{S_C}, 2")
    E(f"s_cmp_lg_u32 s{S_WAVE}, 0")
    if O.only_down:
        E("s_branch F_wait2")
    E("s_cbranch_scc1 F_wait2")
    put_flag(S_T0)
    E.label("F_wait2")
    E("v_and_b32 v8, 63, v0")
    E("v_lshlrev_b32 v12, 4, v8")
    E(f"s_and_b32 s{S_T0}, s{S_WAVE}, 1")
    E(f"s_mul_i32 s{S_T1}, s{S_T0}, 144")
    E(f"s_lshr_b32 s{S_T2}, s{S_WAVE}, 1")
    E(f"s_add_u32 s{S_T1}, s{S_T1}, s{S_T2}")
    E(f"s_lshl_b32 s{S_T1}, s{S_T1}, 10")
    E(f"v_add_u32 v1, s{S_T1}, v12")
    E(f"s_lshl_b32 s{S_T1}, s{S_T0}, 2")
    E(f"s_add_u32 s{S_T1}, s{S_T1}, s{S_T2}")
    E(f"s_lshl_b32 s{S_D}, s{S_T1}, 10")
    E("v_bfe_u32 v10, v0, 4, 1")
    if not O.wo_early:
        voff_w()
    E(f"s_lshl_b32 s{S_T0}, s{S_T0}, 12")
    E(f"s_lshr_b32 s{S_T1}, s{S_WAVE}, 2")
    E(f"s_lshl_b32 s{S_T1}, s{S_T1}, 11")
    E(f"s_add_u32 s{S_T0}, s{S_T0}, s{S_T1}")
    E(f"v_add_u32 v4, s{S_T0}, v12")
    E("v_bfe_u32 v8, v0, 2, 2")
    E("v_bfe_u32 v9, v0, 5, 1")
    E("v_lshl_add_u32 v9, v9, 2, v8")
    E("v_lshrrev_b32 v11, 8, v0")
    E("v_lshl_add_u32 v9, v11, 5, v9")
    E("v_lshlrev_b32 v9, 7, v9")
    E("v_lshrrev_b32 v8, 1, v8")
    E("v_bfe_u32 v11, v0, 7, 1")
    E("v_xor_b32 v8, v8, v11")
    E("v_lshl_add_u32 v9, v8, 6, v9")
    E("v_lshl_add_u32 v9, v10, 5, v9")
    E("v_and_b32 v8, 3, v0")
    E("v_lshl_add_u32 v9, v8, 3, v9")
    E("v_add_u32 v5, 8192, v9")
    _m_fix_base()
    E(f"s_mul_i32 s{S_T0}, s{S_B}, 7")
    E(f"s_lshr_b32 s{S_T0}, s{S_T0}, 1")
    E(f"s_and_b32 s{S_T1}, s{S_C}, 3")
    E(f"s_mul_i32 s{S_T1}, s{S_T1}, 7")
    E(f"s_add_u32 s{S_T0}, s{S_T0}, s{S_T1}")
    E(f"s_cmp_ge_u32 s{S_T0}, 28")
    E(f"s_cselect_b32 s{S_T1}, 28, 0")
    E(f"s_sub_u32 s{S_XK}, s{S_T0}, s{S_T1}")
    if not O.d_rot:
        E(f"s_mov_b32 s{S_XK}, 0")
    if O.h_touch:
        E(f"s_lshl_b32 s{S_T0}, s{S_B}, 3")
        E(f"s_add_u32 s{S_T0}, s{S_T0}, s{S_WAVE}")
        E(f"s_mul_i32 s{S_T0}, s{S_T0}, 1792")
        E(f"s_add_u32 s{S_T2}, s{S_T0}, s{S_XB}")
        E("v_and_b32 v8, 15, v0")
        E("v_lshlrev_b32 v8, 7, v8")
        E("v_bfe_u32 v9, v0, 4, 1")
        E(f"v_mul_u32_u24 v9, {144 * 1024}, v9")
        E("v_add_u32 v8, v8, v9")
    if not O.wo_early:
        wo_stage()
    E(f"s_lshr_b32 s{S_T1}, s{S_WAVE}, 2")
    E(f"s_mul_i32 s{S_T0}, s{S_T1}, 28672")
    E(f"s_sub_u32 s{S_T0}, s{S_T0}, 8192")
    E(f"v_add_u32 v9, s{S_T0}, v5")
    E(f"s_setprio {O.prio_f if O.prio_dn < 0 else O.prio_dn}")
    if not O.wo_early:
        E("s_waitcnt vmcnt(0)")
        E("s_barrier")
    wf = lambda k: (48 + 4 * k) if k < 4 else (80 + 4 * (k - 4))
    for k in range(16):
        for q in (0, 1):
            E(f"ds_read_b64_tr_b16 {vr(wf(k) + 2*q, 2)}, v9 offset:{k * 2048 + q * 1024}")
    E(f"s_cmp_lg_u32 s{S_WAVE}, 0")
    if O.only_down:
        E("s_branch F_wait2b")
    E("s_cbranch_scc1 F_wait2b")
    E("v_and_b32 v10, 15, v0")
    E("v_lshlrev_b32 v10, 6, v10")
    E(f"s_lshr_b32 s{S_T0}, s{S_A}, 1")
    E(f"s_lshl_b32 s{S_T0}, s{S_T0}, 10")
    E(f"s_add_u32 s{S_T0}, s{S_T0}, {WS_FH:#x}")
    poll("F_pollh", 10, f"s{S_T0}")
    E.label("F_wait2b")
    E("s_waitcnt lgkmcnt(0)")
    E("s_barrier")
    stamp(5)

    def dma(slot, wsrd, wrap):
        E(f"s_add_u32 m0, s{S_D}, {slot * 16384}")
        E(f"s_lshl_b32 s{S_T0}, s{S_XK}, 12")
        E(f"s_add_u32 s{S_T0}, s{S_T0}, s{S_XB}")
        E(f"buffer_load_dwordx4 v1, {sr(WS)}, s{S_T0} offen {'sc1 ' if O.h_sc1 else ''}lds")
        E(f"s_add_u32 m0, s{S_W1K}, {slot * 16384 + 8192}")
        E(f"s_lshl_b32 s{S_T0}, s{S_XK}, 16")
        E(f"buffer_load_dwordx4 v2, {sr(wsrd)}, s{S_T0} offen lds")
        E(f"s_add_u32 s{S_XK}, s{S_XK}, 1")
        if wrap:
            E(f"s_cmp_eq_u32 s{S_XK}, 28")
            E(f"s_cselect_b32 s{S_XK}, 0, s{S_XK}")

    def greads(slot):
        b = 16 + 16 * (slot & 1)
        L = []
        for kk in (0, 1):
            L.append(f"ds_read_b128 {vr(b+4*kk,4)}, v4 offset:{slot * 16384 + kk * 1024}")
            for q in (0, 1):
                L.append(f"ds_read_b64_tr_b16 {vr(b+8+4*kk+2*q,2)}, v5 offset:{slot * 16384 + kk * 2048 + q * 1024}")
        return L

    def block(acc, wsrd, refill, wrap):
        for t in range(4):
            b = 16 + 16 * (t & 1)
            M = [f"v_mfma_f32_32x32x16_bf16 {vr(acc,16)}, {vr(b+8+4*kk,4)}, {vr(b+4*kk,4)}, {vr(acc,16)}" for kk in (0, 1)]
            if refill or t < 3:
                n = 4 if refill else (2 - t) * 2
                E(f"s_waitcnt vmcnt({n}) lgkmcnt(0)")
                E("s_barrier")
                R = greads((t + 1) % 4)
                E(M[0]); [E(x) for x in R[:3]]; E(M[1]); [E(x) for x in R[3:]]
                if refill:
                    dma(t, wsrd, wrap)
            else:
                E("s_waitcnt lgkmcnt(0)")
                [E(x) for x in M]

    if O.h_touch:
        E("s_mov_b64 exec, 0x3fff3fff")
        E(f"buffer_load_dword v15, v8, {sr(WS)}, s{S_T2} offen sc1")
        E("s_mov_b64 exec, -1")
    for t in range(4):
        dma(t, WD, True)
    for i in range(16):
        E(f"v_mov_b32 v{64+i}, 0")
    E(f"s_mov_b32 s{S_CNT}, 0")
    E("s_waitcnt vmcnt(6)")
    E("s_barrier")
    [E(x) for x in greads(0)]
    E.label("F_dloop")
    if O.late_iter <= 5:
        E(f"s_cmp_lg_u32 s{S_CNT}, {O.late_iter}")
        E("s_cbranch_scc1 F_nolow")
        E(f"s_setprio {O.prio_f_late}")
        E.label("F_nolow")
    if O.dn_stamps:
        for i in range(3):
            E(f"s_cmp_lg_u32 s{S_CNT}, {2 * i + 1}")
            E(f"s_cbranch_scc1 F_ds{i}")
            stamp(10 + i)
            E.label(f"F_ds{i}")
    block(64, WD, True, True)
    E(f"s_add_u32 s{S_CNT}, s{S_CNT}, 1")
    E(f"s_cmp_lt_u32 s{S_CNT}, 6")
    E("s_cbranch_scc1 F_dloop")
    if O.late_iter == 6:
        E(f"s_setprio {O.prio_f_late}")
    block(64, WD, False, False)
    stamp(6)
    if O.only_down:
        flush_stamps(range(13), "F_st1")
        E("s_endpgm")
    E("v_and_b32 v8, 31, v0")
    E("v_bfe_u32 v9, v0, 6, 1")
    E("v_lshl_add_u32 v8, v9, 5, v8")
    E("v_lshlrev_b32 v9, 2, v8")
    E(f"s_lshl_b32 s{S_T0}, s{S_A}, 8")
    E(f"s_add_u32 s{S_T0}, s{S_T0}, {WS_G:#x}")
    E(f"buffer_load_dword v14, v9, {sr(WS)}, s{S_T0} offen sc1")
    E(f"s_lshr_b32 s{S_T1}, s{S_WAVE}, 2")
    E(f"s_bfe_u32 s{S_T2}, s{S_WAVE}, 0x10001")
    E(f"s_lshl_b32 s{S_T2}, s{S_T2}, 4")
    E(f"s_add_u32 s{S_T2}, s{S_T2}, s{S_T1}")
    E(f"s_and_b32 s{S_T3}, s{S_WAVE}, 1")
    E(f"s_lshl_b32 s{S_D}, s{S_T3}, 5")
    E(f"s_add_u32 s{S_D}, s{S_D}, s{S_T2}")
    E(f"s_lshl_b32 s{S_D}, s{S_D}, 10")
    E(f"s_mul_i32 s{S_T0}, s{S_T3}, 144")
    E(f"s_add_u32 s{S_T0}, s{S_T0}, s{S_T2}")
    E(f"s_add_u32 s{S_T0}, s{S_T0}, 112")
    E(f"s_lshl_b32 s{S_T0}, s{S_T0}, 10")
    E(f"s_add_u32 s{S_XB}, s{S_XB}, s{S_T0}")
    E(f"s_lshl_b32 s{S_T3}, s{S_T3}, 15")
    E(f"s_lshl_b32 s{S_T1}, s{S_T1}, 14")
    E(f"s_add_u32 s{S_T3}, s{S_T3}, s{S_T1}")
    E(f"v_add_u32 v4, s{S_T3}, v12")
    out_addr()
    E("s_waitcnt vmcnt(0)")
    E("v_sub_f32 v15, 1.0, v14")
    for i in range(16):
        E(f"v_mul_f32 v{64+i}, v15, v{64+i}")
    E(f"s_cmp_lg_u32 s{S_WAVE}, 0")
    E("s_cbranch_scc1 F_wait3")
    E("v_lshlrev_b32 v10, 6, v0")
    E(f"s_lshl_b32 s{S_T0}, s{S_A}, 12")
    E(f"s_add_u32 s{S_T0}, s{S_T0}, {WS_FO:#x}")
    poll("F_pollo", 10, f"s{S_T0}")
    E.label("F_wait3")
    E(f"s_setprio 3")
    E("s_waitcnt lgkmcnt(0)")
    E("s_barrier")
    stamp(7)
    for i in range(8):
        E(f"s_add_u32 m0, s{S_D}, {i * 2048}")
        E(f"s_add_u32 s{S_T0}, s{S_XB}, {i * 2048}")
        E(f"buffer_load_dwordx4 v12, {sr(WS)}, s{S_T0} offen sc1 lds")
    for half in (0, 1):
        E(f"s_waitcnt vmcnt({4 - 4 * half})")
        E("s_barrier")
        for k in range(4):
            E(f"ds_read_b128 {vr(32 + 4*k, 4)}, v4 offset:{(8 * half + k) * 1024}")
        for k in range(8):
            E(f"s_waitcnt lgkmcnt({min(3, 7 - k)})")
            E(f"v_mfma_f32_32x32x16_bf16 v[16:31], {vr(wf(8*half + k), 4)}, {vr(32 + 4*(k % 4), 4)}, {'0' if half + k == 0 else 'v[16:31]'}")
            if k < 4:
                E(f"ds_read_b128 {vr(32 + 4*k, 4)}, v4 offset:{(8 * half + 4 + k) * 1024}")
    stamp(8)
    E("s_nop 11")
    for i in range(16):
        E(f"v_fmac_f32 v{64+i}, v14, v{16+i}")
    E(f"s_cmp_ge_u32 s{S_WAVE}, 4")
    E("s_cbranch_scc1 F_hi")
    E("ds_write_b128 v6, v[72:75]")
    E("ds_write_b128 v6, v[76:79] offset:1024")
    E("s_branch F_x")
    E.label("F_hi")
    E("ds_write_b128 v6, v[64:67]")
    E("ds_write_b128 v6, v[68:71] offset:1024")
    E("s_nop 1")
    for i in range(8):
        E(f"v_mov_b32 v{64+i}, v{72+i}")
    E.label("F_x")
    E("s_waitcnt lgkmcnt(0)")
    E("s_barrier")
    E("ds_read_b128 v[80:83], v7")
    E("ds_read_b128 v[84:87], v7 offset:1024")
    E("s_waitcnt lgkmcnt(0)")
    for i in range(8):
        E(f"v_add_f32 v{64+i}, v{64+i}, v{80+i}")
    for i in range(4):
        E(f"v_cvt_pk_bf16_f32 v{16+i}, v{64+2*i}, v{65+2*i}")
    E("s_nop 1")
    E("v_permlane32_swap_b32 v16, v18")
    E("v_permlane32_swap_b32 v17, v19")
    E(f"buffer_store_dwordx4 v[16:19], v8, {sr(OUT)}, s{S_XK} offen")
    stamp(9)
    flush_stamps(range(13), "F_st")
    E("s_endpgm")

    E.label("F_gate")
    if O.a_exit:
        E("s_endpgm")
    E(f"s_cmp_lg_u32 s{S_WAVE}, 0")
    E("s_cbranch_scc1 F_gate1")
    wait_start("F_tag3")
    E.label("F_gate1")
    E("s_setprio 3")
    E("s_barrier")
    E(f"s_and_b32 s{S_A}, s2, 7")
    E(f"s_lshl_b32 s{S_A}, s{S_A}, 2")
    E(f"s_add_u32 s{S_A}, s{S_A}, s{S_C}")
    E(f"s_sub_u32 s{S_A}, s{S_A}, 28")
    E(f"s_lshl_b32 s{S_T0}, s{S_A}, 16")
    E("v_and_b32 v10, 7, v0")
    E("v_lshlrev_b32 v10, 4, v10")
    E("v_lshl_add_u32 v11, v9, 10, v10")
    for i in range(8):
        E(f"buffer_load_dwordx4 {vr(16+4*i,4)}, v11, {sr(X)}, s{S_T0} offen offset:{128*i}")
    for i in range(8):
        E(f"buffer_load_dwordx4 {vr(48+4*i,4)}, v10, {sr(GW)}, 0 offen offset:{128*i}")
    E("v_mov_b32 v12, 0")
    E("v_mov_b32 v13, 0")
    E("s_waitcnt vmcnt(0)")
    for i in range(32):
        E(f"v_dot2_f32_bf16 v{12 + (i & 1)}, v{16+i}, v{48+i}, v{12 + (i & 1)}")
        if i % 2 == 1:
            E("s_nop 0")
    E("s_nop 2")
    E("v_add_f32 v12, v12, v13")
    for ctl in ("quad_perm:[1,0,3,2]", "quad_perm:[2,3,0,1]", "row_half_mirror"):
        E("s_nop 1")
        E(f"v_add_f32_dpp v12, v12, v12 {ctl} row_mask:0xf bank_mask:0xf")
    E(f"v_mul_f32 v12, {NLOG2E:#x}, v12")
    E("v_exp_f32 v12, v12")
    E("s_nop 0")
    E("v_add_f32 v12, 1.0, v12")
    E("v_rcp_f32 v12, v12")
    E("v_lshlrev_b32 v11, 2, v9")
    E(f"s_lshl_b32 s{S_T0}, s{S_A}, 8")
    E(f"s_add_u32 s{S_T0}, s{S_T0}, {WS_G:#x}")
    E("v_cmp_eq_u32 vcc, 0, v10")
    E("s_nop 4")
    E("s_mov_b64 exec, vcc")
    E(f"buffer_store_dword v12, v11, {sr(WS)}, s{S_T0} offen sc0 sc1")
    E("s_mov_b64 exec, -1")
    if O.f_wd:
        E(f"s_and_b32 s{S_T0}, s{S_C}, 3")
        E(f"s_lshl_b32 s{S_T0}, s{S_T0}, 17")
        E(f"s_add_u32 s{S_T1}, s{S_T0}, 0x10000")
        E("v_lshlrev_b32 v11, 7, v0")
        E(f"buffer_load_dword v15, v11, {sr(WO)}, s{S_T0} offen")
        E(f"buffer_load_dword v15, v11, {sr(WO)}, s{S_T1} offen")
    if O.wo_early:
        voff_w()
        wo_stage()
    for i in (1, 2, 3, 10, 11, 12):
        stamp(i)
    E(f"s_lshr_b32 s{S_T0}, s{S_A}, 1")
    E(f"s_lshl_b32 s{S_T0}, s{S_T0}, 10")
    E(f"s_and_b32 s{S_T1}, s{S_A}, 1")
    E(f"s_lshl_b32 s{S_T1}, s{S_T1}, 6")
    E(f"s_add_u32 s{S_T0}, s{S_T0}, s{S_T1}")
    E(f"s_add_u32 s{S_T0}, s{S_T0}, {14 * 64}")
    E("s_branch F_pub")


def out_addr():
    E("v_lshlrev_b32 v8, 10, v8")
    E("v_bfe_u32 v9, v0, 5, 1")
    E("v_lshl_add_u32 v8, v9, 4, v8")
    E("v_bfe_u32 v9, v0, 7, 1")
    E("v_lshl_add_u32 v8, v9, 6, v8")
    E("v_lshrrev_b32 v9, 8, v0")
    E("v_lshl_add_u32 v8, v9, 5, v8")
    E(f"s_lshl_b32 s{S_XK}, s{S_A}, 16")
    E(f"s_lshl_b32 s{S_T1}, s{S_B}, 7")
    E(f"s_add_u32 s{S_XK}, s{S_XK}, s{S_T1}")
    E(f"s_lshl_b32 s{S_T1}, s{S_WAVE}, 11")
    E(f"s_add_u32 s{S_T1}, s{S_T1}, 65536")
    E(f"s_xor_b32 s{S_T2}, s{S_T1}, 8192")
    E(f"v_add_u32 v6, s{S_T1}, v12")
    E(f"v_add_u32 v7, s{S_T2}, v12")


def voff_w():
    E("v_bfe_u32 v2, v0, 4, 1")
    E("v_lshlrev_b32 v2, 2, v2")
    E("v_xor_b32 v2, v2, v0")
    E("v_and_b32 v2, 7, v2")
    E("v_lshlrev_b32 v2, 4, v2")
    E("v_lshrrev_b32 v11, 3, v0")
    E("v_lshl_add_u32 v2, v11, 10, v2")
    E(f"s_lshr_b32 s{S_T1}, s{S_C}, 2")
    E(f"s_lshl_b32 s{S_T1}, s{S_T1}, 7")
    E(f"v_add_u32 v2, s{S_T1}, v2")


def wo_stage():
    for i in range(8):
        E(f"s_add_u32 m0, s{S_W1K}, {i * 8192}")
        E(f"s_mov_b32 s{S_T0}, {i * 65536}")
        E(f"buffer_load_dwordx4 v2, {sr(WO)}, s{S_T0} offen lds")


def _m_fix_base():
    E(f"s_mul_i32 s{S_XB}, s{S_A}, {288 * 1024}")
    E(f"s_add_u32 s{S_XB}, s{S_XB}, {WS_HO:#x}")


HEADER = """; Kernarg layout (88 bytes, ptrs only, base s[0:1]):
; @launch grid=(512,1,1) block=(512,1,1) lds=81920
.amdgcn_target "amdgcn-amd-amdhsa--gfx950"
.text
.globl {kn}
.p2align 8
.type {kn},@function
{kn}:
CODE_START:
"""

FOOTER = """CODE_END:
.section .rodata,"a"
.p2align 6
.amdhsa_kernel {kn}
  .amdhsa_next_free_vgpr 128
  .amdhsa_next_free_sgpr 102
  .amdhsa_accum_offset 128
  .amdhsa_group_segment_fixed_size 0
  .amdhsa_kernarg_size 88
  .amdhsa_user_sgpr_count 2
  .amdhsa_user_sgpr_kernarg_segment_ptr 1
  .amdhsa_system_sgpr_workgroup_id_x 1
.end_amdhsa_kernel
"""


def generate():
    E.L = []
    if O.scramble:
        E("s_and_b32 s3, s2, 7")
        E("s_lshl_b32 s3, s3, 3")
        E("s_bfe_u32 s4, s2, 0x30003")
        E("s_and_b32 s2, s2, 0xffffffc0")
        E("s_or_b32 s2, s2, s3")
        E("s_or_b32 s2, s2, s4")
    E("s_cmp_ge_u32 s2, 256")
    E("s_cbranch_scc1 F_entry")
    stamp(0)
    if O.only_down:
        E("s_endpgm")
    a_prologue()
    E("s_cbranch_vccnz A_vwave")
    E("s_branch A_qwave")
    E.label("F_entry")
    f_prologue()
    E.label("L_end")
    E("s_endpgm")
    E.label("A_qwave")
    a_qkv(False)
    E("s_branch A_att")
    E.label("A_vwave")
    a_qkv(True)
    E.label("A_att")
    a_attention()
    f_main()
    return HEADER.format(kn=KN) + "\n".join(E.L) + "\n" + FOOTER.format(kn=KN)


if __name__ == "__main__":
    ap = argparse.ArgumentParser()
    ap.add_argument("-o", default="k.s")
    ap.add_argument("--set", action="append", default=[])
    a = ap.parse_args()
    for kv in a.set:
        k, v = kv.split("=")
        assert hasattr(O, k), k
        setattr(O, k, type(getattr(O, k))(int(v)))
    s = generate()
    open(a.o, "w").write(s)
    sys.path.insert(0, "cdna_kernels")
    from cdna_launch import with_harness_metadata, address_register_problem
    h = a.o[:-2] + ".harness.s"
    co = a.o[:-2] + ".co"
    open(h, "w").write(with_harness_metadata(s, KN, 11, launch_lists=True))
    r = subprocess.run(["clang", "-x", "assembler", "-target", "amdgcn-amd-amdhsa", "-mcpu=gfx950", h, "-o", co],
                       capture_output=True, text=True)
    if r.returncode:
        print(r.stderr[:4000]); sys.exit(1)
    p = address_register_problem(co, KN)
    print("check:", p)
    r = subprocess.run(f"llvm-nm {co} | grep -E 'CODE_|A_qwave|A_vwave|A_att|A_loop|A_fin|A_slow|F_entry|F_main|F_pub|F_dloop|F_gate$' | sort", shell=True, capture_output=True, text=True)
    print(r.stdout)
```

```python
import sys, subprocess, argparse

NAME = "gated_mix__softmax_full_mha__swiglu_ffn__prompt"
KN = NAME + "_kernel"

WS_KV, WS_Q, WS_HO = 0, 0x400000, 0x600000
WS_NRM, WS_G = 0xF10000, 0xF04000
WS_FKV, WS_FH, WS_FO, WS_FS = 0xF08000, 0xF0C000, 0xF20000, 0xF07000
WS_STAMP = 0x1000000
WS_SIZE = 0x1100000
QSCALE = 0x3EB8AA3B
NLOG2E = 0xBFB8AA3B
THR2 = 0x45548000


class Opt:
    stamps = False
    hint_step = 17
    f_fill_early = False
    force_slow = False
    prio_a_qkv = 3
    prio_a_att = 2
    prio_f = 0
    prio_f_late = 0
    zrows = 1
    toggle = 0
    touch_gu = 0
    touch = 0
    warm_steps = 0
    f_rot = 0
    a_exit = 0
    kv_rot = 0
    ga = 3
    gb = 5
    gc = 5
    kv_first = 2
    wd_t0 = 3
    wo_t = 1
    f_touch = 1
    f_touch2 = 99
    bal = 4
    pace_from = 99
    prio_up = -1
    prio_dn = 0
    boost_mask = 63
    prio_boost = 3
    hint1 = 11
    f_wd = 1
    pair = 1
    dn_stamps = 0
    wo_early = 1
    scramble = 0
    dbg_out = 0
    hold = 0
    kv_wait1 = 1
    piped = 0
    dn_ns = 5
    dn_grp = 2
    dn_grp_until = 16
    dn_low = 99
    twice = 0
    o_parts = 2
    x_noack = 0
    x_noex = 0
    wd_step = 13
    wd_parts = 1
    ht_pos = 0
    only_down = 0
    d_rot = 0
    h_touch = 1
    att_iters = 8
    prio_silu = 3
    gate_late = 1
    h_sc1 = 1
    no_f = 0
    late_iter = 99


O = Opt()


class Asm:
    def __init__(self):
        self.L = []

    def __call__(self, s):
        for x in s.strip("\n").split("\n"):
            self.L.append("    " + x.strip())

    def label(self, l):
        self.L.append(l + ":")

    def raw(self, s):
        self.L.append(s)


E = Asm()


def vr(a, n):
    return f"v[{a}:{a+n-1}]"


def srd(base, size):
    E(f"s_mov_b32 s{base+2}, {size:#x}")
    E(f"s_mov_b32 s{base+3}, 0x20000")


S_WAVE = 3
X, W1, WU, WS, DBG, WD, WO, OUT, GW = 12, 16, 20, 24, 28, 32, 36, 40, 44
def sr(b): return f"s[{b}:{b+3}]"
S_TAG = 48
S_W1K = 49
S_T0, S_T1, S_T2, S_T3 = 50, 51, 52, 53
S_XK, S_XB, S_WK, S_WB = 54, 55, 56, 57
S_CNT = 58
S_A, S_B, S_C, S_D = 59, 60, 61, 62
S_SLOT = 63
S_VM = 64
S_SPIN = 66
S_STAMP = 70


def stamp(i):
    if O.stamps:
        E(f"s_memrealtime s[{S_STAMP+2*i}:{S_STAMP+2*i+1}]")
        E(f"s_memtime s[68:69]")
        E("s_waitcnt lgkmcnt(0)")
        E(f"s_mov_b32 s{S_STAMP+2*i+1}, s68")


def cstamp(i):
    if O.stamps:
        E(f"s_memtime s[{S_STAMP+2*i}:{S_STAMP+2*i+1}]")
        E("s_waitcnt lgkmcnt(0)")


def flush_stamps(idx, lab):
    if not O.stamps:
        return
    E(f"s_cmp_lg_u32 s{S_WAVE}, 0")
    E(f"s_cbranch_scc1 {lab}")
    E(f"s_lshl_b32 s{S_T0}, s2, 7")
    E(f"s_add_u32 s{S_T0}, s{S_T0}, {WS_STAMP:#x}")
    E("s_mov_b64 exec, 1")
    E("v_mov_b32 v1, 0")
    for i in idx:
        E(f"v_mov_b32 v2, s{S_STAMP+2*i}")
        E(f"buffer_store_dword v2, v1, {sr(WS)}, s{S_T0} offen offset:{4*i}")
        E(f"v_mov_b32 v3, s{S_STAMP+2*i+1}")
        E(f"buffer_store_dword v3, v1, {sr(WS)}, s{S_T0} offen offset:{64+4*i}")
    if O.dbg_out:
        E(f"s_and_b32 s{S_T0}, s2, 255")
        E(f"s_cmp_lg_u32 s{S_T0}, 77")
        E(f"s_cbranch_scc1 {lab}_d")
        sel, base = ((0, 1, 2, 5, 6, 7), 1) if lab.startswith("A") else ((1, 2, 3, 5, 6, 7, 9), 9)
        for n, i in enumerate(sel):
            E(f"v_mov_b32 v2, s{S_STAMP+2*i}")
            if n:
                E(f"v_subrev_u32 v2, s{S_STAMP}, v2")
            E(f"buffer_store_dword v2, v1, {sr(DBG)}, 0 offen offset:{4*(base+n)}")
        if lab.startswith("A"):
            E(f"s_sub_u32 s{S_T0}, s{S_STAMP+13}, s{S_STAMP+11}")
            E(f"v_mov_b32 v2, s{S_T0}")
            E(f"buffer_store_dword v2, v1, {sr(DBG)}, 0 offen offset:28")
        E.label(lab + "_d")
    E("s_waitcnt vmcnt(0)")
    E.label(lab)


class VM:
    def __init__(self):
        self.q = []

    def issue(self, tag, n=1):
        self.q += [tag] * n

    def need(self, *tags):
        last = -1
        for i, t in enumerate(self.q):
            if t in tags:
                last = i
        for t in tags:
            assert t in self.q, t
        return len(self.q) - 1 - last


def poll(lab, voff_reg, soff, piped=False):
    E(f"s_mov_b32 s{S_SPIN}, 0x40000")
    if piped:
        regs = (11, 9, 15)
        for r in regs[:2]:
            E(f"buffer_load_dword v{r}, v{voff_reg}, {sr(WS)}, {soff} offen sc1")
            E("s_sleep 2")
        E.label(lab)
        for i in range(3):
            E(f"buffer_load_dword v{regs[(i + 2) % 3]}, v{voff_reg}, {sr(WS)}, {soff} offen sc1")
            E("s_waitcnt vmcnt(2)")
            E(f"v_cmp_ne_u32 vcc, s{S_TAG}, v{regs[i]}")
            E("s_nop 4")
            E("s_cmp_eq_u64 vcc, 0")
            E(f"s_cbranch_scc1 {lab}_ok")
            E("s_sleep 1")
    else:
        E.label(lab)
        E(f"buffer_load_dword v11, v{voff_reg}, {sr(WS)}, {soff} offen sc1")
        E("s_waitcnt vmcnt(0)")
        E(f"v_cmp_ne_u32 vcc, s{S_TAG}, v11")
        E("s_nop 4")
        E("s_cmp_eq_u64 vcc, 0")
        E(f"s_cbranch_scc1 {lab}_ok")
        E("s_sleep 2")
    E(f"s_sub_u32 s{S_SPIN}, s{S_SPIN}, 1")
    E(f"s_cmp_lg_u32 s{S_SPIN}, 0")
    E(f"s_cbranch_scc1 {lab}")
    E.label(lab + "_ok")


def get_tag(lab, sleep=4):
    E(f"s_mov_b32 s{S_SPIN}, 0x40000")
    E("v_mov_b32 v10, 0")
    E.label(lab)
    E(f"buffer_load_dword v11, v10, {sr(DBG)}, 0 offen sc1")
    E("s_waitcnt vmcnt(0)")
    E(f"v_readfirstlane_b32 s{S_TAG}, v11")
    E("s_nop 3")
    E(f"s_cmp_lg_u32 s{S_TAG}, 0")
    E(f"s_cbranch_scc1 {lab}_ok")
    E(f"s_sleep {sleep}")
    E(f"s_sub_u32 s{S_SPIN}, s{S_SPIN}, 1")
    E(f"s_cmp_lg_u32 s{S_SPIN}, 0")
    E(f"s_cbranch_scc1 {lab}")
    E.label(lab + "_ok")


def put_flag(soff_sgpr):
    E("s_mov_b64 exec, 1")
    E("v_mov_b32 v10, 0")
    E(f"v_mov_b32 v11, s{S_TAG}")
    E(f"buffer_store_dword v11, v10, {sr(WS)}, s{soff_sgpr} offen sc0 sc1")
    E("s_mov_b64 exec, -1")


def wg_store(lab, cond, val_lines, off):
    cond()
    E(f"s_cbranch_scc1 {lab}")
    val_lines()
    E("s_mov_b64 exec, 1")
    E(f"v_mov_b32 v10, {off}")
    E(f"v_mov_b32 v11, s{S_T0}")
    E(f"buffer_store_dword v11, v10, {sr(DBG)}, 0 offen sc0 sc1")
    E("s_mov_b64 exec, -1")
    E.label(lab)


def hint(lab="A_nohint", word=0, early=None):
    E(f"s_lshr_b32 s{S_T0}, s2, 3")
    E(f"s_or_b32 s{S_T0}, s{S_T0}, s{S_WAVE}")
    E(f"s_cbranch_scc1 {lab}")
    if (O.hint_step if early is None else early) < 16:
        E(f"v_readfirstlane_b32 s{S_TAG}, v14")
        E("s_nop 3")
        E(f"s_cmp_lg_u32 s{S_TAG}, 0")
        E(f"s_cbranch_scc1 {lab}_t_ok")
        get_tag(lab + "_t")
    E(f"s_lshl_b32 s{S_T1}, s2, 7")
    E(f"s_add_u32 s{S_T1}, s{S_T1}, {WS_FS + 1024 * word:#x}")
    put_flag(S_T1)
    E.label(lab)


def wait_start(lab, word=0, tag=True):
    if tag:
        get_tag(lab + "_t", 16)
    E("v_mov_b32 v10, 0")
    E(f"s_and_b32 s{S_T0}, s2, 7")
    E(f"s_lshl_b32 s{S_T0}, s{S_T0}, 7")
    E(f"s_add_u32 s{S_T0}, s{S_T0}, {WS_FS + 1024 * word:#x}")
    poll(lab, 10, f"s{S_T0}")


def dpp_max(regs):
    for ctl in ("row_shr:1", "row_shr:2", "row_shr:4", "row_shr:8",
                "row_bcast:15 row_mask:0xa", "row_bcast:31 row_mask:0xc"):
        E("s_nop 1")
        for r in regs:
            m = "" if "row_mask" in ctl else " row_mask:0xf"
            E(f"v_max_f32_dpp v{r}, v{r}, v{r} {ctl}{m} bank_mask:0xf")


A_XS, A_WS0, A_WSZ = 8192, 24576, 12288


def a_dma_x(u, vm):
    E(f"s_add_u32 m0, s{S_W1K}, {(u % 3) * A_XS}")
    E(f"s_add_u32 s{S_T0}, s{S_XB}, s{S_XK}")
    E(f"buffer_load_dwordx4 v1, {sr(X)}, s{S_T0} offen lds")
    E(f"s_add_u32 s{S_XK}, s{S_XK}, 128")
    E(f"s_and_b32 s{S_XK}, s{S_XK}, 1023")
    vm.issue(("x", u))


def a_dma_w(s, vm, vwave):
    base = A_WS0 + (s % 4) * A_WSZ
    E(f"s_add_u32 m0, s{S_W1K}, {base}")
    E(f"s_add_u32 s{S_T0}, s{S_WB}, s{S_WK}")
    E(f"buffer_load_dwordx4 v2, {sr(W1)}, s{S_T0} offen lds")
    vm.issue(("w", s))
    if vwave == "both":
        E(f"s_cbranch_vccz A_pw{s}")
        E(f"s_add_u32 m0, s{S_W1K}, {base + 3072}")
        E("s_nop 0")
        E(f"buffer_load_dwordx4 v2, {sr(W1)}, s{S_T0} offen offset:1024 lds")
        E.label(f"A_pw{s}")
    elif vwave:
        E(f"s_add_u32 m0, s{S_W1K}, {base + 3072}")
        E("s_nop 0")
        E(f"buffer_load_dwordx4 v2, {sr(W1)}, s{S_T0} offen offset:1024 lds")
        vm.issue(("w", s))
    E(f"s_add_u32 s{S_WK}, s{S_WK}, 98304")
    E(f"s_cmp_eq_u32 s{S_WK}, {16 * 98304}")
    E(f"s_cselect_b32 s{S_WK}, 0, s{S_WK}")


def a_prologue():
    E(f"s_load_dwordx2 s[{X}:{X+1}], s[0:1], 0")
    E(f"s_load_dwordx2 s[{W1}:{W1+1}], s[0:1], 8")
    E(f"s_load_dwordx2 s[{WS}:{WS+1}], s[0:1], 80")
    E(f"s_load_dwordx2 s[{DBG}:{DBG+1}], s[0:1], 72")
    E("v_lshrrev_b32 v8, 6, v0")
    E("v_lshrrev_b32 v9, 3, v0")
    E("v_lshrrev_b32 v10, 4, v0")
    E(f"v_readfirstlane_b32 s{S_WAVE}, v8")
    E("v_xor_b32 v11, v10, v0")
    E("v_and_b32 v11, 7, v11")
    E("v_lshlrev_b32 v11, 4, v11")
    E("v_lshl_add_u32 v1, v9, 10, v11")
    srd(X, 0x200000)
    srd(W1, 0x180000)
    E(f"s_lshr_b32 s{S_T0}, s2, 3")
    E(f"s_and_b32 s{S_T1}, s{S_T0}, 7")
    E(f"s_lshr_b32 s{S_T0}, s{S_T0}, 3")
    E(f"s_and_b32 s{S_A}, s2, 3")
    E(f"s_lshl_b32 s{S_A}, s{S_A}, 3")
    E(f"s_add_u32 s{S_A}, s{S_A}, s{S_T1}")
    E(f"s_and_b32 s{S_B}, s2, 4")
    E(f"s_add_u32 s{S_B}, s{S_B}, s{S_T0}")
    E(f"s_lshl_b32 s{S_T0}, s{S_T0}, 1")
    E(f"s_add_u32 s{S_T0}, s{S_T0}, s{S_T1}")
    E(f"s_and_b32 s{S_T0}, s{S_T0}, 7")
    E(f"s_lshl_b32 s{S_XK}, s{S_T0}, 7")
    E(f"s_mul_i32 s{S_WK}, s{S_T0}, {2 * 98304}")
    E(f"s_lshl_b32 s{S_XB}, s{S_A}, 16")
    E(f"s_lshl_b32 s{S_WB}, s{S_B}, 7")
    E(f"s_lshl_b32 s{S_W1K}, s{S_WAVE}, 10")
    E("v_and_b32 v9, 31, v9")
    E("v_mul_u32_u24 v9, 0xc00, v9")
    E("v_and_b32 v10, 1, v10")
    E("v_lshlrev_b32 v10, 2, v10")
    E("v_xor_b32 v10, v10, v0")
    E("v_and_b32 v10, 7, v10")
    E("v_lshl_add_u32 v9, v10, 4, v9")
    E("v_lshrrev_b32 v10, 8, v0")
    E("v_lshl_add_u32 v2, v10, 10, v9")
    E("v_cmp_eq_u32 vcc, 1, v10")
    E(f"s_setprio {O.prio_a_qkv}")
    E("s_waitcnt lgkmcnt(0)")
    stamp(8)
    vm = VM()
    a_dma_x(0, vm)
    a_dma_w(0, vm, "both")
    a_dma_w(1, vm, "both")
    a_dma_x(1, vm)
    a_dma_w(2, vm, "both")
    a_dma_w(3, vm, "both")
    a_dma_x(2, vm)
    stamp(9)
    srd(WS, WS_SIZE)
    srd(DBG, 256)


def a_qkv(vwave):
    p = "AV" if vwave else "AQ"
    if O.touch:
        E(f"s_load_dwordx2 s[{WU}:{WU+1}], s[0:1], {40 if vwave else 32}")
        E(f"s_load_dwordx2 s[{WD}:{WD+1}], s[0:1], 48")
        E(f"s_load_dwordx2 s[{WO}:{WO+1}], s[0:1], 16")
        srd(WU, 512 * 3584); srd(WD, 1792 * 1024); srd(WO, 512 * 1024)
    vm = VM()
    n = 2 if vwave else 1
    for t in (("x", 0), ("w", 0), ("w", 1), ("x", 1), ("w", 2), ("w", 3), ("x", 2)):
        vm.issue(t, n if t[0] == "w" else 1)
    E("v_and_b32 v8, 31, v0")
    if vwave:
        E("v_and_b32 v9, 0x13, v8")
        E("v_lshlrev_b32 v10, 1, v8")
        E("v_and_b32 v10, 8, v10")
        E("v_or_b32 v9, v9, v10")
        E("v_lshrrev_b32 v10, 1, v8")
        E("v_and_b32 v10, 4, v10")
        E("v_or_b32 v8, v9, v10")
    E("v_lshrrev_b32 v9, 1, v8")
    E("v_and_b32 v9, 7, v9")
    E("v_bfe_u32 v10, v0, 5, 1")
    E("v_xor_b32 v9, v9, v10")
    E("v_lshlrev_b32 v9, 4, v9")
    E("v_lshl_add_u32 v9, v8, 7, v9")
    E("v_bfe_u32 v8, v0, 6, 1")
    E("v_lshl_add_u32 v3, v8, 12, v9")
    for ks in (1, 2, 3):
        E(f"v_xor_b32 v{3+ks}, {32*ks}, v3")
    E("v_bfe_u32 v8, v0, 2, 2")
    E("v_lshl_add_u32 v9, v10, 3, v8")
    E("v_lshlrev_b32 v9, 7, v9")
    E("v_bfe_u32 v10, v0, 7, 1")
    E("v_lshrrev_b32 v8, 1, v8")
    E("v_xor_b32 v8, v8, v10")
    E("v_lshl_add_u32 v9, v8, 6, v9")
    E("v_bfe_u32 v8, v0, 4, 1")
    E("v_lshl_add_u32 v9, v8, 5, v9")
    E("v_and_b32 v8, 3, v0")
    E("v_lshl_add_u32 v9, v8, 3, v9")
    E(f"v_add_u32 v7, {A_WS0}, v9")
    segs = (2,) if vwave else (0, 1)
    if O.touch_gu:
        E(f"s_lshr_b32 s{S_T0}, s2, 3")
        E(f"s_lshl_b32 s{S_T0}, s{S_T0}, 2")
        E(f"s_and_b32 s{S_T1}, s{S_WAVE}, 3")
        E(f"s_add_u32 s{S_T0}, s{S_T0}, s{S_T1}")
        E(f"s_mul_i32 s{S_T0}, s{S_T0}, {2 * 3584}")
        E(f"s_bfe_u32 s{S_T1}, s2, 0x10002")
        E(f"s_mul_i32 s{S_T1}, s{S_T1}, 1792")
        E(f"s_add_u32 s{S_T0}, s{S_T0}, s{S_T1}")
        E("v_bfe_u32 v8, v0, 4, 1")
        E("v_mul_u32_u24 v8, 3584, v8")
        E("v_and_b32 v9, 15, v0")
        E("v_lshl_add_u32 v8, v9, 7, v8")
        E(f"v_add_u32 v98, s{S_T0}, v8")

    def reads(s):
        b = 16 + 24 * (s & 1)
        L = []
        for kk in (0, 1):
            L.append(f"ds_read_b128 {vr(b+4*kk,4)}, v{3 + 2*(s&1) + kk} offset:{((s//2) % 3) * A_XS}")
            for si, sg in enumerate(segs):
                for q in (0, 1):
                    off = (s % 4) * A_WSZ + sg * 4096 + kk * 2048 + q * 512
                    L.append(f"ds_read_b64_tr_b16 {vr(b+8+8*si+4*kk+2*q,2)}, v7 offset:{off}")
        return L

    def mfmas(s):
        b = 16 + 24 * (s & 1)
        L = []
        for kk in (0, 1):
            for si, sg in enumerate(segs):
                acc = vr(64 + 16 * si, 16)
                c = "0" if (s == 0 and kk == 0) else acc
                xf, wf = vr(b + 4*kk, 4), vr(b + 8 + 8*si + 4*kk, 4)
                if vwave:
                    L.append(f"v_mfma_f32_32x32x16_bf16 {acc}, {xf}, {wf}, {c}")
                else:
                    L.append(f"v_mfma_f32_32x32x16_bf16 {acc}, {wf}, {xf}, {c}")
        return L

    if not vwave:
        def tagval():
            E(f"s_memrealtime s[{S_T0}:{S_T1}]")
            E("s_waitcnt lgkmcnt(0)")
            E(f"s_or_b32 s{S_T0}, s{S_T0}, 1")
        wg_store("A_notag", lambda: E(f"s_or_b32 s{S_T0}, s2, s{S_WAVE}"), tagval, "0")
    E(f"s_waitcnt vmcnt({vm.need(('x',0),('w',0))}) lgkmcnt(0)")
    E("s_barrier")
    stamp(1)
    for x in reads(0):
        E(x)
    for s in range(16):
        M = mfmas(s)
        if s < 15:
            E(f"s_waitcnt vmcnt({vm.need(('x',(s+1)//2),('w',s+1))}) lgkmcnt(0)")
            E("s_barrier")
            E(M.pop(0))
            R = reads(s + 1)
            per = 3
            while R or M:
                for x in R[:per]:
                    E(x)
                R = R[per:]
                if M:
                    E(M.pop(0))
            if s + 4 <= 15:
                a_dma_w(s + 4, vm, vwave)
            if s % 2 == 1 and (s + 1) // 2 + 2 <= 7:
                a_dma_x((s + 1) // 2 + 2, vm)
            if s == 1 and not vwave:
                E("v_mov_b32 v10, 0")
                E(f"buffer_load_dword v14, v10, {sr(DBG)}, 0 offen sc1")
                vm.issue("tag")
            if s == 12 and O.touch_gu:
                E("s_mov_b32 exec_hi, 0")
                E(f"buffer_load_dword v15, v98, {sr(WU)}, 0 offen")
                E("s_mov_b32 exec_hi, -1")
                vm.issue("t")
        else:
            E("s_waitcnt lgkmcnt(0)")
            for x in M:
                E(x)
        if s == O.hint_step and not vwave:
            hint()
        if s == O.hint1 and not vwave:
            hint("A_nohint1", 1, O.hint1)
        if s == O.hint_step and O.a_exit:
            E("s_endpgm")
    stamp(2)
    E(f"s_and_b32 s{S_T0}, s{S_WAVE}, 1")
    E(f"s_lshl_b32 s{S_T1}, s{S_A}, 1")
    E(f"s_add_u32 s{S_T0}, s{S_T0}, s{S_T1}")
    E(f"s_bfe_u32 s{S_T1}, s{S_WAVE}, 0x10001")
    E(f"s_lshl_b32 s{S_T2}, s{S_B}, 1")
    E(f"s_add_u32 s{S_T1}, s{S_T1}, s{S_T2}")
    E("v_and_b32 v8, 63, v0")
    if vwave:
        E("v_and_b32 v9, 15, v8")
        E("v_lshlrev_b32 v9, 4, v9")
        E("v_bfe_u32 v10, v8, 5, 1")
        E("v_lshl_add_u32 v9, v10, 8, v9")
        E("v_bfe_u32 v10, v8, 4, 1")
        E("v_lshl_add_u32 v9, v10, 17, v9")
        E(f"s_lshl_b32 s{S_T1}, s{S_T1}, 18")
        E(f"s_lshl_b32 s{S_T0}, s{S_T0}, 11")
        E(f"s_add_u32 s{S_T0}, s{S_T0}, s{S_T1}")
        E("s_nop 7")
        for i in range(8):
            E(f"v_cvt_pk_bf16_f32 v{16+i}, v{64+2*i}, v{65+2*i}")
        E(f"buffer_store_dwordx4 v[16:19], v9, {sr(WS)}, s{S_T0} offen offset:1024 sc0 sc1")
        E(f"buffer_store_dwordx4 v[20:23], v9, {sr(WS)}, s{S_T0} offen offset:1536 sc0 sc1")
    else:
        E("v_lshlrev_b32 v9, 4, v8")
        E(f"s_lshl_b32 s{S_T2}, s{S_T1}, 18")
        E(f"s_lshl_b32 s{S_T3}, s{S_T0}, 11")
        E(f"s_add_u32 s{S_T2}, s{S_T2}, s{S_T3}")
        E(f"s_lshr_b32 s{S_T3}, s{S_T2}, 1")
        E(f"s_add_u32 s{S_T3}, s{S_T3}, {WS_Q:#x}")
        E(f"s_add_u32 s{S_C}, s{S_T2}, 0x20000")
        E(f"s_add_u32 s{S_D}, s{S_T3}, 0x10000")
        E(f"s_mov_b32 s{S_CNT}, {QSCALE:#x}")
        E("s_nop 7")
        for i in range(8):
            E(f"v_cvt_pk_bf16_f32 v{16+i}, v{80+2*i}, v{81+2*i}")
        E(f"buffer_store_dwordx4 v[16:19], v9, {sr(WS)}, s{S_T2} offen sc0 sc1")
        E(f"buffer_store_dwordx4 v[20:23], v9, {sr(WS)}, s{S_C} offen sc0 sc1")
        for i in range(16):
            E(f"v_mul_f32 v{64+i}, s{S_CNT}, v{64+i}")
        for i in range(8):
            E(f"v_cvt_pk_bf16_f32 v{24+i}, v{64+2*i}, v{65+2*i}")
        E(f"buffer_store_dwordx4 v[24:27], v9, {sr(WS)}, s{S_T3} offen sc0 sc1")
        E(f"buffer_store_dwordx4 v[28:31], v9, {sr(WS)}, s{S_D} offen sc0 sc1")
        for g in range(4):
            E(f"v_mul_f32 v{32+g}, v{64+8*g}, v{64+8*g}")
        for i in range(1, 8):
            for g in range(4):
                E(f"v_fmac_f32 v{32+g}, v{64+8*g+i}, v{64+8*g+i}")
        E("s_nop 1")
        E("v_permlane32_swap_b32 v32, v33")
        E("v_permlane32_swap_b32 v34, v35")
        E("s_nop 1")
        E("v_add_f32 v32, v32, v33")
        E("v_add_f32 v33, v34, v35")
        dpp_max((32, 33))
        E(f"s_lshl_b32 s{S_T0}, s{S_B}, 11")
        E(f"s_lshl_b32 s{S_T1}, s{S_A}, 6")
        E(f"s_add_u32 s{S_T0}, s{S_T0}, s{S_T1}")
        E(f"s_lshl_b32 s{S_T1}, s{S_WAVE}, 3")
        E(f"s_add_u32 s{S_T0}, s{S_T0}, s{S_T1}")
        E(f"s_add_u32 s{S_T0}, s{S_T0}, {WS_FKV + 16:#x}")
        E("v_mov_b32 v10, 0")
        E("s_brev_b64 exec, 1")
        E(f"buffer_store_dwordx2 v[32:33], v10, {sr(WS)}, s{S_T0} offen sc0 sc1")
        E("s_mov_b64 exec, -1")


S0, S1, OA, OB, QX, QY, K0, K1, V0, V1 = 16, 32, 48, 64, 80, 84, 88, 92, 96, 104
IDX, VK, VV, VD, VKB, VVB, VT, VL = 112, 113, 114, 115, 116, 117, 118, 119
KVS = 16384


def a_kv_dma():
    E(f"s_add_u32 m0, s{S_XK}, s{S_W1K}")
    E(f"s_add_u32 s{S_T0}, s{S_WB}, s{S_WK}")
    E(f"buffer_load_dwordx4 v{VD}, {sr(WS)}, s{S_T0} offen sc1 lds")
    E(f"buffer_load_dwordx4 v{VD}, {sr(WS)}, s{S_T0} offen offset:1024 sc1 lds")
    E(f"s_add_u32 s{S_WK}, s{S_WK}, {KVS}")
    E(f"s_and_b32 s{S_WK}, s{S_WK}, {8*KVS-1:#x}")
    E(f"s_add_u32 s{S_XK}, s{S_XK}, {KVS}")
    E(f"s_cmp_eq_u32 s{S_XK}, {5*KVS}")
    E(f"s_cselect_b32 s{S_XK}, 0, s{S_XK}")


def a_attention():
    E(f"s_and_b32 s{S_C}, s2, 7")
    E(f"s_lshr_b32 s{S_T0}, s2, 6")
    E(f"s_lshl_b32 s{S_D}, s{S_C}, 2")
    E(f"s_add_u32 s{S_D}, s{S_D}, s{S_T0}")
    E(f"s_lshl_b32 s{S_T0}, s{S_B}, 11")
    E(f"s_lshl_b32 s{S_T1}, s{S_A}, 6")
    E(f"s_add_u32 s{S_T0}, s{S_T0}, s{S_T1}")
    E(f"s_add_u32 s{S_XB}, s{S_T0}, {WS_FKV:#x}")
    E(f"s_bfe_u32 s{S_A}, s2, 0x30003")
    E("v_and_b32 v8, 63, v0")
    E(f"v_lshlrev_b32 v{VL}, 4, v8")
    E(f"s_lshl_b32 s{S_W1K}, s{S_WAVE}, 11")
    E(f"v_add_u32 v{VD}, s{S_W1K}, v{VL}")
    E(f"s_lshl_b32 s{S_WB}, s{S_D}, 17")
    if O.kv_rot:
        E(f"s_lshl_b32 s{S_WK}, s{S_A}, 14")
    else:
        E(f"s_mov_b32 s{S_WK}, 0")
    E(f"s_mov_b32 s{S_XK}, 0")
    E(f"s_lshl_b32 s{S_T1}, s{S_A}, 3")
    E(f"s_and_b32 s{S_T2}, s{S_WAVE}, 3")
    E(f"s_lshl_b32 s{S_T2}, s{S_T2}, 1")
    E(f"s_add_u32 s{S_B}, s{S_T1}, s{S_T2}")
    E(f"s_lshl_b32 s{S_T1}, s{S_B}, 10")
    E(f"s_lshl_b32 s{S_T2}, s{S_D}, 16")
    E(f"s_add_u32 s{S_T1}, s{S_T1}, s{S_T2}")
    E(f"s_add_u32 s4, s{S_T1}, {WS_Q:#x}")
    E(f"s_lshr_b32 s{S_T0}, s{S_WAVE}, 2")
    E(f"s_lshl_b32 s{S_T0}, s{S_T0}, 11")
    E(f"v_add_u32 v{VKB}, s{S_T0}, v{VL}")
    E("v_and_b32 v9, 15, v8")
    E("v_lshlrev_b32 v9, 4, v9")
    E("v_bfe_u32 v10, v8, 5, 1")
    E("v_lshl_add_u32 v9, v10, 8, v9")
    E(f"s_add_u32 s{S_T0}, s{S_T0}, 1024")
    E(f"v_add_u32 v{VVB}, s{S_T0}, v9")
    E(f"v_mov_b32 v{VK}, v{VKB}")
    E(f"v_mov_b32 v{VV}, v{VVB}")
    E(f"v_mov_b32 v{IDX}, 0xdddddddd")
    E("v_and_b32 v9, 27, v8")
    E("v_cmp_eq_u32 vcc, 16, v9")
    E("v_mov_b32 v9, 0x3f803f80")
    E("s_nop 0")
    E(f"v_cndmask_b32 v{V0}, 0, v9, vcc")
    for i in range(1, 16):
        E(f"v_mov_b32 v{V0+i}, v{V0}")
    if O.touch:
        E(f"s_lshr_b32 s{S_T0}, s2, 3")
        E(f"s_lshl_b32 s{S_T0}, s{S_T0}, 3")
        E(f"s_add_u32 s{S_T0}, s{S_T0}, s{S_WAVE}")
        E(f"s_lshl_b32 s{S_T0}, s{S_T0}, 11")
        E(f"v_lshlrev_b32 v{VT}, 7, v8")
        E(f"v_add_u32 v{VT}, s{S_T0}, v{VT}")
    E(f"s_mov_b32 s{S_VM}, 0xffff")
    E(f"s_mov_b32 s{S_VM+1}, 0xffff")
    E(f"s_mov_b32 s{S_SLOT}, 0")
    E(f"s_mov_b32 s{S_CNT}, 0")
    for i in range(32):
        E(f"v_mov_b32 v{OA+i}, 0")
    for i in range(8, 16):
        E(f"v_mov_b32 v{S1+i}, 0")
    E("s_waitcnt vmcnt(0)")
    E("s_barrier")
    stamp(3)
    E(f"s_cmp_lg_u32 s{S_WAVE}, 0")
    E("s_cbranch_scc1 A_wait1")
    E(f"v_readfirstlane_b32 s{S_TAG}, v14")
    E("s_nop 3")
    E(f"s_cmp_lg_u32 s{S_TAG}, 0")
    E("s_cbranch_scc1 A_tag_ok")
    get_tag("A_tag")
    put_flag(S_XB)
    if O.hint_step == 16:
        hint()
    E("v_and_b32 v10, 31, v0")
    E("v_lshlrev_b32 v10, 6, v10")
    E(f"s_bfe_u32 s{S_T1}, s{S_D}, 0x10001")
    E(f"s_lshl_b32 s{S_T1}, s{S_T1}, 4")
    E(f"s_add_u32 s{S_T1}, s{S_T1}, 16")
    E("v_bfe_u32 v11, v0, 5, 1")
    E(f"v_mul_u32_u24 v11, s{S_T1}, v11")
    E("v_add_u32 v10, v10, v11")
    E(f"s_lshl_b32 s{S_T0}, s{S_C}, 11")
    E(f"s_add_u32 s{S_T0}, s{S_T0}, {WS_FKV:#x}")
    E(f"s_mov_b32 s{S_SPIN}, 0x40000")
    E.label("A_pollkv")
    E(f"buffer_load_dwordx4 v[4:7], v10, {sr(WS)}, s{S_T0} offen sc1")
    E("s_waitcnt vmcnt(0)")
    E(f"v_cmp_ne_u32 vcc, s{S_TAG}, v4")
    E("s_nop 4")
    E("s_cmp_eq_u32 vcc_lo, 0")
    E("s_cbranch_scc1 A_pollkv_ok")
    E("s_sleep 2")
    E(f"s_sub_u32 s{S_SPIN}, s{S_SPIN}, 1")
    E(f"s_cmp_lg_u32 s{S_SPIN}, 0")
    E("s_cbranch_scc1 A_pollkv")
    E.label("A_pollkv_ok")
    E("s_barrier")
    if O.hint_step == 17:
        hint()
    E("s_branch A_go")
    E.label("A_wait1")
    E("s_barrier")
    E.label("A_go")
    stamp(4)
    a_kv_dma()
    E(f"buffer_load_dwordx4 {vr(QX,4)}, v{VL}, {sr(WS)}, s4 offen sc1")
    E(f"buffer_load_dwordx4 {vr(QY,4)}, v{VL}, {sr(WS)}, s4 offen offset:1024 sc1")
    for c in range(1, O.kv_first):
        a_kv_dma()
    E(f"s_cmp_lg_u32 s{S_WAVE}, 0")
    E("s_cbranch_scc1 A_nored")
    E("v_max_u32 v4, v4, v6")
    E("v_max_u32 v5, v5, v7")
    for ctl in ("row_shr:1", "row_shr:2", "row_shr:4", "row_shr:8", "row_bcast:15 row_mask:0xa"):
        E("s_nop 1")
        for r in (4, 5):
            m = "" if "row_mask" in ctl else " row_mask:0xf"
            E(f"v_max_u32_dpp v{r}, v{r}, v{r} {ctl}{m} bank_mask:0xf")
    E("s_nop 0")
    E("v_mul_f32 v4, v4, v5")
    E(f"v_mov_b32 v5, s{S_TAG}")
    E(f"v_mov_b32 v6, {5 * KVS - 8}")
    E("s_brev_b64 exec, 1")
    E("ds_write_b64 v6, v[4:5]")
    E("s_mov_b64 exec, -1")
    E("s_waitcnt lgkmcnt(0)")
    E.label("A_nored")
    E(f"s_setprio {O.prio_a_att}")
    E(f"s_waitcnt vmcnt({2*O.kv_first - (4 if O.pair and not O.kv_wait1 else 2)})")
    E("s_barrier")
    stamp(5)

    def vreads(dst, off):
        E(f"s_mov_b64 exec, s[{S_VM}:{S_VM+1}]")
        E(f"ds_read_b128 {vr(dst,4)}, v{VV} offset:{off}")
        E(f"ds_read_b128 {vr(dst+4,4)}, v{VV} offset:{off+512}")
        E("s_mov_b64 exec, -1")

    E(f"ds_read_b128 {vr(K0,4)}, v{VK}")
    vreads(V0, 0)
    E(f"v_mov_b32 v6, {5 * KVS - 8}")
    E("ds_read_b64 v[4:5], v6")
    E("s_waitcnt lgkmcnt(0)")
    E(f"v_readfirstlane_b32 s{S_T0}, v4")
    E(f"v_readfirstlane_b32 s{S_TAG}, v5")
    E(f"v_mfma_f32_32x32x16_bf16 {vr(S0,16)}, {vr(K0,4)}, {vr(QX,4)}, 0")
    E("s_nop 3")
    E(f"s_cmp_gt_u32 s{S_T0}, {THR2:#x}")
    if O.force_slow:
        E("s_branch A_slow")
    E("s_cbranch_scc1 A_slow")
    E("s_nop 7")

    def chunk_turn():
        E("s_waitcnt vmcnt(0)")
        E("s_barrier")
        E(f"s_cmp_gt_u32 s{S_CNT}, {7 - O.kv_first}")
        lab = f"A_nf{len(E.L)}"
        E(f"s_cbranch_scc1 {lab}")
        a_kv_dma()
        E.label(lab)
        if O.touch:
            E(f"s_sub_u32 s{S_T0}, s{S_CNT}, {O.wd_t0}")
            E(f"s_lshl_b32 s{S_T0}, s{S_T0}, 19")
            E("s_mov_b64 exec, 0xffff")
            E(f"s_cmp_gt_u32 s{S_T0}, {3 << 19}")
            E(f"s_cbranch_scc1 {lab}t")
            E(f"buffer_load_dword v15, v{VT}, {sr(WD)}, s{S_T0} offen")
            E.label(lab + "t")
            E(f"s_cmp_lg_u32 s{S_CNT}, {O.wo_t}")
            E(f"s_cbranch_scc1 {lab}u")
            E(f"buffer_load_dword v15, v{VT}, {sr(WO)}, 0 offen")
            E.label(lab + "u")
            E("s_mov_b64 exec, -1")
        E(f"s_add_u32 s{S_SLOT}, s{S_SLOT}, {KVS}")
        E(f"s_cmp_eq_u32 s{S_SLOT}, {5*KVS}")
        E(f"s_cselect_b32 s{S_SLOT}, 0, s{S_SLOT}")
        E(f"v_add_u32 v{VK}, s{S_SLOT}, v{VKB}")
        E(f"v_add_u32 v{VV}, s{S_SLOT}, v{VVB}")

    NT = 16 if O.pair else 8

    def next_slot():
        E(f"s_add_u32 s{S_SLOT}, s{S_SLOT}, {KVS}")
        E(f"s_cmp_eq_u32 s{S_SLOT}, {5*KVS}")
        E(f"s_cselect_b32 s{S_SLOT}, 0, s{S_SLOT}")
        E(f"v_add_u32 v{VK}, s{S_SLOT}, v{VKB}")
        E(f"v_add_u32 v{VV}, s{S_SLOT}, v{VVB}")

    def refill(lab, lo, hi):
        if lo == hi:
            E(f"s_cmp_lg_u32 s{S_CNT}, {lo}")
        else:
            E(f"s_cmp_gt_u32 s{S_CNT}, {hi}")
        E(f"s_cbranch_scc1 {lab}")
        a_kv_dma()
        E.label(lab)

    E.raw(".p2align 6")
    E.label("A_loop")
    ga, gb, gc = O.ga, O.ga + O.gb, O.ga + O.gb + O.gc
    for t in range(NT):
        blk, kt = t & 1, (t >> 1) & 3
        Sc, Sn = (S0, S1) if blk == 0 else (S1, S0)
        Oc, On = (OA, OB) if blk == 0 else (OB, OA)
        Vk, Vo = (V0, V1) if kt & 1 == 0 else (V1, V0)
        Kk, Ko = (K0, K1) if kt & 1 == 0 else (K1, K0)
        if not O.pair:
            if t == 6:
                chunk_turn()
        elif t == 6:
            if O.kv_wait1:
                E(f"s_cmp_lg_u32 s{S_CNT}, 0")
                E("s_cbranch_scc1 A_nb")
                E(f"s_waitcnt vmcnt({2 * len([x for x in (3, 5, 7)[:5 - O.kv_first] if x < 6])})")
                E("s_barrier")
                E.label("A_nb")
            next_slot()
        elif t == 14:
            E("s_waitcnt vmcnt(0)")
            E("s_barrier")
            next_slot()
        ex = lambda a, b: [E(f"v_exp_f32 v{Sc+i}, v{Sc+i}") for i in range(a, b)]
        ph = ((t + 2) % NT) * 8 // NT
        prf = lambda ph: {0: O.prio_a_att, 4: 3 - ph // 2, 2: O.prio_a_att + (1 if ph < 4 else 0), 3: O.prio_a_att + [2, 2, 2, 1, 1, 1, 0, 0][ph]}[O.bal]
        pr = prf(ph)
        if O.bal and not O.toggle and pr != prf(((t + 1) % NT) * 8 // NT):
            E(f"s_setprio {pr}")

        def mm(x):
            if O.toggle: E(f"s_setprio {O.toggle}")
            E(x)
            if O.toggle: E(f"s_setprio {pr}")
        ex(0, ga)
        mm(f"v_smfmac_f32_32x32x32_bf16 {vr(On,16)}, {vr((Vo if blk == 0 else Vk) + 4,4)}, {vr(Sn+8,8)}, v{IDX}")
        if blk == 0:
            off = ((kt + 1) % 4) * 4096
            E(f"ds_read_b128 {vr(Ko,4)}, v{VK} offset:{off}")
            vreads(Vo, off)
        ex(ga, gb)
        if blk == 1:
            E("s_waitcnt lgkmcnt(0)")
        mm(f"v_mfma_f32_32x32x16_bf16 {vr(Sn,16)}, {vr(Kk if blk == 0 else Ko,4)}, {vr(QY if blk == 0 else QX,4)}, 0")
        ex(gb, gc)
        mm(f"v_smfmac_f32_32x32x32_bf16 {vr(Oc,16)}, {vr(Vk,4)}, {vr(Sc,8)}, v{IDX}")
        if O.pair and t == 15:
            refill("A_rf0", 0, 1)
        if O.pair and t == 1:
            refill("A_rf1", 2, 2)
        if O.pair and O.kv_first < 5 and t in (3, 5, 7)[:5 - O.kv_first]:
            refill(f"A_rf{t}", 0, 0)
        ex(gc, 16)
    E(f"s_add_u32 s{S_CNT}, s{S_CNT}, 1")
    E(f"s_cmp_lt_u32 s{S_CNT}, {O.att_iters * 8 // NT}")
    E("s_cbranch_scc1 A_loop")
    E("s_nop 1")
    E(f"v_smfmac_f32_32x32x32_bf16 {vr(OB,16)}, {vr(V1+4,4)}, {vr(S1+8,8)}, v{IDX}")
    E.label("A_fin")
    stamp(6)
    E("s_setprio 3")
    E(f"s_lshr_b32 s{S_T3}, s{S_WAVE}, 2")
    E(f"s_add_u32 s{S_B}, s{S_B}, s{S_T3}")
    E(f"s_lshl_b32 s{S_T1}, s{S_WAVE}, 12")
    E(f"s_xor_b32 s{S_T2}, s{S_T1}, 16384")
    E(f"v_add_u32 v10, s{S_T1}, v{VL}")
    E(f"v_add_u32 v11, s{S_T2}, v{VL}")
    E(f"s_mul_i32 s{S_T0}, s{S_B}, 144")
    E(f"s_add_u32 s{S_T0}, s{S_T0}, s{S_D}")
    E(f"s_lshl_b32 s{S_T0}, s{S_T0}, 10")
    E(f"s_add_u32 s{S_T0}, s{S_T0}, {WS_HO + 112*1024:#x}")
    E(f"s_lshl_b32 s{S_T1}, s{S_B}, 11")
    E(f"s_lshl_b32 s{S_T2}, s{S_D}, 6")
    E(f"s_add_u32 s{S_T1}, s{S_T1}, s{S_T2}")
    E(f"s_add_u32 s{S_T1}, s{S_T1}, {WS_FO:#x}")
    if O.x_noex:
        E("s_branch A_noex")
    E(f"s_cmp_lg_u32 s{S_T3}, 0")
    E("s_cbranch_scc1 A_hi")
    for i in range(3):
        E(f"ds_write_b128 v10, {vr(OB+4*i,4)} offset:{1024*i}")
    E("s_branch A_x")
    E.label("A_hi")
    for i in range(3):
        E(f"ds_write_b128 v10, {vr(OA+4*i,4)} offset:{1024*i}")
    E("s_nop 1")
    for i in range(9):
        E(f"v_mov_b32 v{OA+i}, v{OB+i}")
    E.label("A_x")
    E("s_waitcnt lgkmcnt(0)")
    E("s_barrier")
    E(f"ds_read_b128 {vr(S0+8,4)}, v11 offset:2048")
    E(f"ds_read_b128 {vr(S0,4)}, v11")
    E(f"ds_read_b128 {vr(S0+4,4)}, v11 offset:1024")
    E("s_waitcnt lgkmcnt(2)")
    E.label("A_noex")
    E(f"v_add_f32 v12, v{OA+8}, v{S0+8}")
    E("v_rcp_f32 v12, v12")
    E("s_waitcnt lgkmcnt(0)")
    for i in range(8):
        E(f"v_add_f32 v{OA+i}, v{OA+i}, v{S0+i}")
    for i in range(8):
        E(f"v_mul_f32 v{OA+i}, v12, v{OA+i}")
    for i in range(4):
        E(f"v_cvt_pk_bf16_f32 v{S1+i}, v{OA+2*i}, v{OA+2*i+1}")
    E(f"buffer_store_dwordx4 {vr(S1,4)}, v{VL}, {sr(WS)}, s{S_T0} offen sc0 sc1")
    if not O.x_noack:
        E("s_waitcnt vmcnt(0)")
    put_flag(S_T1)
    stamp(7)
    flush_stamps(range(10), "A_st")
    E("s_endpgm")

    E.label("A_slow")
    MX, MY, T, AL = 4, 5, 6, 7
    E(f"v_mov_b32 v{MX}, 0xff7fffff")
    E(f"v_mov_b32 v{MY}, 0xff7fffff")
    E.label("A_sloop")
    E(f"s_mov_b32 s{S_T3}, 0")
    E.label("A_stile")
    E(f"ds_read_b128 {vr(K0,4)}, v{VK}")
    vreads(V0, 0)
    E(f"v_add_u32 v{VK}, 4096, v{VK}")
    E(f"v_add_u32 v{VV}, 4096, v{VV}")
    E("s_waitcnt lgkmcnt(0)")
    for (M, Q, Oc) in ((MX, QX, OA), (MY, QY, OB)):
        E(f"v_mfma_f32_32x32x16_bf16 {vr(S0,16)}, {vr(K0,4)}, {vr(Q,4)}, 0")
        E("s_nop 15")
        E(f"v_max3_f32 v{T}, v{S0}, v{S0+1}, v{M}")
        for i in range(1, 8):
            E(f"v_max3_f32 v{T}, v{S0+2*i}, v{S0+2*i+1}, v{T}")
        E(f"v_mov_b32 v{AL}, v{T}")
        E("s_nop 1")
        E(f"v_permlane32_swap_b32 v{T}, v{AL}")
        E("s_nop 1")
        E(f"v_max_f32 v{T}, v{T}, v{AL}")
        E(f"v_sub_f32 v{AL}, v{M}, v{T}")
        E(f"v_exp_f32 v{AL}, v{AL}")
        E(f"v_mov_b32 v{M}, v{T}")
        for i in range(16):
            E(f"v_sub_f32 v{S0+i}, v{S0+i}, v{T}")
        for i in range(16):
            E(f"v_exp_f32 v{S0+i}, v{S0+i}")
        for i in range(9):
            E(f"v_mul_f32 v{Oc+i}, v{AL}, v{Oc+i}")
        E("s_nop 1")
        E(f"v_smfmac_f32_32x32x32_bf16 {vr(Oc,16)}, {vr(V0,4)}, {vr(S0,8)}, v{IDX}")
        E(f"v_smfmac_f32_32x32x32_bf16 {vr(Oc,16)}, {vr(V0+4,4)}, {vr(S0+8,8)}, v{IDX}")
    E(f"s_add_u32 s{S_T3}, s{S_T3}, 1")
    E(f"s_cmp_lt_u32 s{S_T3}, 4")
    E("s_cbranch_scc1 A_stile")
    chunk_turn()
    E(f"s_add_u32 s{S_CNT}, s{S_CNT}, 1")
    E(f"s_cmp_lt_u32 s{S_CNT}, 8")
    E("s_cbranch_scc1 A_sloop")
    E(f"s_lshl_b32 s{S_T1}, s{S_WAVE}, 10")
    E(f"s_add_u32 s{S_T1}, s{S_T1}, 65536")
    E(f"s_xor_b32 s{S_T2}, s{S_T1}, 4096")
    E(f"v_add_u32 v10, s{S_T1}, v{VL}")
    E(f"v_add_u32 v11, s{S_T2}, v{VL}")
    E(f"ds_write_b64 v10, v[{MX}:{MY}]")
    E("s_waitcnt lgkmcnt(0)")
    E("s_barrier")
    E(f"ds_read_b64 v[{T}:{AL}], v11")
    E("s_waitcnt lgkmcnt(0)")
    for (M, P, Oc) in ((MX, T, OA), (MY, AL, OB)):
        E(f"v_max_f32 v{P}, v{P}, v{M}")
        E(f"v_sub_f32 v{P}, v{M}, v{P}")
        E(f"v_exp_f32 v{P}, v{P}")
        E("s_nop 0")
        for i in range(9):
            E(f"v_mul_f32 v{Oc+i}, v{P}, v{Oc+i}")
    E("s_branch A_fin")


F_XS, F_WS0, F_WSZ = 16384, 32768, 16384
WROW = 3584


def f_dma_x(u, vm):
    E(f"s_add_u32 m0, s{S_W1K}, {(u % 2) * F_XS}")
    E(f"s_add_u32 s{S_T0}, s{S_XB}, s{S_XK}")
    E(f"buffer_load_dwordx4 v1, {sr(X)}, s{S_T0} offen lds")
    E(f"s_add_u32 m0, s{S_W1K}, {(u % 2) * F_XS + 8192}")
    E(f"s_add_u32 s{S_T0}, s{S_T0}, 0x10000")
    E(f"buffer_load_dwordx4 v1, {sr(X)}, s{S_T0} offen lds")
    E(f"s_add_u32 s{S_XK}, s{S_XK}, 128")
    E(f"s_and_b32 s{S_XK}, s{S_XK}, 1023")
    vm.issue(("x", u), 2)


def f_dma_w(s, vm):
    base = F_WS0 + (s % 3) * F_WSZ
    E(f"s_add_u32 m0, s{S_W1K}, {base}")
    E("s_nop 0")
    E(f"buffer_load_dwordx4 v2, {sr(W1)}, s{S_WK} offen lds")
    E(f"s_add_u32 m0, s{S_W1K}, {base + 8192}")
    E("s_nop 0")
    E(f"buffer_load_dwordx4 v3, {sr(WU)}, s{S_WK} offen lds")
    E(f"s_add_u32 s{S_WK}, s{S_WK}, {32 * WROW}")
    E(f"s_cmp_eq_u32 s{S_WK}, {512 * WROW}")
    E(f"s_cselect_b32 s{S_WK}, 0, s{S_WK}")
    vm.issue(("w", s), 2)


def f_prologue():
    E(f"s_cmp_ge_u32 s2, {256 if O.no_f else 512}")
    E("s_cbranch_scc1 L_end")
    stamp(0)
    E(f"s_load_dwordx2 s[{X}:{X+1}], s[0:1], 0")
    E(f"s_load_dwordx2 s[{W1}:{W1+1}], s[0:1], 32")
    E(f"s_load_dwordx2 s[{WU}:{WU+1}], s[0:1], 40")
    E(f"s_load_dwordx2 s[{WS}:{WS+1}], s[0:1], 80")
    E(f"s_load_dwordx2 s[{DBG}:{DBG+1}], s[0:1], 72")
    E(f"s_load_dwordx2 s[{WD}:{WD+1}], s[0:1], 48")
    E(f"s_load_dwordx2 s[{WO}:{WO+1}], s[0:1], 16")
    E(f"s_load_dwordx2 s[{OUT}:{OUT+1}], s[0:1], 64")
    E(f"s_load_dwordx2 s[{GW}:{GW+1}], s[0:1], 56")
    E("v_lshrrev_b32 v8, 6, v0")
    E(f"s_bfe_u32 s{S_C}, s2, 0x50003")
    E(f"v_readfirstlane_b32 s{S_WAVE}, v8")
    E(f"s_cmp_ge_u32 s{S_C}, 28")
    E("s_cbranch_scc0 F_main")
    E("s_getpc_b64 s[4:5]")
    E.label("F_pc")
    E(f"s_add_u32 s4, s4, CODE_START - F_pc")
    E("s_addc_u32 s5, s5, -1")
    E("s_mov_b32 s6, CODE_END - CODE_START")
    E("s_mov_b32 s7, 0x20000")
    E("v_lshlrev_b32 v9, 7, v0")
    E("buffer_load_dword v120, v9, s[4:7], 0 offen")
    E("s_branch F_main")


def f_main():
    E.label("F_main")
    srd(X, 0x200000); srd(W1, 512 * WROW); srd(WU, 512 * WROW); srd(WS, WS_SIZE); srd(DBG, 256)
    srd(WD, 1792 * 1024); srd(WO, 512 * 1024); srd(OUT, 0x200000); srd(GW, 1024)
    E(f"s_lshl_b32 s{S_W1K}, s{S_WAVE}, 10")
    E(f"s_setprio {O.prio_f if O.prio_up < 0 else O.prio_up}")
    E("v_lshrrev_b32 v9, 3, v0")
    E("v_lshrrev_b32 v10, 4, v0")
    E("v_xor_b32 v11, v10, v0")
    E("v_and_b32 v11, 7, v11")
    E("v_lshlrev_b32 v11, 4, v11")
    E("v_lshl_add_u32 v1, v9, 10, v11")
    E("s_waitcnt lgkmcnt(0)")
    if O.only_down:
        stamp(1); stamp(2); stamp(3); stamp(10); stamp(11); stamp(12)
        E("s_branch F_pub")
    if O.warm_steps:
        E(f"s_cmp_lt_u32 s{S_WAVE}, 4")
        E(f"s_cselect_b32 s4, s{W1}, s{WU}")
        E(f"s_cselect_b32 s5, s{W1+1}, s{WU+1}")
        E(f"s_mul_i32 s{S_T0}, s{S_C}, {WROW}")
        E(f"s_bfe_u32 s{S_T1}, s2, 0x10002")
        E(f"s_mul_i32 s{S_T1}, s{S_T1}, 1792")
        E(f"s_add_u32 s{S_T0}, s{S_T0}, s{S_T1}")
        E(f"s_and_b32 s{S_T1}, s{S_WAVE}, 3")
        E(f"s_mul_i32 s{S_T1}, s{S_T1}, 448")
        E(f"s_add_u32 s{S_T0}, s{S_T0}, s{S_T1}")
        E(f"s_add_u32 s4, s4, s{S_T0}")
        E("s_addc_u32 s5, s5, 0")
        E(f"s_mov_b32 s{S_CNT}, {O.warm_steps}")
        E.label("F_warm")
        for i in range(7):
            E(f"s_load_dword s6, s[4:5], {64*i}")
        E(f"s_add_u32 s4, s4, {32 * WROW}")
        E("s_addc_u32 s5, s5, 0")
        E(f"s_sub_u32 s{S_CNT}, s{S_CNT}, 1")
        E(f"s_cmp_lg_u32 s{S_CNT}, 0")
        E("s_cbranch_scc1 F_warm")
        E("s_waitcnt lgkmcnt(0)")
    if O.f_touch:
        E(f"s_lshl_b32 s{S_T0}, s{S_C}, 2")
        E(f"s_and_b32 s{S_T1}, s{S_WAVE}, 3")
        E(f"s_add_u32 s{S_T0}, s{S_T0}, s{S_T1}")
        E(f"s_mul_i32 s{S_T0}, s{S_T0}, {2 * 3584}")
        E(f"s_bfe_u32 s{S_T1}, s2, 0x10002")
        E(f"s_mul_i32 s{S_T1}, s{S_T1}, 1792")
        E(f"s_add_u32 s{S_T0}, s{S_T0}, s{S_T1}")
        E("v_bfe_u32 v12, v0, 4, 1")
        E("v_mul_u32_u24 v12, 3584, v12")
        E("v_and_b32 v13, 15, v0")
        E("v_lshl_add_u32 v12, v13, 7, v12")
        E(f"v_add_u32 v13, s{S_T0}, v12")
        E(f"s_cmp_lt_u32 s{S_WAVE}, 4")
        E(f"s_cselect_b32 s4, s{W1}, s{WU}")
        E(f"s_cselect_b32 s5, s{W1+1}, s{WU+1}")
        E(f"s_mov_b32 s6, {512 * WROW}")
        E("s_mov_b32 s7, 0x20000")
        if O.f_touch == 1:
            E("s_mov_b64 exec, 1")
            E(f"buffer_load_dword v15, v13, s[4:7], 0 offen")
            E("s_waitcnt vmcnt(0)")
            E("s_mov_b64 exec, 0x3fff3fff")
            E(f"buffer_load_dword v15, v13, s[4:7], 0 offen")
            E("s_mov_b64 exec, -1")
    E(f"s_cmp_ge_u32 s{S_C}, 28")
    E("s_cbranch_scc1 F_gate")
    E(f"s_and_b32 s{S_T0}, s{S_C}, 3")
    E(f"s_lshr_b32 s{S_T1}, s{S_C}, 2")
    E(f"s_and_b32 s{S_A}, s2, 3")
    E(f"s_lshl_b32 s{S_A}, s{S_A}, 2")
    E(f"s_add_u32 s{S_A}, s{S_A}, s{S_T0}")
    E(f"s_bfe_u32 s{S_B}, s2, 0x10002")
    E(f"s_mul_i32 s{S_B}, s{S_B}, 7")
    E(f"s_add_u32 s{S_B}, s{S_B}, s{S_T1}")
    E(f"s_lshl_b32 s{S_T0}, s{S_T0}, 1")
    E(f"s_add_u32 s{S_T0}, s{S_T0}, s{S_T1}")
    E(f"s_and_b32 s{S_T0}, s{S_T0}, {7 if O.f_rot else 0}")
    E(f"s_lshl_b32 s{S_XK}, s{S_T0}, 7")
    E(f"s_mul_i32 s{S_WK}, s{S_T0}, {64 * WROW}")
    E(f"s_lshl_b32 s{S_XB}, s{S_A}, 17")
    E(f"v_mul_u32_u24 v9, {WROW}, v10")
    E("v_bfe_u32 v11, v0, 1, 3")
    E("v_and_b32 v10, 3, v10")
    E("v_xor_b32 v11, v11, v10")
    E("v_lshl_add_u32 v9, v11, 5, v9")
    E("v_and_b32 v11, 1, v0")
    E("v_lshl_add_u32 v9, v11, 4, v9")
    E(f"s_lshl_b32 s{S_T0}, s{S_B}, 8")
    E(f"v_add_u32 v2, s{S_T0}, v9")
    E("v_xor_b32 v3, 128, v2")
    vm = VM()

    def fill():
        f_dma_x(0, vm); f_dma_w(0, vm); f_dma_w(1, vm); f_dma_x(1, vm); f_dma_w(2, vm)

    if O.f_fill_early:
        fill()
    E("v_and_b32 v8, 31, v0")
    E("v_lshrrev_b32 v9, 1, v8")
    E("v_and_b32 v9, 7, v9")
    E("v_bfe_u32 v10, v0, 5, 1")
    E("v_xor_b32 v9, v9, v10")
    E("v_lshlrev_b32 v9, 4, v9")
    E("v_lshl_add_u32 v9, v8, 7, v9")
    E("v_bfe_u32 v8, v0, 6, 1")
    E("v_lshl_add_u32 v4, v8, 13, v9")
    for ks in (1, 2, 3):
        E(f"v_xor_b32 v{4+ks}, {32*ks}, v4")
    E("v_bfe_u32 v8, v0, 2, 2")
    E("v_lshl_add_u32 v9, v10, 3, v8")
    E("v_lshlrev_b32 v9, 8, v9")
    E("v_bfe_u32 v10, v0, 4, 1")
    E("v_lshl_add_u32 v9, v10, 13, v9")
    E("v_lshlrev_b32 v10, 2, v10")
    E("v_xor_b32 v8, v8, v10")
    E("v_lshrrev_b32 v10, 7, v0")
    E("v_lshlrev_b32 v10, 1, v10")
    E("v_xor_b32 v8, v8, v10")
    E("v_lshl_add_u32 v9, v8, 5, v9")
    E("v_and_b32 v8, 3, v0")
    E("v_lshl_add_u32 v9, v8, 3, v9")
    E(f"v_add_u32 v8, {F_WS0}, v9")
    E("v_xor_b32 v9, 32, v8")
    E(f"s_cmp_lg_u32 s{S_WAVE}, 0")
    E("s_cbranch_scc1 F_go")
    wait_start("F_tag", 1 if O.hint1 >= 0 else 0)
    E.label("F_go")
    if not O.f_fill_early:
        E("s_barrier")
        if O.f_touch == 3:
            f_dma_x(0, vm); f_dma_w(0, vm)
        if O.f_touch >= 2:
            E("s_mov_b64 exec, 0x3fff3fff")
            E(f"buffer_load_dword v15, v13, s[4:7], 0 offen")
            E("s_mov_b64 exec, -1")
            vm.issue("t")
        if O.f_touch == 3:
            f_dma_w(1, vm); f_dma_x(1, vm); f_dma_w(2, vm)
        else:
            fill()
    stamp(1)

    def reads(s, kk):
        b = 16 + 16 * kk
        u = s // 2
        L = []
        for i in (0, 1):
            L.append(f"ds_read_b128 {vr(b+4*i,4)}, v{4 + 2*(s&1) + kk} offset:{(u % 2) * F_XS + i * 4096}")
            for q in (0, 1):
                L.append(f"ds_read_b64_tr_b16 {vr(b+8+4*i+2*q,2)}, v{8+i} offset:{(s % 3) * F_WSZ + kk * 4096 + q * 1024}")
        return L

    def mfmas(s, kk):
        b = 16 + 16 * kk
        L = []
        for rbk, bb in ((0, 0), (0, 1), (1, 1), (1, 0)):
            acc = vr(64 + 16 * (2 * rbk + bb), 16)
            c = "0" if (s == 0 and kk == 0) else acc
            L.append(f"v_mfma_f32_32x32x16_bf16 {acc}, {vr(b+8+4*bb,4)}, {vr(b+4*rbk,4)}, {c}")
        return L

    E(f"s_waitcnt vmcnt({vm.need(('x',0),('w',0))})")
    E("s_barrier")
    stamp(2)
    for x in reads(0, 0):
        E(x)
    def paced(s, kk):
        M, R = mfmas(s, kk), reads(s, kk)
        [E(x) for x in R[:3]]; E("s_waitcnt lgkmcnt(0)"); E(M[0])
        [E(x) for x in R[4:]]; E("s_waitcnt lgkmcnt(0)"); E(M[1])
        E(R[3]); E("s_waitcnt lgkmcnt(0)"); E(M[2]); E(M[3])

    for s in range(16):
        if s > O.pace_from:
            paced(s, 0)
            paced(s, 1)
            if s < 15:
                E(f"s_waitcnt vmcnt({vm.need(('x',(s+1)//2),('w',s+1))})")
                E("s_barrier")
                if s + 3 <= 15:
                    f_dma_w(s + 3, vm)
                if s % 2 == 1 and (s + 1) // 2 + 1 <= 7:
                    f_dma_x((s + 1) // 2 + 1, vm)
                if s in (3, 7, 11):
                    stamp(10 + s // 4)
            continue
        if O.boost_mask and (s == 0 or ((O.boost_mask >> s) ^ (O.boost_mask >> (s - 1))) & 1):
            E(f"s_setprio {O.prio_boost if (O.boost_mask >> s) & 1 else O.prio_f}")
        M, R = mfmas(s, 0), reads(s, 1)
        E("s_waitcnt lgkmcnt(0)")
        E(M[0]); [E(x) for x in R[:3]]; E(M[1]); [E(x) for x in R[3:]]; E(M[2]); E(M[3])
        M = mfmas(s, 1)
        if s == 2 and O.hint1 >= 0 and O.hold:
            E("s_waitcnt lgkmcnt(0)")
            [E(x) for x in M]
            E(f"s_cmp_lg_u32 s{S_WAVE}, 0")
            E("s_cbranch_scc1 F_go2")
            wait_start("F_tag2", 0, False)
            E.label("F_go2")
            E("s_barrier")
            f_dma_w(3, vm); f_dma_w(4, vm); f_dma_x(2, vm); f_dma_w(5, vm)
            E(f"s_waitcnt vmcnt({vm.need(('w', 3))})")
            E("s_barrier")
            [E(x) for x in reads(3, 0)]
            continue
        if s < 15:
            E(f"s_waitcnt vmcnt({vm.need(('x',(s+1)//2),('w',s+1))}) lgkmcnt(0)")
            E("s_barrier")
            R = reads(s + 1, 0) if s + 1 <= O.pace_from else []
            E(M[0]); [E(x) for x in R[:3]]; E(M[1]); [E(x) for x in R[3:]]; E(M[2])
            hold = O.hint1 >= 0 and O.hold and s < 2
            if s + 3 <= 15 and not hold:
                f_dma_w(s + 3, vm)
            E(M[3])
            if s % 2 == 1 and (s + 1) // 2 + 1 <= 7 and not hold:
                f_dma_x((s + 1) // 2 + 1, vm)
            if O.f_wd and O.wd_step <= s < O.wd_step + O.wd_parts:
                E(f"s_lshl_b32 s{S_T0}, s{S_C}, 16")
                E("v_lshlrev_b32 v11, 7, v0")
                if O.wd_parts > 1:
                    n = 64 // O.wd_parts
                    m = ((1 << n) - 1) << (n * (s - O.wd_step))
                    E(f"s_mov_b32 exec_lo, {m & 0xffffffff:#x}")
                    E(f"s_mov_b32 exec_hi, {m >> 32:#x}")
                E(f"buffer_load_dword v15, v11, {sr(WD)}, s{S_T0} offen")
                if O.wd_parts > 1:
                    E("s_mov_b64 exec, -1")
                vm.issue("wd")
            if s == O.f_touch2:
                E(f"s_mov_b32 s{S_T0}, {256 * 3584}")
                E("s_mov_b64 exec, 0x3fff3fff")
                E(f"buffer_load_dword v15, v13, s[4:7], s{S_T0} offen")
                E("s_mov_b64 exec, -1")
                vm.issue("t2")
            if s in (3, 7, 11) and not O.dn_stamps:
                stamp(10 + s // 4)
        else:
            E("s_waitcnt lgkmcnt(0)")
            [E(x) for x in M]
    stamp(3)
    if O.a_exit:
        flush_stamps(range(13), "F_st0")
        E("s_endpgm")
    E(f"s_setprio {O.prio_silu}")
    if O.wo_early:
        voff_w()
        E("s_barrier")
    if O.wo_early == 1:
        wo_stage()
    E(f"s_and_b32 s{S_T0}, s{S_WAVE}, 1")
    E(f"s_lshl_b32 s{S_T0}, s{S_T0}, 1")
    E(f"s_lshl_b32 s{S_T1}, s{S_A}, 2")
    E(f"s_add_u32 s{S_T0}, s{S_T0}, s{S_T1}")
    E(f"s_mul_i32 s{S_T0}, s{S_T0}, 144")
    E(f"s_lshl_b32 s{S_T1}, s{S_B}, 3")
    E(f"s_add_u32 s{S_T0}, s{S_T0}, s{S_T1}")
    E(f"s_and_b32 s{S_T1}, s{S_WAVE}, 6")
    E(f"s_add_u32 s{S_T0}, s{S_T0}, s{S_T1}")
    E(f"s_lshl_b32 s{S_T0}, s{S_T0}, 10")
    E(f"s_add_u32 s{S_T0}, s{S_T0}, {WS_HO:#x}")
    E(f"s_add_u32 s{S_T1}, s{S_T0}, {144 * 1024}")
    E(f"s_mov_b32 s{S_T2}, {NLOG2E:#x}")
    E(f"s_mov_b32 s{S_T3}, {NLOG2E:#x}")
    E("v_and_b32 v10, 63, v0")
    E("v_lshlrev_b32 v10, 4, v10")
    E("v_mov_b32 v12, 1.0")
    E("v_mov_b32 v13, 1.0")
    E("s_nop 4")
    for tl in range(4):
        a = 64 + 16 * tl
        t = 16 + 8 * (tl & 1)
        pk = 32 + 4 * tl
        for i in range(4):
            E(f"v_pk_mul_f32 {vr(t+2*i,2)}, {vr(a+2*i,2)}, s[{S_T2}:{S_T3}]")
        for i in range(8):
            E(f"v_exp_f32 v{t+i}, v{t+i}")
        for i in range(4):
            E(f"v_pk_mul_f32 {vr(a+2*i,2)}, {vr(a+2*i,2)}, {vr(a+8+2*i,2)}")
        for i in range(4):
            E(f"v_pk_add_f32 {vr(t+2*i,2)}, {vr(t+2*i,2)}, v[12:13]")
        for i in range(8):
            E(f"v_rcp_f32 v{t+i}, v{t+i}")
        E("s_nop 0")
        for i in range(4):
            E(f"v_pk_mul_f32 {vr(a+2*i,2)}, {vr(a+2*i,2)}, {vr(t+2*i,2)}")
        for i in range(4):
            E(f"v_cvt_pk_bf16_f32 v{pk+i}, v{a+2*i}, v{a+2*i+1}")
        E(f"buffer_store_dwordx4 {vr(pk,4)}, v10, {sr(WS)}, s{S_T0 + (tl >> 1)} offen offset:{(tl & 1) * 1024} sc0 sc1")
    if O.wo_early == 2:
        wo_stage()
    E(f"s_lshl_b32 s{S_T0}, s{S_A}, 10")
    E(f"s_lshl_b32 s{S_T1}, s{S_B}, 6")
    E(f"s_add_u32 s{S_T0}, s{S_T0}, s{S_T1}")
    E.label("F_pub")
    E(f"s_add_u32 s{S_T0}, s{S_T0}, {WS_FH:#x}")
    E(f"s_waitcnt vmcnt({8 if O.wo_early == 2 else 0})")
    E("s_barrier")
    stamp(4)
    E(f"s_and_b32 s{S_A}, s2, 7")
    E(f"s_lshl_b32 s{S_A}, s{S_A}, 2")
    E(f"s_and_b32 s{S_T1}, s{S_C}, 3")
    E(f"s_add_u32 s{S_A}, s{S_A}, s{S_T1}")
    E(f"s_lshr_b32 s{S_B}, s{S_C}, 2")
    E(f"s_cmp_lg_u32 s{S_WAVE}, 0")
    if O.only_down:
        E("s_branch F_wait2")
    E("s_cbranch_scc1 F_wait2")
    put_flag(S_T0)
    E.label("F_wait2")
    E("v_and_b32 v8, 63, v0")
    E("v_lshlrev_b32 v12, 4, v8")
    E(f"s_and_b32 s{S_T0}, s{S_WAVE}, 1")
    E(f"s_mul_i32 s{S_T1}, s{S_T0}, 144")
    E(f"s_lshr_b32 s{S_T2}, s{S_WAVE}, 1")
    E(f"s_add_u32 s{S_T1}, s{S_T1}, s{S_T2}")
    E(f"s_lshl_b32 s{S_T1}, s{S_T1}, 10")
    E(f"v_add_u32 v1, s{S_T1}, v12")
    E(f"s_lshl_b32 s{S_T1}, s{S_T0}, 2")
    E(f"s_add_u32 s{S_T1}, s{S_T1}, s{S_T2}")
    E(f"s_lshl_b32 s{S_D}, s{S_T1}, 10")
    E("v_bfe_u32 v10, v0, 4, 1")
    if not O.wo_early:
        voff_w()
    E(f"s_lshl_b32 s{S_T0}, s{S_T0}, 12")
    E(f"s_lshr_b32 s{S_T1}, s{S_WAVE}, 2")
    E(f"s_lshl_b32 s{S_T1}, s{S_T1}, 11")
    E(f"s_add_u32 s{S_T0}, s{S_T0}, s{S_T1}")
    E(f"v_add_u32 v4, s{S_T0}, v12")
    E("v_bfe_u32 v8, v0, 2, 2")
    E("v_bfe_u32 v9, v0, 5, 1")
    E("v_lshl_add_u32 v9, v9, 2, v8")
    E("v_lshrrev_b32 v11, 8, v0")
    E("v_lshl_add_u32 v9, v11, 5, v9")
    E("v_lshlrev_b32 v9, 7, v9")
    E("v_lshrrev_b32 v8, 1, v8")
    E("v_bfe_u32 v11, v0, 7, 1")
    E("v_xor_b32 v8, v8, v11")
    E("v_lshl_add_u32 v9, v8, 6, v9")
    E("v_lshl_add_u32 v9, v10, 5, v9")
    E("v_and_b32 v8, 3, v0")
    E("v_lshl_add_u32 v9, v8, 3, v9")
    E("v_add_u32 v5, 8192, v9")
    _m_fix_base()
    E(f"s_mul_i32 s{S_T0}, s{S_B}, 7")
    E(f"s_lshr_b32 s{S_T0}, s{S_T0}, 1")
    E(f"s_and_b32 s{S_T1}, s{S_C}, 3")
    E(f"s_mul_i32 s{S_T1}, s{S_T1}, 7")
    E(f"s_add_u32 s{S_T0}, s{S_T0}, s{S_T1}")
    E(f"s_cmp_ge_u32 s{S_T0}, 28")
    E(f"s_cselect_b32 s{S_T1}, 28, 0")
    E(f"s_sub_u32 s{S_XK}, s{S_T0}, s{S_T1}")
    if not O.d_rot:
        E(f"s_mov_b32 s{S_XK}, 0")
    if O.h_touch:
        E(f"s_lshl_b32 s{S_T0}, s{S_B}, 3")
        E(f"s_add_u32 s{S_T0}, s{S_T0}, s{S_WAVE}")
        E(f"s_mul_i32 s{S_T0}, s{S_T0}, 1792")
        E(f"s_add_u32 s{S_T2}, s{S_T0}, s{S_XB}")
        E("v_and_b32 v8, 15, v0")
        E("v_lshlrev_b32 v8, 7, v8")
        E("v_bfe_u32 v9, v0, 4, 1")
        E(f"v_mul_u32_u24 v9, {144 * 1024}, v9")
        E("v_add_u32 v8, v8, v9")
    if not O.wo_early:
        wo_stage()
    E(f"s_lshr_b32 s{S_T1}, s{S_WAVE}, 2")
    E(f"s_mul_i32 s{S_T0}, s{S_T1}, 28672")
    E(f"s_sub_u32 s{S_T0}, s{S_T0}, 8192")
    E(f"v_add_u32 v9, s{S_T0}, v5")
    if O.wo_early != 1:
        E("s_waitcnt vmcnt(0)")
        E("s_barrier")
    wf = lambda k: (48 + 4 * k) if k < 4 else (80 + 4 * (k - 4))
    for k in range(16):
        for q in (0, 1):
            E(f"ds_read_b64_tr_b16 {vr(wf(k) + 2*q, 2)}, v9 offset:{k * 2048 + q * 1024}")
    E(f"s_cmp_lg_u32 s{S_WAVE}, 0")
    if O.only_down:
        E("s_branch F_wait2b")
    E("s_cbranch_scc1 F_wait2b")
    E("v_and_b32 v10, 15, v0")
    E("v_lshlrev_b32 v10, 6, v10")
    E(f"s_lshr_b32 s{S_T0}, s{S_A}, 1")
    E(f"s_lshl_b32 s{S_T0}, s{S_T0}, 10")
    E(f"s_add_u32 s{S_T0}, s{S_T0}, {WS_FH:#x}")
    poll("F_pollh", 10, f"s{S_T0}")
    E.label("F_wait2b")
    E("s_waitcnt lgkmcnt(0)")
    E("s_barrier")
    stamp(5)

    NS = O.dn_ns
    vd = VM()

    def dma(st):
        slot = st % NS
        E(f"s_add_u32 m0, s{S_D}, {slot * 16384}")
        if O.d_rot:
            E(f"s_lshl_b32 s{S_T0}, s{S_XK}, 12")
            E(f"s_add_u32 s{S_T0}, s{S_T0}, s{S_XB}")
        else:
            E(f"s_add_u32 s{S_T0}, s{S_XB}, {st * 4096}")
        E(f"buffer_load_dwordx4 v1, {sr(WS)}, s{S_T0} offen sc1 lds")
        E(f"s_add_u32 m0, s{S_W1K}, {slot * 16384 + 8192}")
        if O.d_rot:
            E(f"s_lshl_b32 s{S_T0}, s{S_XK}, 16")
        else:
            E(f"s_mov_b32 s{S_T0}, {st * 65536}")
        E(f"buffer_load_dwordx4 v2, {sr(WD)}, s{S_T0} offen lds")
        if O.d_rot:
            E(f"s_add_u32 s{S_XK}, s{S_XK}, 1")
            E(f"s_cmp_eq_u32 s{S_XK}, 28")
            E(f"s_cselect_b32 s{S_XK}, 0, s{S_XK}")
        vd.issue(st, 2)

    def greads(st):
        slot = st % NS
        b = 16 + 16 * (st & 1)
        vb, vw, base = (4, 5, slot * 16384) if slot < 4 else (3, 13, 0)
        L = []
        for kk in (0, 1):
            L.append(f"ds_read_b128 {vr(b+4*kk,4)}, v{vb} offset:{base + kk * 1024}")
            for q in (0, 1):
                L.append(f"ds_read_b64_tr_b16 {vr(b+8+4*kk+2*q,2)}, v{vw} offset:{base + kk * 2048 + q * 1024}")
        return L

    for t in range(O.ht_pos):
        dma(t)
    if O.h_touch:
        E("s_mov_b64 exec, 0x3fff3fff")
        E(f"buffer_load_dword v15, v8, {sr(WS)}, s{S_T2} offen sc1")
        E("s_mov_b64 exec, -1")
        vd.issue("h")
    E("v_and_b32 v8, 31, v0")
    E("v_bfe_u32 v9, v0, 6, 1")
    E("v_lshl_add_u32 v8, v9, 5, v8")
    E("v_lshlrev_b32 v9, 2, v8")
    E(f"s_lshl_b32 s{S_T0}, s{S_A}, 8")
    E(f"s_add_u32 s{S_T0}, s{S_T0}, {WS_G:#x}")
    E(f"buffer_load_dword v14, v9, {sr(WS)}, s{S_T0} offen sc1")
    vd.issue("g")
    for t in range(O.ht_pos, NS):
        dma(t)
    issued = NS
    E("v_add_u32 v3, 0x10000, v4")
    E("v_add_u32 v13, 0x10000, v5")
    E(f"s_setprio {O.prio_f if O.prio_dn < 0 else O.prio_dn}")
    bars = [t for t in range(27) if t >= O.dn_grp_until or t % O.dn_grp == O.dn_grp - 1]
    E(f"s_waitcnt vmcnt({vd.need(*range(0, bars[0] + 1))})")
    E("s_barrier")
    [E(x) for x in greads(0)]
    for t in range(28):
        b = 16 + 16 * (t & 1)
        M = [f"v_mfma_f32_32x32x16_bf16 v[64:79], {vr(b+8+4*kk,4)}, {vr(b+4*kk,4)}, {'0' if t + kk == 0 else 'v[64:79]'}" for kk in (0, 1)]
        if t == O.dn_low:
            E(f"s_setprio {O.prio_f_late}")
        if O.dn_stamps and t in (4, 12, 20):
            stamp(10 + t // 8)
        if t in bars:
            nxt = min([x for x in bars if x > t] + [27])
            E(f"s_waitcnt vmcnt({vd.need(*range(t + 1, nxt + 1))}) lgkmcnt(0)")
            E("s_barrier")
        else:
            E("s_waitcnt lgkmcnt(0)")
        R = greads(t + 1) if t < 27 else []
        E(M[0]); [E(x) for x in R[:3]]; E(M[1]); [E(x) for x in R[3:]]
        if t in bars:
            while issued <= min(27, t + NS):
                dma(issued)
                issued += 1
    stamp(6)
    E("s_setprio 3")
    if O.only_down:
        flush_stamps(range(13), "F_st1")
        E("s_endpgm")
    E("v_and_b32 v8, 31, v0")
    E("v_bfe_u32 v9, v0, 6, 1")
    E("v_lshl_add_u32 v8, v9, 5, v8")
    E(f"s_lshr_b32 s{S_T1}, s{S_WAVE}, 2")
    E(f"s_bfe_u32 s{S_T2}, s{S_WAVE}, 0x10001")
    E(f"s_lshl_b32 s{S_T2}, s{S_T2}, 4")
    E(f"s_add_u32 s{S_T2}, s{S_T2}, s{S_T1}")
    E(f"s_and_b32 s{S_T3}, s{S_WAVE}, 1")
    E(f"s_lshl_b32 s{S_D}, s{S_T3}, 5")
    E(f"s_add_u32 s{S_D}, s{S_D}, s{S_T2}")
    E(f"s_lshl_b32 s{S_D}, s{S_D}, 10")
    E(f"s_mul_i32 s{S_T0}, s{S_T3}, 144")
    E(f"s_add_u32 s{S_T0}, s{S_T0}, s{S_T2}")
    E(f"s_add_u32 s{S_T0}, s{S_T0}, 112")
    E(f"s_lshl_b32 s{S_T0}, s{S_T0}, 10")
    E(f"s_add_u32 s{S_XB}, s{S_XB}, s{S_T0}")
    E(f"s_lshl_b32 s{S_T3}, s{S_T3}, 15")
    E(f"s_lshl_b32 s{S_T1}, s{S_T1}, 14")
    E(f"s_add_u32 s{S_T3}, s{S_T3}, s{S_T1}")
    E(f"v_add_u32 v4, s{S_T3}, v12")
    out_addr()
    E("v_sub_f32 v15, 1.0, v14")
    for i in range(16):
        E(f"v_mul_f32 v{64+i}, v15, v{64+i}")
    E(f"s_cmp_lg_u32 s{S_WAVE}, 0")
    E("s_cbranch_scc1 F_wait3")
    E("v_lshlrev_b32 v10, 6, v0")
    E(f"s_lshl_b32 s{S_T0}, s{S_A}, 12")
    E(f"s_add_u32 s{S_T0}, s{S_T0}, {WS_FO:#x}")
    poll("F_pollo", 10, f"s{S_T0}", O.piped & 2)
    E("s_waitcnt vmcnt(0)")
    E.label("F_wait3")
    E("s_waitcnt lgkmcnt(0)")
    E("s_barrier")
    stamp(7)
    for i in range(8):
        E(f"s_add_u32 m0, s{S_D}, {i * 2048}")
        E(f"s_add_u32 s{S_T0}, s{S_XB}, {i * 2048}")
        E(f"buffer_load_dwordx4 v12, {sr(WS)}, s{S_T0} offen sc1 lds")
    NQ = O.o_parts
    per = 16 // NQ
    for part in range(NQ):
        E(f"s_waitcnt vmcnt({8 - (part + 1) * 8 // NQ})")
        E("s_barrier")
        for k in range(min(4, per)):
            E(f"ds_read_b128 {vr(32 + 4*k, 4)}, v4 offset:{(per * part + k) * 1024}")
        for k in range(per):
            E(f"s_waitcnt lgkmcnt({min(3, per - 1 - k)})")
            E(f"v_mfma_f32_32x32x16_bf16 v[16:31], {vr(wf(per*part + k), 4)}, {vr(32 + 4*(k % 4), 4)}, {'0' if part + k == 0 else 'v[16:31]'}")
            if k + 4 < per:
                E(f"ds_read_b128 {vr(32 + 4*(k % 4), 4)}, v4 offset:{(per * part + 4 + k) * 1024}")
    if O.twice:
        E(f"s_mov_b32 s{S_CNT}, 0")
        E.label("F_tw")
    stamp(8)
    E("s_nop 11")
    for i in range(16):
        E(f"v_fmac_f32 v{64+i}, v14, v{16+i}")
    E(f"s_cmp_ge_u32 s{S_WAVE}, 4")
    E("s_cbranch_scc1 F_hi")
    E("ds_write_b128 v6, v[72:75]")
    E("ds_write_b128 v6, v[76:79] offset:1024")
    E("s_branch F_x")
    E.label("F_hi")
    E("ds_write_b128 v6, v[64:67]")
    E("ds_write_b128 v6, v[68:71] offset:1024")
    E("s_nop 1")
    for i in range(8):
        E(f"v_mov_b32 v{64+i}, v{72+i}")
    E.label("F_x")
    E("s_waitcnt lgkmcnt(0)")
    E("s_barrier")
    E("ds_read_b128 v[80:83], v7")
    E("ds_read_b128 v[84:87], v7 offset:1024")
    E("s_waitcnt lgkmcnt(0)")
    for i in range(8):
        E(f"v_add_f32 v{64+i}, v{64+i}, v{80+i}")
    for i in range(4):
        E(f"v_cvt_pk_bf16_f32 v{16+i}, v{64+2*i}, v{65+2*i}")
    E("s_nop 1")
    E("v_permlane32_swap_b32 v16, v18")
    E("v_permlane32_swap_b32 v17, v19")
    E(f"buffer_store_dwordx4 v[16:19], v8, {sr(OUT)}, s{S_XK} offen")
    stamp(9)
    if O.twice:
        E("s_barrier")
        E(f"s_add_u32 s{S_CNT}, s{S_CNT}, 1")
        E(f"s_cmp_lt_u32 s{S_CNT}, 2")
        E("s_cbranch_scc1 F_tw")
    flush_stamps(range(13), "F_st")
    E("s_endpgm")

    E.label("F_gate")
    if O.a_exit:
        E("s_endpgm")
    E(f"s_cmp_lg_u32 s{S_WAVE}, 0")
    E("s_cbranch_scc1 F_gate1")
    wait_start("F_tag3")
    E.label("F_gate1")
    E("s_setprio 3")
    E("s_barrier")
    E(f"s_and_b32 s{S_A}, s2, 7")
    E(f"s_lshl_b32 s{S_A}, s{S_A}, 2")
    E(f"s_add_u32 s{S_A}, s{S_A}, s{S_C}")
    E(f"s_sub_u32 s{S_A}, s{S_A}, 28")
    E(f"s_lshl_b32 s{S_T0}, s{S_A}, 16")
    E("v_and_b32 v10, 7, v0")
    E("v_lshlrev_b32 v10, 4, v10")
    E("v_lshl_add_u32 v11, v9, 10, v10")
    for i in range(8):
        E(f"buffer_load_dwordx4 {vr(16+4*i,4)}, v11, {sr(X)}, s{S_T0} offen offset:{128*i}")
    for i in range(8):
        E(f"buffer_load_dwordx4 {vr(48+4*i,4)}, v10, {sr(GW)}, 0 offen offset:{128*i}")
    E("v_mov_b32 v12, 0")
    E("v_mov_b32 v13, 0")
    E("s_waitcnt vmcnt(0)")
    for i in range(32):
        E(f"v_dot2_f32_bf16 v{12 + (i & 1)}, v{16+i}, v{48+i}, v{12 + (i & 1)}")
        if i % 2 == 1:
            E("s_nop 0")
    E("s_nop 2")
    E("v_add_f32 v12, v12, v13")
    for ctl in ("quad_perm:[1,0,3,2]", "quad_perm:[2,3,0,1]", "row_half_mirror"):
        E("s_nop 1")
        E(f"v_add_f32_dpp v12, v12, v12 {ctl} row_mask:0xf bank_mask:0xf")
    E(f"v_mul_f32 v12, {NLOG2E:#x}, v12")
    E("v_exp_f32 v12, v12")
    E("s_nop 0")
    E("v_add_f32 v12, 1.0, v12")
    E("v_rcp_f32 v12, v12")
    E("v_lshlrev_b32 v11, 2, v9")
    E(f"s_lshl_b32 s{S_T0}, s{S_A}, 8")
    E(f"s_add_u32 s{S_T0}, s{S_T0}, {WS_G:#x}")
    E("v_cmp_eq_u32 vcc, 0, v10")
    E("s_nop 4")
    E("s_mov_b64 exec, vcc")
    E(f"buffer_store_dword v12, v11, {sr(WS)}, s{S_T0} offen sc0 sc1")
    E("s_mov_b64 exec, -1")
    if O.f_wd:
        E(f"s_and_b32 s{S_T0}, s{S_C}, 3")
        E(f"s_lshl_b32 s{S_T0}, s{S_T0}, 17")
        E(f"s_add_u32 s{S_T1}, s{S_T0}, 0x10000")
        E("v_lshlrev_b32 v11, 7, v0")
        E(f"buffer_load_dword v15, v11, {sr(WO)}, s{S_T0} offen")
        E(f"buffer_load_dword v15, v11, {sr(WO)}, s{S_T1} offen")
    if O.wo_early:
        voff_w()
        wo_stage()
    for i in (1, 2, 3, 10, 11, 12):
        stamp(i)
    E(f"s_lshr_b32 s{S_T0}, s{S_A}, 1")
    E(f"s_lshl_b32 s{S_T0}, s{S_T0}, 10")
    E(f"s_and_b32 s{S_T1}, s{S_A}, 1")
    E(f"s_lshl_b32 s{S_T1}, s{S_T1}, 6")
    E(f"s_add_u32 s{S_T0}, s{S_T0}, s{S_T1}")
    E(f"s_add_u32 s{S_T0}, s{S_T0}, {14 * 64}")
    E("s_branch F_pub")


def out_addr():
    E("v_lshlrev_b32 v8, 10, v8")
    E("v_bfe_u32 v9, v0, 5, 1")
    E("v_lshl_add_u32 v8, v9, 4, v8")
    E("v_bfe_u32 v9, v0, 7, 1")
    E("v_lshl_add_u32 v8, v9, 6, v8")
    E("v_lshrrev_b32 v9, 8, v0")
    E("v_lshl_add_u32 v8, v9, 5, v8")
    E(f"s_lshl_b32 s{S_XK}, s{S_A}, 16")
    E(f"s_lshl_b32 s{S_T1}, s{S_B}, 7")
    E(f"s_add_u32 s{S_XK}, s{S_XK}, s{S_T1}")
    E(f"s_lshl_b32 s{S_T1}, s{S_WAVE}, 11")
    E(f"s_add_u32 s{S_T1}, s{S_T1}, 65536")
    E(f"s_xor_b32 s{S_T2}, s{S_T1}, 8192")
    E(f"v_add_u32 v6, s{S_T1}, v12")
    E(f"v_add_u32 v7, s{S_T2}, v12")


def voff_w():
    E("v_bfe_u32 v2, v0, 4, 1")
    E("v_lshlrev_b32 v2, 2, v2")
    E("v_xor_b32 v2, v2, v0")
    E("v_and_b32 v2, 7, v2")
    E("v_lshlrev_b32 v2, 4, v2")
    E("v_lshrrev_b32 v11, 3, v0")
    E("v_lshl_add_u32 v2, v11, 10, v2")
    E(f"s_lshr_b32 s{S_T1}, s{S_C}, 2")
    E(f"s_lshl_b32 s{S_T1}, s{S_T1}, 7")
    E(f"v_add_u32 v2, s{S_T1}, v2")


def wo_stage():
    for i in range(8):
        E(f"s_add_u32 m0, s{S_W1K}, {i * 8192}")
        E(f"s_mov_b32 s{S_T0}, {i * 65536}")
        E(f"buffer_load_dwordx4 v2, {sr(WO)}, s{S_T0} offen lds")


def _m_fix_base():
    E(f"s_mul_i32 s{S_XB}, s{S_A}, {288 * 1024}")
    E(f"s_add_u32 s{S_XB}, s{S_XB}, {WS_HO:#x}")


HEADER = """; Kernarg layout (88 bytes, ptrs only, base s[0:1]):
; @launch grid=(512,1,1) block=(512,1,1) lds=81920
.amdgcn_target "amdgcn-amd-amdhsa--gfx950"
.text
.globl {kn}
.p2align 8
.type {kn},@function
{kn}:
CODE_START:
"""

FOOTER = """CODE_END:
.section .rodata,"a"
.p2align 6
.amdhsa_kernel {kn}
  .amdhsa_next_free_vgpr 128
  .amdhsa_next_free_sgpr 102
  .amdhsa_accum_offset 128
  .amdhsa_group_segment_fixed_size 0
  .amdhsa_kernarg_size 88
  .amdhsa_user_sgpr_count 2
  .amdhsa_user_sgpr_kernarg_segment_ptr 1
  .amdhsa_system_sgpr_workgroup_id_x 1
.end_amdhsa_kernel
"""


def generate():
    E.L = []
    if O.scramble:
        E("s_and_b32 s3, s2, 7")
        E("s_lshl_b32 s3, s3, 3")
        E("s_bfe_u32 s4, s2, 0x30003")
        E("s_and_b32 s2, s2, 0xffffffc0")
        E("s_or_b32 s2, s2, s3")
        E("s_or_b32 s2, s2, s4")
    E("s_cmp_ge_u32 s2, 256")
    E("s_cbranch_scc1 F_entry")
    stamp(0)
    if O.only_down:
        E("s_endpgm")
    a_prologue()
    E("s_cbranch_vccnz A_vwave")
    E("s_branch A_qwave")
    E.label("F_entry")
    f_prologue()
    E.label("L_end")
    E("s_endpgm")
    E.label("A_qwave")
    a_qkv(False)
    E("s_branch A_att")
    E.label("A_vwave")
    a_qkv(True)
    E.label("A_att")
    a_attention()
    f_main()
    return HEADER.format(kn=KN) + "\n".join(E.L) + "\n" + FOOTER.format(kn=KN)


if __name__ == "__main__":
    ap = argparse.ArgumentParser()
    ap.add_argument("-o", default="k.s")
    ap.add_argument("--set", action="append", default=[])
    a = ap.parse_args()
    for kv in a.set:
        k, v = kv.split("=")
        assert hasattr(O, k), k
        setattr(O, k, type(getattr(O, k))(int(v)))
    s = generate()
    open(a.o, "w").write(s)
    sys.path.insert(0, "cdna_kernels")
    from cdna_launch import with_harness_metadata, address_register_problem
    h = a.o[:-2] + ".harness.s"
    co = a.o[:-2] + ".co"
    open(h, "w").write(with_harness_metadata(s, KN, 11, launch_lists=True))
    r = subprocess.run(["clang", "-x", "assembler", "-target", "amdgcn-amd-amdhsa", "-mcpu=gfx950", h, "-o", co],
                       capture_output=True, text=True)
    if r.returncode:
        print(r.stderr[:4000]); sys.exit(1)
    p = address_register_problem(co, KN)
    print("check:", p)
    r = subprocess.run(f"llvm-nm {co} | grep -E 'CODE_|A_qwave|A_vwave|A_att|A_loop|A_fin|A_slow|F_entry|F_main|F_pub|F_dloop|F_gate$' | sort", shell=True, capture_output=True, text=True)
    print(r.stdout)
```

```python
import sys, subprocess, argparse

NAME = "gated_mix__softmax_full_mha__swiglu_ffn__prompt"
KN = NAME + "_kernel"

WS_KV, WS_Q, WS_HO = 0, 0x400000, 0x600000
WS_NRM, WS_G = 0xF10000, 0xF04000
WS_FKV, WS_FH, WS_FO, WS_FS = 0xF08000, 0xF0C000, 0xF20000, 0xF07000
WS_STAMP = 0x1000000
WS_SIZE = 0x1100000
QSCALE = 0x3EB8AA3B
NLOG2E = 0xBFB8AA3B
THR2 = 0x45548000


class Opt:
    stamps = False
    hint_step = 17
    f_fill_early = False
    force_slow = False
    prio_a_qkv = 3
    prio_a_att = 2
    prio_f = 0
    prio_f_late = 0
    zrows = 1
    toggle = 0
    touch_gu = 0
    touch = 0
    warm_steps = 0
    f_rot = 0
    a_exit = 0
    kv_rot = 0
    ga = 2
    gb = 3
    gc = 5
    kv_first = 2
    wd_t0 = 3
    wo_t = 1
    f_touch = 1
    f_touch2 = 99
    bal = 4
    pace_from = 99
    prio_up = -1
    prio_dn = 0
    boost_mask = 63
    prio_boost = 3
    hint1 = 11
    f_wd = 1
    pair = 1
    dn_stamps = 0
    wo_early = 1
    scramble = 0
    dbg_out = 0
    hold = 0
    kv_wait1 = 1
    piped = 0
    dn_ns = 5
    dn_grp = 2
    dn_grp_until = 16
    dn_low = 99
    twice = 0
    o_parts = 2
    x_noack = 0
    x_noex = 0
    wd_step = 13
    wd_parts = 1
    ht_pos = 0
    only_down = 0
    d_rot = 0
    h_touch = 1
    att_iters = 8
    prio_silu = 3
    gate_late = 1
    h_sc1 = 1
    no_f = 0
    late_iter = 99


O = Opt()


class Asm:
    def __init__(self):
        self.L = []

    def __call__(self, s):
        for x in s.strip("\n").split("\n"):
            self.L.append("    " + x.strip())

    def label(self, l):
        self.L.append(l + ":")

    def raw(self, s):
        self.L.append(s)


E = Asm()


def vr(a, n):
    return f"v[{a}:{a+n-1}]"


def srd(base, size):
    E(f"s_mov_b32 s{base+2}, {size:#x}")
    E(f"s_mov_b32 s{base+3}, 0x20000")


S_WAVE = 3
X, W1, WU, WS, DBG, WD, WO, OUT, GW = 12, 16, 20, 24, 28, 32, 36, 40, 44
def sr(b): return f"s[{b}:{b+3}]"
S_TAG = 48
S_W1K = 49
S_T0, S_T1, S_T2, S_T3 = 50, 51, 52, 53
S_XK, S_XB, S_WK, S_WB = 54, 55, 56, 57
S_CNT = 58
S_A, S_B, S_C, S_D = 59, 60, 61, 62
S_SLOT = 63
S_VM = 64
S_SPIN = 66
S_STAMP = 70


def stamp(i):
    if O.stamps:
        E(f"s_memrealtime s[{S_STAMP+2*i}:{S_STAMP+2*i+1}]")
        E(f"s_memtime s[68:69]")
        E("s_waitcnt lgkmcnt(0)")
        E(f"s_mov_b32 s{S_STAMP+2*i+1}, s68")


def cstamp(i):
    if O.stamps:
        E(f"s_memtime s[{S_STAMP+2*i}:{S_STAMP+2*i+1}]")
        E("s_waitcnt lgkmcnt(0)")


def flush_stamps(idx, lab):
    if not O.stamps:
        return
    E(f"s_cmp_lg_u32 s{S_WAVE}, 0")
    E(f"s_cbranch_scc1 {lab}")
    E(f"s_lshl_b32 s{S_T0}, s2, 7")
    E(f"s_add_u32 s{S_T0}, s{S_T0}, {WS_STAMP:#x}")
    E("s_mov_b64 exec, 1")
    E("v_mov_b32 v1, 0")
    for i in idx:
        E(f"v_mov_b32 v2, s{S_STAMP+2*i}")
        E(f"buffer_store_dword v2, v1, {sr(WS)}, s{S_T0} offen offset:{4*i}")
        E(f"v_mov_b32 v3, s{S_STAMP+2*i+1}")
        E(f"buffer_store_dword v3, v1, {sr(WS)}, s{S_T0} offen offset:{64+4*i}")
    if O.dbg_out:
        E(f"s_and_b32 s{S_T0}, s2, 255")
        E(f"s_cmp_lg_u32 s{S_T0}, 77")
        E(f"s_cbranch_scc1 {lab}_d")
        sel, base = ((0, 1, 2, 5, 6, 7), 1) if lab.startswith("A") else ((1, 2, 3, 5, 6, 7, 9), 9)
        for n, i in enumerate(sel):
            E(f"v_mov_b32 v2, s{S_STAMP+2*i}")
            if n:
                E(f"v_subrev_u32 v2, s{S_STAMP}, v2")
            E(f"buffer_store_dword v2, v1, {sr(DBG)}, 0 offen offset:{4*(base+n)}")
        if lab.startswith("A"):
            E(f"s_sub_u32 s{S_T0}, s{S_STAMP+13}, s{S_STAMP+11}")
            E(f"v_mov_b32 v2, s{S_T0}")
            E(f"buffer_store_dword v2, v1, {sr(DBG)}, 0 offen offset:28")
        E.label(lab + "_d")
    E("s_waitcnt vmcnt(0)")
    E.label(lab)


class VM:
    def __init__(self):
        self.q = []

    def issue(self, tag, n=1):
        self.q += [tag] * n

    def need(self, *tags):
        last = -1
        for i, t in enumerate(self.q):
            if t in tags:
                last = i
        for t in tags:
            assert t in self.q, t
        return len(self.q) - 1 - last


def poll(lab, voff_reg, soff, piped=False):
    E(f"s_mov_b32 s{S_SPIN}, 0x40000")
    if piped:
        regs = (11, 9, 15)
        for r in regs[:2]:
            E(f"buffer_load_dword v{r}, v{voff_reg}, {sr(WS)}, {soff} offen sc1")
            E("s_sleep 2")
        E.label(lab)
        for i in range(3):
            E(f"buffer_load_dword v{regs[(i + 2) % 3]}, v{voff_reg}, {sr(WS)}, {soff} offen sc1")
            E("s_waitcnt vmcnt(2)")
            E(f"v_cmp_ne_u32 vcc, s{S_TAG}, v{regs[i]}")
            E("s_nop 4")
            E("s_cmp_eq_u64 vcc, 0")
            E(f"s_cbranch_scc1 {lab}_ok")
            E("s_sleep 1")
    else:
        E.label(lab)
        E(f"buffer_load_dword v11, v{voff_reg}, {sr(WS)}, {soff} offen sc1")
        E("s_waitcnt vmcnt(0)")
        E(f"v_cmp_ne_u32 vcc, s{S_TAG}, v11")
        E("s_nop 4")
        E("s_cmp_eq_u64 vcc, 0")
        E(f"s_cbranch_scc1 {lab}_ok")
        E("s_sleep 2")
    E(f"s_sub_u32 s{S_SPIN}, s{S_SPIN}, 1")
    E(f"s_cmp_lg_u32 s{S_SPIN}, 0")
    E(f"s_cbranch_scc1 {lab}")
    E.label(lab + "_ok")


def get_tag(lab, sleep=4):
    E(f"s_mov_b32 s{S_SPIN}, 0x40000")
    E("v_mov_b32 v10, 0")
    E.label(lab)
    E(f"buffer_load_dword v11, v10, {sr(DBG)}, 0 offen sc1")
    E("s_waitcnt vmcnt(0)")
    E(f"v_readfirstlane_b32 s{S_TAG}, v11")
    E("s_nop 3")
    E(f"s_cmp_lg_u32 s{S_TAG}, 0")
    E(f"s_cbranch_scc1 {lab}_ok")
    E(f"s_sleep {sleep}")
    E(f"s_sub_u32 s{S_SPIN}, s{S_SPIN}, 1")
    E(f"s_cmp_lg_u32 s{S_SPIN}, 0")
    E(f"s_cbranch_scc1 {lab}")
    E.label(lab + "_ok")


def put_flag(soff_sgpr):
    E("s_mov_b64 exec, 1")
    E("v_mov_b32 v10, 0")
    E(f"v_mov_b32 v11, s{S_TAG}")
    E(f"buffer_store_dword v11, v10, {sr(WS)}, s{soff_sgpr} offen sc0 sc1")
    E("s_mov_b64 exec, -1")


def wg_store(lab, cond, val_lines, off):
    cond()
    E(f"s_cbranch_scc1 {lab}")
    val_lines()
    E("s_mov_b64 exec, 1")
    E(f"v_mov_b32 v10, {off}")
    E(f"v_mov_b32 v11, s{S_T0}")
    E(f"buffer_store_dword v11, v10, {sr(DBG)}, 0 offen sc0 sc1")
    E("s_mov_b64 exec, -1")
    E.label(lab)


def hint(lab="A_nohint", word=0, early=None):
    E(f"s_lshr_b32 s{S_T0}, s2, 3")
    E(f"s_or_b32 s{S_T0}, s{S_T0}, s{S_WAVE}")
    E(f"s_cbranch_scc1 {lab}")
    if (O.hint_step if early is None else early) < 16:
        E(f"v_readfirstlane_b32 s{S_TAG}, v14")
        E("s_nop 3")
        E(f"s_cmp_lg_u32 s{S_TAG}, 0")
        E(f"s_cbranch_scc1 {lab}_t_ok")
        get_tag(lab + "_t")
    E(f"s_lshl_b32 s{S_T1}, s2, 7")
    E(f"s_add_u32 s{S_T1}, s{S_T1}, {WS_FS + 1024 * word:#x}")
    put_flag(S_T1)
    E.label(lab)


def wait_start(lab, word=0, tag=True):
    if tag:
        get_tag(lab + "_t", 16)
    E("v_mov_b32 v10, 0")
    E(f"s_and_b32 s{S_T0}, s2, 7")
    E(f"s_lshl_b32 s{S_T0}, s{S_T0}, 7")
    E(f"s_add_u32 s{S_T0}, s{S_T0}, {WS_FS + 1024 * word:#x}")
    poll(lab, 10, f"s{S_T0}")


def dpp_max(regs):
    for ctl in ("row_shr:1", "row_shr:2", "row_shr:4", "row_shr:8",
                "row_bcast:15 row_mask:0xa", "row_bcast:31 row_mask:0xc"):
        E("s_nop 1")
        for r in regs:
            m = "" if "row_mask" in ctl else " row_mask:0xf"
            E(f"v_max_f32_dpp v{r}, v{r}, v{r} {ctl}{m} bank_mask:0xf")


A_XS, A_WS0, A_WSZ = 8192, 24576, 12288


def a_dma_x(u, vm):
    E(f"s_add_u32 m0, s{S_W1K}, {(u % 3) * A_XS}")
    E(f"s_add_u32 s{S_T0}, s{S_XB}, s{S_XK}")
    E(f"buffer_load_dwordx4 v1, {sr(X)}, s{S_T0} offen lds")
    E(f"s_add_u32 s{S_XK}, s{S_XK}, 128")
    E(f"s_and_b32 s{S_XK}, s{S_XK}, 1023")
    vm.issue(("x", u))


def a_dma_w(s, vm, vwave):
    base = A_WS0 + (s % 4) * A_WSZ
    E(f"s_add_u32 m0, s{S_W1K}, {base}")
    E(f"s_add_u32 s{S_T0}, s{S_WB}, s{S_WK}")
    E(f"buffer_load_dwordx4 v2, {sr(W1)}, s{S_T0} offen lds")
    vm.issue(("w", s))
    if vwave == "both":
        E(f"s_cbranch_vccz A_pw{s}")
        E(f"s_add_u32 m0, s{S_W1K}, {base + 3072}")
        E("s_nop 0")
        E(f"buffer_load_dwordx4 v2, {sr(W1)}, s{S_T0} offen offset:1024 lds")
        E.label(f"A_pw{s}")
    elif vwave:
        E(f"s_add_u32 m0, s{S_W1K}, {base + 3072}")
        E("s_nop 0")
        E(f"buffer_load_dwordx4 v2, {sr(W1)}, s{S_T0} offen offset:1024 lds")
        vm.issue(("w", s))
    E(f"s_add_u32 s{S_WK}, s{S_WK}, 98304")
    E(f"s_cmp_eq_u32 s{S_WK}, {16 * 98304}")
    E(f"s_cselect_b32 s{S_WK}, 0, s{S_WK}")


def a_prologue():
    E(f"s_load_dwordx2 s[{X}:{X+1}], s[0:1], 0")
    E(f"s_load_dwordx2 s[{W1}:{W1+1}], s[0:1], 8")
    E(f"s_load_dwordx2 s[{WS}:{WS+1}], s[0:1], 80")
    E(f"s_load_dwordx2 s[{DBG}:{DBG+1}], s[0:1], 72")
    E("v_lshrrev_b32 v8, 6, v0")
    E("v_lshrrev_b32 v9, 3, v0")
    E("v_lshrrev_b32 v10, 4, v0")
    E(f"v_readfirstlane_b32 s{S_WAVE}, v8")
    E("v_xor_b32 v11, v10, v0")
    E("v_and_b32 v11, 7, v11")
    E("v_lshlrev_b32 v11, 4, v11")
    E("v_lshl_add_u32 v1, v9, 10, v11")
    srd(X, 0x200000)
    srd(W1, 0x180000)
    E(f"s_lshr_b32 s{S_T0}, s2, 3")
    E(f"s_and_b32 s{S_T1}, s{S_T0}, 7")
    E(f"s_lshr_b32 s{S_T0}, s{S_T0}, 3")
    E(f"s_and_b32 s{S_A}, s2, 3")
    E(f"s_lshl_b32 s{S_A}, s{S_A}, 3")
    E(f"s_add_u32 s{S_A}, s{S_A}, s{S_T1}")
    E(f"s_and_b32 s{S_B}, s2, 4")
    E(f"s_add_u32 s{S_B}, s{S_B}, s{S_T0}")
    E(f"s_lshl_b32 s{S_T0}, s{S_T0}, 1")
    E(f"s_add_u32 s{S_T0}, s{S_T0}, s{S_T1}")
    E(f"s_and_b32 s{S_T0}, s{S_T0}, 7")
    E(f"s_lshl_b32 s{S_XK}, s{S_T0}, 7")
    E(f"s_mul_i32 s{S_WK}, s{S_T0}, {2 * 98304}")
    E(f"s_lshl_b32 s{S_XB}, s{S_A}, 16")
    E(f"s_lshl_b32 s{S_WB}, s{S_B}, 7")
    E(f"s_lshl_b32 s{S_W1K}, s{S_WAVE}, 10")
    E("v_and_b32 v9, 31, v9")
    E("v_mul_u32_u24 v9, 0xc00, v9")
    E("v_and_b32 v10, 1, v10")
    E("v_lshlrev_b32 v10, 2, v10")
    E("v_xor_b32 v10, v10, v0")
    E("v_and_b32 v10, 7, v10")
    E("v_lshl_add_u32 v9, v10, 4, v9")
    E("v_lshrrev_b32 v10, 8, v0")
    E("v_lshl_add_u32 v2, v10, 10, v9")
    E("v_cmp_eq_u32 vcc, 1, v10")
    E(f"s_setprio {O.prio_a_qkv}")
    E("s_waitcnt lgkmcnt(0)")
    stamp(8)
    vm = VM()
    a_dma_x(0, vm)
    a_dma_w(0, vm, "both")
    a_dma_w(1, vm, "both")
    a_dma_x(1, vm)
    a_dma_w(2, vm, "both")
    a_dma_w(3, vm, "both")
    a_dma_x(2, vm)
    stamp(9)
    srd(WS, WS_SIZE)
    srd(DBG, 256)


def a_qkv(vwave):
    p = "AV" if vwave else "AQ"
    if O.touch:
        E(f"s_load_dwordx2 s[{WU}:{WU+1}], s[0:1], {40 if vwave else 32}")
        E(f"s_load_dwordx2 s[{WD}:{WD+1}], s[0:1], 48")
        E(f"s_load_dwordx2 s[{WO}:{WO+1}], s[0:1], 16")
        srd(WU, 512 * 3584); srd(WD, 1792 * 1024); srd(WO, 512 * 1024)
    vm = VM()
    n = 2 if vwave else 1
    for t in (("x", 0), ("w", 0), ("w", 1), ("x", 1), ("w", 2), ("w", 3), ("x", 2)):
        vm.issue(t, n if t[0] == "w" else 1)
    E("v_and_b32 v8, 31, v0")
    if vwave:
        E("v_and_b32 v9, 0x13, v8")
        E("v_lshlrev_b32 v10, 1, v8")
        E("v_and_b32 v10, 8, v10")
        E("v_or_b32 v9, v9, v10")
        E("v_lshrrev_b32 v10, 1, v8")
        E("v_and_b32 v10, 4, v10")
        E("v_or_b32 v8, v9, v10")
    E("v_lshrrev_b32 v9, 1, v8")
    E("v_and_b32 v9, 7, v9")
    E("v_bfe_u32 v10, v0, 5, 1")
    E("v_xor_b32 v9, v9, v10")
    E("v_lshlrev_b32 v9, 4, v9")
    E("v_lshl_add_u32 v9, v8, 7, v9")
    E("v_bfe_u32 v8, v0, 6, 1")
    E("v_lshl_add_u32 v3, v8, 12, v9")
    for ks in (1, 2, 3):
        E(f"v_xor_b32 v{3+ks}, {32*ks}, v3")
    E("v_bfe_u32 v8, v0, 2, 2")
    E("v_lshl_add_u32 v9, v10, 3, v8")
    E("v_lshlrev_b32 v9, 7, v9")
    E("v_bfe_u32 v10, v0, 7, 1")
    E("v_lshrrev_b32 v8, 1, v8")
    E("v_xor_b32 v8, v8, v10")
    E("v_lshl_add_u32 v9, v8, 6, v9")
    E("v_bfe_u32 v8, v0, 4, 1")
    E("v_lshl_add_u32 v9, v8, 5, v9")
    E("v_and_b32 v8, 3, v0")
    E("v_lshl_add_u32 v9, v8, 3, v9")
    E(f"v_add_u32 v7, {A_WS0}, v9")
    segs = (2,) if vwave else (0, 1)
    if O.touch_gu:
        E(f"s_lshr_b32 s{S_T0}, s2, 3")
        E(f"s_lshl_b32 s{S_T0}, s{S_T0}, 2")
        E(f"s_and_b32 s{S_T1}, s{S_WAVE}, 3")
        E(f"s_add_u32 s{S_T0}, s{S_T0}, s{S_T1}")
        E(f"s_mul_i32 s{S_T0}, s{S_T0}, {2 * 3584}")
        E(f"s_bfe_u32 s{S_T1}, s2, 0x10002")
        E(f"s_mul_i32 s{S_T1}, s{S_T1}, 1792")
        E(f"s_add_u32 s{S_T0}, s{S_T0}, s{S_T1}")
        E("v_bfe_u32 v8, v0, 4, 1")
        E("v_mul_u32_u24 v8, 3584, v8")
        E("v_and_b32 v9, 15, v0")
        E("v_lshl_add_u32 v8, v9, 7, v8")
        E(f"v_add_u32 v98, s{S_T0}, v8")

    def reads(s):
        b = 16 + 24 * (s & 1)
        L = []
        for kk in (0, 1):
            L.append(f"ds_read_b128 {vr(b+4*kk,4)}, v{3 + 2*(s&1) + kk} offset:{((s//2) % 3) * A_XS}")
            for si, sg in enumerate(segs):
                for q in (0, 1):
                    off = (s % 4) * A_WSZ + sg * 4096 + kk * 2048 + q * 512
                    L.append(f"ds_read_b64_tr_b16 {vr(b+8+8*si+4*kk+2*q,2)}, v7 offset:{off}")
        return L

    def mfmas(s):
        b = 16 + 24 * (s & 1)
        L = []
        for kk in (0, 1):
            for si, sg in enumerate(segs):
                acc = vr(64 + 16 * si, 16)
                c = "0" if (s == 0 and kk == 0) else acc
                xf, wf = vr(b + 4*kk, 4), vr(b + 8 + 8*si + 4*kk, 4)
                if vwave:
                    L.append(f"v_mfma_f32_32x32x16_bf16 {acc}, {xf}, {wf}, {c}")
                else:
                    L.append(f"v_mfma_f32_32x32x16_bf16 {acc}, {wf}, {xf}, {c}")
        return L

    if not vwave:
        def tagval():
            E(f"s_memrealtime s[{S_T0}:{S_T1}]")
            E("s_waitcnt lgkmcnt(0)")
            E(f"s_or_b32 s{S_T0}, s{S_T0}, 1")
        wg_store("A_notag", lambda: E(f"s_or_b32 s{S_T0}, s2, s{S_WAVE}"), tagval, "0")
    E(f"s_waitcnt vmcnt({vm.need(('x',0),('w',0))}) lgkmcnt(0)")
    E("s_barrier")
    stamp(1)
    for x in reads(0):
        E(x)
    for s in range(16):
        M = mfmas(s)
        if s < 15:
            E(f"s_waitcnt vmcnt({vm.need(('x',(s+1)//2),('w',s+1))}) lgkmcnt(0)")
            E("s_barrier")
            E(M.pop(0))
            R = reads(s + 1)
            per = 3
            while R or M:
                for x in R[:per]:
                    E(x)
                R = R[per:]
                if M:
                    E(M.pop(0))
            if s + 4 <= 15:
                a_dma_w(s + 4, vm, vwave)
            if s % 2 == 1 and (s + 1) // 2 + 2 <= 7:
                a_dma_x((s + 1) // 2 + 2, vm)
            if s == 1 and not vwave:
                E("v_mov_b32 v10, 0")
                E(f"buffer_load_dword v14, v10, {sr(DBG)}, 0 offen sc1")
                vm.issue("tag")
            if s == 12 and O.touch_gu:
                E("s_mov_b32 exec_hi, 0")
                E(f"buffer_load_dword v15, v98, {sr(WU)}, 0 offen")
                E("s_mov_b32 exec_hi, -1")
                vm.issue("t")
        else:
            E("s_waitcnt lgkmcnt(0)")
            for x in M:
                E(x)
        if s == O.hint_step and not vwave:
            hint()
        if s == O.hint1 and not vwave:
            hint("A_nohint1", 1, O.hint1)
        if s == O.hint_step and O.a_exit:
            E("s_endpgm")
    stamp(2)
    E(f"s_and_b32 s{S_T0}, s{S_WAVE}, 1")
    E(f"s_lshl_b32 s{S_T1}, s{S_A}, 1")
    E(f"s_add_u32 s{S_T0}, s{S_T0}, s{S_T1}")
    E(f"s_bfe_u32 s{S_T1}, s{S_WAVE}, 0x10001")
    E(f"s_lshl_b32 s{S_T2}, s{S_B}, 1")
    E(f"s_add_u32 s{S_T1}, s{S_T1}, s{S_T2}")
    E("v_and_b32 v8, 63, v0")
    if vwave:
        E("v_and_b32 v9, 15, v8")
        E("v_lshlrev_b32 v9, 4, v9")
        E("v_bfe_u32 v10, v8, 5, 1")
        E("v_lshl_add_u32 v9, v10, 8, v9")
        E("v_bfe_u32 v10, v8, 4, 1")
        E("v_lshl_add_u32 v9, v10, 17, v9")
        E(f"s_lshl_b32 s{S_T1}, s{S_T1}, 18")
        E(f"s_lshl_b32 s{S_T0}, s{S_T0}, 11")
        E(f"s_add_u32 s{S_T0}, s{S_T0}, s{S_T1}")
        E("s_nop 7")
        for i in range(8):
            E(f"v_cvt_pk_bf16_f32 v{16+i}, v{64+2*i}, v{65+2*i}")
        E(f"buffer_store_dwordx4 v[16:19], v9, {sr(WS)}, s{S_T0} offen offset:1024 sc0 sc1")
        E(f"buffer_store_dwordx4 v[20:23], v9, {sr(WS)}, s{S_T0} offen offset:1536 sc0 sc1")
    else:
        E("v_lshlrev_b32 v9, 4, v8")
        E(f"s_lshl_b32 s{S_T2}, s{S_T1}, 18")
        E(f"s_lshl_b32 s{S_T3}, s{S_T0}, 11")
        E(f"s_add_u32 s{S_T2}, s{S_T2}, s{S_T3}")
        E(f"s_lshr_b32 s{S_T3}, s{S_T2}, 1")
        E(f"s_add_u32 s{S_T3}, s{S_T3}, {WS_Q:#x}")
        E(f"s_add_u32 s{S_C}, s{S_T2}, 0x20000")
        E(f"s_add_u32 s{S_D}, s{S_T3}, 0x10000")
        E(f"s_mov_b32 s{S_CNT}, {QSCALE:#x}")
        E("s_nop 7")
        for i in range(8):
            E(f"v_cvt_pk_bf16_f32 v{16+i}, v{80+2*i}, v{81+2*i}")
        E(f"buffer_store_dwordx4 v[16:19], v9, {sr(WS)}, s{S_T2} offen sc0 sc1")
        E(f"buffer_store_dwordx4 v[20:23], v9, {sr(WS)}, s{S_C} offen sc0 sc1")
        for i in range(16):
            E(f"v_mul_f32 v{64+i}, s{S_CNT}, v{64+i}")
        for i in range(8):
            E(f"v_cvt_pk_bf16_f32 v{24+i}, v{64+2*i}, v{65+2*i}")
        E(f"buffer_store_dwordx4 v[24:27], v9, {sr(WS)}, s{S_T3} offen sc0 sc1")
        E(f"buffer_store_dwordx4 v[28:31], v9, {sr(WS)}, s{S_D} offen sc0 sc1")
        for g in range(4):
            E(f"v_mul_f32 v{32+g}, v{64+8*g}, v{64+8*g}")
        for i in range(1, 8):
            for g in range(4):
                E(f"v_fmac_f32 v{32+g}, v{64+8*g+i}, v{64+8*g+i}")
        E("s_nop 1")
        E("v_permlane32_swap_b32 v32, v33")
        E("v_permlane32_swap_b32 v34, v35")
        E("s_nop 1")
        E("v_add_f32 v32, v32, v33")
        E("v_add_f32 v33, v34, v35")
        dpp_max((32, 33))
        E(f"s_lshl_b32 s{S_T0}, s{S_B}, 11")
        E(f"s_lshl_b32 s{S_T1}, s{S_A}, 6")
        E(f"s_add_u32 s{S_T0}, s{S_T0}, s{S_T1}")
        E(f"s_lshl_b32 s{S_T1}, s{S_WAVE}, 3")
        E(f"s_add_u32 s{S_T0}, s{S_T0}, s{S_T1}")
        E(f"s_add_u32 s{S_T0}, s{S_T0}, {WS_FKV + 16:#x}")
        E("v_mov_b32 v10, 0")
        E("s_brev_b64 exec, 1")
        E(f"buffer_store_dwordx2 v[32:33], v10, {sr(WS)}, s{S_T0} offen sc0 sc1")
        E("s_mov_b64 exec, -1")


S0, S1, OA, OB, QX, QY, K0, K1, V0, V1 = 16, 32, 48, 64, 80, 84, 88, 92, 96, 104
IDX, VK, VV, VD, VKB, VVB, VT, VL = 112, 113, 114, 115, 116, 117, 118, 119
KVS = 16384


def a_kv_dma():
    E(f"s_add_u32 m0, s{S_XK}, s{S_W1K}")
    E(f"s_add_u32 s{S_T0}, s{S_WB}, s{S_WK}")
    E(f"buffer_load_dwordx4 v{VD}, {sr(WS)}, s{S_T0} offen sc1 lds")
    E(f"buffer_load_dwordx4 v{VD}, {sr(WS)}, s{S_T0} offen offset:1024 sc1 lds")
    E(f"s_add_u32 s{S_WK}, s{S_WK}, {KVS}")
    E(f"s_and_b32 s{S_WK}, s{S_WK}, {8*KVS-1:#x}")
    E(f"s_add_u32 s{S_XK}, s{S_XK}, {KVS}")
    E(f"s_cmp_eq_u32 s{S_XK}, {5*KVS}")
    E(f"s_cselect_b32 s{S_XK}, 0, s{S_XK}")


def a_attention():
    E(f"s_and_b32 s{S_C}, s2, 7")
    E(f"s_lshr_b32 s{S_T0}, s2, 6")
    E(f"s_lshl_b32 s{S_D}, s{S_C}, 2")
    E(f"s_add_u32 s{S_D}, s{S_D}, s{S_T0}")
    E(f"s_lshl_b32 s{S_T0}, s{S_B}, 11")
    E(f"s_lshl_b32 s{S_T1}, s{S_A}, 6")
    E(f"s_add_u32 s{S_T0}, s{S_T0}, s{S_T1}")
    E(f"s_add_u32 s{S_XB}, s{S_T0}, {WS_FKV:#x}")
    E(f"s_bfe_u32 s{S_A}, s2, 0x30003")
    E("v_and_b32 v8, 63, v0")
    E(f"v_lshlrev_b32 v{VL}, 4, v8")
    E(f"s_lshl_b32 s{S_W1K}, s{S_WAVE}, 11")
    E(f"v_add_u32 v{VD}, s{S_W1K}, v{VL}")
    E(f"s_lshl_b32 s{S_WB}, s{S_D}, 17")
    if O.kv_rot:
        E(f"s_lshl_b32 s{S_WK}, s{S_A}, 14")
    else:
        E(f"s_mov_b32 s{S_WK}, 0")
    E(f"s_mov_b32 s{S_XK}, 0")
    E(f"s_lshl_b32 s{S_T1}, s{S_A}, 3")
    E(f"s_and_b32 s{S_T2}, s{S_WAVE}, 3")
    E(f"s_lshl_b32 s{S_T2}, s{S_T2}, 1")
    E(f"s_add_u32 s{S_B}, s{S_T1}, s{S_T2}")
    E(f"s_lshl_b32 s{S_T1}, s{S_B}, 10")
    E(f"s_lshl_b32 s{S_T2}, s{S_D}, 16")
    E(f"s_add_u32 s{S_T1}, s{S_T1}, s{S_T2}")
    E(f"s_add_u32 s4, s{S_T1}, {WS_Q:#x}")
    E(f"s_lshr_b32 s{S_T0}, s{S_WAVE}, 2")
    E(f"s_lshl_b32 s{S_T0}, s{S_T0}, 11")
    E(f"v_add_u32 v{VKB}, s{S_T0}, v{VL}")
    E("v_and_b32 v9, 15, v8")
    E("v_lshlrev_b32 v9, 4, v9")
    E("v_bfe_u32 v10, v8, 5, 1")
    E("v_lshl_add_u32 v9, v10, 8, v9")
    E(f"s_add_u32 s{S_T0}, s{S_T0}, 1024")
    E(f"v_add_u32 v{VVB}, s{S_T0}, v9")
    E(f"v_mov_b32 v{VK}, v{VKB}")
    E(f"v_mov_b32 v{VV}, v{VVB}")
    E(f"v_mov_b32 v{IDX}, 0xdddddddd")
    E("v_and_b32 v9, 27, v8")
    E("v_cmp_eq_u32 vcc, 16, v9")
    E("v_mov_b32 v9, 0x3f803f80")
    E("s_nop 0")
    E(f"v_cndmask_b32 v{V0}, 0, v9, vcc")
    for i in range(1, 16):
        E(f"v_mov_b32 v{V0+i}, v{V0}")
    if O.touch:
        E(f"s_lshr_b32 s{S_T0}, s2, 3")
        E(f"s_lshl_b32 s{S_T0}, s{S_T0}, 3")
        E(f"s_add_u32 s{S_T0}, s{S_T0}, s{S_WAVE}")
        E(f"s_lshl_b32 s{S_T0}, s{S_T0}, 11")
        E(f"v_lshlrev_b32 v{VT}, 7, v8")
        E(f"v_add_u32 v{VT}, s{S_T0}, v{VT}")
    E(f"s_mov_b32 s{S_VM}, 0xffff")
    E(f"s_mov_b32 s{S_VM+1}, 0xffff")
    E(f"s_mov_b32 s{S_SLOT}, 0")
    E(f"s_mov_b32 s{S_CNT}, 0")
    for i in range(32):
        E(f"v_mov_b32 v{OA+i}, 0")
    for i in range(8, 16):
        E(f"v_mov_b32 v{S1+i}, 0")
    E("s_waitcnt vmcnt(0)")
    E("s_barrier")
    stamp(3)
    E(f"s_cmp_lg_u32 s{S_WAVE}, 0")
    E("s_cbranch_scc1 A_wait1")
    E(f"v_readfirstlane_b32 s{S_TAG}, v14")
    E("s_nop 3")
    E(f"s_cmp_lg_u32 s{S_TAG}, 0")
    E("s_cbranch_scc1 A_tag_ok")
    get_tag("A_tag")
    put_flag(S_XB)
    if O.hint_step == 16:
        hint()
    E("v_and_b32 v10, 31, v0")
    E("v_lshlrev_b32 v10, 6, v10")
    E(f"s_bfe_u32 s{S_T1}, s{S_D}, 0x10001")
    E(f"s_lshl_b32 s{S_T1}, s{S_T1}, 4")
    E(f"s_add_u32 s{S_T1}, s{S_T1}, 16")
    E("v_bfe_u32 v11, v0, 5, 1")
    E(f"v_mul_u32_u24 v11, s{S_T1}, v11")
    E("v_add_u32 v10, v10, v11")
    E(f"s_lshl_b32 s{S_T0}, s{S_C}, 11")
    E(f"s_add_u32 s{S_T0}, s{S_T0}, {WS_FKV:#x}")
    E(f"s_mov_b32 s{S_SPIN}, 0x40000")
    E.label("A_pollkv")
    E(f"buffer_load_dwordx4 v[4:7], v10, {sr(WS)}, s{S_T0} offen sc1")
    E("s_waitcnt vmcnt(0)")
    E(f"v_cmp_ne_u32 vcc, s{S_TAG}, v4")
    E("s_nop 4")
    E("s_cmp_eq_u32 vcc_lo, 0")
    E("s_cbranch_scc1 A_pollkv_ok")
    E("s_sleep 2")
    E(f"s_sub_u32 s{S_SPIN}, s{S_SPIN}, 1")
    E(f"s_cmp_lg_u32 s{S_SPIN}, 0")
    E("s_cbranch_scc1 A_pollkv")
    E.label("A_pollkv_ok")
    E("s_barrier")
    if O.hint_step == 17:
        hint()
    else:
        hint("A_nohint2", 2, 17)
    E("s_branch A_go")
    E.label("A_wait1")
    E("s_barrier")
    E.label("A_go")
    stamp(4)
    a_kv_dma()
    E(f"buffer_load_dwordx4 {vr(QX,4)}, v{VL}, {sr(WS)}, s4 offen sc1")
    E(f"buffer_load_dwordx4 {vr(QY,4)}, v{VL}, {sr(WS)}, s4 offen offset:1024 sc1")
    for c in range(1, O.kv_first):
        a_kv_dma()
    E(f"s_cmp_lg_u32 s{S_WAVE}, 0")
    E("s_cbranch_scc1 A_nored")
    E("v_max_u32 v4, v4, v6")
    E("v_max_u32 v5, v5, v7")
    for ctl in ("row_shr:1", "row_shr:2", "row_shr:4", "row_shr:8", "row_bcast:15 row_mask:0xa"):
        E("s_nop 1")
        for r in (4, 5):
            m = "" if "row_mask" in ctl else " row_mask:0xf"
            E(f"v_max_u32_dpp v{r}, v{r}, v{r} {ctl}{m} bank_mask:0xf")
    E("s_nop 0")
    E("v_mul_f32 v4, v4, v5")
    E(f"v_mov_b32 v5, s{S_TAG}")
    E(f"v_mov_b32 v6, {5 * KVS - 8}")
    E("s_brev_b64 exec, 1")
    E("ds_write_b64 v6, v[4:5]")
    E("s_mov_b64 exec, -1")
    E("s_waitcnt lgkmcnt(0)")
    E.label("A_nored")
    E(f"s_setprio {O.prio_a_att}")
    E(f"s_waitcnt vmcnt({2*O.kv_first - (4 if O.pair and not O.kv_wait1 else 2)})")
    E("s_barrier")
    stamp(5)

    def vreads(dst, off):
        E(f"s_mov_b64 exec, s[{S_VM}:{S_VM+1}]")
        E(f"ds_read_b128 {vr(dst,4)}, v{VV} offset:{off}")
        E(f"ds_read_b128 {vr(dst+4,4)}, v{VV} offset:{off+512}")
        E("s_mov_b64 exec, -1")

    E(f"ds_read_b128 {vr(K0,4)}, v{VK}")
    vreads(V0, 0)
    E(f"v_mov_b32 v6, {5 * KVS - 8}")
    E("ds_read_b64 v[4:5], v6")
    E("s_waitcnt lgkmcnt(0)")
    E(f"v_readfirstlane_b32 s{S_T0}, v4")
    E(f"v_readfirstlane_b32 s{S_TAG}, v5")
    E(f"v_mfma_f32_32x32x16_bf16 {vr(S0,16)}, {vr(K0,4)}, {vr(QX,4)}, 0")
    E("s_nop 3")
    E(f"s_cmp_gt_u32 s{S_T0}, {THR2:#x}")
    if O.force_slow:
        E("s_branch A_slow")
    E("s_cbranch_scc1 A_slow")
    E("s_nop 7")

    def chunk_turn():
        E("s_waitcnt vmcnt(0)")
        E("s_barrier")
        E(f"s_cmp_gt_u32 s{S_CNT}, {7 - O.kv_first}")
        lab = f"A_nf{len(E.L)}"
        E(f"s_cbranch_scc1 {lab}")
        a_kv_dma()
        E.label(lab)
        if O.touch:
            E(f"s_sub_u32 s{S_T0}, s{S_CNT}, {O.wd_t0}")
            E(f"s_lshl_b32 s{S_T0}, s{S_T0}, 19")
            E("s_mov_b64 exec, 0xffff")
            E(f"s_cmp_gt_u32 s{S_T0}, {3 << 19}")
            E(f"s_cbranch_scc1 {lab}t")
            E(f"buffer_load_dword v15, v{VT}, {sr(WD)}, s{S_T0} offen")
            E.label(lab + "t")
            E(f"s_cmp_lg_u32 s{S_CNT}, {O.wo_t}")
            E(f"s_cbranch_scc1 {lab}u")
            E(f"buffer_load_dword v15, v{VT}, {sr(WO)}, 0 offen")
            E.label(lab + "u")
            E("s_mov_b64 exec, -1")
        E(f"s_add_u32 s{S_SLOT}, s{S_SLOT}, {KVS}")
        E(f"s_cmp_eq_u32 s{S_SLOT}, {5*KVS}")
        E(f"s_cselect_b32 s{S_SLOT}, 0, s{S_SLOT}")
        E(f"v_add_u32 v{VK}, s{S_SLOT}, v{VKB}")
        E(f"v_add_u32 v{VV}, s{S_SLOT}, v{VVB}")

    NT = 16 if O.pair else 8

    def next_slot():
        E(f"s_add_u32 s{S_SLOT}, s{S_SLOT}, {KVS}")
        E(f"s_cmp_eq_u32 s{S_SLOT}, {5*KVS}")
        E(f"s_cselect_b32 s{S_SLOT}, 0, s{S_SLOT}")
        E(f"v_add_u32 v{VK}, s{S_SLOT}, v{VKB}")
        E(f"v_add_u32 v{VV}, s{S_SLOT}, v{VVB}")

    def refill(lab, lo, hi):
        if lo == hi:
            E(f"s_cmp_lg_u32 s{S_CNT}, {lo}")
        else:
            E(f"s_cmp_gt_u32 s{S_CNT}, {hi}")
        E(f"s_cbranch_scc1 {lab}")
        a_kv_dma()
        E.label(lab)

    E.raw(".p2align 6")
    E.label("A_loop")
    ga, gb, gc = O.ga, O.ga + O.gb, O.ga + O.gb + O.gc
    for t in range(NT):
        blk, kt = t & 1, (t >> 1) & 3
        Sc, Sn = (S0, S1) if blk == 0 else (S1, S0)
        Oc, On = (OA, OB) if blk == 0 else (OB, OA)
        Vk, Vo = (V0, V1) if kt & 1 == 0 else (V1, V0)
        Kk, Ko = (K0, K1) if kt & 1 == 0 else (K1, K0)
        if not O.pair:
            if t == 6:
                chunk_turn()
        elif t == 6:
            if O.kv_wait1:
                E(f"s_cmp_lg_u32 s{S_CNT}, 0")
                E("s_cbranch_scc1 A_nb")
                E(f"s_waitcnt vmcnt({2 * len([x for x in (3, 5, 7)[:5 - O.kv_first] if x < 6])})")
                E("s_barrier")
                E.label("A_nb")
            next_slot()
        elif t == 14:
            E("s_waitcnt vmcnt(0)")
            E("s_barrier")
            next_slot()
        ex = lambda a, b: [E(f"v_exp_f32 v{Sc+i}, v{Sc+i}") for i in range(a, b)]
        ph = ((t + 2) % NT) * 8 // NT
        prf = lambda ph: {0: O.prio_a_att, 4: 3 - ph // 2, 2: O.prio_a_att + (1 if ph < 4 else 0), 3: O.prio_a_att + [2, 2, 2, 1, 1, 1, 0, 0][ph]}[O.bal]
        pr = prf(ph)
        if O.bal and not O.toggle and pr != prf(((t + 1) % NT) * 8 // NT):
            E(f"s_setprio {pr}")

        def mm(x):
            if O.toggle: E(f"s_setprio {O.toggle}")
            E(x)
            if O.toggle: E(f"s_setprio {pr}")
        ex(0, ga)
        mm(f"v_smfmac_f32_32x32x32_bf16 {vr(On,16)}, {vr((Vo if blk == 0 else Vk) + 4,4)}, {vr(Sn+8,8)}, v{IDX}")
        if blk == 0:
            off = ((kt + 1) % 4) * 4096
            E(f"ds_read_b128 {vr(Ko,4)}, v{VK} offset:{off}")
            vreads(Vo, off)
        ex(ga, gb)
        if blk == 1:
            E("s_waitcnt lgkmcnt(0)")
        mm(f"v_mfma_f32_32x32x16_bf16 {vr(Sn,16)}, {vr(Kk if blk == 0 else Ko,4)}, {vr(QY if blk == 0 else QX,4)}, 0")
        ex(gb, gc)
        mm(f"v_smfmac_f32_32x32x32_bf16 {vr(Oc,16)}, {vr(Vk,4)}, {vr(Sc,8)}, v{IDX}")
        if O.pair and t == 15:
            refill("A_rf0", 0, 1)
        if O.pair and t == 1:
            refill("A_rf1", 2, 2)
        if O.pair and O.kv_first < 5 and t in (3, 5, 7)[:5 - O.kv_first]:
            refill(f"A_rf{t}", 0, 0)
        ex(gc, 16)
    E(f"s_add_u32 s{S_CNT}, s{S_CNT}, 1")
    E(f"s_cmp_lt_u32 s{S_CNT}, {O.att_iters * 8 // NT}")
    E("s_cbranch_scc1 A_loop")
    E("s_nop 1")
    E(f"v_smfmac_f32_32x32x32_bf16 {vr(OB,16)}, {vr(V1+4,4)}, {vr(S1+8,8)}, v{IDX}")
    E.label("A_fin")
    stamp(6)
    E("s_setprio 3")
    E(f"s_lshr_b32 s{S_T3}, s{S_WAVE}, 2")
    E(f"s_add_u32 s{S_B}, s{S_B}, s{S_T3}")
    E(f"s_lshl_b32 s{S_T1}, s{S_WAVE}, 12")
    E(f"s_xor_b32 s{S_T2}, s{S_T1}, 16384")
    E(f"v_add_u32 v10, s{S_T1}, v{VL}")
    E(f"v_add_u32 v11, s{S_T2}, v{VL}")
    E(f"s_mul_i32 s{S_T0}, s{S_B}, 144")
    E(f"s_add_u32 s{S_T0}, s{S_T0}, s{S_D}")
    E(f"s_lshl_b32 s{S_T0}, s{S_T0}, 10")
    E(f"s_add_u32 s{S_T0}, s{S_T0}, {WS_HO + 112*1024:#x}")
    E(f"s_lshl_b32 s{S_T1}, s{S_B}, 11")
    E(f"s_lshl_b32 s{S_T2}, s{S_D}, 6")
    E(f"s_add_u32 s{S_T1}, s{S_T1}, s{S_T2}")
    E(f"s_add_u32 s{S_T1}, s{S_T1}, {WS_FO:#x}")
    if O.x_noex:
        E("s_branch A_noex")
    E(f"s_cmp_lg_u32 s{S_T3}, 0")
    E("s_cbranch_scc1 A_hi")
    for i in range(3):
        E(f"ds_write_b128 v10, {vr(OB+4*i,4)} offset:{1024*i}")
    E("s_branch A_x")
    E.label("A_hi")
    for i in range(3):
        E(f"ds_write_b128 v10, {vr(OA+4*i,4)} offset:{1024*i}")
    E("s_nop 1")
    for i in range(9):
        E(f"v_mov_b32 v{OA+i}, v{OB+i}")
    E.label("A_x")
    E("s_waitcnt lgkmcnt(0)")
    E("s_barrier")
    E(f"ds_read_b128 {vr(S0+8,4)}, v11 offset:2048")
    E(f"ds_read_b128 {vr(S0,4)}, v11")
    E(f"ds_read_b128 {vr(S0+4,4)}, v11 offset:1024")
    E("s_waitcnt lgkmcnt(2)")
    E.label("A_noex")
    E(f"v_add_f32 v12, v{OA+8}, v{S0+8}")
    E("v_rcp_f32 v12, v12")
    E("s_waitcnt lgkmcnt(0)")
    for i in range(8):
        E(f"v_add_f32 v{OA+i}, v{OA+i}, v{S0+i}")
    for i in range(8):
        E(f"v_mul_f32 v{OA+i}, v12, v{OA+i}")
    for i in range(4):
        E(f"v_cvt_pk_bf16_f32 v{S1+i}, v{OA+2*i}, v{OA+2*i+1}")
    E(f"buffer_store_dwordx4 {vr(S1,4)}, v{VL}, {sr(WS)}, s{S_T0} offen sc0 sc1")
    if not O.x_noack:
        E("s_waitcnt vmcnt(0)")
    put_flag(S_T1)
    stamp(7)
    flush_stamps(range(10), "A_st")
    E("s_endpgm")

    E.label("A_slow")
    MX, MY, T, AL = 4, 5, 6, 7
    E(f"v_mov_b32 v{MX}, 0xff7fffff")
    E(f"v_mov_b32 v{MY}, 0xff7fffff")
    E.label("A_sloop")
    E(f"s_mov_b32 s{S_T3}, 0")
    E.label("A_stile")
    E(f"ds_read_b128 {vr(K0,4)}, v{VK}")
    vreads(V0, 0)
    E(f"v_add_u32 v{VK}, 4096, v{VK}")
    E(f"v_add_u32 v{VV}, 4096, v{VV}")
    E("s_waitcnt lgkmcnt(0)")
    for (M, Q, Oc) in ((MX, QX, OA), (MY, QY, OB)):
        E(f"v_mfma_f32_32x32x16_bf16 {vr(S0,16)}, {vr(K0,4)}, {vr(Q,4)}, 0")
        E("s_nop 15")
        E(f"v_max3_f32 v{T}, v{S0}, v{S0+1}, v{M}")
        for i in range(1, 8):
            E(f"v_max3_f32 v{T}, v{S0+2*i}, v{S0+2*i+1}, v{T}")
        E(f"v_mov_b32 v{AL}, v{T}")
        E("s_nop 1")
        E(f"v_permlane32_swap_b32 v{T}, v{AL}")
        E("s_nop 1")
        E(f"v_max_f32 v{T}, v{T}, v{AL}")
        E(f"v_sub_f32 v{AL}, v{M}, v{T}")
        E(f"v_exp_f32 v{AL}, v{AL}")
        E(f"v_mov_b32 v{M}, v{T}")
        for i in range(16):
            E(f"v_sub_f32 v{S0+i}, v{S0+i}, v{T}")
        for i in range(16):
            E(f"v_exp_f32 v{S0+i}, v{S0+i}")
        for i in range(9):
            E(f"v_mul_f32 v{Oc+i}, v{AL}, v{Oc+i}")
        E("s_nop 1")
        E(f"v_smfmac_f32_32x32x32_bf16 {vr(Oc,16)}, {vr(V0,4)}, {vr(S0,8)}, v{IDX}")
        E(f"v_smfmac_f32_32x32x32_bf16 {vr(Oc,16)}, {vr(V0+4,4)}, {vr(S0+8,8)}, v{IDX}")
    E(f"s_add_u32 s{S_T3}, s{S_T3}, 1")
    E(f"s_cmp_lt_u32 s{S_T3}, 4")
    E("s_cbranch_scc1 A_stile")
    chunk_turn()
    E(f"s_add_u32 s{S_CNT}, s{S_CNT}, 1")
    E(f"s_cmp_lt_u32 s{S_CNT}, 8")
    E("s_cbranch_scc1 A_sloop")
    E(f"s_lshl_b32 s{S_T1}, s{S_WAVE}, 10")
    E(f"s_add_u32 s{S_T1}, s{S_T1}, 65536")
    E(f"s_xor_b32 s{S_T2}, s{S_T1}, 4096")
    E(f"v_add_u32 v10, s{S_T1}, v{VL}")
    E(f"v_add_u32 v11, s{S_T2}, v{VL}")
    E(f"ds_write_b64 v10, v[{MX}:{MY}]")
    E("s_waitcnt lgkmcnt(0)")
    E("s_barrier")
    E(f"ds_read_b64 v[{T}:{AL}], v11")
    E("s_waitcnt lgkmcnt(0)")
    for (M, P, Oc) in ((MX, T, OA), (MY, AL, OB)):
        E(f"v_max_f32 v{P}, v{P}, v{M}")
        E(f"v_sub_f32 v{P}, v{M}, v{P}")
        E(f"v_exp_f32 v{P}, v{P}")
        E("s_nop 0")
        for i in range(9):
            E(f"v_mul_f32 v{Oc+i}, v{P}, v{Oc+i}")
    E("s_branch A_fin")


F_XS, F_WS0, F_WSZ = 16384, 32768, 16384
WROW = 3584


def f_dma_x(u, vm):
    E(f"s_add_u32 m0, s{S_W1K}, {(u % 2) * F_XS}")
    E(f"s_add_u32 s{S_T0}, s{S_XB}, s{S_XK}")
    E(f"buffer_load_dwordx4 v1, {sr(X)}, s{S_T0} offen lds")
    E(f"s_add_u32 m0, s{S_W1K}, {(u % 2) * F_XS + 8192}")
    E(f"s_add_u32 s{S_T0}, s{S_T0}, 0x10000")
    E(f"buffer_load_dwordx4 v1, {sr(X)}, s{S_T0} offen lds")
    E(f"s_add_u32 s{S_XK}, s{S_XK}, 128")
    E(f"s_and_b32 s{S_XK}, s{S_XK}, 1023")
    vm.issue(("x", u), 2)


def f_dma_w(s, vm):
    base = F_WS0 + (s % 3) * F_WSZ
    E(f"s_add_u32 m0, s{S_W1K}, {base}")
    E("s_nop 0")
    E(f"buffer_load_dwordx4 v2, {sr(W1)}, s{S_WK} offen lds")
    E(f"s_add_u32 m0, s{S_W1K}, {base + 8192}")
    E("s_nop 0")
    E(f"buffer_load_dwordx4 v3, {sr(WU)}, s{S_WK} offen lds")
    E(f"s_add_u32 s{S_WK}, s{S_WK}, {32 * WROW}")
    E(f"s_cmp_eq_u32 s{S_WK}, {512 * WROW}")
    E(f"s_cselect_b32 s{S_WK}, 0, s{S_WK}")
    vm.issue(("w", s), 2)


def f_prologue():
    E(f"s_cmp_ge_u32 s2, {256 if O.no_f else 512}")
    E("s_cbranch_scc1 L_end")
    stamp(0)
    E(f"s_load_dwordx2 s[{X}:{X+1}], s[0:1], 0")
    E(f"s_load_dwordx2 s[{W1}:{W1+1}], s[0:1], 32")
    E(f"s_load_dwordx2 s[{WU}:{WU+1}], s[0:1], 40")
    E(f"s_load_dwordx2 s[{WS}:{WS+1}], s[0:1], 80")
    E(f"s_load_dwordx2 s[{DBG}:{DBG+1}], s[0:1], 72")
    E(f"s_load_dwordx2 s[{WD}:{WD+1}], s[0:1], 48")
    E(f"s_load_dwordx2 s[{WO}:{WO+1}], s[0:1], 16")
    E(f"s_load_dwordx2 s[{OUT}:{OUT+1}], s[0:1], 64")
    E(f"s_load_dwordx2 s[{GW}:{GW+1}], s[0:1], 56")
    E("v_lshrrev_b32 v8, 6, v0")
    E(f"s_bfe_u32 s{S_C}, s2, 0x50003")
    E(f"v_readfirstlane_b32 s{S_WAVE}, v8")
    E(f"s_cmp_ge_u32 s{S_C}, 28")
    E("s_cbranch_scc0 F_main")
    E("s_getpc_b64 s[4:5]")
    E.label("F_pc")
    E(f"s_add_u32 s4, s4, CODE_START - F_pc")
    E("s_addc_u32 s5, s5, -1")
    E("s_mov_b32 s6, CODE_END - CODE_START")
    E("s_mov_b32 s7, 0x20000")
    E("v_lshlrev_b32 v9, 7, v0")
    E("buffer_load_dword v120, v9, s[4:7], 0 offen")
    E("s_branch F_main")


def f_main():
    E.label("F_main")
    srd(X, 0x200000); srd(W1, 512 * WROW); srd(WU, 512 * WROW); srd(WS, WS_SIZE); srd(DBG, 256)
    srd(WD, 1792 * 1024); srd(WO, 512 * 1024); srd(OUT, 0x200000); srd(GW, 1024)
    E(f"s_lshl_b32 s{S_W1K}, s{S_WAVE}, 10")
    E(f"s_setprio {O.prio_f if O.prio_up < 0 else O.prio_up}")
    E("v_lshrrev_b32 v9, 3, v0")
    E("v_lshrrev_b32 v10, 4, v0")
    E("v_xor_b32 v11, v10, v0")
    E("v_and_b32 v11, 7, v11")
    E("v_lshlrev_b32 v11, 4, v11")
    E("v_lshl_add_u32 v1, v9, 10, v11")
    E("s_waitcnt lgkmcnt(0)")
    if O.only_down:
        stamp(1); stamp(2); stamp(3); stamp(10); stamp(11); stamp(12)
        E("s_branch F_pub")
    if O.warm_steps:
        E(f"s_cmp_lt_u32 s{S_WAVE}, 4")
        E(f"s_cselect_b32 s4, s{W1}, s{WU}")
        E(f"s_cselect_b32 s5, s{W1+1}, s{WU+1}")
        E(f"s_mul_i32 s{S_T0}, s{S_C}, {WROW}")
        E(f"s_bfe_u32 s{S_T1}, s2, 0x10002")
        E(f"s_mul_i32 s{S_T1}, s{S_T1}, 1792")
        E(f"s_add_u32 s{S_T0}, s{S_T0}, s{S_T1}")
        E(f"s_and_b32 s{S_T1}, s{S_WAVE}, 3")
        E(f"s_mul_i32 s{S_T1}, s{S_T1}, 448")
        E(f"s_add_u32 s{S_T0}, s{S_T0}, s{S_T1}")
        E(f"s_add_u32 s4, s4, s{S_T0}")
        E("s_addc_u32 s5, s5, 0")
        E(f"s_mov_b32 s{S_CNT}, {O.warm_steps}")
        E.label("F_warm")
        for i in range(7):
            E(f"s_load_dword s6, s[4:5], {64*i}")
        E(f"s_add_u32 s4, s4, {32 * WROW}")
        E("s_addc_u32 s5, s5, 0")
        E(f"s_sub_u32 s{S_CNT}, s{S_CNT}, 1")
        E(f"s_cmp_lg_u32 s{S_CNT}, 0")
        E("s_cbranch_scc1 F_warm")
        E("s_waitcnt lgkmcnt(0)")
    if O.f_touch:
        E(f"s_lshl_b32 s{S_T0}, s{S_C}, 2")
        E(f"s_and_b32 s{S_T1}, s{S_WAVE}, 3")
        E(f"s_add_u32 s{S_T0}, s{S_T0}, s{S_T1}")
        E(f"s_mul_i32 s{S_T0}, s{S_T0}, {2 * 3584}")
        E(f"s_bfe_u32 s{S_T1}, s2, 0x10002")
        E(f"s_mul_i32 s{S_T1}, s{S_T1}, 1792")
        E(f"s_add_u32 s{S_T0}, s{S_T0}, s{S_T1}")
        E("v_bfe_u32 v12, v0, 4, 1")
        E("v_mul_u32_u24 v12, 3584, v12")
        E("v_and_b32 v13, 15, v0")
        E("v_lshl_add_u32 v12, v13, 7, v12")
        E(f"v_add_u32 v13, s{S_T0}, v12")
        E(f"s_cmp_lt_u32 s{S_WAVE}, 4")
        E(f"s_cselect_b32 s4, s{W1}, s{WU}")
        E(f"s_cselect_b32 s5, s{W1+1}, s{WU+1}")
        E(f"s_mov_b32 s6, {512 * WROW}")
        E("s_mov_b32 s7, 0x20000")
        if O.f_touch == 1:
            E("s_mov_b64 exec, 1")
            E(f"buffer_load_dword v15, v13, s[4:7], 0 offen")
            E("s_waitcnt vmcnt(0)")
            E("s_mov_b64 exec, 0x3fff3fff")
            E(f"buffer_load_dword v15, v13, s[4:7], 0 offen")
            E("s_mov_b64 exec, -1")
    E(f"s_cmp_ge_u32 s{S_C}, 28")
    E("s_cbranch_scc1 F_gate")
    E(f"s_and_b32 s{S_T0}, s{S_C}, 3")
    E(f"s_lshr_b32 s{S_T1}, s{S_C}, 2")
    E(f"s_and_b32 s{S_A}, s2, 3")
    E(f"s_lshl_b32 s{S_A}, s{S_A}, 2")
    E(f"s_add_u32 s{S_A}, s{S_A}, s{S_T0}")
    E(f"s_bfe_u32 s{S_B}, s2, 0x10002")
    E(f"s_mul_i32 s{S_B}, s{S_B}, 7")
    E(f"s_add_u32 s{S_B}, s{S_B}, s{S_T1}")
    E(f"s_lshl_b32 s{S_T0}, s{S_T0}, 1")
    E(f"s_add_u32 s{S_T0}, s{S_T0}, s{S_T1}")
    E(f"s_and_b32 s{S_T0}, s{S_T0}, {7 if O.f_rot else 0}")
    E(f"s_lshl_b32 s{S_XK}, s{S_T0}, 7")
    E(f"s_mul_i32 s{S_WK}, s{S_T0}, {64 * WROW}")
    E(f"s_lshl_b32 s{S_XB}, s{S_A}, 17")
    E(f"v_mul_u32_u24 v9, {WROW}, v10")
    E("v_bfe_u32 v11, v0, 1, 3")
    E("v_and_b32 v10, 3, v10")
    E("v_xor_b32 v11, v11, v10")
    E("v_lshl_add_u32 v9, v11, 5, v9")
    E("v_and_b32 v11, 1, v0")
    E("v_lshl_add_u32 v9, v11, 4, v9")
    E(f"s_lshl_b32 s{S_T0}, s{S_B}, 8")
    E(f"v_add_u32 v2, s{S_T0}, v9")
    E("v_xor_b32 v3, 128, v2")
    vm = VM()

    def fill():
        f_dma_x(0, vm); f_dma_w(0, vm); f_dma_w(1, vm); f_dma_x(1, vm); f_dma_w(2, vm)

    if O.f_fill_early:
        fill()
    E("v_and_b32 v8, 31, v0")
    E("v_lshrrev_b32 v9, 1, v8")
    E("v_and_b32 v9, 7, v9")
    E("v_bfe_u32 v10, v0, 5, 1")
    E("v_xor_b32 v9, v9, v10")
    E("v_lshlrev_b32 v9, 4, v9")
    E("v_lshl_add_u32 v9, v8, 7, v9")
    E("v_bfe_u32 v8, v0, 6, 1")
    E("v_lshl_add_u32 v4, v8, 13, v9")
    for ks in (1, 2, 3):
        E(f"v_xor_b32 v{4+ks}, {32*ks}, v4")
    E("v_bfe_u32 v8, v0, 2, 2")
    E("v_lshl_add_u32 v9, v10, 3, v8")
    E("v_lshlrev_b32 v9, 8, v9")
    E("v_bfe_u32 v10, v0, 4, 1")
    E("v_lshl_add_u32 v9, v10, 13, v9")
    E("v_lshlrev_b32 v10, 2, v10")
    E("v_xor_b32 v8, v8, v10")
    E("v_lshrrev_b32 v10, 7, v0")
    E("v_lshlrev_b32 v10, 1, v10")
    E("v_xor_b32 v8, v8, v10")
    E("v_lshl_add_u32 v9, v8, 5, v9")
    E("v_and_b32 v8, 3, v0")
    E("v_lshl_add_u32 v9, v8, 3, v9")
    E(f"v_add_u32 v8, {F_WS0}, v9")
    E("v_xor_b32 v9, 32, v8")
    E(f"s_cmp_lg_u32 s{S_WAVE}, 0")
    E("s_cbranch_scc1 F_go")
    wait_start("F_tag", 1 if O.hint1 >= 0 else 0)
    E.label("F_go")
    if not O.f_fill_early:
        E("s_barrier")
        if O.f_touch == 3:
            f_dma_x(0, vm); f_dma_w(0, vm)
        if O.f_touch >= 2:
            E("s_mov_b64 exec, 0x3fff3fff")
            E(f"buffer_load_dword v15, v13, s[4:7], 0 offen")
            E("s_mov_b64 exec, -1")
            vm.issue("t")
        if O.f_touch == 3:
            f_dma_w(1, vm); f_dma_x(1, vm); f_dma_w(2, vm)
        else:
            fill()
    stamp(1)

    def reads(s, kk):
        b = 16 + 16 * kk
        u = s // 2
        L = []
        for i in (0, 1):
            L.append(f"ds_read_b128 {vr(b+4*i,4)}, v{4 + 2*(s&1) + kk} offset:{(u % 2) * F_XS + i * 4096}")
            for q in (0, 1):
                L.append(f"ds_read_b64_tr_b16 {vr(b+8+4*i+2*q,2)}, v{8+i} offset:{(s % 3) * F_WSZ + kk * 4096 + q * 1024}")
        return L

    def mfmas(s, kk):
        b = 16 + 16 * kk
        L = []
        for rbk, bb in ((0, 0), (0, 1), (1, 1), (1, 0)):
            acc = vr(64 + 16 * (2 * rbk + bb), 16)
            c = "0" if (s == 0 and kk == 0) else acc
            L.append(f"v_mfma_f32_32x32x16_bf16 {acc}, {vr(b+8+4*bb,4)}, {vr(b+4*rbk,4)}, {c}")
        return L

    E(f"s_waitcnt vmcnt({vm.need(('x',0),('w',0))})")
    E("s_barrier")
    stamp(2)
    for x in reads(0, 0):
        E(x)
    def paced(s, kk):
        M, R = mfmas(s, kk), reads(s, kk)
        [E(x) for x in R[:3]]; E("s_waitcnt lgkmcnt(0)"); E(M[0])
        [E(x) for x in R[4:]]; E("s_waitcnt lgkmcnt(0)"); E(M[1])
        E(R[3]); E("s_waitcnt lgkmcnt(0)"); E(M[2]); E(M[3])

    for s in range(16):
        if s > O.pace_from:
            paced(s, 0)
            paced(s, 1)
            if s < 15:
                E(f"s_waitcnt vmcnt({vm.need(('x',(s+1)//2),('w',s+1))})")
                E("s_barrier")
                if s + 3 <= 15:
                    f_dma_w(s + 3, vm)
                if s % 2 == 1 and (s + 1) // 2 + 1 <= 7:
                    f_dma_x((s + 1) // 2 + 1, vm)
                if s in (3, 7, 11):
                    stamp(10 + s // 4)
            continue
        if O.boost_mask and (s == 0 or ((O.boost_mask >> s) ^ (O.boost_mask >> (s - 1))) & 1):
            E(f"s_setprio {O.prio_boost if (O.boost_mask >> s) & 1 else O.prio_f}")
        M, R = mfmas(s, 0), reads(s, 1)
        E("s_waitcnt lgkmcnt(0)")
        E(M[0]); [E(x) for x in R[:3]]; E(M[1]); [E(x) for x in R[3:]]; E(M[2]); E(M[3])
        M = mfmas(s, 1)
        if s == 2 and O.hint1 >= 0 and O.hold:
            E("s_waitcnt lgkmcnt(0)")
            [E(x) for x in M]
            E(f"s_cmp_lg_u32 s{S_WAVE}, 0")
            E("s_cbranch_scc1 F_go2")
            wait_start("F_tag2", 0, False)
            E.label("F_go2")
            E("s_barrier")
            f_dma_w(3, vm); f_dma_w(4, vm); f_dma_x(2, vm); f_dma_w(5, vm)
            E(f"s_waitcnt vmcnt({vm.need(('w', 3))})")
            E("s_barrier")
            [E(x) for x in reads(3, 0)]
            continue
        if s < 15:
            E(f"s_waitcnt vmcnt({vm.need(('x',(s+1)//2),('w',s+1))}) lgkmcnt(0)")
            E("s_barrier")
            R = reads(s + 1, 0) if s + 1 <= O.pace_from else []
            E(M[0]); [E(x) for x in R[:3]]; E(M[1]); [E(x) for x in R[3:]]; E(M[2])
            hold = O.hint1 >= 0 and O.hold and s < 2
            if s + 3 <= 15 and not hold:
                f_dma_w(s + 3, vm)
            E(M[3])
            if s % 2 == 1 and (s + 1) // 2 + 1 <= 7 and not hold:
                f_dma_x((s + 1) // 2 + 1, vm)
            if O.f_wd and O.wd_step <= s < O.wd_step + O.wd_parts:
                E(f"s_lshl_b32 s{S_T0}, s{S_C}, 16")
                E("v_lshlrev_b32 v11, 7, v0")
                if O.wd_parts > 1:
                    n = 64 // O.wd_parts
                    m = ((1 << n) - 1) << (n * (s - O.wd_step))
                    E(f"s_mov_b32 exec_lo, {m & 0xffffffff:#x}")
                    E(f"s_mov_b32 exec_hi, {m >> 32:#x}")
                E(f"buffer_load_dword v15, v11, {sr(WD)}, s{S_T0} offen")
                if O.wd_parts > 1:
                    E("s_mov_b64 exec, -1")
                vm.issue("wd")
            if s == O.f_touch2:
                E(f"s_mov_b32 s{S_T0}, {256 * 3584}")
                E("s_mov_b64 exec, 0x3fff3fff")
                E(f"buffer_load_dword v15, v13, s[4:7], s{S_T0} offen")
                E("s_mov_b64 exec, -1")
                vm.issue("t2")
            if s in (3, 7, 11) and not O.dn_stamps:
                stamp(10 + s // 4)
        else:
            E("s_waitcnt lgkmcnt(0)")
            [E(x) for x in M]
    stamp(3)
    if O.a_exit:
        flush_stamps(range(13), "F_st0")
        E("s_endpgm")
    E(f"s_setprio {O.prio_silu}")
    if O.wo_early:
        voff_w()
        E("s_barrier")
    if O.wo_early == 1:
        wo_stage()
    E(f"s_and_b32 s{S_T0}, s{S_WAVE}, 1")
    E(f"s_lshl_b32 s{S_T0}, s{S_T0}, 1")
    E(f"s_lshl_b32 s{S_T1}, s{S_A}, 2")
    E(f"s_add_u32 s{S_T0}, s{S_T0}, s{S_T1}")
    E(f"s_mul_i32 s{S_T0}, s{S_T0}, 144")
    E(f"s_lshl_b32 s{S_T1}, s{S_B}, 3")
    E(f"s_add_u32 s{S_T0}, s{S_T0}, s{S_T1}")
    E(f"s_and_b32 s{S_T1}, s{S_WAVE}, 6")
    E(f"s_add_u32 s{S_T0}, s{S_T0}, s{S_T1}")
    E(f"s_lshl_b32 s{S_T0}, s{S_T0}, 10")
    E(f"s_add_u32 s{S_T0}, s{S_T0}, {WS_HO:#x}")
    E(f"s_add_u32 s{S_T1}, s{S_T0}, {144 * 1024}")
    E(f"s_mov_b32 s{S_T2}, {NLOG2E:#x}")
    E(f"s_mov_b32 s{S_T3}, {NLOG2E:#x}")
    E("v_and_b32 v10, 63, v0")
    E("v_lshlrev_b32 v10, 4, v10")
    E("v_mov_b32 v12, 1.0")
    E("v_mov_b32 v13, 1.0")
    E("s_nop 4")
    for tl in range(4):
        a = 64 + 16 * tl
        t = 16 + 8 * (tl & 1)
        pk = 32 + 4 * tl
        for i in range(4):
            E(f"v_pk_mul_f32 {vr(t+2*i,2)}, {vr(a+2*i,2)}, s[{S_T2}:{S_T3}]")
        for i in range(8):
            E(f"v_exp_f32 v{t+i}, v{t+i}")
        for i in range(4):
            E(f"v_pk_mul_f32 {vr(a+2*i,2)}, {vr(a+2*i,2)}, {vr(a+8+2*i,2)}")
        for i in range(4):
            E(f"v_pk_add_f32 {vr(t+2*i,2)}, {vr(t+2*i,2)}, v[12:13]")
        for i in range(8):
            E(f"v_rcp_f32 v{t+i}, v{t+i}")
        E("s_nop 0")
        for i in range(4):
            E(f"v_pk_mul_f32 {vr(a+2*i,2)}, {vr(a+2*i,2)}, {vr(t+2*i,2)}")
        for i in range(4):
            E(f"v_cvt_pk_bf16_f32 v{pk+i}, v{a+2*i}, v{a+2*i+1}")
        E(f"buffer_store_dwordx4 {vr(pk,4)}, v10, {sr(WS)}, s{S_T0 + (tl >> 1)} offen offset:{(tl & 1) * 1024} sc0 sc1")
    if O.wo_early == 2:
        wo_stage()
    E(f"s_lshl_b32 s{S_T0}, s{S_A}, 10")
    E(f"s_lshl_b32 s{S_T1}, s{S_B}, 6")
    E(f"s_add_u32 s{S_T0}, s{S_T0}, s{S_T1}")
    E.label("F_pub")
    E(f"s_add_u32 s{S_T0}, s{S_T0}, {WS_FH:#x}")
    E(f"s_waitcnt vmcnt({8 if O.wo_early == 2 else 0})")
    E("s_barrier")
    stamp(4)
    E(f"s_and_b32 s{S_A}, s2, 7")
    E(f"s_lshl_b32 s{S_A}, s{S_A}, 2")
    E(f"s_and_b32 s{S_T1}, s{S_C}, 3")
    E(f"s_add_u32 s{S_A}, s{S_A}, s{S_T1}")
    E(f"s_lshr_b32 s{S_B}, s{S_C}, 2")
    E(f"s_cmp_lg_u32 s{S_WAVE}, 0")
    if O.only_down:
        E("s_branch F_wait2")
    E("s_cbranch_scc1 F_wait2")
    put_flag(S_T0)
    E.label("F_wait2")
    E("v_and_b32 v8, 63, v0")
    E("v_lshlrev_b32 v12, 4, v8")
    E(f"s_and_b32 s{S_T0}, s{S_WAVE}, 1")
    E(f"s_mul_i32 s{S_T1}, s{S_T0}, 144")
    E(f"s_lshr_b32 s{S_T2}, s{S_WAVE}, 1")
    E(f"s_add_u32 s{S_T1}, s{S_T1}, s{S_T2}")
    E(f"s_lshl_b32 s{S_T1}, s{S_T1}, 10")
    E(f"v_add_u32 v1, s{S_T1}, v12")
    E(f"s_lshl_b32 s{S_T1}, s{S_T0}, 2")
    E(f"s_add_u32 s{S_T1}, s{S_T1}, s{S_T2}")
    E(f"s_lshl_b32 s{S_D}, s{S_T1}, 10")
    E("v_bfe_u32 v10, v0, 4, 1")
    if not O.wo_early:
        voff_w()
    E(f"s_lshl_b32 s{S_T0}, s{S_T0}, 12")
    E(f"s_lshr_b32 s{S_T1}, s{S_WAVE}, 2")
    E(f"s_lshl_b32 s{S_T1}, s{S_T1}, 11")
    E(f"s_add_u32 s{S_T0}, s{S_T0}, s{S_T1}")
    E(f"v_add_u32 v4, s{S_T0}, v12")
    E("v_bfe_u32 v8, v0, 2, 2")
    E("v_bfe_u32 v9, v0, 5, 1")
    E("v_lshl_add_u32 v9, v9, 2, v8")
    E("v_lshrrev_b32 v11, 8, v0")
    E("v_lshl_add_u32 v9, v11, 5, v9")
    E("v_lshlrev_b32 v9, 7, v9")
    E("v_lshrrev_b32 v8, 1, v8")
    E("v_bfe_u32 v11, v0, 7, 1")
    E("v_xor_b32 v8, v8, v11")
    E("v_lshl_add_u32 v9, v8, 6, v9")
    E("v_lshl_add_u32 v9, v10, 5, v9")
    E("v_and_b32 v8, 3, v0")
    E("v_lshl_add_u32 v9, v8, 3, v9")
    E("v_add_u32 v5, 8192, v9")
    _m_fix_base()
    E(f"s_mul_i32 s{S_T0}, s{S_B}, 7")
    E(f"s_lshr_b32 s{S_T0}, s{S_T0}, 1")
    E(f"s_and_b32 s{S_T1}, s{S_C}, 3")
    E(f"s_mul_i32 s{S_T1}, s{S_T1}, 7")
    E(f"s_add_u32 s{S_T0}, s{S_T0}, s{S_T1}")
    E(f"s_cmp_ge_u32 s{S_T0}, 28")
    E(f"s_cselect_b32 s{S_T1}, 28, 0")
    E(f"s_sub_u32 s{S_XK}, s{S_T0}, s{S_T1}")
    if not O.d_rot:
        E(f"s_mov_b32 s{S_XK}, 0")
    if O.h_touch:
        E(f"s_lshl_b32 s{S_T0}, s{S_B}, 3")
        E(f"s_add_u32 s{S_T0}, s{S_T0}, s{S_WAVE}")
        E(f"s_mul_i32 s{S_T0}, s{S_T0}, 1792")
        E(f"s_add_u32 s{S_T2}, s{S_T0}, s{S_XB}")
        E("v_and_b32 v8, 15, v0")
        E("v_lshlrev_b32 v8, 7, v8")
        E("v_bfe_u32 v9, v0, 4, 1")
        E(f"v_mul_u32_u24 v9, {144 * 1024}, v9")
        E("v_add_u32 v8, v8, v9")
    if not O.wo_early:
        wo_stage()
    E(f"s_lshr_b32 s{S_T1}, s{S_WAVE}, 2")
    E(f"s_mul_i32 s{S_T0}, s{S_T1}, 28672")
    E(f"s_sub_u32 s{S_T0}, s{S_T0}, 8192")
    E(f"v_add_u32 v9, s{S_T0}, v5")
    if O.wo_early != 1:
        E("s_waitcnt vmcnt(0)")
        E("s_barrier")
    wf = lambda k: (48 + 4 * k) if k < 4 else (80 + 4 * (k - 4))
    for k in range(16):
        for q in (0, 1):
            E(f"ds_read_b64_tr_b16 {vr(wf(k) + 2*q, 2)}, v9 offset:{k * 2048 + q * 1024}")
    E(f"s_cmp_lg_u32 s{S_WAVE}, 0")
    if O.only_down:
        E("s_branch F_wait2b")
    E("s_cbranch_scc1 F_wait2b")
    E("v_and_b32 v10, 15, v0")
    E("v_lshlrev_b32 v10, 6, v10")
    E(f"s_lshr_b32 s{S_T0}, s{S_A}, 1")
    E(f"s_lshl_b32 s{S_T0}, s{S_T0}, 10")
    E(f"s_add_u32 s{S_T0}, s{S_T0}, {WS_FH:#x}")
    poll("F_pollh", 10, f"s{S_T0}")
    E.label("F_wait2b")
    E("s_waitcnt lgkmcnt(0)")
    E("s_barrier")
    stamp(5)

    NS = O.dn_ns
    vd = VM()

    def dma(st):
        slot = st % NS
        E(f"s_add_u32 m0, s{S_D}, {slot * 16384}")
        if O.d_rot:
            E(f"s_lshl_b32 s{S_T0}, s{S_XK}, 12")
            E(f"s_add_u32 s{S_T0}, s{S_T0}, s{S_XB}")
        else:
            E(f"s_add_u32 s{S_T0}, s{S_XB}, {st * 4096}")
        E(f"buffer_load_dwordx4 v1, {sr(WS)}, s{S_T0} offen sc1 lds")
        E(f"s_add_u32 m0, s{S_W1K}, {slot * 16384 + 8192}")
        if O.d_rot:
            E(f"s_lshl_b32 s{S_T0}, s{S_XK}, 16")
        else:
            E(f"s_mov_b32 s{S_T0}, {st * 65536}")
        E(f"buffer_load_dwordx4 v2, {sr(WD)}, s{S_T0} offen lds")
        if O.d_rot:
            E(f"s_add_u32 s{S_XK}, s{S_XK}, 1")
            E(f"s_cmp_eq_u32 s{S_XK}, 28")
            E(f"s_cselect_b32 s{S_XK}, 0, s{S_XK}")
        vd.issue(st, 2)

    def greads(st):
        slot = st % NS
        b = 16 + 16 * (st & 1)
        vb, vw, base = (4, 5, slot * 16384) if slot < 4 else (3, 13, 0)
        L = []
        for kk in (0, 1):
            L.append(f"ds_read_b128 {vr(b+4*kk,4)}, v{vb} offset:{base + kk * 1024}")
            for q in (0, 1):
                L.append(f"ds_read_b64_tr_b16 {vr(b+8+4*kk+2*q,2)}, v{vw} offset:{base + kk * 2048 + q * 1024}")
        return L

    for t in range(O.ht_pos):
        dma(t)
    if O.h_touch:
        E("s_mov_b64 exec, 0x3fff3fff")
        E(f"buffer_load_dword v15, v8, {sr(WS)}, s{S_T2} offen sc1")
        E("s_mov_b64 exec, -1")
        vd.issue("h")
    E("v_and_b32 v8, 31, v0")
    E("v_bfe_u32 v9, v0, 6, 1")
    E("v_lshl_add_u32 v8, v9, 5, v8")
    E("v_lshlrev_b32 v9, 2, v8")
    E(f"s_lshl_b32 s{S_T0}, s{S_A}, 8")
    E(f"s_add_u32 s{S_T0}, s{S_T0}, {WS_G:#x}")
    E(f"buffer_load_dword v14, v9, {sr(WS)}, s{S_T0} offen sc1")
    vd.issue("g")
    for t in range(O.ht_pos, NS):
        dma(t)
    issued = NS
    E("v_add_u32 v3, 0x10000, v4")
    E("v_add_u32 v13, 0x10000, v5")
    E(f"s_setprio {O.prio_f if O.prio_dn < 0 else O.prio_dn}")
    bars = [t for t in range(27) if t >= O.dn_grp_until or t % O.dn_grp == O.dn_grp - 1]
    E(f"s_waitcnt vmcnt({vd.need(*range(0, bars[0] + 1))})")
    E("s_barrier")
    [E(x) for x in greads(0)]
    for t in range(28):
        b = 16 + 16 * (t & 1)
        M = [f"v_mfma_f32_32x32x16_bf16 v[64:79], {vr(b+8+4*kk,4)}, {vr(b+4*kk,4)}, {'0' if t + kk == 0 else 'v[64:79]'}" for kk in (0, 1)]
        if t == O.dn_low:
            E(f"s_setprio {O.prio_f_late}")
        if O.dn_stamps and t in (4, 12, 20):
            stamp(10 + t // 8)
        if t in bars:
            nxt = min([x for x in bars if x > t] + [27])
            E(f"s_waitcnt vmcnt({vd.need(*range(t + 1, nxt + 1))}) lgkmcnt(0)")
            E("s_barrier")
        else:
            E("s_waitcnt lgkmcnt(0)")
        R = greads(t + 1) if t < 27 else []
        E(M[0]); [E(x) for x in R[:3]]; E(M[1]); [E(x) for x in R[3:]]
        if t in bars:
            while issued <= min(27, t + NS):
                dma(issued)
                issued += 1
    stamp(6)
    E("s_setprio 3")
    if O.only_down:
        flush_stamps(range(13), "F_st1")
        E("s_endpgm")
    E("v_and_b32 v8, 31, v0")
    E("v_bfe_u32 v9, v0, 6, 1")
    E("v_lshl_add_u32 v8, v9, 5, v8")
    E(f"s_lshr_b32 s{S_T1}, s{S_WAVE}, 2")
    E(f"s_bfe_u32 s{S_T2}, s{S_WAVE}, 0x10001")
    E(f"s_lshl_b32 s{S_T2}, s{S_T2}, 4")
    E(f"s_add_u32 s{S_T2}, s{S_T2}, s{S_T1}")
    E(f"s_and_b32 s{S_T3}, s{S_WAVE}, 1")
    E(f"s_lshl_b32 s{S_D}, s{S_T3}, 5")
    E(f"s_add_u32 s{S_D}, s{S_D}, s{S_T2}")
    E(f"s_lshl_b32 s{S_D}, s{S_D}, 10")
    E(f"s_mul_i32 s{S_T0}, s{S_T3}, 144")
    E(f"s_add_u32 s{S_T0}, s{S_T0}, s{S_T2}")
    E(f"s_add_u32 s{S_T0}, s{S_T0}, 112")
    E(f"s_lshl_b32 s{S_T0}, s{S_T0}, 10")
    E(f"s_add_u32 s{S_XB}, s{S_XB}, s{S_T0}")
    E(f"s_lshl_b32 s{S_T3}, s{S_T3}, 15")
    E(f"s_lshl_b32 s{S_T1}, s{S_T1}, 14")
    E(f"s_add_u32 s{S_T3}, s{S_T3}, s{S_T1}")
    E(f"v_add_u32 v4, s{S_T3}, v12")
    out_addr()
    E("v_sub_f32 v15, 1.0, v14")
    for i in range(16):
        E(f"v_mul_f32 v{64+i}, v15, v{64+i}")
    E(f"s_cmp_lg_u32 s{S_WAVE}, 0")
    E("s_cbranch_scc1 F_wait3")
    E("v_lshlrev_b32 v10, 6, v0")
    E(f"s_lshl_b32 s{S_T0}, s{S_A}, 12")
    E(f"s_add_u32 s{S_T0}, s{S_T0}, {WS_FO:#x}")
    poll("F_pollo", 10, f"s{S_T0}", O.piped & 2)
    E("s_waitcnt vmcnt(0)")
    E.label("F_wait3")
    E("s_waitcnt lgkmcnt(0)")
    E("s_barrier")
    stamp(7)
    for i in range(8):
        E(f"s_add_u32 m0, s{S_D}, {i * 2048}")
        E(f"s_add_u32 s{S_T0}, s{S_XB}, {i * 2048}")
        E(f"buffer_load_dwordx4 v12, {sr(WS)}, s{S_T0} offen sc1 lds")
    NQ = O.o_parts
    per = 16 // NQ
    for part in range(NQ):
        E(f"s_waitcnt vmcnt({8 - (part + 1) * 8 // NQ})")
        E("s_barrier")
        for k in range(min(4, per)):
            E(f"ds_read_b128 {vr(32 + 4*k, 4)}, v4 offset:{(per * part + k) * 1024}")
        for k in range(per):
            E(f"s_waitcnt lgkmcnt({min(3, per - 1 - k)})")
            E(f"v_mfma_f32_32x32x16_bf16 v[16:31], {vr(wf(per*part + k), 4)}, {vr(32 + 4*(k % 4), 4)}, {'0' if part + k == 0 else 'v[16:31]'}")
            if k + 4 < per:
                E(f"ds_read_b128 {vr(32 + 4*(k % 4), 4)}, v4 offset:{(per * part + 4 + k) * 1024}")
    if O.twice:
        E(f"s_mov_b32 s{S_CNT}, 0")
        E.label("F_tw")
    stamp(8)
    E("s_nop 11")
    for i in range(16):
        E(f"v_fmac_f32 v{64+i}, v14, v{16+i}")
    E(f"s_cmp_ge_u32 s{S_WAVE}, 4")
    E("s_cbranch_scc1 F_hi")
    E("ds_write_b128 v6, v[72:75]")
    E("ds_write_b128 v6, v[76:79] offset:1024")
    E("s_branch F_x")
    E.label("F_hi")
    E("ds_write_b128 v6, v[64:67]")
    E("ds_write_b128 v6, v[68:71] offset:1024")
    E("s_nop 1")
    for i in range(8):
        E(f"v_mov_b32 v{64+i}, v{72+i}")
    E.label("F_x")
    E("s_waitcnt lgkmcnt(0)")
    E("s_barrier")
    E("ds_read_b128 v[80:83], v7")
    E("ds_read_b128 v[84:87], v7 offset:1024")
    E("s_waitcnt lgkmcnt(0)")
    for i in range(8):
        E(f"v_add_f32 v{64+i}, v{64+i}, v{80+i}")
    for i in range(4):
        E(f"v_cvt_pk_bf16_f32 v{16+i}, v{64+2*i}, v{65+2*i}")
    E("s_nop 1")
    E("v_permlane32_swap_b32 v16, v18")
    E("v_permlane32_swap_b32 v17, v19")
    E(f"buffer_store_dwordx4 v[16:19], v8, {sr(OUT)}, s{S_XK} offen")
    stamp(9)
    if O.twice:
        E("s_barrier")
        E(f"s_add_u32 s{S_CNT}, s{S_CNT}, 1")
        E(f"s_cmp_lt_u32 s{S_CNT}, 2")
        E("s_cbranch_scc1 F_tw")
    flush_stamps(range(13), "F_st")
    E("s_endpgm")

    E.label("F_gate")
    if O.a_exit:
        E("s_endpgm")
    E(f"s_cmp_lg_u32 s{S_WAVE}, 0")
    E("s_cbranch_scc1 F_gate1")
    wait_start("F_tag3", 0 if O.hint_step == 17 else 2)
    E.label("F_gate1")
    E("s_setprio 3")
    E("s_barrier")
    E(f"s_and_b32 s{S_A}, s2, 7")
    E(f"s_lshl_b32 s{S_A}, s{S_A}, 2")
    E(f"s_add_u32 s{S_A}, s{S_A}, s{S_C}")
    E(f"s_sub_u32 s{S_A}, s{S_A}, 28")
    E(f"s_lshl_b32 s{S_T0}, s{S_A}, 16")
    E("v_and_b32 v10, 7, v0")
    E("v_lshlrev_b32 v10, 4, v10")
    E("v_lshl_add_u32 v11, v9, 10, v10")
    for i in range(8):
        E(f"buffer_load_dwordx4 {vr(16+4*i,4)}, v11, {sr(X)}, s{S_T0} offen offset:{128*i}")
    for i in range(8):
        E(f"buffer_load_dwordx4 {vr(48+4*i,4)}, v10, {sr(GW)}, 0 offen offset:{128*i}")
    E("v_mov_b32 v12, 0")
    E("v_mov_b32 v13, 0")
    E("s_waitcnt vmcnt(0)")
    for i in range(32):
        E(f"v_dot2_f32_bf16 v{12 + (i & 1)}, v{16+i}, v{48+i}, v{12 + (i & 1)}")
        if i % 2 == 1:
            E("s_nop 0")
    E("s_nop 2")
    E("v_add_f32 v12, v12, v13")
    for ctl in ("quad_perm:[1,0,3,2]", "quad_perm:[2,3,0,1]", "row_half_mirror"):
        E("s_nop 1")
        E(f"v_add_f32_dpp v12, v12, v12 {ctl} row_mask:0xf bank_mask:0xf")
    E(f"v_mul_f32 v12, {NLOG2E:#x}, v12")
    E("v_exp_f32 v12, v12")
    E("s_nop 0")
    E("v_add_f32 v12, 1.0, v12")
    E("v_rcp_f32 v12, v12")
    E("v_lshlrev_b32 v11, 2, v9")
    E(f"s_lshl_b32 s{S_T0}, s{S_A}, 8")
    E(f"s_add_u32 s{S_T0}, s{S_T0}, {WS_G:#x}")
    E("v_cmp_eq_u32 vcc, 0, v10")
    E("s_nop 4")
    E("s_mov_b64 exec, vcc")
    E(f"buffer_store_dword v12, v11, {sr(WS)}, s{S_T0} offen sc0 sc1")
    E("s_mov_b64 exec, -1")
    if O.f_wd:
        E(f"s_and_b32 s{S_T0}, s{S_C}, 3")
        E(f"s_lshl_b32 s{S_T0}, s{S_T0}, 17")
        E(f"s_add_u32 s{S_T1}, s{S_T0}, 0x10000")
        E("v_lshlrev_b32 v11, 7, v0")
        E(f"buffer_load_dword v15, v11, {sr(WO)}, s{S_T0} offen")
        E(f"buffer_load_dword v15, v11, {sr(WO)}, s{S_T1} offen")
    if O.wo_early:
        voff_w()
        wo_stage()
    for i in (1, 2, 3, 10, 11, 12):
        stamp(i)
    E(f"s_lshr_b32 s{S_T0}, s{S_A}, 1")
    E(f"s_lshl_b32 s{S_T0}, s{S_T0}, 10")
    E(f"s_and_b32 s{S_T1}, s{S_A}, 1")
    E(f"s_lshl_b32 s{S_T1}, s{S_T1}, 6")
    E(f"s_add_u32 s{S_T0}, s{S_T0}, s{S_T1}")
    E(f"s_add_u32 s{S_T0}, s{S_T0}, {14 * 64}")
    E("s_branch F_pub")


def out_addr():
    E("v_lshlrev_b32 v8, 10, v8")
    E("v_bfe_u32 v9, v0, 5, 1")
    E("v_lshl_add_u32 v8, v9, 4, v8")
    E("v_bfe_u32 v9, v0, 7, 1")
    E("v_lshl_add_u32 v8, v9, 6, v8")
    E("v_lshrrev_b32 v9, 8, v0")
    E("v_lshl_add_u32 v8, v9, 5, v8")
    E(f"s_lshl_b32 s{S_XK}, s{S_A}, 16")
    E(f"s_lshl_b32 s{S_T1}, s{S_B}, 7")
    E(f"s_add_u32 s{S_XK}, s{S_XK}, s{S_T1}")
    E(f"s_lshl_b32 s{S_T1}, s{S_WAVE}, 11")
    E(f"s_add_u32 s{S_T1}, s{S_T1}, 65536")
    E(f"s_xor_b32 s{S_T2}, s{S_T1}, 8192")
    E(f"v_add_u32 v6, s{S_T1}, v12")
    E(f"v_add_u32 v7, s{S_T2}, v12")


def voff_w():
    E("v_bfe_u32 v2, v0, 4, 1")
    E("v_lshlrev_b32 v2, 2, v2")
    E("v_xor_b32 v2, v2, v0")
    E("v_and_b32 v2, 7, v2")
    E("v_lshlrev_b32 v2, 4, v2")
    E("v_lshrrev_b32 v11, 3, v0")
    E("v_lshl_add_u32 v2, v11, 10, v2")
    E(f"s_lshr_b32 s{S_T1}, s{S_C}, 2")
    E(f"s_lshl_b32 s{S_T1}, s{S_T1}, 7")
    E(f"v_add_u32 v2, s{S_T1}, v2")


def wo_stage():
    for i in range(8):
        E(f"s_add_u32 m0, s{S_W1K}, {i * 8192}")
        E(f"s_mov_b32 s{S_T0}, {i * 65536}")
        E(f"buffer_load_dwordx4 v2, {sr(WO)}, s{S_T0} offen lds")


def _m_fix_base():
    E(f"s_mul_i32 s{S_XB}, s{S_A}, {288 * 1024}")
    E(f"s_add_u32 s{S_XB}, s{S_XB}, {WS_HO:#x}")


HEADER = """; Kernarg layout (88 bytes, ptrs only, base s[0:1]):
; @launch grid=(512,1,1) block=(512,1,1) lds=81920
.amdgcn_target "amdgcn-amd-amdhsa--gfx950"
.text
.globl {kn}
.p2align 8
.type {kn},@function
{kn}:
CODE_START:
"""

FOOTER = """CODE_END:
.section .rodata,"a"
.p2align 6
.amdhsa_kernel {kn}
  .amdhsa_next_free_vgpr 128
  .amdhsa_next_free_sgpr 102
  .amdhsa_accum_offset 128
  .amdhsa_group_segment_fixed_size 0
  .amdhsa_kernarg_size 88
  .amdhsa_user_sgpr_count 2
  .amdhsa_user_sgpr_kernarg_segment_ptr 1
  .amdhsa_system_sgpr_workgroup_id_x 1
.end_amdhsa_kernel
"""


def generate():
    E.L = []
    if O.scramble:
        E("s_and_b32 s3, s2, 7")
        E("s_lshl_b32 s3, s3, 3")
        E("s_bfe_u32 s4, s2, 0x30003")
        E("s_and_b32 s2, s2, 0xffffffc0")
        E("s_or_b32 s2, s2, s3")
        E("s_or_b32 s2, s2, s4")
    E("s_cmp_ge_u32 s2, 256")
    E("s_cbranch_scc1 F_entry")
    stamp(0)
    if O.only_down:
        E("s_endpgm")
    a_prologue()
    E("s_cbranch_vccnz A_vwave")
    E("s_branch A_qwave")
    E.label("F_entry")
    f_prologue()
    E.label("L_end")
    E("s_endpgm")
    E.label("A_qwave")
    a_qkv(False)
    E("s_branch A_att")
    E.label("A_vwave")
    a_qkv(True)
    E.label("A_att")
    a_attention()
    f_main()
    return HEADER.format(kn=KN) + "\n".join(E.L) + "\n" + FOOTER.format(kn=KN)


if __name__ == "__main__":
    ap = argparse.ArgumentParser()
    ap.add_argument("-o", default="k.s")
    ap.add_argument("--set", action="append", default=[])
    a = ap.parse_args()
    for kv in a.set:
        k, v = kv.split("=")
        assert hasattr(O, k), k
        setattr(O, k, type(getattr(O, k))(int(v)))
    s = generate()
    open(a.o, "w").write(s)
    sys.path.insert(0, "cdna_kernels")
    from cdna_launch import with_harness_metadata, address_register_problem
    h = a.o[:-2] + ".harness.s"
    co = a.o[:-2] + ".co"
    open(h, "w").write(with_harness_metadata(s, KN, 11, launch_lists=True))
    r = subprocess.run(["clang", "-x", "assembler", "-target", "amdgcn-amd-amdhsa", "-mcpu=gfx950", h, "-o", co],
                       capture_output=True, text=True)
    if r.returncode:
        print(r.stderr[:4000]); sys.exit(1)
    p = address_register_problem(co, KN)
    print("check:", p)
    r = subprocess.run(f"llvm-nm {co} | grep -E 'CODE_|A_qwave|A_vwave|A_att|A_loop|A_fin|A_slow|F_entry|F_main|F_pub|F_dloop|F_gate$' | sort", shell=True, capture_output=True, text=True)
    print(r.stdout)
```

```python
import sys, subprocess, argparse

NAME = "gated_mix__softmax_full_mha__swiglu_ffn__prompt"
KN = NAME + "_kernel"

WS_KV, WS_Q, WS_HO = 0, 0x400000, 0x600000
WS_NRM, WS_G = 0xF10000, 0xF04000
WS_FKV, WS_FH, WS_FO, WS_FS = 0xF08000, 0xF0C000, 0xF20000, 0xF07000
WS_STAMP = 0x1000000
WS_SIZE = 0x1100000
QSCALE = 0x3EB8AA3B
NLOG2E = 0xBFB8AA3B
THR2 = 0x45548000


class Opt:
    stamps = False
    hint_step = 17
    f_fill_early = False
    force_slow = False
    prio_a_qkv = 3
    prio_a_att = 2
    prio_f = 0
    prio_f_late = 0
    zrows = 1
    toggle = 0
    touch_gu = 0
    touch = 0
    warm_steps = 0
    f_rot = 0
    a_exit = 0
    kv_rot = 0
    ga = 2
    gb = 3
    gc = 5
    kv_first = 2
    wd_t0 = 3
    wo_t = 1
    f_touch = 1
    f_touch2 = 99
    bal = 4
    pace_from = 99
    prio_up = -1
    prio_dn = 0
    boost_mask = 63
    prio_boost = 3
    hint1 = 11
    f_wd = 1
    pair = 1
    dn_stamps = 0
    wo_early = 1
    scramble = 0
    dbg_out = 0
    hold = 0
    kv_wait1 = 1
    piped = 0
    dn_ns = 5
    dn_grp = 2
    dn_grp_until = 16
    dn_low = 99
    twice = 0
    o_parts = 2
    x_noack = 0
    x_noex = 0
    wd_step = 13
    wd_parts = 1
    ht_pos = 0
    nt0 = 0
    order0 = 0
    only_down = 0
    d_rot = 0
    h_touch = 1
    att_iters = 8
    prio_silu = 3
    gate_late = 1
    h_sc1 = 1
    no_f = 0
    late_iter = 99


O = Opt()


class Asm:
    def __init__(self):
        self.L = []

    def __call__(self, s):
        for x in s.strip("\n").split("\n"):
            self.L.append("    " + x.strip())

    def label(self, l):
        self.L.append(l + ":")

    def raw(self, s):
        self.L.append(s)


E = Asm()


def vr(a, n):
    return f"v[{a}:{a+n-1}]"


def srd(base, size):
    E(f"s_mov_b32 s{base+2}, {size:#x}")
    E(f"s_mov_b32 s{base+3}, 0x20000")


S_WAVE = 3
X, W1, WU, WS, DBG, WD, WO, OUT, GW = 12, 16, 20, 24, 28, 32, 36, 40, 44
def sr(b): return f"s[{b}:{b+3}]"
S_TAG = 48
S_W1K = 49
S_T0, S_T1, S_T2, S_T3 = 50, 51, 52, 53
S_XK, S_XB, S_WK, S_WB = 54, 55, 56, 57
S_CNT = 58
S_A, S_B, S_C, S_D = 59, 60, 61, 62
S_SLOT = 63
S_VM = 64
S_SPIN = 66
S_STAMP = 70


def stamp(i):
    if O.stamps:
        E(f"s_memrealtime s[{S_STAMP+2*i}:{S_STAMP+2*i+1}]")
        E(f"s_memtime s[68:69]")
        E("s_waitcnt lgkmcnt(0)")
        E(f"s_mov_b32 s{S_STAMP+2*i+1}, s68")


def cstamp(i):
    if O.stamps:
        E(f"s_memtime s[{S_STAMP+2*i}:{S_STAMP+2*i+1}]")
        E("s_waitcnt lgkmcnt(0)")


def flush_stamps(idx, lab):
    if not O.stamps:
        return
    E(f"s_cmp_lg_u32 s{S_WAVE}, 0")
    E(f"s_cbranch_scc1 {lab}")
    E(f"s_lshl_b32 s{S_T0}, s2, 7")
    E(f"s_add_u32 s{S_T0}, s{S_T0}, {WS_STAMP:#x}")
    E("s_mov_b64 exec, 1")
    E("v_mov_b32 v1, 0")
    for i in idx:
        E(f"v_mov_b32 v2, s{S_STAMP+2*i}")
        E(f"buffer_store_dword v2, v1, {sr(WS)}, s{S_T0} offen offset:{4*i}")
        E(f"v_mov_b32 v3, s{S_STAMP+2*i+1}")
        E(f"buffer_store_dword v3, v1, {sr(WS)}, s{S_T0} offen offset:{64+4*i}")
    if O.dbg_out:
        E(f"s_and_b32 s{S_T0}, s2, 255")
        E(f"s_cmp_lg_u32 s{S_T0}, 77")
        E(f"s_cbranch_scc1 {lab}_d")
        sel, base = ((0, 1, 2, 5, 6, 7), 1) if lab.startswith("A") else ((1, 2, 3, 5, 6, 7, 9), 9)
        for n, i in enumerate(sel):
            E(f"v_mov_b32 v2, s{S_STAMP+2*i}")
            if n:
                E(f"v_subrev_u32 v2, s{S_STAMP}, v2")
            E(f"buffer_store_dword v2, v1, {sr(DBG)}, 0 offen offset:{4*(base+n)}")
        if lab.startswith("A"):
            E(f"s_sub_u32 s{S_T0}, s{S_STAMP+13}, s{S_STAMP+11}")
            E(f"v_mov_b32 v2, s{S_T0}")
            E(f"buffer_store_dword v2, v1, {sr(DBG)}, 0 offen offset:28")
        E.label(lab + "_d")
    E("s_waitcnt vmcnt(0)")
    E.label(lab)


class VM:
    def __init__(self):
        self.q = []

    def issue(self, tag, n=1):
        self.q += [tag] * n

    def need(self, *tags):
        last = -1
        for i, t in enumerate(self.q):
            if t in tags:
                last = i
        for t in tags:
            assert t in self.q, t
        return len(self.q) - 1 - last


def poll(lab, voff_reg, soff, piped=False):
    E(f"s_mov_b32 s{S_SPIN}, 0x40000")
    if piped:
        regs = (11, 9, 15)
        for r in regs[:2]:
            E(f"buffer_load_dword v{r}, v{voff_reg}, {sr(WS)}, {soff} offen sc1")
            E("s_sleep 2")
        E.label(lab)
        for i in range(3):
            E(f"buffer_load_dword v{regs[(i + 2) % 3]}, v{voff_reg}, {sr(WS)}, {soff} offen sc1")
            E("s_waitcnt vmcnt(2)")
            E(f"v_cmp_ne_u32 vcc, s{S_TAG}, v{regs[i]}")
            E("s_nop 4")
            E("s_cmp_eq_u64 vcc, 0")
            E(f"s_cbranch_scc1 {lab}_ok")
            E("s_sleep 1")
    else:
        E.label(lab)
        E(f"buffer_load_dword v11, v{voff_reg}, {sr(WS)}, {soff} offen sc1")
        E("s_waitcnt vmcnt(0)")
        E(f"v_cmp_ne_u32 vcc, s{S_TAG}, v11")
        E("s_nop 4")
        E("s_cmp_eq_u64 vcc, 0")
        E(f"s_cbranch_scc1 {lab}_ok")
        E("s_sleep 2")
    E(f"s_sub_u32 s{S_SPIN}, s{S_SPIN}, 1")
    E(f"s_cmp_lg_u32 s{S_SPIN}, 0")
    E(f"s_cbranch_scc1 {lab}")
    E.label(lab + "_ok")


def get_tag(lab, sleep=4):
    E(f"s_mov_b32 s{S_SPIN}, 0x40000")
    E("v_mov_b32 v10, 0")
    E.label(lab)
    E(f"buffer_load_dword v11, v10, {sr(DBG)}, 0 offen sc1")
    E("s_waitcnt vmcnt(0)")
    E(f"v_readfirstlane_b32 s{S_TAG}, v11")
    E("s_nop 3")
    E(f"s_cmp_lg_u32 s{S_TAG}, 0")
    E(f"s_cbranch_scc1 {lab}_ok")
    E(f"s_sleep {sleep}")
    E(f"s_sub_u32 s{S_SPIN}, s{S_SPIN}, 1")
    E(f"s_cmp_lg_u32 s{S_SPIN}, 0")
    E(f"s_cbranch_scc1 {lab}")
    E.label(lab + "_ok")


def put_flag(soff_sgpr):
    E("s_mov_b64 exec, 1")
    E("v_mov_b32 v10, 0")
    E(f"v_mov_b32 v11, s{S_TAG}")
    E(f"buffer_store_dword v11, v10, {sr(WS)}, s{soff_sgpr} offen sc0 sc1")
    E("s_mov_b64 exec, -1")


def wg_store(lab, cond, val_lines, off):
    cond()
    E(f"s_cbranch_scc1 {lab}")
    val_lines()
    E("s_mov_b64 exec, 1")
    E(f"v_mov_b32 v10, {off}")
    E(f"v_mov_b32 v11, s{S_T0}")
    E(f"buffer_store_dword v11, v10, {sr(DBG)}, 0 offen sc0 sc1")
    E("s_mov_b64 exec, -1")
    E.label(lab)


def hint(lab="A_nohint", word=0, early=None):
    E(f"s_lshr_b32 s{S_T0}, s2, 3")
    E(f"s_or_b32 s{S_T0}, s{S_T0}, s{S_WAVE}")
    E(f"s_cbranch_scc1 {lab}")
    if (O.hint_step if early is None else early) < 16:
        E(f"v_readfirstlane_b32 s{S_TAG}, v14")
        E("s_nop 3")
        E(f"s_cmp_lg_u32 s{S_TAG}, 0")
        E(f"s_cbranch_scc1 {lab}_t_ok")
        get_tag(lab + "_t")
    E(f"s_lshl_b32 s{S_T1}, s2, 7")
    E(f"s_add_u32 s{S_T1}, s{S_T1}, {WS_FS + 1024 * word:#x}")
    put_flag(S_T1)
    E.label(lab)


def wait_start(lab, word=0, tag=True):
    if tag:
        get_tag(lab + "_t", 16)
    E("v_mov_b32 v10, 0")
    E(f"s_and_b32 s{S_T0}, s2, 7")
    E(f"s_lshl_b32 s{S_T0}, s{S_T0}, 7")
    E(f"s_add_u32 s{S_T0}, s{S_T0}, {WS_FS + 1024 * word:#x}")
    poll(lab, 10, f"s{S_T0}")


def dpp_max(regs):
    for ctl in ("row_shr:1", "row_shr:2", "row_shr:4", "row_shr:8",
                "row_bcast:15 row_mask:0xa", "row_bcast:31 row_mask:0xc"):
        E("s_nop 1")
        for r in regs:
            m = "" if "row_mask" in ctl else " row_mask:0xf"
            E(f"v_max_f32_dpp v{r}, v{r}, v{r} {ctl}{m} bank_mask:0xf")


A_XS, A_WS0, A_WSZ = 8192, 24576, 12288


def a_dma_x(u, vm):
    E(f"s_add_u32 m0, s{S_W1K}, {(u % 3) * A_XS}")
    E(f"s_add_u32 s{S_T0}, s{S_XB}, s{S_XK}")
    nt = "nt " if ((O.nt0 & 1) and u < 2) or (O.nt0 & 4) else ""
    E(f"buffer_load_dwordx4 v1, {sr(X)}, s{S_T0} offen {nt}lds")
    E(f"s_add_u32 s{S_XK}, s{S_XK}, 128")
    E(f"s_and_b32 s{S_XK}, s{S_XK}, 1023")
    vm.issue(("x", u))


def a_dma_w(s, vm, vwave):
    base = A_WS0 + (s % 4) * A_WSZ
    nt = "nt " if ((O.nt0 & 1) and s < 2) or (O.nt0 & 4) else ""
    E(f"s_add_u32 m0, s{S_W1K}, {base}")
    E(f"s_add_u32 s{S_T0}, s{S_WB}, s{S_WK}")
    E(f"buffer_load_dwordx4 v2, {sr(W1)}, s{S_T0} offen {nt}lds")
    vm.issue(("w", s))
    if vwave == "both":
        E(f"s_cbranch_vccz A_pw{s}")
        E(f"s_add_u32 m0, s{S_W1K}, {base + 3072}")
        E("s_nop 0")
        E(f"buffer_load_dwordx4 v2, {sr(W1)}, s{S_T0} offen offset:1024 {nt}lds")
        E.label(f"A_pw{s}")
    elif vwave:
        E(f"s_add_u32 m0, s{S_W1K}, {base + 3072}")
        E("s_nop 0")
        E(f"buffer_load_dwordx4 v2, {sr(W1)}, s{S_T0} offen offset:1024 {nt}lds")
        vm.issue(("w", s))
    E(f"s_add_u32 s{S_WK}, s{S_WK}, 98304")
    E(f"s_cmp_eq_u32 s{S_WK}, {16 * 98304}")
    E(f"s_cselect_b32 s{S_WK}, 0, s{S_WK}")


def a_prologue():
    E(f"s_load_dwordx2 s[{X}:{X+1}], s[0:1], 0")
    E(f"s_load_dwordx2 s[{W1}:{W1+1}], s[0:1], 8")
    E(f"s_load_dwordx2 s[{WS}:{WS+1}], s[0:1], 80")
    E(f"s_load_dwordx2 s[{DBG}:{DBG+1}], s[0:1], 72")
    E("v_lshrrev_b32 v8, 6, v0")
    E("v_lshrrev_b32 v9, 3, v0")
    E("v_lshrrev_b32 v10, 4, v0")
    E(f"v_readfirstlane_b32 s{S_WAVE}, v8")
    E("v_xor_b32 v11, v10, v0")
    E("v_and_b32 v11, 7, v11")
    E("v_lshlrev_b32 v11, 4, v11")
    E("v_lshl_add_u32 v1, v9, 10, v11")
    srd(X, 0x200000)
    srd(W1, 0x180000)
    E(f"s_lshr_b32 s{S_T0}, s2, 3")
    E(f"s_and_b32 s{S_T1}, s{S_T0}, 7")
    E(f"s_lshr_b32 s{S_T0}, s{S_T0}, 3")
    E(f"s_and_b32 s{S_A}, s2, 3")
    E(f"s_lshl_b32 s{S_A}, s{S_A}, 3")
    E(f"s_add_u32 s{S_A}, s{S_A}, s{S_T1}")
    E(f"s_and_b32 s{S_B}, s2, 4")
    E(f"s_add_u32 s{S_B}, s{S_B}, s{S_T0}")
    E(f"s_lshl_b32 s{S_T0}, s{S_T0}, 1")
    E(f"s_add_u32 s{S_T0}, s{S_T0}, s{S_T1}")
    E(f"s_and_b32 s{S_T0}, s{S_T0}, 7")
    E(f"s_lshl_b32 s{S_XK}, s{S_T0}, 7")
    E(f"s_mul_i32 s{S_WK}, s{S_T0}, {2 * 98304}")
    E(f"s_lshl_b32 s{S_XB}, s{S_A}, 16")
    E(f"s_lshl_b32 s{S_WB}, s{S_B}, 7")
    E(f"s_lshl_b32 s{S_W1K}, s{S_WAVE}, 10")
    E("v_and_b32 v9, 31, v9")
    E("v_mul_u32_u24 v9, 0xc00, v9")
    E("v_and_b32 v10, 1, v10")
    E("v_lshlrev_b32 v10, 2, v10")
    E("v_xor_b32 v10, v10, v0")
    E("v_and_b32 v10, 7, v10")
    E("v_lshl_add_u32 v9, v10, 4, v9")
    E("v_lshrrev_b32 v10, 8, v0")
    E("v_lshl_add_u32 v2, v10, 10, v9")
    E("v_cmp_eq_u32 vcc, 1, v10")
    E(f"s_setprio {O.prio_a_qkv}")
    E("s_waitcnt lgkmcnt(0)")
    stamp(8)
    vm = VM()
    a_dma_x(0, vm)
    a_dma_w(0, vm, "both")
    a_dma_w(1, vm, "both")
    a_dma_x(1, vm)
    a_dma_w(2, vm, "both")
    a_dma_w(3, vm, "both")
    a_dma_x(2, vm)
    stamp(9)
    srd(WS, WS_SIZE)
    srd(DBG, 256)


def a_qkv(vwave):
    p = "AV" if vwave else "AQ"
    if O.touch:
        E(f"s_load_dwordx2 s[{WU}:{WU+1}], s[0:1], {40 if vwave else 32}")
        E(f"s_load_dwordx2 s[{WD}:{WD+1}], s[0:1], 48")
        E(f"s_load_dwordx2 s[{WO}:{WO+1}], s[0:1], 16")
        srd(WU, 512 * 3584); srd(WD, 1792 * 1024); srd(WO, 512 * 1024)
    vm = VM()
    n = 2 if vwave else 1
    for t in (("x", 0), ("w", 0), ("w", 1), ("x", 1), ("w", 2), ("w", 3), ("x", 2)):
        vm.issue(t, n if t[0] == "w" else 1)
    E("v_and_b32 v8, 31, v0")
    if vwave:
        E("v_and_b32 v9, 0x13, v8")
        E("v_lshlrev_b32 v10, 1, v8")
        E("v_and_b32 v10, 8, v10")
        E("v_or_b32 v9, v9, v10")
        E("v_lshrrev_b32 v10, 1, v8")
        E("v_and_b32 v10, 4, v10")
        E("v_or_b32 v8, v9, v10")
    E("v_lshrrev_b32 v9, 1, v8")
    E("v_and_b32 v9, 7, v9")
    E("v_bfe_u32 v10, v0, 5, 1")
    E("v_xor_b32 v9, v9, v10")
    E("v_lshlrev_b32 v9, 4, v9")
    E("v_lshl_add_u32 v9, v8, 7, v9")
    E("v_bfe_u32 v8, v0, 6, 1")
    E("v_lshl_add_u32 v3, v8, 12, v9")
    for ks in (1, 2, 3):
        E(f"v_xor_b32 v{3+ks}, {32*ks}, v3")
    E("v_bfe_u32 v8, v0, 2, 2")
    E("v_lshl_add_u32 v9, v10, 3, v8")
    E("v_lshlrev_b32 v9, 7, v9")
    E("v_bfe_u32 v10, v0, 7, 1")
    E("v_lshrrev_b32 v8, 1, v8")
    E("v_xor_b32 v8, v8, v10")
    E("v_lshl_add_u32 v9, v8, 6, v9")
    E("v_bfe_u32 v8, v0, 4, 1")
    E("v_lshl_add_u32 v9, v8, 5, v9")
    E("v_and_b32 v8, 3, v0")
    E("v_lshl_add_u32 v9, v8, 3, v9")
    E(f"v_add_u32 v7, {A_WS0}, v9")
    segs = (2,) if vwave else (0, 1)
    if O.touch_gu:
        E(f"s_lshr_b32 s{S_T0}, s2, 3")
        E(f"s_lshl_b32 s{S_T0}, s{S_T0}, 2")
        E(f"s_and_b32 s{S_T1}, s{S_WAVE}, 3")
        E(f"s_add_u32 s{S_T0}, s{S_T0}, s{S_T1}")
        E(f"s_mul_i32 s{S_T0}, s{S_T0}, {2 * 3584}")
        E(f"s_bfe_u32 s{S_T1}, s2, 0x10002")
        E(f"s_mul_i32 s{S_T1}, s{S_T1}, 1792")
        E(f"s_add_u32 s{S_T0}, s{S_T0}, s{S_T1}")
        E("v_bfe_u32 v8, v0, 4, 1")
        E("v_mul_u32_u24 v8, 3584, v8")
        E("v_and_b32 v9, 15, v0")
        E("v_lshl_add_u32 v8, v9, 7, v8")
        E(f"v_add_u32 v98, s{S_T0}, v8")

    def reads(s):
        b = 16 + 24 * (s & 1)
        L = []
        for kk in (0, 1):
            L.append(f"ds_read_b128 {vr(b+4*kk,4)}, v{3 + 2*(s&1) + kk} offset:{((s//2) % 3) * A_XS}")
            for si, sg in enumerate(segs):
                for q in (0, 1):
                    off = (s % 4) * A_WSZ + sg * 4096 + kk * 2048 + q * 512
                    L.append(f"ds_read_b64_tr_b16 {vr(b+8+8*si+4*kk+2*q,2)}, v7 offset:{off}")
        return L

    def mfmas(s):
        b = 16 + 24 * (s & 1)
        L = []
        for kk in (0, 1):
            for si, sg in enumerate(segs):
                acc = vr(64 + 16 * si, 16)
                c = "0" if (s == 0 and kk == 0) else acc
                xf, wf = vr(b + 4*kk, 4), vr(b + 8 + 8*si + 4*kk, 4)
                if vwave:
                    L.append(f"v_mfma_f32_32x32x16_bf16 {acc}, {xf}, {wf}, {c}")
                else:
                    L.append(f"v_mfma_f32_32x32x16_bf16 {acc}, {wf}, {xf}, {c}")
        return L

    if not vwave:
        def tagval():
            E(f"s_memrealtime s[{S_T0}:{S_T1}]")
            E("s_waitcnt lgkmcnt(0)")
            E(f"s_or_b32 s{S_T0}, s{S_T0}, 1")
        wg_store("A_notag", lambda: E(f"s_or_b32 s{S_T0}, s2, s{S_WAVE}"), tagval, "0")
    E(f"s_waitcnt vmcnt({vm.need(('x',0),('w',0))}) lgkmcnt(0)")
    E("s_barrier")
    stamp(1)
    for x in reads(0):
        E(x)
    for s in range(16):
        M = mfmas(s)
        if s < 15:
            E(f"s_waitcnt vmcnt({vm.need(('x',(s+1)//2),('w',s+1))}) lgkmcnt(0)")
            E("s_barrier")
            E(M.pop(0))
            R = reads(s + 1)
            per = 3
            while R or M:
                for x in R[:per]:
                    E(x)
                R = R[per:]
                if M:
                    E(M.pop(0))
            if s + 4 <= 15:
                a_dma_w(s + 4, vm, vwave)
            if s % 2 == 1 and (s + 1) // 2 + 2 <= 7:
                a_dma_x((s + 1) // 2 + 2, vm)
            if s == 1 and not vwave:
                E("v_mov_b32 v10, 0")
                E(f"buffer_load_dword v14, v10, {sr(DBG)}, 0 offen sc1")
                vm.issue("tag")
            if s == 12 and O.touch_gu:
                E("s_mov_b32 exec_hi, 0")
                E(f"buffer_load_dword v15, v98, {sr(WU)}, 0 offen")
                E("s_mov_b32 exec_hi, -1")
                vm.issue("t")
        else:
            E("s_waitcnt lgkmcnt(0)")
            for x in M:
                E(x)
        if s == O.hint_step and not vwave:
            hint()
        if s == O.hint1 and not vwave:
            hint("A_nohint1", 1, O.hint1)
        if s == O.hint_step and O.a_exit:
            E("s_endpgm")
    stamp(2)
    E(f"s_and_b32 s{S_T0}, s{S_WAVE}, 1")
    E(f"s_lshl_b32 s{S_T1}, s{S_A}, 1")
    E(f"s_add_u32 s{S_T0}, s{S_T0}, s{S_T1}")
    E(f"s_bfe_u32 s{S_T1}, s{S_WAVE}, 0x10001")
    E(f"s_lshl_b32 s{S_T2}, s{S_B}, 1")
    E(f"s_add_u32 s{S_T1}, s{S_T1}, s{S_T2}")
    E("v_and_b32 v8, 63, v0")
    if vwave:
        E("v_and_b32 v9, 15, v8")
        E("v_lshlrev_b32 v9, 4, v9")
        E("v_bfe_u32 v10, v8, 5, 1")
        E("v_lshl_add_u32 v9, v10, 8, v9")
        E("v_bfe_u32 v10, v8, 4, 1")
        E("v_lshl_add_u32 v9, v10, 17, v9")
        E(f"s_lshl_b32 s{S_T1}, s{S_T1}, 18")
        E(f"s_lshl_b32 s{S_T0}, s{S_T0}, 11")
        E(f"s_add_u32 s{S_T0}, s{S_T0}, s{S_T1}")
        E("s_nop 7")
        for i in range(8):
            E(f"v_cvt_pk_bf16_f32 v{16+i}, v{64+2*i}, v{65+2*i}")
        E(f"buffer_store_dwordx4 v[16:19], v9, {sr(WS)}, s{S_T0} offen offset:1024 sc0 sc1")
        E(f"buffer_store_dwordx4 v[20:23], v9, {sr(WS)}, s{S_T0} offen offset:1536 sc0 sc1")
    else:
        E("v_lshlrev_b32 v9, 4, v8")
        E(f"s_lshl_b32 s{S_T2}, s{S_T1}, 18")
        E(f"s_lshl_b32 s{S_T3}, s{S_T0}, 11")
        E(f"s_add_u32 s{S_T2}, s{S_T2}, s{S_T3}")
        E(f"s_lshr_b32 s{S_T3}, s{S_T2}, 1")
        E(f"s_add_u32 s{S_T3}, s{S_T3}, {WS_Q:#x}")
        E(f"s_add_u32 s{S_C}, s{S_T2}, 0x20000")
        E(f"s_add_u32 s{S_D}, s{S_T3}, 0x10000")
        E(f"s_mov_b32 s{S_CNT}, {QSCALE:#x}")
        E("s_nop 7")
        for i in range(8):
            E(f"v_cvt_pk_bf16_f32 v{16+i}, v{80+2*i}, v{81+2*i}")
        E(f"buffer_store_dwordx4 v[16:19], v9, {sr(WS)}, s{S_T2} offen sc0 sc1")
        E(f"buffer_store_dwordx4 v[20:23], v9, {sr(WS)}, s{S_C} offen sc0 sc1")
        for i in range(16):
            E(f"v_mul_f32 v{64+i}, s{S_CNT}, v{64+i}")
        for i in range(8):
            E(f"v_cvt_pk_bf16_f32 v{24+i}, v{64+2*i}, v{65+2*i}")
        E(f"buffer_store_dwordx4 v[24:27], v9, {sr(WS)}, s{S_T3} offen sc0 sc1")
        E(f"buffer_store_dwordx4 v[28:31], v9, {sr(WS)}, s{S_D} offen sc0 sc1")
        for g in range(4):
            E(f"v_mul_f32 v{32+g}, v{64+8*g}, v{64+8*g}")
        for i in range(1, 8):
            for g in range(4):
                E(f"v_fmac_f32 v{32+g}, v{64+8*g+i}, v{64+8*g+i}")
        E("s_nop 1")
        E("v_permlane32_swap_b32 v32, v33")
        E("v_permlane32_swap_b32 v34, v35")
        E("s_nop 1")
        E("v_add_f32 v32, v32, v33")
        E("v_add_f32 v33, v34, v35")
        dpp_max((32, 33))
        E(f"s_lshl_b32 s{S_T0}, s{S_B}, 11")
        E(f"s_lshl_b32 s{S_T1}, s{S_A}, 6")
        E(f"s_add_u32 s{S_T0}, s{S_T0}, s{S_T1}")
        E(f"s_lshl_b32 s{S_T1}, s{S_WAVE}, 3")
        E(f"s_add_u32 s{S_T0}, s{S_T0}, s{S_T1}")
        E(f"s_add_u32 s{S_T0}, s{S_T0}, {WS_FKV + 16:#x}")
        E("v_mov_b32 v10, 0")
        E("s_brev_b64 exec, 1")
        E(f"buffer_store_dwordx2 v[32:33], v10, {sr(WS)}, s{S_T0} offen sc0 sc1")
        E("s_mov_b64 exec, -1")


S0, S1, OA, OB, QX, QY, K0, K1, V0, V1 = 16, 32, 48, 64, 80, 84, 88, 92, 96, 104
IDX, VK, VV, VD, VKB, VVB, VT, VL = 112, 113, 114, 115, 116, 117, 118, 119
KVS = 16384


def a_kv_dma():
    E(f"s_add_u32 m0, s{S_XK}, s{S_W1K}")
    E(f"s_add_u32 s{S_T0}, s{S_WB}, s{S_WK}")
    E(f"buffer_load_dwordx4 v{VD}, {sr(WS)}, s{S_T0} offen sc1 lds")
    E(f"buffer_load_dwordx4 v{VD}, {sr(WS)}, s{S_T0} offen offset:1024 sc1 lds")
    E(f"s_add_u32 s{S_WK}, s{S_WK}, {KVS}")
    E(f"s_and_b32 s{S_WK}, s{S_WK}, {8*KVS-1:#x}")
    E(f"s_add_u32 s{S_XK}, s{S_XK}, {KVS}")
    E(f"s_cmp_eq_u32 s{S_XK}, {5*KVS}")
    E(f"s_cselect_b32 s{S_XK}, 0, s{S_XK}")


def a_attention():
    E(f"s_and_b32 s{S_C}, s2, 7")
    E(f"s_lshr_b32 s{S_T0}, s2, 6")
    E(f"s_lshl_b32 s{S_D}, s{S_C}, 2")
    E(f"s_add_u32 s{S_D}, s{S_D}, s{S_T0}")
    E(f"s_lshl_b32 s{S_T0}, s{S_B}, 11")
    E(f"s_lshl_b32 s{S_T1}, s{S_A}, 6")
    E(f"s_add_u32 s{S_T0}, s{S_T0}, s{S_T1}")
    E(f"s_add_u32 s{S_XB}, s{S_T0}, {WS_FKV:#x}")
    E(f"s_bfe_u32 s{S_A}, s2, 0x30003")
    E("v_and_b32 v8, 63, v0")
    E(f"v_lshlrev_b32 v{VL}, 4, v8")
    E(f"s_lshl_b32 s{S_W1K}, s{S_WAVE}, 11")
    E(f"v_add_u32 v{VD}, s{S_W1K}, v{VL}")
    E(f"s_lshl_b32 s{S_WB}, s{S_D}, 17")
    if O.kv_rot:
        E(f"s_lshl_b32 s{S_WK}, s{S_A}, 14")
    else:
        E(f"s_mov_b32 s{S_WK}, 0")
    E(f"s_mov_b32 s{S_XK}, 0")
    E(f"s_lshl_b32 s{S_T1}, s{S_A}, 3")
    E(f"s_and_b32 s{S_T2}, s{S_WAVE}, 3")
    E(f"s_lshl_b32 s{S_T2}, s{S_T2}, 1")
    E(f"s_add_u32 s{S_B}, s{S_T1}, s{S_T2}")
    E(f"s_lshl_b32 s{S_T1}, s{S_B}, 10")
    E(f"s_lshl_b32 s{S_T2}, s{S_D}, 16")
    E(f"s_add_u32 s{S_T1}, s{S_T1}, s{S_T2}")
    E(f"s_add_u32 s4, s{S_T1}, {WS_Q:#x}")
    E(f"s_lshr_b32 s{S_T0}, s{S_WAVE}, 2")
    E(f"s_lshl_b32 s{S_T0}, s{S_T0}, 11")
    E(f"v_add_u32 v{VKB}, s{S_T0}, v{VL}")
    E("v_and_b32 v9, 15, v8")
    E("v_lshlrev_b32 v9, 4, v9")
    E("v_bfe_u32 v10, v8, 5, 1")
    E("v_lshl_add_u32 v9, v10, 8, v9")
    E(f"s_add_u32 s{S_T0}, s{S_T0}, 1024")
    E(f"v_add_u32 v{VVB}, s{S_T0}, v9")
    E(f"v_mov_b32 v{VK}, v{VKB}")
    E(f"v_mov_b32 v{VV}, v{VVB}")
    E(f"v_mov_b32 v{IDX}, 0xdddddddd")
    E("v_and_b32 v9, 27, v8")
    E("v_cmp_eq_u32 vcc, 16, v9")
    E("v_mov_b32 v9, 0x3f803f80")
    E("s_nop 0")
    E(f"v_cndmask_b32 v{V0}, 0, v9, vcc")
    for i in range(1, 16):
        E(f"v_mov_b32 v{V0+i}, v{V0}")
    if O.touch:
        E(f"s_lshr_b32 s{S_T0}, s2, 3")
        E(f"s_lshl_b32 s{S_T0}, s{S_T0}, 3")
        E(f"s_add_u32 s{S_T0}, s{S_T0}, s{S_WAVE}")
        E(f"s_lshl_b32 s{S_T0}, s{S_T0}, 11")
        E(f"v_lshlrev_b32 v{VT}, 7, v8")
        E(f"v_add_u32 v{VT}, s{S_T0}, v{VT}")
    E(f"s_mov_b32 s{S_VM}, 0xffff")
    E(f"s_mov_b32 s{S_VM+1}, 0xffff")
    E(f"s_mov_b32 s{S_SLOT}, 0")
    E(f"s_mov_b32 s{S_CNT}, 0")
    for i in range(32):
        E(f"v_mov_b32 v{OA+i}, 0")
    for i in range(8, 16):
        E(f"v_mov_b32 v{S1+i}, 0")
    E("s_waitcnt vmcnt(0)")
    E("s_barrier")
    stamp(3)
    E(f"s_cmp_lg_u32 s{S_WAVE}, 0")
    E("s_cbranch_scc1 A_wait1")
    E(f"v_readfirstlane_b32 s{S_TAG}, v14")
    E("s_nop 3")
    E(f"s_cmp_lg_u32 s{S_TAG}, 0")
    E("s_cbranch_scc1 A_tag_ok")
    get_tag("A_tag")
    put_flag(S_XB)
    if O.hint_step == 16:
        hint()
    E("v_and_b32 v10, 31, v0")
    E("v_lshlrev_b32 v10, 6, v10")
    E(f"s_bfe_u32 s{S_T1}, s{S_D}, 0x10001")
    E(f"s_lshl_b32 s{S_T1}, s{S_T1}, 4")
    E(f"s_add_u32 s{S_T1}, s{S_T1}, 16")
    E("v_bfe_u32 v11, v0, 5, 1")
    E(f"v_mul_u32_u24 v11, s{S_T1}, v11")
    E("v_add_u32 v10, v10, v11")
    E(f"s_lshl_b32 s{S_T0}, s{S_C}, 11")
    E(f"s_add_u32 s{S_T0}, s{S_T0}, {WS_FKV:#x}")
    E(f"s_mov_b32 s{S_SPIN}, 0x40000")
    E.label("A_pollkv")
    E(f"buffer_load_dwordx4 v[4:7], v10, {sr(WS)}, s{S_T0} offen sc1")
    E("s_waitcnt vmcnt(0)")
    E(f"v_cmp_ne_u32 vcc, s{S_TAG}, v4")
    E("s_nop 4")
    E("s_cmp_eq_u32 vcc_lo, 0")
    E("s_cbranch_scc1 A_pollkv_ok")
    E("s_sleep 2")
    E(f"s_sub_u32 s{S_SPIN}, s{S_SPIN}, 1")
    E(f"s_cmp_lg_u32 s{S_SPIN}, 0")
    E("s_cbranch_scc1 A_pollkv")
    E.label("A_pollkv_ok")
    E("s_barrier")
    if O.hint_step == 17:
        hint()
    else:
        hint("A_nohint2", 2, 17)
    E("s_branch A_go")
    E.label("A_wait1")
    E("s_barrier")
    E.label("A_go")
    stamp(4)
    a_kv_dma()
    E(f"buffer_load_dwordx4 {vr(QX,4)}, v{VL}, {sr(WS)}, s4 offen sc1")
    E(f"buffer_load_dwordx4 {vr(QY,4)}, v{VL}, {sr(WS)}, s4 offen offset:1024 sc1")
    for c in range(1, O.kv_first):
        a_kv_dma()
    E(f"s_cmp_lg_u32 s{S_WAVE}, 0")
    E("s_cbranch_scc1 A_nored")
    E("v_max_u32 v4, v4, v6")
    E("v_max_u32 v5, v5, v7")
    for ctl in ("row_shr:1", "row_shr:2", "row_shr:4", "row_shr:8", "row_bcast:15 row_mask:0xa"):
        E("s_nop 1")
        for r in (4, 5):
            m = "" if "row_mask" in ctl else " row_mask:0xf"
            E(f"v_max_u32_dpp v{r}, v{r}, v{r} {ctl}{m} bank_mask:0xf")
    E("s_nop 0")
    E("v_mul_f32 v4, v4, v5")
    E(f"v_mov_b32 v5, s{S_TAG}")
    E(f"v_mov_b32 v6, {5 * KVS - 8}")
    E("s_brev_b64 exec, 1")
    E("ds_write_b64 v6, v[4:5]")
    E("s_mov_b64 exec, -1")
    E("s_waitcnt lgkmcnt(0)")
    E.label("A_nored")
    E(f"s_setprio {O.prio_a_att}")
    E(f"s_waitcnt vmcnt({2*O.kv_first - (4 if O.pair and not O.kv_wait1 else 2)})")
    E("s_barrier")
    stamp(5)

    def vreads(dst, off):
        E(f"s_mov_b64 exec, s[{S_VM}:{S_VM+1}]")
        E(f"ds_read_b128 {vr(dst,4)}, v{VV} offset:{off}")
        E(f"ds_read_b128 {vr(dst+4,4)}, v{VV} offset:{off+512}")
        E("s_mov_b64 exec, -1")

    E(f"ds_read_b128 {vr(K0,4)}, v{VK}")
    vreads(V0, 0)
    E(f"v_mov_b32 v6, {5 * KVS - 8}")
    E("ds_read_b64 v[4:5], v6")
    E("s_waitcnt lgkmcnt(0)")
    E(f"v_readfirstlane_b32 s{S_T0}, v4")
    E(f"v_readfirstlane_b32 s{S_TAG}, v5")
    E(f"v_mfma_f32_32x32x16_bf16 {vr(S0,16)}, {vr(K0,4)}, {vr(QX,4)}, 0")
    E("s_nop 3")
    E(f"s_cmp_gt_u32 s{S_T0}, {THR2:#x}")
    if O.force_slow:
        E("s_branch A_slow")
    E("s_cbranch_scc1 A_slow")
    E("s_nop 7")

    def chunk_turn():
        E("s_waitcnt vmcnt(0)")
        E("s_barrier")
        E(f"s_cmp_gt_u32 s{S_CNT}, {7 - O.kv_first}")
        lab = f"A_nf{len(E.L)}"
        E(f"s_cbranch_scc1 {lab}")
        a_kv_dma()
        E.label(lab)
        if O.touch:
            E(f"s_sub_u32 s{S_T0}, s{S_CNT}, {O.wd_t0}")
            E(f"s_lshl_b32 s{S_T0}, s{S_T0}, 19")
            E("s_mov_b64 exec, 0xffff")
            E(f"s_cmp_gt_u32 s{S_T0}, {3 << 19}")
            E(f"s_cbranch_scc1 {lab}t")
            E(f"buffer_load_dword v15, v{VT}, {sr(WD)}, s{S_T0} offen")
            E.label(lab + "t")
            E(f"s_cmp_lg_u32 s{S_CNT}, {O.wo_t}")
            E(f"s_cbranch_scc1 {lab}u")
            E(f"buffer_load_dword v15, v{VT}, {sr(WO)}, 0 offen")
            E.label(lab + "u")
            E("s_mov_b64 exec, -1")
        E(f"s_add_u32 s{S_SLOT}, s{S_SLOT}, {KVS}")
        E(f"s_cmp_eq_u32 s{S_SLOT}, {5*KVS}")
        E(f"s_cselect_b32 s{S_SLOT}, 0, s{S_SLOT}")
        E(f"v_add_u32 v{VK}, s{S_SLOT}, v{VKB}")
        E(f"v_add_u32 v{VV}, s{S_SLOT}, v{VVB}")

    NT = 16 if O.pair else 8

    def next_slot():
        E(f"s_add_u32 s{S_SLOT}, s{S_SLOT}, {KVS}")
        E(f"s_cmp_eq_u32 s{S_SLOT}, {5*KVS}")
        E(f"s_cselect_b32 s{S_SLOT}, 0, s{S_SLOT}")
        E(f"v_add_u32 v{VK}, s{S_SLOT}, v{VKB}")
        E(f"v_add_u32 v{VV}, s{S_SLOT}, v{VVB}")

    def refill(lab, lo, hi):
        if lo == hi:
            E(f"s_cmp_lg_u32 s{S_CNT}, {lo}")
        else:
            E(f"s_cmp_gt_u32 s{S_CNT}, {hi}")
        E(f"s_cbranch_scc1 {lab}")
        a_kv_dma()
        E.label(lab)

    E.raw(".p2align 6")
    E.label("A_loop")
    ga, gb, gc = O.ga, O.ga + O.gb, O.ga + O.gb + O.gc
    for t in range(NT):
        blk, kt = t & 1, (t >> 1) & 3
        Sc, Sn = (S0, S1) if blk == 0 else (S1, S0)
        Oc, On = (OA, OB) if blk == 0 else (OB, OA)
        Vk, Vo = (V0, V1) if kt & 1 == 0 else (V1, V0)
        Kk, Ko = (K0, K1) if kt & 1 == 0 else (K1, K0)
        if not O.pair:
            if t == 6:
                chunk_turn()
        elif t == 6:
            if O.kv_wait1:
                E(f"s_cmp_lg_u32 s{S_CNT}, 0")
                E("s_cbranch_scc1 A_nb")
                E(f"s_waitcnt vmcnt({2 * len([x for x in (3, 5, 7)[:5 - O.kv_first] if x < 6])})")
                E("s_barrier")
                E.label("A_nb")
            next_slot()
        elif t == 14:
            E("s_waitcnt vmcnt(0)")
            E("s_barrier")
            next_slot()
        ex = lambda a, b: [E(f"v_exp_f32 v{Sc+i}, v{Sc+i}") for i in range(a, b)]
        ph = ((t + 2) % NT) * 8 // NT
        prf = lambda ph: {0: O.prio_a_att, 4: 3 - ph // 2, 2: O.prio_a_att + (1 if ph < 4 else 0), 3: O.prio_a_att + [2, 2, 2, 1, 1, 1, 0, 0][ph]}[O.bal]
        pr = prf(ph)
        if O.bal and not O.toggle and pr != prf(((t + 1) % NT) * 8 // NT):
            E(f"s_setprio {pr}")

        def mm(x):
            if O.toggle: E(f"s_setprio {O.toggle}")
            E(x)
            if O.toggle: E(f"s_setprio {pr}")
        ex(0, ga)
        mm(f"v_smfmac_f32_32x32x32_bf16 {vr(On,16)}, {vr((Vo if blk == 0 else Vk) + 4,4)}, {vr(Sn+8,8)}, v{IDX}")
        if blk == 0:
            off = ((kt + 1) % 4) * 4096
            E(f"ds_read_b128 {vr(Ko,4)}, v{VK} offset:{off}")
            vreads(Vo, off)
        ex(ga, gb)
        if blk == 1:
            E("s_waitcnt lgkmcnt(0)")
        mm(f"v_mfma_f32_32x32x16_bf16 {vr(Sn,16)}, {vr(Kk if blk == 0 else Ko,4)}, {vr(QY if blk == 0 else QX,4)}, 0")
        ex(gb, gc)
        mm(f"v_smfmac_f32_32x32x32_bf16 {vr(Oc,16)}, {vr(Vk,4)}, {vr(Sc,8)}, v{IDX}")
        if O.pair and t == 15:
            refill("A_rf0", 0, 1)
        if O.pair and t == 1:
            refill("A_rf1", 2, 2)
        if O.pair and O.kv_first < 5 and t in (3, 5, 7)[:5 - O.kv_first]:
            refill(f"A_rf{t}", 0, 0)
        ex(gc, 16)
    E(f"s_add_u32 s{S_CNT}, s{S_CNT}, 1")
    E(f"s_cmp_lt_u32 s{S_CNT}, {O.att_iters * 8 // NT}")
    E("s_cbranch_scc1 A_loop")
    E("s_nop 1")
    E(f"v_smfmac_f32_32x32x32_bf16 {vr(OB,16)}, {vr(V1+4,4)}, {vr(S1+8,8)}, v{IDX}")
    E.label("A_fin")
    stamp(6)
    E("s_setprio 3")
    E(f"s_lshr_b32 s{S_T3}, s{S_WAVE}, 2")
    E(f"s_add_u32 s{S_B}, s{S_B}, s{S_T3}")
    E(f"s_lshl_b32 s{S_T1}, s{S_WAVE}, 12")
    E(f"s_xor_b32 s{S_T2}, s{S_T1}, 16384")
    E(f"v_add_u32 v10, s{S_T1}, v{VL}")
    E(f"v_add_u32 v11, s{S_T2}, v{VL}")
    E(f"s_mul_i32 s{S_T0}, s{S_B}, 144")
    E(f"s_add_u32 s{S_T0}, s{S_T0}, s{S_D}")
    E(f"s_lshl_b32 s{S_T0}, s{S_T0}, 10")
    E(f"s_add_u32 s{S_T0}, s{S_T0}, {WS_HO + 112*1024:#x}")
    E(f"s_lshl_b32 s{S_T1}, s{S_B}, 11")
    E(f"s_lshl_b32 s{S_T2}, s{S_D}, 6")
    E(f"s_add_u32 s{S_T1}, s{S_T1}, s{S_T2}")
    E(f"s_add_u32 s{S_T1}, s{S_T1}, {WS_FO:#x}")
    if O.x_noex:
        E("s_branch A_noex")
    E(f"s_cmp_lg_u32 s{S_T3}, 0")
    E("s_cbranch_scc1 A_hi")
    for i in range(3):
        E(f"ds_write_b128 v10, {vr(OB+4*i,4)} offset:{1024*i}")
    E("s_branch A_x")
    E.label("A_hi")
    for i in range(3):
        E(f"ds_write_b128 v10, {vr(OA+4*i,4)} offset:{1024*i}")
    E("s_nop 1")
    for i in range(9):
        E(f"v_mov_b32 v{OA+i}, v{OB+i}")
    E.label("A_x")
    E("s_waitcnt lgkmcnt(0)")
    E("s_barrier")
    E(f"ds_read_b128 {vr(S0+8,4)}, v11 offset:2048")
    E(f"ds_read_b128 {vr(S0,4)}, v11")
    E(f"ds_read_b128 {vr(S0+4,4)}, v11 offset:1024")
    E("s_waitcnt lgkmcnt(2)")
    E.label("A_noex")
    E(f"v_add_f32 v12, v{OA+8}, v{S0+8}")
    E("v_rcp_f32 v12, v12")
    E("s_waitcnt lgkmcnt(0)")
    for i in range(8):
        E(f"v_add_f32 v{OA+i}, v{OA+i}, v{S0+i}")
    for i in range(8):
        E(f"v_mul_f32 v{OA+i}, v12, v{OA+i}")
    for i in range(4):
        E(f"v_cvt_pk_bf16_f32 v{S1+i}, v{OA+2*i}, v{OA+2*i+1}")
    E(f"buffer_store_dwordx4 {vr(S1,4)}, v{VL}, {sr(WS)}, s{S_T0} offen sc0 sc1")
    if not O.x_noack:
        E("s_waitcnt vmcnt(0)")
    put_flag(S_T1)
    stamp(7)
    flush_stamps(range(10), "A_st")
    E("s_endpgm")

    E.label("A_slow")
    MX, MY, T, AL = 4, 5, 6, 7
    E(f"v_mov_b32 v{MX}, 0xff7fffff")
    E(f"v_mov_b32 v{MY}, 0xff7fffff")
    E.label("A_sloop")
    E(f"s_mov_b32 s{S_T3}, 0")
    E.label("A_stile")
    E(f"ds_read_b128 {vr(K0,4)}, v{VK}")
    vreads(V0, 0)
    E(f"v_add_u32 v{VK}, 4096, v{VK}")
    E(f"v_add_u32 v{VV}, 4096, v{VV}")
    E("s_waitcnt lgkmcnt(0)")
    for (M, Q, Oc) in ((MX, QX, OA), (MY, QY, OB)):
        E(f"v_mfma_f32_32x32x16_bf16 {vr(S0,16)}, {vr(K0,4)}, {vr(Q,4)}, 0")
        E("s_nop 15")
        E(f"v_max3_f32 v{T}, v{S0}, v{S0+1}, v{M}")
        for i in range(1, 8):
            E(f"v_max3_f32 v{T}, v{S0+2*i}, v{S0+2*i+1}, v{T}")
        E(f"v_mov_b32 v{AL}, v{T}")
        E("s_nop 1")
        E(f"v_permlane32_swap_b32 v{T}, v{AL}")
        E("s_nop 1")
        E(f"v_max_f32 v{T}, v{T}, v{AL}")
        E(f"v_sub_f32 v{AL}, v{M}, v{T}")
        E(f"v_exp_f32 v{AL}, v{AL}")
        E(f"v_mov_b32 v{M}, v{T}")
        for i in range(16):
            E(f"v_sub_f32 v{S0+i}, v{S0+i}, v{T}")
        for i in range(16):
            E(f"v_exp_f32 v{S0+i}, v{S0+i}")
        for i in range(9):
            E(f"v_mul_f32 v{Oc+i}, v{AL}, v{Oc+i}")
        E("s_nop 1")
        E(f"v_smfmac_f32_32x32x32_bf16 {vr(Oc,16)}, {vr(V0,4)}, {vr(S0,8)}, v{IDX}")
        E(f"v_smfmac_f32_32x32x32_bf16 {vr(Oc,16)}, {vr(V0+4,4)}, {vr(S0+8,8)}, v{IDX}")
    E(f"s_add_u32 s{S_T3}, s{S_T3}, 1")
    E(f"s_cmp_lt_u32 s{S_T3}, 4")
    E("s_cbranch_scc1 A_stile")
    chunk_turn()
    E(f"s_add_u32 s{S_CNT}, s{S_CNT}, 1")
    E(f"s_cmp_lt_u32 s{S_CNT}, 8")
    E("s_cbranch_scc1 A_sloop")
    E(f"s_lshl_b32 s{S_T1}, s{S_WAVE}, 10")
    E(f"s_add_u32 s{S_T1}, s{S_T1}, 65536")
    E(f"s_xor_b32 s{S_T2}, s{S_T1}, 4096")
    E(f"v_add_u32 v10, s{S_T1}, v{VL}")
    E(f"v_add_u32 v11, s{S_T2}, v{VL}")
    E(f"ds_write_b64 v10, v[{MX}:{MY}]")
    E("s_waitcnt lgkmcnt(0)")
    E("s_barrier")
    E(f"ds_read_b64 v[{T}:{AL}], v11")
    E("s_waitcnt lgkmcnt(0)")
    for (M, P, Oc) in ((MX, T, OA), (MY, AL, OB)):
        E(f"v_max_f32 v{P}, v{P}, v{M}")
        E(f"v_sub_f32 v{P}, v{M}, v{P}")
        E(f"v_exp_f32 v{P}, v{P}")
        E("s_nop 0")
        for i in range(9):
            E(f"v_mul_f32 v{Oc+i}, v{P}, v{Oc+i}")
    E("s_branch A_fin")


F_XS, F_WS0, F_WSZ = 16384, 32768, 16384
WROW = 3584


def f_dma_x(u, vm):
    E(f"s_add_u32 m0, s{S_W1K}, {(u % 2) * F_XS}")
    E(f"s_add_u32 s{S_T0}, s{S_XB}, s{S_XK}")
    E(f"buffer_load_dwordx4 v1, {sr(X)}, s{S_T0} offen lds")
    E(f"s_add_u32 m0, s{S_W1K}, {(u % 2) * F_XS + 8192}")
    E(f"s_add_u32 s{S_T0}, s{S_T0}, 0x10000")
    E(f"buffer_load_dwordx4 v1, {sr(X)}, s{S_T0} offen lds")
    E(f"s_add_u32 s{S_XK}, s{S_XK}, 128")
    E(f"s_and_b32 s{S_XK}, s{S_XK}, 1023")
    vm.issue(("x", u), 2)


def f_dma_w(s, vm):
    base = F_WS0 + (s % 3) * F_WSZ
    E(f"s_add_u32 m0, s{S_W1K}, {base}")
    E("s_nop 0")
    E(f"buffer_load_dwordx4 v2, {sr(W1)}, s{S_WK} offen lds")
    E(f"s_add_u32 m0, s{S_W1K}, {base + 8192}")
    E("s_nop 0")
    E(f"buffer_load_dwordx4 v3, {sr(WU)}, s{S_WK} offen lds")
    E(f"s_add_u32 s{S_WK}, s{S_WK}, {32 * WROW}")
    E(f"s_cmp_eq_u32 s{S_WK}, {512 * WROW}")
    E(f"s_cselect_b32 s{S_WK}, 0, s{S_WK}")
    vm.issue(("w", s), 2)


def f_prologue():
    E(f"s_cmp_ge_u32 s2, {256 if O.no_f else 512}")
    E("s_cbranch_scc1 L_end")
    stamp(0)
    E(f"s_load_dwordx2 s[{X}:{X+1}], s[0:1], 0")
    E(f"s_load_dwordx2 s[{W1}:{W1+1}], s[0:1], 32")
    E(f"s_load_dwordx2 s[{WU}:{WU+1}], s[0:1], 40")
    E(f"s_load_dwordx2 s[{WS}:{WS+1}], s[0:1], 80")
    E(f"s_load_dwordx2 s[{DBG}:{DBG+1}], s[0:1], 72")
    E(f"s_load_dwordx2 s[{WD}:{WD+1}], s[0:1], 48")
    E(f"s_load_dwordx2 s[{WO}:{WO+1}], s[0:1], 16")
    E(f"s_load_dwordx2 s[{OUT}:{OUT+1}], s[0:1], 64")
    E(f"s_load_dwordx2 s[{GW}:{GW+1}], s[0:1], 56")
    E("v_lshrrev_b32 v8, 6, v0")
    E(f"s_bfe_u32 s{S_C}, s2, 0x50003")
    E(f"v_readfirstlane_b32 s{S_WAVE}, v8")
    E(f"s_cmp_ge_u32 s{S_C}, 28")
    E("s_cbranch_scc0 F_main")
    E("s_getpc_b64 s[4:5]")
    E.label("F_pc")
    E(f"s_add_u32 s4, s4, CODE_START - F_pc")
    E("s_addc_u32 s5, s5, -1")
    E("s_mov_b32 s6, CODE_END - CODE_START")
    E("s_mov_b32 s7, 0x20000")
    E("v_lshlrev_b32 v9, 7, v0")
    E("buffer_load_dword v120, v9, s[4:7], 0 offen")
    E("s_branch F_main")


def f_main():
    E.label("F_main")
    srd(X, 0x200000); srd(W1, 512 * WROW); srd(WU, 512 * WROW); srd(WS, WS_SIZE); srd(DBG, 256)
    srd(WD, 1792 * 1024); srd(WO, 512 * 1024); srd(OUT, 0x200000); srd(GW, 1024)
    E(f"s_lshl_b32 s{S_W1K}, s{S_WAVE}, 10")
    E(f"s_setprio {O.prio_f if O.prio_up < 0 else O.prio_up}")
    E("v_lshrrev_b32 v9, 3, v0")
    E("v_lshrrev_b32 v10, 4, v0")
    E("v_xor_b32 v11, v10, v0")
    E("v_and_b32 v11, 7, v11")
    E("v_lshlrev_b32 v11, 4, v11")
    E("v_lshl_add_u32 v1, v9, 10, v11")
    E("s_waitcnt lgkmcnt(0)")
    if O.only_down:
        stamp(1); stamp(2); stamp(3); stamp(10); stamp(11); stamp(12)
        E("s_branch F_pub")
    if O.warm_steps:
        E(f"s_cmp_lt_u32 s{S_WAVE}, 4")
        E(f"s_cselect_b32 s4, s{W1}, s{WU}")
        E(f"s_cselect_b32 s5, s{W1+1}, s{WU+1}")
        E(f"s_mul_i32 s{S_T0}, s{S_C}, {WROW}")
        E(f"s_bfe_u32 s{S_T1}, s2, 0x10002")
        E(f"s_mul_i32 s{S_T1}, s{S_T1}, 1792")
        E(f"s_add_u32 s{S_T0}, s{S_T0}, s{S_T1}")
        E(f"s_and_b32 s{S_T1}, s{S_WAVE}, 3")
        E(f"s_mul_i32 s{S_T1}, s{S_T1}, 448")
        E(f"s_add_u32 s{S_T0}, s{S_T0}, s{S_T1}")
        E(f"s_add_u32 s4, s4, s{S_T0}")
        E("s_addc_u32 s5, s5, 0")
        E(f"s_mov_b32 s{S_CNT}, {O.warm_steps}")
        E.label("F_warm")
        for i in range(7):
            E(f"s_load_dword s6, s[4:5], {64*i}")
        E(f"s_add_u32 s4, s4, {32 * WROW}")
        E("s_addc_u32 s5, s5, 0")
        E(f"s_sub_u32 s{S_CNT}, s{S_CNT}, 1")
        E(f"s_cmp_lg_u32 s{S_CNT}, 0")
        E("s_cbranch_scc1 F_warm")
        E("s_waitcnt lgkmcnt(0)")
    if O.f_touch:
        E(f"s_lshl_b32 s{S_T0}, s{S_C}, 2")
        E(f"s_and_b32 s{S_T1}, s{S_WAVE}, 3")
        E(f"s_add_u32 s{S_T0}, s{S_T0}, s{S_T1}")
        E(f"s_mul_i32 s{S_T0}, s{S_T0}, {2 * 3584}")
        E(f"s_bfe_u32 s{S_T1}, s2, 0x10002")
        E(f"s_mul_i32 s{S_T1}, s{S_T1}, 1792")
        E(f"s_add_u32 s{S_T0}, s{S_T0}, s{S_T1}")
        E("v_bfe_u32 v12, v0, 4, 1")
        E("v_mul_u32_u24 v12, 3584, v12")
        E("v_and_b32 v13, 15, v0")
        E("v_lshl_add_u32 v12, v13, 7, v12")
        E(f"v_add_u32 v13, s{S_T0}, v12")
        E(f"s_cmp_lt_u32 s{S_WAVE}, 4")
        E(f"s_cselect_b32 s4, s{W1}, s{WU}")
        E(f"s_cselect_b32 s5, s{W1+1}, s{WU+1}")
        E(f"s_mov_b32 s6, {512 * WROW}")
        E("s_mov_b32 s7, 0x20000")
        if O.f_touch == 1:
            E("s_mov_b64 exec, 1")
            E(f"buffer_load_dword v15, v13, s[4:7], 0 offen")
            E("s_waitcnt vmcnt(0)")
            E("s_mov_b64 exec, 0x3fff3fff")
            E(f"buffer_load_dword v15, v13, s[4:7], 0 offen{' nt' if O.nt0 & 2 else ''}")
            E("s_mov_b64 exec, -1")
    E(f"s_cmp_ge_u32 s{S_C}, 28")
    E("s_cbranch_scc1 F_gate")
    E(f"s_and_b32 s{S_T0}, s{S_C}, 3")
    E(f"s_lshr_b32 s{S_T1}, s{S_C}, 2")
    E(f"s_and_b32 s{S_A}, s2, 3")
    E(f"s_lshl_b32 s{S_A}, s{S_A}, 2")
    E(f"s_add_u32 s{S_A}, s{S_A}, s{S_T0}")
    E(f"s_bfe_u32 s{S_B}, s2, 0x10002")
    E(f"s_mul_i32 s{S_B}, s{S_B}, 7")
    E(f"s_add_u32 s{S_B}, s{S_B}, s{S_T1}")
    E(f"s_lshl_b32 s{S_T0}, s{S_T0}, 1")
    E(f"s_add_u32 s{S_T0}, s{S_T0}, s{S_T1}")
    E(f"s_and_b32 s{S_T0}, s{S_T0}, {7 if O.f_rot else 0}")
    E(f"s_lshl_b32 s{S_XK}, s{S_T0}, 7")
    E(f"s_mul_i32 s{S_WK}, s{S_T0}, {64 * WROW}")
    E(f"s_lshl_b32 s{S_XB}, s{S_A}, 17")
    E(f"v_mul_u32_u24 v9, {WROW}, v10")
    E("v_bfe_u32 v11, v0, 1, 3")
    E("v_and_b32 v10, 3, v10")
    E("v_xor_b32 v11, v11, v10")
    E("v_lshl_add_u32 v9, v11, 5, v9")
    E("v_and_b32 v11, 1, v0")
    E("v_lshl_add_u32 v9, v11, 4, v9")
    E(f"s_lshl_b32 s{S_T0}, s{S_B}, 8")
    E(f"v_add_u32 v2, s{S_T0}, v9")
    E("v_xor_b32 v3, 128, v2")
    vm = VM()

    def fill():
        f_dma_x(0, vm); f_dma_w(0, vm); f_dma_w(1, vm); f_dma_x(1, vm); f_dma_w(2, vm)

    if O.f_fill_early:
        fill()
    E("v_and_b32 v8, 31, v0")
    E("v_lshrrev_b32 v9, 1, v8")
    E("v_and_b32 v9, 7, v9")
    E("v_bfe_u32 v10, v0, 5, 1")
    E("v_xor_b32 v9, v9, v10")
    E("v_lshlrev_b32 v9, 4, v9")
    E("v_lshl_add_u32 v9, v8, 7, v9")
    E("v_bfe_u32 v8, v0, 6, 1")
    E("v_lshl_add_u32 v4, v8, 13, v9")
    for ks in (1, 2, 3):
        E(f"v_xor_b32 v{4+ks}, {32*ks}, v4")
    E("v_bfe_u32 v8, v0, 2, 2")
    E("v_lshl_add_u32 v9, v10, 3, v8")
    E("v_lshlrev_b32 v9, 8, v9")
    E("v_bfe_u32 v10, v0, 4, 1")
    E("v_lshl_add_u32 v9, v10, 13, v9")
    E("v_lshlrev_b32 v10, 2, v10")
    E("v_xor_b32 v8, v8, v10")
    E("v_lshrrev_b32 v10, 7, v0")
    E("v_lshlrev_b32 v10, 1, v10")
    E("v_xor_b32 v8, v8, v10")
    E("v_lshl_add_u32 v9, v8, 5, v9")
    E("v_and_b32 v8, 3, v0")
    E("v_lshl_add_u32 v9, v8, 3, v9")
    E(f"v_add_u32 v8, {F_WS0}, v9")
    E("v_xor_b32 v9, 32, v8")
    E(f"s_cmp_lg_u32 s{S_WAVE}, 0")
    E("s_cbranch_scc1 F_go")
    wait_start("F_tag", 1 if O.hint1 >= 0 else 0)
    E.label("F_go")
    if not O.f_fill_early:
        E("s_barrier")
        if O.f_touch == 3:
            f_dma_x(0, vm); f_dma_w(0, vm)
        if O.f_touch >= 2:
            E("s_mov_b64 exec, 0x3fff3fff")
            E(f"buffer_load_dword v15, v13, s[4:7], 0 offen{' nt' if O.nt0 & 2 else ''}")
            E("s_mov_b64 exec, -1")
            vm.issue("t")
        if O.f_touch == 3:
            f_dma_w(1, vm); f_dma_x(1, vm); f_dma_w(2, vm)
        else:
            fill()
    stamp(1)

    def reads(s, kk):
        b = 16 + 16 * kk
        u = s // 2
        L = []
        for i in (0, 1):
            L.append(f"ds_read_b128 {vr(b+4*i,4)}, v{4 + 2*(s&1) + kk} offset:{(u % 2) * F_XS + i * 4096}")
            for q in (0, 1):
                L.append(f"ds_read_b64_tr_b16 {vr(b+8+4*i+2*q,2)}, v{8+i} offset:{(s % 3) * F_WSZ + kk * 4096 + q * 1024}")
        return L

    def mfmas(s, kk):
        b = 16 + 16 * kk
        L = []
        for rbk, bb in ((0, 0), (0, 1), (1, 1), (1, 0)):
            acc = vr(64 + 16 * (2 * rbk + bb), 16)
            c = "0" if (s == 0 and kk == 0) else acc
            L.append(f"v_mfma_f32_32x32x16_bf16 {acc}, {vr(b+8+4*bb,4)}, {vr(b+4*rbk,4)}, {c}")
        return L

    E(f"s_waitcnt vmcnt({vm.need(('x',0),('w',0))})")
    E("s_barrier")
    stamp(2)
    for x in reads(0, 0):
        E(x)
    def paced(s, kk):
        M, R = mfmas(s, kk), reads(s, kk)
        [E(x) for x in R[:3]]; E("s_waitcnt lgkmcnt(0)"); E(M[0])
        [E(x) for x in R[4:]]; E("s_waitcnt lgkmcnt(0)"); E(M[1])
        E(R[3]); E("s_waitcnt lgkmcnt(0)"); E(M[2]); E(M[3])

    for s in range(16):
        if s > O.pace_from:
            paced(s, 0)
            paced(s, 1)
            if s < 15:
                E(f"s_waitcnt vmcnt({vm.need(('x',(s+1)//2),('w',s+1))})")
                E("s_barrier")
                if s + 3 <= 15:
                    f_dma_w(s + 3, vm)
                if s % 2 == 1 and (s + 1) // 2 + 1 <= 7:
                    f_dma_x((s + 1) // 2 + 1, vm)
                if s in (3, 7, 11):
                    stamp(10 + s // 4)
            continue
        if O.boost_mask and (s == 0 or ((O.boost_mask >> s) ^ (O.boost_mask >> (s - 1))) & 1):
            E(f"s_setprio {O.prio_boost if (O.boost_mask >> s) & 1 else O.prio_f}")
        M, R = mfmas(s, 0), reads(s, 1)
        E("s_waitcnt lgkmcnt(0)")
        E(M[0]); [E(x) for x in R[:3]]; E(M[1]); [E(x) for x in R[3:]]; E(M[2]); E(M[3])
        M = mfmas(s, 1)
        if s == 2 and O.hint1 >= 0 and O.hold:
            E("s_waitcnt lgkmcnt(0)")
            [E(x) for x in M]
            E(f"s_cmp_lg_u32 s{S_WAVE}, 0")
            E("s_cbranch_scc1 F_go2")
            wait_start("F_tag2", 0, False)
            E.label("F_go2")
            E("s_barrier")
            f_dma_w(3, vm); f_dma_w(4, vm); f_dma_x(2, vm); f_dma_w(5, vm)
            E(f"s_waitcnt vmcnt({vm.need(('w', 3))})")
            E("s_barrier")
            [E(x) for x in reads(3, 0)]
            continue
        if s < 15:
            E(f"s_waitcnt vmcnt({vm.need(('x',(s+1)//2),('w',s+1))}) lgkmcnt(0)")
            E("s_barrier")
            R = reads(s + 1, 0) if s + 1 <= O.pace_from else []
            E(M[0]); [E(x) for x in R[:3]]; E(M[1]); [E(x) for x in R[3:]]; E(M[2])
            hold = O.hint1 >= 0 and O.hold and s < 2
            if s + 3 <= 15 and not hold:
                f_dma_w(s + 3, vm)
            E(M[3])
            if s % 2 == 1 and (s + 1) // 2 + 1 <= 7 and not hold:
                f_dma_x((s + 1) // 2 + 1, vm)
            if O.f_wd and O.wd_step <= s < O.wd_step + O.wd_parts:
                E(f"s_lshl_b32 s{S_T0}, s{S_C}, 16")
                E("v_lshlrev_b32 v11, 7, v0")
                if O.wd_parts > 1:
                    n = 64 // O.wd_parts
                    m = ((1 << n) - 1) << (n * (s - O.wd_step))
                    E(f"s_mov_b32 exec_lo, {m & 0xffffffff:#x}")
                    E(f"s_mov_b32 exec_hi, {m >> 32:#x}")
                E(f"buffer_load_dword v15, v11, {sr(WD)}, s{S_T0} offen{' nt' if O.nt0 & 2 else ''}")
                if O.wd_parts > 1:
                    E("s_mov_b64 exec, -1")
                vm.issue("wd")
            if s == O.f_touch2:
                E(f"s_mov_b32 s{S_T0}, {256 * 3584}")
                E("s_mov_b64 exec, 0x3fff3fff")
                E(f"buffer_load_dword v15, v13, s[4:7], s{S_T0} offen")
                E("s_mov_b64 exec, -1")
                vm.issue("t2")
            if s in (3, 7, 11) and not O.dn_stamps:
                stamp(10 + s // 4)
        else:
            E("s_waitcnt lgkmcnt(0)")
            [E(x) for x in M]
    stamp(3)
    if O.a_exit:
        flush_stamps(range(13), "F_st0")
        E("s_endpgm")
    E(f"s_setprio {O.prio_silu}")
    if O.wo_early:
        voff_w()
        E("s_barrier")
    if O.wo_early == 1:
        wo_stage()
    E(f"s_and_b32 s{S_T0}, s{S_WAVE}, 1")
    E(f"s_lshl_b32 s{S_T0}, s{S_T0}, 1")
    E(f"s_lshl_b32 s{S_T1}, s{S_A}, 2")
    E(f"s_add_u32 s{S_T0}, s{S_T0}, s{S_T1}")
    E(f"s_mul_i32 s{S_T0}, s{S_T0}, 144")
    E(f"s_lshl_b32 s{S_T1}, s{S_B}, 3")
    E(f"s_add_u32 s{S_T0}, s{S_T0}, s{S_T1}")
    E(f"s_and_b32 s{S_T1}, s{S_WAVE}, 6")
    E(f"s_add_u32 s{S_T0}, s{S_T0}, s{S_T1}")
    E(f"s_lshl_b32 s{S_T0}, s{S_T0}, 10")
    E(f"s_add_u32 s{S_T0}, s{S_T0}, {WS_HO:#x}")
    E(f"s_add_u32 s{S_T1}, s{S_T0}, {144 * 1024}")
    E(f"s_mov_b32 s{S_T2}, {NLOG2E:#x}")
    E(f"s_mov_b32 s{S_T3}, {NLOG2E:#x}")
    E("v_and_b32 v10, 63, v0")
    E("v_lshlrev_b32 v10, 4, v10")
    E("v_mov_b32 v12, 1.0")
    E("v_mov_b32 v13, 1.0")
    E("s_nop 4")
    for tl in range(4):
        a = 64 + 16 * tl
        t = 16 + 8 * (tl & 1)
        pk = 32 + 4 * tl
        for i in range(4):
            E(f"v_pk_mul_f32 {vr(t+2*i,2)}, {vr(a+2*i,2)}, s[{S_T2}:{S_T3}]")
        for i in range(8):
            E(f"v_exp_f32 v{t+i}, v{t+i}")
        for i in range(4):
            E(f"v_pk_mul_f32 {vr(a+2*i,2)}, {vr(a+2*i,2)}, {vr(a+8+2*i,2)}")
        for i in range(4):
            E(f"v_pk_add_f32 {vr(t+2*i,2)}, {vr(t+2*i,2)}, v[12:13]")
        for i in range(8):
            E(f"v_rcp_f32 v{t+i}, v{t+i}")
        E("s_nop 0")
        for i in range(4):
            E(f"v_pk_mul_f32 {vr(a+2*i,2)}, {vr(a+2*i,2)}, {vr(t+2*i,2)}")
        for i in range(4):
            E(f"v_cvt_pk_bf16_f32 v{pk+i}, v{a+2*i}, v{a+2*i+1}")
        E(f"buffer_store_dwordx4 {vr(pk,4)}, v10, {sr(WS)}, s{S_T0 + (tl >> 1)} offen offset:{(tl & 1) * 1024} sc0 sc1")
    if O.wo_early == 2:
        wo_stage()
    E(f"s_lshl_b32 s{S_T0}, s{S_A}, 10")
    E(f"s_lshl_b32 s{S_T1}, s{S_B}, 6")
    E(f"s_add_u32 s{S_T0}, s{S_T0}, s{S_T1}")
    E.label("F_pub")
    E(f"s_add_u32 s{S_T0}, s{S_T0}, {WS_FH:#x}")
    E(f"s_waitcnt vmcnt({8 if O.wo_early == 2 else 0})")
    E("s_barrier")
    stamp(4)
    E(f"s_and_b32 s{S_A}, s2, 7")
    E(f"s_lshl_b32 s{S_A}, s{S_A}, 2")
    E(f"s_and_b32 s{S_T1}, s{S_C}, 3")
    E(f"s_add_u32 s{S_A}, s{S_A}, s{S_T1}")
    E(f"s_lshr_b32 s{S_B}, s{S_C}, 2")
    E(f"s_cmp_lg_u32 s{S_WAVE}, 0")
    if O.only_down:
        E("s_branch F_wait2")
    E("s_cbranch_scc1 F_wait2")
    put_flag(S_T0)
    E.label("F_wait2")
    E("v_and_b32 v8, 63, v0")
    E("v_lshlrev_b32 v12, 4, v8")
    E(f"s_and_b32 s{S_T0}, s{S_WAVE}, 1")
    E(f"s_mul_i32 s{S_T1}, s{S_T0}, 144")
    E(f"s_lshr_b32 s{S_T2}, s{S_WAVE}, 1")
    E(f"s_add_u32 s{S_T1}, s{S_T1}, s{S_T2}")
    E(f"s_lshl_b32 s{S_T1}, s{S_T1}, 10")
    E(f"v_add_u32 v1, s{S_T1}, v12")
    E(f"s_lshl_b32 s{S_T1}, s{S_T0}, 2")
    E(f"s_add_u32 s{S_T1}, s{S_T1}, s{S_T2}")
    E(f"s_lshl_b32 s{S_D}, s{S_T1}, 10")
    E("v_bfe_u32 v10, v0, 4, 1")
    if not O.wo_early:
        voff_w()
    E(f"s_lshl_b32 s{S_T0}, s{S_T0}, 12")
    E(f"s_lshr_b32 s{S_T1}, s{S_WAVE}, 2")
    E(f"s_lshl_b32 s{S_T1}, s{S_T1}, 11")
    E(f"s_add_u32 s{S_T0}, s{S_T0}, s{S_T1}")
    E(f"v_add_u32 v4, s{S_T0}, v12")
    E("v_bfe_u32 v8, v0, 2, 2")
    E("v_bfe_u32 v9, v0, 5, 1")
    E("v_lshl_add_u32 v9, v9, 2, v8")
    E("v_lshrrev_b32 v11, 8, v0")
    E("v_lshl_add_u32 v9, v11, 5, v9")
    E("v_lshlrev_b32 v9, 7, v9")
    E("v_lshrrev_b32 v8, 1, v8")
    E("v_bfe_u32 v11, v0, 7, 1")
    E("v_xor_b32 v8, v8, v11")
    E("v_lshl_add_u32 v9, v8, 6, v9")
    E("v_lshl_add_u32 v9, v10, 5, v9")
    E("v_and_b32 v8, 3, v0")
    E("v_lshl_add_u32 v9, v8, 3, v9")
    E("v_add_u32 v5, 8192, v9")
    _m_fix_base()
    E(f"s_mul_i32 s{S_T0}, s{S_B}, 7")
    E(f"s_lshr_b32 s{S_T0}, s{S_T0}, 1")
    E(f"s_and_b32 s{S_T1}, s{S_C}, 3")
    E(f"s_mul_i32 s{S_T1}, s{S_T1}, 7")
    E(f"s_add_u32 s{S_T0}, s{S_T0}, s{S_T1}")
    E(f"s_cmp_ge_u32 s{S_T0}, 28")
    E(f"s_cselect_b32 s{S_T1}, 28, 0")
    E(f"s_sub_u32 s{S_XK}, s{S_T0}, s{S_T1}")
    if not O.d_rot:
        E(f"s_mov_b32 s{S_XK}, 0")
    if O.h_touch:
        E(f"s_lshl_b32 s{S_T0}, s{S_B}, 3")
        E(f"s_add_u32 s{S_T0}, s{S_T0}, s{S_WAVE}")
        E(f"s_mul_i32 s{S_T0}, s{S_T0}, 1792")
        E(f"s_add_u32 s{S_T2}, s{S_T0}, s{S_XB}")
        E("v_and_b32 v8, 15, v0")
        E("v_lshlrev_b32 v8, 7, v8")
        E("v_bfe_u32 v9, v0, 4, 1")
        E(f"v_mul_u32_u24 v9, {144 * 1024}, v9")
        E("v_add_u32 v8, v8, v9")
    if not O.wo_early:
        wo_stage()
    E(f"s_lshr_b32 s{S_T1}, s{S_WAVE}, 2")
    E(f"s_mul_i32 s{S_T0}, s{S_T1}, 28672")
    E(f"s_sub_u32 s{S_T0}, s{S_T0}, 8192")
    E(f"v_add_u32 v9, s{S_T0}, v5")
    if O.wo_early != 1:
        E("s_waitcnt vmcnt(0)")
        E("s_barrier")
    wf = lambda k: (48 + 4 * k) if k < 4 else (80 + 4 * (k - 4))
    for k in range(16):
        for q in (0, 1):
            E(f"ds_read_b64_tr_b16 {vr(wf(k) + 2*q, 2)}, v9 offset:{k * 2048 + q * 1024}")
    E(f"s_cmp_lg_u32 s{S_WAVE}, 0")
    if O.only_down:
        E("s_branch F_wait2b")
    E("s_cbranch_scc1 F_wait2b")
    E("v_and_b32 v10, 15, v0")
    E("v_lshlrev_b32 v10, 6, v10")
    E(f"s_lshr_b32 s{S_T0}, s{S_A}, 1")
    E(f"s_lshl_b32 s{S_T0}, s{S_T0}, 10")
    E(f"s_add_u32 s{S_T0}, s{S_T0}, {WS_FH:#x}")
    poll("F_pollh", 10, f"s{S_T0}")
    E.label("F_wait2b")
    E("s_waitcnt lgkmcnt(0)")
    E("s_barrier")
    stamp(5)

    NS = O.dn_ns
    vd = VM()

    def dma(st):
        slot = st % NS
        E(f"s_add_u32 m0, s{S_D}, {slot * 16384}")
        if O.d_rot:
            E(f"s_lshl_b32 s{S_T0}, s{S_XK}, 12")
            E(f"s_add_u32 s{S_T0}, s{S_T0}, s{S_XB}")
        else:
            E(f"s_add_u32 s{S_T0}, s{S_XB}, {st * 4096}")
        E(f"buffer_load_dwordx4 v1, {sr(WS)}, s{S_T0} offen sc1 lds")
        E(f"s_add_u32 m0, s{S_W1K}, {slot * 16384 + 8192}")
        if O.d_rot:
            E(f"s_lshl_b32 s{S_T0}, s{S_XK}, 16")
        else:
            E(f"s_mov_b32 s{S_T0}, {st * 65536}")
        E(f"buffer_load_dwordx4 v2, {sr(WD)}, s{S_T0} offen lds")
        if O.d_rot:
            E(f"s_add_u32 s{S_XK}, s{S_XK}, 1")
            E(f"s_cmp_eq_u32 s{S_XK}, 28")
            E(f"s_cselect_b32 s{S_XK}, 0, s{S_XK}")
        vd.issue(st, 2)

    def greads(st):
        slot = st % NS
        b = 16 + 16 * (st & 1)
        vb, vw, base = (4, 5, slot * 16384) if slot < 4 else (3, 13, 0)
        L = []
        for kk in (0, 1):
            L.append(f"ds_read_b128 {vr(b+4*kk,4)}, v{vb} offset:{base + kk * 1024}")
            for q in (0, 1):
                L.append(f"ds_read_b64_tr_b16 {vr(b+8+4*kk+2*q,2)}, v{vw} offset:{base + kk * 2048 + q * 1024}")
        return L

    for t in range(O.ht_pos):
        dma(t)
    if O.h_touch:
        E("s_mov_b64 exec, 0x3fff3fff")
        E(f"buffer_load_dword v15, v8, {sr(WS)}, s{S_T2} offen sc1")
        E("s_mov_b64 exec, -1")
        vd.issue("h")
    E("v_and_b32 v8, 31, v0")
    E("v_bfe_u32 v9, v0, 6, 1")
    E("v_lshl_add_u32 v8, v9, 5, v8")
    E("v_lshlrev_b32 v9, 2, v8")
    E(f"s_lshl_b32 s{S_T0}, s{S_A}, 8")
    E(f"s_add_u32 s{S_T0}, s{S_T0}, {WS_G:#x}")
    E(f"buffer_load_dword v14, v9, {sr(WS)}, s{S_T0} offen sc1")
    vd.issue("g")
    for t in range(O.ht_pos, NS):
        dma(t)
    issued = NS
    E("v_add_u32 v3, 0x10000, v4")
    E("v_add_u32 v13, 0x10000, v5")
    E(f"s_setprio {O.prio_f if O.prio_dn < 0 else O.prio_dn}")
    bars = [t for t in range(27) if t >= O.dn_grp_until or t % O.dn_grp == O.dn_grp - 1]
    E(f"s_waitcnt vmcnt({vd.need(*range(0, bars[0] + 1))})")
    E("s_barrier")
    [E(x) for x in greads(0)]
    for t in range(28):
        b = 16 + 16 * (t & 1)
        M = [f"v_mfma_f32_32x32x16_bf16 v[64:79], {vr(b+8+4*kk,4)}, {vr(b+4*kk,4)}, {'0' if t + kk == 0 else 'v[64:79]'}" for kk in (0, 1)]
        if t == O.dn_low:
            E(f"s_setprio {O.prio_f_late}")
        if O.dn_stamps and t in (4, 12, 20):
            stamp(10 + t // 8)
        if t in bars:
            nxt = min([x for x in bars if x > t] + [27])
            E(f"s_waitcnt vmcnt({vd.need(*range(t + 1, nxt + 1))}) lgkmcnt(0)")
            E("s_barrier")
        else:
            E("s_waitcnt lgkmcnt(0)")
        R = greads(t + 1) if t < 27 else []
        E(M[0]); [E(x) for x in R[:3]]; E(M[1]); [E(x) for x in R[3:]]
        if t in bars:
            while issued <= min(27, t + NS):
                dma(issued)
                issued += 1
    stamp(6)
    E("s_setprio 3")
    if O.only_down:
        flush_stamps(range(13), "F_st1")
        E("s_endpgm")
    E("v_and_b32 v8, 31, v0")
    E("v_bfe_u32 v9, v0, 6, 1")
    E("v_lshl_add_u32 v8, v9, 5, v8")
    E(f"s_lshr_b32 s{S_T1}, s{S_WAVE}, 2")
    E(f"s_bfe_u32 s{S_T2}, s{S_WAVE}, 0x10001")
    E(f"s_lshl_b32 s{S_T2}, s{S_T2}, 4")
    E(f"s_add_u32 s{S_T2}, s{S_T2}, s{S_T1}")
    E(f"s_and_b32 s{S_T3}, s{S_WAVE}, 1")
    E(f"s_lshl_b32 s{S_D}, s{S_T3}, 5")
    E(f"s_add_u32 s{S_D}, s{S_D}, s{S_T2}")
    E(f"s_lshl_b32 s{S_D}, s{S_D}, 10")
    E(f"s_mul_i32 s{S_T0}, s{S_T3}, 144")
    E(f"s_add_u32 s{S_T0}, s{S_T0}, s{S_T2}")
    E(f"s_add_u32 s{S_T0}, s{S_T0}, 112")
    E(f"s_lshl_b32 s{S_T0}, s{S_T0}, 10")
    E(f"s_add_u32 s{S_XB}, s{S_XB}, s{S_T0}")
    E(f"s_lshl_b32 s{S_T3}, s{S_T3}, 15")
    E(f"s_lshl_b32 s{S_T1}, s{S_T1}, 14")
    E(f"s_add_u32 s{S_T3}, s{S_T3}, s{S_T1}")
    E(f"v_add_u32 v4, s{S_T3}, v12")
    out_addr()
    E("v_sub_f32 v15, 1.0, v14")
    for i in range(16):
        E(f"v_mul_f32 v{64+i}, v15, v{64+i}")
    E(f"s_cmp_lg_u32 s{S_WAVE}, 0")
    E("s_cbranch_scc1 F_wait3")
    E("v_lshlrev_b32 v10, 6, v0")
    E(f"s_lshl_b32 s{S_T0}, s{S_A}, 12")
    E(f"s_add_u32 s{S_T0}, s{S_T0}, {WS_FO:#x}")
    poll("F_pollo", 10, f"s{S_T0}", O.piped & 2)
    E("s_waitcnt vmcnt(0)")
    E.label("F_wait3")
    E("s_waitcnt lgkmcnt(0)")
    E("s_barrier")
    stamp(7)
    for i in range(8):
        E(f"s_add_u32 m0, s{S_D}, {i * 2048}")
        E(f"s_add_u32 s{S_T0}, s{S_XB}, {i * 2048}")
        E(f"buffer_load_dwordx4 v12, {sr(WS)}, s{S_T0} offen sc1 lds")
    NQ = O.o_parts
    per = 16 // NQ
    for part in range(NQ):
        E(f"s_waitcnt vmcnt({8 - (part + 1) * 8 // NQ})")
        E("s_barrier")
        for k in range(min(4, per)):
            E(f"ds_read_b128 {vr(32 + 4*k, 4)}, v4 offset:{(per * part + k) * 1024}")
        for k in range(per):
            E(f"s_waitcnt lgkmcnt({min(3, per - 1 - k)})")
            E(f"v_mfma_f32_32x32x16_bf16 v[16:31], {vr(wf(per*part + k), 4)}, {vr(32 + 4*(k % 4), 4)}, {'0' if part + k == 0 else 'v[16:31]'}")
            if k + 4 < per:
                E(f"ds_read_b128 {vr(32 + 4*(k % 4), 4)}, v4 offset:{(per * part + 4 + k) * 1024}")
    if O.twice:
        E(f"s_mov_b32 s{S_CNT}, 0")
        E.label("F_tw")
    stamp(8)
    E("s_nop 11")
    for i in range(16):
        E(f"v_fmac_f32 v{64+i}, v14, v{16+i}")
    E(f"s_cmp_ge_u32 s{S_WAVE}, 4")
    E("s_cbranch_scc1 F_hi")
    E("ds_write_b128 v6, v[72:75]")
    E("ds_write_b128 v6, v[76:79] offset:1024")
    E("s_branch F_x")
    E.label("F_hi")
    E("ds_write_b128 v6, v[64:67]")
    E("ds_write_b128 v6, v[68:71] offset:1024")
    E("s_nop 1")
    for i in range(8):
        E(f"v_mov_b32 v{64+i}, v{72+i}")
    E.label("F_x")
    E("s_waitcnt lgkmcnt(0)")
    E("s_barrier")
    E("ds_read_b128 v[80:83], v7")
    E("ds_read_b128 v[84:87], v7 offset:1024")
    E("s_waitcnt lgkmcnt(0)")
    for i in range(8):
        E(f"v_add_f32 v{64+i}, v{64+i}, v{80+i}")
    for i in range(4):
        E(f"v_cvt_pk_bf16_f32 v{16+i}, v{64+2*i}, v{65+2*i}")
    E("s_nop 1")
    E("v_permlane32_swap_b32 v16, v18")
    E("v_permlane32_swap_b32 v17, v19")
    E(f"buffer_store_dwordx4 v[16:19], v8, {sr(OUT)}, s{S_XK} offen")
    stamp(9)
    if O.twice:
        E("s_barrier")
        E(f"s_add_u32 s{S_CNT}, s{S_CNT}, 1")
        E(f"s_cmp_lt_u32 s{S_CNT}, 2")
        E("s_cbranch_scc1 F_tw")
    flush_stamps(range(13), "F_st")
    E("s_endpgm")

    E.label("F_gate")
    if O.a_exit:
        E("s_endpgm")
    E(f"s_cmp_lg_u32 s{S_WAVE}, 0")
    E("s_cbranch_scc1 F_gate1")
    wait_start("F_tag3", 0 if O.hint_step == 17 else 2)
    E.label("F_gate1")
    E("s_setprio 3")
    E("s_barrier")
    E(f"s_and_b32 s{S_A}, s2, 7")
    E(f"s_lshl_b32 s{S_A}, s{S_A}, 2")
    E(f"s_add_u32 s{S_A}, s{S_A}, s{S_C}")
    E(f"s_sub_u32 s{S_A}, s{S_A}, 28")
    E(f"s_lshl_b32 s{S_T0}, s{S_A}, 16")
    E("v_and_b32 v10, 7, v0")
    E("v_lshlrev_b32 v10, 4, v10")
    E("v_lshl_add_u32 v11, v9, 10, v10")
    for i in range(8):
        E(f"buffer_load_dwordx4 {vr(16+4*i,4)}, v11, {sr(X)}, s{S_T0} offen offset:{128*i}")
    for i in range(8):
        E(f"buffer_load_dwordx4 {vr(48+4*i,4)}, v10, {sr(GW)}, 0 offen offset:{128*i}")
    E("v_mov_b32 v12, 0")
    E("v_mov_b32 v13, 0")
    E("s_waitcnt vmcnt(0)")
    for i in range(32):
        E(f"v_dot2_f32_bf16 v{12 + (i & 1)}, v{16+i}, v{48+i}, v{12 + (i & 1)}")
        if i % 2 == 1:
            E("s_nop 0")
    E("s_nop 2")
    E("v_add_f32 v12, v12, v13")
    for ctl in ("quad_perm:[1,0,3,2]", "quad_perm:[2,3,0,1]", "row_half_mirror"):
        E("s_nop 1")
        E(f"v_add_f32_dpp v12, v12, v12 {ctl} row_mask:0xf bank_mask:0xf")
    E(f"v_mul_f32 v12, {NLOG2E:#x}, v12")
    E("v_exp_f32 v12, v12")
    E("s_nop 0")
    E("v_add_f32 v12, 1.0, v12")
    E("v_rcp_f32 v12, v12")
    E("v_lshlrev_b32 v11, 2, v9")
    E(f"s_lshl_b32 s{S_T0}, s{S_A}, 8")
    E(f"s_add_u32 s{S_T0}, s{S_T0}, {WS_G:#x}")
    E("v_cmp_eq_u32 vcc, 0, v10")
    E("s_nop 4")
    E("s_mov_b64 exec, vcc")
    E(f"buffer_store_dword v12, v11, {sr(WS)}, s{S_T0} offen sc0 sc1")
    E("s_mov_b64 exec, -1")
    if O.f_wd:
        E(f"s_and_b32 s{S_T0}, s{S_C}, 3")
        E(f"s_lshl_b32 s{S_T0}, s{S_T0}, 17")
        E(f"s_add_u32 s{S_T1}, s{S_T0}, 0x10000")
        E("v_lshlrev_b32 v11, 7, v0")
        E(f"buffer_load_dword v15, v11, {sr(WO)}, s{S_T0} offen")
        E(f"buffer_load_dword v15, v11, {sr(WO)}, s{S_T1} offen")
    if O.wo_early:
        voff_w()
        wo_stage()
    for i in (1, 2, 3, 10, 11, 12):
        stamp(i)
    E(f"s_lshr_b32 s{S_T0}, s{S_A}, 1")
    E(f"s_lshl_b32 s{S_T0}, s{S_T0}, 10")
    E(f"s_and_b32 s{S_T1}, s{S_A}, 1")
    E(f"s_lshl_b32 s{S_T1}, s{S_T1}, 6")
    E(f"s_add_u32 s{S_T0}, s{S_T0}, s{S_T1}")
    E(f"s_add_u32 s{S_T0}, s{S_T0}, {14 * 64}")
    E("s_branch F_pub")


def out_addr():
    E("v_lshlrev_b32 v8, 10, v8")
    E("v_bfe_u32 v9, v0, 5, 1")
    E("v_lshl_add_u32 v8, v9, 4, v8")
    E("v_bfe_u32 v9, v0, 7, 1")
    E("v_lshl_add_u32 v8, v9, 6, v8")
    E("v_lshrrev_b32 v9, 8, v0")
    E("v_lshl_add_u32 v8, v9, 5, v8")
    E(f"s_lshl_b32 s{S_XK}, s{S_A}, 16")
    E(f"s_lshl_b32 s{S_T1}, s{S_B}, 7")
    E(f"s_add_u32 s{S_XK}, s{S_XK}, s{S_T1}")
    E(f"s_lshl_b32 s{S_T1}, s{S_WAVE}, 11")
    E(f"s_add_u32 s{S_T1}, s{S_T1}, 65536")
    E(f"s_xor_b32 s{S_T2}, s{S_T1}, 8192")
    E(f"v_add_u32 v6, s{S_T1}, v12")
    E(f"v_add_u32 v7, s{S_T2}, v12")


def voff_w():
    E("v_bfe_u32 v2, v0, 4, 1")
    E("v_lshlrev_b32 v2, 2, v2")
    E("v_xor_b32 v2, v2, v0")
    E("v_and_b32 v2, 7, v2")
    E("v_lshlrev_b32 v2, 4, v2")
    E("v_lshrrev_b32 v11, 3, v0")
    E("v_lshl_add_u32 v2, v11, 10, v2")
    E(f"s_lshr_b32 s{S_T1}, s{S_C}, 2")
    E(f"s_lshl_b32 s{S_T1}, s{S_T1}, 7")
    E(f"v_add_u32 v2, s{S_T1}, v2")


def wo_stage():
    for i in range(8):
        E(f"s_add_u32 m0, s{S_W1K}, {i * 8192}")
        E(f"s_mov_b32 s{S_T0}, {i * 65536}")
        E(f"buffer_load_dwordx4 v2, {sr(WO)}, s{S_T0} offen lds")


def _m_fix_base():
    E(f"s_mul_i32 s{S_XB}, s{S_A}, {288 * 1024}")
    E(f"s_add_u32 s{S_XB}, s{S_XB}, {WS_HO:#x}")


HEADER = """; Kernarg layout (88 bytes, ptrs only, base s[0:1]):
; @launch grid=(512,1,1) block=(512,1,1) lds=81920
.amdgcn_target "amdgcn-amd-amdhsa--gfx950"
.text
.globl {kn}
.p2align 8
.type {kn},@function
{kn}:
CODE_START:
"""

FOOTER = """CODE_END:
.section .rodata,"a"
.p2align 6
.amdhsa_kernel {kn}
  .amdhsa_next_free_vgpr 128
  .amdhsa_next_free_sgpr 102
  .amdhsa_accum_offset 128
  .amdhsa_group_segment_fixed_size 0
  .amdhsa_kernarg_size 88
  .amdhsa_user_sgpr_count 2
  .amdhsa_user_sgpr_kernarg_segment_ptr 1
  .amdhsa_system_sgpr_workgroup_id_x 1
.end_amdhsa_kernel
"""


def generate():
    E.L = []
    if O.scramble:
        E("s_and_b32 s3, s2, 7")
        E("s_lshl_b32 s3, s3, 3")
        E("s_bfe_u32 s4, s2, 0x30003")
        E("s_and_b32 s2, s2, 0xffffffc0")
        E("s_or_b32 s2, s2, s3")
        E("s_or_b32 s2, s2, s4")
    E("s_cmp_ge_u32 s2, 256")
    E("s_cbranch_scc1 F_entry")
    stamp(0)
    if O.only_down:
        E("s_endpgm")
    a_prologue()
    E("s_cbranch_vccnz A_vwave")
    E("s_branch A_qwave")
    E.label("F_entry")
    f_prologue()
    E.label("L_end")
    E("s_endpgm")
    E.label("A_qwave")
    a_qkv(False)
    E("s_branch A_att")
    E.label("A_vwave")
    a_qkv(True)
    E.label("A_att")
    a_attention()
    f_main()
    return HEADER.format(kn=KN) + "\n".join(E.L) + "\n" + FOOTER.format(kn=KN)


if __name__ == "__main__":
    ap = argparse.ArgumentParser()
    ap.add_argument("-o", default="k.s")
    ap.add_argument("--set", action="append", default=[])
    a = ap.parse_args()
    for kv in a.set:
        k, v = kv.split("=")
        assert hasattr(O, k), k
        setattr(O, k, type(getattr(O, k))(int(v)))
    s = generate()
    open(a.o, "w").write(s)
    sys.path.insert(0, "cdna_kernels")
    from cdna_launch import with_harness_metadata, address_register_problem
    h = a.o[:-2] + ".harness.s"
    co = a.o[:-2] + ".co"
    open(h, "w").write(with_harness_metadata(s, KN, 11, launch_lists=True))
    r = subprocess.run(["clang", "-x", "assembler", "-target", "amdgcn-amd-amdhsa", "-mcpu=gfx950", h, "-o", co],
                       capture_output=True, text=True)
    if r.returncode:
        print(r.stderr[:4000]); sys.exit(1)
    p = address_register_problem(co, KN)
    print("check:", p)
    r = subprocess.run(f"llvm-nm {co} | grep -E 'CODE_|A_qwave|A_vwave|A_att|A_loop|A_fin|A_slow|F_entry|F_main|F_pub|F_dloop|F_gate$' | sort", shell=True, capture_output=True, text=True)
    print(r.stdout)
```

```python
import sys, subprocess, argparse

NAME = "gated_mix__softmax_full_mha__swiglu_ffn__prompt"
KN = NAME + "_kernel"

WS_KV, WS_Q, WS_HO = 0, 0x400000, 0x600000
WS_G = 0xF04000
WS_FO2 = 0xF40000
WS_FKV, WS_FH, WS_FO, WS_FS = 0xF08000, 0xF0C000, 0xF20000, 0xF07000
WS_STAMP = 0x1000000
WS_SIZE = 0x1100000
QSCALE = 0x3EB8AA3B
NLOG2E = 0xBFB8AA3B
THR2 = 0x45548000


class Opt:
    stamps = False
    hint_step = 17
    f_fill_early = False
    force_slow = False
    prio_a_qkv = 3
    prio_a_att = 2
    prio_f = 0
    prio_f_late = 0
    zrows = 1
    toggle = 0
    touch_gu = 0
    touch = 0
    warm_steps = 0
    f_rot = 0
    a_exit = 0
    kv_rot = 0
    ga = 2
    gb = 3
    gc = 5
    kv_first = 2
    wd_t0 = 3
    wo_t = 1
    f_touch = 1
    f_touch2 = 99
    bal = 4
    pace_from = 99
    prio_up = -1
    prio_dn = 0
    boost_mask = 31
    prio_boost = 3
    hint1 = 11
    f_wd = 1
    pair = 1
    dn_stamps = 0
    wo_early = 1
    scramble = 0
    dbg_out = 0
    hold = 0
    kv_wait1 = 1
    piped = 0
    dn_ns = 5
    dn_grp = 2
    dn_grp_until = 16
    dn_low = 99
    twice = 0
    o_parts = 2
    x_noack = 0
    x_noex = 0
    wd_step = 13
    wd_parts = 1
    ht_pos = 2
    nt0 = 0
    order0 = 0
    diag_span = 0
    w_first = 1
    early_o = 0
    x_fail = 0
    only_down = 0
    d_rot = 0
    h_touch = 1
    att_iters = 8
    prio_silu = 3
    gate_late = 1
    h_sc1 = 1
    no_f = 0
    late_iter = 99


O = Opt()


class Asm:
    def __init__(self):
        self.L = []

    def __call__(self, s):
        for x in s.strip("\n").split("\n"):
            self.L.append("    " + x.strip())

    def label(self, l):
        self.L.append(l + ":")

    def raw(self, s):
        self.L.append(s)


E = Asm()


def vr(a, n):
    return f"v[{a}:{a+n-1}]"


def srd(base, size):
    E(f"s_mov_b32 s{base+2}, {size:#x}")
    E(f"s_mov_b32 s{base+3}, 0x20000")


S_WAVE = 3
X, W1, WU, WS, DBG, WD, WO, OUT, GW = 12, 16, 20, 24, 28, 32, 36, 40, 44
def sr(b): return f"s[{b}:{b+3}]"
S_TAG = 48
S_W1K = 49
S_T0, S_T1, S_T2, S_T3 = 50, 51, 52, 53
S_XK, S_XB, S_WK, S_WB = 54, 55, 56, 57
S_CNT = 58
S_A, S_B, S_C, S_D = 59, 60, 61, 62
S_SLOT = 63
S_VM = 64
S_SPIN = 66
S_STAMP = 70


def stamp(i):
    if O.stamps:
        E(f"s_memrealtime s[{S_STAMP+2*i}:{S_STAMP+2*i+1}]")
        E(f"s_memtime s[68:69]")
        E("s_waitcnt lgkmcnt(0)")
        E(f"s_mov_b32 s{S_STAMP+2*i+1}, s68")


def cstamp(i):
    if O.stamps:
        E(f"s_memtime s[{S_STAMP+2*i}:{S_STAMP+2*i+1}]")
        E("s_waitcnt lgkmcnt(0)")


def flush_stamps(idx, lab):
    if not O.stamps:
        return
    E(f"s_cmp_lg_u32 s{S_WAVE}, 0")
    E(f"s_cbranch_scc1 {lab}")
    E(f"s_lshl_b32 s{S_T0}, s2, 7")
    E(f"s_add_u32 s{S_T0}, s{S_T0}, {WS_STAMP:#x}")
    E("s_mov_b64 exec, 1")
    E("v_mov_b32 v1, 0")
    for i in idx:
        E(f"v_mov_b32 v2, s{S_STAMP+2*i}")
        E(f"buffer_store_dword v2, v1, {sr(WS)}, s{S_T0} offen offset:{4*i}")
        E(f"v_mov_b32 v3, s{S_STAMP+2*i+1}")
        E(f"buffer_store_dword v3, v1, {sr(WS)}, s{S_T0} offen offset:{64+4*i}")
    if O.dbg_out:
        E(f"s_and_b32 s{S_T0}, s2, 255")
        E(f"s_cmp_lg_u32 s{S_T0}, 77")
        E(f"s_cbranch_scc1 {lab}_d")
        sel, base = ((0, 1, 2, 5, 6, 7), 1) if lab.startswith("A") else ((1, 2, 3, 5, 6, 7, 9), 9)
        for n, i in enumerate(sel):
            E(f"v_mov_b32 v2, s{S_STAMP+2*i}")
            if n:
                E(f"v_subrev_u32 v2, s{S_STAMP}, v2")
            E(f"buffer_store_dword v2, v1, {sr(DBG)}, 0 offen offset:{4*(base+n)}")
        if lab.startswith("A"):
            E(f"s_sub_u32 s{S_T0}, s{S_STAMP+13}, s{S_STAMP+11}")
            E(f"v_mov_b32 v2, s{S_T0}")
            E(f"buffer_store_dword v2, v1, {sr(DBG)}, 0 offen offset:28")
        E.label(lab + "_d")
    E("s_waitcnt vmcnt(0)")
    E.label(lab)


class VM:
    def __init__(self):
        self.q = []

    def issue(self, tag, n=1):
        self.q += [tag] * n

    def need(self, *tags):
        last = -1
        for i, t in enumerate(self.q):
            if t in tags:
                last = i
        for t in tags:
            assert t in self.q, t
        return len(self.q) - 1 - last


def poll(lab, voff_reg, soff, piped=False):
    E(f"s_mov_b32 s{S_SPIN}, 0x40000")
    if piped:
        regs = (11, 9, 15)
        for r in regs[:2]:
            E(f"buffer_load_dword v{r}, v{voff_reg}, {sr(WS)}, {soff} offen sc1")
            E("s_sleep 2")
        E.label(lab)
        for i in range(3):
            E(f"buffer_load_dword v{regs[(i + 2) % 3]}, v{voff_reg}, {sr(WS)}, {soff} offen sc1")
            E("s_waitcnt vmcnt(2)")
            E(f"v_cmp_ne_u32 vcc, s{S_TAG}, v{regs[i]}")
            E("s_nop 4")
            E("s_cmp_eq_u64 vcc, 0")
            E(f"s_cbranch_scc1 {lab}_ok")
            E("s_sleep 1")
    else:
        E.label(lab)
        E(f"buffer_load_dword v11, v{voff_reg}, {sr(WS)}, {soff} offen sc1")
        E("s_waitcnt vmcnt(0)")
        E(f"v_cmp_ne_u32 vcc, s{S_TAG}, v11")
        E("s_nop 4")
        E("s_cmp_eq_u64 vcc, 0")
        E(f"s_cbranch_scc1 {lab}_ok")
        E("s_sleep 2")
    E(f"s_sub_u32 s{S_SPIN}, s{S_SPIN}, 1")
    E(f"s_cmp_lg_u32 s{S_SPIN}, 0")
    E(f"s_cbranch_scc1 {lab}")
    E.label(lab + "_ok")


def get_tag(lab, sleep=4):
    E(f"s_mov_b32 s{S_SPIN}, 0x40000")
    E("v_mov_b32 v10, 0")
    E.label(lab)
    E(f"buffer_load_dword v11, v10, {sr(DBG)}, 0 offen sc1")
    E("s_waitcnt vmcnt(0)")
    E(f"v_readfirstlane_b32 s{S_TAG}, v11")
    E("s_nop 3")
    E(f"s_cmp_lg_u32 s{S_TAG}, 0")
    E(f"s_cbranch_scc1 {lab}_ok")
    E(f"s_sleep {sleep}")
    E(f"s_sub_u32 s{S_SPIN}, s{S_SPIN}, 1")
    E(f"s_cmp_lg_u32 s{S_SPIN}, 0")
    E(f"s_cbranch_scc1 {lab}")
    E.label(lab + "_ok")


def put_flag(soff_sgpr):
    E("s_mov_b64 exec, 1")
    E("v_mov_b32 v10, 0")
    E(f"v_mov_b32 v11, s{S_TAG}")
    E(f"buffer_store_dword v11, v10, {sr(WS)}, s{soff_sgpr} offen sc0 sc1")
    E("s_mov_b64 exec, -1")


def wg_store(lab, cond, val_lines, off):
    cond()
    E(f"s_cbranch_scc1 {lab}")
    val_lines()
    E("s_mov_b64 exec, 1")
    E(f"v_mov_b32 v10, {off}")
    E(f"v_mov_b32 v11, s{S_T0}")
    E(f"buffer_store_dword v11, v10, {sr(DBG)}, 0 offen sc0 sc1")
    E("s_mov_b64 exec, -1")
    E.label(lab)


def hint(lab="A_nohint", word=0, early=None):
    E(f"s_lshr_b32 s{S_T0}, s2, 3")
    E(f"s_or_b32 s{S_T0}, s{S_T0}, s{S_WAVE}")
    E(f"s_cbranch_scc1 {lab}")
    if (O.hint_step if early is None else early) < 16:
        E(f"v_readfirstlane_b32 s{S_TAG}, v14")
        E("s_nop 3")
        E(f"s_cmp_lg_u32 s{S_TAG}, 0")
        E(f"s_cbranch_scc1 {lab}_t_ok")
        get_tag(lab + "_t")
    E(f"s_lshl_b32 s{S_T1}, s2, 7")
    E(f"s_add_u32 s{S_T1}, s{S_T1}, {WS_FS + 1024 * word:#x}")
    put_flag(S_T1)
    E.label(lab)


def wait_start(lab, word=0, tag=True):
    if tag:
        get_tag(lab + "_t", 16)
    E("v_mov_b32 v10, 0")
    E(f"s_and_b32 s{S_T0}, s2, 7")
    E(f"s_lshl_b32 s{S_T0}, s{S_T0}, 7")
    E(f"s_add_u32 s{S_T0}, s{S_T0}, {WS_FS + 1024 * word:#x}")
    poll(lab, 10, f"s{S_T0}")


def dpp_max(regs):
    for ctl in ("row_shr:1", "row_shr:2", "row_shr:4", "row_shr:8",
                "row_bcast:15 row_mask:0xa", "row_bcast:31 row_mask:0xc"):
        E("s_nop 1")
        for r in regs:
            m = "" if "row_mask" in ctl else " row_mask:0xf"
            E(f"v_max_f32_dpp v{r}, v{r}, v{r} {ctl}{m} bank_mask:0xf")


A_XS, A_WS0, A_WSZ = 8192, 24576, 12288


def a_dma_x(u, vm):
    E(f"s_add_u32 m0, s{S_W1K}, {(u % 3) * A_XS}")
    E(f"s_add_u32 s{S_T0}, s{S_XB}, s{S_XK}")
    nt = "nt " if ((O.nt0 & 1) and u < 2) or (O.nt0 & 4) else ""
    E(f"buffer_load_dwordx4 v1, {sr(X)}, s{S_T0} offen {nt}lds")
    E(f"s_add_u32 s{S_XK}, s{S_XK}, 128")
    E(f"s_and_b32 s{S_XK}, s{S_XK}, 1023")
    vm.issue(("x", u))


def a_dma_w(s, vm, vwave):
    base = A_WS0 + (s % 4) * A_WSZ
    nt = "nt " if ((O.nt0 & 1) and s < 2) or (O.nt0 & 4) else ""
    E(f"s_add_u32 m0, s{S_W1K}, {base}")
    E(f"s_add_u32 s{S_T0}, s{S_WB}, s{S_WK}")
    E(f"buffer_load_dwordx4 v2, {sr(W1)}, s{S_T0} offen {nt}lds")
    vm.issue(("w", s))
    if vwave == "both":
        E(f"s_cbranch_vccz A_pw{s}")
        E(f"s_add_u32 m0, s{S_W1K}, {base + 3072}")
        E("s_nop 0")
        E(f"buffer_load_dwordx4 v2, {sr(W1)}, s{S_T0} offen offset:1024 {nt}lds")
        E.label(f"A_pw{s}")
    elif vwave:
        E(f"s_add_u32 m0, s{S_W1K}, {base + 3072}")
        E("s_nop 0")
        E(f"buffer_load_dwordx4 v2, {sr(W1)}, s{S_T0} offen offset:1024 {nt}lds")
        vm.issue(("w", s))
    E(f"s_add_u32 s{S_WK}, s{S_WK}, 98304")
    E(f"s_cmp_eq_u32 s{S_WK}, {16 * 98304}")
    E(f"s_cselect_b32 s{S_WK}, 0, s{S_WK}")


def a_prologue():
    E(f"s_load_dwordx2 s[{X}:{X+1}], s[0:1], 0")
    E(f"s_load_dwordx2 s[{W1}:{W1+1}], s[0:1], 8")
    E(f"s_load_dwordx2 s[{WS}:{WS+1}], s[0:1], 80")
    E(f"s_load_dwordx2 s[{DBG}:{DBG+1}], s[0:1], 72")
    E("v_lshrrev_b32 v8, 6, v0")
    E("v_lshrrev_b32 v9, 3, v0")
    E("v_lshrrev_b32 v10, 4, v0")
    E(f"v_readfirstlane_b32 s{S_WAVE}, v8")
    E("v_xor_b32 v11, v10, v0")
    E("v_and_b32 v11, 7, v11")
    E("v_lshlrev_b32 v11, 4, v11")
    E("v_lshl_add_u32 v1, v9, 10, v11")
    srd(X, 0x200000)
    srd(W1, 0x180000)
    E(f"s_lshr_b32 s{S_T0}, s2, 3")
    E(f"s_and_b32 s{S_T1}, s{S_T0}, 7")
    E(f"s_lshr_b32 s{S_T0}, s{S_T0}, 3")
    E(f"s_and_b32 s{S_A}, s2, 3")
    E(f"s_lshl_b32 s{S_A}, s{S_A}, 3")
    E(f"s_add_u32 s{S_A}, s{S_A}, s{S_T1}")
    E(f"s_and_b32 s{S_B}, s2, 4")
    E(f"s_add_u32 s{S_B}, s{S_B}, s{S_T0}")
    E(f"s_lshl_b32 s{S_T0}, s{S_T0}, 1")
    E(f"s_add_u32 s{S_T0}, s{S_T0}, s{S_T1}")
    E(f"s_and_b32 s{S_T0}, s{S_T0}, 7")
    E(f"s_lshl_b32 s{S_XK}, s{S_T0}, 7")
    E(f"s_mul_i32 s{S_WK}, s{S_T0}, {2 * 98304}")
    E(f"s_lshl_b32 s{S_XB}, s{S_A}, 16")
    E(f"s_lshl_b32 s{S_WB}, s{S_B}, 7")
    E(f"s_lshl_b32 s{S_W1K}, s{S_WAVE}, 10")
    E("v_and_b32 v9, 31, v9")
    E("v_mul_u32_u24 v9, 0xc00, v9")
    E("v_and_b32 v10, 1, v10")
    E("v_lshlrev_b32 v10, 2, v10")
    E("v_xor_b32 v10, v10, v0")
    E("v_and_b32 v10, 7, v10")
    E("v_lshl_add_u32 v9, v10, 4, v9")
    E("v_lshrrev_b32 v10, 8, v0")
    E("v_lshl_add_u32 v2, v10, 10, v9")
    E("v_cmp_eq_u32 vcc, 1, v10")
    E(f"s_setprio {O.prio_a_qkv}")
    E("s_waitcnt lgkmcnt(0)")
    stamp(8)
    vm = VM()
    a_dma_x(0, vm)
    a_dma_w(0, vm, "both")
    a_dma_w(1, vm, "both")
    a_dma_x(1, vm)
    a_dma_w(2, vm, "both")
    a_dma_w(3, vm, "both")
    a_dma_x(2, vm)
    stamp(9)
    srd(WS, WS_SIZE)
    srd(DBG, 256)


def a_qkv(vwave):
    p = "AV" if vwave else "AQ"
    if O.touch:
        E(f"s_load_dwordx2 s[{WU}:{WU+1}], s[0:1], {40 if vwave else 32}")
        E(f"s_load_dwordx2 s[{WD}:{WD+1}], s[0:1], 48")
        E(f"s_load_dwordx2 s[{WO}:{WO+1}], s[0:1], 16")
        srd(WU, 512 * 3584); srd(WD, 1792 * 1024); srd(WO, 512 * 1024)
    vm = VM()
    n = 2 if vwave else 1
    for t in (("x", 0), ("w", 0), ("w", 1), ("x", 1), ("w", 2), ("w", 3), ("x", 2)):
        vm.issue(t, n if t[0] == "w" else 1)
    E("v_and_b32 v8, 31, v0")
    if vwave:
        E("v_and_b32 v9, 0x13, v8")
        E("v_lshlrev_b32 v10, 1, v8")
        E("v_and_b32 v10, 8, v10")
        E("v_or_b32 v9, v9, v10")
        E("v_lshrrev_b32 v10, 1, v8")
        E("v_and_b32 v10, 4, v10")
        E("v_or_b32 v8, v9, v10")
    E("v_lshrrev_b32 v9, 1, v8")
    E("v_and_b32 v9, 7, v9")
    E("v_bfe_u32 v10, v0, 5, 1")
    E("v_xor_b32 v9, v9, v10")
    E("v_lshlrev_b32 v9, 4, v9")
    E("v_lshl_add_u32 v9, v8, 7, v9")
    E("v_bfe_u32 v8, v0, 6, 1")
    E("v_lshl_add_u32 v3, v8, 12, v9")
    for ks in (1, 2, 3):
        E(f"v_xor_b32 v{3+ks}, {32*ks}, v3")
    E("v_bfe_u32 v8, v0, 2, 2")
    E("v_lshl_add_u32 v9, v10, 3, v8")
    E("v_lshlrev_b32 v9, 7, v9")
    E("v_bfe_u32 v10, v0, 7, 1")
    E("v_lshrrev_b32 v8, 1, v8")
    E("v_xor_b32 v8, v8, v10")
    E("v_lshl_add_u32 v9, v8, 6, v9")
    E("v_bfe_u32 v8, v0, 4, 1")
    E("v_lshl_add_u32 v9, v8, 5, v9")
    E("v_and_b32 v8, 3, v0")
    E("v_lshl_add_u32 v9, v8, 3, v9")
    E(f"v_add_u32 v7, {A_WS0}, v9")
    segs = (2,) if vwave else (0, 1)
    if O.touch_gu:
        E(f"s_lshr_b32 s{S_T0}, s2, 3")
        E(f"s_lshl_b32 s{S_T0}, s{S_T0}, 2")
        E(f"s_and_b32 s{S_T1}, s{S_WAVE}, 3")
        E(f"s_add_u32 s{S_T0}, s{S_T0}, s{S_T1}")
        E(f"s_mul_i32 s{S_T0}, s{S_T0}, {2 * 3584}")
        E(f"s_bfe_u32 s{S_T1}, s2, 0x10002")
        E(f"s_mul_i32 s{S_T1}, s{S_T1}, 1792")
        E(f"s_add_u32 s{S_T0}, s{S_T0}, s{S_T1}")
        E("v_bfe_u32 v8, v0, 4, 1")
        E("v_mul_u32_u24 v8, 3584, v8")
        E("v_and_b32 v9, 15, v0")
        E("v_lshl_add_u32 v8, v9, 7, v8")
        E(f"v_add_u32 v98, s{S_T0}, v8")

    def reads(s):
        b = 16 + 24 * (s & 1)
        L = []
        for kk in (0, 1):
            L.append(f"ds_read_b128 {vr(b+4*kk,4)}, v{3 + 2*(s&1) + kk} offset:{((s//2) % 3) * A_XS}")
            for si, sg in enumerate(segs):
                for q in (0, 1):
                    off = (s % 4) * A_WSZ + sg * 4096 + kk * 2048 + q * 512
                    L.append(f"ds_read_b64_tr_b16 {vr(b+8+8*si+4*kk+2*q,2)}, v7 offset:{off}")
        return L

    def mfmas(s):
        b = 16 + 24 * (s & 1)
        L = []
        for kk in (0, 1):
            for si, sg in enumerate(segs):
                acc = vr(64 + 16 * si, 16)
                c = "0" if (s == 0 and kk == 0) else acc
                xf, wf = vr(b + 4*kk, 4), vr(b + 8 + 8*si + 4*kk, 4)
                if vwave:
                    L.append(f"v_mfma_f32_32x32x16_bf16 {acc}, {xf}, {wf}, {c}")
                else:
                    L.append(f"v_mfma_f32_32x32x16_bf16 {acc}, {wf}, {xf}, {c}")
        return L

    if not vwave:
        def tagval():
            E(f"s_memrealtime s[{S_T0}:{S_T1}]")
            E("s_waitcnt lgkmcnt(0)")
            E(f"s_or_b32 s{S_T0}, s{S_T0}, 1")
        wg_store("A_notag", lambda: E(f"s_or_b32 s{S_T0}, s2, s{S_WAVE}"), tagval, "0")
    E(f"s_waitcnt vmcnt({vm.need(('x',0),('w',0))}) lgkmcnt(0)")
    E("s_barrier")
    stamp(1)
    for x in reads(0):
        E(x)
    for s in range(16):
        M = mfmas(s)
        if s < 15:
            E(f"s_waitcnt vmcnt({vm.need(('x',(s+1)//2),('w',s+1))}) lgkmcnt(0)")
            E("s_barrier")
            E(M.pop(0))
            R = reads(s + 1)
            per = 3
            while R or M:
                for x in R[:per]:
                    E(x)
                R = R[per:]
                if M:
                    E(M.pop(0))
            if s + 4 <= 15:
                a_dma_w(s + 4, vm, vwave)
            if s % 2 == 1 and (s + 1) // 2 + 2 <= 7:
                a_dma_x((s + 1) // 2 + 2, vm)
            if s == 1 and not vwave:
                E("v_mov_b32 v10, 0")
                E(f"buffer_load_dword v14, v10, {sr(DBG)}, 0 offen sc1")
                vm.issue("tag")
            if s == 12 and O.touch_gu:
                E("s_mov_b32 exec_hi, 0")
                E(f"buffer_load_dword v15, v98, {sr(WU)}, 0 offen")
                E("s_mov_b32 exec_hi, -1")
                vm.issue("t")
        else:
            E("s_waitcnt lgkmcnt(0)")
            for x in M:
                E(x)
        if s == O.hint_step and not vwave:
            hint()
        if s == O.hint1 and not vwave:
            hint("A_nohint1", 1, O.hint1)
        if s == O.hint_step and O.a_exit:
            E("s_endpgm")
    stamp(2)
    E(f"s_and_b32 s{S_T0}, s{S_WAVE}, 1")
    E(f"s_lshl_b32 s{S_T1}, s{S_A}, 1")
    E(f"s_add_u32 s{S_T0}, s{S_T0}, s{S_T1}")
    E(f"s_bfe_u32 s{S_T1}, s{S_WAVE}, 0x10001")
    E(f"s_lshl_b32 s{S_T2}, s{S_B}, 1")
    E(f"s_add_u32 s{S_T1}, s{S_T1}, s{S_T2}")
    E("v_and_b32 v8, 63, v0")
    if vwave:
        E("v_and_b32 v9, 15, v8")
        E("v_lshlrev_b32 v9, 4, v9")
        E("v_bfe_u32 v10, v8, 5, 1")
        E("v_lshl_add_u32 v9, v10, 8, v9")
        E("v_bfe_u32 v10, v8, 4, 1")
        E("v_lshl_add_u32 v9, v10, 17, v9")
        E(f"s_lshl_b32 s{S_T1}, s{S_T1}, 18")
        E(f"s_lshl_b32 s{S_T0}, s{S_T0}, 11")
        E(f"s_add_u32 s{S_T0}, s{S_T0}, s{S_T1}")
        E("s_nop 7")
        for i in range(8):
            E(f"v_cvt_pk_bf16_f32 v{16+i}, v{64+2*i}, v{65+2*i}")
        E(f"buffer_store_dwordx4 v[16:19], v9, {sr(WS)}, s{S_T0} offen offset:1024 sc0 sc1")
        E(f"buffer_store_dwordx4 v[20:23], v9, {sr(WS)}, s{S_T0} offen offset:1536 sc0 sc1")
    else:
        E("v_lshlrev_b32 v9, 4, v8")
        E(f"s_lshl_b32 s{S_T2}, s{S_T1}, 18")
        E(f"s_lshl_b32 s{S_T3}, s{S_T0}, 11")
        E(f"s_add_u32 s{S_T2}, s{S_T2}, s{S_T3}")
        E(f"s_lshr_b32 s{S_T3}, s{S_T2}, 1")
        E(f"s_add_u32 s{S_T3}, s{S_T3}, {WS_Q:#x}")
        E(f"s_add_u32 s{S_C}, s{S_T2}, 0x20000")
        E(f"s_add_u32 s{S_D}, s{S_T3}, 0x10000")
        E(f"s_mov_b32 s{S_CNT}, {QSCALE:#x}")
        E("s_nop 7")
        for i in range(8):
            E(f"v_cvt_pk_bf16_f32 v{16+i}, v{80+2*i}, v{81+2*i}")
        E(f"buffer_store_dwordx4 v[16:19], v9, {sr(WS)}, s{S_T2} offen sc0 sc1")
        E(f"buffer_store_dwordx4 v[20:23], v9, {sr(WS)}, s{S_C} offen sc0 sc1")
        for i in range(16):
            E(f"v_mul_f32 v{64+i}, s{S_CNT}, v{64+i}")
        for i in range(8):
            E(f"v_cvt_pk_bf16_f32 v{24+i}, v{64+2*i}, v{65+2*i}")
        E(f"buffer_store_dwordx4 v[24:27], v9, {sr(WS)}, s{S_T3} offen sc0 sc1")
        E(f"buffer_store_dwordx4 v[28:31], v9, {sr(WS)}, s{S_D} offen sc0 sc1")
        for g in range(4):
            E(f"v_mul_f32 v{32+g}, v{64+8*g}, v{64+8*g}")
        for i in range(1, 8):
            for g in range(4):
                E(f"v_fmac_f32 v{32+g}, v{64+8*g+i}, v{64+8*g+i}")
        E("s_nop 1")
        E("v_permlane32_swap_b32 v32, v33")
        E("v_permlane32_swap_b32 v34, v35")
        E("s_nop 1")
        E("v_add_f32 v32, v32, v33")
        E("v_add_f32 v33, v34, v35")
        dpp_max((32, 33))
        E(f"s_lshl_b32 s{S_T0}, s{S_B}, 11")
        E(f"s_lshl_b32 s{S_T1}, s{S_A}, 6")
        E(f"s_add_u32 s{S_T0}, s{S_T0}, s{S_T1}")
        E(f"s_lshl_b32 s{S_T1}, s{S_WAVE}, 3")
        E(f"s_add_u32 s{S_T0}, s{S_T0}, s{S_T1}")
        E(f"s_add_u32 s{S_T0}, s{S_T0}, {WS_FKV + 16:#x}")
        E("v_mov_b32 v10, 0")
        E("s_brev_b64 exec, 1")
        E(f"buffer_store_dwordx2 v[32:33], v10, {sr(WS)}, s{S_T0} offen sc0 sc1")
        E("s_mov_b64 exec, -1")


S0, S1, OA, OB, QX, QY, K0, K1, V0, V1 = 16, 32, 48, 64, 80, 84, 88, 92, 96, 104
IDX, VK, VV, VD, VKB, VVB, VT, VL = 112, 113, 114, 115, 116, 117, 118, 119
KVS = 16384


def a_kv_dma():
    E(f"s_add_u32 m0, s{S_XK}, s{S_W1K}")
    E(f"s_add_u32 s{S_T0}, s{S_WB}, s{S_WK}")
    E(f"buffer_load_dwordx4 v{VD}, {sr(WS)}, s{S_T0} offen sc1 lds")
    E(f"buffer_load_dwordx4 v{VD}, {sr(WS)}, s{S_T0} offen offset:1024 sc1 lds")
    E(f"s_add_u32 s{S_WK}, s{S_WK}, {KVS}")
    E(f"s_and_b32 s{S_WK}, s{S_WK}, {8*KVS-1:#x}")
    E(f"s_add_u32 s{S_XK}, s{S_XK}, {KVS}")
    E(f"s_cmp_eq_u32 s{S_XK}, {5*KVS}")
    E(f"s_cselect_b32 s{S_XK}, 0, s{S_XK}")


def a_attention():
    E(f"s_and_b32 s{S_C}, s2, 7")
    E(f"s_lshr_b32 s{S_T0}, s2, 6")
    E(f"s_lshl_b32 s{S_D}, s{S_C}, 2")
    E(f"s_add_u32 s{S_D}, s{S_D}, s{S_T0}")
    E(f"s_lshl_b32 s{S_T0}, s{S_B}, 11")
    E(f"s_lshl_b32 s{S_T1}, s{S_A}, 6")
    E(f"s_add_u32 s{S_T0}, s{S_T0}, s{S_T1}")
    E(f"s_add_u32 s{S_XB}, s{S_T0}, {WS_FKV:#x}")
    E(f"s_bfe_u32 s{S_A}, s2, 0x30003")
    E("v_and_b32 v8, 63, v0")
    E(f"v_lshlrev_b32 v{VL}, 4, v8")
    E(f"s_lshl_b32 s{S_W1K}, s{S_WAVE}, 11")
    E(f"v_add_u32 v{VD}, s{S_W1K}, v{VL}")
    E(f"s_lshl_b32 s{S_WB}, s{S_D}, 17")
    if O.kv_rot:
        E(f"s_lshl_b32 s{S_WK}, s{S_A}, 14")
    else:
        E(f"s_mov_b32 s{S_WK}, 0")
    E(f"s_mov_b32 s{S_XK}, 0")
    E(f"s_lshl_b32 s{S_T1}, s{S_A}, 3")
    E(f"s_and_b32 s{S_T2}, s{S_WAVE}, 3")
    E(f"s_lshl_b32 s{S_T2}, s{S_T2}, 1")
    E(f"s_add_u32 s{S_B}, s{S_T1}, s{S_T2}")
    E(f"s_lshl_b32 s{S_T1}, s{S_B}, 10")
    E(f"s_lshl_b32 s{S_T2}, s{S_D}, 16")
    E(f"s_add_u32 s{S_T1}, s{S_T1}, s{S_T2}")
    E(f"s_add_u32 s4, s{S_T1}, {WS_Q:#x}")
    E(f"s_lshr_b32 s{S_T3}, s{S_WAVE}, 2")
    E(f"s_add_u32 s{S_T3}, s{S_B}, s{S_T3}")
    E(f"s_mul_i32 s5, s{S_T3}, 144")
    E(f"s_add_u32 s5, s5, s{S_D}")
    E("s_lshl_b32 s5, s5, 10")
    E(f"s_add_u32 s5, s5, {WS_HO + 112*1024:#x}")
    E(f"s_lshl_b32 s6, s{S_T3}, 11")
    E(f"s_lshl_b32 s{S_T2}, s{S_D}, 6")
    E(f"s_add_u32 s6, s6, s{S_T2}")
    E(f"s_add_u32 s6, s6, {WS_FO:#x}")
    E(f"s_add_u32 s7, s6, {WS_FO2 - WS_FO:#x}")
    E(f"s_lshr_b32 s{S_T0}, s{S_WAVE}, 2")
    E(f"s_lshl_b32 s{S_T0}, s{S_T0}, 11")
    E(f"v_add_u32 v{VKB}, s{S_T0}, v{VL}")
    E("v_and_b32 v9, 15, v8")
    E("v_lshlrev_b32 v9, 4, v9")
    E("v_bfe_u32 v10, v8, 5, 1")
    E("v_lshl_add_u32 v9, v10, 8, v9")
    E(f"s_add_u32 s{S_T0}, s{S_T0}, 1024")
    E(f"v_add_u32 v{VVB}, s{S_T0}, v9")
    E(f"v_mov_b32 v{VK}, v{VKB}")
    E(f"v_mov_b32 v{VV}, v{VVB}")
    E(f"v_mov_b32 v{IDX}, 0xdddddddd")
    E("v_and_b32 v9, 27, v8")
    E("v_cmp_eq_u32 vcc, 16, v9")
    E("v_mov_b32 v9, 0x3f803f80")
    E("s_nop 0")
    E(f"v_cndmask_b32 v{V0}, 0, v9, vcc")
    for i in range(1, 16):
        E(f"v_mov_b32 v{V0+i}, v{V0}")
    if O.touch:
        E(f"s_lshr_b32 s{S_T0}, s2, 3")
        E(f"s_lshl_b32 s{S_T0}, s{S_T0}, 3")
        E(f"s_add_u32 s{S_T0}, s{S_T0}, s{S_WAVE}")
        E(f"s_lshl_b32 s{S_T0}, s{S_T0}, 11")
        E(f"v_lshlrev_b32 v{VT}, 7, v8")
        E(f"v_add_u32 v{VT}, s{S_T0}, v{VT}")
    E(f"s_mov_b32 s{S_VM}, 0xffff")
    E(f"s_mov_b32 s{S_VM+1}, 0xffff")
    E(f"s_mov_b32 s{S_SLOT}, 0")
    E(f"s_mov_b32 s{S_CNT}, 0")
    for i in range(32):
        E(f"v_mov_b32 v{OA+i}, 0")
    for i in range(8, 16):
        E(f"v_mov_b32 v{S1+i}, 0")
    E("s_waitcnt vmcnt(0)")
    E("s_barrier")
    stamp(3)
    E(f"s_cmp_lg_u32 s{S_WAVE}, 0")
    E("s_cbranch_scc1 A_wait1")
    E(f"v_readfirstlane_b32 s{S_TAG}, v14")
    E("s_nop 3")
    E(f"s_cmp_lg_u32 s{S_TAG}, 0")
    E("s_cbranch_scc1 A_tag_ok")
    get_tag("A_tag")
    put_flag(S_XB)
    if O.hint_step == 16:
        hint()
    E("v_and_b32 v10, 31, v0")
    E("v_lshlrev_b32 v10, 6, v10")
    E(f"s_bfe_u32 s{S_T1}, s{S_D}, 0x10001")
    E(f"s_lshl_b32 s{S_T1}, s{S_T1}, 4")
    E(f"s_add_u32 s{S_T1}, s{S_T1}, 16")
    E("v_bfe_u32 v11, v0, 5, 1")
    E(f"v_mul_u32_u24 v11, s{S_T1}, v11")
    E("v_add_u32 v10, v10, v11")
    E(f"s_lshl_b32 s{S_T0}, s{S_C}, 11")
    E(f"s_add_u32 s{S_T0}, s{S_T0}, {WS_FKV:#x}")
    E(f"s_mov_b32 s{S_SPIN}, 0x40000")
    E.label("A_pollkv")
    E(f"buffer_load_dwordx4 v[4:7], v10, {sr(WS)}, s{S_T0} offen sc1")
    E("s_waitcnt vmcnt(0)")
    E(f"v_cmp_ne_u32 vcc, s{S_TAG}, v4")
    E("s_nop 4")
    E("s_cmp_eq_u32 vcc_lo, 0")
    E("s_cbranch_scc1 A_pollkv_ok")
    E("s_sleep 2")
    E(f"s_sub_u32 s{S_SPIN}, s{S_SPIN}, 1")
    E(f"s_cmp_lg_u32 s{S_SPIN}, 0")
    E("s_cbranch_scc1 A_pollkv")
    E.label("A_pollkv_ok")
    E("s_barrier")
    if O.hint_step == 17:
        hint()
    else:
        hint("A_nohint2", 2, 17)
    E("s_branch A_go")
    E.label("A_wait1")
    E("s_barrier")
    E.label("A_go")
    stamp(4)
    a_kv_dma()
    E(f"buffer_load_dwordx4 {vr(QX,4)}, v{VL}, {sr(WS)}, s4 offen sc1")
    E(f"buffer_load_dwordx4 {vr(QY,4)}, v{VL}, {sr(WS)}, s4 offen offset:1024 sc1")
    for c in range(1, O.kv_first):
        a_kv_dma()
    E(f"s_cmp_lg_u32 s{S_WAVE}, 0")
    E("s_cbranch_scc1 A_nored")
    E("v_max_u32 v4, v4, v6")
    E("v_max_u32 v5, v5, v7")
    for ctl in ("row_shr:1", "row_shr:2", "row_shr:4", "row_shr:8", "row_bcast:15 row_mask:0xa"):
        E("s_nop 1")
        for r in (4, 5):
            m = "" if "row_mask" in ctl else " row_mask:0xf"
            E(f"v_max_u32_dpp v{r}, v{r}, v{r} {ctl}{m} bank_mask:0xf")
    E("s_nop 0")
    E("v_mul_f32 v4, v4, v5")
    E(f"v_mov_b32 v5, s{S_TAG}")
    E(f"v_mov_b32 v6, {5 * KVS - 8}")
    E("s_brev_b64 exec, 1")
    E("ds_write_b64 v6, v[4:5]")
    E("s_mov_b64 exec, -1")
    E("s_waitcnt lgkmcnt(0)")
    E.label("A_nored")
    E(f"s_setprio {O.prio_a_att}")
    E(f"s_waitcnt vmcnt({2*O.kv_first - (4 if O.pair and not O.kv_wait1 else 2)})")
    E("s_barrier")
    stamp(5)

    def vreads(dst, off):
        E(f"s_mov_b64 exec, s[{S_VM}:{S_VM+1}]")
        E(f"ds_read_b128 {vr(dst,4)}, v{VV} offset:{off}")
        E(f"ds_read_b128 {vr(dst+4,4)}, v{VV} offset:{off+512}")
        E("s_mov_b64 exec, -1")

    E(f"ds_read_b128 {vr(K0,4)}, v{VK}")
    vreads(V0, 0)
    E(f"v_mov_b32 v6, {5 * KVS - 8}")
    E("ds_read_b64 v[4:5], v6")
    if O.early_o:
        for i in range(4):
            E(f"v_mov_b32 v{120+i}, -1")
        E(f"buffer_store_dwordx4 v[120:123], v{VL}, {sr(WS)}, s5 offen sc0 sc1")
    E("s_waitcnt lgkmcnt(0)")
    E(f"v_readfirstlane_b32 s{S_T0}, v4")
    E(f"v_readfirstlane_b32 s{S_TAG}, v5")
    E(f"v_mfma_f32_32x32x16_bf16 {vr(S0,16)}, {vr(K0,4)}, {vr(QX,4)}, 0")
    E("s_nop 3")
    E(f"s_cmp_gt_u32 s{S_T0}, {THR2:#x}")
    if O.force_slow:
        E("s_branch A_slow")
    E("s_cbranch_scc1 A_slow")
    E("s_nop 7")

    def chunk_turn():
        E("s_waitcnt vmcnt(0)")
        E("s_barrier")
        E(f"s_cmp_gt_u32 s{S_CNT}, {7 - O.kv_first}")
        lab = f"A_nf{len(E.L)}"
        E(f"s_cbranch_scc1 {lab}")
        a_kv_dma()
        E.label(lab)
        if O.touch:
            E(f"s_sub_u32 s{S_T0}, s{S_CNT}, {O.wd_t0}")
            E(f"s_lshl_b32 s{S_T0}, s{S_T0}, 19")
            E("s_mov_b64 exec, 0xffff")
            E(f"s_cmp_gt_u32 s{S_T0}, {3 << 19}")
            E(f"s_cbranch_scc1 {lab}t")
            E(f"buffer_load_dword v15, v{VT}, {sr(WD)}, s{S_T0} offen")
            E.label(lab + "t")
            E(f"s_cmp_lg_u32 s{S_CNT}, {O.wo_t}")
            E(f"s_cbranch_scc1 {lab}u")
            E(f"buffer_load_dword v15, v{VT}, {sr(WO)}, 0 offen")
            E.label(lab + "u")
            E("s_mov_b64 exec, -1")
        E(f"s_add_u32 s{S_SLOT}, s{S_SLOT}, {KVS}")
        E(f"s_cmp_eq_u32 s{S_SLOT}, {5*KVS}")
        E(f"s_cselect_b32 s{S_SLOT}, 0, s{S_SLOT}")
        E(f"v_add_u32 v{VK}, s{S_SLOT}, v{VKB}")
        E(f"v_add_u32 v{VV}, s{S_SLOT}, v{VVB}")

    NT = 16 if O.pair else 8

    def next_slot():
        E(f"s_add_u32 s{S_SLOT}, s{S_SLOT}, {KVS}")
        E(f"s_cmp_eq_u32 s{S_SLOT}, {5*KVS}")
        E(f"s_cselect_b32 s{S_SLOT}, 0, s{S_SLOT}")
        E(f"v_add_u32 v{VK}, s{S_SLOT}, v{VKB}")
        E(f"v_add_u32 v{VV}, s{S_SLOT}, v{VVB}")

    def refill(lab, lo, hi):
        if lo == hi:
            E(f"s_cmp_lg_u32 s{S_CNT}, {lo}")
        else:
            E(f"s_cmp_gt_u32 s{S_CNT}, {hi}")
        E(f"s_cbranch_scc1 {lab}")
        a_kv_dma()
        E.label(lab)

    E.raw(".p2align 6")
    E.label("A_loop")
    ga, gb, gc = O.ga, O.ga + O.gb, O.ga + O.gb + O.gc
    for t in range(NT):
        blk, kt = t & 1, (t >> 1) & 3
        Sc, Sn = (S0, S1) if blk == 0 else (S1, S0)
        Oc, On = (OA, OB) if blk == 0 else (OB, OA)
        Vk, Vo = (V0, V1) if kt & 1 == 0 else (V1, V0)
        Kk, Ko = (K0, K1) if kt & 1 == 0 else (K1, K0)
        if not O.pair:
            if t == 6:
                chunk_turn()
        elif t == 6:
            if O.kv_wait1:
                E(f"s_cmp_lg_u32 s{S_CNT}, 0")
                E("s_cbranch_scc1 A_nb")
                E(f"s_waitcnt vmcnt({2 * len([x for x in (3, 5, 7)[:5 - O.kv_first] if x < 6])})")
                E("s_barrier")
                E.label("A_nb")
            next_slot()
        elif t == 14:
            E("s_waitcnt vmcnt(0)")
            E("s_barrier")
            next_slot()
        ex = lambda a, b: [E(f"v_exp_f32 v{Sc+i}, v{Sc+i}") for i in range(a, b)]
        ph = ((t + 2) % NT) * 8 // NT
        prf = lambda ph: {0: O.prio_a_att, 4: 3 - ph // 2, 2: O.prio_a_att + (1 if ph < 4 else 0), 3: O.prio_a_att + [2, 2, 2, 1, 1, 1, 0, 0][ph]}[O.bal]
        pr = prf(ph)
        if O.bal and not O.toggle and pr != prf(((t + 1) % NT) * 8 // NT):
            E(f"s_setprio {pr}")

        def mm(x):
            if O.toggle: E(f"s_setprio {O.toggle}")
            E(x)
            if O.toggle: E(f"s_setprio {pr}")
        ex(0, ga)
        mm(f"v_smfmac_f32_32x32x32_bf16 {vr(On,16)}, {vr((Vo if blk == 0 else Vk) + 4,4)}, {vr(Sn+8,8)}, v{IDX}")
        if blk == 0:
            off = ((kt + 1) % 4) * 4096
            E(f"ds_read_b128 {vr(Ko,4)}, v{VK} offset:{off}")
            vreads(Vo, off)
        ex(ga, gb)
        if blk == 1:
            E("s_waitcnt lgkmcnt(0)")
        mm(f"v_mfma_f32_32x32x16_bf16 {vr(Sn,16)}, {vr(Kk if blk == 0 else Ko,4)}, {vr(QY if blk == 0 else QX,4)}, 0")
        ex(gb, gc)
        mm(f"v_smfmac_f32_32x32x32_bf16 {vr(Oc,16)}, {vr(Vk,4)}, {vr(Sc,8)}, v{IDX}")
        if O.pair and t == 15:
            refill("A_rf0", 0, 1)
        if O.pair and t == 1:
            refill("A_rf1", 2, 2)
        if O.pair and O.kv_first < 5 and t in (3, 5, 7)[:5 - O.kv_first]:
            refill(f"A_rf{t}", 0, 0)
        ex(gc, 16)
    E(f"s_add_u32 s{S_CNT}, s{S_CNT}, 1")
    E(f"s_cmp_lt_u32 s{S_CNT}, {O.att_iters * 8 // NT}")
    E("s_cbranch_scc1 A_loop")
    E("s_nop 1")
    E(f"v_smfmac_f32_32x32x32_bf16 {vr(OB,16)}, {vr(V1+4,4)}, {vr(S1+8,8)}, v{IDX}")
    E.label("A_fin")
    stamp(6)
    E("s_setprio 3")
    E(f"s_lshr_b32 s{S_T3}, s{S_WAVE}, 2")
    E(f"s_lshl_b32 s{S_T1}, s{S_WAVE}, 12")
    E(f"s_xor_b32 s{S_T2}, s{S_T1}, 16384")
    E(f"v_add_u32 v10, s{S_T1}, v{VL}")
    E(f"v_add_u32 v11, s{S_T2}, v{VL}")
    E("s_nop 5")
    if O.x_noex:
        E("s_branch A_noex")
    E(f"s_cmp_lg_u32 s{S_T3}, 0")
    E("s_cbranch_scc1 A_hi")
    for i in range(3):
        E(f"ds_write_b128 v10, {vr(OB+4*i,4)} offset:{1024*i}")
    E("s_branch A_x")
    E.label("A_hi")
    for i in range(3):
        E(f"ds_write_b128 v10, {vr(OA+4*i,4)} offset:{1024*i}")
    E("s_nop 1")
    for i in range(9):
        E(f"v_mov_b32 v{OA+i}, v{OB+i}")
    E.label("A_x")
    E("s_waitcnt lgkmcnt(0)")
    E("s_barrier")
    E(f"ds_read_b128 {vr(S0+8,4)}, v11 offset:2048")
    E(f"ds_read_b128 {vr(S0,4)}, v11")
    E(f"ds_read_b128 {vr(S0+4,4)}, v11 offset:1024")
    E("s_waitcnt lgkmcnt(2)")
    E.label("A_noex")
    E(f"v_add_f32 v12, v{OA+8}, v{S0+8}")
    E("v_rcp_f32 v12, v12")
    E("s_waitcnt lgkmcnt(0)")
    for i in range(8):
        E(f"v_add_f32 v{OA+i}, v{OA+i}, v{S0+i}")
    for i in range(8):
        E(f"v_mul_f32 v{OA+i}, v12, v{OA+i}")
    for i in range(4):
        E(f"v_cvt_pk_bf16_f32 v{S1+i}, v{OA+2*i}, v{OA+2*i+1}")
    E(f"buffer_store_dwordx4 {vr(S1,4)}, v{VL}, {sr(WS)}, s5 offen sc0 sc1")
    if O.early_o:
        put_flag(6)
        stamp(7)
        E("s_waitcnt vmcnt(0)")
        put_flag(7)
    else:
        E("s_waitcnt vmcnt(0)")
        put_flag(6)
        stamp(7)
    flush_stamps(range(10), "A_st")
    E("s_endpgm")

    E.label("A_slow")
    MX, MY, T, AL = 4, 5, 6, 7
    E(f"v_mov_b32 v{MX}, 0xff7fffff")
    E(f"v_mov_b32 v{MY}, 0xff7fffff")
    E.label("A_sloop")
    E(f"s_mov_b32 s{S_T3}, 0")
    E.label("A_stile")
    E(f"ds_read_b128 {vr(K0,4)}, v{VK}")
    vreads(V0, 0)
    E(f"v_add_u32 v{VK}, 4096, v{VK}")
    E(f"v_add_u32 v{VV}, 4096, v{VV}")
    E("s_waitcnt lgkmcnt(0)")
    for (M, Q, Oc) in ((MX, QX, OA), (MY, QY, OB)):
        E(f"v_mfma_f32_32x32x16_bf16 {vr(S0,16)}, {vr(K0,4)}, {vr(Q,4)}, 0")
        E("s_nop 15")
        E(f"v_max3_f32 v{T}, v{S0}, v{S0+1}, v{M}")
        for i in range(1, 8):
            E(f"v_max3_f32 v{T}, v{S0+2*i}, v{S0+2*i+1}, v{T}")
        E(f"v_mov_b32 v{AL}, v{T}")
        E("s_nop 1")
        E(f"v_permlane32_swap_b32 v{T}, v{AL}")
        E("s_nop 1")
        E(f"v_max_f32 v{T}, v{T}, v{AL}")
        E(f"v_sub_f32 v{AL}, v{M}, v{T}")
        E(f"v_exp_f32 v{AL}, v{AL}")
        E(f"v_mov_b32 v{M}, v{T}")
        for i in range(16):
            E(f"v_sub_f32 v{S0+i}, v{S0+i}, v{T}")
        for i in range(16):
            E(f"v_exp_f32 v{S0+i}, v{S0+i}")
        for i in range(9):
            E(f"v_mul_f32 v{Oc+i}, v{AL}, v{Oc+i}")
        E("s_nop 1")
        E(f"v_smfmac_f32_32x32x32_bf16 {vr(Oc,16)}, {vr(V0,4)}, {vr(S0,8)}, v{IDX}")
        E(f"v_smfmac_f32_32x32x32_bf16 {vr(Oc,16)}, {vr(V0+4,4)}, {vr(S0+8,8)}, v{IDX}")
    E(f"s_add_u32 s{S_T3}, s{S_T3}, 1")
    E(f"s_cmp_lt_u32 s{S_T3}, 4")
    E("s_cbranch_scc1 A_stile")
    chunk_turn()
    E(f"s_add_u32 s{S_CNT}, s{S_CNT}, 1")
    E(f"s_cmp_lt_u32 s{S_CNT}, 8")
    E("s_cbranch_scc1 A_sloop")
    E(f"s_lshl_b32 s{S_T1}, s{S_WAVE}, 10")
    E(f"s_add_u32 s{S_T1}, s{S_T1}, 65536")
    E(f"s_xor_b32 s{S_T2}, s{S_T1}, 4096")
    E(f"v_add_u32 v10, s{S_T1}, v{VL}")
    E(f"v_add_u32 v11, s{S_T2}, v{VL}")
    E(f"ds_write_b64 v10, v[{MX}:{MY}]")
    E("s_waitcnt lgkmcnt(0)")
    E("s_barrier")
    E(f"ds_read_b64 v[{T}:{AL}], v11")
    E("s_waitcnt lgkmcnt(0)")
    for (M, P, Oc) in ((MX, T, OA), (MY, AL, OB)):
        E(f"v_max_f32 v{P}, v{P}, v{M}")
        E(f"v_sub_f32 v{P}, v{M}, v{P}")
        E(f"v_exp_f32 v{P}, v{P}")
        E("s_nop 0")
        for i in range(9):
            E(f"v_mul_f32 v{Oc+i}, v{P}, v{Oc+i}")
    E("s_branch A_fin")


F_XS, F_WS0, F_WSZ = 16384, 32768, 16384
WROW = 3584


def f_dma_x(u, vm):
    E(f"s_add_u32 m0, s{S_W1K}, {(u % 2) * F_XS}")
    E(f"s_add_u32 s{S_T0}, s{S_XB}, s{S_XK}")
    E(f"buffer_load_dwordx4 v1, {sr(X)}, s{S_T0} offen lds")
    E(f"s_add_u32 m0, s{S_W1K}, {(u % 2) * F_XS + 8192}")
    E(f"s_add_u32 s{S_T0}, s{S_T0}, 0x10000")
    E(f"buffer_load_dwordx4 v1, {sr(X)}, s{S_T0} offen lds")
    E(f"s_add_u32 s{S_XK}, s{S_XK}, 128")
    E(f"s_and_b32 s{S_XK}, s{S_XK}, 1023")
    vm.issue(("x", u), 2)


def f_dma_w(s, vm):
    base = F_WS0 + (s % 3) * F_WSZ
    E(f"s_add_u32 m0, s{S_W1K}, {base}")
    E("s_nop 0")
    E(f"buffer_load_dwordx4 v2, {sr(W1)}, s{S_WK} offen lds")
    E(f"s_add_u32 m0, s{S_W1K}, {base + 8192}")
    E("s_nop 0")
    E(f"buffer_load_dwordx4 v3, {sr(WU)}, s{S_WK} offen lds")
    E(f"s_add_u32 s{S_WK}, s{S_WK}, {32 * WROW}")
    E(f"s_cmp_eq_u32 s{S_WK}, {512 * WROW}")
    E(f"s_cselect_b32 s{S_WK}, 0, s{S_WK}")
    vm.issue(("w", s), 2)


def f_prologue():
    E(f"s_cmp_ge_u32 s2, {256 if O.no_f else 512}")
    E("s_cbranch_scc1 L_end")
    if O.diag_span:
        E("s_memrealtime s[98:99]")
        E("s_waitcnt lgkmcnt(0)")
    stamp(0)
    E(f"s_load_dwordx2 s[{X}:{X+1}], s[0:1], 0")
    E(f"s_load_dwordx2 s[{W1}:{W1+1}], s[0:1], 32")
    E(f"s_load_dwordx2 s[{WU}:{WU+1}], s[0:1], 40")
    E(f"s_load_dwordx2 s[{WS}:{WS+1}], s[0:1], 80")
    E(f"s_load_dwordx2 s[{DBG}:{DBG+1}], s[0:1], 72")
    E(f"s_load_dwordx2 s[{WD}:{WD+1}], s[0:1], 48")
    E(f"s_load_dwordx2 s[{WO}:{WO+1}], s[0:1], 16")
    E(f"s_load_dwordx2 s[{OUT}:{OUT+1}], s[0:1], 64")
    E(f"s_load_dwordx2 s[{GW}:{GW+1}], s[0:1], 56")
    E("v_lshrrev_b32 v8, 6, v0")
    E(f"s_bfe_u32 s{S_C}, s2, 0x50003")
    E(f"v_readfirstlane_b32 s{S_WAVE}, v8")
    E(f"s_cmp_ge_u32 s{S_C}, 28")
    E("s_cbranch_scc0 F_main")
    E("s_getpc_b64 s[4:5]")
    E.label("F_pc")
    E(f"s_add_u32 s4, s4, CODE_START - F_pc")
    E("s_addc_u32 s5, s5, -1")
    E("s_mov_b32 s6, CODE_END - CODE_START")
    E("s_mov_b32 s7, 0x20000")
    E("v_lshlrev_b32 v9, 7, v0")
    E("buffer_load_dword v120, v9, s[4:7], 0 offen")
    E("s_branch F_main")


def f_main():
    E.label("F_main")
    srd(X, 0x200000); srd(W1, 512 * WROW); srd(WU, 512 * WROW); srd(WS, WS_SIZE); srd(DBG, 256)
    srd(WD, 1792 * 1024); srd(WO, 512 * 1024); srd(OUT, 0x200000); srd(GW, 1024)
    E(f"s_lshl_b32 s{S_W1K}, s{S_WAVE}, 10")
    E(f"s_setprio {O.prio_f if O.prio_up < 0 else O.prio_up}")
    E("v_lshrrev_b32 v9, 3, v0")
    E("v_lshrrev_b32 v10, 4, v0")
    E("v_xor_b32 v11, v10, v0")
    E("v_and_b32 v11, 7, v11")
    E("v_lshlrev_b32 v11, 4, v11")
    E("v_lshl_add_u32 v1, v9, 10, v11")
    E("s_waitcnt lgkmcnt(0)")
    if O.only_down:
        stamp(1); stamp(2); stamp(3); stamp(10); stamp(11); stamp(12)
        E("s_branch F_pub")
    if O.warm_steps:
        E(f"s_cmp_lt_u32 s{S_WAVE}, 4")
        E(f"s_cselect_b32 s4, s{W1}, s{WU}")
        E(f"s_cselect_b32 s5, s{W1+1}, s{WU+1}")
        E(f"s_mul_i32 s{S_T0}, s{S_C}, {WROW}")
        E(f"s_bfe_u32 s{S_T1}, s2, 0x10002")
        E(f"s_mul_i32 s{S_T1}, s{S_T1}, 1792")
        E(f"s_add_u32 s{S_T0}, s{S_T0}, s{S_T1}")
        E(f"s_and_b32 s{S_T1}, s{S_WAVE}, 3")
        E(f"s_mul_i32 s{S_T1}, s{S_T1}, 448")
        E(f"s_add_u32 s{S_T0}, s{S_T0}, s{S_T1}")
        E(f"s_add_u32 s4, s4, s{S_T0}")
        E("s_addc_u32 s5, s5, 0")
        E(f"s_mov_b32 s{S_CNT}, {O.warm_steps}")
        E.label("F_warm")
        for i in range(7):
            E(f"s_load_dword s6, s[4:5], {64*i}")
        E(f"s_add_u32 s4, s4, {32 * WROW}")
        E("s_addc_u32 s5, s5, 0")
        E(f"s_sub_u32 s{S_CNT}, s{S_CNT}, 1")
        E(f"s_cmp_lg_u32 s{S_CNT}, 0")
        E("s_cbranch_scc1 F_warm")
        E("s_waitcnt lgkmcnt(0)")
    if O.f_touch:
        E(f"s_lshl_b32 s{S_T0}, s{S_C}, 2")
        E(f"s_and_b32 s{S_T1}, s{S_WAVE}, 3")
        E(f"s_add_u32 s{S_T0}, s{S_T0}, s{S_T1}")
        E(f"s_mul_i32 s{S_T0}, s{S_T0}, {2 * 3584}")
        E(f"s_bfe_u32 s{S_T1}, s2, 0x10002")
        E(f"s_mul_i32 s{S_T1}, s{S_T1}, 1792")
        E(f"s_add_u32 s{S_T0}, s{S_T0}, s{S_T1}")
        E("v_bfe_u32 v12, v0, 4, 1")
        E("v_mul_u32_u24 v12, 3584, v12")
        E("v_and_b32 v13, 15, v0")
        E("v_lshl_add_u32 v12, v13, 7, v12")
        E(f"v_add_u32 v13, s{S_T0}, v12")
        E(f"s_cmp_lt_u32 s{S_WAVE}, 4")
        E(f"s_cselect_b32 s4, s{W1}, s{WU}")
        E(f"s_cselect_b32 s5, s{W1+1}, s{WU+1}")
        E(f"s_mov_b32 s6, {512 * WROW}")
        E("s_mov_b32 s7, 0x20000")
        if O.f_touch == 1:
            E("s_mov_b64 exec, 1")
            E(f"buffer_load_dword v15, v13, s[4:7], 0 offen")
            E("s_waitcnt vmcnt(0)")
            E("s_mov_b64 exec, 0x3fff3fff")
            E(f"buffer_load_dword v15, v13, s[4:7], 0 offen{' nt' if O.nt0 & 2 else ''}")
            E("s_mov_b64 exec, -1")
    E(f"s_cmp_ge_u32 s{S_C}, 28")
    E("s_cbranch_scc1 F_gate")
    E(f"s_and_b32 s{S_T0}, s{S_C}, 3")
    E(f"s_lshr_b32 s{S_T1}, s{S_C}, 2")
    E(f"s_and_b32 s{S_A}, s2, 3")
    E(f"s_lshl_b32 s{S_A}, s{S_A}, 2")
    E(f"s_add_u32 s{S_A}, s{S_A}, s{S_T0}")
    E(f"s_bfe_u32 s{S_B}, s2, 0x10002")
    E(f"s_mul_i32 s{S_B}, s{S_B}, 7")
    E(f"s_add_u32 s{S_B}, s{S_B}, s{S_T1}")
    E(f"s_lshl_b32 s{S_T0}, s{S_T0}, 1")
    E(f"s_add_u32 s{S_T0}, s{S_T0}, s{S_T1}")
    E(f"s_and_b32 s{S_T0}, s{S_T0}, {7 if O.f_rot else 0}")
    E(f"s_lshl_b32 s{S_XK}, s{S_T0}, 7")
    E(f"s_mul_i32 s{S_WK}, s{S_T0}, {64 * WROW}")
    E(f"s_lshl_b32 s{S_XB}, s{S_A}, 17")
    E(f"v_mul_u32_u24 v9, {WROW}, v10")
    E("v_bfe_u32 v11, v0, 1, 3")
    E("v_and_b32 v10, 3, v10")
    E("v_xor_b32 v11, v11, v10")
    E("v_lshl_add_u32 v9, v11, 5, v9")
    E("v_and_b32 v11, 1, v0")
    E("v_lshl_add_u32 v9, v11, 4, v9")
    E(f"s_lshl_b32 s{S_T0}, s{S_B}, 8")
    E(f"v_add_u32 v2, s{S_T0}, v9")
    E("v_xor_b32 v3, 128, v2")
    vm = VM()

    def fill():
        f_dma_x(0, vm); f_dma_w(0, vm); f_dma_w(1, vm); f_dma_x(1, vm); f_dma_w(2, vm)

    if O.f_fill_early:
        fill()
    E("v_and_b32 v8, 31, v0")
    E("v_lshrrev_b32 v9, 1, v8")
    E("v_and_b32 v9, 7, v9")
    E("v_bfe_u32 v10, v0, 5, 1")
    E("v_xor_b32 v9, v9, v10")
    E("v_lshlrev_b32 v9, 4, v9")
    E("v_lshl_add_u32 v9, v8, 7, v9")
    E("v_bfe_u32 v8, v0, 6, 1")
    E("v_lshl_add_u32 v4, v8, 13, v9")
    for ks in (1, 2, 3):
        E(f"v_xor_b32 v{4+ks}, {32*ks}, v4")
    E("v_bfe_u32 v8, v0, 2, 2")
    E("v_lshl_add_u32 v9, v10, 3, v8")
    E("v_lshlrev_b32 v9, 8, v9")
    E("v_bfe_u32 v10, v0, 4, 1")
    E("v_lshl_add_u32 v9, v10, 13, v9")
    E("v_lshlrev_b32 v10, 2, v10")
    E("v_xor_b32 v8, v8, v10")
    E("v_lshrrev_b32 v10, 7, v0")
    E("v_lshlrev_b32 v10, 1, v10")
    E("v_xor_b32 v8, v8, v10")
    E("v_lshl_add_u32 v9, v8, 5, v9")
    E("v_and_b32 v8, 3, v0")
    E("v_lshl_add_u32 v9, v8, 3, v9")
    E(f"v_add_u32 v8, {F_WS0}, v9")
    E("v_xor_b32 v9, 32, v8")
    E(f"s_cmp_lg_u32 s{S_WAVE}, 0")
    E("s_cbranch_scc1 F_go")
    wait_start("F_tag", 1 if O.hint1 >= 0 else 0)
    E.label("F_go")
    if not O.f_fill_early:
        E("s_barrier")
        if O.f_touch == 3:
            f_dma_x(0, vm); f_dma_w(0, vm)
        if O.f_touch >= 2:
            E("s_mov_b64 exec, 0x3fff3fff")
            E(f"buffer_load_dword v15, v13, s[4:7], 0 offen{' nt' if O.nt0 & 2 else ''}")
            E("s_mov_b64 exec, -1")
            vm.issue("t")
        if O.f_touch == 3:
            f_dma_w(1, vm); f_dma_x(1, vm); f_dma_w(2, vm)
        else:
            fill()
    stamp(1)

    def reads(s, kk):
        b = 16 + 16 * kk
        u = s // 2
        L = []
        for i in (0, 1):
            L.append(f"ds_read_b128 {vr(b+4*i,4)}, v{4 + 2*(s&1) + kk} offset:{(u % 2) * F_XS + i * 4096}")
            for q in (0, 1):
                L.append(f"ds_read_b64_tr_b16 {vr(b+8+4*i+2*q,2)}, v{8+i} offset:{(s % 3) * F_WSZ + kk * 4096 + q * 1024}")
        return L

    def mfmas(s, kk):
        b = 16 + 16 * kk
        L = []
        for rbk, bb in ((0, 0), (0, 1), (1, 1), (1, 0)):
            acc = vr(64 + 16 * (2 * rbk + bb), 16)
            c = "0" if (s == 0 and kk == 0) else acc
            L.append(f"v_mfma_f32_32x32x16_bf16 {acc}, {vr(b+8+4*bb,4)}, {vr(b+4*rbk,4)}, {c}")
        return L

    E(f"s_waitcnt vmcnt({vm.need(('x',0),('w',0))})")
    E("s_barrier")
    stamp(2)
    for x in reads(0, 0):
        E(x)
    def paced(s, kk):
        M, R = mfmas(s, kk), reads(s, kk)
        [E(x) for x in R[:3]]; E("s_waitcnt lgkmcnt(0)"); E(M[0])
        [E(x) for x in R[4:]]; E("s_waitcnt lgkmcnt(0)"); E(M[1])
        E(R[3]); E("s_waitcnt lgkmcnt(0)"); E(M[2]); E(M[3])

    for s in range(16):
        if s > O.pace_from:
            paced(s, 0)
            paced(s, 1)
            if s < 15:
                E(f"s_waitcnt vmcnt({vm.need(('x',(s+1)//2),('w',s+1))})")
                E("s_barrier")
                if s + 3 <= 15:
                    f_dma_w(s + 3, vm)
                if s % 2 == 1 and (s + 1) // 2 + 1 <= 7:
                    f_dma_x((s + 1) // 2 + 1, vm)
                if s in (3, 7, 11):
                    stamp(10 + s // 4)
            continue
        if O.boost_mask and (s == 0 or ((O.boost_mask >> s) ^ (O.boost_mask >> (s - 1))) & 1):
            E(f"s_setprio {O.prio_boost if (O.boost_mask >> s) & 1 else O.prio_f}")
        M, R = mfmas(s, 0), reads(s, 1)
        E("s_waitcnt lgkmcnt(0)")
        E(M[0]); [E(x) for x in R[:3]]; E(M[1]); [E(x) for x in R[3:]]; E(M[2]); E(M[3])
        M = mfmas(s, 1)
        if s == 2 and O.hint1 >= 0 and O.hold:
            E("s_waitcnt lgkmcnt(0)")
            [E(x) for x in M]
            E(f"s_cmp_lg_u32 s{S_WAVE}, 0")
            E("s_cbranch_scc1 F_go2")
            wait_start("F_tag2", 0, False)
            E.label("F_go2")
            E("s_barrier")
            f_dma_w(3, vm); f_dma_w(4, vm); f_dma_x(2, vm); f_dma_w(5, vm)
            E(f"s_waitcnt vmcnt({vm.need(('w', 3))})")
            E("s_barrier")
            [E(x) for x in reads(3, 0)]
            continue
        if s < 15:
            E(f"s_waitcnt vmcnt({vm.need(('x',(s+1)//2),('w',s+1))}) lgkmcnt(0)")
            E("s_barrier")
            R = reads(s + 1, 0) if s + 1 <= O.pace_from else []
            E(M[0]); [E(x) for x in R[:3]]; E(M[1]); [E(x) for x in R[3:]]; E(M[2])
            hold = O.hint1 >= 0 and O.hold and s < 2
            if s + 3 <= 15 and not hold:
                f_dma_w(s + 3, vm)
            E(M[3])
            if s % 2 == 1 and (s + 1) // 2 + 1 <= 7 and not hold:
                f_dma_x((s + 1) // 2 + 1, vm)
            if O.f_wd and O.wd_step <= s < O.wd_step + O.wd_parts:
                E(f"s_lshl_b32 s{S_T0}, s{S_C}, 16")
                E("v_lshlrev_b32 v11, 7, v0")
                if O.wd_parts > 1:
                    n = 64 // O.wd_parts
                    m = ((1 << n) - 1) << (n * (s - O.wd_step))
                    E(f"s_mov_b32 exec_lo, {m & 0xffffffff:#x}")
                    E(f"s_mov_b32 exec_hi, {m >> 32:#x}")
                E(f"buffer_load_dword v15, v11, {sr(WD)}, s{S_T0} offen{' nt' if O.nt0 & 2 else ''}")
                if O.wd_parts > 1:
                    E("s_mov_b64 exec, -1")
                vm.issue("wd")
            if s == O.f_touch2:
                E(f"s_mov_b32 s{S_T0}, {256 * 3584}")
                E("s_mov_b64 exec, 0x3fff3fff")
                E(f"buffer_load_dword v15, v13, s[4:7], s{S_T0} offen")
                E("s_mov_b64 exec, -1")
                vm.issue("t2")
            if s in (3, 7, 11) and not O.dn_stamps:
                stamp(10 + s // 4)
        else:
            E("s_waitcnt lgkmcnt(0)")
            [E(x) for x in M]
    stamp(3)
    if O.a_exit:
        flush_stamps(range(13), "F_st0")
        E("s_endpgm")
    E(f"s_setprio {O.prio_silu}")
    if O.wo_early:
        voff_w()
        E("s_barrier")
    if O.wo_early == 1:
        wo_stage()
    E(f"s_and_b32 s{S_T0}, s{S_WAVE}, 1")
    E(f"s_lshl_b32 s{S_T0}, s{S_T0}, 1")
    E(f"s_lshl_b32 s{S_T1}, s{S_A}, 2")
    E(f"s_add_u32 s{S_T0}, s{S_T0}, s{S_T1}")
    E(f"s_mul_i32 s{S_T0}, s{S_T0}, 144")
    E(f"s_lshl_b32 s{S_T1}, s{S_B}, 3")
    E(f"s_add_u32 s{S_T0}, s{S_T0}, s{S_T1}")
    E(f"s_and_b32 s{S_T1}, s{S_WAVE}, 6")
    E(f"s_add_u32 s{S_T0}, s{S_T0}, s{S_T1}")
    E(f"s_lshl_b32 s{S_T0}, s{S_T0}, 10")
    E(f"s_add_u32 s{S_T0}, s{S_T0}, {WS_HO:#x}")
    E(f"s_add_u32 s{S_T1}, s{S_T0}, {144 * 1024}")
    E(f"s_mov_b32 s{S_T2}, {NLOG2E:#x}")
    E(f"s_mov_b32 s{S_T3}, {NLOG2E:#x}")
    E("v_and_b32 v10, 63, v0")
    E("v_lshlrev_b32 v10, 4, v10")
    E("v_mov_b32 v12, 1.0")
    E("v_mov_b32 v13, 1.0")
    E("s_nop 4")
    for tl in range(4):
        a = 64 + 16 * tl
        t = 16 + 8 * (tl & 1)
        pk = 32 + 4 * tl
        for i in range(4):
            E(f"v_pk_mul_f32 {vr(t+2*i,2)}, {vr(a+2*i,2)}, s[{S_T2}:{S_T3}]")
        for i in range(8):
            E(f"v_exp_f32 v{t+i}, v{t+i}")
        for i in range(4):
            E(f"v_pk_mul_f32 {vr(a+2*i,2)}, {vr(a+2*i,2)}, {vr(a+8+2*i,2)}")
        for i in range(4):
            E(f"v_pk_add_f32 {vr(t+2*i,2)}, {vr(t+2*i,2)}, v[12:13]")
        for i in range(8):
            E(f"v_rcp_f32 v{t+i}, v{t+i}")
        E("s_nop 0")
        for i in range(4):
            E(f"v_pk_mul_f32 {vr(a+2*i,2)}, {vr(a+2*i,2)}, {vr(t+2*i,2)}")
        for i in range(4):
            E(f"v_cvt_pk_bf16_f32 v{pk+i}, v{a+2*i}, v{a+2*i+1}")
        E(f"buffer_store_dwordx4 {vr(pk,4)}, v10, {sr(WS)}, s{S_T0 + (tl >> 1)} offen offset:{(tl & 1) * 1024} sc0 sc1")
    if O.wo_early == 2:
        wo_stage()
    E(f"s_lshl_b32 s{S_T0}, s{S_A}, 10")
    E(f"s_lshl_b32 s{S_T1}, s{S_B}, 6")
    E(f"s_add_u32 s{S_T0}, s{S_T0}, s{S_T1}")
    E.label("F_pub")
    E(f"s_add_u32 s{S_T0}, s{S_T0}, {WS_FH:#x}")
    E(f"s_waitcnt vmcnt({8 if O.wo_early == 2 else 0})")
    E("s_barrier")
    stamp(4)
    E(f"s_and_b32 s{S_A}, s2, 7")
    E(f"s_lshl_b32 s{S_A}, s{S_A}, 2")
    E(f"s_and_b32 s{S_T1}, s{S_C}, 3")
    E(f"s_add_u32 s{S_A}, s{S_A}, s{S_T1}")
    E(f"s_lshr_b32 s{S_B}, s{S_C}, 2")
    E(f"s_cmp_lg_u32 s{S_WAVE}, 0")
    if O.only_down:
        E("s_branch F_wait2")
    E("s_cbranch_scc1 F_wait2")
    put_flag(S_T0)
    E.label("F_wait2")
    E("v_and_b32 v8, 63, v0")
    E("v_lshlrev_b32 v12, 4, v8")
    E(f"s_and_b32 s{S_T0}, s{S_WAVE}, 1")
    E(f"s_mul_i32 s{S_T1}, s{S_T0}, 144")
    E(f"s_lshr_b32 s{S_T2}, s{S_WAVE}, 1")
    E(f"s_add_u32 s{S_T1}, s{S_T1}, s{S_T2}")
    E(f"s_lshl_b32 s{S_T1}, s{S_T1}, 10")
    E(f"v_add_u32 v1, s{S_T1}, v12")
    E(f"s_lshl_b32 s{S_T1}, s{S_T0}, 2")
    E(f"s_add_u32 s{S_T1}, s{S_T1}, s{S_T2}")
    E(f"s_lshl_b32 s{S_D}, s{S_T1}, 10")
    E("v_bfe_u32 v10, v0, 4, 1")
    if not O.wo_early:
        voff_w()
    E(f"s_lshl_b32 s{S_T0}, s{S_T0}, 12")
    E(f"s_lshr_b32 s{S_T1}, s{S_WAVE}, 2")
    E(f"s_lshl_b32 s{S_T1}, s{S_T1}, 11")
    E(f"s_add_u32 s{S_T0}, s{S_T0}, s{S_T1}")
    E(f"v_add_u32 v4, s{S_T0}, v12")
    E("v_bfe_u32 v8, v0, 2, 2")
    E("v_bfe_u32 v9, v0, 5, 1")
    E("v_lshl_add_u32 v9, v9, 2, v8")
    E("v_lshrrev_b32 v11, 8, v0")
    E("v_lshl_add_u32 v9, v11, 5, v9")
    E("v_lshlrev_b32 v9, 7, v9")
    E("v_lshrrev_b32 v8, 1, v8")
    E("v_bfe_u32 v11, v0, 7, 1")
    E("v_xor_b32 v8, v8, v11")
    E("v_lshl_add_u32 v9, v8, 6, v9")
    E("v_lshl_add_u32 v9, v10, 5, v9")
    E("v_and_b32 v8, 3, v0")
    E("v_lshl_add_u32 v9, v8, 3, v9")
    E("v_add_u32 v5, 8192, v9")
    _m_fix_base()
    E(f"s_mul_i32 s{S_T0}, s{S_B}, 7")
    E(f"s_lshr_b32 s{S_T0}, s{S_T0}, 1")
    E(f"s_and_b32 s{S_T1}, s{S_C}, 3")
    E(f"s_mul_i32 s{S_T1}, s{S_T1}, 7")
    E(f"s_add_u32 s{S_T0}, s{S_T0}, s{S_T1}")
    E(f"s_cmp_ge_u32 s{S_T0}, 28")
    E(f"s_cselect_b32 s{S_T1}, 28, 0")
    E(f"s_sub_u32 s{S_XK}, s{S_T0}, s{S_T1}")
    if not O.d_rot:
        E(f"s_mov_b32 s{S_XK}, 0")
    if O.h_touch:
        E(f"s_lshl_b32 s{S_T0}, s{S_B}, 3")
        E(f"s_add_u32 s{S_T0}, s{S_T0}, s{S_WAVE}")
        E(f"s_mul_i32 s{S_T0}, s{S_T0}, 1792")
        E(f"s_add_u32 s{S_T2}, s{S_T0}, s{S_XB}")
        E("v_and_b32 v8, 15, v0")
        E("v_lshlrev_b32 v8, 7, v8")
        E("v_bfe_u32 v9, v0, 4, 1")
        E(f"v_mul_u32_u24 v9, {144 * 1024}, v9")
        E("v_add_u32 v8, v8, v9")
    if not O.wo_early:
        wo_stage()
    E(f"s_lshr_b32 s{S_T1}, s{S_WAVE}, 2")
    E(f"s_mul_i32 s{S_T0}, s{S_T1}, 28672")
    E(f"s_sub_u32 s{S_T0}, s{S_T0}, 8192")
    E(f"v_add_u32 v9, s{S_T0}, v5")
    if O.wo_early != 1:
        E("s_waitcnt vmcnt(0)")
        E("s_barrier")
    wf = lambda k: (48 + 4 * k) if k < 4 else (80 + 4 * (k - 4))
    for k in range(16):
        for q in (0, 1):
            E(f"ds_read_b64_tr_b16 {vr(wf(k) + 2*q, 2)}, v9 offset:{k * 2048 + q * 1024}")
    if O.w_first:
        assert not O.d_rot
        E("s_waitcnt lgkmcnt(0)")
        E("s_barrier")
        for st in range(O.dn_ns):
            E(f"s_add_u32 m0, s{S_W1K}, {st * 16384 + 8192}")
            E(f"s_mov_b32 s{S_T0}, {st * 65536}")
            E(f"buffer_load_dwordx4 v2, {sr(WD)}, s{S_T0} offen lds")
    E(f"s_cmp_lg_u32 s{S_WAVE}, 0")
    if O.only_down:
        E("s_branch F_wait2b")
    E("s_cbranch_scc1 F_wait2b")
    E("v_and_b32 v10, 15, v0")
    E("v_lshlrev_b32 v10, 6, v10")
    E(f"s_lshr_b32 s{S_T0}, s{S_A}, 1")
    E(f"s_lshl_b32 s{S_T0}, s{S_T0}, 10")
    E(f"s_add_u32 s{S_T0}, s{S_T0}, {WS_FH:#x}")
    poll("F_pollh", 10, f"s{S_T0}")
    E.label("F_wait2b")
    E("s_waitcnt lgkmcnt(0)")
    E("s_barrier")
    stamp(5)

    NS = O.dn_ns
    vd = VM()

    def dma(st, skip_w=False):
        slot = st % NS
        E(f"s_add_u32 m0, s{S_D}, {slot * 16384}")
        if O.d_rot:
            E(f"s_lshl_b32 s{S_T0}, s{S_XK}, 12")
            E(f"s_add_u32 s{S_T0}, s{S_T0}, s{S_XB}")
        else:
            E(f"s_add_u32 s{S_T0}, s{S_XB}, {st * 4096}")
        E(f"buffer_load_dwordx4 v1, {sr(WS)}, s{S_T0} offen sc1 lds")
        if skip_w:
            vd.issue(st)
            return
        E(f"s_add_u32 m0, s{S_W1K}, {slot * 16384 + 8192}")
        if O.d_rot:
            E(f"s_lshl_b32 s{S_T0}, s{S_XK}, 16")
        else:
            E(f"s_mov_b32 s{S_T0}, {st * 65536}")
        E(f"buffer_load_dwordx4 v2, {sr(WD)}, s{S_T0} offen lds")
        if O.d_rot:
            E(f"s_add_u32 s{S_XK}, s{S_XK}, 1")
            E(f"s_cmp_eq_u32 s{S_XK}, 28")
            E(f"s_cselect_b32 s{S_XK}, 0, s{S_XK}")
        vd.issue(st, 2)

    def greads(st):
        slot = st % NS
        b = 16 + 16 * (st & 1)
        vb, vw, base = (4, 5, slot * 16384) if slot < 4 else (3, 13, 0)
        L = []
        for kk in (0, 1):
            L.append(f"ds_read_b128 {vr(b+4*kk,4)}, v{vb} offset:{base + kk * 1024}")
            for q in (0, 1):
                L.append(f"ds_read_b64_tr_b16 {vr(b+8+4*kk+2*q,2)}, v{vw} offset:{base + kk * 2048 + q * 1024}")
        return L

    for t in range(O.ht_pos):
        dma(t, O.w_first)
    if O.h_touch:
        E("s_mov_b64 exec, 0x3fff3fff")
        E(f"buffer_load_dword v15, v8, {sr(WS)}, s{S_T2} offen sc1")
        E("s_mov_b64 exec, -1")
        vd.issue("h")
    E("v_and_b32 v8, 31, v0")
    E("v_bfe_u32 v9, v0, 6, 1")
    E("v_lshl_add_u32 v8, v9, 5, v8")
    E("v_lshlrev_b32 v9, 2, v8")
    E(f"s_lshl_b32 s{S_T0}, s{S_A}, 8")
    E(f"s_add_u32 s{S_T0}, s{S_T0}, {WS_G:#x}")
    E(f"buffer_load_dword v14, v9, {sr(WS)}, s{S_T0} offen sc1")
    vd.issue("g")
    for t in range(O.ht_pos, NS):
        dma(t, O.w_first)
    issued = NS
    E("v_add_u32 v3, 0x10000, v4")
    E("v_add_u32 v13, 0x10000, v5")
    E(f"s_setprio {O.prio_f if O.prio_dn < 0 else O.prio_dn}")
    bars = [t for t in range(27) if t >= O.dn_grp_until or t % O.dn_grp == O.dn_grp - 1]
    E(f"s_waitcnt vmcnt({vd.need(*range(0, bars[0] + 1))})")
    E("s_barrier")
    [E(x) for x in greads(0)]
    for t in range(28):
        b = 16 + 16 * (t & 1)
        M = [f"v_mfma_f32_32x32x16_bf16 v[64:79], {vr(b+8+4*kk,4)}, {vr(b+4*kk,4)}, {'0' if t + kk == 0 else 'v[64:79]'}" for kk in (0, 1)]
        if t == O.dn_low:
            E(f"s_setprio {O.prio_f_late}")
        if O.dn_stamps and t in (4, 12, 20):
            stamp(10 + t // 8)
        if t in bars:
            nxt = min([x for x in bars if x > t] + [27])
            E(f"s_waitcnt vmcnt({vd.need(*range(t + 1, nxt + 1))}) lgkmcnt(0)")
            E("s_barrier")
        else:
            E("s_waitcnt lgkmcnt(0)")
        R = greads(t + 1) if t < 27 else []
        E(M[0]); [E(x) for x in R[:3]]; E(M[1]); [E(x) for x in R[3:]]
        if t in bars:
            while issued <= min(27, t + NS):
                dma(issued)
                issued += 1
    stamp(6)
    E("s_setprio 3")
    if O.only_down:
        flush_stamps(range(13), "F_st1")
        E("s_endpgm")
    E("v_and_b32 v8, 31, v0")
    E("v_bfe_u32 v9, v0, 6, 1")
    E("v_lshl_add_u32 v8, v9, 5, v8")
    E(f"s_lshr_b32 s{S_T1}, s{S_WAVE}, 2")
    E(f"s_bfe_u32 s{S_T2}, s{S_WAVE}, 0x10001")
    E(f"s_lshl_b32 s{S_T2}, s{S_T2}, 4")
    E(f"s_add_u32 s{S_T2}, s{S_T2}, s{S_T1}")
    E(f"s_and_b32 s{S_T3}, s{S_WAVE}, 1")
    E(f"s_lshl_b32 s{S_D}, s{S_T3}, 5")
    E(f"s_add_u32 s{S_D}, s{S_D}, s{S_T2}")
    E(f"s_lshl_b32 s{S_D}, s{S_D}, 10")
    E(f"s_mul_i32 s{S_T0}, s{S_T3}, 144")
    E(f"s_add_u32 s{S_T0}, s{S_T0}, s{S_T2}")
    E(f"s_add_u32 s{S_T0}, s{S_T0}, 112")
    E(f"s_lshl_b32 s{S_T0}, s{S_T0}, 10")
    E(f"s_add_u32 s{S_XB}, s{S_XB}, s{S_T0}")
    E(f"s_lshl_b32 s{S_T3}, s{S_T3}, 15")
    E(f"s_lshl_b32 s{S_T1}, s{S_T1}, 14")
    E(f"s_add_u32 s{S_T3}, s{S_T3}, s{S_T1}")
    E(f"v_add_u32 v4, s{S_T3}, v12")
    out_addr()
    E("v_sub_f32 v15, 1.0, v14")
    for i in range(16):
        E(f"v_mul_f32 v{64+i}, v15, v{64+i}")
    E(f"s_cmp_lg_u32 s{S_WAVE}, 0")
    E("s_cbranch_scc1 F_wait3")
    E("v_lshlrev_b32 v10, 6, v0")
    E(f"s_lshl_b32 s{S_T0}, s{S_A}, 12")
    E(f"s_add_u32 s{S_T0}, s{S_T0}, {WS_FO:#x}")
    poll("F_pollo", 10, f"s{S_T0}", O.piped & 2)
    E("s_waitcnt vmcnt(0)")
    E.label("F_wait3")
    if O.early_o:
        E(f"s_mov_b32 s{S_CNT}, 0")
        E("v_mov_b32 v10, 0")
        E.label("F_again")
        E("v_mov_b32 v9, 0")
    E("s_waitcnt lgkmcnt(0)")
    E("s_barrier")
    stamp(7)
    for i in range(8):
        E(f"s_add_u32 m0, s{S_D}, {i * 2048}")
        E(f"s_add_u32 s{S_T0}, s{S_XB}, {i * 2048}")
        E(f"buffer_load_dwordx4 v12, {sr(WS)}, s{S_T0} offen sc1 lds")
    NQ = O.o_parts
    per = 16 // NQ
    for part in range(NQ):
        E(f"s_waitcnt vmcnt({8 - (part + 1) * 8 // NQ})")
        E("s_barrier")
        for k in range(min(4, per)):
            E(f"ds_read_b128 {vr(32 + 4*k, 4)}, v4 offset:{(per * part + k) * 1024}")
        for k in range(per):
            E(f"s_waitcnt lgkmcnt({min(3, per - 1 - k)})")
            E(f"v_mfma_f32_32x32x16_bf16 v[16:31], {vr(wf(per*part + k), 4)}, {vr(32 + 4*(k % 4), 4)}, {'0' if part + k == 0 else 'v[16:31]'}")
            if O.early_o:
                b = 32 + 4 * (k % 4)
                E(f"v_max3_u32 v9, v{b}, v{b+1}, v9")
                E(f"v_max3_u32 v9, v{b+2}, v{b+3}, v9")
            if k + 4 < per:
                E(f"ds_read_b128 {vr(32 + 4*(k % 4), 4)}, v4 offset:{(per * part + 4 + k) * 1024}")
    if O.twice:
        E(f"s_mov_b32 s{S_CNT}, 0")
        E.label("F_tw")
    stamp(8)
    if O.early_o:
        if O.x_fail:
            E("v_mov_b32 v9, -1")
        E(f"v_cmp_eq_u32 vcc, -1, v9")
        E("s_and_saveexec_b64 s[4:5], vcc")
        E("s_cbranch_execz F_clean")
        E("ds_write_b32 v10, v9")
        E.label("F_clean")
        E("s_mov_b64 exec, s[4:5]")
    E(f"s_cmp_ge_u32 s{S_WAVE}, 4")
    E("s_cbranch_scc1 F_hi")
    for hi in (0, 1):
        keep, send = (0, 8) if not hi else (8, 0)
        if hi:
            E.label("F_hi")
        E(f"s_nop {3 if O.early_o else 9}")
        for i in range(8):
            E(f"v_fma_f32 v{32+send+i}, v14, v{16+send+i}, v{64+send+i}")
        E(f"ds_write_b128 v6, {vr(32+send,4)}")
        E(f"ds_write_b128 v6, {vr(36+send,4)} offset:1024")
        for i in range(8):
            E(f"v_fma_f32 v{32+keep+i}, v14, v{16+keep+i}, v{64+keep+i}")
        E("s_waitcnt lgkmcnt(0)")
        E("s_barrier")
        if O.early_o:
            E("ds_read_b32 v11, v10")
        E("ds_read_b128 v[20:23], v7")
        E("ds_read_b128 v[24:27], v7 offset:1024")
        E("s_waitcnt lgkmcnt(1)")
        if O.early_o:
            E(f"v_readfirstlane_b32 s{S_T0}, v11")
        for i in range(8):
            if i == 4:
                E("s_waitcnt lgkmcnt(0)")
            E(f"v_add_f32 v{32+keep+i}, v{32+keep+i}, v{20+i}")
        for i in range(4):
            E(f"v_cvt_pk_bf16_f32 v{16+i}, v{32+keep+2*i}, v{33+keep+2*i}")
        if not hi:
            E("s_branch F_x")
    E.label("F_x")
    if O.early_o:
        E(f"s_add_u32 s{S_T0}, s{S_T0}, 1")
        E(f"s_or_b32 s{S_T0}, s{S_T0}, s{S_CNT}")
        E("s_cbranch_scc0 F_redo")
    E("s_nop 1")
    E("v_permlane32_swap_b32 v16, v18")
    E("v_permlane32_swap_b32 v17, v19")
    E(f"buffer_store_dwordx4 v[16:19], v8, {sr(OUT)}, s{S_XK} offen")
    stamp(9)
    if O.twice:
        E("s_barrier")
        E(f"s_add_u32 s{S_CNT}, s{S_CNT}, 1")
        E(f"s_cmp_lt_u32 s{S_CNT}, 2")
        E("s_cbranch_scc1 F_tw")
    flush_stamps(range(13), "F_st")
    if O.diag_span:
        E.label("F_diag")
        E("s_memrealtime s[96:97]")
        E("s_waitcnt lgkmcnt(0)")
        E("s_sub_u32 s96, s96, s98")
        E(f"s_cmp_lt_u32 s96, {O.diag_span}")
        E("s_cbranch_scc1 F_diag")
    E("s_endpgm")

    if O.early_o:
        E.label("F_redo")
        E(f"s_mov_b32 s{S_CNT}, -1")
        E(f"s_cmp_lg_u32 s{S_WAVE}, 0")
        E("s_cbranch_scc1 F_again")
        E("v_lshlrev_b32 v13, 6, v0")
        E(f"s_lshl_b32 s{S_T0}, s{S_A}, 12")
        E(f"s_add_u32 s{S_T0}, s{S_T0}, {WS_FO2:#x}")
        poll("F_pollo2", 13, f"s{S_T0}")
        E("s_branch F_again")

    E.label("F_gate")
    if O.a_exit:
        E("s_endpgm")
    E(f"s_cmp_lg_u32 s{S_WAVE}, 0")
    E("s_cbranch_scc1 F_gate1")
    wait_start("F_tag3", 0 if O.hint_step == 17 else 2)
    E.label("F_gate1")
    E("s_setprio 3")
    E("s_barrier")
    E(f"s_and_b32 s{S_A}, s2, 7")
    E(f"s_lshl_b32 s{S_A}, s{S_A}, 2")
    E(f"s_add_u32 s{S_A}, s{S_A}, s{S_C}")
    E(f"s_sub_u32 s{S_A}, s{S_A}, 28")
    E(f"s_lshl_b32 s{S_T0}, s{S_A}, 16")
    E("v_and_b32 v10, 7, v0")
    E("v_lshlrev_b32 v10, 4, v10")
    E("v_lshl_add_u32 v11, v9, 10, v10")
    for i in range(8):
        E(f"buffer_load_dwordx4 {vr(16+4*i,4)}, v11, {sr(X)}, s{S_T0} offen offset:{128*i}")
    for i in range(8):
        E(f"buffer_load_dwordx4 {vr(48+4*i,4)}, v10, {sr(GW)}, 0 offen offset:{128*i}")
    E("v_mov_b32 v12, 0")
    E("v_mov_b32 v13, 0")
    E("s_waitcnt vmcnt(0)")
    for i in range(32):
        E(f"v_dot2_f32_bf16 v{12 + (i & 1)}, v{16+i}, v{48+i}, v{12 + (i & 1)}")
        if i % 2 == 1:
            E("s_nop 0")
    E("s_nop 2")
    E("v_add_f32 v12, v12, v13")
    for ctl in ("quad_perm:[1,0,3,2]", "quad_perm:[2,3,0,1]", "row_half_mirror"):
        E("s_nop 1")
        E(f"v_add_f32_dpp v12, v12, v12 {ctl} row_mask:0xf bank_mask:0xf")
    E(f"v_mul_f32 v12, {NLOG2E:#x}, v12")
    E("v_exp_f32 v12, v12")
    E("s_nop 0")
    E("v_add_f32 v12, 1.0, v12")
    E("v_rcp_f32 v12, v12")
    E("v_lshlrev_b32 v11, 2, v9")
    E(f"s_lshl_b32 s{S_T0}, s{S_A}, 8")
    E(f"s_add_u32 s{S_T0}, s{S_T0}, {WS_G:#x}")
    E("v_cmp_eq_u32 vcc, 0, v10")
    E("s_nop 4")
    E("s_mov_b64 exec, vcc")
    E(f"buffer_store_dword v12, v11, {sr(WS)}, s{S_T0} offen sc0 sc1")
    E("s_mov_b64 exec, -1")
    if O.f_wd:
        E(f"s_and_b32 s{S_T0}, s{S_C}, 3")
        E(f"s_lshl_b32 s{S_T0}, s{S_T0}, 17")
        E(f"s_add_u32 s{S_T1}, s{S_T0}, 0x10000")
        E("v_lshlrev_b32 v11, 7, v0")
        E(f"buffer_load_dword v15, v11, {sr(WO)}, s{S_T0} offen")
        E(f"buffer_load_dword v15, v11, {sr(WO)}, s{S_T1} offen")
    if O.wo_early:
        voff_w()
        wo_stage()
    for i in (1, 2, 3, 10, 11, 12):
        stamp(i)
    E(f"s_lshr_b32 s{S_T0}, s{S_A}, 1")
    E(f"s_lshl_b32 s{S_T0}, s{S_T0}, 10")
    E(f"s_and_b32 s{S_T1}, s{S_A}, 1")
    E(f"s_lshl_b32 s{S_T1}, s{S_T1}, 6")
    E(f"s_add_u32 s{S_T0}, s{S_T0}, s{S_T1}")
    E(f"s_add_u32 s{S_T0}, s{S_T0}, {14 * 64}")
    E("s_branch F_pub")


def out_addr():
    E("v_lshlrev_b32 v8, 10, v8")
    E("v_bfe_u32 v9, v0, 5, 1")
    E("v_lshl_add_u32 v8, v9, 4, v8")
    E("v_bfe_u32 v9, v0, 7, 1")
    E("v_lshl_add_u32 v8, v9, 6, v8")
    E("v_lshrrev_b32 v9, 8, v0")
    E("v_lshl_add_u32 v8, v9, 5, v8")
    E(f"s_lshl_b32 s{S_XK}, s{S_A}, 16")
    E(f"s_lshl_b32 s{S_T1}, s{S_B}, 7")
    E(f"s_add_u32 s{S_XK}, s{S_XK}, s{S_T1}")
    E(f"s_lshl_b32 s{S_T1}, s{S_WAVE}, 11")
    E(f"s_add_u32 s{S_T1}, s{S_T1}, 65536")
    E(f"s_xor_b32 s{S_T2}, s{S_T1}, 8192")
    E(f"v_add_u32 v6, s{S_T1}, v12")
    E(f"v_add_u32 v7, s{S_T2}, v12")


def voff_w():
    E("v_bfe_u32 v2, v0, 4, 1")
    E("v_lshlrev_b32 v2, 2, v2")
    E("v_xor_b32 v2, v2, v0")
    E("v_and_b32 v2, 7, v2")
    E("v_lshlrev_b32 v2, 4, v2")
    E("v_lshrrev_b32 v11, 3, v0")
    E("v_lshl_add_u32 v2, v11, 10, v2")
    E(f"s_lshr_b32 s{S_T1}, s{S_C}, 2")
    E(f"s_lshl_b32 s{S_T1}, s{S_T1}, 7")
    E(f"v_add_u32 v2, s{S_T1}, v2")


def wo_stage():
    for i in range(8):
        E(f"s_add_u32 m0, s{S_W1K}, {i * 8192}")
        E(f"s_mov_b32 s{S_T0}, {i * 65536}")
        E(f"buffer_load_dwordx4 v2, {sr(WO)}, s{S_T0} offen lds")


def _m_fix_base():
    E(f"s_mul_i32 s{S_XB}, s{S_A}, {288 * 1024}")
    E(f"s_add_u32 s{S_XB}, s{S_XB}, {WS_HO:#x}")


HEADER = """; Kernarg layout (88 bytes, ptrs only, base s[0:1]):
; @launch grid=(512,1,1) block=(512,1,1) lds=81920
.amdgcn_target "amdgcn-amd-amdhsa--gfx950"
.text
.globl {kn}
.p2align 8
.type {kn},@function
{kn}:
CODE_START:
"""

FOOTER = """CODE_END:
.section .rodata,"a"
.p2align 6
.amdhsa_kernel {kn}
  .amdhsa_next_free_vgpr 128
  .amdhsa_next_free_sgpr 102
  .amdhsa_accum_offset 128
  .amdhsa_group_segment_fixed_size 0
  .amdhsa_kernarg_size 88
  .amdhsa_user_sgpr_count 2
  .amdhsa_user_sgpr_kernarg_segment_ptr 1
  .amdhsa_system_sgpr_workgroup_id_x 1
.end_amdhsa_kernel
"""


def generate():
    E.L = []
    if O.scramble:
        E("s_and_b32 s3, s2, 7")
        E("s_lshl_b32 s3, s3, 3")
        E("s_bfe_u32 s4, s2, 0x30003")
        E("s_and_b32 s2, s2, 0xffffffc0")
        E("s_or_b32 s2, s2, s3")
        E("s_or_b32 s2, s2, s4")
    E("s_cmp_ge_u32 s2, 256")
    E("s_cbranch_scc1 F_entry")
    stamp(0)
    if O.only_down:
        E("s_endpgm")
    a_prologue()
    E("s_cbranch_vccnz A_vwave")
    E("s_branch A_qwave")
    E.label("F_entry")
    f_prologue()
    E.label("L_end")
    E("s_endpgm")
    E.label("A_qwave")
    a_qkv(False)
    E("s_branch A_att")
    E.label("A_vwave")
    a_qkv(True)
    E.label("A_att")
    a_attention()
    f_main()
    return HEADER.format(kn=KN) + "\n".join(E.L) + "\n" + FOOTER.format(kn=KN)


if __name__ == "__main__":
    ap = argparse.ArgumentParser()
    ap.add_argument("-o", default="k.s")
    ap.add_argument("--set", action="append", default=[])
    a = ap.parse_args()
    for kv in a.set:
        k, v = kv.split("=")
        assert hasattr(O, k), k
        setattr(O, k, type(getattr(O, k))(int(v)))
    s = generate()
    open(a.o, "w").write(s)
    sys.path.insert(0, "cdna_kernels")
    from cdna_launch import with_harness_metadata, address_register_problem
    h = a.o[:-2] + ".harness.s"
    co = a.o[:-2] + ".co"
    open(h, "w").write(with_harness_metadata(s, KN, 11, launch_lists=True))
    r = subprocess.run(["clang", "-x", "assembler", "-target", "amdgcn-amd-amdhsa", "-mcpu=gfx950", h, "-o", co],
                       capture_output=True, text=True)
    if r.returncode:
        print(r.stderr[:4000]); sys.exit(1)
    p = address_register_problem(co, KN)
    print("check:", p)
    r = subprocess.run(f"llvm-nm {co} | grep -E 'CODE_|A_qwave|A_vwave|A_att|A_loop|A_fin|A_slow|F_entry|F_main|F_pub|F_dloop|F_gate$' | sort", shell=True, capture_output=True, text=True)
    print(r.stdout)
```

```python
import sys, subprocess, argparse

NAME = "gated_mix__softmax_full_mha__swiglu_ffn__prompt"
KN = NAME + "_kernel"

WS_KV, WS_Q, WS_HO = 0, 0x400000, 0x600000
WS_G = 0xF04000
WS_FO2 = 0xF40000
WS_FKV, WS_FH, WS_FO, WS_FS = 0xF08000, 0xF0C000, 0xF20000, 0xF07000
WS_STAMP = 0x1000000
WS_SIZE = 0x1100000
QSCALE = 0x3EB8AA3B
NLOG2E = 0xBFB8AA3B
THR2 = 0x45548000


class Opt:
    stamps = False
    hint_step = 17
    f_fill_early = False
    force_slow = False
    prio_a_qkv = 3
    prio_a_att = 2
    prio_f = 0
    prio_f_late = 0
    zrows = 1
    toggle = 0
    touch_gu = 0
    touch = 0
    warm_steps = 0
    f_rot = 0
    a_exit = 0
    kv_rot = 0
    ga = 2
    gb = 3
    gc = 5
    kv_first = 2
    wd_t0 = 3
    wo_t = 1
    f_touch = 1
    f_touch2 = 99
    bal = 4
    pace_from = 99
    prio_up = -1
    prio_dn = 0
    boost_mask = 31
    prio_boost = 3
    hint1 = 11
    f_wd = 1
    pair = 1
    dn_stamps = 0
    wo_early = 1
    scramble = 0
    dbg_out = 0
    hold = 0
    kv_wait1 = 1
    piped = 0
    dn_ns = 5
    dn_grp = 2
    dn_grp_until = 16
    dn_low = 99
    twice = 0
    o_parts = 2
    x_noack = 0
    x_noex = 0
    wd_step = 13
    wd_parts = 1
    ht_pos = 2
    nt0 = 0
    order0 = 0
    diag_span = 0
    w_first = 1
    early_o = 0
    x_fail = 0
    t_rows = 256
    tlb = 0
    rf_late = 0
    bar_diag = 0
    kv_cnt = 0
    g_batch = 2
    wo_step = 9
    wo_batch = 0
    qswap = 7
    hswap = 1
    rswap = 0
    sl_o = 2
    sl_h = 2
    rperm = 1
    amap = 0
    only_down = 0
    d_rot = 0
    h_touch = 1
    att_iters = 8
    prio_silu = 3
    gate_late = 1
    h_sc1 = 1
    no_f = 0
    late_iter = 99


O = Opt()


class Asm:
    def __init__(self):
        self.L = []

    def __call__(self, s):
        for x in s.strip("\n").split("\n"):
            self.L.append("    " + x.strip())

    def label(self, l):
        self.L.append(l + ":")

    def raw(self, s):
        self.L.append(s)


E = Asm()


def vr(a, n):
    return f"v[{a}:{a+n-1}]"


def srd(base, size):
    E(f"s_mov_b32 s{base+2}, {size:#x}")
    E(f"s_mov_b32 s{base+3}, 0x20000")


S_WAVE = 3
X, W1, WU, WS, DBG, WD, WO, OUT, GW = 12, 16, 20, 24, 28, 32, 36, 40, 44
def sr(b): return f"s[{b}:{b+3}]"
S_TAG = 48
S_W1K = 49
S_T0, S_T1, S_T2, S_T3 = 50, 51, 52, 53
S_XK, S_XB, S_WK, S_WB = 54, 55, 56, 57
S_CNT = 58
S_A, S_B, S_C, S_D = 59, 60, 61, 62
S_SLOT = 63
S_VM = 64
S_SPIN = 66
S_STAMP = 70


def stamp(i):
    if O.stamps:
        E(f"s_memrealtime s[{S_STAMP+2*i}:{S_STAMP+2*i+1}]")
        E(f"s_memtime s[68:69]")
        E("s_waitcnt lgkmcnt(0)")
        E(f"s_mov_b32 s{S_STAMP+2*i+1}, s68")


def cstamp(i):
    if O.stamps:
        E(f"s_memtime s[{S_STAMP+2*i}:{S_STAMP+2*i+1}]")
        E("s_waitcnt lgkmcnt(0)")


def flush_stamps(idx, lab):
    if not O.stamps:
        return
    E(f"s_cmp_lg_u32 s{S_WAVE}, 0")
    E(f"s_cbranch_scc1 {lab}")
    E(f"s_lshl_b32 s{S_T0}, s2, 7")
    E(f"s_add_u32 s{S_T0}, s{S_T0}, {WS_STAMP:#x}")
    E("s_mov_b64 exec, 1")
    E("v_mov_b32 v1, 0")
    for i in idx:
        E(f"v_mov_b32 v2, s{S_STAMP+2*i}")
        E(f"buffer_store_dword v2, v1, {sr(WS)}, s{S_T0} offen offset:{4*i}")
        E(f"v_mov_b32 v3, s{S_STAMP+2*i+1}")
        E(f"buffer_store_dword v3, v1, {sr(WS)}, s{S_T0} offen offset:{64+4*i}")
    if O.dbg_out:
        E(f"s_and_b32 s{S_T0}, s2, 255")
        E(f"s_cmp_lg_u32 s{S_T0}, 77")
        E(f"s_cbranch_scc1 {lab}_d")
        sel, base = ((0, 1, 2, 5, 6, 7), 1) if lab.startswith("A") else ((1, 2, 3, 5, 6, 7, 9), 9)
        for n, i in enumerate(sel):
            E(f"v_mov_b32 v2, s{S_STAMP+2*i}")
            if n:
                E(f"v_subrev_u32 v2, s{S_STAMP}, v2")
            E(f"buffer_store_dword v2, v1, {sr(DBG)}, 0 offen offset:{4*(base+n)}")
        if lab.startswith("A"):
            E(f"s_sub_u32 s{S_T0}, s{S_STAMP+13}, s{S_STAMP+11}")
            E(f"v_mov_b32 v2, s{S_T0}")
            E(f"buffer_store_dword v2, v1, {sr(DBG)}, 0 offen offset:28")
        E.label(lab + "_d")
    E("s_waitcnt vmcnt(0)")
    E.label(lab)


class VM:
    def __init__(self):
        self.q = []

    def issue(self, tag, n=1):
        self.q += [tag] * n

    def need(self, *tags):
        last = -1
        for i, t in enumerate(self.q):
            if t in tags:
                last = i
        for t in tags:
            assert t in self.q, t
        return len(self.q) - 1 - last


def poll(lab, voff_reg, soff, piped=False, dst=11, sleep=2):
    E(f"s_mov_b32 s{S_SPIN}, 0x40000")
    if piped:
        regs = (11, 9, 15)
        for r in regs[:2]:
            E(f"buffer_load_dword v{r}, v{voff_reg}, {sr(WS)}, {soff} offen sc1")
            E("s_sleep 2")
        E.label(lab)
        for i in range(3):
            E(f"buffer_load_dword v{regs[(i + 2) % 3]}, v{voff_reg}, {sr(WS)}, {soff} offen sc1")
            E("s_waitcnt vmcnt(2)")
            E(f"v_cmp_ne_u32 vcc, s{S_TAG}, v{regs[i]}")
            E("s_nop 4")
            E("s_cmp_eq_u64 vcc, 0")
            E(f"s_cbranch_scc1 {lab}_ok")
            E("s_sleep 1")
    else:
        E.label(lab)
        E(f"buffer_load_dword v{dst}, v{voff_reg}, {sr(WS)}, {soff} offen sc1")
        E("s_waitcnt vmcnt(0)")
        E(f"v_cmp_ne_u32 vcc, s{S_TAG}, v{dst}")
        E("s_nop 4")
        E("s_cmp_eq_u64 vcc, 0")
        E(f"s_cbranch_scc1 {lab}_ok")
        E(f"s_sleep {sleep}")
    E(f"s_sub_u32 s{S_SPIN}, s{S_SPIN}, 1")
    E(f"s_cmp_lg_u32 s{S_SPIN}, 0")
    E(f"s_cbranch_scc1 {lab}")
    E.label(lab + "_ok")


def get_tag(lab, sleep=4):
    E(f"s_mov_b32 s{S_SPIN}, 0x40000")
    E("v_mov_b32 v10, 0")
    E.label(lab)
    E(f"buffer_load_dword v11, v10, {sr(DBG)}, 0 offen sc1")
    E("s_waitcnt vmcnt(0)")
    E(f"v_readfirstlane_b32 s{S_TAG}, v11")
    E("s_nop 3")
    E(f"s_cmp_lg_u32 s{S_TAG}, 0")
    E(f"s_cbranch_scc1 {lab}_ok")
    E(f"s_sleep {sleep}")
    E(f"s_sub_u32 s{S_SPIN}, s{S_SPIN}, 1")
    E(f"s_cmp_lg_u32 s{S_SPIN}, 0")
    E(f"s_cbranch_scc1 {lab}")
    E.label(lab + "_ok")


def put_flag(soff_sgpr):
    E("s_mov_b64 exec, 1")
    E("v_mov_b32 v10, 0")
    E(f"v_mov_b32 v11, s{S_TAG}")
    E(f"buffer_store_dword v11, v10, {sr(WS)}, s{soff_sgpr} offen sc0 sc1")
    E("s_mov_b64 exec, -1")


def wg_store(lab, cond, val_lines, off):
    cond()
    E(f"s_cbranch_scc1 {lab}")
    val_lines()
    E("s_mov_b64 exec, 1")
    E(f"v_mov_b32 v10, {off}")
    E(f"v_mov_b32 v11, s{S_T0}")
    E(f"buffer_store_dword v11, v10, {sr(DBG)}, 0 offen sc0 sc1")
    E("s_mov_b64 exec, -1")
    E.label(lab)


def hint(lab="A_nohint", word=0, early=None):
    E(f"s_lshr_b32 s{S_T0}, s2, 3")
    E(f"s_or_b32 s{S_T0}, s{S_T0}, s{S_WAVE}")
    E(f"s_cbranch_scc1 {lab}")
    if (O.hint_step if early is None else early) < 16:
        E(f"v_readfirstlane_b32 s{S_TAG}, v14")
        E("s_nop 3")
        E(f"s_cmp_lg_u32 s{S_TAG}, 0")
        E(f"s_cbranch_scc1 {lab}_t_ok")
        get_tag(lab + "_t")
    E(f"s_lshl_b32 s{S_T1}, s2, 7")
    E(f"s_add_u32 s{S_T1}, s{S_T1}, {WS_FS + 1024 * word:#x}")
    put_flag(S_T1)
    E.label(lab)


def wait_start(lab, word=0, tag=True):
    if tag:
        get_tag(lab + "_t", 16)
    E("v_mov_b32 v10, 0")
    E(f"s_and_b32 s{S_T0}, s2, 7")
    if O.hswap:
        E(f"s_xor_b32 s{S_T0}, s{S_T0}, {O.hswap}")
    E(f"s_lshl_b32 s{S_T0}, s{S_T0}, 7")
    E(f"s_add_u32 s{S_T0}, s{S_T0}, {WS_FS + 1024 * word:#x}")
    poll(lab, 10, f"s{S_T0}")


def dpp_max(regs):
    for ctl in ("row_shr:1", "row_shr:2", "row_shr:4", "row_shr:8",
                "row_bcast:15 row_mask:0xa", "row_bcast:31 row_mask:0xc"):
        E("s_nop 1")
        for r in regs:
            m = "" if "row_mask" in ctl else " row_mask:0xf"
            E(f"v_max_f32_dpp v{r}, v{r}, v{r} {ctl}{m} bank_mask:0xf")


A_XS, A_WS0, A_WSZ = 8192, 24576, 12288


def a_dma_x(u, vm):
    E(f"s_add_u32 m0, s{S_W1K}, {(u % 3) * A_XS}")
    E(f"s_add_u32 s{S_T0}, s{S_XB}, s{S_XK}")
    nt = "nt " if ((O.nt0 & 1) and u < 2) or (O.nt0 & 4) else ""
    E(f"buffer_load_dwordx4 v1, {sr(X)}, s{S_T0} offen {nt}lds")
    E(f"s_add_u32 s{S_XK}, s{S_XK}, 128")
    E(f"s_and_b32 s{S_XK}, s{S_XK}, 1023")
    vm.issue(("x", u))


def a_dma_w(s, vm, vwave):
    base = A_WS0 + (s % 4) * A_WSZ
    nt = "nt " if ((O.nt0 & 1) and s < 2) or (O.nt0 & 4) else ""
    E(f"s_add_u32 m0, s{S_W1K}, {base}")
    E(f"s_add_u32 s{S_T0}, s{S_WB}, s{S_WK}")
    E(f"buffer_load_dwordx4 v2, {sr(W1)}, s{S_T0} offen {nt}lds")
    vm.issue(("w", s))
    if vwave == "both":
        E(f"s_cbranch_vccz A_pw{s}")
        E(f"s_add_u32 m0, s{S_W1K}, {base + 3072}")
        E("s_nop 0")
        E(f"buffer_load_dwordx4 v2, {sr(W1)}, s{S_T0} offen offset:1024 {nt}lds")
        E.label(f"A_pw{s}")
    elif vwave:
        E(f"s_add_u32 m0, s{S_W1K}, {base + 3072}")
        E("s_nop 0")
        E(f"buffer_load_dwordx4 v2, {sr(W1)}, s{S_T0} offen offset:1024 {nt}lds")
        vm.issue(("w", s))
    E(f"s_add_u32 s{S_WK}, s{S_WK}, 98304")
    E(f"s_cmp_eq_u32 s{S_WK}, {16 * 98304}")
    E(f"s_cselect_b32 s{S_WK}, 0, s{S_WK}")


def a_prologue():
    E(f"s_load_dwordx2 s[{X}:{X+1}], s[0:1], 0")
    E(f"s_load_dwordx2 s[{W1}:{W1+1}], s[0:1], 8")
    E(f"s_load_dwordx2 s[{WS}:{WS+1}], s[0:1], 80")
    E(f"s_load_dwordx2 s[{DBG}:{DBG+1}], s[0:1], 72")
    E("v_lshrrev_b32 v8, 6, v0")
    E("v_lshrrev_b32 v9, 3, v0")
    E("v_lshrrev_b32 v10, 4, v0")
    E(f"v_readfirstlane_b32 s{S_WAVE}, v8")
    E("v_xor_b32 v11, v10, v0")
    E("v_and_b32 v11, 7, v11")
    E("v_lshlrev_b32 v11, 4, v11")
    E("v_lshl_add_u32 v1, v9, 10, v11")
    srd(X, 0x200000)
    srd(W1, 0x180000)
    E(f"s_lshr_b32 s{S_T0}, s2, 3")
    E(f"s_and_b32 s{S_T1}, s{S_T0}, 7")
    E(f"s_lshr_b32 s{S_T0}, s{S_T0}, 3")
    E(f"s_and_b32 s{S_A}, s2, 3")
    E(f"s_lshl_b32 s{S_A}, s{S_A}, 3")
    E(f"s_add_u32 s{S_A}, s{S_A}, s{S_T1}")
    E(f"s_and_b32 s{S_B}, s2, 4")
    E(f"s_add_u32 s{S_B}, s{S_B}, s{S_T0}")
    E(f"s_lshl_b32 s{S_T0}, s{S_T0}, 1")
    E(f"s_add_u32 s{S_T0}, s{S_T0}, s{S_T1}")
    E(f"s_and_b32 s{S_T0}, s{S_T0}, 7")
    E(f"s_lshl_b32 s{S_XK}, s{S_T0}, 7")
    E(f"s_mul_i32 s{S_WK}, s{S_T0}, {2 * 98304}")
    E(f"s_lshl_b32 s{S_XB}, s{S_A}, 16")
    E(f"s_lshl_b32 s{S_WB}, s{S_B}, 7")
    E(f"s_lshl_b32 s{S_W1K}, s{S_WAVE}, 10")
    E("v_and_b32 v9, 31, v9")
    E("v_mul_u32_u24 v9, 0xc00, v9")
    E("v_and_b32 v10, 1, v10")
    E("v_lshlrev_b32 v10, 2, v10")
    E("v_xor_b32 v10, v10, v0")
    E("v_and_b32 v10, 7, v10")
    E("v_lshl_add_u32 v9, v10, 4, v9")
    E("v_lshrrev_b32 v10, 8, v0")
    E("v_lshl_add_u32 v2, v10, 10, v9")
    E("v_cmp_eq_u32 vcc, 1, v10")
    E(f"s_setprio {O.prio_a_qkv}")
    E("s_waitcnt lgkmcnt(0)")
    stamp(8)
    vm = VM()
    a_dma_x(0, vm)
    a_dma_w(0, vm, "both")
    a_dma_w(1, vm, "both")
    a_dma_x(1, vm)
    a_dma_w(2, vm, "both")
    a_dma_w(3, vm, "both")
    a_dma_x(2, vm)
    stamp(9)
    srd(WS, WS_SIZE)
    srd(DBG, 256)


def a_qkv(vwave):
    p = "AV" if vwave else "AQ"
    if O.touch:
        E(f"s_load_dwordx2 s[{WU}:{WU+1}], s[0:1], {40 if vwave else 32}")
        E(f"s_load_dwordx2 s[{WD}:{WD+1}], s[0:1], 48")
        E(f"s_load_dwordx2 s[{WO}:{WO+1}], s[0:1], 16")
        srd(WU, 512 * 3584); srd(WD, 1792 * 1024); srd(WO, 512 * 1024)
    vm = VM()
    n = 2 if vwave else 1
    for t in (("x", 0), ("w", 0), ("w", 1), ("x", 1), ("w", 2), ("w", 3), ("x", 2)):
        vm.issue(t, n if t[0] == "w" else 1)
    E("v_and_b32 v8, 31, v0")
    if vwave:
        E("v_and_b32 v9, 0x13, v8")
        E("v_lshlrev_b32 v10, 1, v8")
        E("v_and_b32 v10, 8, v10")
        E("v_or_b32 v9, v9, v10")
        E("v_lshrrev_b32 v10, 1, v8")
        E("v_and_b32 v10, 4, v10")
        E("v_or_b32 v8, v9, v10")
    E("v_lshrrev_b32 v9, 1, v8")
    E("v_and_b32 v9, 7, v9")
    E("v_bfe_u32 v10, v0, 5, 1")
    E("v_xor_b32 v9, v9, v10")
    E("v_lshlrev_b32 v9, 4, v9")
    E("v_lshl_add_u32 v9, v8, 7, v9")
    E("v_bfe_u32 v8, v0, 6, 1")
    E("v_lshl_add_u32 v3, v8, 12, v9")
    for ks in (1, 2, 3):
        E(f"v_xor_b32 v{3+ks}, {32*ks}, v3")
    E("v_bfe_u32 v8, v0, 2, 2")
    E("v_lshl_add_u32 v9, v10, 3, v8")
    E("v_lshlrev_b32 v9, 7, v9")
    E("v_bfe_u32 v10, v0, 7, 1")
    E("v_lshrrev_b32 v8, 1, v8")
    E("v_xor_b32 v8, v8, v10")
    E("v_lshl_add_u32 v9, v8, 6, v9")
    E("v_bfe_u32 v8, v0, 4, 1")
    E("v_lshl_add_u32 v9, v8, 5, v9")
    E("v_and_b32 v8, 3, v0")
    E("v_lshl_add_u32 v9, v8, 3, v9")
    E(f"v_add_u32 v7, {A_WS0}, v9")
    segs = (2,) if vwave else (0, 1)
    if O.touch_gu:
        E(f"s_lshr_b32 s{S_T0}, s2, 3")
        E(f"s_lshl_b32 s{S_T0}, s{S_T0}, 2")
        E(f"s_and_b32 s{S_T1}, s{S_WAVE}, 3")
        E(f"s_add_u32 s{S_T0}, s{S_T0}, s{S_T1}")
        E(f"s_mul_i32 s{S_T0}, s{S_T0}, {2 * 3584}")
        E(f"s_bfe_u32 s{S_T1}, s2, 0x10002")
        E(f"s_mul_i32 s{S_T1}, s{S_T1}, 1792")
        E(f"s_add_u32 s{S_T0}, s{S_T0}, s{S_T1}")
        E("v_bfe_u32 v8, v0, 4, 1")
        E("v_mul_u32_u24 v8, 3584, v8")
        E("v_and_b32 v9, 15, v0")
        E("v_lshl_add_u32 v8, v9, 7, v8")
        E(f"v_add_u32 v98, s{S_T0}, v8")

    def reads(s):
        b = 16 + 24 * (s & 1)
        L = []
        for kk in (0, 1):
            L.append(f"ds_read_b128 {vr(b+4*kk,4)}, v{3 + 2*(s&1) + kk} offset:{((s//2) % 3) * A_XS}")
            for si, sg in enumerate(segs):
                for q in (0, 1):
                    off = (s % 4) * A_WSZ + sg * 4096 + kk * 2048 + q * 512
                    L.append(f"ds_read_b64_tr_b16 {vr(b+8+8*si+4*kk+2*q,2)}, v7 offset:{off}")
        return L

    def mfmas(s):
        b = 16 + 24 * (s & 1)
        L = []
        for kk in (0, 1):
            for si, sg in enumerate(segs):
                acc = vr(64 + 16 * si, 16)
                c = "0" if (s == 0 and kk == 0) else acc
                xf, wf = vr(b + 4*kk, 4), vr(b + 8 + 8*si + 4*kk, 4)
                if vwave:
                    L.append(f"v_mfma_f32_32x32x16_bf16 {acc}, {xf}, {wf}, {c}")
                else:
                    L.append(f"v_mfma_f32_32x32x16_bf16 {acc}, {wf}, {xf}, {c}")
        return L

    if not vwave:
        def tagval():
            E(f"s_memrealtime s[{S_T0}:{S_T1}]")
            E("s_waitcnt lgkmcnt(0)")
            E(f"s_or_b32 s{S_T0}, s{S_T0}, 1")
        wg_store("A_notag", lambda: E(f"s_or_b32 s{S_T0}, s2, s{S_WAVE}"), tagval, "0")
    E(f"s_waitcnt vmcnt({vm.need(('x',0),('w',0))}) lgkmcnt(0)")
    E("s_barrier")
    stamp(1)
    for x in reads(0):
        E(x)
    for s in range(16):
        M = mfmas(s)
        if s < 15:
            E(f"s_waitcnt vmcnt({vm.need(('x',(s+1)//2),('w',s+1))}) lgkmcnt(0)")
            E("s_barrier")
            E(M.pop(0))
            R = reads(s + 1)
            per = 3
            while R or M:
                for x in R[:per]:
                    E(x)
                R = R[per:]
                if M:
                    E(M.pop(0))
            if s + 4 <= 15:
                a_dma_w(s + 4, vm, vwave)
            if s % 2 == 1 and (s + 1) // 2 + 2 <= 7:
                a_dma_x((s + 1) // 2 + 2, vm)
            if s == 1 and not vwave:
                E("v_mov_b32 v10, 0")
                E(f"buffer_load_dword v14, v10, {sr(DBG)}, 0 offen sc1")
                vm.issue("tag")
            if s == 12 and O.touch_gu:
                E("s_mov_b32 exec_hi, 0")
                E(f"buffer_load_dword v15, v98, {sr(WU)}, 0 offen")
                E("s_mov_b32 exec_hi, -1")
                vm.issue("t")
        else:
            E("s_waitcnt lgkmcnt(0)")
            for x in M:
                E(x)
        if s == O.hint_step and not vwave:
            hint()
        if s == O.hint1 and not vwave:
            hint("A_nohint1", 1, O.hint1)
        if s == O.hint_step and O.a_exit:
            E("s_endpgm")
    stamp(2)
    E(f"s_and_b32 s{S_T0}, s{S_WAVE}, 1")
    E(f"s_lshl_b32 s{S_T1}, s{S_A}, 1")
    E(f"s_add_u32 s{S_T0}, s{S_T0}, s{S_T1}")
    E(f"s_bfe_u32 s{S_T1}, s{S_WAVE}, 0x10001")
    E(f"s_lshl_b32 s{S_T2}, s{S_B}, 1")
    E(f"s_add_u32 s{S_T1}, s{S_T1}, s{S_T2}")
    E("v_and_b32 v8, 63, v0")
    if vwave:
        E("v_and_b32 v9, 15, v8")
        E("v_lshlrev_b32 v9, 4, v9")
        E("v_bfe_u32 v10, v8, 5, 1")
        E("v_lshl_add_u32 v9, v10, 8, v9")
        E("v_bfe_u32 v10, v8, 4, 1")
        E("v_lshl_add_u32 v9, v10, 17, v9")
        E(f"s_lshl_b32 s{S_T1}, s{S_T1}, 18")
        E(f"s_lshl_b32 s{S_T0}, s{S_T0}, 11")
        E(f"s_add_u32 s{S_T0}, s{S_T0}, s{S_T1}")
        E("s_nop 7")
        for i in range(8):
            E(f"v_cvt_pk_bf16_f32 v{16+i}, v{64+2*i}, v{65+2*i}")
        E(f"buffer_store_dwordx4 v[16:19], v9, {sr(WS)}, s{S_T0} offen offset:1024 sc0 sc1")
        E(f"buffer_store_dwordx4 v[20:23], v9, {sr(WS)}, s{S_T0} offen offset:1536 sc0 sc1")
    else:
        E("v_lshlrev_b32 v9, 4, v8")
        E(f"s_lshl_b32 s{S_T2}, s{S_T1}, 18")
        E(f"s_lshl_b32 s{S_T3}, s{S_T0}, 11")
        E(f"s_add_u32 s{S_T2}, s{S_T2}, s{S_T3}")
        E(f"s_lshr_b32 s{S_T3}, s{S_T2}, 1")
        E(f"s_add_u32 s{S_T3}, s{S_T3}, {WS_Q:#x}")
        E(f"s_add_u32 s{S_C}, s{S_T2}, 0x20000")
        E(f"s_add_u32 s{S_D}, s{S_T3}, 0x10000")
        E(f"s_mov_b32 s{S_CNT}, {QSCALE:#x}")
        E("s_nop 7")
        for i in range(8):
            E(f"v_cvt_pk_bf16_f32 v{16+i}, v{80+2*i}, v{81+2*i}")
        E(f"buffer_store_dwordx4 v[16:19], v9, {sr(WS)}, s{S_T2} offen sc0 sc1")
        E(f"buffer_store_dwordx4 v[20:23], v9, {sr(WS)}, s{S_C} offen sc0 sc1")
        for i in range(16):
            E(f"v_mul_f32 v{64+i}, s{S_CNT}, v{64+i}")
        for i in range(8):
            E(f"v_cvt_pk_bf16_f32 v{24+i}, v{64+2*i}, v{65+2*i}")
        E(f"buffer_store_dwordx4 v[24:27], v9, {sr(WS)}, s{S_T3} offen sc0 sc1")
        E(f"buffer_store_dwordx4 v[28:31], v9, {sr(WS)}, s{S_D} offen sc0 sc1")
        for g in range(4):
            E(f"v_mul_f32 v{32+g}, v{64+8*g}, v{64+8*g}")
        for i in range(1, 8):
            for g in range(4):
                E(f"v_fmac_f32 v{32+g}, v{64+8*g+i}, v{64+8*g+i}")
        E("s_nop 1")
        E("v_permlane32_swap_b32 v32, v33")
        E("v_permlane32_swap_b32 v34, v35")
        E("s_nop 1")
        E("v_add_f32 v32, v32, v33")
        E("v_add_f32 v33, v34, v35")
        dpp_max((32, 33))
        E(f"s_lshl_b32 s{S_T0}, s{S_B}, 11")
        E(f"s_lshl_b32 s{S_T1}, s{S_A}, 6")
        E(f"s_add_u32 s{S_T0}, s{S_T0}, s{S_T1}")
        E(f"s_lshl_b32 s{S_T1}, s{S_WAVE}, 3")
        E(f"s_add_u32 s{S_T0}, s{S_T0}, s{S_T1}")
        E(f"s_add_u32 s{S_T0}, s{S_T0}, {WS_FKV + 16:#x}")
        E("v_mov_b32 v10, 0")
        E("s_brev_b64 exec, 1")
        E(f"buffer_store_dwordx2 v[32:33], v10, {sr(WS)}, s{S_T0} offen sc0 sc1")
        E("s_mov_b64 exec, -1")


S0, S1, OA, OB, QX, QY, K0, K1, V0, V1 = 16, 32, 48, 64, 80, 84, 88, 92, 96, 104
IDX, VK, VV, VD, VKB, VVB, VT, VL = 112, 113, 114, 115, 116, 117, 118, 119
KVS = 16384


def a_kv_dma():
    E(f"s_add_u32 m0, s{S_XK}, s{S_W1K}")
    E(f"s_add_u32 s{S_T0}, s{S_WB}, s{S_WK}")
    E(f"buffer_load_dwordx4 v{VD}, {sr(WS)}, s{S_T0} offen sc1 lds")
    E(f"buffer_load_dwordx4 v{VD}, {sr(WS)}, s{S_T0} offen offset:1024 sc1 lds")
    E(f"s_add_u32 s{S_WK}, s{S_WK}, {KVS}")
    E(f"s_and_b32 s{S_WK}, s{S_WK}, {8*KVS-1:#x}")
    E(f"s_add_u32 s{S_XK}, s{S_XK}, {KVS}")
    E(f"s_cmp_eq_u32 s{S_XK}, {5*KVS}")
    E(f"s_cselect_b32 s{S_XK}, 0, s{S_XK}")


def a_attention():
    E(f"s_and_b32 s{S_C}, s2, 7")
    if O.qswap:
        E(f"s_xor_b32 s{S_C}, s{S_C}, {O.qswap}")
    E(f"s_lshr_b32 s{S_T0}, s2, 6")
    if O.amap:
        E(f"s_and_b32 s{S_C}, s2, 6")
        E(f"s_bfe_u32 s{S_T1}, s2, 0x10005")
        E(f"s_add_u32 s{S_C}, s{S_C}, s{S_T1}")
        E(f"s_xor_b32 s{S_C}, s{S_C}, 4")
    E(f"s_lshl_b32 s{S_D}, s{S_C}, 2")
    E(f"s_add_u32 s{S_D}, s{S_D}, s{S_T0}")
    E(f"s_lshl_b32 s{S_T0}, s{S_B}, 11")
    E(f"s_lshl_b32 s{S_T1}, s{S_A}, 6")
    E(f"s_add_u32 s{S_T0}, s{S_T0}, s{S_T1}")
    E(f"s_add_u32 s{S_XB}, s{S_T0}, {WS_FKV:#x}")
    if O.amap:
        E(f"s_bfe_u32 s{S_A}, s2, 0x20003")
        E(f"s_and_b32 s{S_T0}, s2, 1")
        E(f"s_lshl_b32 s{S_T0}, s{S_T0}, 2")
        E(f"s_add_u32 s{S_A}, s{S_A}, s{S_T0}")
    else:
        E(f"s_bfe_u32 s{S_A}, s2, 0x30003")
    E("v_and_b32 v8, 63, v0")
    E(f"v_lshlrev_b32 v{VL}, 4, v8")
    E(f"s_lshl_b32 s{S_W1K}, s{S_WAVE}, 11")
    E(f"v_add_u32 v{VD}, s{S_W1K}, v{VL}")
    E(f"s_lshl_b32 s{S_WB}, s{S_D}, 17")
    if O.kv_rot:
        E(f"s_lshl_b32 s{S_WK}, s{S_A}, 14")
    else:
        E(f"s_mov_b32 s{S_WK}, 0")
    E(f"s_mov_b32 s{S_XK}, 0")
    E(f"s_lshl_b32 s{S_T1}, s{S_A}, 3")
    E(f"s_and_b32 s{S_T2}, s{S_WAVE}, 3")
    E(f"s_lshl_b32 s{S_T2}, s{S_T2}, 1")
    E(f"s_add_u32 s{S_B}, s{S_T1}, s{S_T2}")
    E(f"s_lshl_b32 s{S_T1}, s{S_B}, 10")
    E(f"s_lshl_b32 s{S_T2}, s{S_D}, 16")
    E(f"s_add_u32 s{S_T1}, s{S_T1}, s{S_T2}")
    E(f"s_add_u32 s4, s{S_T1}, {WS_Q:#x}")
    E(f"s_lshr_b32 s{S_T3}, s{S_WAVE}, 2")
    E(f"s_add_u32 s{S_T3}, s{S_B}, s{S_T3}")
    E(f"s_mul_i32 s5, s{S_T3}, 144")
    E(f"s_add_u32 s5, s5, s{S_D}")
    E("s_lshl_b32 s5, s5, 10")
    E(f"s_add_u32 s5, s5, {WS_HO + 112*1024:#x}")
    E(f"s_lshl_b32 s6, s{S_T3}, 11")
    E(f"s_lshl_b32 s{S_T2}, s{S_D}, 6")
    E(f"s_add_u32 s6, s6, s{S_T2}")
    E(f"s_add_u32 s6, s6, {WS_FO:#x}")
    E(f"s_add_u32 s7, s6, {WS_FO2 - WS_FO:#x}")
    E(f"s_lshr_b32 s{S_T0}, s{S_WAVE}, 2")
    E(f"s_lshl_b32 s{S_T0}, s{S_T0}, 11")
    E(f"v_add_u32 v{VKB}, s{S_T0}, v{VL}")
    E("v_and_b32 v9, 15, v8")
    E("v_lshlrev_b32 v9, 4, v9")
    E("v_bfe_u32 v10, v8, 5, 1")
    E("v_lshl_add_u32 v9, v10, 8, v9")
    E(f"s_add_u32 s{S_T0}, s{S_T0}, 1024")
    E(f"v_add_u32 v{VVB}, s{S_T0}, v9")
    E(f"v_mov_b32 v{VK}, v{VKB}")
    E(f"v_mov_b32 v{VV}, v{VVB}")
    E(f"v_mov_b32 v{IDX}, 0xdddddddd")
    E("v_and_b32 v9, 27, v8")
    E("v_cmp_eq_u32 vcc, 16, v9")
    E("v_mov_b32 v9, 0x3f803f80")
    E("s_nop 0")
    E(f"v_cndmask_b32 v{V0}, 0, v9, vcc")
    for i in range(1, 16):
        E(f"v_mov_b32 v{V0+i}, v{V0}")
    if O.touch:
        E(f"s_lshr_b32 s{S_T0}, s2, 3")
        E(f"s_lshl_b32 s{S_T0}, s{S_T0}, 3")
        E(f"s_add_u32 s{S_T0}, s{S_T0}, s{S_WAVE}")
        E(f"s_lshl_b32 s{S_T0}, s{S_T0}, 11")
        E(f"v_lshlrev_b32 v{VT}, 7, v8")
        E(f"v_add_u32 v{VT}, s{S_T0}, v{VT}")
    E(f"s_mov_b32 s{S_VM}, 0xffff")
    E(f"s_mov_b32 s{S_VM+1}, 0xffff")
    E(f"s_mov_b32 s{S_SLOT}, 0")
    E(f"s_mov_b32 s{S_CNT}, 0")
    for i in range(32):
        E(f"v_mov_b32 v{OA+i}, 0")
    for i in range(8, 16):
        E(f"v_mov_b32 v{S1+i}, 0")
    E("s_waitcnt vmcnt(0)")
    E("s_barrier")
    stamp(3)
    E(f"s_cmp_lg_u32 s{S_WAVE}, 0")
    E("s_cbranch_scc1 A_wait1")
    E(f"v_readfirstlane_b32 s{S_TAG}, v14")
    E("s_nop 3")
    E(f"s_cmp_lg_u32 s{S_TAG}, 0")
    E("s_cbranch_scc1 A_tag_ok")
    get_tag("A_tag")
    put_flag(S_XB)
    if O.hint_step == 16:
        hint()
    E("v_and_b32 v10, 31, v0")
    E("v_lshlrev_b32 v10, 6, v10")
    E(f"s_bfe_u32 s{S_T1}, s{S_D}, 0x10001")
    E(f"s_lshl_b32 s{S_T1}, s{S_T1}, 4")
    E(f"s_add_u32 s{S_T1}, s{S_T1}, 16")
    E("v_bfe_u32 v11, v0, 5, 1")
    E(f"v_mul_u32_u24 v11, s{S_T1}, v11")
    E("v_add_u32 v10, v10, v11")
    E(f"s_lshl_b32 s{S_T0}, s{S_C}, 11")
    E(f"s_add_u32 s{S_T0}, s{S_T0}, {WS_FKV:#x}")
    E(f"s_mov_b32 s{S_SPIN}, 0x40000")
    E.label("A_pollkv")
    E(f"buffer_load_dwordx4 v[4:7], v10, {sr(WS)}, s{S_T0} offen sc1")
    E("s_waitcnt vmcnt(0)")
    E(f"v_cmp_ne_u32 vcc, s{S_TAG}, v4")
    E("s_nop 4")
    E("s_cmp_eq_u32 vcc_lo, 0")
    E("s_cbranch_scc1 A_pollkv_ok")
    E("s_sleep 2")
    E(f"s_sub_u32 s{S_SPIN}, s{S_SPIN}, 1")
    E(f"s_cmp_lg_u32 s{S_SPIN}, 0")
    E("s_cbranch_scc1 A_pollkv")
    E.label("A_pollkv_ok")
    E("s_barrier")
    if O.hint_step == 17:
        hint()
    else:
        hint("A_nohint2", 2, 17)
    E("s_branch A_go")
    E.label("A_wait1")
    E("s_barrier")
    E.label("A_go")
    stamp(4)
    a_kv_dma()
    E(f"buffer_load_dwordx4 {vr(QX,4)}, v{VL}, {sr(WS)}, s4 offen sc1")
    E(f"buffer_load_dwordx4 {vr(QY,4)}, v{VL}, {sr(WS)}, s4 offen offset:1024 sc1")
    for c in range(1, O.kv_first):
        a_kv_dma()
    E(f"s_cmp_lg_u32 s{S_WAVE}, 0")
    E("s_cbranch_scc1 A_nored")
    E("v_max_u32 v4, v4, v6")
    E("v_max_u32 v5, v5, v7")
    for ctl in ("row_shr:1", "row_shr:2", "row_shr:4", "row_shr:8", "row_bcast:15 row_mask:0xa"):
        E("s_nop 1")
        for r in (4, 5):
            m = "" if "row_mask" in ctl else " row_mask:0xf"
            E(f"v_max_u32_dpp v{r}, v{r}, v{r} {ctl}{m} bank_mask:0xf")
    E("s_nop 0")
    E("v_mul_f32 v4, v4, v5")
    E(f"v_mov_b32 v5, s{S_TAG}")
    E(f"v_mov_b32 v6, {5 * KVS - 8}")
    E("s_brev_b64 exec, 1")
    E("ds_write_b64 v6, v[4:5]")
    E("s_mov_b64 exec, -1")
    E("s_waitcnt lgkmcnt(0)")
    E.label("A_nored")
    E(f"s_setprio {O.prio_a_att}")
    E(f"s_waitcnt vmcnt({2*O.kv_first - (4 if O.pair and not O.kv_wait1 else 2)})")
    E("s_barrier")
    stamp(5)

    def vreads(dst, off):
        E(f"s_mov_b64 exec, s[{S_VM}:{S_VM+1}]")
        E(f"ds_read_b128 {vr(dst,4)}, v{VV} offset:{off}")
        E(f"ds_read_b128 {vr(dst+4,4)}, v{VV} offset:{off+512}")
        E("s_mov_b64 exec, -1")

    E(f"ds_read_b128 {vr(K0,4)}, v{VK}")
    vreads(V0, 0)
    E(f"v_mov_b32 v6, {5 * KVS - 8}")
    E("ds_read_b64 v[4:5], v6")
    if O.early_o:
        for i in range(4):
            E(f"v_mov_b32 v{120+i}, -1")
        E(f"buffer_store_dwordx4 v[120:123], v{VL}, {sr(WS)}, s5 offen sc0 sc1")
    E("s_waitcnt lgkmcnt(0)")
    E(f"v_readfirstlane_b32 s{S_T0}, v4")
    E(f"v_readfirstlane_b32 s{S_TAG}, v5")
    E(f"v_mfma_f32_32x32x16_bf16 {vr(S0,16)}, {vr(K0,4)}, {vr(QX,4)}, 0")
    E("s_nop 3")
    E(f"s_cmp_gt_u32 s{S_T0}, {THR2:#x}")
    if O.force_slow:
        E("s_branch A_slow")
    E("s_cbranch_scc1 A_slow")
    E("s_nop 7")

    def chunk_turn():
        E("s_waitcnt vmcnt(0)")
        E("s_barrier")
        E(f"s_cmp_gt_u32 s{S_CNT}, {7 - O.kv_first}")
        lab = f"A_nf{len(E.L)}"
        E(f"s_cbranch_scc1 {lab}")
        a_kv_dma()
        E.label(lab)
        if O.touch:
            E(f"s_sub_u32 s{S_T0}, s{S_CNT}, {O.wd_t0}")
            E(f"s_lshl_b32 s{S_T0}, s{S_T0}, 19")
            E("s_mov_b64 exec, 0xffff")
            E(f"s_cmp_gt_u32 s{S_T0}, {3 << 19}")
            E(f"s_cbranch_scc1 {lab}t")
            E(f"buffer_load_dword v15, v{VT}, {sr(WD)}, s{S_T0} offen")
            E.label(lab + "t")
            E(f"s_cmp_lg_u32 s{S_CNT}, {O.wo_t}")
            E(f"s_cbranch_scc1 {lab}u")
            E(f"buffer_load_dword v15, v{VT}, {sr(WO)}, 0 offen")
            E.label(lab + "u")
            E("s_mov_b64 exec, -1")
        E(f"s_add_u32 s{S_SLOT}, s{S_SLOT}, {KVS}")
        E(f"s_cmp_eq_u32 s{S_SLOT}, {5*KVS}")
        E(f"s_cselect_b32 s{S_SLOT}, 0, s{S_SLOT}")
        E(f"v_add_u32 v{VK}, s{S_SLOT}, v{VKB}")
        E(f"v_add_u32 v{VV}, s{S_SLOT}, v{VVB}")

    NT = 16 if O.pair else 8
    RF = {0: (3, 5, 7), 1: (3, 7, 11), 2: (5, 9, 13)}[O.rf_late]

    def next_slot():
        E(f"s_add_u32 s{S_SLOT}, s{S_SLOT}, {KVS}")
        E(f"s_cmp_eq_u32 s{S_SLOT}, {5*KVS}")
        E(f"s_cselect_b32 s{S_SLOT}, 0, s{S_SLOT}")
        E(f"v_add_u32 v{VK}, s{S_SLOT}, v{VKB}")
        E(f"v_add_u32 v{VV}, s{S_SLOT}, v{VVB}")

    def refill(lab, lo, hi):
        if lo == hi:
            E(f"s_cmp_lg_u32 s{S_CNT}, {lo}")
        else:
            E(f"s_cmp_gt_u32 s{S_CNT}, {hi}")
        E(f"s_cbranch_scc1 {lab}")
        a_kv_dma()
        E.label(lab)

    if O.bar_diag:
        E("s_mov_b32 s86, 0"); E("s_mov_b32 s88, 0")
    E.raw(".p2align 6")
    E.label("A_loop")
    ga, gb, gc = O.ga, O.ga + O.gb, O.ga + O.gb + O.gc
    for t in range(NT):
        blk, kt = t & 1, (t >> 1) & 3
        Sc, Sn = (S0, S1) if blk == 0 else (S1, S0)
        Oc, On = (OA, OB) if blk == 0 else (OB, OA)
        Vk, Vo = (V0, V1) if kt & 1 == 0 else (V1, V0)
        Kk, Ko = (K0, K1) if kt & 1 == 0 else (K1, K0)
        if not O.pair:
            if t == 6:
                chunk_turn()
        elif t == 6:
            if O.kv_wait1:
                E(f"s_cmp_lg_u32 s{S_CNT}, 0")
                E("s_cbranch_scc1 A_nb")
                E(f"s_waitcnt vmcnt({2 * len([x for x in RF[:5 - O.kv_first] if x < 6])})")
                E("s_barrier")
                E.label("A_nb")
            next_slot()
        elif t == 14:
            if O.bar_diag:
                E("s_memtime s[68:69]"); E("s_waitcnt lgkmcnt(0)"); E("s_sub_u32 s86, s86, s68")
            if O.kv_cnt:
                E(f"s_cmp_eq_u32 s{S_CNT}, 0")
                E("s_cbranch_scc1 A_w2")
                E("s_waitcnt vmcnt(0)")
                E.label("A_w2")
                E("s_waitcnt vmcnt(2)")
            else:
                E("s_waitcnt vmcnt(0)")
            if O.bar_diag:
                E("s_memtime s[68:69]"); E("s_waitcnt lgkmcnt(0)"); E("s_add_u32 s86, s86, s68"); E("s_sub_u32 s88, s88, s68")
            E("s_barrier")
            if O.bar_diag:
                E("s_memtime s[68:69]"); E("s_waitcnt lgkmcnt(0)"); E("s_add_u32 s88, s88, s68")
            next_slot()
        ex = lambda a, b: [E(f"v_exp_f32 v{Sc+i}, v{Sc+i}") for i in range(a, b)]
        ph = ((t + 2) % NT) * 8 // NT
        TAB = {5: [3]*6 + [2]*5 + [1]*3 + [0]*2, 6: [3]*2 + [2]*4 + [1]*5 + [0]*5, 7: [3]*5 + [2]*5 + [1]*4 + [0]*2}
        prf = lambda ph: {0: O.prio_a_att, 4: 3 - ph // 2, 2: O.prio_a_att + (1 if ph < 4 else 0), 3: O.prio_a_att + [2, 2, 2, 1, 1, 1, 0, 0][ph]}[O.bal]
        if O.bal >= 5:
            pr, prev = TAB[O.bal][(t + 2) % NT], TAB[O.bal][(t + 1) % NT]
        else:
            pr, prev = prf(ph), prf(((t + 1) % NT) * 8 // NT)
        if O.bal and not O.toggle and pr != prev:
            E(f"s_setprio {pr}")

        def mm(x):
            if O.toggle: E(f"s_setprio {O.toggle}")
            E(x)
            if O.toggle: E(f"s_setprio {pr}")
        ex(0, ga)
        mm(f"v_smfmac_f32_32x32x32_bf16 {vr(On,16)}, {vr((Vo if blk == 0 else Vk) + 4,4)}, {vr(Sn+8,8)}, v{IDX}")
        if blk == 0:
            off = ((kt + 1) % 4) * 4096
            E(f"ds_read_b128 {vr(Ko,4)}, v{VK} offset:{off}")
            vreads(Vo, off)
        ex(ga, gb)
        if blk == 1:
            E("s_waitcnt lgkmcnt(0)")
        mm(f"v_mfma_f32_32x32x16_bf16 {vr(Sn,16)}, {vr(Kk if blk == 0 else Ko,4)}, {vr(QY if blk == 0 else QX,4)}, 0")
        ex(gb, gc)
        mm(f"v_smfmac_f32_32x32x32_bf16 {vr(Oc,16)}, {vr(Vk,4)}, {vr(Sc,8)}, v{IDX}")
        if O.pair and t == 15:
            refill("A_rf0", 0, 1)
        if O.pair and t == 1:
            refill("A_rf1", 2, 2)
        if O.pair and O.kv_first < 5 and t in RF[:5 - O.kv_first]:
            refill(f"A_rf{t}", 0, 0)
        ex(gc, 16)
    E(f"s_add_u32 s{S_CNT}, s{S_CNT}, 1")
    E(f"s_cmp_lt_u32 s{S_CNT}, {O.att_iters * 8 // NT}")
    E("s_cbranch_scc1 A_loop")
    E("s_nop 1")
    E(f"v_smfmac_f32_32x32x32_bf16 {vr(OB,16)}, {vr(V1+4,4)}, {vr(S1+8,8)}, v{IDX}")
    E.label("A_fin")
    stamp(6)
    E("s_setprio 3")
    E(f"s_lshr_b32 s{S_T3}, s{S_WAVE}, 2")
    E(f"s_lshl_b32 s{S_T1}, s{S_WAVE}, 12")
    E(f"s_xor_b32 s{S_T2}, s{S_T1}, 16384")
    E(f"v_add_u32 v10, s{S_T1}, v{VL}")
    E(f"v_add_u32 v11, s{S_T2}, v{VL}")
    E("s_nop 5")
    if O.x_noex:
        E("s_branch A_noex")
    E(f"s_cmp_lg_u32 s{S_T3}, 0")
    E("s_cbranch_scc1 A_hi")
    for i in range(3):
        E(f"ds_write_b128 v10, {vr(OB+4*i,4)} offset:{1024*i}")
    E("s_branch A_x")
    E.label("A_hi")
    for i in range(3):
        E(f"ds_write_b128 v10, {vr(OA+4*i,4)} offset:{1024*i}")
    E("s_nop 1")
    for i in range(9):
        E(f"v_mov_b32 v{OA+i}, v{OB+i}")
    E.label("A_x")
    E("s_waitcnt lgkmcnt(0)")
    E("s_barrier")
    E(f"ds_read_b128 {vr(S0+8,4)}, v11 offset:2048")
    E(f"ds_read_b128 {vr(S0,4)}, v11")
    E(f"ds_read_b128 {vr(S0+4,4)}, v11 offset:1024")
    E("s_waitcnt lgkmcnt(2)")
    E.label("A_noex")
    E(f"v_add_f32 v12, v{OA+8}, v{S0+8}")
    E("v_rcp_f32 v12, v12")
    E("s_waitcnt lgkmcnt(0)")
    for i in range(8):
        E(f"v_add_f32 v{OA+i}, v{OA+i}, v{S0+i}")
    for i in range(8):
        E(f"v_mul_f32 v{OA+i}, v12, v{OA+i}")
    for i in range(4):
        E(f"v_cvt_pk_bf16_f32 v{S1+i}, v{OA+2*i}, v{OA+2*i+1}")
    E(f"buffer_store_dwordx4 {vr(S1,4)}, v{VL}, {sr(WS)}, s5 offen sc0 sc1")
    if O.early_o:
        put_flag(6)
        stamp(7)
        E("s_waitcnt vmcnt(0)")
        put_flag(7)
    else:
        E("s_waitcnt vmcnt(0)")
        put_flag(6)
        stamp(7)
    flush_stamps(range(10), "A_st")
    E("s_endpgm")

    E.label("A_slow")
    MX, MY, T, AL = 4, 5, 6, 7
    E(f"v_mov_b32 v{MX}, 0xff7fffff")
    E(f"v_mov_b32 v{MY}, 0xff7fffff")
    E.label("A_sloop")
    E(f"s_mov_b32 s{S_T3}, 0")
    E.label("A_stile")
    E(f"ds_read_b128 {vr(K0,4)}, v{VK}")
    vreads(V0, 0)
    E(f"v_add_u32 v{VK}, 4096, v{VK}")
    E(f"v_add_u32 v{VV}, 4096, v{VV}")
    E("s_waitcnt lgkmcnt(0)")
    for (M, Q, Oc) in ((MX, QX, OA), (MY, QY, OB)):
        E(f"v_mfma_f32_32x32x16_bf16 {vr(S0,16)}, {vr(K0,4)}, {vr(Q,4)}, 0")
        E("s_nop 15")
        E(f"v_max3_f32 v{T}, v{S0}, v{S0+1}, v{M}")
        for i in range(1, 8):
            E(f"v_max3_f32 v{T}, v{S0+2*i}, v{S0+2*i+1}, v{T}")
        E(f"v_mov_b32 v{AL}, v{T}")
        E("s_nop 1")
        E(f"v_permlane32_swap_b32 v{T}, v{AL}")
        E("s_nop 1")
        E(f"v_max_f32 v{T}, v{T}, v{AL}")
        E(f"v_sub_f32 v{AL}, v{M}, v{T}")
        E(f"v_exp_f32 v{AL}, v{AL}")
        E(f"v_mov_b32 v{M}, v{T}")
        for i in range(16):
            E(f"v_sub_f32 v{S0+i}, v{S0+i}, v{T}")
        for i in range(16):
            E(f"v_exp_f32 v{S0+i}, v{S0+i}")
        for i in range(9):
            E(f"v_mul_f32 v{Oc+i}, v{AL}, v{Oc+i}")
        E("s_nop 1")
        E(f"v_smfmac_f32_32x32x32_bf16 {vr(Oc,16)}, {vr(V0,4)}, {vr(S0,8)}, v{IDX}")
        E(f"v_smfmac_f32_32x32x32_bf16 {vr(Oc,16)}, {vr(V0+4,4)}, {vr(S0+8,8)}, v{IDX}")
    E(f"s_add_u32 s{S_T3}, s{S_T3}, 1")
    E(f"s_cmp_lt_u32 s{S_T3}, 4")
    E("s_cbranch_scc1 A_stile")
    chunk_turn()
    E(f"s_add_u32 s{S_CNT}, s{S_CNT}, 1")
    E(f"s_cmp_lt_u32 s{S_CNT}, 8")
    E("s_cbranch_scc1 A_sloop")
    E(f"s_lshl_b32 s{S_T1}, s{S_WAVE}, 10")
    E(f"s_add_u32 s{S_T1}, s{S_T1}, 65536")
    E(f"s_xor_b32 s{S_T2}, s{S_T1}, 4096")
    E(f"v_add_u32 v10, s{S_T1}, v{VL}")
    E(f"v_add_u32 v11, s{S_T2}, v{VL}")
    E(f"ds_write_b64 v10, v[{MX}:{MY}]")
    E("s_waitcnt lgkmcnt(0)")
    E("s_barrier")
    E(f"ds_read_b64 v[{T}:{AL}], v11")
    E("s_waitcnt lgkmcnt(0)")
    for (M, P, Oc) in ((MX, T, OA), (MY, AL, OB)):
        E(f"v_max_f32 v{P}, v{P}, v{M}")
        E(f"v_sub_f32 v{P}, v{M}, v{P}")
        E(f"v_exp_f32 v{P}, v{P}")
        E("s_nop 0")
        for i in range(9):
            E(f"v_mul_f32 v{Oc+i}, v{P}, v{Oc+i}")
    E("s_branch A_fin")


F_XS, F_WS0, F_WSZ = 16384, 32768, 16384
WROW = 3584


def f_dma_x(u, vm):
    E(f"s_add_u32 m0, s{S_W1K}, {(u % 2) * F_XS}")
    E(f"s_add_u32 s{S_T0}, s{S_XB}, s{S_XK}")
    E(f"buffer_load_dwordx4 v1, {sr(X)}, s{S_T0} offen lds")
    E(f"s_add_u32 m0, s{S_W1K}, {(u % 2) * F_XS + 8192}")
    E(f"s_add_u32 s{S_T0}, s{S_T0}, 0x10000")
    E(f"buffer_load_dwordx4 v1, {sr(X)}, s{S_T0} offen lds")
    E(f"s_add_u32 s{S_XK}, s{S_XK}, 128")
    E(f"s_and_b32 s{S_XK}, s{S_XK}, 1023")
    vm.issue(("x", u), 2)


def f_dma_w(s, vm):
    base = F_WS0 + (s % 3) * F_WSZ
    E(f"s_add_u32 m0, s{S_W1K}, {base}")
    E("s_nop 0")
    E(f"buffer_load_dwordx4 v2, {sr(W1)}, s{S_WK} offen lds")
    E(f"s_add_u32 m0, s{S_W1K}, {base + 8192}")
    E("s_nop 0")
    E(f"buffer_load_dwordx4 v3, {sr(WU)}, s{S_WK} offen lds")
    E(f"s_add_u32 s{S_WK}, s{S_WK}, {32 * WROW}")
    E(f"s_cmp_eq_u32 s{S_WK}, {512 * WROW}")
    E(f"s_cselect_b32 s{S_WK}, 0, s{S_WK}")
    vm.issue(("w", s), 2)


def f_prologue():
    E(f"s_cmp_ge_u32 s2, {256 if O.no_f else 512}")
    E("s_cbranch_scc1 L_end")
    if O.diag_span:
        E("s_memrealtime s[92:93]")
        E("s_waitcnt lgkmcnt(0)")
    stamp(0)
    E(f"s_load_dwordx2 s[{X}:{X+1}], s[0:1], 0")
    E(f"s_load_dwordx2 s[{W1}:{W1+1}], s[0:1], 32")
    E(f"s_load_dwordx2 s[{WU}:{WU+1}], s[0:1], 40")
    E(f"s_load_dwordx2 s[{WS}:{WS+1}], s[0:1], 80")
    E(f"s_load_dwordx2 s[{DBG}:{DBG+1}], s[0:1], 72")
    E(f"s_load_dwordx2 s[{WD}:{WD+1}], s[0:1], 48")
    E(f"s_load_dwordx2 s[{WO}:{WO+1}], s[0:1], 16")
    E(f"s_load_dwordx2 s[{OUT}:{OUT+1}], s[0:1], 64")
    E(f"s_load_dwordx2 s[{GW}:{GW+1}], s[0:1], 56")
    E("v_lshrrev_b32 v8, 6, v0")
    E(f"s_bfe_u32 s{S_C}, s2, 0x50003")
    E(f"v_readfirstlane_b32 s{S_WAVE}, v8")
    E(f"s_cmp_ge_u32 s{S_C}, 28")
    E("s_cbranch_scc0 F_main")
    E("s_getpc_b64 s[4:5]")
    E.label("F_pc")
    E(f"s_add_u32 s4, s4, CODE_START - F_pc")
    E("s_addc_u32 s5, s5, -1")
    E("s_mov_b32 s6, CODE_END - CODE_START")
    E("s_mov_b32 s7, 0x20000")
    E("v_lshlrev_b32 v9, 7, v0")
    E("buffer_load_dword v120, v9, s[4:7], 0 offen")
    E("s_branch F_main")


L16, VB_, VW_, RB, RW, RB2, RW2, RWO, HT, GV, OUTA, EX0, EX1, RO, PFH, PFO = range(48, 64)
S_RT, S_DL, S_DB, S_HT, S_G, S_OL, S_OS, S_OUT, S_PH, S_PO, S_H0, S_H1, S_FL = range(70, 83) if False else (8, 9, 10, 11, 67, 96, 97, 98, 99, 100, 101, 63, 62)


def g2_setup():
    E(f"s_and_b32 s{S_RT}, s2, 7")
    if O.rswap:
        E(f"s_xor_b32 s{S_RT}, s{S_RT}, {O.rswap}")
    if O.rperm == 1:
        E(f"s_add_u32 s{S_T0}, s2, 1")
        E(f"s_and_b32 s{S_T0}, s{S_T0}, 3")
        E(f"s_lshl_b32 s{S_T0}, s{S_T0}, 1")
        E(f"s_lshr_b32 s{S_RT}, s{S_RT}, 2")
        E(f"s_add_u32 s{S_RT}, s{S_RT}, s{S_T0}")
    if O.rperm == 2:
        tab = [4, 0, 6, 2, 5, 1, 7, 3]
        word = sum(v << (4 * i) for i, v in enumerate(tab))
        E(f"s_lshl_b32 s{S_T0}, s{S_RT}, 2")
        E(f"s_lshr_b32 s{S_RT}, {word:#x}, s{S_T0}")
        E(f"s_and_b32 s{S_RT}, s{S_RT}, 7")
    E(f"s_lshl_b32 s{S_RT}, s{S_RT}, 2")
    E(f"s_and_b32 s{S_T1}, s{S_C}, 3")
    E(f"s_add_u32 s{S_RT}, s{S_RT}, s{S_T1}")
    E(f"s_lshr_b32 s{S_B}, s{S_C}, 2")
    E(f"s_mul_i32 s{S_DB}, s{S_RT}, {288 * 1024}")
    E(f"s_add_u32 s{S_DB}, s{S_DB}, {WS_HO:#x}")
    E(f"v_and_b32 v{L16}, 63, v0")
    E(f"v_lshlrev_b32 v{L16}, 4, v{L16}")
    E(f"s_and_b32 s{S_T0}, s{S_WAVE}, 1")
    E(f"s_lshr_b32 s{S_T2}, s{S_WAVE}, 1")
    E(f"s_mul_i32 s{S_T1}, s{S_T0}, 144")
    E(f"s_add_u32 s{S_T1}, s{S_T1}, s{S_T2}")
    E(f"s_lshl_b32 s{S_T1}, s{S_T1}, 10")
    E(f"v_add_u32 v{VB_}, s{S_T1}, v{L16}")
    E(f"s_lshl_b32 s{S_T1}, s{S_T0}, 2")
    E(f"s_add_u32 s{S_T1}, s{S_T1}, s{S_T2}")
    E(f"s_lshl_b32 s{S_DL}, s{S_T1}, 10")
    E("v_bfe_u32 v12, v0, 4, 1")
    E("v_lshlrev_b32 v13, 2, v12")
    E("v_xor_b32 v13, v13, v0")
    E("v_and_b32 v13, 7, v13")
    E("v_lshlrev_b32 v13, 4, v13")
    E("v_lshl_add_u32 v13, v9, 10, v13")
    E(f"s_lshl_b32 s{S_T1}, s{S_B}, 7")
    E(f"v_add_u32 v{VW_}, s{S_T1}, v13")
    E(f"s_lshr_b32 s{S_T3}, s{S_WAVE}, 2")
    E(f"s_lshl_b32 s{S_T1}, s{S_T0}, 12")
    E(f"s_lshl_b32 s{S_T2}, s{S_T3}, 11")
    E(f"s_add_u32 s{S_T1}, s{S_T1}, s{S_T2}")
    E(f"v_add_u32 v{RB}, s{S_T1}, v{L16}")
    E("v_bfe_u32 v13, v0, 2, 2")
    E("v_bfe_u32 v14, v0, 5, 1")
    E("v_lshl_add_u32 v15, v14, 2, v13")
    E("v_lshlrev_b32 v15, 7, v15")
    E("v_lshrrev_b32 v13, 1, v13")
    E(f"v_bfe_u32 v{HT}, v0, 7, 1")
    E(f"v_xor_b32 v13, v13, v{HT}")
    E("v_lshl_add_u32 v15, v13, 6, v15")
    E("v_lshl_add_u32 v15, v12, 5, v15")
    E("v_and_b32 v13, 3, v0")
    E("v_lshl_add_u32 v15, v13, 3, v15")
    E(f"s_lshl_b32 s{S_T1}, s{S_T3}, 12")
    E(f"s_add_u32 s{S_T1}, s{S_T1}, 8192")
    E(f"v_add_u32 v{RW}, s{S_T1}, v15")
    E(f"v_add_u32 v{RB2}, 0x10000, v{RB}")
    E(f"v_add_u32 v{RW2}, 0x10000, v{RW}")
    E(f"s_lshl_b32 s{S_T1}, s{S_T3}, 15")
    E(f"v_add_u32 v{RWO}, s{S_T1}, v15")
    E("v_and_b32 v13, 31, v0")
    E("v_bfe_u32 v15, v0, 6, 1")
    E("v_lshl_add_u32 v13, v15, 5, v13")
    E(f"v_lshlrev_b32 v{GV}, 2, v13")
    E("v_lshlrev_b32 v13, 10, v13")
    E("v_lshl_add_u32 v13, v14, 4, v13")
    E(f"v_lshl_add_u32 v13, v{HT}, 6, v13")
    E(f"s_lshl_b32 s{S_T1}, s{S_T3}, 5")
    E(f"v_add_u32 v{OUTA}, s{S_T1}, v13")
    E(f"s_lshl_b32 s{S_OUT}, s{S_RT}, 16")
    E(f"s_lshl_b32 s{S_T1}, s{S_B}, 7")
    E(f"s_add_u32 s{S_OUT}, s{S_OUT}, s{S_T1}")
    E(f"s_lshl_b32 s{S_G}, s{S_RT}, 8")
    E(f"s_add_u32 s{S_G}, s{S_G}, {WS_G:#x}")
    E(f"s_lshl_b32 s{S_T1}, s{S_B}, 3")
    E(f"s_add_u32 s{S_T1}, s{S_T1}, s{S_WAVE}")
    E(f"s_mul_i32 s{S_T1}, s{S_T1}, 1792")
    E(f"s_add_u32 s{S_HT}, s{S_T1}, s{S_DB}")
    E("v_and_b32 v13, 15, v0")
    E(f"v_lshlrev_b32 v{PFH}, 6, v13")
    E("v_lshlrev_b32 v13, 7, v13")
    E(f"v_mul_u32_u24 v12, {144 * 1024}, v12")
    E(f"v_add_u32 v{HT}, v13, v12")
    E(f"s_lshl_b32 s{S_T1}, s{S_WAVE}, 11")
    E(f"s_add_u32 s{S_T1}, s{S_T1}, 65536")
    E(f"s_xor_b32 s{S_T2}, s{S_T1}, 8192")
    E(f"v_add_u32 v{EX0}, s{S_T1}, v{L16}")
    E(f"v_add_u32 v{EX1}, s{S_T2}, v{L16}")
    E(f"s_bfe_u32 s{S_T2}, s{S_WAVE}, 0x10001")
    E(f"s_lshl_b32 s{S_T2}, s{S_T2}, 4")
    E(f"s_add_u32 s{S_T2}, s{S_T2}, s{S_T3}")
    E(f"s_lshl_b32 s{S_OL}, s{S_T0}, 5")
    E(f"s_add_u32 s{S_OL}, s{S_OL}, s{S_T2}")
    E(f"s_lshl_b32 s{S_OL}, s{S_OL}, 10")
    E(f"s_mul_i32 s{S_T1}, s{S_T0}, 144")
    E(f"s_add_u32 s{S_T1}, s{S_T1}, s{S_T2}")
    E(f"s_add_u32 s{S_T1}, s{S_T1}, 112")
    E(f"s_lshl_b32 s{S_T1}, s{S_T1}, 10")
    E(f"s_add_u32 s{S_OS}, s{S_DB}, s{S_T1}")
    E(f"s_lshl_b32 s{S_T0}, s{S_T0}, 15")
    E(f"s_lshl_b32 s{S_T3}, s{S_T3}, 14")
    E(f"s_add_u32 s{S_T0}, s{S_T0}, s{S_T3}")
    E(f"v_add_u32 v{RO}, s{S_T0}, v{L16}")
    E(f"v_lshlrev_b32 v{PFO}, 6, v0")
    E(f"s_lshr_b32 s{S_PH}, s{S_RT}, 1")
    E(f"s_lshl_b32 s{S_PH}, s{S_PH}, 10")
    E(f"s_add_u32 s{S_PH}, s{S_PH}, {WS_FH:#x}")
    E(f"s_lshl_b32 s{S_PO}, s{S_RT}, 12")
    E(f"s_add_u32 s{S_PO}, s{S_PO}, {WS_FO:#x}")


def f_main():
    E.label("F_main")
    srd(X, 0x200000); srd(W1, 512 * WROW); srd(WU, 512 * WROW); srd(WS, WS_SIZE); srd(DBG, 256)
    srd(WD, 1792 * 1024); srd(WO, 512 * 1024); srd(OUT, 0x200000); srd(GW, 1024)
    E(f"s_lshl_b32 s{S_W1K}, s{S_WAVE}, 10")
    E(f"s_setprio {O.prio_f if O.prio_up < 0 else O.prio_up}")
    E("v_lshrrev_b32 v9, 3, v0")
    E("v_lshrrev_b32 v10, 4, v0")
    E("v_xor_b32 v11, v10, v0")
    E("v_and_b32 v11, 7, v11")
    E("v_lshlrev_b32 v11, 4, v11")
    E("v_lshl_add_u32 v1, v9, 10, v11")
    g2_setup()
    E("s_waitcnt lgkmcnt(0)")
    if O.warm_steps:
        E(f"s_cmp_lt_u32 s{S_WAVE}, 4")
        E(f"s_cselect_b32 s4, s{W1}, s{WU}")
        E(f"s_cselect_b32 s5, s{W1+1}, s{WU+1}")
        E(f"s_mul_i32 s{S_T0}, s{S_C}, {WROW}")
        E(f"s_bfe_u32 s{S_T1}, s2, 0x10002")
        E(f"s_mul_i32 s{S_T1}, s{S_T1}, 1792")
        E(f"s_add_u32 s{S_T0}, s{S_T0}, s{S_T1}")
        E(f"s_and_b32 s{S_T1}, s{S_WAVE}, 3")
        E(f"s_mul_i32 s{S_T1}, s{S_T1}, 448")
        E(f"s_add_u32 s{S_T0}, s{S_T0}, s{S_T1}")
        E(f"s_add_u32 s4, s4, s{S_T0}")
        E("s_addc_u32 s5, s5, 0")
        E(f"s_mov_b32 s{S_CNT}, {O.warm_steps}")
        E.label("F_warm")
        for i in range(7):
            E(f"s_load_dword s6, s[4:5], {64*i}")
        E(f"s_add_u32 s4, s4, {32 * WROW}")
        E("s_addc_u32 s5, s5, 0")
        E(f"s_sub_u32 s{S_CNT}, s{S_CNT}, 1")
        E(f"s_cmp_lg_u32 s{S_CNT}, 0")
        E("s_cbranch_scc1 F_warm")
        E("s_waitcnt lgkmcnt(0)")
    if O.tlb:
        E(f"s_cmp_lg_u32 s{S_WAVE}, 1")
        E("s_cbranch_scc1 F_notlb")
        E("v_and_b32 v12, 63, v0")
        E(f"v_lshlrev_b32 v12, {O.tlb}, v12")
        for k in range(0, 0x1000000, 64 << O.tlb):
            E(f"s_mov_b32 s{S_T0}, {k}")
            E(f"buffer_load_dword v15, v12, {sr(WS)}, s{S_T0} offen")
        for b in (OUT, WD, WO):
            E(f"buffer_load_dword v15, v12, {sr(b)}, 0 offen")
        E.label("F_notlb")
    if O.f_touch:
        E(f"s_lshl_b32 s{S_T0}, s{S_C}, 2")
        E(f"s_and_b32 s{S_T1}, s{S_WAVE}, 3")
        E(f"s_add_u32 s{S_T0}, s{S_T0}, s{S_T1}")
        if O.t_rows == 192:
            E(f"s_lshr_b32 s{S_T2}, s{S_T0}, 1")
            E(f"s_add_u32 s{S_T2}, s{S_T2}, 128")
            E(f"s_sub_u32 s{S_T2}, s{S_T2}, s{S_T0}")
            E(f"s_mul_i32 s{S_T2}, s{S_T2}, 3584")
            E(f"s_and_b32 s{S_T3}, s{S_T0}, 1")
            E(f"s_mul_i32 s{S_T3}, s{S_T3}, 896")
            E(f"s_add_u32 s{S_T2}, s{S_T2}, s{S_T3}")
        else:
            E(f"s_mov_b32 s{S_T2}, {128 * 3584}")
        E(f"s_mul_i32 s{S_T0}, s{S_T0}, 3584")
        E(f"s_bfe_u32 s{S_T1}, s2, 0x10002")
        E(f"s_mul_i32 s{S_T1}, s{S_T1}, 1792")
        E(f"s_add_u32 s{S_T0}, s{S_T0}, s{S_T1}")
        E("v_bfe_u32 v12, v0, 4, 1")
        E(f"v_mul_u32_u24 v12, s{S_T2}, v12")
        E("v_and_b32 v13, 15, v0")
        E("v_lshl_add_u32 v12, v13, 7, v12")
        E(f"v_add_u32 v13, s{S_T0}, v12")
        E(f"s_cmp_lt_u32 s{S_WAVE}, 4")
        E(f"s_cselect_b32 s4, s{W1}, s{WU}")
        E(f"s_cselect_b32 s5, s{W1+1}, s{WU+1}")
        E(f"s_mov_b32 s6, {512 * WROW}")
        E("s_mov_b32 s7, 0x20000")
        if O.f_touch == 1:
            E("s_mov_b64 exec, 1")
            E(f"buffer_load_dword v15, v13, s[4:7], 0 offen")
            E("s_waitcnt vmcnt(0)")
            E(f"s_mov_b64 exec, {dict([(256, 0x3fff3fff), (192, 0x7f3fff), (128, 0x3fff)])[O.t_rows]:#x}")
            E(f"buffer_load_dword v15, v13, s[4:7], 0 offen{' nt' if O.nt0 & 2 else ''}")
            E("s_mov_b64 exec, -1")
    E(f"s_cmp_ge_u32 s{S_C}, 28")
    E("s_cbranch_scc1 F_gate")
    E(f"s_and_b32 s{S_T0}, s{S_C}, 3")
    E(f"s_lshr_b32 s{S_T1}, s{S_C}, 2")
    E(f"s_and_b32 s{S_A}, s2, 3")
    E(f"s_lshl_b32 s{S_A}, s{S_A}, 2")
    E(f"s_add_u32 s{S_A}, s{S_A}, s{S_T0}")
    E(f"s_bfe_u32 s{S_B}, s2, 0x10002")
    E(f"s_mul_i32 s{S_B}, s{S_B}, 7")
    E(f"s_add_u32 s{S_B}, s{S_B}, s{S_T1}")
    E(f"s_lshl_b32 s{S_T0}, s{S_T0}, 1")
    E(f"s_add_u32 s{S_T0}, s{S_T0}, s{S_T1}")
    E(f"s_and_b32 s{S_T0}, s{S_T0}, {7 if O.f_rot else 0}")
    E(f"s_lshl_b32 s{S_XK}, s{S_T0}, 7")
    E(f"s_mul_i32 s{S_WK}, s{S_T0}, {64 * WROW}")
    E(f"s_lshl_b32 s{S_XB}, s{S_A}, 17")
    E(f"v_mul_u32_u24 v9, {WROW}, v10")
    E("v_bfe_u32 v11, v0, 1, 3")
    E("v_and_b32 v10, 3, v10")
    E("v_xor_b32 v11, v11, v10")
    E("v_lshl_add_u32 v9, v11, 5, v9")
    E("v_and_b32 v11, 1, v0")
    E("v_lshl_add_u32 v9, v11, 4, v9")
    E(f"s_lshl_b32 s{S_T0}, s{S_B}, 8")
    E(f"v_add_u32 v2, s{S_T0}, v9")
    E("v_xor_b32 v3, 128, v2")
    vm = VM()

    def fill():
        f_dma_x(0, vm); f_dma_w(0, vm); f_dma_w(1, vm); f_dma_x(1, vm); f_dma_w(2, vm)

    if O.f_fill_early:
        fill()
    E("v_and_b32 v8, 31, v0")
    E("v_lshrrev_b32 v9, 1, v8")
    E("v_and_b32 v9, 7, v9")
    E("v_bfe_u32 v10, v0, 5, 1")
    E("v_xor_b32 v9, v9, v10")
    E("v_lshlrev_b32 v9, 4, v9")
    E("v_lshl_add_u32 v9, v8, 7, v9")
    E("v_bfe_u32 v8, v0, 6, 1")
    E("v_lshl_add_u32 v4, v8, 13, v9")
    for ks in (1, 2, 3):
        E(f"v_xor_b32 v{4+ks}, {32*ks}, v4")
    E("v_bfe_u32 v8, v0, 2, 2")
    E("v_lshl_add_u32 v9, v10, 3, v8")
    E("v_lshlrev_b32 v9, 8, v9")
    E("v_bfe_u32 v10, v0, 4, 1")
    E("v_lshl_add_u32 v9, v10, 13, v9")
    E("v_lshlrev_b32 v10, 2, v10")
    E("v_xor_b32 v8, v8, v10")
    E("v_lshrrev_b32 v10, 7, v0")
    E("v_lshlrev_b32 v10, 1, v10")
    E("v_xor_b32 v8, v8, v10")
    E("v_lshl_add_u32 v9, v8, 5, v9")
    E("v_and_b32 v8, 3, v0")
    E("v_lshl_add_u32 v9, v8, 3, v9")
    E(f"v_add_u32 v8, {F_WS0}, v9")
    E("v_xor_b32 v9, 32, v8")
    E(f"s_and_b32 s{S_T0}, s{S_WAVE}, 1")
    E(f"s_lshl_b32 s{S_T0}, s{S_T0}, 1")
    E(f"s_lshl_b32 s{S_T1}, s{S_A}, 2")
    E(f"s_add_u32 s{S_T0}, s{S_T0}, s{S_T1}")
    E(f"s_mul_i32 s{S_T0}, s{S_T0}, 144")
    E(f"s_lshl_b32 s{S_T1}, s{S_B}, 3")
    E(f"s_add_u32 s{S_T0}, s{S_T0}, s{S_T1}")
    E(f"s_and_b32 s{S_T1}, s{S_WAVE}, 6")
    E(f"s_add_u32 s{S_T0}, s{S_T0}, s{S_T1}")
    E(f"s_lshl_b32 s{S_T0}, s{S_T0}, 10")
    E(f"s_add_u32 s{S_H0}, s{S_T0}, {WS_HO:#x}")
    E(f"s_add_u32 s{S_H1}, s{S_H0}, {144 * 1024}")
    E(f"s_lshl_b32 s{S_T0}, s{S_A}, 10")
    E(f"s_lshl_b32 s{S_T1}, s{S_B}, 6")
    E(f"s_add_u32 s{S_T0}, s{S_T0}, s{S_T1}")
    E(f"s_add_u32 s{S_FL}, s{S_T0}, {WS_FH:#x}")
    E("v_mov_b32 v12, 1.0")
    E("v_lshlrev_b32 v14, 7, v0")
    E(f"v_lshlrev_b32 v13, 3, v{L16}")
    E(f"s_cmp_lg_u32 s{S_WAVE}, 0")
    E("s_cbranch_scc1 F_go")
    wait_start("F_tag", 1 if O.hint1 >= 0 else 0)
    E.label("F_go")
    if not O.f_fill_early:
        E("s_barrier")
        if O.f_touch == 3:
            f_dma_x(0, vm); f_dma_w(0, vm)
        if O.f_touch >= 2:
            E("s_mov_b64 exec, 0x3fff3fff")
            E(f"buffer_load_dword v15, v13, s[4:7], 0 offen{' nt' if O.nt0 & 2 else ''}")
            E("s_mov_b64 exec, -1")
            vm.issue("t")
        if O.f_touch == 3:
            f_dma_w(1, vm); f_dma_x(1, vm); f_dma_w(2, vm)
        else:
            fill()
    stamp(1)

    def reads(s, kk):
        b = 16 + 16 * kk
        u = s // 2
        L = []
        for i in (0, 1):
            L.append(f"ds_read_b128 {vr(b+4*i,4)}, v{4 + 2*(s&1) + kk} offset:{(u % 2) * F_XS + i * 4096}")
            for q in (0, 1):
                L.append(f"ds_read_b64_tr_b16 {vr(b+8+4*i+2*q,2)}, v{8+i} offset:{(s % 3) * F_WSZ + kk * 4096 + q * 1024}")
        return L

    def mfmas(s, kk):
        b = 16 + 16 * kk
        L = []
        for rbk, bb in ((0, 0), (0, 1), (1, 1), (1, 0)):
            acc = vr(64 + 16 * (2 * rbk + bb), 16)
            c = "0" if (s == 0 and kk == 0) else acc
            L.append(f"v_mfma_f32_32x32x16_bf16 {acc}, {vr(b+8+4*bb,4)}, {vr(b+4*rbk,4)}, {c}")
        return L

    E(f"s_waitcnt vmcnt({vm.need(('x',0),('w',0))})")
    E("s_barrier")
    stamp(2)
    for x in reads(0, 0):
        E(x)
    def paced(s, kk):
        M, R = mfmas(s, kk), reads(s, kk)
        [E(x) for x in R[:3]]; E("s_waitcnt lgkmcnt(0)"); E(M[0])
        [E(x) for x in R[4:]]; E("s_waitcnt lgkmcnt(0)"); E(M[1])
        E(R[3]); E("s_waitcnt lgkmcnt(0)"); E(M[2]); E(M[3])

    for s in range(16):
        if s > O.pace_from:
            paced(s, 0)
            paced(s, 1)
            if s < 15:
                E(f"s_waitcnt vmcnt({vm.need(('x',(s+1)//2),('w',s+1))})")
                E("s_barrier")
                if s + 3 <= 15:
                    f_dma_w(s + 3, vm)
                if s % 2 == 1 and (s + 1) // 2 + 1 <= 7:
                    f_dma_x((s + 1) // 2 + 1, vm)
                if s in (3, 7, 11):
                    stamp(10 + s // 4)
            continue
        if O.boost_mask and (s == 0 or ((O.boost_mask >> s) ^ (O.boost_mask >> (s - 1))) & 1):
            E(f"s_setprio {O.prio_boost if (O.boost_mask >> s) & 1 else O.prio_f}")
        M, R = mfmas(s, 0), reads(s, 1)
        E("s_waitcnt lgkmcnt(0)")
        E(M[0]); [E(x) for x in R[:3]]; E(M[1]); [E(x) for x in R[3:]]; E(M[2]); E(M[3])
        M = mfmas(s, 1)
        if s == 2 and O.hint1 >= 0 and O.hold:
            E("s_waitcnt lgkmcnt(0)")
            [E(x) for x in M]
            E(f"s_cmp_lg_u32 s{S_WAVE}, 0")
            E("s_cbranch_scc1 F_go2")
            wait_start("F_tag2", 0, False)
            E.label("F_go2")
            E("s_barrier")
            f_dma_w(3, vm); f_dma_w(4, vm); f_dma_x(2, vm); f_dma_w(5, vm)
            E(f"s_waitcnt vmcnt({vm.need(('w', 3))})")
            E("s_barrier")
            [E(x) for x in reads(3, 0)]
            continue
        if s < 15:
            E(f"s_waitcnt vmcnt({vm.need(('x',(s+1)//2),('w',s+1))}) lgkmcnt(0)")
            E("s_barrier")
            R = reads(s + 1, 0) if s + 1 <= O.pace_from else []
            E(M[0]); [E(x) for x in R[:3]]; E(M[1]); [E(x) for x in R[3:]]; E(M[2])
            hold = O.hint1 >= 0 and O.hold and s < 2
            if s + 3 <= 15 and not hold:
                f_dma_w(s + 3, vm)
            E(M[3])
            if s % 2 == 1 and (s + 1) // 2 + 1 <= 7 and not hold:
                f_dma_x((s + 1) // 2 + 1, vm)
            if O.wd_step <= s < O.wd_step + O.wd_parts:
                E(f"s_lshl_b32 s{S_T0}, s{S_C}, 16")
                if O.wd_parts > 1:
                    n = 64 // O.wd_parts
                    m = ((1 << n) - 1) << (n * (s - O.wd_step))
                    E(f"s_mov_b32 exec_lo, {m & 0xffffffff:#x}")
                    E(f"s_mov_b32 exec_hi, {m >> 32:#x}")
                E(f"buffer_load_dword v15, v14, {sr(WD)}, s{S_T0} offen")
                if O.wd_parts > 1:
                    E("s_mov_b64 exec, -1")
                vm.issue("wd")
            if s == O.wo_step:
                E(f"s_lshl_b32 s{S_T0}, s{S_C}, 3")
                E(f"s_add_u32 s{S_T0}, s{S_T0}, s{S_WAVE}")
                E(f"s_mul_i32 s{S_T0}, s{S_T0}, {19 * 128}")
                E("s_mov_b64 exec, 0x7ffff")
                E(f"buffer_load_dword v15, v13, {sr(WO)}, s{S_T0} offen")
                E("s_mov_b64 exec, -1")
                vm.issue("wo")
            if s == O.f_touch2:
                E(f"s_mov_b32 s{S_T0}, {256 * 3584}")
                E("s_mov_b64 exec, 0x3fff3fff")
                E(f"buffer_load_dword v15, v13, s[4:7], s{S_T0} offen")
                E("s_mov_b64 exec, -1")
                vm.issue("t2")
            if s in (3, 7, 11) and not O.dn_stamps:
                stamp(10 + s // 4)
        else:
            E("s_waitcnt lgkmcnt(0)")
            [E(x) for x in M]
    stamp(3)
    if O.a_exit:
        flush_stamps(range(13), "F_st0")
        E("s_endpgm")
    E(f"s_setprio {O.prio_silu}")
    E("s_barrier")
    if not O.wo_batch:
        wo_stage()
    E(f"s_mov_b32 s{S_T2}, {NLOG2E:#x}")
    E(f"s_mov_b32 s{S_T3}, {NLOG2E:#x}")
    if O.wo_batch:
        E("s_nop 7")
    for tl in range(4):
        a = 64 + 16 * tl
        t = 16 + 8 * (tl & 1)
        pk = 32 + 4 * tl
        for i in range(4):
            E(f"v_pk_mul_f32 {vr(t+2*i,2)}, {vr(a+2*i,2)}, s[{S_T2}:{S_T3}]")
        for i in range(8):
            E(f"v_exp_f32 v{t+i}, v{t+i}")
        for i in range(4):
            E(f"v_pk_mul_f32 {vr(a+2*i,2)}, {vr(a+2*i,2)}, {vr(a+8+2*i,2)}")
        for i in range(4):
            E(f"v_pk_add_f32 {vr(t+2*i,2)}, {vr(t+2*i,2)}, v[12:13] op_sel_hi:[1,0]")
        for i in range(8):
            E(f"v_rcp_f32 v{t+i}, v{t+i}")
        E("s_nop 0")
        for i in range(4):
            E(f"v_pk_mul_f32 {vr(a+2*i,2)}, {vr(a+2*i,2)}, {vr(t+2*i,2)}")
        for i in range(4):
            E(f"v_cvt_pk_bf16_f32 v{pk+i}, v{a+2*i}, v{a+2*i+1}")
        E(f"buffer_store_dwordx4 {vr(pk,4)}, v{L16}, {sr(WS)}, s{(S_H0, S_H1)[tl >> 1]} offen offset:{(tl & 1) * 1024} sc0 sc1")
        if O.wo_batch:
            for i in (2 * tl, 2 * tl + 1):
                E(f"s_add_u32 m0, s{S_W1K}, {i * 8192}")
                E(f"s_mov_b32 s{S_T0}, {i * 65536}")
                E(f"buffer_load_dwordx4 v{VW_}, {sr(WO)}, s{S_T0} offen lds")
    E.label("F_pub")
    E("s_waitcnt vmcnt(0)")
    E("s_barrier")
    stamp(4)
    E(f"s_cmp_lg_u32 s{S_WAVE}, 0")
    E("s_cbranch_scc1 F_wait2")
    put_flag(S_FL)
    E("s_nop 0")
    E.label("F_wait2")
    wf = lambda k: (4 * k) if k < 4 else (80 + 4 * (k - 4))
    for k in range(16):
        for q in (0, 1):
            E(f"ds_read_b64_tr_b16 {vr(wf(k) + 2*q, 2)}, v{RWO} offset:{k * 2048 + q * 1024}")
    NS = O.dn_ns
    E("s_waitcnt lgkmcnt(0)")
    E("s_barrier")
    for st in range(NS):
        E(f"s_add_u32 m0, s{S_W1K}, {st * 16384 + 8192}")
        E(f"s_mov_b32 s{S_T0}, {st * 65536}")
        E(f"buffer_load_dwordx4 v{VW_}, {sr(WD)}, s{S_T0} offen lds")
    E(f"s_cmp_lg_u32 s{S_WAVE}, 0")
    E("s_cbranch_scc1 F_wait2b")
    poll("F_pollh", PFH, f"s{S_PH}", False, 16, O.sl_h)
    E.label("F_wait2b")
    E("s_barrier")
    stamp(5)
    vd = VM()

    def dma(st, skip_w=False):
        slot = st % NS
        E(f"s_add_u32 m0, s{S_DL}, {slot * 16384}")
        E(f"s_add_u32 s{S_T0}, s{S_DB}, {st * 4096}")
        E(f"buffer_load_dwordx4 v{VB_}, {sr(WS)}, s{S_T0} offen sc1 lds")
        vd.issue(st)
        if skip_w:
            return
        E(f"s_add_u32 m0, s{S_W1K}, {slot * 16384 + 8192}")
        E(f"s_mov_b32 s{S_T0}, {st * 65536}")
        E(f"buffer_load_dwordx4 v{VW_}, {sr(WD)}, s{S_T0} offen lds")
        vd.issue(st)

    def greads(st):
        slot = st % NS
        b = 16 + 16 * (st & 1)
        vb, vw, base = (RB, RW, slot * 16384) if slot < 4 else (RB2, RW2, 0)
        L = []
        for kk in (0, 1):
            L.append(f"ds_read_b128 {vr(b+4*kk,4)}, v{vb} offset:{base + kk * 1024}")
            for q in (0, 1):
                L.append(f"ds_read_b64_tr_b16 {vr(b+8+4*kk+2*q,2)}, v{vw} offset:{base + kk * 2048 + q * 1024}")
        return L

    for t in range(O.ht_pos):
        dma(t, True)
    E("s_mov_b64 exec, 0x3fff3fff")
    E(f"buffer_load_dword v{HT}, v{HT}, {sr(WS)}, s{S_HT} offen sc1")
    E("s_mov_b64 exec, -1")
    E(f"buffer_load_dword v{GV}, v{GV}, {sr(WS)}, s{S_G} offen sc1")
    vd.issue("h", 2)
    for t in range(O.ht_pos, NS):
        dma(t, True)
    issued = NS
    E(f"s_setprio {O.prio_dn}")
    bars = [t for t in range(27) if t >= O.dn_grp_until or t % O.dn_grp == O.dn_grp - 1]
    E(f"s_waitcnt vmcnt({vd.need(*range(0, bars[0] + 1))})")
    E("s_barrier")
    [E(x) for x in greads(0)]
    for t in range(28):
        b = 16 + 16 * (t & 1)
        M = [f"v_mfma_f32_32x32x16_bf16 v[64:79], {vr(b+8+4*kk,4)}, {vr(b+4*kk,4)}, {'0' if t + kk == 0 else 'v[64:79]'}" for kk in (0, 1)]
        if t == O.dn_low:
            E(f"s_setprio {O.prio_f_late}")
        if O.dn_stamps and t in (4, 12, 20):
            stamp(10 + t // 8)
        if t in bars:
            nxt = min([x for x in bars if x > t] + [27])
            E(f"s_waitcnt vmcnt({vd.need(*range(t + 1, nxt + 1))}) lgkmcnt(0)")
            E("s_barrier")
        else:
            E("s_waitcnt lgkmcnt(0)")
        R = greads(t + 1) if t < 27 else []
        E(M[0]); [E(x) for x in R[:3]]; E(M[1]); [E(x) for x in R[3:]]
        if t in bars:
            while issued <= min(27, t + NS):
                dma(issued)
                issued += 1
    stamp(6)
    E(f"s_cmp_lg_u32 s{S_WAVE}, 0")
    E("s_cbranch_scc1 F_wait3")
    E("s_setprio 3")
    poll("F_pollo", PFO, f"s{S_PO}", False, 16, O.sl_o)
    E.label("F_wait3")
    E("s_setprio 3")
    E("s_barrier")
    stamp(7)
    for i in range(8):
        E(f"s_add_u32 m0, s{S_OL}, {i * 2048}")
        E(f"s_add_u32 s{S_T0}, s{S_OS}, {i * 2048}")
        E(f"buffer_load_dwordx4 v{L16}, {sr(WS)}, s{S_T0} offen sc1 lds")
    E(f"v_sub_f32 v{HT}, 1.0, v{GV}")
    for i in range(16):
        E(f"v_mul_f32 v{64+i}, v{HT}, v{64+i}")
    for part in range(2):
        E(f"s_waitcnt vmcnt({4 - 4 * part})")
        E("s_barrier")
        for k in range(4):
            E(f"ds_read_b128 {vr(32 + 4*k, 4)}, v{RO} offset:{(8 * part + k) * 1024}")
        for k in range(8):
            E(f"s_waitcnt lgkmcnt({min(3, 7 - k)})")
            E(f"v_mfma_f32_32x32x16_bf16 v[16:31], {vr(wf(8*part + k), 4)}, {vr(32 + 4*(k % 4), 4)}, {'0' if part + k == 0 else 'v[16:31]'}")
            if k < 4:
                E(f"ds_read_b128 {vr(32 + 4*k, 4)}, v{RO} offset:{(8 * part + 4 + k) * 1024}")
    stamp(8)
    E(f"s_cmp_ge_u32 s{S_WAVE}, 4")
    E("s_cbranch_scc1 F_hi")
    for hi in (0, 1):
        keep, send = (0, 8) if not hi else (8, 0)
        if hi:
            E.label("F_hi")
        E("s_nop 9")
        for i in range(8):
            E(f"v_fmac_f32 v{64+send+i}, v{GV}, v{16+send+i}")
        E(f"ds_write_b128 v{EX0}, {vr(64+send,4)}")
        E(f"ds_write_b128 v{EX0}, {vr(68+send,4)} offset:1024")
        for i in range(8):
            E(f"v_fmac_f32 v{64+keep+i}, v{GV}, v{16+keep+i}")
        E("s_waitcnt lgkmcnt(0)")
        E("s_barrier")
        E(f"ds_read_b128 v[20:23], v{EX1}")
        E(f"ds_read_b128 v[24:27], v{EX1} offset:1024")
        E("s_waitcnt lgkmcnt(1)")
        for i in range(8):
            if i == 4:
                E("s_waitcnt lgkmcnt(0)")
            E(f"v_add_f32 v{64+keep+i}, v{64+keep+i}, v{20+i}")
        for i in range(4):
            E(f"v_cvt_pk_bf16_f32 v{16+i}, v{64+keep+2*i}, v{65+keep+2*i}")
        if not hi:
            E("s_branch F_x")
    E.label("F_x")
    E("s_nop 1")
    E("v_permlane32_swap_b32 v16, v18")
    E("v_permlane32_swap_b32 v17, v19")
    E(f"buffer_store_dwordx4 v[16:19], v{OUTA}, {sr(OUT)}, s{S_OUT} offen")
    stamp(9)
    flush_stamps(range(13), "F_st")
    if O.diag_span:
        E.label("F_diag")
        E("s_memrealtime s[4:5]")
        E("s_waitcnt lgkmcnt(0)")
        E("s_sub_u32 s4, s4, s92")
        E(f"s_cmp_lt_u32 s4, {O.diag_span}")
        E("s_cbranch_scc1 F_diag")
    E("s_endpgm")

    E.label("F_gate")
    if O.a_exit:
        E("s_endpgm")
    E(f"s_cmp_lg_u32 s{S_WAVE}, 0")
    E("s_cbranch_scc1 F_gate1")
    wait_start("F_tag3", 0 if O.hint_step == 17 else 2)
    E.label("F_gate1")
    E("s_setprio 3")
    E("s_barrier")
    E(f"s_and_b32 s{S_A}, s2, 7")
    E(f"s_lshl_b32 s{S_A}, s{S_A}, 2")
    E(f"s_add_u32 s{S_A}, s{S_A}, s{S_C}")
    E(f"s_sub_u32 s{S_A}, s{S_A}, 28")
    E(f"s_lshl_b32 s{S_T0}, s{S_A}, 16")
    E("v_and_b32 v10, 7, v0")
    E("v_lshlrev_b32 v10, 4, v10")
    E("v_lshl_add_u32 v11, v9, 10, v10")
    for i in range(8):
        E(f"buffer_load_dwordx4 {vr(64+4*i,4)}, v10, {sr(GW)}, 0 offen offset:{128*i}")
    for i in range(8):
        E(f"buffer_load_dwordx4 {vr(16+4*i,4)}, v11, {sr(X)}, s{S_T0} offen offset:{128*i}")
        if i % O.g_batch == O.g_batch - 1:
            E("s_waitcnt vmcnt(0)")
    E("v_mov_b32 v12, 0")
    E("v_mov_b32 v13, 0")
    E("s_waitcnt vmcnt(0)")
    for i in range(32):
        E(f"v_dot2_f32_bf16 v{12 + (i & 1)}, v{16+i}, v{64+i}, v{12 + (i & 1)}")
        if i % 2 == 1:
            E("s_nop 0")
    E("s_nop 2")
    E("v_add_f32 v12, v12, v13")
    for ctl in ("quad_perm:[1,0,3,2]", "quad_perm:[2,3,0,1]", "row_half_mirror"):
        E("s_nop 1")
        E(f"v_add_f32_dpp v12, v12, v12 {ctl} row_mask:0xf bank_mask:0xf")
    E(f"v_mul_f32 v12, {NLOG2E:#x}, v12")
    E("v_exp_f32 v12, v12")
    E("s_nop 0")
    E("v_add_f32 v12, 1.0, v12")
    E("v_rcp_f32 v12, v12")
    E("v_lshlrev_b32 v11, 2, v9")
    E(f"s_lshl_b32 s{S_T0}, s{S_A}, 8")
    E(f"s_add_u32 s{S_T0}, s{S_T0}, {WS_G:#x}")
    E("v_cmp_eq_u32 vcc, 0, v10")
    E("s_nop 4")
    E("s_mov_b64 exec, vcc")
    E(f"buffer_store_dword v12, v11, {sr(WS)}, s{S_T0} offen sc0 sc1")
    E("s_mov_b64 exec, -1")
    for i in (1, 2, 3, 10, 11, 12):
        stamp(i)
    E(f"s_lshr_b32 s{S_T0}, s{S_A}, 1")
    E(f"s_lshl_b32 s{S_T0}, s{S_T0}, 10")
    E(f"s_and_b32 s{S_T1}, s{S_A}, 1")
    E(f"s_lshl_b32 s{S_T1}, s{S_T1}, 6")
    E(f"s_add_u32 s{S_T0}, s{S_T0}, s{S_T1}")
    E(f"s_add_u32 s{S_FL}, s{S_T0}, {WS_FH + 14 * 64:#x}")
    wo_stage(O.g_batch)
    E("s_branch F_pub")


def out_addr():
    E("v_lshlrev_b32 v8, 10, v8")
    E("v_bfe_u32 v9, v0, 5, 1")
    E("v_lshl_add_u32 v8, v9, 4, v8")
    E("v_bfe_u32 v9, v0, 7, 1")
    E("v_lshl_add_u32 v8, v9, 6, v8")
    E("v_lshrrev_b32 v9, 8, v0")
    E("v_lshl_add_u32 v8, v9, 5, v8")
    E(f"s_lshl_b32 s{S_XK}, s{S_A}, 16")
    E(f"s_lshl_b32 s{S_T1}, s{S_B}, 7")
    E(f"s_add_u32 s{S_XK}, s{S_XK}, s{S_T1}")
    E(f"s_lshl_b32 s{S_T1}, s{S_WAVE}, 11")
    E(f"s_add_u32 s{S_T1}, s{S_T1}, 65536")
    E(f"s_xor_b32 s{S_T2}, s{S_T1}, 8192")
    E(f"v_add_u32 v6, s{S_T1}, v12")
    E(f"v_add_u32 v7, s{S_T2}, v12")


def voff_w():
    E("v_bfe_u32 v2, v0, 4, 1")
    E("v_lshlrev_b32 v2, 2, v2")
    E("v_xor_b32 v2, v2, v0")
    E("v_and_b32 v2, 7, v2")
    E("v_lshlrev_b32 v2, 4, v2")
    E("v_lshrrev_b32 v11, 3, v0")
    E("v_lshl_add_u32 v2, v11, 10, v2")
    E(f"s_lshr_b32 s{S_T1}, s{S_C}, 2")
    E(f"s_lshl_b32 s{S_T1}, s{S_T1}, 7")
    E(f"v_add_u32 v2, s{S_T1}, v2")


def wo_stage(batch=0):
    for i in range(8):
        E(f"s_add_u32 m0, s{S_W1K}, {i * 8192}")
        E(f"s_mov_b32 s{S_T0}, {i * 65536}")
        E(f"buffer_load_dwordx4 v{VW_}, {sr(WO)}, s{S_T0} offen lds")
        if batch and i % batch == batch - 1:
            E("s_waitcnt vmcnt(0)")


def _m_fix_base():
    E(f"s_mul_i32 s{S_XB}, s{S_A}, {288 * 1024}")
    E(f"s_add_u32 s{S_XB}, s{S_XB}, {WS_HO:#x}")


HEADER = """; Kernarg layout (88 bytes, ptrs only, base s[0:1]):
; @launch grid=(512,1,1) block=(512,1,1) lds=81920
.amdgcn_target "amdgcn-amd-amdhsa--gfx950"
.text
.globl {kn}
.p2align 8
.type {kn},@function
{kn}:
CODE_START:
"""

FOOTER = """CODE_END:
.section .rodata,"a"
.p2align 6
.amdhsa_kernel {kn}
  .amdhsa_next_free_vgpr 128
  .amdhsa_next_free_sgpr 102
  .amdhsa_accum_offset 128
  .amdhsa_group_segment_fixed_size 0
  .amdhsa_kernarg_size 88
  .amdhsa_user_sgpr_count 2
  .amdhsa_user_sgpr_kernarg_segment_ptr 1
  .amdhsa_system_sgpr_workgroup_id_x 1
.end_amdhsa_kernel
"""


def generate():
    E.L = []
    if O.scramble:
        E("s_and_b32 s3, s2, 7")
        E("s_lshl_b32 s3, s3, 3")
        E("s_bfe_u32 s4, s2, 0x30003")
        E("s_and_b32 s2, s2, 0xffffffc0")
        E("s_or_b32 s2, s2, s3")
        E("s_or_b32 s2, s2, s4")
    E("s_cmp_ge_u32 s2, 256")
    E("s_cbranch_scc1 F_entry")
    stamp(0)
    if O.only_down:
        E("s_endpgm")
    a_prologue()
    E("s_cbranch_vccnz A_vwave")
    E("s_branch A_qwave")
    E.label("F_entry")
    f_prologue()
    E.label("L_end")
    E("s_endpgm")
    E.label("A_qwave")
    a_qkv(False)
    E("s_branch A_att")
    E.label("A_vwave")
    a_qkv(True)
    E.label("A_att")
    a_attention()
    f_main()
    return HEADER.format(kn=KN) + "\n".join(E.L) + "\n" + FOOTER.format(kn=KN)


if __name__ == "__main__":
    ap = argparse.ArgumentParser()
    ap.add_argument("-o", default="k.s")
    ap.add_argument("--set", action="append", default=[])
    a = ap.parse_args()
    for kv in a.set:
        k, v = kv.split("=")
        assert hasattr(O, k), k
        setattr(O, k, type(getattr(O, k))(int(v)))
    s = generate()
    open(a.o, "w").write(s)
    sys.path.insert(0, "cdna_kernels")
    from cdna_launch import with_harness_metadata, address_register_problem
    h = a.o[:-2] + ".harness.s"
    co = a.o[:-2] + ".co"
    open(h, "w").write(with_harness_metadata(s, KN, 11, launch_lists=True))
    r = subprocess.run(["clang", "-x", "assembler", "-target", "amdgcn-amd-amdhsa", "-mcpu=gfx950", h, "-o", co],
                       capture_output=True, text=True)
    if r.returncode:
        print(r.stderr[:4000]); sys.exit(1)
    p = address_register_problem(co, KN)
    print("check:", p)
    r = subprocess.run(f"llvm-nm {co} | grep -E 'CODE_|A_qwave|A_vwave|A_att|A_loop|A_fin|A_slow|F_entry|F_main|F_pub|F_dloop|F_gate$' | sort", shell=True, capture_output=True, text=True)
    print(r.stdout)
```

```python
import sys, subprocess, argparse

NAME = "gated_mix__softmax_full_mha__swiglu_ffn__prompt"
KN = NAME + "_kernel"

WS_KV, WS_Q, WS_HO = 0, 0x400000, 0x600000
WS_G = 0xF04000
WS_FO2 = 0xF40000
WS_FKV, WS_FH, WS_FO, WS_FS = 0xF08000, 0xF0C000, 0xF20000, 0xF07000
WS_STAMP = 0x1000000
WS_SIZE = 0x1100000
QSCALE = 0x3EB8AA3B
NLOG2E = 0xBFB8AA3B
THR2 = 0x45548000


class Opt:
    stamps = False
    hint_step = 17
    f_fill_early = False
    force_slow = False
    prio_a_qkv = 3
    prio_a_att = 2
    prio_f = 0
    prio_f_late = 0
    zrows = 1
    toggle = 0
    touch_gu = 0
    touch = 0
    warm_steps = 0
    f_rot = 0
    a_exit = 0
    kv_rot = 0
    ga = 2
    gb = 3
    gc = 5
    kv_first = 2
    wd_t0 = 3
    wo_t = 1
    f_touch = 1
    f_touch2 = 99
    bal = 4
    pace_from = 99
    prio_up = -1
    prio_dn = 0
    boost_mask = 31
    prio_boost = 3
    hint1 = 11
    f_wd = 1
    pair = 1
    dn_stamps = 0
    wo_early = 1
    scramble = 0
    dbg_out = 0
    hold = 0
    kv_wait1 = 1
    piped = 0
    dn_ns = 5
    dn_grp = 2
    dn_grp_until = 16
    dn_low = 99
    twice = 0
    o_parts = 2
    x_noack = 0
    x_noex = 0
    wd_step = 13
    wd_parts = 1
    ht_pos = 2
    nt0 = 0
    order0 = 0
    diag_span = 0
    w_first = 1
    early_o = 0
    x_fail = 0
    t_rows = 256
    tlb = 0
    rf_late = 0
    bar_diag = 0
    kv_cnt = 0
    g_batch = 2
    wo_step = 9
    wo_batch = 0
    qswap = 7
    hswap = 1
    rswap = 0
    sl_o = 2
    sl_h = 2
    rperm = 1
    amap = 0
    sl_kv = 0
    sl_s = 2
    wo_late = 0
    o_touch = 0
    evt = -1
    only_down = 0
    d_rot = 0
    h_touch = 1
    att_iters = 8
    prio_silu = 3
    gate_late = 1
    h_sc1 = 1
    no_f = 0
    late_iter = 99


O = Opt()


class Asm:
    def __init__(self):
        self.L = []

    def __call__(self, s):
        for x in s.strip("\n").split("\n"):
            self.L.append("    " + x.strip())

    def label(self, l):
        self.L.append(l + ":")

    def raw(self, s):
        self.L.append(s)


E = Asm()


def vr(a, n):
    return f"v[{a}:{a+n-1}]"


def srd(base, size):
    E(f"s_mov_b32 s{base+2}, {size:#x}")
    E(f"s_mov_b32 s{base+3}, 0x20000")


S_WAVE = 3
X, W1, WU, WS, DBG, WD, WO, OUT, GW = 12, 16, 20, 24, 28, 32, 36, 40, 44
def sr(b): return f"s[{b}:{b+3}]"
S_TAG = 48
S_W1K = 49
S_T0, S_T1, S_T2, S_T3 = 50, 51, 52, 53
S_XK, S_XB, S_WK, S_WB = 54, 55, 56, 57
S_CNT = 58
S_A, S_B, S_C, S_D = 59, 60, 61, 62
S_SLOT = 63
S_VM = 64
S_SPIN = 66
S_STAMP = 70


def stamp(i):
    if O.evt >= 0:
        if i == 0 or i == O.evt % 16:
            E(f"s_memrealtime s[{S_STAMP+2*i}:{S_STAMP+2*i+1}]")
            E("s_waitcnt lgkmcnt(0)")
    elif O.stamps:
        E(f"s_memrealtime s[{S_STAMP+2*i}:{S_STAMP+2*i+1}]")
        E(f"s_memtime s[68:69]")
        E("s_waitcnt lgkmcnt(0)")
        E(f"s_mov_b32 s{S_STAMP+2*i+1}, s68")


def cstamp(i):
    if O.stamps:
        E(f"s_memtime s[{S_STAMP+2*i}:{S_STAMP+2*i+1}]")
        E("s_waitcnt lgkmcnt(0)")


def flush_stamps(idx, lab):
    if O.evt >= 0 and lab[0] == "AF"[O.evt // 16]:
        i = O.evt % 16
        E(f"s_add_u32 s6, s{S_STAMP+2*i}, 6000")
        E.label(lab + "_e")
        E("s_memrealtime s[4:5]")
        E("s_waitcnt lgkmcnt(0)")
        E("s_sub_u32 s4, s4, s6")
        E("s_cmp_lt_i32 s4, 0")
        E(f"s_cbranch_scc1 {lab}_e")
    if not O.stamps:
        return
    E(f"s_cmp_lg_u32 s{S_WAVE}, 0")
    E(f"s_cbranch_scc1 {lab}")
    E(f"s_lshl_b32 s{S_T0}, s2, 7")
    E(f"s_add_u32 s{S_T0}, s{S_T0}, {WS_STAMP:#x}")
    E("s_mov_b64 exec, 1")
    E("v_mov_b32 v1, 0")
    for i in idx:
        E(f"v_mov_b32 v2, s{S_STAMP+2*i}")
        E(f"buffer_store_dword v2, v1, {sr(WS)}, s{S_T0} offen offset:{4*i}")
        E(f"v_mov_b32 v3, s{S_STAMP+2*i+1}")
        E(f"buffer_store_dword v3, v1, {sr(WS)}, s{S_T0} offen offset:{64+4*i}")
    if O.dbg_out:
        E(f"s_and_b32 s{S_T0}, s2, 255")
        E(f"s_cmp_lg_u32 s{S_T0}, 77")
        E(f"s_cbranch_scc1 {lab}_d")
        sel, base = ((0, 1, 2, 5, 6, 7), 1) if lab.startswith("A") else ((1, 2, 3, 5, 6, 7, 9), 9)
        for n, i in enumerate(sel):
            E(f"v_mov_b32 v2, s{S_STAMP+2*i}")
            if n:
                E(f"v_subrev_u32 v2, s{S_STAMP}, v2")
            E(f"buffer_store_dword v2, v1, {sr(DBG)}, 0 offen offset:{4*(base+n)}")
        if lab.startswith("A"):
            E(f"s_sub_u32 s{S_T0}, s{S_STAMP+13}, s{S_STAMP+11}")
            E(f"v_mov_b32 v2, s{S_T0}")
            E(f"buffer_store_dword v2, v1, {sr(DBG)}, 0 offen offset:28")
        E.label(lab + "_d")
    E("s_waitcnt vmcnt(0)")
    E.label(lab)


class VM:
    def __init__(self):
        self.q = []

    def issue(self, tag, n=1):
        self.q += [tag] * n

    def need(self, *tags):
        last = -1
        for i, t in enumerate(self.q):
            if t in tags:
                last = i
        for t in tags:
            assert t in self.q, t
        return len(self.q) - 1 - last


def poll(lab, voff_reg, soff, piped=False, dst=11, sleep=2):
    E(f"s_mov_b32 s{S_SPIN}, 0x40000")
    if piped:
        regs = (11, 9, 15)
        for r in regs[:2]:
            E(f"buffer_load_dword v{r}, v{voff_reg}, {sr(WS)}, {soff} offen sc1")
            E("s_sleep 2")
        E.label(lab)
        for i in range(3):
            E(f"buffer_load_dword v{regs[(i + 2) % 3]}, v{voff_reg}, {sr(WS)}, {soff} offen sc1")
            E("s_waitcnt vmcnt(2)")
            E(f"v_cmp_ne_u32 vcc, s{S_TAG}, v{regs[i]}")
            E("s_nop 4")
            E("s_cmp_eq_u64 vcc, 0")
            E(f"s_cbranch_scc1 {lab}_ok")
            E("s_sleep 1")
    else:
        E.label(lab)
        E(f"buffer_load_dword v{dst}, v{voff_reg}, {sr(WS)}, {soff} offen sc1")
        E("s_waitcnt vmcnt(0)")
        E(f"v_cmp_ne_u32 vcc, s{S_TAG}, v{dst}")
        E("s_nop 4")
        E("s_cmp_eq_u64 vcc, 0")
        E(f"s_cbranch_scc1 {lab}_ok")
        E(f"s_sleep {sleep}")
    E(f"s_sub_u32 s{S_SPIN}, s{S_SPIN}, 1")
    E(f"s_cmp_lg_u32 s{S_SPIN}, 0")
    E(f"s_cbranch_scc1 {lab}")
    E.label(lab + "_ok")


def get_tag(lab, sleep=4):
    E(f"s_mov_b32 s{S_SPIN}, 0x40000")
    E("v_mov_b32 v10, 0")
    E.label(lab)
    E(f"buffer_load_dword v11, v10, {sr(DBG)}, 0 offen sc1")
    E("s_waitcnt vmcnt(0)")
    E(f"v_readfirstlane_b32 s{S_TAG}, v11")
    E("s_nop 3")
    E(f"s_cmp_lg_u32 s{S_TAG}, 0")
    E(f"s_cbranch_scc1 {lab}_ok")
    E(f"s_sleep {sleep}")
    E(f"s_sub_u32 s{S_SPIN}, s{S_SPIN}, 1")
    E(f"s_cmp_lg_u32 s{S_SPIN}, 0")
    E(f"s_cbranch_scc1 {lab}")
    E.label(lab + "_ok")


def put_flag(soff_sgpr):
    E("s_mov_b64 exec, 1")
    E("v_mov_b32 v10, 0")
    E(f"v_mov_b32 v11, s{S_TAG}")
    E(f"buffer_store_dword v11, v10, {sr(WS)}, s{soff_sgpr} offen sc0 sc1")
    E("s_mov_b64 exec, -1")


def wg_store(lab, cond, val_lines, off):
    cond()
    E(f"s_cbranch_scc1 {lab}")
    val_lines()
    E("s_mov_b64 exec, 1")
    E(f"v_mov_b32 v10, {off}")
    E(f"v_mov_b32 v11, s{S_T0}")
    E(f"buffer_store_dword v11, v10, {sr(DBG)}, 0 offen sc0 sc1")
    E("s_mov_b64 exec, -1")
    E.label(lab)


def hint(lab="A_nohint", word=0, early=None):
    E(f"s_lshr_b32 s{S_T0}, s2, 3")
    E(f"s_or_b32 s{S_T0}, s{S_T0}, s{S_WAVE}")
    E(f"s_cbranch_scc1 {lab}")
    if (O.hint_step if early is None else early) < 16:
        E(f"v_readfirstlane_b32 s{S_TAG}, v14")
        E("s_nop 3")
        E(f"s_cmp_lg_u32 s{S_TAG}, 0")
        E(f"s_cbranch_scc1 {lab}_t_ok")
        get_tag(lab + "_t")
    E(f"s_lshl_b32 s{S_T1}, s2, 7")
    E(f"s_add_u32 s{S_T1}, s{S_T1}, {WS_FS + 1024 * word:#x}")
    put_flag(S_T1)
    E.label(lab)


def wait_start(lab, word=0, tag=True):
    if tag:
        get_tag(lab + "_t", 16)
    E("v_mov_b32 v10, 0")
    E(f"s_and_b32 s{S_T0}, s2, 7")
    if O.hswap:
        E(f"s_xor_b32 s{S_T0}, s{S_T0}, {O.hswap}")
    E(f"s_lshl_b32 s{S_T0}, s{S_T0}, 7")
    E(f"s_add_u32 s{S_T0}, s{S_T0}, {WS_FS + 1024 * word:#x}")
    poll(lab, 10, f"s{S_T0}", False, 11, O.sl_s)


def dpp_max(regs):
    for ctl in ("row_shr:1", "row_shr:2", "row_shr:4", "row_shr:8",
                "row_bcast:15 row_mask:0xa", "row_bcast:31 row_mask:0xc"):
        E("s_nop 1")
        for r in regs:
            m = "" if "row_mask" in ctl else " row_mask:0xf"
            E(f"v_max_f32_dpp v{r}, v{r}, v{r} {ctl}{m} bank_mask:0xf")


A_XS, A_WS0, A_WSZ = 8192, 24576, 12288


def a_dma_x(u, vm):
    E(f"s_add_u32 m0, s{S_W1K}, {(u % 3) * A_XS}")
    E(f"s_add_u32 s{S_T0}, s{S_XB}, s{S_XK}")
    nt = "nt " if ((O.nt0 & 1) and u < 2) or (O.nt0 & 4) else ""
    E(f"buffer_load_dwordx4 v1, {sr(X)}, s{S_T0} offen {nt}lds")
    E(f"s_add_u32 s{S_XK}, s{S_XK}, 128")
    E(f"s_and_b32 s{S_XK}, s{S_XK}, 1023")
    vm.issue(("x", u))


def a_dma_w(s, vm, vwave):
    base = A_WS0 + (s % 4) * A_WSZ
    nt = "nt " if ((O.nt0 & 1) and s < 2) or (O.nt0 & 4) else ""
    E(f"s_add_u32 m0, s{S_W1K}, {base}")
    E(f"s_add_u32 s{S_T0}, s{S_WB}, s{S_WK}")
    E(f"buffer_load_dwordx4 v2, {sr(W1)}, s{S_T0} offen {nt}lds")
    vm.issue(("w", s))
    if vwave == "both":
        E(f"s_cbranch_vccz A_pw{s}")
        E(f"s_add_u32 m0, s{S_W1K}, {base + 3072}")
        E("s_nop 0")
        E(f"buffer_load_dwordx4 v2, {sr(W1)}, s{S_T0} offen offset:1024 {nt}lds")
        E.label(f"A_pw{s}")
    elif vwave:
        E(f"s_add_u32 m0, s{S_W1K}, {base + 3072}")
        E("s_nop 0")
        E(f"buffer_load_dwordx4 v2, {sr(W1)}, s{S_T0} offen offset:1024 {nt}lds")
        vm.issue(("w", s))
    E(f"s_add_u32 s{S_WK}, s{S_WK}, 98304")
    E(f"s_cmp_eq_u32 s{S_WK}, {16 * 98304}")
    E(f"s_cselect_b32 s{S_WK}, 0, s{S_WK}")


def a_prologue():
    E(f"s_load_dwordx2 s[{X}:{X+1}], s[0:1], 0")
    E(f"s_load_dwordx2 s[{W1}:{W1+1}], s[0:1], 8")
    E(f"s_load_dwordx2 s[{WS}:{WS+1}], s[0:1], 80")
    E(f"s_load_dwordx2 s[{DBG}:{DBG+1}], s[0:1], 72")
    E("v_lshrrev_b32 v8, 6, v0")
    E("v_lshrrev_b32 v9, 3, v0")
    E("v_lshrrev_b32 v10, 4, v0")
    E(f"v_readfirstlane_b32 s{S_WAVE}, v8")
    E("v_xor_b32 v11, v10, v0")
    E("v_and_b32 v11, 7, v11")
    E("v_lshlrev_b32 v11, 4, v11")
    E("v_lshl_add_u32 v1, v9, 10, v11")
    srd(X, 0x200000)
    srd(W1, 0x180000)
    E(f"s_lshr_b32 s{S_T0}, s2, 3")
    E(f"s_and_b32 s{S_T1}, s{S_T0}, 7")
    E(f"s_lshr_b32 s{S_T0}, s{S_T0}, 3")
    E(f"s_and_b32 s{S_A}, s2, 3")
    E(f"s_lshl_b32 s{S_A}, s{S_A}, 3")
    E(f"s_add_u32 s{S_A}, s{S_A}, s{S_T1}")
    E(f"s_and_b32 s{S_B}, s2, 4")
    E(f"s_add_u32 s{S_B}, s{S_B}, s{S_T0}")
    E(f"s_lshl_b32 s{S_T0}, s{S_T0}, 1")
    E(f"s_add_u32 s{S_T0}, s{S_T0}, s{S_T1}")
    E(f"s_and_b32 s{S_T0}, s{S_T0}, 7")
    E(f"s_lshl_b32 s{S_XK}, s{S_T0}, 7")
    E(f"s_mul_i32 s{S_WK}, s{S_T0}, {2 * 98304}")
    E(f"s_lshl_b32 s{S_XB}, s{S_A}, 16")
    E(f"s_lshl_b32 s{S_WB}, s{S_B}, 7")
    E(f"s_lshl_b32 s{S_W1K}, s{S_WAVE}, 10")
    E("v_and_b32 v9, 31, v9")
    E("v_mul_u32_u24 v9, 0xc00, v9")
    E("v_and_b32 v10, 1, v10")
    E("v_lshlrev_b32 v10, 2, v10")
    E("v_xor_b32 v10, v10, v0")
    E("v_and_b32 v10, 7, v10")
    E("v_lshl_add_u32 v9, v10, 4, v9")
    E("v_lshrrev_b32 v10, 8, v0")
    E("v_lshl_add_u32 v2, v10, 10, v9")
    E("v_cmp_eq_u32 vcc, 1, v10")
    E(f"s_setprio {O.prio_a_qkv}")
    E("s_waitcnt lgkmcnt(0)")
    stamp(8)
    vm = VM()
    a_dma_x(0, vm)
    a_dma_w(0, vm, "both")
    a_dma_w(1, vm, "both")
    a_dma_x(1, vm)
    a_dma_w(2, vm, "both")
    a_dma_w(3, vm, "both")
    a_dma_x(2, vm)
    stamp(9)
    srd(WS, WS_SIZE)
    srd(DBG, 256)


def a_qkv(vwave):
    p = "AV" if vwave else "AQ"
    if O.touch:
        E(f"s_load_dwordx2 s[{WU}:{WU+1}], s[0:1], {40 if vwave else 32}")
        E(f"s_load_dwordx2 s[{WD}:{WD+1}], s[0:1], 48")
        E(f"s_load_dwordx2 s[{WO}:{WO+1}], s[0:1], 16")
        srd(WU, 512 * 3584); srd(WD, 1792 * 1024); srd(WO, 512 * 1024)
    vm = VM()
    n = 2 if vwave else 1
    for t in (("x", 0), ("w", 0), ("w", 1), ("x", 1), ("w", 2), ("w", 3), ("x", 2)):
        vm.issue(t, n if t[0] == "w" else 1)
    E("v_and_b32 v8, 31, v0")
    if vwave:
        E("v_and_b32 v9, 0x13, v8")
        E("v_lshlrev_b32 v10, 1, v8")
        E("v_and_b32 v10, 8, v10")
        E("v_or_b32 v9, v9, v10")
        E("v_lshrrev_b32 v10, 1, v8")
        E("v_and_b32 v10, 4, v10")
        E("v_or_b32 v8, v9, v10")
    E("v_lshrrev_b32 v9, 1, v8")
    E("v_and_b32 v9, 7, v9")
    E("v_bfe_u32 v10, v0, 5, 1")
    E("v_xor_b32 v9, v9, v10")
    E("v_lshlrev_b32 v9, 4, v9")
    E("v_lshl_add_u32 v9, v8, 7, v9")
    E("v_bfe_u32 v8, v0, 6, 1")
    E("v_lshl_add_u32 v3, v8, 12, v9")
    for ks in (1, 2, 3):
        E(f"v_xor_b32 v{3+ks}, {32*ks}, v3")
    E("v_bfe_u32 v8, v0, 2, 2")
    E("v_lshl_add_u32 v9, v10, 3, v8")
    E("v_lshlrev_b32 v9, 7, v9")
    E("v_bfe_u32 v10, v0, 7, 1")
    E("v_lshrrev_b32 v8, 1, v8")
    E("v_xor_b32 v8, v8, v10")
    E("v_lshl_add_u32 v9, v8, 6, v9")
    E("v_bfe_u32 v8, v0, 4, 1")
    E("v_lshl_add_u32 v9, v8, 5, v9")
    E("v_and_b32 v8, 3, v0")
    E("v_lshl_add_u32 v9, v8, 3, v9")
    E(f"v_add_u32 v7, {A_WS0}, v9")
    segs = (2,) if vwave else (0, 1)
    if O.touch_gu:
        E(f"s_lshr_b32 s{S_T0}, s2, 3")
        E(f"s_lshl_b32 s{S_T0}, s{S_T0}, 2")
        E(f"s_and_b32 s{S_T1}, s{S_WAVE}, 3")
        E(f"s_add_u32 s{S_T0}, s{S_T0}, s{S_T1}")
        E(f"s_mul_i32 s{S_T0}, s{S_T0}, {2 * 3584}")
        E(f"s_bfe_u32 s{S_T1}, s2, 0x10002")
        E(f"s_mul_i32 s{S_T1}, s{S_T1}, 1792")
        E(f"s_add_u32 s{S_T0}, s{S_T0}, s{S_T1}")
        E("v_bfe_u32 v8, v0, 4, 1")
        E("v_mul_u32_u24 v8, 3584, v8")
        E("v_and_b32 v9, 15, v0")
        E("v_lshl_add_u32 v8, v9, 7, v8")
        E(f"v_add_u32 v98, s{S_T0}, v8")

    def reads(s):
        b = 16 + 24 * (s & 1)
        L = []
        for kk in (0, 1):
            L.append(f"ds_read_b128 {vr(b+4*kk,4)}, v{3 + 2*(s&1) + kk} offset:{((s//2) % 3) * A_XS}")
            for si, sg in enumerate(segs):
                for q in (0, 1):
                    off = (s % 4) * A_WSZ + sg * 4096 + kk * 2048 + q * 512
                    L.append(f"ds_read_b64_tr_b16 {vr(b+8+8*si+4*kk+2*q,2)}, v7 offset:{off}")
        return L

    def mfmas(s):
        b = 16 + 24 * (s & 1)
        L = []
        for kk in (0, 1):
            for si, sg in enumerate(segs):
                acc = vr(64 + 16 * si, 16)
                c = "0" if (s == 0 and kk == 0) else acc
                xf, wf = vr(b + 4*kk, 4), vr(b + 8 + 8*si + 4*kk, 4)
                if vwave:
                    L.append(f"v_mfma_f32_32x32x16_bf16 {acc}, {xf}, {wf}, {c}")
                else:
                    L.append(f"v_mfma_f32_32x32x16_bf16 {acc}, {wf}, {xf}, {c}")
        return L

    if not vwave:
        def tagval():
            E(f"s_memrealtime s[{S_T0}:{S_T1}]")
            E("s_waitcnt lgkmcnt(0)")
            E(f"s_or_b32 s{S_T0}, s{S_T0}, 1")
        wg_store("A_notag", lambda: E(f"s_or_b32 s{S_T0}, s2, s{S_WAVE}"), tagval, "0")
    E(f"s_waitcnt vmcnt({vm.need(('x',0),('w',0))}) lgkmcnt(0)")
    E("s_barrier")
    stamp(1)
    for x in reads(0):
        E(x)
    for s in range(16):
        M = mfmas(s)
        if s < 15:
            E(f"s_waitcnt vmcnt({vm.need(('x',(s+1)//2),('w',s+1))}) lgkmcnt(0)")
            E("s_barrier")
            E(M.pop(0))
            R = reads(s + 1)
            per = 3
            while R or M:
                for x in R[:per]:
                    E(x)
                R = R[per:]
                if M:
                    E(M.pop(0))
            if s + 4 <= 15:
                a_dma_w(s + 4, vm, vwave)
            if s % 2 == 1 and (s + 1) // 2 + 2 <= 7:
                a_dma_x((s + 1) // 2 + 2, vm)
            if s == 1 and not vwave:
                E("v_mov_b32 v10, 0")
                E(f"buffer_load_dword v14, v10, {sr(DBG)}, 0 offen sc1")
                vm.issue("tag")
            if s == 12 and O.touch_gu:
                E("s_mov_b32 exec_hi, 0")
                E(f"buffer_load_dword v15, v98, {sr(WU)}, 0 offen")
                E("s_mov_b32 exec_hi, -1")
                vm.issue("t")
        else:
            E("s_waitcnt lgkmcnt(0)")
            for x in M:
                E(x)
        if s == O.hint_step and not vwave:
            hint()
        if s == O.hint1 and not vwave:
            hint("A_nohint1", 1, O.hint1)
        if s == O.hint_step and O.a_exit:
            E("s_endpgm")
    stamp(2)
    E(f"s_and_b32 s{S_T0}, s{S_WAVE}, 1")
    E(f"s_lshl_b32 s{S_T1}, s{S_A}, 1")
    E(f"s_add_u32 s{S_T0}, s{S_T0}, s{S_T1}")
    E(f"s_bfe_u32 s{S_T1}, s{S_WAVE}, 0x10001")
    E(f"s_lshl_b32 s{S_T2}, s{S_B}, 1")
    E(f"s_add_u32 s{S_T1}, s{S_T1}, s{S_T2}")
    E("v_and_b32 v8, 63, v0")
    if vwave:
        E("v_and_b32 v9, 15, v8")
        E("v_lshlrev_b32 v9, 4, v9")
        E("v_bfe_u32 v10, v8, 5, 1")
        E("v_lshl_add_u32 v9, v10, 8, v9")
        E("v_bfe_u32 v10, v8, 4, 1")
        E("v_lshl_add_u32 v9, v10, 17, v9")
        E(f"s_lshl_b32 s{S_T1}, s{S_T1}, 18")
        E(f"s_lshl_b32 s{S_T0}, s{S_T0}, 11")
        E(f"s_add_u32 s{S_T0}, s{S_T0}, s{S_T1}")
        E("s_nop 7")
        for i in range(8):
            E(f"v_cvt_pk_bf16_f32 v{16+i}, v{64+2*i}, v{65+2*i}")
        E(f"buffer_store_dwordx4 v[16:19], v9, {sr(WS)}, s{S_T0} offen offset:1024 sc0 sc1")
        E(f"buffer_store_dwordx4 v[20:23], v9, {sr(WS)}, s{S_T0} offen offset:1536 sc0 sc1")
    else:
        E("v_lshlrev_b32 v9, 4, v8")
        E(f"s_lshl_b32 s{S_T2}, s{S_T1}, 18")
        E(f"s_lshl_b32 s{S_T3}, s{S_T0}, 11")
        E(f"s_add_u32 s{S_T2}, s{S_T2}, s{S_T3}")
        E(f"s_lshr_b32 s{S_T3}, s{S_T2}, 1")
        E(f"s_add_u32 s{S_T3}, s{S_T3}, {WS_Q:#x}")
        E(f"s_add_u32 s{S_C}, s{S_T2}, 0x20000")
        E(f"s_add_u32 s{S_D}, s{S_T3}, 0x10000")
        E(f"s_mov_b32 s{S_CNT}, {QSCALE:#x}")
        E("s_nop 7")
        for i in range(8):
            E(f"v_cvt_pk_bf16_f32 v{16+i}, v{80+2*i}, v{81+2*i}")
        E(f"buffer_store_dwordx4 v[16:19], v9, {sr(WS)}, s{S_T2} offen sc0 sc1")
        E(f"buffer_store_dwordx4 v[20:23], v9, {sr(WS)}, s{S_C} offen sc0 sc1")
        for i in range(16):
            E(f"v_mul_f32 v{64+i}, s{S_CNT}, v{64+i}")
        for i in range(8):
            E(f"v_cvt_pk_bf16_f32 v{24+i}, v{64+2*i}, v{65+2*i}")
        E(f"buffer_store_dwordx4 v[24:27], v9, {sr(WS)}, s{S_T3} offen sc0 sc1")
        E(f"buffer_store_dwordx4 v[28:31], v9, {sr(WS)}, s{S_D} offen sc0 sc1")
        for g in range(4):
            E(f"v_mul_f32 v{32+g}, v{64+8*g}, v{64+8*g}")
        for i in range(1, 8):
            for g in range(4):
                E(f"v_fmac_f32 v{32+g}, v{64+8*g+i}, v{64+8*g+i}")
        E("s_nop 1")
        E("v_permlane32_swap_b32 v32, v33")
        E("v_permlane32_swap_b32 v34, v35")
        E("s_nop 1")
        E("v_add_f32 v32, v32, v33")
        E("v_add_f32 v33, v34, v35")
        dpp_max((32, 33))
        E(f"s_lshl_b32 s{S_T0}, s{S_B}, 11")
        E(f"s_lshl_b32 s{S_T1}, s{S_A}, 6")
        E(f"s_add_u32 s{S_T0}, s{S_T0}, s{S_T1}")
        E(f"s_lshl_b32 s{S_T1}, s{S_WAVE}, 3")
        E(f"s_add_u32 s{S_T0}, s{S_T0}, s{S_T1}")
        E(f"s_add_u32 s{S_T0}, s{S_T0}, {WS_FKV + 16:#x}")
        E("v_mov_b32 v10, 0")
        E("s_brev_b64 exec, 1")
        E(f"buffer_store_dwordx2 v[32:33], v10, {sr(WS)}, s{S_T0} offen sc0 sc1")
        E("s_mov_b64 exec, -1")


S0, S1, OA, OB, QX, QY, K0, K1, V0, V1 = 16, 32, 48, 64, 80, 84, 88, 92, 96, 104
IDX, VK, VV, VD, VKB, VVB, VT, VL = 112, 113, 114, 115, 116, 117, 118, 119
KVS = 16384


def a_kv_dma():
    E(f"s_add_u32 m0, s{S_XK}, s{S_W1K}")
    E(f"s_add_u32 s{S_T0}, s{S_WB}, s{S_WK}")
    E(f"buffer_load_dwordx4 v{VD}, {sr(WS)}, s{S_T0} offen sc1 lds")
    E(f"buffer_load_dwordx4 v{VD}, {sr(WS)}, s{S_T0} offen offset:1024 sc1 lds")
    E(f"s_add_u32 s{S_WK}, s{S_WK}, {KVS}")
    E(f"s_and_b32 s{S_WK}, s{S_WK}, {8*KVS-1:#x}")
    E(f"s_add_u32 s{S_XK}, s{S_XK}, {KVS}")
    E(f"s_cmp_eq_u32 s{S_XK}, {5*KVS}")
    E(f"s_cselect_b32 s{S_XK}, 0, s{S_XK}")


def a_attention():
    E(f"s_and_b32 s{S_C}, s2, 7")
    if O.qswap:
        E(f"s_xor_b32 s{S_C}, s{S_C}, {O.qswap}")
    E(f"s_lshr_b32 s{S_T0}, s2, 6")
    if O.amap:
        E(f"s_and_b32 s{S_C}, s2, 6")
        E(f"s_bfe_u32 s{S_T1}, s2, 0x10005")
        E(f"s_add_u32 s{S_C}, s{S_C}, s{S_T1}")
        E(f"s_xor_b32 s{S_C}, s{S_C}, 4")
    E(f"s_lshl_b32 s{S_D}, s{S_C}, 2")
    E(f"s_add_u32 s{S_D}, s{S_D}, s{S_T0}")
    E(f"s_lshl_b32 s{S_T0}, s{S_B}, 11")
    E(f"s_lshl_b32 s{S_T1}, s{S_A}, 6")
    E(f"s_add_u32 s{S_T0}, s{S_T0}, s{S_T1}")
    E(f"s_add_u32 s{S_XB}, s{S_T0}, {WS_FKV:#x}")
    if O.amap:
        E(f"s_bfe_u32 s{S_A}, s2, 0x20003")
        E(f"s_and_b32 s{S_T0}, s2, 1")
        E(f"s_lshl_b32 s{S_T0}, s{S_T0}, 2")
        E(f"s_add_u32 s{S_A}, s{S_A}, s{S_T0}")
    else:
        E(f"s_bfe_u32 s{S_A}, s2, 0x30003")
    E("v_and_b32 v8, 63, v0")
    E(f"v_lshlrev_b32 v{VL}, 4, v8")
    E(f"s_lshl_b32 s{S_W1K}, s{S_WAVE}, 11")
    E(f"v_add_u32 v{VD}, s{S_W1K}, v{VL}")
    E(f"s_lshl_b32 s{S_WB}, s{S_D}, 17")
    if O.kv_rot:
        E(f"s_lshl_b32 s{S_WK}, s{S_A}, 14")
    else:
        E(f"s_mov_b32 s{S_WK}, 0")
    E(f"s_mov_b32 s{S_XK}, 0")
    E(f"s_lshl_b32 s{S_T1}, s{S_A}, 3")
    E(f"s_and_b32 s{S_T2}, s{S_WAVE}, 3")
    E(f"s_lshl_b32 s{S_T2}, s{S_T2}, 1")
    E(f"s_add_u32 s{S_B}, s{S_T1}, s{S_T2}")
    E(f"s_lshl_b32 s{S_T1}, s{S_B}, 10")
    E(f"s_lshl_b32 s{S_T2}, s{S_D}, 16")
    E(f"s_add_u32 s{S_T1}, s{S_T1}, s{S_T2}")
    E(f"s_add_u32 s4, s{S_T1}, {WS_Q:#x}")
    E(f"s_lshr_b32 s{S_T3}, s{S_WAVE}, 2")
    E(f"s_add_u32 s{S_T3}, s{S_B}, s{S_T3}")
    E(f"s_mul_i32 s5, s{S_T3}, 144")
    E(f"s_add_u32 s5, s5, s{S_D}")
    E("s_lshl_b32 s5, s5, 10")
    E(f"s_add_u32 s5, s5, {WS_HO + 112*1024:#x}")
    E(f"s_lshl_b32 s6, s{S_T3}, 11")
    E(f"s_lshl_b32 s{S_T2}, s{S_D}, 6")
    E(f"s_add_u32 s6, s6, s{S_T2}")
    E(f"s_add_u32 s6, s6, {WS_FO:#x}")
    E(f"s_add_u32 s7, s6, {WS_FO2 - WS_FO:#x}")
    E(f"s_lshr_b32 s{S_T0}, s{S_WAVE}, 2")
    E(f"s_lshl_b32 s{S_T0}, s{S_T0}, 11")
    E(f"v_add_u32 v{VKB}, s{S_T0}, v{VL}")
    E("v_and_b32 v9, 15, v8")
    E("v_lshlrev_b32 v9, 4, v9")
    E("v_bfe_u32 v10, v8, 5, 1")
    E("v_lshl_add_u32 v9, v10, 8, v9")
    E(f"s_add_u32 s{S_T0}, s{S_T0}, 1024")
    E(f"v_add_u32 v{VVB}, s{S_T0}, v9")
    E(f"v_mov_b32 v{VK}, v{VKB}")
    E(f"v_mov_b32 v{VV}, v{VVB}")
    E(f"v_mov_b32 v{IDX}, 0xdddddddd")
    E("v_and_b32 v9, 27, v8")
    E("v_cmp_eq_u32 vcc, 16, v9")
    E("v_mov_b32 v9, 0x3f803f80")
    E("s_nop 0")
    E(f"v_cndmask_b32 v{V0}, 0, v9, vcc")
    for i in range(1, 16):
        E(f"v_mov_b32 v{V0+i}, v{V0}")
    if O.touch:
        E(f"s_lshr_b32 s{S_T0}, s2, 3")
        E(f"s_lshl_b32 s{S_T0}, s{S_T0}, 3")
        E(f"s_add_u32 s{S_T0}, s{S_T0}, s{S_WAVE}")
        E(f"s_lshl_b32 s{S_T0}, s{S_T0}, 11")
        E(f"v_lshlrev_b32 v{VT}, 7, v8")
        E(f"v_add_u32 v{VT}, s{S_T0}, v{VT}")
    E(f"s_mov_b32 s{S_VM}, 0xffff")
    E(f"s_mov_b32 s{S_VM+1}, 0xffff")
    E(f"s_mov_b32 s{S_SLOT}, 0")
    E(f"s_mov_b32 s{S_CNT}, 0")
    for i in range(32):
        E(f"v_mov_b32 v{OA+i}, 0")
    for i in range(8, 16):
        E(f"v_mov_b32 v{S1+i}, 0")
    E("s_waitcnt vmcnt(0)")
    E("s_barrier")
    stamp(3)
    E(f"s_cmp_lg_u32 s{S_WAVE}, 0")
    E("s_cbranch_scc1 A_wait1")
    E(f"v_readfirstlane_b32 s{S_TAG}, v14")
    E("s_nop 3")
    E(f"s_cmp_lg_u32 s{S_TAG}, 0")
    E("s_cbranch_scc1 A_tag_ok")
    get_tag("A_tag")
    put_flag(S_XB)
    if O.hint_step == 16:
        hint()
    E("v_and_b32 v10, 31, v0")
    E("v_lshlrev_b32 v10, 6, v10")
    E(f"s_bfe_u32 s{S_T1}, s{S_D}, 0x10001")
    E(f"s_lshl_b32 s{S_T1}, s{S_T1}, 4")
    E(f"s_add_u32 s{S_T1}, s{S_T1}, 16")
    E("v_bfe_u32 v11, v0, 5, 1")
    E(f"v_mul_u32_u24 v11, s{S_T1}, v11")
    E("v_add_u32 v10, v10, v11")
    E(f"s_lshl_b32 s{S_T0}, s{S_C}, 11")
    E(f"s_add_u32 s{S_T0}, s{S_T0}, {WS_FKV:#x}")
    E(f"s_mov_b32 s{S_SPIN}, 0x40000")
    E.label("A_pollkv")
    E(f"buffer_load_dwordx4 v[4:7], v10, {sr(WS)}, s{S_T0} offen sc1")
    E("s_waitcnt vmcnt(0)")
    E(f"v_cmp_ne_u32 vcc, s{S_TAG}, v4")
    E("s_nop 4")
    E("s_cmp_eq_u32 vcc_lo, 0")
    E("s_cbranch_scc1 A_pollkv_ok")
    E(f"s_sleep {O.sl_kv}")
    E(f"s_sub_u32 s{S_SPIN}, s{S_SPIN}, 1")
    E(f"s_cmp_lg_u32 s{S_SPIN}, 0")
    E("s_cbranch_scc1 A_pollkv")
    E.label("A_pollkv_ok")
    E("s_barrier")
    if O.hint_step == 17:
        hint()
    else:
        hint("A_nohint2", 2, 17)
    E("s_branch A_go")
    E.label("A_wait1")
    E("s_barrier")
    E.label("A_go")
    stamp(4)
    a_kv_dma()
    E(f"buffer_load_dwordx4 {vr(QX,4)}, v{VL}, {sr(WS)}, s4 offen sc1")
    E(f"buffer_load_dwordx4 {vr(QY,4)}, v{VL}, {sr(WS)}, s4 offen offset:1024 sc1")
    for c in range(1, O.kv_first):
        a_kv_dma()
    E(f"s_cmp_lg_u32 s{S_WAVE}, 0")
    E("s_cbranch_scc1 A_nored")
    E("v_max_u32 v4, v4, v6")
    E("v_max_u32 v5, v5, v7")
    for ctl in ("row_shr:1", "row_shr:2", "row_shr:4", "row_shr:8", "row_bcast:15 row_mask:0xa"):
        E("s_nop 1")
        for r in (4, 5):
            m = "" if "row_mask" in ctl else " row_mask:0xf"
            E(f"v_max_u32_dpp v{r}, v{r}, v{r} {ctl}{m} bank_mask:0xf")
    E("s_nop 0")
    E("v_mul_f32 v4, v4, v5")
    E(f"v_mov_b32 v5, s{S_TAG}")
    E(f"v_mov_b32 v6, {5 * KVS - 8}")
    E("s_brev_b64 exec, 1")
    E("ds_write_b64 v6, v[4:5]")
    E("s_mov_b64 exec, -1")
    E("s_waitcnt lgkmcnt(0)")
    E.label("A_nored")
    E(f"s_setprio {O.prio_a_att}")
    E(f"s_waitcnt vmcnt({2*O.kv_first - (4 if O.pair and not O.kv_wait1 else 2)})")
    E("s_barrier")
    stamp(5)

    def vreads(dst, off):
        E(f"s_mov_b64 exec, s[{S_VM}:{S_VM+1}]")
        E(f"ds_read_b128 {vr(dst,4)}, v{VV} offset:{off}")
        E(f"ds_read_b128 {vr(dst+4,4)}, v{VV} offset:{off+512}")
        E("s_mov_b64 exec, -1")

    E(f"ds_read_b128 {vr(K0,4)}, v{VK}")
    vreads(V0, 0)
    E(f"v_mov_b32 v6, {5 * KVS - 8}")
    E("ds_read_b64 v[4:5], v6")
    if O.early_o:
        for i in range(4):
            E(f"v_mov_b32 v{120+i}, -1")
        E(f"buffer_store_dwordx4 v[120:123], v{VL}, {sr(WS)}, s5 offen sc0 sc1")
    E("s_waitcnt lgkmcnt(0)")
    E(f"v_readfirstlane_b32 s{S_T0}, v4")
    E(f"v_readfirstlane_b32 s{S_TAG}, v5")
    E(f"v_mfma_f32_32x32x16_bf16 {vr(S0,16)}, {vr(K0,4)}, {vr(QX,4)}, 0")
    E("s_nop 3")
    E(f"s_cmp_gt_u32 s{S_T0}, {THR2:#x}")
    if O.force_slow:
        E("s_branch A_slow")
    E("s_cbranch_scc1 A_slow")
    E("s_nop 7")

    def chunk_turn():
        E("s_waitcnt vmcnt(0)")
        E("s_barrier")
        E(f"s_cmp_gt_u32 s{S_CNT}, {7 - O.kv_first}")
        lab = f"A_nf{len(E.L)}"
        E(f"s_cbranch_scc1 {lab}")
        a_kv_dma()
        E.label(lab)
        if O.touch:
            E(f"s_sub_u32 s{S_T0}, s{S_CNT}, {O.wd_t0}")
            E(f"s_lshl_b32 s{S_T0}, s{S_T0}, 19")
            E("s_mov_b64 exec, 0xffff")
            E(f"s_cmp_gt_u32 s{S_T0}, {3 << 19}")
            E(f"s_cbranch_scc1 {lab}t")
            E(f"buffer_load_dword v15, v{VT}, {sr(WD)}, s{S_T0} offen")
            E.label(lab + "t")
            E(f"s_cmp_lg_u32 s{S_CNT}, {O.wo_t}")
            E(f"s_cbranch_scc1 {lab}u")
            E(f"buffer_load_dword v15, v{VT}, {sr(WO)}, 0 offen")
            E.label(lab + "u")
            E("s_mov_b64 exec, -1")
        E(f"s_add_u32 s{S_SLOT}, s{S_SLOT}, {KVS}")
        E(f"s_cmp_eq_u32 s{S_SLOT}, {5*KVS}")
        E(f"s_cselect_b32 s{S_SLOT}, 0, s{S_SLOT}")
        E(f"v_add_u32 v{VK}, s{S_SLOT}, v{VKB}")
        E(f"v_add_u32 v{VV}, s{S_SLOT}, v{VVB}")

    NT = 16 if O.pair else 8
    RF = {0: (3, 5, 7), 1: (3, 7, 11), 2: (5, 9, 13)}[O.rf_late]

    def next_slot():
        E(f"s_add_u32 s{S_SLOT}, s{S_SLOT}, {KVS}")
        E(f"s_cmp_eq_u32 s{S_SLOT}, {5*KVS}")
        E(f"s_cselect_b32 s{S_SLOT}, 0, s{S_SLOT}")
        E(f"v_add_u32 v{VK}, s{S_SLOT}, v{VKB}")
        E(f"v_add_u32 v{VV}, s{S_SLOT}, v{VVB}")

    def refill(lab, lo, hi):
        if lo == hi:
            E(f"s_cmp_lg_u32 s{S_CNT}, {lo}")
        else:
            E(f"s_cmp_gt_u32 s{S_CNT}, {hi}")
        E(f"s_cbranch_scc1 {lab}")
        a_kv_dma()
        E.label(lab)

    if O.bar_diag:
        E("s_mov_b32 s86, 0"); E("s_mov_b32 s88, 0")
    E.raw(".p2align 6")
    E.label("A_loop")
    ga, gb, gc = O.ga, O.ga + O.gb, O.ga + O.gb + O.gc
    for t in range(NT):
        blk, kt = t & 1, (t >> 1) & 3
        Sc, Sn = (S0, S1) if blk == 0 else (S1, S0)
        Oc, On = (OA, OB) if blk == 0 else (OB, OA)
        Vk, Vo = (V0, V1) if kt & 1 == 0 else (V1, V0)
        Kk, Ko = (K0, K1) if kt & 1 == 0 else (K1, K0)
        if not O.pair:
            if t == 6:
                chunk_turn()
        elif t == 6:
            if O.kv_wait1:
                E(f"s_cmp_lg_u32 s{S_CNT}, 0")
                E("s_cbranch_scc1 A_nb")
                E(f"s_waitcnt vmcnt({2 * len([x for x in RF[:5 - O.kv_first] if x < 6])})")
                E("s_barrier")
                E.label("A_nb")
            next_slot()
        elif t == 14:
            if O.bar_diag:
                E("s_memtime s[68:69]"); E("s_waitcnt lgkmcnt(0)"); E("s_sub_u32 s86, s86, s68")
            if O.kv_cnt:
                E(f"s_cmp_eq_u32 s{S_CNT}, 0")
                E("s_cbranch_scc1 A_w2")
                E("s_waitcnt vmcnt(0)")
                E.label("A_w2")
                E("s_waitcnt vmcnt(2)")
            else:
                E("s_waitcnt vmcnt(0)")
            if O.bar_diag:
                E("s_memtime s[68:69]"); E("s_waitcnt lgkmcnt(0)"); E("s_add_u32 s86, s86, s68"); E("s_sub_u32 s88, s88, s68")
            E("s_barrier")
            if O.bar_diag:
                E("s_memtime s[68:69]"); E("s_waitcnt lgkmcnt(0)"); E("s_add_u32 s88, s88, s68")
            next_slot()
        ex = lambda a, b: [E(f"v_exp_f32 v{Sc+i}, v{Sc+i}") for i in range(a, b)]
        ph = ((t + 2) % NT) * 8 // NT
        TAB = {5: [3]*6 + [2]*5 + [1]*3 + [0]*2, 6: [3]*2 + [2]*4 + [1]*5 + [0]*5, 7: [3]*5 + [2]*5 + [1]*4 + [0]*2}
        prf = lambda ph: {0: O.prio_a_att, 4: 3 - ph // 2, 2: O.prio_a_att + (1 if ph < 4 else 0), 3: O.prio_a_att + [2, 2, 2, 1, 1, 1, 0, 0][ph]}[O.bal]
        if O.bal >= 5:
            pr, prev = TAB[O.bal][(t + 2) % NT], TAB[O.bal][(t + 1) % NT]
        else:
            pr, prev = prf(ph), prf(((t + 1) % NT) * 8 // NT)
        if O.bal and not O.toggle and pr != prev:
            E(f"s_setprio {pr}")

        def mm(x):
            if O.toggle: E(f"s_setprio {O.toggle}")
            E(x)
            if O.toggle: E(f"s_setprio {pr}")
        ex(0, ga)
        mm(f"v_smfmac_f32_32x32x32_bf16 {vr(On,16)}, {vr((Vo if blk == 0 else Vk) + 4,4)}, {vr(Sn+8,8)}, v{IDX}")
        if blk == 0:
            off = ((kt + 1) % 4) * 4096
            E(f"ds_read_b128 {vr(Ko,4)}, v{VK} offset:{off}")
            vreads(Vo, off)
        ex(ga, gb)
        if blk == 1:
            E("s_waitcnt lgkmcnt(0)")
        mm(f"v_mfma_f32_32x32x16_bf16 {vr(Sn,16)}, {vr(Kk if blk == 0 else Ko,4)}, {vr(QY if blk == 0 else QX,4)}, 0")
        ex(gb, gc)
        mm(f"v_smfmac_f32_32x32x32_bf16 {vr(Oc,16)}, {vr(Vk,4)}, {vr(Sc,8)}, v{IDX}")
        if O.pair and t == 15:
            refill("A_rf0", 0, 1)
        if O.pair and t == 1:
            refill("A_rf1", 2, 2)
        if O.pair and O.kv_first < 5 and t in RF[:5 - O.kv_first]:
            refill(f"A_rf{t}", 0, 0)
        ex(gc, 16)
    E(f"s_add_u32 s{S_CNT}, s{S_CNT}, 1")
    E(f"s_cmp_lt_u32 s{S_CNT}, {O.att_iters * 8 // NT}")
    E("s_cbranch_scc1 A_loop")
    E("s_nop 1")
    E(f"v_smfmac_f32_32x32x32_bf16 {vr(OB,16)}, {vr(V1+4,4)}, {vr(S1+8,8)}, v{IDX}")
    E.label("A_fin")
    stamp(6)
    E("s_setprio 3")
    E(f"s_lshr_b32 s{S_T3}, s{S_WAVE}, 2")
    E(f"s_lshl_b32 s{S_T1}, s{S_WAVE}, 12")
    E(f"s_xor_b32 s{S_T2}, s{S_T1}, 16384")
    E(f"v_add_u32 v10, s{S_T1}, v{VL}")
    E(f"v_add_u32 v11, s{S_T2}, v{VL}")
    E("s_nop 5")
    if O.x_noex:
        E("s_branch A_noex")
    E(f"s_cmp_lg_u32 s{S_T3}, 0")
    E("s_cbranch_scc1 A_hi")
    for i in range(3):
        E(f"ds_write_b128 v10, {vr(OB+4*i,4)} offset:{1024*i}")
    E("s_branch A_x")
    E.label("A_hi")
    for i in range(3):
        E(f"ds_write_b128 v10, {vr(OA+4*i,4)} offset:{1024*i}")
    E("s_nop 1")
    for i in range(9):
        E(f"v_mov_b32 v{OA+i}, v{OB+i}")
    E.label("A_x")
    E("s_waitcnt lgkmcnt(0)")
    E("s_barrier")
    E(f"ds_read_b128 {vr(S0+8,4)}, v11 offset:2048")
    E(f"ds_read_b128 {vr(S0,4)}, v11")
    E(f"ds_read_b128 {vr(S0+4,4)}, v11 offset:1024")
    E("s_waitcnt lgkmcnt(2)")
    E.label("A_noex")
    E(f"v_add_f32 v12, v{OA+8}, v{S0+8}")
    E("v_rcp_f32 v12, v12")
    E("s_waitcnt lgkmcnt(0)")
    for i in range(8):
        E(f"v_add_f32 v{OA+i}, v{OA+i}, v{S0+i}")
    for i in range(8):
        E(f"v_mul_f32 v{OA+i}, v12, v{OA+i}")
    for i in range(4):
        E(f"v_cvt_pk_bf16_f32 v{S1+i}, v{OA+2*i}, v{OA+2*i+1}")
    E(f"buffer_store_dwordx4 {vr(S1,4)}, v{VL}, {sr(WS)}, s5 offen sc0 sc1")
    if O.early_o:
        put_flag(6)
        stamp(7)
        E("s_waitcnt vmcnt(0)")
        put_flag(7)
    else:
        E("s_waitcnt vmcnt(0)")
        put_flag(6)
        stamp(7)
    flush_stamps(range(10), "A_st")
    E("s_endpgm")

    E.label("A_slow")
    MX, MY, T, AL = 4, 5, 6, 7
    E(f"v_mov_b32 v{MX}, 0xff7fffff")
    E(f"v_mov_b32 v{MY}, 0xff7fffff")
    E.label("A_sloop")
    E(f"s_mov_b32 s{S_T3}, 0")
    E.label("A_stile")
    E(f"ds_read_b128 {vr(K0,4)}, v{VK}")
    vreads(V0, 0)
    E(f"v_add_u32 v{VK}, 4096, v{VK}")
    E(f"v_add_u32 v{VV}, 4096, v{VV}")
    E("s_waitcnt lgkmcnt(0)")
    for (M, Q, Oc) in ((MX, QX, OA), (MY, QY, OB)):
        E(f"v_mfma_f32_32x32x16_bf16 {vr(S0,16)}, {vr(K0,4)}, {vr(Q,4)}, 0")
        E("s_nop 15")
        E(f"v_max3_f32 v{T}, v{S0}, v{S0+1}, v{M}")
        for i in range(1, 8):
            E(f"v_max3_f32 v{T}, v{S0+2*i}, v{S0+2*i+1}, v{T}")
        E(f"v_mov_b32 v{AL}, v{T}")
        E("s_nop 1")
        E(f"v_permlane32_swap_b32 v{T}, v{AL}")
        E("s_nop 1")
        E(f"v_max_f32 v{T}, v{T}, v{AL}")
        E(f"v_sub_f32 v{AL}, v{M}, v{T}")
        E(f"v_exp_f32 v{AL}, v{AL}")
        E(f"v_mov_b32 v{M}, v{T}")
        for i in range(16):
            E(f"v_sub_f32 v{S0+i}, v{S0+i}, v{T}")
        for i in range(16):
            E(f"v_exp_f32 v{S0+i}, v{S0+i}")
        for i in range(9):
            E(f"v_mul_f32 v{Oc+i}, v{AL}, v{Oc+i}")
        E("s_nop 1")
        E(f"v_smfmac_f32_32x32x32_bf16 {vr(Oc,16)}, {vr(V0,4)}, {vr(S0,8)}, v{IDX}")
        E(f"v_smfmac_f32_32x32x32_bf16 {vr(Oc,16)}, {vr(V0+4,4)}, {vr(S0+8,8)}, v{IDX}")
    E(f"s_add_u32 s{S_T3}, s{S_T3}, 1")
    E(f"s_cmp_lt_u32 s{S_T3}, 4")
    E("s_cbranch_scc1 A_stile")
    chunk_turn()
    E(f"s_add_u32 s{S_CNT}, s{S_CNT}, 1")
    E(f"s_cmp_lt_u32 s{S_CNT}, 8")
    E("s_cbranch_scc1 A_sloop")
    E(f"s_lshl_b32 s{S_T1}, s{S_WAVE}, 10")
    E(f"s_add_u32 s{S_T1}, s{S_T1}, 65536")
    E(f"s_xor_b32 s{S_T2}, s{S_T1}, 4096")
    E(f"v_add_u32 v10, s{S_T1}, v{VL}")
    E(f"v_add_u32 v11, s{S_T2}, v{VL}")
    E(f"ds_write_b64 v10, v[{MX}:{MY}]")
    E("s_waitcnt lgkmcnt(0)")
    E("s_barrier")
    E(f"ds_read_b64 v[{T}:{AL}], v11")
    E("s_waitcnt lgkmcnt(0)")
    for (M, P, Oc) in ((MX, T, OA), (MY, AL, OB)):
        E(f"v_max_f32 v{P}, v{P}, v{M}")
        E(f"v_sub_f32 v{P}, v{M}, v{P}")
        E(f"v_exp_f32 v{P}, v{P}")
        E("s_nop 0")
        for i in range(9):
            E(f"v_mul_f32 v{Oc+i}, v{P}, v{Oc+i}")
    E("s_branch A_fin")


F_XS, F_WS0, F_WSZ = 16384, 32768, 16384
WROW = 3584


def f_dma_x(u, vm):
    E(f"s_add_u32 m0, s{S_W1K}, {(u % 2) * F_XS}")
    E(f"s_add_u32 s{S_T0}, s{S_XB}, s{S_XK}")
    E(f"buffer_load_dwordx4 v1, {sr(X)}, s{S_T0} offen lds")
    E(f"s_add_u32 m0, s{S_W1K}, {(u % 2) * F_XS + 8192}")
    E(f"s_add_u32 s{S_T0}, s{S_T0}, 0x10000")
    E(f"buffer_load_dwordx4 v1, {sr(X)}, s{S_T0} offen lds")
    E(f"s_add_u32 s{S_XK}, s{S_XK}, 128")
    E(f"s_and_b32 s{S_XK}, s{S_XK}, 1023")
    vm.issue(("x", u), 2)


def f_dma_w(s, vm):
    base = F_WS0 + (s % 3) * F_WSZ
    E(f"s_add_u32 m0, s{S_W1K}, {base}")
    E("s_nop 0")
    E(f"buffer_load_dwordx4 v2, {sr(W1)}, s{S_WK} offen lds")
    E(f"s_add_u32 m0, s{S_W1K}, {base + 8192}")
    E("s_nop 0")
    E(f"buffer_load_dwordx4 v3, {sr(WU)}, s{S_WK} offen lds")
    E(f"s_add_u32 s{S_WK}, s{S_WK}, {32 * WROW}")
    E(f"s_cmp_eq_u32 s{S_WK}, {512 * WROW}")
    E(f"s_cselect_b32 s{S_WK}, 0, s{S_WK}")
    vm.issue(("w", s), 2)


def f_prologue():
    E(f"s_cmp_ge_u32 s2, {256 if O.no_f else 512}")
    E("s_cbranch_scc1 L_end")
    if O.diag_span:
        E("s_memrealtime s[92:93]")
        E("s_waitcnt lgkmcnt(0)")
    stamp(0)
    E(f"s_load_dwordx2 s[{X}:{X+1}], s[0:1], 0")
    E(f"s_load_dwordx2 s[{W1}:{W1+1}], s[0:1], 32")
    E(f"s_load_dwordx2 s[{WU}:{WU+1}], s[0:1], 40")
    E(f"s_load_dwordx2 s[{WS}:{WS+1}], s[0:1], 80")
    E(f"s_load_dwordx2 s[{DBG}:{DBG+1}], s[0:1], 72")
    E(f"s_load_dwordx2 s[{WD}:{WD+1}], s[0:1], 48")
    E(f"s_load_dwordx2 s[{WO}:{WO+1}], s[0:1], 16")
    E(f"s_load_dwordx2 s[{OUT}:{OUT+1}], s[0:1], 64")
    E(f"s_load_dwordx2 s[{GW}:{GW+1}], s[0:1], 56")
    E("v_lshrrev_b32 v8, 6, v0")
    E(f"s_bfe_u32 s{S_C}, s2, 0x50003")
    E(f"v_readfirstlane_b32 s{S_WAVE}, v8")
    E(f"s_cmp_ge_u32 s{S_C}, 28")
    E("s_cbranch_scc0 F_main")
    E("s_getpc_b64 s[4:5]")
    E.label("F_pc")
    E(f"s_add_u32 s4, s4, CODE_START - F_pc")
    E("s_addc_u32 s5, s5, -1")
    E("s_mov_b32 s6, CODE_END - CODE_START")
    E("s_mov_b32 s7, 0x20000")
    E("v_lshlrev_b32 v9, 7, v0")
    E("buffer_load_dword v120, v9, s[4:7], 0 offen")
    E("s_branch F_main")


L16, VB_, VW_, RB, RW, RB2, RW2, RWO, HT, GV, OUTA, EX0, EX1, RO, PFH, PFO = range(48, 64)
S_RT, S_DL, S_DB, S_HT, S_G, S_OL, S_OS, S_OUT, S_PH, S_PO, S_H0, S_H1, S_FL = range(70, 83) if False else (8, 9, 10, 11, 67, 96, 97, 98, 99, 100, 101, 63, 62)


def g2_setup():
    E(f"s_and_b32 s{S_RT}, s2, 7")
    if O.rswap:
        E(f"s_xor_b32 s{S_RT}, s{S_RT}, {O.rswap}")
    if O.rperm == 1:
        E(f"s_add_u32 s{S_T0}, s2, 1")
        E(f"s_and_b32 s{S_T0}, s{S_T0}, 3")
        E(f"s_lshl_b32 s{S_T0}, s{S_T0}, 1")
        E(f"s_lshr_b32 s{S_RT}, s{S_RT}, 2")
        E(f"s_add_u32 s{S_RT}, s{S_RT}, s{S_T0}")
    if O.rperm == 2:
        tab = [4, 0, 6, 2, 5, 1, 7, 3]
        word = sum(v << (4 * i) for i, v in enumerate(tab))
        E(f"s_lshl_b32 s{S_T0}, s{S_RT}, 2")
        E(f"s_lshr_b32 s{S_RT}, {word:#x}, s{S_T0}")
        E(f"s_and_b32 s{S_RT}, s{S_RT}, 7")
    E(f"s_lshl_b32 s{S_RT}, s{S_RT}, 2")
    E(f"s_and_b32 s{S_T1}, s{S_C}, 3")
    E(f"s_add_u32 s{S_RT}, s{S_RT}, s{S_T1}")
    E(f"s_lshr_b32 s{S_B}, s{S_C}, 2")
    E(f"s_mul_i32 s{S_DB}, s{S_RT}, {288 * 1024}")
    E(f"s_add_u32 s{S_DB}, s{S_DB}, {WS_HO:#x}")
    E(f"v_and_b32 v{L16}, 63, v0")
    E(f"v_lshlrev_b32 v{L16}, 4, v{L16}")
    E(f"s_and_b32 s{S_T0}, s{S_WAVE}, 1")
    E(f"s_lshr_b32 s{S_T2}, s{S_WAVE}, 1")
    E(f"s_mul_i32 s{S_T1}, s{S_T0}, 144")
    E(f"s_add_u32 s{S_T1}, s{S_T1}, s{S_T2}")
    E(f"s_lshl_b32 s{S_T1}, s{S_T1}, 10")
    E(f"v_add_u32 v{VB_}, s{S_T1}, v{L16}")
    E(f"s_lshl_b32 s{S_T1}, s{S_T0}, 2")
    E(f"s_add_u32 s{S_T1}, s{S_T1}, s{S_T2}")
    E(f"s_lshl_b32 s{S_DL}, s{S_T1}, 10")
    E("v_bfe_u32 v12, v0, 4, 1")
    E("v_lshlrev_b32 v13, 2, v12")
    E("v_xor_b32 v13, v13, v0")
    E("v_and_b32 v13, 7, v13")
    E("v_lshlrev_b32 v13, 4, v13")
    E("v_lshl_add_u32 v13, v9, 10, v13")
    E(f"s_lshl_b32 s{S_T1}, s{S_B}, 7")
    E(f"v_add_u32 v{VW_}, s{S_T1}, v13")
    E(f"s_lshr_b32 s{S_T3}, s{S_WAVE}, 2")
    E(f"s_lshl_b32 s{S_T1}, s{S_T0}, 12")
    E(f"s_lshl_b32 s{S_T2}, s{S_T3}, 11")
    E(f"s_add_u32 s{S_T1}, s{S_T1}, s{S_T2}")
    E(f"v_add_u32 v{RB}, s{S_T1}, v{L16}")
    E("v_bfe_u32 v13, v0, 2, 2")
    E("v_bfe_u32 v14, v0, 5, 1")
    E("v_lshl_add_u32 v15, v14, 2, v13")
    E("v_lshlrev_b32 v15, 7, v15")
    E("v_lshrrev_b32 v13, 1, v13")
    E(f"v_bfe_u32 v{HT}, v0, 7, 1")
    E(f"v_xor_b32 v13, v13, v{HT}")
    E("v_lshl_add_u32 v15, v13, 6, v15")
    E("v_lshl_add_u32 v15, v12, 5, v15")
    E("v_and_b32 v13, 3, v0")
    E("v_lshl_add_u32 v15, v13, 3, v15")
    E(f"s_lshl_b32 s{S_T1}, s{S_T3}, 12")
    E(f"s_add_u32 s{S_T1}, s{S_T1}, 8192")
    E(f"v_add_u32 v{RW}, s{S_T1}, v15")
    E(f"v_add_u32 v{RB2}, 0x10000, v{RB}")
    E(f"v_add_u32 v{RW2}, 0x10000, v{RW}")
    E(f"s_lshl_b32 s{S_T1}, s{S_T3}, 15")
    E(f"v_add_u32 v{RWO}, s{S_T1}, v15")
    E("v_and_b32 v13, 31, v0")
    E("v_bfe_u32 v15, v0, 6, 1")
    E("v_lshl_add_u32 v13, v15, 5, v13")
    E(f"v_lshlrev_b32 v{GV}, 2, v13")
    E("v_lshlrev_b32 v13, 10, v13")
    E("v_lshl_add_u32 v13, v14, 4, v13")
    E(f"v_lshl_add_u32 v13, v{HT}, 6, v13")
    E(f"s_lshl_b32 s{S_T1}, s{S_T3}, 5")
    E(f"v_add_u32 v{OUTA}, s{S_T1}, v13")
    E(f"s_lshl_b32 s{S_OUT}, s{S_RT}, 16")
    E(f"s_lshl_b32 s{S_T1}, s{S_B}, 7")
    E(f"s_add_u32 s{S_OUT}, s{S_OUT}, s{S_T1}")
    E(f"s_lshl_b32 s{S_G}, s{S_RT}, 8")
    E(f"s_add_u32 s{S_G}, s{S_G}, {WS_G:#x}")
    E(f"s_lshl_b32 s{S_T1}, s{S_B}, 3")
    E(f"s_add_u32 s{S_T1}, s{S_T1}, s{S_WAVE}")
    E(f"s_mul_i32 s{S_T1}, s{S_T1}, 1792")
    E(f"s_add_u32 s{S_HT}, s{S_T1}, s{S_DB}")
    E("v_and_b32 v13, 15, v0")
    E(f"v_lshlrev_b32 v{PFH}, 6, v13")
    E("v_lshlrev_b32 v13, 7, v13")
    E(f"v_mul_u32_u24 v12, {144 * 1024}, v12")
    E(f"v_add_u32 v{HT}, v13, v12")
    E(f"s_lshl_b32 s{S_T1}, s{S_WAVE}, 11")
    E(f"s_add_u32 s{S_T1}, s{S_T1}, 65536")
    E(f"s_xor_b32 s{S_T2}, s{S_T1}, 8192")
    E(f"v_add_u32 v{EX0}, s{S_T1}, v{L16}")
    E(f"v_add_u32 v{EX1}, s{S_T2}, v{L16}")
    E(f"s_bfe_u32 s{S_T2}, s{S_WAVE}, 0x10001")
    E(f"s_lshl_b32 s{S_T2}, s{S_T2}, 4")
    E(f"s_add_u32 s{S_T2}, s{S_T2}, s{S_T3}")
    E(f"s_lshl_b32 s{S_OL}, s{S_T0}, 5")
    E(f"s_add_u32 s{S_OL}, s{S_OL}, s{S_T2}")
    E(f"s_lshl_b32 s{S_OL}, s{S_OL}, 10")
    E(f"s_mul_i32 s{S_T1}, s{S_T0}, 144")
    E(f"s_add_u32 s{S_T1}, s{S_T1}, s{S_T2}")
    E(f"s_add_u32 s{S_T1}, s{S_T1}, 112")
    E(f"s_lshl_b32 s{S_T1}, s{S_T1}, 10")
    E(f"s_add_u32 s{S_OS}, s{S_DB}, s{S_T1}")
    E(f"s_lshl_b32 s{S_T0}, s{S_T0}, 15")
    E(f"s_lshl_b32 s{S_T3}, s{S_T3}, 14")
    E(f"s_add_u32 s{S_T0}, s{S_T0}, s{S_T3}")
    E(f"v_add_u32 v{RO}, s{S_T0}, v{L16}")
    E(f"v_lshlrev_b32 v{PFO}, 6, v0")
    E(f"s_lshr_b32 s{S_PH}, s{S_RT}, 1")
    E(f"s_lshl_b32 s{S_PH}, s{S_PH}, 10")
    E(f"s_add_u32 s{S_PH}, s{S_PH}, {WS_FH:#x}")
    E(f"s_lshl_b32 s{S_PO}, s{S_RT}, 12")
    E(f"s_add_u32 s{S_PO}, s{S_PO}, {WS_FO:#x}")


def f_main():
    E.label("F_main")
    srd(X, 0x200000); srd(W1, 512 * WROW); srd(WU, 512 * WROW); srd(WS, WS_SIZE); srd(DBG, 256)
    srd(WD, 1792 * 1024); srd(WO, 512 * 1024); srd(OUT, 0x200000); srd(GW, 1024)
    E(f"s_lshl_b32 s{S_W1K}, s{S_WAVE}, 10")
    E(f"s_setprio {O.prio_f if O.prio_up < 0 else O.prio_up}")
    E("v_lshrrev_b32 v9, 3, v0")
    E("v_lshrrev_b32 v10, 4, v0")
    E("v_xor_b32 v11, v10, v0")
    E("v_and_b32 v11, 7, v11")
    E("v_lshlrev_b32 v11, 4, v11")
    E("v_lshl_add_u32 v1, v9, 10, v11")
    g2_setup()
    E("s_waitcnt lgkmcnt(0)")
    if O.warm_steps:
        E(f"s_cmp_lt_u32 s{S_WAVE}, 4")
        E(f"s_cselect_b32 s4, s{W1}, s{WU}")
        E(f"s_cselect_b32 s5, s{W1+1}, s{WU+1}")
        E(f"s_mul_i32 s{S_T0}, s{S_C}, {WROW}")
        E(f"s_bfe_u32 s{S_T1}, s2, 0x10002")
        E(f"s_mul_i32 s{S_T1}, s{S_T1}, 1792")
        E(f"s_add_u32 s{S_T0}, s{S_T0}, s{S_T1}")
        E(f"s_and_b32 s{S_T1}, s{S_WAVE}, 3")
        E(f"s_mul_i32 s{S_T1}, s{S_T1}, 448")
        E(f"s_add_u32 s{S_T0}, s{S_T0}, s{S_T1}")
        E(f"s_add_u32 s4, s4, s{S_T0}")
        E("s_addc_u32 s5, s5, 0")
        E(f"s_mov_b32 s{S_CNT}, {O.warm_steps}")
        E.label("F_warm")
        for i in range(7):
            E(f"s_load_dword s6, s[4:5], {64*i}")
        E(f"s_add_u32 s4, s4, {32 * WROW}")
        E("s_addc_u32 s5, s5, 0")
        E(f"s_sub_u32 s{S_CNT}, s{S_CNT}, 1")
        E(f"s_cmp_lg_u32 s{S_CNT}, 0")
        E("s_cbranch_scc1 F_warm")
        E("s_waitcnt lgkmcnt(0)")
    if O.tlb:
        E(f"s_cmp_lg_u32 s{S_WAVE}, 1")
        E("s_cbranch_scc1 F_notlb")
        E("v_and_b32 v12, 63, v0")
        E(f"v_lshlrev_b32 v12, {O.tlb}, v12")
        for k in range(0, 0x1000000, 64 << O.tlb):
            E(f"s_mov_b32 s{S_T0}, {k}")
            E(f"buffer_load_dword v15, v12, {sr(WS)}, s{S_T0} offen")
        for b in (OUT, WD, WO):
            E(f"buffer_load_dword v15, v12, {sr(b)}, 0 offen")
        E.label("F_notlb")
    if O.f_touch:
        E(f"s_lshl_b32 s{S_T0}, s{S_C}, 2")
        E(f"s_and_b32 s{S_T1}, s{S_WAVE}, 3")
        E(f"s_add_u32 s{S_T0}, s{S_T0}, s{S_T1}")
        if O.t_rows == 192:
            E(f"s_lshr_b32 s{S_T2}, s{S_T0}, 1")
            E(f"s_add_u32 s{S_T2}, s{S_T2}, 128")
            E(f"s_sub_u32 s{S_T2}, s{S_T2}, s{S_T0}")
            E(f"s_mul_i32 s{S_T2}, s{S_T2}, 3584")
            E(f"s_and_b32 s{S_T3}, s{S_T0}, 1")
            E(f"s_mul_i32 s{S_T3}, s{S_T3}, 896")
            E(f"s_add_u32 s{S_T2}, s{S_T2}, s{S_T3}")
        else:
            E(f"s_mov_b32 s{S_T2}, {128 * 3584}")
        E(f"s_mul_i32 s{S_T0}, s{S_T0}, 3584")
        E(f"s_bfe_u32 s{S_T1}, s2, 0x10002")
        E(f"s_mul_i32 s{S_T1}, s{S_T1}, 1792")
        E(f"s_add_u32 s{S_T0}, s{S_T0}, s{S_T1}")
        E("v_bfe_u32 v12, v0, 4, 1")
        E(f"v_mul_u32_u24 v12, s{S_T2}, v12")
        E("v_and_b32 v13, 15, v0")
        E("v_lshl_add_u32 v12, v13, 7, v12")
        E(f"v_add_u32 v13, s{S_T0}, v12")
        E(f"s_cmp_lt_u32 s{S_WAVE}, 4")
        E(f"s_cselect_b32 s4, s{W1}, s{WU}")
        E(f"s_cselect_b32 s5, s{W1+1}, s{WU+1}")
        E(f"s_mov_b32 s6, {512 * WROW}")
        E("s_mov_b32 s7, 0x20000")
        if O.f_touch == 1:
            E("s_mov_b64 exec, 1")
            E(f"buffer_load_dword v15, v13, s[4:7], 0 offen")
            E("s_waitcnt vmcnt(0)")
            E(f"s_mov_b64 exec, {dict([(256, 0x3fff3fff), (192, 0x7f3fff), (128, 0x3fff)])[O.t_rows]:#x}")
            E(f"buffer_load_dword v15, v13, s[4:7], 0 offen{' nt' if O.nt0 & 2 else ''}")
            E("s_mov_b64 exec, -1")
    E(f"s_cmp_ge_u32 s{S_C}, 28")
    E("s_cbranch_scc1 F_gate")
    E(f"s_and_b32 s{S_T0}, s{S_C}, 3")
    E(f"s_lshr_b32 s{S_T1}, s{S_C}, 2")
    E(f"s_and_b32 s{S_A}, s2, 3")
    E(f"s_lshl_b32 s{S_A}, s{S_A}, 2")
    E(f"s_add_u32 s{S_A}, s{S_A}, s{S_T0}")
    E(f"s_bfe_u32 s{S_B}, s2, 0x10002")
    E(f"s_mul_i32 s{S_B}, s{S_B}, 7")
    E(f"s_add_u32 s{S_B}, s{S_B}, s{S_T1}")
    E(f"s_lshl_b32 s{S_T0}, s{S_T0}, 1")
    E(f"s_add_u32 s{S_T0}, s{S_T0}, s{S_T1}")
    E(f"s_and_b32 s{S_T0}, s{S_T0}, {7 if O.f_rot else 0}")
    E(f"s_lshl_b32 s{S_XK}, s{S_T0}, 7")
    E(f"s_mul_i32 s{S_WK}, s{S_T0}, {64 * WROW}")
    E(f"s_lshl_b32 s{S_XB}, s{S_A}, 17")
    E(f"v_mul_u32_u24 v9, {WROW}, v10")
    E("v_bfe_u32 v11, v0, 1, 3")
    E("v_and_b32 v10, 3, v10")
    E("v_xor_b32 v11, v11, v10")
    E("v_lshl_add_u32 v9, v11, 5, v9")
    E("v_and_b32 v11, 1, v0")
    E("v_lshl_add_u32 v9, v11, 4, v9")
    E(f"s_lshl_b32 s{S_T0}, s{S_B}, 8")
    E(f"v_add_u32 v2, s{S_T0}, v9")
    E("v_xor_b32 v3, 128, v2")
    vm = VM()

    def fill():
        f_dma_x(0, vm); f_dma_w(0, vm); f_dma_w(1, vm); f_dma_x(1, vm); f_dma_w(2, vm)

    if O.f_fill_early:
        fill()
    E("v_and_b32 v8, 31, v0")
    E("v_lshrrev_b32 v9, 1, v8")
    E("v_and_b32 v9, 7, v9")
    E("v_bfe_u32 v10, v0, 5, 1")
    E("v_xor_b32 v9, v9, v10")
    E("v_lshlrev_b32 v9, 4, v9")
    E("v_lshl_add_u32 v9, v8, 7, v9")
    E("v_bfe_u32 v8, v0, 6, 1")
    E("v_lshl_add_u32 v4, v8, 13, v9")
    for ks in (1, 2, 3):
        E(f"v_xor_b32 v{4+ks}, {32*ks}, v4")
    E("v_bfe_u32 v8, v0, 2, 2")
    E("v_lshl_add_u32 v9, v10, 3, v8")
    E("v_lshlrev_b32 v9, 8, v9")
    E("v_bfe_u32 v10, v0, 4, 1")
    E("v_lshl_add_u32 v9, v10, 13, v9")
    E("v_lshlrev_b32 v10, 2, v10")
    E("v_xor_b32 v8, v8, v10")
    E("v_lshrrev_b32 v10, 7, v0")
    E("v_lshlrev_b32 v10, 1, v10")
    E("v_xor_b32 v8, v8, v10")
    E("v_lshl_add_u32 v9, v8, 5, v9")
    E("v_and_b32 v8, 3, v0")
    E("v_lshl_add_u32 v9, v8, 3, v9")
    E(f"v_add_u32 v8, {F_WS0}, v9")
    E("v_xor_b32 v9, 32, v8")
    E(f"s_and_b32 s{S_T0}, s{S_WAVE}, 1")
    E(f"s_lshl_b32 s{S_T0}, s{S_T0}, 1")
    E(f"s_lshl_b32 s{S_T1}, s{S_A}, 2")
    E(f"s_add_u32 s{S_T0}, s{S_T0}, s{S_T1}")
    E(f"s_mul_i32 s{S_T0}, s{S_T0}, 144")
    E(f"s_lshl_b32 s{S_T1}, s{S_B}, 3")
    E(f"s_add_u32 s{S_T0}, s{S_T0}, s{S_T1}")
    E(f"s_and_b32 s{S_T1}, s{S_WAVE}, 6")
    E(f"s_add_u32 s{S_T0}, s{S_T0}, s{S_T1}")
    E(f"s_lshl_b32 s{S_T0}, s{S_T0}, 10")
    E(f"s_add_u32 s{S_H0}, s{S_T0}, {WS_HO:#x}")
    E(f"s_add_u32 s{S_H1}, s{S_H0}, {144 * 1024}")
    E(f"s_lshl_b32 s{S_T0}, s{S_A}, 10")
    E(f"s_lshl_b32 s{S_T1}, s{S_B}, 6")
    E(f"s_add_u32 s{S_T0}, s{S_T0}, s{S_T1}")
    E(f"s_add_u32 s{S_FL}, s{S_T0}, {WS_FH:#x}")
    E("v_mov_b32 v12, 1.0")
    E("v_lshlrev_b32 v14, 7, v0")
    E(f"v_lshlrev_b32 v13, 3, v{L16}")
    E(f"s_cmp_lg_u32 s{S_WAVE}, 0")
    E("s_cbranch_scc1 F_go")
    wait_start("F_tag", 1 if O.hint1 >= 0 else 0)
    E.label("F_go")
    if not O.f_fill_early:
        E("s_barrier")
        if O.f_touch == 3:
            f_dma_x(0, vm); f_dma_w(0, vm)
        if O.f_touch >= 2:
            E("s_mov_b64 exec, 0x3fff3fff")
            E(f"buffer_load_dword v15, v13, s[4:7], 0 offen{' nt' if O.nt0 & 2 else ''}")
            E("s_mov_b64 exec, -1")
            vm.issue("t")
        if O.f_touch == 3:
            f_dma_w(1, vm); f_dma_x(1, vm); f_dma_w(2, vm)
        else:
            fill()
    stamp(1)

    def reads(s, kk):
        b = 16 + 16 * kk
        u = s // 2
        L = []
        for i in (0, 1):
            L.append(f"ds_read_b128 {vr(b+4*i,4)}, v{4 + 2*(s&1) + kk} offset:{(u % 2) * F_XS + i * 4096}")
            for q in (0, 1):
                L.append(f"ds_read_b64_tr_b16 {vr(b+8+4*i+2*q,2)}, v{8+i} offset:{(s % 3) * F_WSZ + kk * 4096 + q * 1024}")
        return L

    def mfmas(s, kk):
        b = 16 + 16 * kk
        L = []
        for rbk, bb in ((0, 0), (0, 1), (1, 1), (1, 0)):
            acc = vr(64 + 16 * (2 * rbk + bb), 16)
            c = "0" if (s == 0 and kk == 0) else acc
            L.append(f"v_mfma_f32_32x32x16_bf16 {acc}, {vr(b+8+4*bb,4)}, {vr(b+4*rbk,4)}, {c}")
        return L

    E(f"s_waitcnt vmcnt({vm.need(('x',0),('w',0))})")
    E("s_barrier")
    stamp(2)
    for x in reads(0, 0):
        E(x)
    def paced(s, kk):
        M, R = mfmas(s, kk), reads(s, kk)
        [E(x) for x in R[:3]]; E("s_waitcnt lgkmcnt(0)"); E(M[0])
        [E(x) for x in R[4:]]; E("s_waitcnt lgkmcnt(0)"); E(M[1])
        E(R[3]); E("s_waitcnt lgkmcnt(0)"); E(M[2]); E(M[3])

    for s in range(16):
        if s > O.pace_from:
            paced(s, 0)
            paced(s, 1)
            if s < 15:
                E(f"s_waitcnt vmcnt({vm.need(('x',(s+1)//2),('w',s+1))})")
                E("s_barrier")
                if s + 3 <= 15:
                    f_dma_w(s + 3, vm)
                if s % 2 == 1 and (s + 1) // 2 + 1 <= 7:
                    f_dma_x((s + 1) // 2 + 1, vm)
                if s in (3, 7, 11):
                    stamp(10 + s // 4)
            continue
        if O.boost_mask and (s == 0 or ((O.boost_mask >> s) ^ (O.boost_mask >> (s - 1))) & 1):
            E(f"s_setprio {O.prio_boost if (O.boost_mask >> s) & 1 else O.prio_f}")
        M, R = mfmas(s, 0), reads(s, 1)
        E("s_waitcnt lgkmcnt(0)")
        E(M[0]); [E(x) for x in R[:3]]; E(M[1]); [E(x) for x in R[3:]]; E(M[2]); E(M[3])
        M = mfmas(s, 1)
        if s == 2 and O.hint1 >= 0 and O.hold:
            E("s_waitcnt lgkmcnt(0)")
            [E(x) for x in M]
            E(f"s_cmp_lg_u32 s{S_WAVE}, 0")
            E("s_cbranch_scc1 F_go2")
            wait_start("F_tag2", 0, False)
            E.label("F_go2")
            E("s_barrier")
            f_dma_w(3, vm); f_dma_w(4, vm); f_dma_x(2, vm); f_dma_w(5, vm)
            E(f"s_waitcnt vmcnt({vm.need(('w', 3))})")
            E("s_barrier")
            [E(x) for x in reads(3, 0)]
            continue
        if s < 15:
            E(f"s_waitcnt vmcnt({vm.need(('x',(s+1)//2),('w',s+1))}) lgkmcnt(0)")
            E("s_barrier")
            R = reads(s + 1, 0) if s + 1 <= O.pace_from else []
            E(M[0]); [E(x) for x in R[:3]]; E(M[1]); [E(x) for x in R[3:]]; E(M[2])
            hold = O.hint1 >= 0 and O.hold and s < 2
            if s + 3 <= 15 and not hold:
                f_dma_w(s + 3, vm)
            E(M[3])
            if s % 2 == 1 and (s + 1) // 2 + 1 <= 7 and not hold:
                f_dma_x((s + 1) // 2 + 1, vm)
            if O.wd_step <= s < O.wd_step + O.wd_parts:
                E(f"s_lshl_b32 s{S_T0}, s{S_C}, 16")
                if O.wd_parts > 1:
                    n = 64 // O.wd_parts
                    m = ((1 << n) - 1) << (n * (s - O.wd_step))
                    E(f"s_mov_b32 exec_lo, {m & 0xffffffff:#x}")
                    E(f"s_mov_b32 exec_hi, {m >> 32:#x}")
                E(f"buffer_load_dword v15, v14, {sr(WD)}, s{S_T0} offen")
                if O.wd_parts > 1:
                    E("s_mov_b64 exec, -1")
                vm.issue("wd")
            if s == O.wo_step:
                E(f"s_lshl_b32 s{S_T0}, s{S_C}, 3")
                E(f"s_add_u32 s{S_T0}, s{S_T0}, s{S_WAVE}")
                E(f"s_mul_i32 s{S_T0}, s{S_T0}, {19 * 128}")
                E("s_mov_b64 exec, 0x7ffff")
                E(f"buffer_load_dword v15, v13, {sr(WO)}, s{S_T0} offen")
                E("s_mov_b64 exec, -1")
                vm.issue("wo")
            if s == O.f_touch2:
                E(f"s_mov_b32 s{S_T0}, {256 * 3584}")
                E("s_mov_b64 exec, 0x3fff3fff")
                E(f"buffer_load_dword v15, v13, s[4:7], s{S_T0} offen")
                E("s_mov_b64 exec, -1")
                vm.issue("t2")
            if s in (3, 7, 11) and not O.dn_stamps:
                stamp(10 + s // 4)
        else:
            E("s_waitcnt lgkmcnt(0)")
            [E(x) for x in M]
    stamp(3)
    if O.a_exit:
        flush_stamps(range(13), "F_st0")
        E("s_endpgm")
    E(f"s_setprio {O.prio_silu}")
    E("s_barrier")
    if not O.wo_batch and not O.wo_late:
        wo_stage()
    E(f"s_mov_b32 s{S_T2}, {NLOG2E:#x}")
    E(f"s_mov_b32 s{S_T3}, {NLOG2E:#x}")
    if O.wo_batch or O.wo_late:
        E("s_nop 7")
    for tl in range(4):
        a = 64 + 16 * tl
        t = 16 + 8 * (tl & 1)
        pk = 32 + 4 * tl
        for i in range(4):
            E(f"v_pk_mul_f32 {vr(t+2*i,2)}, {vr(a+2*i,2)}, s[{S_T2}:{S_T3}]")
        for i in range(8):
            E(f"v_exp_f32 v{t+i}, v{t+i}")
        for i in range(4):
            E(f"v_pk_mul_f32 {vr(a+2*i,2)}, {vr(a+2*i,2)}, {vr(a+8+2*i,2)}")
        for i in range(4):
            E(f"v_pk_add_f32 {vr(t+2*i,2)}, {vr(t+2*i,2)}, v[12:13] op_sel_hi:[1,0]")
        for i in range(8):
            E(f"v_rcp_f32 v{t+i}, v{t+i}")
        E("s_nop 0")
        for i in range(4):
            E(f"v_pk_mul_f32 {vr(a+2*i,2)}, {vr(a+2*i,2)}, {vr(t+2*i,2)}")
        for i in range(4):
            E(f"v_cvt_pk_bf16_f32 v{pk+i}, v{a+2*i}, v{a+2*i+1}")
        E(f"buffer_store_dwordx4 {vr(pk,4)}, v{L16}, {sr(WS)}, s{(S_H0, S_H1)[tl >> 1]} offen offset:{(tl & 1) * 1024} sc0 sc1")
        if O.wo_batch:
            for i in (2 * tl, 2 * tl + 1):
                E(f"s_add_u32 m0, s{S_W1K}, {i * 8192}")
                E(f"s_mov_b32 s{S_T0}, {i * 65536}")
                E(f"buffer_load_dwordx4 v{VW_}, {sr(WO)}, s{S_T0} offen lds")
    if O.wo_late:
        wo_stage()
        E("s_waitcnt vmcnt(8)")
        E("s_branch F_pub2")
    E.label("F_pub")
    E("s_waitcnt vmcnt(0)")
    E.label("F_pub2")
    E("s_barrier")
    stamp(4)
    E(f"s_cmp_lg_u32 s{S_WAVE}, 0")
    E("s_cbranch_scc1 F_wait2")
    put_flag(S_FL)
    E("s_nop 0")
    E.label("F_wait2")
    if O.wo_late:
        E("s_waitcnt vmcnt(0)")
        E("s_barrier")
    wf = lambda k: (4 * k) if k < 4 else (80 + 4 * (k - 4))
    for k in range(16):
        for q in (0, 1):
            E(f"ds_read_b64_tr_b16 {vr(wf(k) + 2*q, 2)}, v{RWO} offset:{k * 2048 + q * 1024}")
    NS = O.dn_ns
    E("s_waitcnt lgkmcnt(0)")
    E("s_barrier")
    for st in range(NS):
        E(f"s_add_u32 m0, s{S_W1K}, {st * 16384 + 8192}")
        E(f"s_mov_b32 s{S_T0}, {st * 65536}")
        E(f"buffer_load_dwordx4 v{VW_}, {sr(WD)}, s{S_T0} offen lds")
    E(f"s_cmp_lg_u32 s{S_WAVE}, 0")
    E("s_cbranch_scc1 F_wait2b")
    poll("F_pollh", PFH, f"s{S_PH}", False, 16, O.sl_h)
    E.label("F_wait2b")
    E("s_barrier")
    stamp(5)
    vd = VM()

    def dma(st, skip_w=False):
        slot = st % NS
        E(f"s_add_u32 m0, s{S_DL}, {slot * 16384}")
        E(f"s_add_u32 s{S_T0}, s{S_DB}, {st * 4096}")
        E(f"buffer_load_dwordx4 v{VB_}, {sr(WS)}, s{S_T0} offen sc1 lds")
        vd.issue(st)
        if skip_w:
            return
        E(f"s_add_u32 m0, s{S_W1K}, {slot * 16384 + 8192}")
        E(f"s_mov_b32 s{S_T0}, {st * 65536}")
        E(f"buffer_load_dwordx4 v{VW_}, {sr(WD)}, s{S_T0} offen lds")
        vd.issue(st)

    def greads(st):
        slot = st % NS
        b = 16 + 16 * (st & 1)
        vb, vw, base = (RB, RW, slot * 16384) if slot < 4 else (RB2, RW2, 0)
        L = []
        for kk in (0, 1):
            L.append(f"ds_read_b128 {vr(b+4*kk,4)}, v{vb} offset:{base + kk * 1024}")
            for q in (0, 1):
                L.append(f"ds_read_b64_tr_b16 {vr(b+8+4*kk+2*q,2)}, v{vw} offset:{base + kk * 2048 + q * 1024}")
        return L

    for t in range(O.ht_pos):
        dma(t, True)
    E("s_mov_b64 exec, 0x3fff3fff")
    E(f"buffer_load_dword v{HT}, v{HT}, {sr(WS)}, s{S_HT} offen sc1")
    E("s_mov_b64 exec, -1")
    E(f"buffer_load_dword v{GV}, v{GV}, {sr(WS)}, s{S_G} offen sc1")
    vd.issue("h", 2)
    for t in range(O.ht_pos, NS):
        dma(t, True)
    issued = NS
    E(f"s_setprio {O.prio_dn}")
    bars = [t for t in range(27) if t >= O.dn_grp_until or t % O.dn_grp == O.dn_grp - 1]
    E(f"s_waitcnt vmcnt({vd.need(*range(0, bars[0] + 1))})")
    E("s_barrier")
    [E(x) for x in greads(0)]
    for t in range(28):
        b = 16 + 16 * (t & 1)
        M = [f"v_mfma_f32_32x32x16_bf16 v[64:79], {vr(b+8+4*kk,4)}, {vr(b+4*kk,4)}, {'0' if t + kk == 0 else 'v[64:79]'}" for kk in (0, 1)]
        if t == O.dn_low:
            E(f"s_setprio {O.prio_f_late}")
        if O.dn_stamps and t in (4, 12, 20):
            stamp(10 + t // 8)
        if t in bars:
            nxt = min([x for x in bars if x > t] + [27])
            E(f"s_waitcnt vmcnt({vd.need(*range(t + 1, nxt + 1))}) lgkmcnt(0)")
            E("s_barrier")
        else:
            E("s_waitcnt lgkmcnt(0)")
        R = greads(t + 1) if t < 27 else []
        E(M[0]); [E(x) for x in R[:3]]; E(M[1]); [E(x) for x in R[3:]]
        if t in bars:
            while issued <= min(27, t + NS):
                dma(issued)
                issued += 1
    stamp(6)
    E(f"s_cmp_lg_u32 s{S_WAVE}, 0")
    E("s_cbranch_scc1 F_wait3")
    E("s_setprio 3")
    if O.o_touch:
        E(f"v_lshrrev_b32 v17, 9, v{L16}")
        E(f"v_mul_u32_u24 v17, {144 * 1024 - 32 * 1024}, v17")
        E(f"v_lshl_add_u32 v17, v{L16}, 6, v17")
        E(f"s_lshr_b32 s{S_T0}, s{S_C}, 2")
        E(f"s_lshl_b32 s{S_T0}, s{S_T0}, 7")
        E(f"s_add_u32 s{S_T0}, s{S_T0}, s{S_DB}")
        E(f"s_add_u32 s{S_T0}, s{S_T0}, {112 * 1024}")
        E("s_mov_b64 s[4:5], -1")
        E(f"s_mov_b32 s{S_SPIN}, 0x40000")
        E.label("F_pollo")
        E(f"buffer_load_dword v16, v{PFO}, {sr(WS)}, s{S_PO} offen sc1")
        E("s_waitcnt vmcnt(0)")
        E(f"v_cmp_ne_u32 vcc, s{S_TAG}, v16")
        E("s_nop 4")
        E("s_cmp_eq_u64 vcc, 0")
        E("s_cbranch_scc1 F_pollo_ok")
        E("s_andn2_b64 s[6:7], s[4:5], vcc")
        E("s_cbranch_scc0 F_pollo_n")
        E("s_mov_b64 s[4:5], vcc")
        E("s_mov_b64 exec, s[6:7]")
        E(f"buffer_load_dword v18, v17, {sr(WS)}, s{S_T0} offen sc1")
        E("s_mov_b64 exec, -1")
        E.label("F_pollo_n")
        E(f"s_sleep {O.sl_o}")
        E(f"s_sub_u32 s{S_SPIN}, s{S_SPIN}, 1")
        E(f"s_cmp_lg_u32 s{S_SPIN}, 0")
        E("s_cbranch_scc1 F_pollo")
        E.label("F_pollo_ok")
    else:
        poll("F_pollo", PFO, f"s{S_PO}", False, 16, O.sl_o)
    E.label("F_wait3")
    E("s_setprio 3")
    E("s_barrier")
    stamp(7)
    for i in range(8):
        E(f"s_add_u32 m0, s{S_OL}, {i * 2048}")
        E(f"s_add_u32 s{S_T0}, s{S_OS}, {i * 2048}")
        E(f"buffer_load_dwordx4 v{L16}, {sr(WS)}, s{S_T0} offen sc1 lds")
    E(f"v_sub_f32 v{HT}, 1.0, v{GV}")
    for i in range(16):
        E(f"v_mul_f32 v{64+i}, v{HT}, v{64+i}")
    cuts = {2: (0, 8, 16), 4: (0, 4, 8, 12, 16), 3: (0, 8, 12, 16)}[O.o_parts]
    for lo, hi in zip(cuts[:-1], cuts[1:]):
        per = hi - lo
        E(f"s_waitcnt vmcnt({8 - hi // 2})")
        E("s_barrier")
        for k in range(4):
            E(f"ds_read_b128 {vr(32 + 4*k, 4)}, v{RO} offset:{(lo + k) * 1024}")
        for k in range(per):
            E(f"s_waitcnt lgkmcnt({min(3, per - 1 - k)})")
            E(f"v_mfma_f32_32x32x16_bf16 v[16:31], {vr(wf(lo + k), 4)}, {vr(32 + 4*(k % 4), 4)}, {'0' if lo + k == 0 else 'v[16:31]'}")
            if k + 4 < per:
                E(f"ds_read_b128 {vr(32 + 4*k, 4)}, v{RO} offset:{(lo + 4 + k) * 1024}")
    stamp(8)
    E(f"s_cmp_ge_u32 s{S_WAVE}, 4")
    E("s_cbranch_scc1 F_hi")
    for hi in (0, 1):
        keep, send = (0, 8) if not hi else (8, 0)
        if hi:
            E.label("F_hi")
        E("s_nop 9")
        for i in range(8):
            E(f"v_fmac_f32 v{64+send+i}, v{GV}, v{16+send+i}")
        E(f"ds_write_b128 v{EX0}, {vr(64+send,4)}")
        E(f"ds_write_b128 v{EX0}, {vr(68+send,4)} offset:1024")
        for i in range(8):
            E(f"v_fmac_f32 v{64+keep+i}, v{GV}, v{16+keep+i}")
        E("s_waitcnt lgkmcnt(0)")
        E("s_barrier")
        E(f"ds_read_b128 v[20:23], v{EX1}")
        E(f"ds_read_b128 v[24:27], v{EX1} offset:1024")
        E("s_waitcnt lgkmcnt(1)")
        for i in range(8):
            if i == 4:
                E("s_waitcnt lgkmcnt(0)")
            E(f"v_add_f32 v{64+keep+i}, v{64+keep+i}, v{20+i}")
        for i in range(4):
            E(f"v_cvt_pk_bf16_f32 v{16+i}, v{64+keep+2*i}, v{65+keep+2*i}")
        if not hi:
            E("s_branch F_x")
    E.label("F_x")
    E("s_nop 1")
    E("v_permlane32_swap_b32 v16, v18")
    E("v_permlane32_swap_b32 v17, v19")
    E(f"buffer_store_dwordx4 v[16:19], v{OUTA}, {sr(OUT)}, s{S_OUT} offen")
    stamp(9)
    flush_stamps(range(13), "F_st")
    if O.diag_span:
        E.label("F_diag")
        E("s_memrealtime s[4:5]")
        E("s_waitcnt lgkmcnt(0)")
        E("s_sub_u32 s4, s4, s92")
        E(f"s_cmp_lt_u32 s4, {O.diag_span}")
        E("s_cbranch_scc1 F_diag")
    E("s_endpgm")

    E.label("F_gate")
    if O.a_exit:
        E("s_endpgm")
    E(f"s_cmp_lg_u32 s{S_WAVE}, 0")
    E("s_cbranch_scc1 F_gate1")
    wait_start("F_tag3", 0 if O.hint_step == 17 else 2)
    E.label("F_gate1")
    E("s_setprio 3")
    E("s_barrier")
    E(f"s_and_b32 s{S_A}, s2, 7")
    E(f"s_lshl_b32 s{S_A}, s{S_A}, 2")
    E(f"s_add_u32 s{S_A}, s{S_A}, s{S_C}")
    E(f"s_sub_u32 s{S_A}, s{S_A}, 28")
    E(f"s_lshl_b32 s{S_T0}, s{S_A}, 16")
    E("v_and_b32 v10, 7, v0")
    E("v_lshlrev_b32 v10, 4, v10")
    E("v_lshl_add_u32 v11, v9, 10, v10")
    for i in range(8):
        E(f"buffer_load_dwordx4 {vr(64+4*i,4)}, v10, {sr(GW)}, 0 offen offset:{128*i}")
    for i in range(8):
        E(f"buffer_load_dwordx4 {vr(16+4*i,4)}, v11, {sr(X)}, s{S_T0} offen offset:{128*i}")
        if i % O.g_batch == O.g_batch - 1:
            E("s_waitcnt vmcnt(0)")
    E("v_mov_b32 v12, 0")
    E("v_mov_b32 v13, 0")
    E("s_waitcnt vmcnt(0)")
    for i in range(32):
        E(f"v_dot2_f32_bf16 v{12 + (i & 1)}, v{16+i}, v{64+i}, v{12 + (i & 1)}")
        if i % 2 == 1:
            E("s_nop 0")
    E("s_nop 2")
    E("v_add_f32 v12, v12, v13")
    for ctl in ("quad_perm:[1,0,3,2]", "quad_perm:[2,3,0,1]", "row_half_mirror"):
        E("s_nop 1")
        E(f"v_add_f32_dpp v12, v12, v12 {ctl} row_mask:0xf bank_mask:0xf")
    E(f"v_mul_f32 v12, {NLOG2E:#x}, v12")
    E("v_exp_f32 v12, v12")
    E("s_nop 0")
    E("v_add_f32 v12, 1.0, v12")
    E("v_rcp_f32 v12, v12")
    E("v_lshlrev_b32 v11, 2, v9")
    E(f"s_lshl_b32 s{S_T0}, s{S_A}, 8")
    E(f"s_add_u32 s{S_T0}, s{S_T0}, {WS_G:#x}")
    E("v_cmp_eq_u32 vcc, 0, v10")
    E("s_nop 4")
    E("s_mov_b64 exec, vcc")
    E(f"buffer_store_dword v12, v11, {sr(WS)}, s{S_T0} offen sc0 sc1")
    E("s_mov_b64 exec, -1")
    for i in (1, 2, 3, 10, 11, 12):
        stamp(i)
    E(f"s_lshr_b32 s{S_T0}, s{S_A}, 1")
    E(f"s_lshl_b32 s{S_T0}, s{S_T0}, 10")
    E(f"s_and_b32 s{S_T1}, s{S_A}, 1")
    E(f"s_lshl_b32 s{S_T1}, s{S_T1}, 6")
    E(f"s_add_u32 s{S_T0}, s{S_T0}, s{S_T1}")
    E(f"s_add_u32 s{S_FL}, s{S_T0}, {WS_FH + 14 * 64:#x}")
    wo_stage(O.g_batch)
    E("s_branch F_pub")


def out_addr():
    E("v_lshlrev_b32 v8, 10, v8")
    E("v_bfe_u32 v9, v0, 5, 1")
    E("v_lshl_add_u32 v8, v9, 4, v8")
    E("v_bfe_u32 v9, v0, 7, 1")
    E("v_lshl_add_u32 v8, v9, 6, v8")
    E("v_lshrrev_b32 v9, 8, v0")
    E("v_lshl_add_u32 v8, v9, 5, v8")
    E(f"s_lshl_b32 s{S_XK}, s{S_A}, 16")
    E(f"s_lshl_b32 s{S_T1}, s{S_B}, 7")
    E(f"s_add_u32 s{S_XK}, s{S_XK}, s{S_T1}")
    E(f"s_lshl_b32 s{S_T1}, s{S_WAVE}, 11")
    E(f"s_add_u32 s{S_T1}, s{S_T1}, 65536")
    E(f"s_xor_b32 s{S_T2}, s{S_T1}, 8192")
    E(f"v_add_u32 v6, s{S_T1}, v12")
    E(f"v_add_u32 v7, s{S_T2}, v12")


def voff_w():
    E("v_bfe_u32 v2, v0, 4, 1")
    E("v_lshlrev_b32 v2, 2, v2")
    E("v_xor_b32 v2, v2, v0")
    E("v_and_b32 v2, 7, v2")
    E("v_lshlrev_b32 v2, 4, v2")
    E("v_lshrrev_b32 v11, 3, v0")
    E("v_lshl_add_u32 v2, v11, 10, v2")
    E(f"s_lshr_b32 s{S_T1}, s{S_C}, 2")
    E(f"s_lshl_b32 s{S_T1}, s{S_T1}, 7")
    E(f"v_add_u32 v2, s{S_T1}, v2")


def wo_stage(batch=0):
    for i in range(8):
        E(f"s_add_u32 m0, s{S_W1K}, {i * 8192}")
        E(f"s_mov_b32 s{S_T0}, {i * 65536}")
        E(f"buffer_load_dwordx4 v{VW_}, {sr(WO)}, s{S_T0} offen lds")
        if batch and i % batch == batch - 1:
            E("s_waitcnt vmcnt(0)")


def _m_fix_base():
    E(f"s_mul_i32 s{S_XB}, s{S_A}, {288 * 1024}")
    E(f"s_add_u32 s{S_XB}, s{S_XB}, {WS_HO:#x}")


HEADER = """; Kernarg layout (88 bytes, ptrs only, base s[0:1]):
; @launch grid=(512,1,1) block=(512,1,1) lds=81920
.amdgcn_target "amdgcn-amd-amdhsa--gfx950"
.text
.globl {kn}
.p2align 8
.type {kn},@function
{kn}:
CODE_START:
"""

FOOTER = """CODE_END:
.section .rodata,"a"
.p2align 6
.amdhsa_kernel {kn}
  .amdhsa_next_free_vgpr 128
  .amdhsa_next_free_sgpr 102
  .amdhsa_accum_offset 128
  .amdhsa_group_segment_fixed_size 0
  .amdhsa_kernarg_size 88
  .amdhsa_user_sgpr_count 2
  .amdhsa_user_sgpr_kernarg_segment_ptr 1
  .amdhsa_system_sgpr_workgroup_id_x 1
.end_amdhsa_kernel
"""


def generate():
    E.L = []
    if O.scramble:
        E("s_and_b32 s3, s2, 7")
        E("s_lshl_b32 s3, s3, 3")
        E("s_bfe_u32 s4, s2, 0x30003")
        E("s_and_b32 s2, s2, 0xffffffc0")
        E("s_or_b32 s2, s2, s3")
        E("s_or_b32 s2, s2, s4")
    E("s_cmp_ge_u32 s2, 256")
    E("s_cbranch_scc1 F_entry")
    stamp(0)
    if O.only_down:
        E("s_endpgm")
    a_prologue()
    E("s_cbranch_vccnz A_vwave")
    E("s_branch A_qwave")
    E.label("F_entry")
    f_prologue()
    E.label("L_end")
    E("s_endpgm")
    E.label("A_qwave")
    a_qkv(False)
    E("s_branch A_att")
    E.label("A_vwave")
    a_qkv(True)
    E.label("A_att")
    a_attention()
    f_main()
    return HEADER.format(kn=KN) + "\n".join(E.L) + "\n" + FOOTER.format(kn=KN)


if __name__ == "__main__":
    ap = argparse.ArgumentParser()
    ap.add_argument("-o", default="k.s")
    ap.add_argument("--set", action="append", default=[])
    a = ap.parse_args()
    for kv in a.set:
        k, v = kv.split("=")
        assert hasattr(O, k), k
        setattr(O, k, type(getattr(O, k))(int(v)))
    s = generate()
    open(a.o, "w").write(s)
    sys.path.insert(0, "cdna_kernels")
    from cdna_launch import with_harness_metadata, address_register_problem
    h = a.o[:-2] + ".harness.s"
    co = a.o[:-2] + ".co"
    open(h, "w").write(with_harness_metadata(s, KN, 11, launch_lists=True))
    r = subprocess.run(["clang", "-x", "assembler", "-target", "amdgcn-amd-amdhsa", "-mcpu=gfx950", h, "-o", co],
                       capture_output=True, text=True)
    if r.returncode:
        print(r.stderr[:4000]); sys.exit(1)
    p = address_register_problem(co, KN)
    print("check:", p)
    r = subprocess.run(f"llvm-nm {co} | grep -E 'CODE_|A_qwave|A_vwave|A_att|A_loop|A_fin|A_slow|F_entry|F_main|F_pub|F_dloop|F_gate$' | sort", shell=True, capture_output=True, text=True)
    print(r.stdout)
```

```python
import sys, subprocess, argparse

NAME = "gated_mix__softmax_full_mha__swiglu_ffn__prompt"
KN = NAME + "_kernel"

WS_KV, WS_Q, WS_HO = 0, 0x400000, 0x600000
WS_G = 0xF04000
WS_FO2 = 0xF40000
WS_FKV, WS_FH, WS_FO, WS_FS = 0xF08000, 0xF0C000, 0xF20000, 0xF07000
WS_STAMP = 0x1000000
WS_SIZE = 0x1100000
QSCALE = 0x3EB8AA3B
NLOG2E = 0xBFB8AA3B
THR2 = 0x45548000


class Opt:
    stamps = False
    hint_step = 17
    f_fill_early = False
    force_slow = False
    prio_a_qkv = 3
    prio_a_att = 2
    prio_f = 0
    prio_f_late = 0
    zrows = 1
    toggle = 0
    touch_gu = 0
    touch = 0
    warm_steps = 0
    f_rot = 0
    a_exit = 0
    kv_rot = 0
    ga = 2
    gb = 3
    gc = 5
    kv_first = 2
    wd_t0 = 3
    wo_t = 1
    f_touch = 1
    f_touch2 = 99
    bal = 4
    pace_from = 99
    prio_up = -1
    prio_dn = 0
    boost_mask = 31
    prio_boost = 3
    hint1 = 11
    f_wd = 1
    pair = 1
    dn_stamps = 0
    wo_early = 1
    scramble = 0
    dbg_out = 0
    hold = 0
    kv_wait1 = 1
    piped = 0
    dn_ns = 5
    dn_grp = 2
    dn_grp_until = 16
    dn_low = 99
    twice = 0
    o_parts = 2
    x_noack = 0
    x_noex = 0
    wd_step = 13
    wd_parts = 1
    ht_pos = 2
    nt0 = 0
    order0 = 0
    diag_span = 0
    w_first = 1
    early_o = 0
    x_fail = 0
    t_rows = 256
    tlb = 0
    rf_late = 0
    bar_diag = 0
    kv_cnt = 0
    g_batch = 2
    wo_step = 9
    wo_batch = 0
    qswap = 7
    hswap = 1
    rswap = 2
    sl_o = 2
    sl_h = 2
    rperm = 0
    amap = 0
    sl_kv = 0
    sl_s = 2
    wo_late = 0
    o_touch = 0
    flip = 0
    pflip = 0
    g_step = 13
    only_down = 0
    d_rot = 0
    h_touch = 1
    att_iters = 8
    prio_silu = 3
    gate_late = 1
    h_sc1 = 1
    no_f = 0
    late_iter = 99


O = Opt()


class Asm:
    def __init__(self):
        self.L = []

    def __call__(self, s):
        for x in s.strip("\n").split("\n"):
            self.L.append("    " + x.strip())

    def label(self, l):
        self.L.append(l + ":")

    def raw(self, s):
        self.L.append(s)


E = Asm()


def vr(a, n):
    return f"v[{a}:{a+n-1}]"


def srd(base, size):
    E(f"s_mov_b32 s{base+2}, {size:#x}")
    E(f"s_mov_b32 s{base+3}, 0x20000")


S_WAVE = 3
X, W1, WU, WS, DBG, WD, WO, OUT, GW = 12, 16, 20, 24, 28, 32, 36, 40, 44
def sr(b): return f"s[{b}:{b+3}]"
S_TAG = 48
S_W1K = 49
S_T0, S_T1, S_T2, S_T3 = 50, 51, 52, 53
S_XK, S_XB, S_WK, S_WB = 54, 55, 56, 57
S_CNT = 58
S_A, S_B, S_C, S_D = 59, 60, 61, 62
S_SLOT = 63
S_VM = 64
S_SPIN = 66
S_STAMP = 70


def stamp(i):
    if O.stamps:
        E(f"s_memrealtime s[{S_STAMP+2*i}:{S_STAMP+2*i+1}]")
        E(f"s_memtime s[68:69]")
        E("s_waitcnt lgkmcnt(0)")
        E(f"s_mov_b32 s{S_STAMP+2*i+1}, s68")


def cstamp(i):
    if O.stamps:
        E(f"s_memtime s[{S_STAMP+2*i}:{S_STAMP+2*i+1}]")
        E("s_waitcnt lgkmcnt(0)")


def flush_stamps(idx, lab):
    if not O.stamps:
        return
    E(f"s_cmp_lg_u32 s{S_WAVE}, 0")
    E(f"s_cbranch_scc1 {lab}")
    E(f"s_lshl_b32 s{S_T0}, s2, 7")
    E(f"s_add_u32 s{S_T0}, s{S_T0}, {WS_STAMP:#x}")
    E("s_mov_b64 exec, 1")
    E("v_mov_b32 v1, 0")
    for i in idx:
        E(f"v_mov_b32 v2, s{S_STAMP+2*i}")
        E(f"buffer_store_dword v2, v1, {sr(WS)}, s{S_T0} offen offset:{4*i}")
        E(f"v_mov_b32 v3, s{S_STAMP+2*i+1}")
        E(f"buffer_store_dword v3, v1, {sr(WS)}, s{S_T0} offen offset:{64+4*i}")
    if O.dbg_out:
        E(f"s_and_b32 s{S_T0}, s2, 255")
        E(f"s_cmp_lg_u32 s{S_T0}, 77")
        E(f"s_cbranch_scc1 {lab}_d")
        sel, base = ((0, 1, 2, 5, 6, 7), 1) if lab.startswith("A") else ((1, 2, 3, 5, 6, 7, 9), 9)
        for n, i in enumerate(sel):
            E(f"v_mov_b32 v2, s{S_STAMP+2*i}")
            if n:
                E(f"v_subrev_u32 v2, s{S_STAMP}, v2")
            E(f"buffer_store_dword v2, v1, {sr(DBG)}, 0 offen offset:{4*(base+n)}")
        if lab.startswith("A"):
            E(f"s_sub_u32 s{S_T0}, s{S_STAMP+13}, s{S_STAMP+11}")
            E(f"v_mov_b32 v2, s{S_T0}")
            E(f"buffer_store_dword v2, v1, {sr(DBG)}, 0 offen offset:28")
        E.label(lab + "_d")
    E("s_waitcnt vmcnt(0)")
    E.label(lab)


class VM:
    def __init__(self):
        self.q = []

    def issue(self, tag, n=1):
        self.q += [tag] * n

    def need(self, *tags):
        last = -1
        for i, t in enumerate(self.q):
            if t in tags:
                last = i
        for t in tags:
            assert t in self.q, t
        return len(self.q) - 1 - last


def poll(lab, voff_reg, soff, piped=False, dst=11, sleep=2):
    E(f"s_mov_b32 s{S_SPIN}, 0x40000")
    if piped:
        regs = (11, 9, 15)
        for r in regs[:2]:
            E(f"buffer_load_dword v{r}, v{voff_reg}, {sr(WS)}, {soff} offen sc1")
            E("s_sleep 2")
        E.label(lab)
        for i in range(3):
            E(f"buffer_load_dword v{regs[(i + 2) % 3]}, v{voff_reg}, {sr(WS)}, {soff} offen sc1")
            E("s_waitcnt vmcnt(2)")
            E(f"v_cmp_ne_u32 vcc, s{S_TAG}, v{regs[i]}")
            E("s_nop 4")
            E("s_cmp_eq_u64 vcc, 0")
            E(f"s_cbranch_scc1 {lab}_ok")
            E("s_sleep 1")
    else:
        E.label(lab)
        E(f"buffer_load_dword v{dst}, v{voff_reg}, {sr(WS)}, {soff} offen sc1")
        E("s_waitcnt vmcnt(0)")
        E(f"v_cmp_ne_u32 vcc, s{S_TAG}, v{dst}")
        E("s_nop 4")
        E("s_cmp_eq_u64 vcc, 0")
        E(f"s_cbranch_scc1 {lab}_ok")
        E(f"s_sleep {sleep}")
    E(f"s_sub_u32 s{S_SPIN}, s{S_SPIN}, 1")
    E(f"s_cmp_lg_u32 s{S_SPIN}, 0")
    E(f"s_cbranch_scc1 {lab}")
    E.label(lab + "_ok")


def get_tag(lab, sleep=4):
    E(f"s_mov_b32 s{S_SPIN}, 0x40000")
    E("v_mov_b32 v10, 0")
    E.label(lab)
    E(f"buffer_load_dword v11, v10, {sr(DBG)}, 0 offen sc1")
    E("s_waitcnt vmcnt(0)")
    E(f"v_readfirstlane_b32 s{S_TAG}, v11")
    E("s_nop 3")
    E(f"s_cmp_lg_u32 s{S_TAG}, 0")
    E(f"s_cbranch_scc1 {lab}_ok")
    E(f"s_sleep {sleep}")
    E(f"s_sub_u32 s{S_SPIN}, s{S_SPIN}, 1")
    E(f"s_cmp_lg_u32 s{S_SPIN}, 0")
    E(f"s_cbranch_scc1 {lab}")
    E.label(lab + "_ok")


def put_flag(soff_sgpr):
    E("s_mov_b64 exec, 1")
    E("v_mov_b32 v10, 0")
    E(f"v_mov_b32 v11, s{S_TAG}")
    E(f"buffer_store_dword v11, v10, {sr(WS)}, s{soff_sgpr} offen sc0 sc1")
    E("s_mov_b64 exec, -1")


def wg_store(lab, cond, val_lines, off):
    cond()
    E(f"s_cbranch_scc1 {lab}")
    val_lines()
    E("s_mov_b64 exec, 1")
    E(f"v_mov_b32 v10, {off}")
    E(f"v_mov_b32 v11, s{S_T0}")
    E(f"buffer_store_dword v11, v10, {sr(DBG)}, 0 offen sc0 sc1")
    E("s_mov_b64 exec, -1")
    E.label(lab)


def hint(lab="A_nohint", word=0, early=None):
    E(f"s_lshr_b32 s{S_T0}, s2, 3")
    E(f"s_or_b32 s{S_T0}, s{S_T0}, s{S_WAVE}")
    E(f"s_cbranch_scc1 {lab}")
    if (O.hint_step if early is None else early) < 16:
        E(f"v_readfirstlane_b32 s{S_TAG}, v14")
        E("s_nop 3")
        E(f"s_cmp_lg_u32 s{S_TAG}, 0")
        E(f"s_cbranch_scc1 {lab}_t_ok")
        get_tag(lab + "_t")
    E(f"s_lshl_b32 s{S_T1}, s2, 7")
    E(f"s_add_u32 s{S_T1}, s{S_T1}, {WS_FS + 1024 * word:#x}")
    put_flag(S_T1)
    E.label(lab)


def wait_start(lab, word=0, tag=True):
    if tag:
        get_tag(lab + "_t", 16)
    E("v_mov_b32 v10, 0")
    E(f"s_and_b32 s{S_T0}, s2, 7")
    if O.hswap:
        E(f"s_xor_b32 s{S_T0}, s{S_T0}, {O.hswap}")
    E(f"s_lshl_b32 s{S_T0}, s{S_T0}, 7")
    E(f"s_add_u32 s{S_T0}, s{S_T0}, {WS_FS + 1024 * word:#x}")
    poll(lab, 10, f"s{S_T0}", False, 11, O.sl_s)


def dpp_max(regs):
    for ctl in ("row_shr:1", "row_shr:2", "row_shr:4", "row_shr:8",
                "row_bcast:15 row_mask:0xa", "row_bcast:31 row_mask:0xc"):
        E("s_nop 1")
        for r in regs:
            m = "" if "row_mask" in ctl else " row_mask:0xf"
            E(f"v_max_f32_dpp v{r}, v{r}, v{r} {ctl}{m} bank_mask:0xf")


A_XS, A_WS0, A_WSZ = 8192, 24576, 12288


def a_dma_x(u, vm):
    E(f"s_add_u32 m0, s{S_W1K}, {(u % 3) * A_XS}")
    E(f"s_add_u32 s{S_T0}, s{S_XB}, s{S_XK}")
    nt = "nt " if ((O.nt0 & 1) and u < 2) or (O.nt0 & 4) else ""
    E(f"buffer_load_dwordx4 v1, {sr(X)}, s{S_T0} offen {nt}lds")
    E(f"s_add_u32 s{S_XK}, s{S_XK}, 128")
    E(f"s_and_b32 s{S_XK}, s{S_XK}, 1023")
    vm.issue(("x", u))


def a_dma_w(s, vm, vwave):
    base = A_WS0 + (s % 4) * A_WSZ
    nt = "nt " if ((O.nt0 & 1) and s < 2) or (O.nt0 & 4) else ""
    E(f"s_add_u32 m0, s{S_W1K}, {base}")
    E(f"s_add_u32 s{S_T0}, s{S_WB}, s{S_WK}")
    E(f"buffer_load_dwordx4 v2, {sr(W1)}, s{S_T0} offen {nt}lds")
    vm.issue(("w", s))
    if vwave == "both":
        E(f"s_cbranch_vccz A_pw{s}")
        E(f"s_add_u32 m0, s{S_W1K}, {base + 3072}")
        E("s_nop 0")
        E(f"buffer_load_dwordx4 v2, {sr(W1)}, s{S_T0} offen offset:1024 {nt}lds")
        E.label(f"A_pw{s}")
    elif vwave:
        E(f"s_add_u32 m0, s{S_W1K}, {base + 3072}")
        E("s_nop 0")
        E(f"buffer_load_dwordx4 v2, {sr(W1)}, s{S_T0} offen offset:1024 {nt}lds")
        vm.issue(("w", s))
    E(f"s_add_u32 s{S_WK}, s{S_WK}, 98304")
    E(f"s_cmp_eq_u32 s{S_WK}, {16 * 98304}")
    E(f"s_cselect_b32 s{S_WK}, 0, s{S_WK}")


def a_prologue():
    E(f"s_load_dwordx2 s[{X}:{X+1}], s[0:1], 0")
    E(f"s_load_dwordx2 s[{W1}:{W1+1}], s[0:1], 8")
    E(f"s_load_dwordx2 s[{WS}:{WS+1}], s[0:1], 80")
    E(f"s_load_dwordx2 s[{DBG}:{DBG+1}], s[0:1], 72")
    E("v_lshrrev_b32 v8, 6, v0")
    E("v_lshrrev_b32 v9, 3, v0")
    E("v_lshrrev_b32 v10, 4, v0")
    E(f"v_readfirstlane_b32 s{S_WAVE}, v8")
    E("v_xor_b32 v11, v10, v0")
    E("v_and_b32 v11, 7, v11")
    E("v_lshlrev_b32 v11, 4, v11")
    E("v_lshl_add_u32 v1, v9, 10, v11")
    srd(X, 0x200000)
    srd(W1, 0x180000)
    E(f"s_lshr_b32 s{S_T0}, s2, 3")
    E(f"s_and_b32 s{S_T1}, s{S_T0}, 7")
    E(f"s_lshr_b32 s{S_T0}, s{S_T0}, 3")
    E(f"s_and_b32 s{S_A}, s2, 6")
    E(f"s_lshl_b32 s{S_A}, s{S_A}, 2")
    E(f"s_add_u32 s{S_A}, s{S_A}, s{S_T1}")
    if O.pflip:
        E(f"s_andn2_b32 s{S_B}, 1, s2")
    else:
        E(f"s_and_b32 s{S_B}, s2, 1")
    E(f"s_lshl_b32 s{S_B}, s{S_B}, 2")
    E(f"s_add_u32 s{S_B}, s{S_B}, s{S_T0}")
    E(f"s_lshl_b32 s{S_T0}, s{S_T0}, 1")
    E(f"s_add_u32 s{S_T0}, s{S_T0}, s{S_T1}")
    E(f"s_and_b32 s{S_T0}, s{S_T0}, 7")
    E(f"s_lshl_b32 s{S_XK}, s{S_T0}, 7")
    E(f"s_mul_i32 s{S_WK}, s{S_T0}, {2 * 98304}")
    E(f"s_lshl_b32 s{S_XB}, s{S_A}, 16")
    E(f"s_lshl_b32 s{S_WB}, s{S_B}, 7")
    E(f"s_lshl_b32 s{S_W1K}, s{S_WAVE}, 10")
    E("v_and_b32 v9, 31, v9")
    E("v_mul_u32_u24 v9, 0xc00, v9")
    E("v_and_b32 v10, 1, v10")
    E("v_lshlrev_b32 v10, 2, v10")
    E("v_xor_b32 v10, v10, v0")
    E("v_and_b32 v10, 7, v10")
    E("v_lshl_add_u32 v9, v10, 4, v9")
    E("v_lshrrev_b32 v10, 8, v0")
    E("v_lshl_add_u32 v2, v10, 10, v9")
    E("v_cmp_eq_u32 vcc, 1, v10")
    E(f"s_setprio {O.prio_a_qkv}")
    E("s_waitcnt lgkmcnt(0)")
    stamp(8)
    vm = VM()
    a_dma_x(0, vm)
    a_dma_w(0, vm, "both")
    a_dma_w(1, vm, "both")
    a_dma_x(1, vm)
    a_dma_w(2, vm, "both")
    a_dma_w(3, vm, "both")
    a_dma_x(2, vm)
    stamp(9)
    srd(WS, WS_SIZE)
    srd(DBG, 256)


def a_qkv(vwave):
    p = "AV" if vwave else "AQ"
    if O.touch:
        E(f"s_load_dwordx2 s[{WU}:{WU+1}], s[0:1], {40 if vwave else 32}")
        E(f"s_load_dwordx2 s[{WD}:{WD+1}], s[0:1], 48")
        E(f"s_load_dwordx2 s[{WO}:{WO+1}], s[0:1], 16")
        srd(WU, 512 * 3584); srd(WD, 1792 * 1024); srd(WO, 512 * 1024)
    vm = VM()
    n = 2 if vwave else 1
    for t in (("x", 0), ("w", 0), ("w", 1), ("x", 1), ("w", 2), ("w", 3), ("x", 2)):
        vm.issue(t, n if t[0] == "w" else 1)
    E("v_and_b32 v8, 31, v0")
    if vwave:
        E("v_and_b32 v9, 0x13, v8")
        E("v_lshlrev_b32 v10, 1, v8")
        E("v_and_b32 v10, 8, v10")
        E("v_or_b32 v9, v9, v10")
        E("v_lshrrev_b32 v10, 1, v8")
        E("v_and_b32 v10, 4, v10")
        E("v_or_b32 v8, v9, v10")
    E("v_lshrrev_b32 v9, 1, v8")
    E("v_and_b32 v9, 7, v9")
    E("v_bfe_u32 v10, v0, 5, 1")
    E("v_xor_b32 v9, v9, v10")
    E("v_lshlrev_b32 v9, 4, v9")
    E("v_lshl_add_u32 v9, v8, 7, v9")
    E("v_bfe_u32 v8, v0, 6, 1")
    E("v_lshl_add_u32 v3, v8, 12, v9")
    for ks in (1, 2, 3):
        E(f"v_xor_b32 v{3+ks}, {32*ks}, v3")
    E("v_bfe_u32 v8, v0, 2, 2")
    E("v_lshl_add_u32 v9, v10, 3, v8")
    E("v_lshlrev_b32 v9, 7, v9")
    E("v_bfe_u32 v10, v0, 7, 1")
    E("v_lshrrev_b32 v8, 1, v8")
    E("v_xor_b32 v8, v8, v10")
    E("v_lshl_add_u32 v9, v8, 6, v9")
    E("v_bfe_u32 v8, v0, 4, 1")
    E("v_lshl_add_u32 v9, v8, 5, v9")
    E("v_and_b32 v8, 3, v0")
    E("v_lshl_add_u32 v9, v8, 3, v9")
    E(f"v_add_u32 v7, {A_WS0}, v9")
    segs = (2,) if vwave else (0, 1)
    if O.touch_gu:
        E(f"s_lshr_b32 s{S_T0}, s2, 3")
        E(f"s_lshl_b32 s{S_T0}, s{S_T0}, 2")
        E(f"s_and_b32 s{S_T1}, s{S_WAVE}, 3")
        E(f"s_add_u32 s{S_T0}, s{S_T0}, s{S_T1}")
        E(f"s_mul_i32 s{S_T0}, s{S_T0}, {2 * 3584}")
        E(f"s_bfe_u32 s{S_T1}, s2, 0x10002")
        E(f"s_mul_i32 s{S_T1}, s{S_T1}, 1792")
        E(f"s_add_u32 s{S_T0}, s{S_T0}, s{S_T1}")
        E("v_bfe_u32 v8, v0, 4, 1")
        E("v_mul_u32_u24 v8, 3584, v8")
        E("v_and_b32 v9, 15, v0")
        E("v_lshl_add_u32 v8, v9, 7, v8")
        E(f"v_add_u32 v98, s{S_T0}, v8")

    def reads(s):
        b = 16 + 24 * (s & 1)
        L = []
        for kk in (0, 1):
            L.append(f"ds_read_b128 {vr(b+4*kk,4)}, v{3 + 2*(s&1) + kk} offset:{((s//2) % 3) * A_XS}")
            for si, sg in enumerate(segs):
                for q in (0, 1):
                    off = (s % 4) * A_WSZ + sg * 4096 + kk * 2048 + q * 512
                    L.append(f"ds_read_b64_tr_b16 {vr(b+8+8*si+4*kk+2*q,2)}, v7 offset:{off}")
        return L

    def mfmas(s):
        b = 16 + 24 * (s & 1)
        L = []
        for kk in (0, 1):
            for si, sg in enumerate(segs):
                acc = vr(64 + 16 * si, 16)
                c = "0" if (s == 0 and kk == 0) else acc
                xf, wf = vr(b + 4*kk, 4), vr(b + 8 + 8*si + 4*kk, 4)
                if vwave:
                    L.append(f"v_mfma_f32_32x32x16_bf16 {acc}, {xf}, {wf}, {c}")
                else:
                    L.append(f"v_mfma_f32_32x32x16_bf16 {acc}, {wf}, {xf}, {c}")
        return L

    if not vwave:
        def tagval():
            E(f"s_memrealtime s[{S_T0}:{S_T1}]")
            E("s_waitcnt lgkmcnt(0)")
            E(f"s_or_b32 s{S_T0}, s{S_T0}, 1")
        wg_store("A_notag", lambda: E(f"s_or_b32 s{S_T0}, s2, s{S_WAVE}"), tagval, "0")
    E(f"s_waitcnt vmcnt({vm.need(('x',0),('w',0))}) lgkmcnt(0)")
    E("s_barrier")
    stamp(1)
    for x in reads(0):
        E(x)
    for s in range(16):
        M = mfmas(s)
        if s < 15:
            E(f"s_waitcnt vmcnt({vm.need(('x',(s+1)//2),('w',s+1))}) lgkmcnt(0)")
            E("s_barrier")
            E(M.pop(0))
            R = reads(s + 1)
            per = 3
            while R or M:
                for x in R[:per]:
                    E(x)
                R = R[per:]
                if M:
                    E(M.pop(0))
            if s + 4 <= 15:
                a_dma_w(s + 4, vm, vwave)
            if s % 2 == 1 and (s + 1) // 2 + 2 <= 7:
                a_dma_x((s + 1) // 2 + 2, vm)
            if s == 1 and not vwave:
                E("v_mov_b32 v10, 0")
                E(f"buffer_load_dword v14, v10, {sr(DBG)}, 0 offen sc1")
                vm.issue("tag")
            if s == 12 and O.touch_gu:
                E("s_mov_b32 exec_hi, 0")
                E(f"buffer_load_dword v15, v98, {sr(WU)}, 0 offen")
                E("s_mov_b32 exec_hi, -1")
                vm.issue("t")
        else:
            E("s_waitcnt lgkmcnt(0)")
            for x in M:
                E(x)
        if s == O.hint_step and not vwave:
            hint()
        if s == O.hint1 and not vwave:
            hint("A_nohint1", 1, O.hint1)
        if s == O.hint_step and O.a_exit:
            E("s_endpgm")
    stamp(2)
    E(f"s_and_b32 s{S_T0}, s{S_WAVE}, 1")
    E(f"s_lshl_b32 s{S_T1}, s{S_A}, 1")
    E(f"s_add_u32 s{S_T0}, s{S_T0}, s{S_T1}")
    E(f"s_bfe_u32 s{S_T1}, s{S_WAVE}, 0x10001")
    E(f"s_lshl_b32 s{S_T2}, s{S_B}, 1")
    E(f"s_add_u32 s{S_T1}, s{S_T1}, s{S_T2}")
    E("v_and_b32 v8, 63, v0")
    if vwave:
        E("v_and_b32 v9, 15, v8")
        E("v_lshlrev_b32 v9, 4, v9")
        E("v_bfe_u32 v10, v8, 5, 1")
        E("v_lshl_add_u32 v9, v10, 8, v9")
        E("v_bfe_u32 v10, v8, 4, 1")
        E("v_lshl_add_u32 v9, v10, 17, v9")
        E(f"s_lshl_b32 s{S_T1}, s{S_T1}, 18")
        E(f"s_lshl_b32 s{S_T0}, s{S_T0}, 11")
        E(f"s_add_u32 s{S_T0}, s{S_T0}, s{S_T1}")
        E("s_nop 7")
        for i in range(8):
            E(f"v_cvt_pk_bf16_f32 v{16+i}, v{64+2*i}, v{65+2*i}")
        E(f"buffer_store_dwordx4 v[16:19], v9, {sr(WS)}, s{S_T0} offen offset:1024 sc0 sc1")
        E(f"buffer_store_dwordx4 v[20:23], v9, {sr(WS)}, s{S_T0} offen offset:1536 sc0 sc1")
    else:
        E("v_lshlrev_b32 v9, 4, v8")
        E(f"s_lshl_b32 s{S_T2}, s{S_T1}, 18")
        E(f"s_lshl_b32 s{S_T3}, s{S_T0}, 11")
        E(f"s_add_u32 s{S_T2}, s{S_T2}, s{S_T3}")
        E(f"s_lshr_b32 s{S_T3}, s{S_T2}, 1")
        E(f"s_add_u32 s{S_T3}, s{S_T3}, {WS_Q:#x}")
        E(f"s_add_u32 s{S_C}, s{S_T2}, 0x20000")
        E(f"s_add_u32 s{S_D}, s{S_T3}, 0x10000")
        E(f"s_mov_b32 s{S_CNT}, {QSCALE:#x}")
        E("s_nop 7")
        for i in range(8):
            E(f"v_cvt_pk_bf16_f32 v{16+i}, v{80+2*i}, v{81+2*i}")
        E(f"buffer_store_dwordx4 v[16:19], v9, {sr(WS)}, s{S_T2} offen sc0 sc1")
        E(f"buffer_store_dwordx4 v[20:23], v9, {sr(WS)}, s{S_C} offen sc0 sc1")
        for i in range(16):
            E(f"v_mul_f32 v{64+i}, s{S_CNT}, v{64+i}")
        for i in range(8):
            E(f"v_cvt_pk_bf16_f32 v{24+i}, v{64+2*i}, v{65+2*i}")
        E(f"buffer_store_dwordx4 v[24:27], v9, {sr(WS)}, s{S_T3} offen sc0 sc1")
        E(f"buffer_store_dwordx4 v[28:31], v9, {sr(WS)}, s{S_D} offen sc0 sc1")
        for g in range(4):
            E(f"v_mul_f32 v{32+g}, v{64+8*g}, v{64+8*g}")
        for i in range(1, 8):
            for g in range(4):
                E(f"v_fmac_f32 v{32+g}, v{64+8*g+i}, v{64+8*g+i}")
        E("s_nop 1")
        E("v_permlane32_swap_b32 v32, v33")
        E("v_permlane32_swap_b32 v34, v35")
        E("s_nop 1")
        E("v_add_f32 v32, v32, v33")
        E("v_add_f32 v33, v34, v35")
        dpp_max((32, 33))
        E(f"s_lshl_b32 s{S_T0}, s{S_B}, 11")
        E(f"s_lshl_b32 s{S_T1}, s{S_A}, 6")
        E(f"s_add_u32 s{S_T0}, s{S_T0}, s{S_T1}")
        E(f"s_lshl_b32 s{S_T1}, s{S_WAVE}, 3")
        E(f"s_add_u32 s{S_T0}, s{S_T0}, s{S_T1}")
        E(f"s_add_u32 s{S_T0}, s{S_T0}, {WS_FKV + 16:#x}")
        E("v_mov_b32 v10, 0")
        E("s_brev_b64 exec, 1")
        E(f"buffer_store_dwordx2 v[32:33], v10, {sr(WS)}, s{S_T0} offen sc0 sc1")
        E("s_mov_b64 exec, -1")


S0, S1, OA, OB, QX, QY, K0, K1, V0, V1 = 16, 32, 48, 64, 80, 84, 88, 92, 96, 104
IDX, VK, VV, VD, VKB, VVB, VT, VL = 112, 113, 114, 115, 116, 117, 118, 119
KVS = 16384


def a_kv_dma():
    E(f"s_add_u32 m0, s{S_XK}, s{S_W1K}")
    E(f"s_add_u32 s{S_T0}, s{S_WB}, s{S_WK}")
    E(f"buffer_load_dwordx4 v{VD}, {sr(WS)}, s{S_T0} offen sc1 lds")
    E(f"buffer_load_dwordx4 v{VD}, {sr(WS)}, s{S_T0} offen offset:1024 sc1 lds")
    E(f"s_add_u32 s{S_WK}, s{S_WK}, {KVS}")
    E(f"s_and_b32 s{S_WK}, s{S_WK}, {8*KVS-1:#x}")
    E(f"s_add_u32 s{S_XK}, s{S_XK}, {KVS}")
    E(f"s_cmp_eq_u32 s{S_XK}, {5*KVS}")
    E(f"s_cselect_b32 s{S_XK}, 0, s{S_XK}")


def a_attention():
    E(f"s_bfe_u32 s{S_C}, s2, 0x20001")
    if O.pflip:
        E(f"s_and_b32 s{S_T0}, s2, 1")
    else:
        E(f"s_andn2_b32 s{S_T0}, 1, s2")
    E(f"s_lshl_b32 s{S_T0}, s{S_T0}, 2")
    E(f"s_add_u32 s{S_C}, s{S_C}, s{S_T0}")
    E(f"s_lshr_b32 s{S_T0}, s2, 6")
    if O.amap:
        E(f"s_and_b32 s{S_C}, s2, 6")
        E(f"s_bfe_u32 s{S_T1}, s2, 0x10005")
        E(f"s_add_u32 s{S_C}, s{S_C}, s{S_T1}")
        E(f"s_xor_b32 s{S_C}, s{S_C}, 4")
    E(f"s_lshl_b32 s{S_D}, s{S_C}, 2")
    E(f"s_add_u32 s{S_D}, s{S_D}, s{S_T0}")
    E(f"s_lshl_b32 s{S_T0}, s{S_B}, 11")
    E(f"s_lshl_b32 s{S_T1}, s{S_A}, 6")
    E(f"s_add_u32 s{S_T0}, s{S_T0}, s{S_T1}")
    E(f"s_add_u32 s{S_XB}, s{S_T0}, {WS_FKV:#x}")
    if O.amap:
        E(f"s_bfe_u32 s{S_A}, s2, 0x20003")
        E(f"s_and_b32 s{S_T0}, s2, 1")
        E(f"s_lshl_b32 s{S_T0}, s{S_T0}, 2")
        E(f"s_add_u32 s{S_A}, s{S_A}, s{S_T0}")
    else:
        E(f"s_bfe_u32 s{S_A}, s2, 0x30003")
    E("v_and_b32 v8, 63, v0")
    E(f"v_lshlrev_b32 v{VL}, 4, v8")
    E(f"s_lshl_b32 s{S_W1K}, s{S_WAVE}, 11")
    E(f"v_add_u32 v{VD}, s{S_W1K}, v{VL}")
    E(f"s_lshl_b32 s{S_WB}, s{S_D}, 17")
    if O.kv_rot:
        E(f"s_lshl_b32 s{S_WK}, s{S_A}, 14")
    else:
        E(f"s_mov_b32 s{S_WK}, 0")
    E(f"s_mov_b32 s{S_XK}, 0")
    E(f"s_lshl_b32 s{S_T1}, s{S_A}, 3")
    E(f"s_and_b32 s{S_T2}, s{S_WAVE}, 3")
    E(f"s_lshl_b32 s{S_T2}, s{S_T2}, 1")
    E(f"s_add_u32 s{S_B}, s{S_T1}, s{S_T2}")
    E(f"s_lshl_b32 s{S_T1}, s{S_B}, 10")
    E(f"s_lshl_b32 s{S_T2}, s{S_D}, 16")
    E(f"s_add_u32 s{S_T1}, s{S_T1}, s{S_T2}")
    E(f"s_add_u32 s4, s{S_T1}, {WS_Q:#x}")
    E(f"s_lshr_b32 s{S_T3}, s{S_WAVE}, 2")
    E(f"s_add_u32 s{S_T3}, s{S_B}, s{S_T3}")
    E(f"s_mul_i32 s5, s{S_T3}, 144")
    E(f"s_add_u32 s5, s5, s{S_D}")
    E("s_lshl_b32 s5, s5, 10")
    E(f"s_add_u32 s5, s5, {WS_HO + 112*1024:#x}")
    E(f"s_lshl_b32 s6, s{S_T3}, 11")
    E(f"s_lshl_b32 s{S_T2}, s{S_D}, 6")
    E(f"s_add_u32 s6, s6, s{S_T2}")
    E(f"s_add_u32 s6, s6, {WS_FO:#x}")
    E(f"s_add_u32 s7, s6, {WS_FO2 - WS_FO:#x}")
    E(f"s_lshr_b32 s{S_T0}, s{S_WAVE}, 2")
    E(f"s_lshl_b32 s{S_T0}, s{S_T0}, 11")
    E(f"v_add_u32 v{VKB}, s{S_T0}, v{VL}")
    E("v_and_b32 v9, 15, v8")
    E("v_lshlrev_b32 v9, 4, v9")
    E("v_bfe_u32 v10, v8, 5, 1")
    E("v_lshl_add_u32 v9, v10, 8, v9")
    E(f"s_add_u32 s{S_T0}, s{S_T0}, 1024")
    E(f"v_add_u32 v{VVB}, s{S_T0}, v9")
    E(f"v_mov_b32 v{VK}, v{VKB}")
    E(f"v_mov_b32 v{VV}, v{VVB}")
    E(f"v_mov_b32 v{IDX}, 0xdddddddd")
    E("v_and_b32 v9, 27, v8")
    E("v_cmp_eq_u32 vcc, 16, v9")
    E("v_mov_b32 v9, 0x3f803f80")
    E("s_nop 0")
    E(f"v_cndmask_b32 v{V0}, 0, v9, vcc")
    for i in range(1, 16):
        E(f"v_mov_b32 v{V0+i}, v{V0}")
    if O.touch:
        E(f"s_lshr_b32 s{S_T0}, s2, 3")
        E(f"s_lshl_b32 s{S_T0}, s{S_T0}, 3")
        E(f"s_add_u32 s{S_T0}, s{S_T0}, s{S_WAVE}")
        E(f"s_lshl_b32 s{S_T0}, s{S_T0}, 11")
        E(f"v_lshlrev_b32 v{VT}, 7, v8")
        E(f"v_add_u32 v{VT}, s{S_T0}, v{VT}")
    E(f"s_mov_b32 s{S_VM}, 0xffff")
    E(f"s_mov_b32 s{S_VM+1}, 0xffff")
    E(f"s_mov_b32 s{S_SLOT}, 0")
    E(f"s_mov_b32 s{S_CNT}, 0")
    for i in range(32):
        E(f"v_mov_b32 v{OA+i}, 0")
    for i in range(8, 16):
        E(f"v_mov_b32 v{S1+i}, 0")
    E("s_waitcnt vmcnt(0)")
    E("s_barrier")
    stamp(3)
    E(f"s_cmp_lg_u32 s{S_WAVE}, 0")
    E("s_cbranch_scc1 A_wait1")
    E(f"v_readfirstlane_b32 s{S_TAG}, v14")
    E("s_nop 3")
    E(f"s_cmp_lg_u32 s{S_TAG}, 0")
    E("s_cbranch_scc1 A_tag_ok")
    get_tag("A_tag")
    put_flag(S_XB)
    E("v_and_b32 v10, 31, v0")
    E("v_lshlrev_b32 v10, 6, v10")
    E(f"s_bfe_u32 s{S_T1}, s{S_D}, 0x10001")
    E(f"s_lshl_b32 s{S_T1}, s{S_T1}, 4")
    E(f"s_add_u32 s{S_T1}, s{S_T1}, 16")
    E("v_bfe_u32 v11, v0, 5, 1")
    E(f"v_mul_u32_u24 v11, s{S_T1}, v11")
    E("v_add_u32 v10, v10, v11")
    E(f"s_lshl_b32 s{S_T0}, s{S_C}, 11")
    E(f"s_add_u32 s{S_T0}, s{S_T0}, {WS_FKV:#x}")
    E(f"s_mov_b32 s{S_SPIN}, 0x40000")
    E.label("A_pollkv")
    E(f"buffer_load_dwordx4 v[4:7], v10, {sr(WS)}, s{S_T0} offen sc1")
    E("s_waitcnt vmcnt(0)")
    E(f"v_cmp_ne_u32 vcc, s{S_TAG}, v4")
    E("s_nop 4")
    E("s_cmp_eq_u32 vcc_lo, 0")
    E("s_cbranch_scc1 A_pollkv_ok")
    E(f"s_sleep {O.sl_kv}")
    E(f"s_sub_u32 s{S_SPIN}, s{S_SPIN}, 1")
    E(f"s_cmp_lg_u32 s{S_SPIN}, 0")
    E("s_cbranch_scc1 A_pollkv")
    E.label("A_pollkv_ok")
    E("s_barrier")
    E("s_branch A_go")
    E.label("A_wait1")
    E("s_barrier")
    E.label("A_go")
    stamp(4)
    a_kv_dma()
    E(f"buffer_load_dwordx4 {vr(QX,4)}, v{VL}, {sr(WS)}, s4 offen sc1")
    E(f"buffer_load_dwordx4 {vr(QY,4)}, v{VL}, {sr(WS)}, s4 offen offset:1024 sc1")
    for c in range(1, O.kv_first):
        a_kv_dma()
    E(f"s_cmp_lg_u32 s{S_WAVE}, 0")
    E("s_cbranch_scc1 A_nored")
    E("v_max_u32 v4, v4, v6")
    E("v_max_u32 v5, v5, v7")
    for ctl in ("row_shr:1", "row_shr:2", "row_shr:4", "row_shr:8", "row_bcast:15 row_mask:0xa"):
        E("s_nop 1")
        for r in (4, 5):
            m = "" if "row_mask" in ctl else " row_mask:0xf"
            E(f"v_max_u32_dpp v{r}, v{r}, v{r} {ctl}{m} bank_mask:0xf")
    E("s_nop 0")
    E("v_mul_f32 v4, v4, v5")
    E(f"v_mov_b32 v5, s{S_TAG}")
    E(f"v_mov_b32 v6, {5 * KVS - 8}")
    E("s_brev_b64 exec, 1")
    E("ds_write_b64 v6, v[4:5]")
    E("s_mov_b64 exec, -1")
    E("s_waitcnt lgkmcnt(0)")
    E.label("A_nored")
    E(f"s_setprio {O.prio_a_att}")
    E(f"s_waitcnt vmcnt({2*O.kv_first - (4 if O.pair and not O.kv_wait1 else 2)})")
    E("s_barrier")
    stamp(5)

    def vreads(dst, off):
        E(f"s_mov_b64 exec, s[{S_VM}:{S_VM+1}]")
        E(f"ds_read_b128 {vr(dst,4)}, v{VV} offset:{off}")
        E(f"ds_read_b128 {vr(dst+4,4)}, v{VV} offset:{off+512}")
        E("s_mov_b64 exec, -1")

    E(f"ds_read_b128 {vr(K0,4)}, v{VK}")
    vreads(V0, 0)
    E(f"v_mov_b32 v6, {5 * KVS - 8}")
    E("ds_read_b64 v[4:5], v6")
    if O.early_o:
        for i in range(4):
            E(f"v_mov_b32 v{120+i}, -1")
        E(f"buffer_store_dwordx4 v[120:123], v{VL}, {sr(WS)}, s5 offen sc0 sc1")
    E("s_waitcnt lgkmcnt(0)")
    E(f"v_readfirstlane_b32 s{S_T0}, v4")
    E(f"v_readfirstlane_b32 s{S_TAG}, v5")
    E(f"v_mfma_f32_32x32x16_bf16 {vr(S0,16)}, {vr(K0,4)}, {vr(QX,4)}, 0")
    E("s_nop 3")
    E(f"s_cmp_gt_u32 s{S_T0}, {THR2:#x}")
    if O.force_slow:
        E("s_branch A_slow")
    E("s_cbranch_scc1 A_slow")
    E("s_nop 7")

    def chunk_turn():
        E("s_waitcnt vmcnt(0)")
        E("s_barrier")
        E(f"s_cmp_gt_u32 s{S_CNT}, {7 - O.kv_first}")
        lab = f"A_nf{len(E.L)}"
        E(f"s_cbranch_scc1 {lab}")
        a_kv_dma()
        E.label(lab)
        if O.touch:
            E(f"s_sub_u32 s{S_T0}, s{S_CNT}, {O.wd_t0}")
            E(f"s_lshl_b32 s{S_T0}, s{S_T0}, 19")
            E("s_mov_b64 exec, 0xffff")
            E(f"s_cmp_gt_u32 s{S_T0}, {3 << 19}")
            E(f"s_cbranch_scc1 {lab}t")
            E(f"buffer_load_dword v15, v{VT}, {sr(WD)}, s{S_T0} offen")
            E.label(lab + "t")
            E(f"s_cmp_lg_u32 s{S_CNT}, {O.wo_t}")
            E(f"s_cbranch_scc1 {lab}u")
            E(f"buffer_load_dword v15, v{VT}, {sr(WO)}, 0 offen")
            E.label(lab + "u")
            E("s_mov_b64 exec, -1")
        E(f"s_add_u32 s{S_SLOT}, s{S_SLOT}, {KVS}")
        E(f"s_cmp_eq_u32 s{S_SLOT}, {5*KVS}")
        E(f"s_cselect_b32 s{S_SLOT}, 0, s{S_SLOT}")
        E(f"v_add_u32 v{VK}, s{S_SLOT}, v{VKB}")
        E(f"v_add_u32 v{VV}, s{S_SLOT}, v{VVB}")

    NT = 16 if O.pair else 8
    RF = {0: (3, 5, 7), 1: (3, 7, 11), 2: (5, 9, 13)}[O.rf_late]

    def next_slot():
        E(f"s_add_u32 s{S_SLOT}, s{S_SLOT}, {KVS}")
        E(f"s_cmp_eq_u32 s{S_SLOT}, {5*KVS}")
        E(f"s_cselect_b32 s{S_SLOT}, 0, s{S_SLOT}")
        E(f"v_add_u32 v{VK}, s{S_SLOT}, v{VKB}")
        E(f"v_add_u32 v{VV}, s{S_SLOT}, v{VVB}")

    def refill(lab, lo, hi):
        if lo == hi:
            E(f"s_cmp_lg_u32 s{S_CNT}, {lo}")
        else:
            E(f"s_cmp_gt_u32 s{S_CNT}, {hi}")
        E(f"s_cbranch_scc1 {lab}")
        a_kv_dma()
        E.label(lab)

    if O.bar_diag:
        E("s_mov_b32 s86, 0"); E("s_mov_b32 s88, 0")
    E.raw(".p2align 6")
    E.label("A_loop")
    ga, gb, gc = O.ga, O.ga + O.gb, O.ga + O.gb + O.gc
    for t in range(NT):
        blk, kt = t & 1, (t >> 1) & 3
        Sc, Sn = (S0, S1) if blk == 0 else (S1, S0)
        Oc, On = (OA, OB) if blk == 0 else (OB, OA)
        Vk, Vo = (V0, V1) if kt & 1 == 0 else (V1, V0)
        Kk, Ko = (K0, K1) if kt & 1 == 0 else (K1, K0)
        if not O.pair:
            if t == 6:
                chunk_turn()
        elif t == 6:
            if O.kv_wait1:
                E(f"s_cmp_lg_u32 s{S_CNT}, 0")
                E("s_cbranch_scc1 A_nb")
                E(f"s_waitcnt vmcnt({2 * len([x for x in RF[:5 - O.kv_first] if x < 6])})")
                E("s_barrier")
                E.label("A_nb")
            next_slot()
        elif t == 14:
            if O.bar_diag:
                E("s_memtime s[68:69]"); E("s_waitcnt lgkmcnt(0)"); E("s_sub_u32 s86, s86, s68")
            if O.kv_cnt:
                E(f"s_cmp_eq_u32 s{S_CNT}, 0")
                E("s_cbranch_scc1 A_w2")
                E("s_waitcnt vmcnt(0)")
                E.label("A_w2")
                E("s_waitcnt vmcnt(2)")
            else:
                E("s_waitcnt vmcnt(0)")
            if O.bar_diag:
                E("s_memtime s[68:69]"); E("s_waitcnt lgkmcnt(0)"); E("s_add_u32 s86, s86, s68"); E("s_sub_u32 s88, s88, s68")
            E("s_barrier")
            if O.bar_diag:
                E("s_memtime s[68:69]"); E("s_waitcnt lgkmcnt(0)"); E("s_add_u32 s88, s88, s68")
            next_slot()
        ex = lambda a, b: [E(f"v_exp_f32 v{Sc+i}, v{Sc+i}") for i in range(a, b)]
        ph = ((t + 2) % NT) * 8 // NT
        TAB = {5: [3]*6 + [2]*5 + [1]*3 + [0]*2, 6: [3]*2 + [2]*4 + [1]*5 + [0]*5, 7: [3]*5 + [2]*5 + [1]*4 + [0]*2}
        prf = lambda ph: {0: O.prio_a_att, 4: 3 - ph // 2, 2: O.prio_a_att + (1 if ph < 4 else 0), 3: O.prio_a_att + [2, 2, 2, 1, 1, 1, 0, 0][ph]}[O.bal]
        if O.bal >= 5:
            pr, prev = TAB[O.bal][(t + 2) % NT], TAB[O.bal][(t + 1) % NT]
        else:
            pr, prev = prf(ph), prf(((t + 1) % NT) * 8 // NT)
        if O.bal and not O.toggle and pr != prev:
            E(f"s_setprio {pr}")

        def mm(x):
            if O.toggle: E(f"s_setprio {O.toggle}")
            E(x)
            if O.toggle: E(f"s_setprio {pr}")
        ex(0, ga)
        mm(f"v_smfmac_f32_32x32x32_bf16 {vr(On,16)}, {vr((Vo if blk == 0 else Vk) + 4,4)}, {vr(Sn+8,8)}, v{IDX}")
        if blk == 0:
            off = ((kt + 1) % 4) * 4096
            E(f"ds_read_b128 {vr(Ko,4)}, v{VK} offset:{off}")
            vreads(Vo, off)
        ex(ga, gb)
        if blk == 1:
            E("s_waitcnt lgkmcnt(0)")
        mm(f"v_mfma_f32_32x32x16_bf16 {vr(Sn,16)}, {vr(Kk if blk == 0 else Ko,4)}, {vr(QY if blk == 0 else QX,4)}, 0")
        ex(gb, gc)
        mm(f"v_smfmac_f32_32x32x32_bf16 {vr(Oc,16)}, {vr(Vk,4)}, {vr(Sc,8)}, v{IDX}")
        if O.pair and t == 15:
            refill("A_rf0", 0, 1)
        if O.pair and t == 1:
            refill("A_rf1", 2, 2)
        if O.pair and O.kv_first < 5 and t in RF[:5 - O.kv_first]:
            refill(f"A_rf{t}", 0, 0)
        ex(gc, 16)
    E(f"s_add_u32 s{S_CNT}, s{S_CNT}, 1")
    E(f"s_cmp_lt_u32 s{S_CNT}, {O.att_iters * 8 // NT}")
    E("s_cbranch_scc1 A_loop")
    E("s_nop 1")
    E(f"v_smfmac_f32_32x32x32_bf16 {vr(OB,16)}, {vr(V1+4,4)}, {vr(S1+8,8)}, v{IDX}")
    E.label("A_fin")
    stamp(6)
    E("s_setprio 3")
    E(f"s_lshr_b32 s{S_T3}, s{S_WAVE}, 2")
    E(f"s_lshl_b32 s{S_T1}, s{S_WAVE}, 12")
    E(f"s_xor_b32 s{S_T2}, s{S_T1}, 16384")
    E(f"v_add_u32 v10, s{S_T1}, v{VL}")
    E(f"v_add_u32 v11, s{S_T2}, v{VL}")
    E("s_nop 5")
    if O.x_noex:
        E("s_branch A_noex")
    E(f"s_cmp_lg_u32 s{S_T3}, 0")
    E("s_cbranch_scc1 A_hi")
    for i in range(3):
        E(f"ds_write_b128 v10, {vr(OB+4*i,4)} offset:{1024*i}")
    E("s_branch A_x")
    E.label("A_hi")
    for i in range(3):
        E(f"ds_write_b128 v10, {vr(OA+4*i,4)} offset:{1024*i}")
    E("s_nop 1")
    for i in range(9):
        E(f"v_mov_b32 v{OA+i}, v{OB+i}")
    E.label("A_x")
    E("s_waitcnt lgkmcnt(0)")
    E("s_barrier")
    E(f"ds_read_b128 {vr(S0+8,4)}, v11 offset:2048")
    E(f"ds_read_b128 {vr(S0,4)}, v11")
    E(f"ds_read_b128 {vr(S0+4,4)}, v11 offset:1024")
    E("s_waitcnt lgkmcnt(2)")
    E.label("A_noex")
    E(f"v_add_f32 v12, v{OA+8}, v{S0+8}")
    E("v_rcp_f32 v12, v12")
    E("s_waitcnt lgkmcnt(0)")
    for i in range(8):
        E(f"v_add_f32 v{OA+i}, v{OA+i}, v{S0+i}")
    for i in range(8):
        E(f"v_mul_f32 v{OA+i}, v12, v{OA+i}")
    for i in range(4):
        E(f"v_cvt_pk_bf16_f32 v{S1+i}, v{OA+2*i}, v{OA+2*i+1}")
    E(f"buffer_store_dwordx4 {vr(S1,4)}, v{VL}, {sr(WS)}, s5 offen sc0 sc1")
    if O.early_o:
        put_flag(6)
        stamp(7)
        E("s_waitcnt vmcnt(0)")
        put_flag(7)
    else:
        E("s_waitcnt vmcnt(0)")
        put_flag(6)
        stamp(7)
    flush_stamps(range(10), "A_st")
    E("s_endpgm")

    E.label("A_slow")
    MX, MY, T, AL = 4, 5, 6, 7
    E(f"v_mov_b32 v{MX}, 0xff7fffff")
    E(f"v_mov_b32 v{MY}, 0xff7fffff")
    E.label("A_sloop")
    E(f"s_mov_b32 s{S_T3}, 0")
    E.label("A_stile")
    E(f"ds_read_b128 {vr(K0,4)}, v{VK}")
    vreads(V0, 0)
    E(f"v_add_u32 v{VK}, 4096, v{VK}")
    E(f"v_add_u32 v{VV}, 4096, v{VV}")
    E("s_waitcnt lgkmcnt(0)")
    for (M, Q, Oc) in ((MX, QX, OA), (MY, QY, OB)):
        E(f"v_mfma_f32_32x32x16_bf16 {vr(S0,16)}, {vr(K0,4)}, {vr(Q,4)}, 0")
        E("s_nop 15")
        E(f"v_max3_f32 v{T}, v{S0}, v{S0+1}, v{M}")
        for i in range(1, 8):
            E(f"v_max3_f32 v{T}, v{S0+2*i}, v{S0+2*i+1}, v{T}")
        E(f"v_mov_b32 v{AL}, v{T}")
        E("s_nop 1")
        E(f"v_permlane32_swap_b32 v{T}, v{AL}")
        E("s_nop 1")
        E(f"v_max_f32 v{T}, v{T}, v{AL}")
        E(f"v_sub_f32 v{AL}, v{M}, v{T}")
        E(f"v_exp_f32 v{AL}, v{AL}")
        E(f"v_mov_b32 v{M}, v{T}")
        for i in range(16):
            E(f"v_sub_f32 v{S0+i}, v{S0+i}, v{T}")
        for i in range(16):
            E(f"v_exp_f32 v{S0+i}, v{S0+i}")
        for i in range(9):
            E(f"v_mul_f32 v{Oc+i}, v{AL}, v{Oc+i}")
        E("s_nop 1")
        E(f"v_smfmac_f32_32x32x32_bf16 {vr(Oc,16)}, {vr(V0,4)}, {vr(S0,8)}, v{IDX}")
        E(f"v_smfmac_f32_32x32x32_bf16 {vr(Oc,16)}, {vr(V0+4,4)}, {vr(S0+8,8)}, v{IDX}")
    E(f"s_add_u32 s{S_T3}, s{S_T3}, 1")
    E(f"s_cmp_lt_u32 s{S_T3}, 4")
    E("s_cbranch_scc1 A_stile")
    chunk_turn()
    E(f"s_add_u32 s{S_CNT}, s{S_CNT}, 1")
    E(f"s_cmp_lt_u32 s{S_CNT}, 8")
    E("s_cbranch_scc1 A_sloop")
    E(f"s_lshl_b32 s{S_T1}, s{S_WAVE}, 10")
    E(f"s_add_u32 s{S_T1}, s{S_T1}, 65536")
    E(f"s_xor_b32 s{S_T2}, s{S_T1}, 4096")
    E(f"v_add_u32 v10, s{S_T1}, v{VL}")
    E(f"v_add_u32 v11, s{S_T2}, v{VL}")
    E(f"ds_write_b64 v10, v[{MX}:{MY}]")
    E("s_waitcnt lgkmcnt(0)")
    E("s_barrier")
    E(f"ds_read_b64 v[{T}:{AL}], v11")
    E("s_waitcnt lgkmcnt(0)")
    for (M, P, Oc) in ((MX, T, OA), (MY, AL, OB)):
        E(f"v_max_f32 v{P}, v{P}, v{M}")
        E(f"v_sub_f32 v{P}, v{M}, v{P}")
        E(f"v_exp_f32 v{P}, v{P}")
        E("s_nop 0")
        for i in range(9):
            E(f"v_mul_f32 v{Oc+i}, v{P}, v{Oc+i}")
    E("s_branch A_fin")


F_XS, F_WS0, F_WSZ = 16384, 32768, 16384
WROW = 3584


def f_dma_x(u, vm):
    E(f"s_add_u32 m0, s{S_W1K}, {(u % 2) * F_XS}")
    E(f"s_add_u32 s{S_T0}, s{S_XB}, s{S_XK}")
    E(f"buffer_load_dwordx4 v1, {sr(X)}, s{S_T0} offen lds")
    E(f"s_add_u32 m0, s{S_W1K}, {(u % 2) * F_XS + 8192}")
    E(f"s_add_u32 s{S_T0}, s{S_T0}, 0x10000")
    E(f"buffer_load_dwordx4 v1, {sr(X)}, s{S_T0} offen lds")
    E(f"s_add_u32 s{S_XK}, s{S_XK}, 128")
    E(f"s_and_b32 s{S_XK}, s{S_XK}, 1023")
    vm.issue(("x", u), 2)


def f_dma_w(s, vm):
    base = F_WS0 + (s % 3) * F_WSZ
    E(f"s_add_u32 m0, s{S_W1K}, {base}")
    E("s_nop 0")
    E(f"buffer_load_dwordx4 v2, {sr(W1)}, s{S_WK} offen lds")
    E(f"s_add_u32 m0, s{S_W1K}, {base + 8192}")
    E("s_nop 0")
    E(f"buffer_load_dwordx4 v3, {sr(WU)}, s{S_WK} offen lds")
    E(f"s_add_u32 s{S_WK}, s{S_WK}, {32 * WROW}")
    E(f"s_cmp_eq_u32 s{S_WK}, {512 * WROW}")
    E(f"s_cselect_b32 s{S_WK}, 0, s{S_WK}")
    vm.issue(("w", s), 2)


def f_prologue():
    E(f"s_cmp_ge_u32 s2, {256 if O.no_f else 512}")
    E("s_cbranch_scc1 L_end")
    if O.diag_span:
        E("s_memrealtime s[92:93]")
        E("s_waitcnt lgkmcnt(0)")
    stamp(0)
    E(f"s_load_dwordx2 s[{X}:{X+1}], s[0:1], 0")
    E(f"s_load_dwordx2 s[{W1}:{W1+1}], s[0:1], 32")
    E(f"s_load_dwordx2 s[{WU}:{WU+1}], s[0:1], 40")
    E(f"s_load_dwordx2 s[{WS}:{WS+1}], s[0:1], 80")
    E(f"s_load_dwordx2 s[{DBG}:{DBG+1}], s[0:1], 72")
    E(f"s_load_dwordx2 s[{WD}:{WD+1}], s[0:1], 48")
    E(f"s_load_dwordx2 s[{WO}:{WO+1}], s[0:1], 16")
    E(f"s_load_dwordx2 s[{OUT}:{OUT+1}], s[0:1], 64")
    E(f"s_load_dwordx2 s[{GW}:{GW+1}], s[0:1], 56")
    E("v_lshrrev_b32 v8, 6, v0")
    E(f"s_bfe_u32 s{S_C}, s2, 0x50003")
    E(f"v_readfirstlane_b32 s{S_WAVE}, v8")
    E("s_getpc_b64 s[4:5]")
    E.label("F_pc")
    E(f"s_add_u32 s4, s4, CODE_START - F_pc")
    E("s_addc_u32 s5, s5, -1")
    E("s_mov_b32 s6, CODE_END - CODE_START")
    E("s_mov_b32 s7, 0x20000")
    E(f"s_lshl_b32 s{S_T0}, s{S_C}, 10")
    E(f"s_lshl_b32 s{S_T1}, s{S_WAVE}, 7")
    E(f"s_add_u32 s{S_T0}, s{S_T0}, s{S_T1}")
    E("v_mov_b32 v9, 0")
    E("s_mov_b64 exec, 1")
    E(f"buffer_load_dword v120, v9, s[4:7], s{S_T0} offen")
    E("s_mov_b64 exec, -1")
    E("s_branch F_main")


L16, VB_, VW_, RB, RW, RB2, RW2, RWO, HT, GV, OUTA, EX0, EX1, RO, PFH, PFO = range(48, 64)
S_RT, S_DL, S_DB, S_HT, S_G, S_OL, S_OS, S_OUT, S_PH, S_PO, S_H0, S_H1, S_FL = range(70, 83) if False else (8, 9, 10, 11, 67, 96, 97, 98, 99, 100, 101, 63, 62)


def g2_setup():
    E(f"s_and_b32 s{S_RT}, s2, 7")
    if O.rswap:
        E(f"s_xor_b32 s{S_RT}, s{S_RT}, {O.rswap}")
    if O.rperm == 1:
        E(f"s_add_u32 s{S_T0}, s2, 1")
        E(f"s_and_b32 s{S_T0}, s{S_T0}, 3")
        E(f"s_lshl_b32 s{S_T0}, s{S_T0}, 1")
        E(f"s_lshr_b32 s{S_RT}, s{S_RT}, 2")
        E(f"s_add_u32 s{S_RT}, s{S_RT}, s{S_T0}")
    if O.rperm == 2:
        tab = [4, 0, 6, 2, 5, 1, 7, 3]
        word = sum(v << (4 * i) for i, v in enumerate(tab))
        E(f"s_lshl_b32 s{S_T0}, s{S_RT}, 2")
        E(f"s_lshr_b32 s{S_RT}, {word:#x}, s{S_T0}")
        E(f"s_and_b32 s{S_RT}, s{S_RT}, 7")
    E(f"s_lshl_b32 s{S_RT}, s{S_RT}, 2")
    E(f"s_and_b32 s{S_T1}, s{S_C}, 3")
    E(f"s_add_u32 s{S_RT}, s{S_RT}, s{S_T1}")
    E(f"s_lshr_b32 s{S_B}, s{S_C}, 2")
    E(f"s_mul_i32 s{S_DB}, s{S_RT}, {288 * 1024}")
    E(f"s_add_u32 s{S_DB}, s{S_DB}, {WS_HO:#x}")
    E(f"v_and_b32 v{L16}, 63, v0")
    E(f"v_lshlrev_b32 v{L16}, 4, v{L16}")
    E(f"s_and_b32 s{S_T0}, s{S_WAVE}, 1")
    E(f"s_lshr_b32 s{S_T2}, s{S_WAVE}, 1")
    E(f"s_mul_i32 s{S_T1}, s{S_T0}, 144")
    E(f"s_add_u32 s{S_T1}, s{S_T1}, s{S_T2}")
    E(f"s_lshl_b32 s{S_T1}, s{S_T1}, 10")
    E(f"v_add_u32 v{VB_}, s{S_T1}, v{L16}")
    E(f"s_lshl_b32 s{S_T1}, s{S_T0}, 2")
    E(f"s_add_u32 s{S_T1}, s{S_T1}, s{S_T2}")
    E(f"s_lshl_b32 s{S_DL}, s{S_T1}, 10")
    E("v_bfe_u32 v12, v0, 4, 1")
    E("v_lshlrev_b32 v13, 2, v12")
    E("v_xor_b32 v13, v13, v0")
    E("v_and_b32 v13, 7, v13")
    E("v_lshlrev_b32 v13, 4, v13")
    E("v_lshl_add_u32 v13, v9, 10, v13")
    E(f"s_lshl_b32 s{S_T1}, s{S_B}, 7")
    E(f"v_add_u32 v{VW_}, s{S_T1}, v13")
    E(f"s_lshr_b32 s{S_T3}, s{S_WAVE}, 2")
    E(f"s_lshl_b32 s{S_T1}, s{S_T0}, 12")
    E(f"s_lshl_b32 s{S_T2}, s{S_T3}, 11")
    E(f"s_add_u32 s{S_T1}, s{S_T1}, s{S_T2}")
    E(f"v_add_u32 v{RB}, s{S_T1}, v{L16}")
    E("v_bfe_u32 v13, v0, 2, 2")
    E("v_bfe_u32 v14, v0, 5, 1")
    E("v_lshl_add_u32 v15, v14, 2, v13")
    E("v_lshlrev_b32 v15, 7, v15")
    E("v_lshrrev_b32 v13, 1, v13")
    E(f"v_bfe_u32 v{HT}, v0, 7, 1")
    E(f"v_xor_b32 v13, v13, v{HT}")
    E("v_lshl_add_u32 v15, v13, 6, v15")
    E("v_lshl_add_u32 v15, v12, 5, v15")
    E("v_and_b32 v13, 3, v0")
    E("v_lshl_add_u32 v15, v13, 3, v15")
    E(f"s_lshl_b32 s{S_T1}, s{S_T3}, 12")
    E(f"s_add_u32 s{S_T1}, s{S_T1}, 8192")
    E(f"v_add_u32 v{RW}, s{S_T1}, v15")
    E(f"v_add_u32 v{RB2}, 0x10000, v{RB}")
    E(f"v_add_u32 v{RW2}, 0x10000, v{RW}")
    E(f"s_lshl_b32 s{S_T1}, s{S_T3}, 15")
    E(f"v_add_u32 v{RWO}, s{S_T1}, v15")
    E("v_and_b32 v13, 31, v0")
    E("v_bfe_u32 v15, v0, 6, 1")
    E("v_lshl_add_u32 v13, v15, 5, v13")
    E(f"v_lshlrev_b32 v{GV}, 2, v13")
    E("v_lshlrev_b32 v13, 10, v13")
    E("v_lshl_add_u32 v13, v14, 4, v13")
    E(f"v_lshl_add_u32 v13, v{HT}, 6, v13")
    E(f"s_lshl_b32 s{S_T1}, s{S_T3}, 5")
    E(f"v_add_u32 v{OUTA}, s{S_T1}, v13")
    E(f"s_lshl_b32 s{S_OUT}, s{S_RT}, 16")
    E(f"s_lshl_b32 s{S_T1}, s{S_B}, 7")
    E(f"s_add_u32 s{S_OUT}, s{S_OUT}, s{S_T1}")
    E(f"s_lshl_b32 s{S_G}, s{S_RT}, 8")
    E(f"s_add_u32 s{S_G}, s{S_G}, {WS_G:#x}")
    E(f"s_lshl_b32 s{S_T1}, s{S_B}, 3")
    E(f"s_add_u32 s{S_T1}, s{S_T1}, s{S_WAVE}")
    E(f"s_mul_i32 s{S_T1}, s{S_T1}, 1792")
    E(f"s_add_u32 s{S_HT}, s{S_T1}, s{S_DB}")
    E("v_and_b32 v13, 15, v0")
    E(f"v_lshlrev_b32 v{PFH}, 6, v13")
    E("v_lshlrev_b32 v13, 7, v13")
    E(f"v_mul_u32_u24 v12, {144 * 1024}, v12")
    E(f"v_add_u32 v{HT}, v13, v12")
    E(f"s_lshl_b32 s{S_T1}, s{S_WAVE}, 11")
    E(f"s_add_u32 s{S_T1}, s{S_T1}, 65536")
    E(f"s_xor_b32 s{S_T2}, s{S_T1}, 8192")
    E(f"v_add_u32 v{EX0}, s{S_T1}, v{L16}")
    E(f"v_add_u32 v{EX1}, s{S_T2}, v{L16}")
    E(f"s_bfe_u32 s{S_T2}, s{S_WAVE}, 0x10001")
    E(f"s_lshl_b32 s{S_T2}, s{S_T2}, 4")
    E(f"s_add_u32 s{S_T2}, s{S_T2}, s{S_T3}")
    E(f"s_lshl_b32 s{S_OL}, s{S_T0}, 5")
    E(f"s_add_u32 s{S_OL}, s{S_OL}, s{S_T2}")
    E(f"s_lshl_b32 s{S_OL}, s{S_OL}, 10")
    E(f"s_mul_i32 s{S_T1}, s{S_T0}, 144")
    E(f"s_add_u32 s{S_T1}, s{S_T1}, s{S_T2}")
    E(f"s_add_u32 s{S_T1}, s{S_T1}, 112")
    E(f"s_lshl_b32 s{S_T1}, s{S_T1}, 10")
    E(f"s_add_u32 s{S_OS}, s{S_DB}, s{S_T1}")
    E(f"s_lshl_b32 s{S_T0}, s{S_T0}, 15")
    E(f"s_lshl_b32 s{S_T3}, s{S_T3}, 14")
    E(f"s_add_u32 s{S_T0}, s{S_T0}, s{S_T3}")
    E(f"v_add_u32 v{RO}, s{S_T0}, v{L16}")
    E(f"v_lshlrev_b32 v{PFO}, 6, v0")
    E(f"s_lshr_b32 s{S_PH}, s{S_RT}, 1")
    E(f"s_lshl_b32 s{S_PH}, s{S_PH}, 10")
    E(f"s_add_u32 s{S_PH}, s{S_PH}, {WS_FH:#x}")
    E(f"s_lshl_b32 s{S_PO}, s{S_RT}, 12")
    E(f"s_add_u32 s{S_PO}, s{S_PO}, {WS_FO:#x}")


def f_main():
    E.label("F_main")
    srd(X, 0x200000); srd(W1, 512 * WROW); srd(WU, 512 * WROW); srd(WS, WS_SIZE); srd(DBG, 256)
    srd(WD, 1792 * 1024); srd(WO, 512 * 1024); srd(OUT, 0x200000); srd(GW, 1024)
    E(f"s_lshl_b32 s{S_W1K}, s{S_WAVE}, 10")
    E(f"s_setprio {O.prio_f if O.prio_up < 0 else O.prio_up}")
    E("v_lshrrev_b32 v9, 3, v0")
    E("v_lshrrev_b32 v10, 4, v0")
    E("v_xor_b32 v11, v10, v0")
    E("v_and_b32 v11, 7, v11")
    E("v_lshlrev_b32 v11, 4, v11")
    E("v_lshl_add_u32 v1, v9, 10, v11")
    g2_setup()
    E("s_waitcnt lgkmcnt(0)")
    S_PAR, S_FA, S_B0, S_GO = S_D - 0, S_CNT, S_WB, S_VM
    S_PAR = S_VM + 1
    if O.flip:
        E(f"s_andn2_b32 s{S_PAR}, 1, s2")
    else:
        E(f"s_and_b32 s{S_PAR}, s2, 1")
    E(f"s_lshr_b32 s{S_T1}, s{S_C}, 2")
    E(f"s_lshl_b32 s{S_FA}, s{S_T1}, 3")
    E(f"s_mul_i32 s{S_T2}, s{S_T1}, 6")
    E(f"s_add_u32 s{S_T2}, s{S_T2}, 64")
    E(f"s_and_b32 s{S_T3}, s{S_T2}, 2")
    E(f"s_and_b32 s{S_T2}, s{S_T2}, 0xfc")
    E(f"s_cmp_eq_u32 s{S_PAR}, 1")
    E(f"s_cselect_b32 s{S_FA}, s{S_T2}, s{S_FA}")
    E(f"s_cselect_b32 s{S_T3}, s{S_T3}, 0")
    E(f"s_and_b32 s{S_B0}, s{S_WAVE}, 6")
    E(f"s_cmp_eq_u32 s{S_B0}, 6")
    E(f"s_cselect_b32 s{S_T2}, s{S_PAR}, 0")
    E(f"s_sub_u32 s{S_B0}, s{S_B0}, s{S_T2}")
    E(f"s_add_u32 s{S_B0}, s{S_B0}, s{S_T3}")
    E(f"s_lshl_b32 s{S_B}, s{S_PAR}, 3")
    E(f"s_add_u32 s{S_B}, s{S_B}, s{S_T1}")
    E(f"s_and_b32 s{S_T0}, s{S_C}, 3")
    E(f"s_and_b32 s{S_A}, s2, 6")
    E(f"s_lshl_b32 s{S_A}, s{S_A}, 1")
    E(f"s_add_u32 s{S_A}, s{S_A}, s{S_T0}")
    E(f"s_mov_b32 s{S_XK}, 0")
    E(f"s_mov_b32 s{S_WK}, 0")
    E(f"s_lshl_b32 s{S_XB}, s{S_A}, 17")
    E(f"s_lshl_b32 s{S_T1}, s{S_T1}, 2")
    E(f"s_and_b32 s{S_T0}, s{S_WAVE}, 3")
    E(f"s_add_u32 s{S_T1}, s{S_T1}, s{S_T0}")
    E(f"s_lshl_b32 s{S_T1}, s{S_T1}, 12")
    E(f"s_add_u32 s{S_GO}, s{S_T1}, s{S_XB}")
    E(f"s_lshl_b32 s{S_T0}, s{S_C}, 2")
    E(f"s_and_b32 s{S_T1}, s{S_WAVE}, 3")
    E(f"s_add_u32 s{S_T0}, s{S_T0}, s{S_T1}")
    E(f"s_mul_i32 s{S_T0}, s{S_T0}, {WROW}")
    E(f"s_lshl_b32 s{S_T1}, s{S_PAR}, 11")
    E(f"s_add_u32 s{S_T0}, s{S_T0}, s{S_T1}")
    E(f"s_mov_b32 s{S_T2}, {128 * WROW}")
    E("v_bfe_u32 v12, v0, 4, 1")
    E(f"v_mul_u32_u24 v12, s{S_T2}, v12")
    E("v_and_b32 v13, 15, v0")
    E("v_lshl_add_u32 v12, v13, 7, v12")
    E(f"v_add_u32 v13, s{S_T0}, v12")
    E(f"s_cmp_lt_u32 s{S_WAVE}, 4")
    E(f"s_cselect_b32 s4, s{W1}, s{WU}")
    E(f"s_cselect_b32 s5, s{W1+1}, s{WU+1}")
    E(f"s_mov_b32 s6, {512 * WROW}")
    E("s_mov_b32 s7, 0x20000")
    E(f"s_cmp_eq_u32 s{S_PAR}, 1")
    E(f"s_cselect_b32 s{S_T3}, 0x0fff0fff, -1")
    E("s_mov_b64 exec, 1")
    E(f"buffer_load_dword v127, v13, s[4:7], 0 offen")
    E("s_waitcnt vmcnt(0)")
    E(f"s_mov_b32 exec_lo, s{S_T3}")
    E(f"buffer_load_dword v127, v13, s[4:7], 0 offen")
    E("s_mov_b64 exec, -1")
    E(f"v_mul_u32_u24 v9, {WROW}, v10")
    E("v_bfe_u32 v11, v0, 1, 3")
    E("v_and_b32 v10, 3, v10")
    E("v_xor_b32 v11, v11, v10")
    E("v_lshl_add_u32 v9, v11, 5, v9")
    E("v_and_b32 v11, 1, v0")
    E("v_lshl_add_u32 v9, v11, 4, v9")
    E(f"s_lshl_b32 s{S_T0}, s{S_FA}, 5")
    E(f"v_add_u32 v2, s{S_T0}, v9")
    E("v_xor_b32 v3, 128, v9")
    E(f"v_add_u32 v3, s{S_T0}, v3")
    E("v_and_b32 v8, 31, v0")
    E("v_lshrrev_b32 v9, 1, v8")
    E("v_and_b32 v9, 7, v9")
    E("v_bfe_u32 v10, v0, 5, 1")
    E("v_xor_b32 v9, v9, v10")
    E("v_lshlrev_b32 v9, 4, v9")
    E("v_lshl_add_u32 v9, v8, 7, v9")
    E("v_bfe_u32 v8, v0, 6, 1")
    E("v_lshl_add_u32 v4, v8, 13, v9")
    for ks in (1, 2, 3):
        E(f"v_xor_b32 v{4+ks}, {32*ks}, v4")
    E("v_bfe_u32 v8, v0, 2, 2")
    E("v_lshl_add_u32 v9, v10, 3, v8")
    E("v_lshlrev_b32 v9, 8, v9")
    E("v_bfe_u32 v10, v0, 4, 1")
    E("v_lshl_add_u32 v9, v10, 13, v9")
    E("v_lshlrev_b32 v10, 2, v10")
    E("v_xor_b32 v8, v8, v10")
    E(f"v_xor_b32 v8, s{S_B0}, v8")
    E("v_lshl_add_u32 v9, v8, 5, v9")
    E("v_and_b32 v8, 3, v0")
    E("v_lshl_add_u32 v9, v8, 3, v9")
    E(f"v_add_u32 v8, {F_WS0}, v9")
    E("v_xor_b32 v9, 32, v8")
    E(f"s_and_b32 s{S_T0}, s{S_WAVE}, 1")
    E(f"s_lshl_b32 s{S_T0}, s{S_T0}, 1")
    E(f"s_lshl_b32 s{S_T1}, s{S_A}, 2")
    E(f"s_add_u32 s{S_T0}, s{S_T0}, s{S_T1}")
    E(f"s_mul_i32 s{S_T0}, s{S_T0}, 144")
    E(f"s_add_u32 s{S_T0}, s{S_T0}, s{S_FA}")
    E(f"s_add_u32 s{S_T0}, s{S_T0}, s{S_B0}")
    E(f"s_lshl_b32 s{S_T0}, s{S_T0}, 10")
    E(f"s_add_u32 s{S_H0}, s{S_T0}, {WS_HO:#x}")
    E(f"s_add_u32 s{S_H1}, s{S_H0}, {144 * 1024}")
    E(f"s_lshl_b32 s{S_T0}, s{S_A}, 10")
    E(f"s_lshl_b32 s{S_T1}, s{S_B}, 6")
    E(f"s_add_u32 s{S_T0}, s{S_T0}, s{S_T1}")
    E(f"s_add_u32 s{S_FL}, s{S_T0}, {WS_FH:#x}")
    E("v_mov_b32 v12, 1.0")
    E(f"v_lshlrev_b32 v13, 3, v{L16}")
    E("v_and_b32 v14, 0xf0, v48")
    E("v_bfe_u32 v15, v0, 4, 2")
    E(f"s_cmp_lg_u32 s{S_WAVE}, 0")
    E("s_cbranch_scc1 F_go")
    wait_start("F_tag", 1)
    E.label("F_go")
    E("s_barrier")
    vm0 = VM()
    f_dma_x(0, vm0); f_dma_w(0, vm0); f_dma_w(1, vm0); f_dma_x(1, vm0); f_dma_w(2, vm0)
    stamp(1)
    prio = lambda s: O.prio_boost if (O.boost_mask >> s) & 1 else O.prio_f
    E(f"s_setprio {prio(0)}")
    E(f"s_waitcnt vmcnt({vm0.need(('x',0),('w',0))})")
    E("s_barrier")
    stamp(2)
    E(f"s_lshr_b32 s{S_T0}, s{S_WAVE}, 2")
    E(f"s_and_b32 s{S_T0}, s{S_T0}, s{S_PAR}")
    E("s_cbranch_scc1 F_one")

    def up(nb):
        vm = VM()
        vm.q = list(vm0.q)

        def reads(s, kk):
            b = 16 + 16 * kk
            u = s // 2
            L = []
            for i in (0, 1):
                L.append(f"ds_read_b128 {vr(b+4*i,4)}, v{4 + 2*(s&1) + kk} offset:{(u % 2) * F_XS + i * 4096}")
                if i < nb:
                    for q in (0, 1):
                        L.append(f"ds_read_b64_tr_b16 {vr(b+8+4*i+2*q,2)}, v{8+i} offset:{(s % 3) * F_WSZ + kk * 4096 + q * 1024}")
            return L

        def mfmas(s, kk):
            b = 16 + 16 * kk
            L = []
            for rbk, bb in ((0, 0), (0, 1), (1, 1), (1, 0)):
                if bb < nb:
                    acc = vr(64 + 16 * (2 * rbk + bb), 16)
                    c = "0" if (s == 0 and kk == 0) else acc
                    L.append(f"v_mfma_f32_32x32x16_bf16 {acc}, {vr(b+8+4*bb,4)}, {vr(b+4*rbk,4)}, {c}")
            return L

        [E(x) for x in reads(0, 0)]
        for s in range(16):
            if s and prio(s) != prio(s - 1):
                E(f"s_setprio {prio(s)}")
            M, R = mfmas(s, 0), reads(s, 1)
            E("s_waitcnt lgkmcnt(0)")
            E(M[0]); [E(x) for x in R[:3]]; E(M[1]); [E(x) for x in R[3:]]; [E(x) for x in M[2:]]
            M = mfmas(s, 1)
            if s == 15:
                E("s_waitcnt lgkmcnt(0)")
                [E(x) for x in M]
                break
            E(f"s_waitcnt vmcnt({vm.need(('x',(s+1)//2),('w',s+1))}) lgkmcnt(0)")
            E("s_barrier")
            R = reads(s + 1, 0)
            E(M[0]); [E(x) for x in R[:3]]; E(M[1]); [E(x) for x in R[3:]]; [E(x) for x in M[2:3]]
            if s + 3 <= 15:
                f_dma_w(s + 3, vm)
            [E(x) for x in M[3:]]
            if s % 2 == 1 and (s + 1) // 2 + 1 <= 7:
                f_dma_x((s + 1) // 2 + 1, vm)
            if s in (O.wd_step, O.wo_step):
                wd = s == O.wd_step
                E(f"s_lshl_b32 s{S_T0}, s{S_C}, 3")
                E(f"s_add_u32 s{S_T0}, s{S_T0}, s{S_WAVE}")
                E(f"s_mul_i32 s{S_T0}, s{S_T0}, {7168 if wd else 2048}")
                E("s_mov_b32 exec_hi, 0xffffff" if wd else "s_mov_b64 exec, 0xffff")
                E(f"buffer_load_dword v11, v13, {sr(WD if wd else WO)}, s{S_T0} offen")
                E("s_mov_b64 exec, -1")
                vm.issue("wd")
            if s == O.g_step and nb == 1:
                assert max(O.wd_step, O.wo_step % 99) <= O.g_step and O.g_step >= 13
                E("v_lshl_add_u32 v10, v15, 10, v14")
                for i in range(4):
                    E(f"buffer_load_dwordx4 {vr(80+4*i,4)}, v10, {sr(X)}, s{S_GO} offen offset:{256*i}")
                for i in range(4):
                    E(f"buffer_load_dwordx4 {vr(112+4*i,4)}, v14, {sr(GW)}, 0 offen offset:{256*i}")
                vm.issue("g", 8)
            if s in (3, 7, 11) and not O.dn_stamps:
                stamp(10 + s // 4)
        stamp(3)
        E(f"s_setprio {O.prio_silu}")
        E("s_barrier")
        wo_stage()
        E(f"s_mov_b32 s{S_T2}, {NLOG2E:#x}")
        E(f"s_mov_b32 s{S_T3}, {NLOG2E:#x}")
        for tl in range(4):
            if (tl & 1) >= nb:
                continue
            a = 64 + 16 * tl
            t = 16 + 8 * (tl & 1)
            pk = 32 + 4 * tl
            for i in range(4):
                E(f"v_pk_mul_f32 {vr(t+2*i,2)}, {vr(a+2*i,2)}, s[{S_T2}:{S_T3}]")
            for i in range(8):
                E(f"v_exp_f32 v{t+i}, v{t+i}")
            for i in range(4):
                E(f"v_pk_mul_f32 {vr(a+2*i,2)}, {vr(a+2*i,2)}, {vr(a+8+2*i,2)}")
            for i in range(4):
                E(f"v_pk_add_f32 {vr(t+2*i,2)}, {vr(t+2*i,2)}, v[12:13] op_sel_hi:[1,0]")
            for i in range(8):
                E(f"v_rcp_f32 v{t+i}, v{t+i}")
            E("s_nop 0")
            for i in range(4):
                E(f"v_pk_mul_f32 {vr(a+2*i,2)}, {vr(a+2*i,2)}, {vr(t+2*i,2)}")
            for i in range(4):
                E(f"v_cvt_pk_bf16_f32 v{pk+i}, v{a+2*i}, v{a+2*i+1}")
            E(f"buffer_store_dwordx4 {vr(pk,4)}, v{L16}, {sr(WS)}, s{(S_H0, S_H1)[tl >> 1]} offen offset:{(tl & 1) * 1024} sc0 sc1")
        if nb == 1:
            E("v_mov_b32 v12, 0")
            E("v_mov_b32 v13, 0")
            E("s_waitcnt vmcnt(10)")
            for i in range(16):
                E(f"v_dot2_f32_bf16 v{12 + (i & 1)}, v{80+i}, v{112+i}, v{12 + (i & 1)}")
            E("s_nop 2")
            E("v_add_f32 v12, v12, v13")
            for ctl in ("quad_perm:[1,0,3,2]", "quad_perm:[2,3,0,1]", "row_half_mirror", "row_mirror"):
                E("s_nop 1")
                E(f"v_add_f32_dpp v12, v12, v12 {ctl} row_mask:0xf bank_mask:0xf")
            E(f"v_mul_f32 v12, {NLOG2E:#x}, v12")
            E("v_exp_f32 v12, v12")
            E(f"s_lshr_b32 s{S_T0}, s{S_GO}, 8")
            E("v_add_f32 v12, 1.0, v12")
            E("v_rcp_f32 v12, v12")
            E("v_lshlrev_b32 v11, 2, v15")
            E(f"s_add_u32 s{S_T0}, s{S_T0}, {WS_G:#x}")
            E("s_mov_b32 exec_lo, 0x10001")
            E("s_mov_b32 exec_hi, 0x10001")
            E(f"buffer_store_dword v12, v11, {sr(WS)}, s{S_T0} offen sc0 sc1")
            E("s_mov_b64 exec, -1")

    up(2)
    E("s_branch F_pub")
    E.label("F_one")
    up(1)
    E.label("F_pub")
    E("s_waitcnt vmcnt(0)")
    E.label("F_pub2")
    E("s_barrier")
    stamp(4)
    E(f"s_cmp_lg_u32 s{S_WAVE}, 0")
    E("s_cbranch_scc1 F_wait2")
    put_flag(S_FL)
    E("s_nop 0")
    E.label("F_wait2")
    if O.wo_late:
        E("s_waitcnt vmcnt(0)")
        E("s_barrier")
    wf = lambda k: (4 * k) if k < 4 else (80 + 4 * (k - 4))
    for k in range(16):
        for q in (0, 1):
            E(f"ds_read_b64_tr_b16 {vr(wf(k) + 2*q, 2)}, v{RWO} offset:{k * 2048 + q * 1024}")
    NS = O.dn_ns
    E("s_waitcnt lgkmcnt(0)")
    E("s_barrier")
    for st in range(NS):
        E(f"s_add_u32 m0, s{S_W1K}, {st * 16384 + 8192}")
        E(f"s_mov_b32 s{S_T0}, {st * 65536}")
        E(f"buffer_load_dwordx4 v{VW_}, {sr(WD)}, s{S_T0} offen lds")
    E(f"s_cmp_lg_u32 s{S_WAVE}, 0")
    E("s_cbranch_scc1 F_wait2b")
    poll("F_pollh", PFH, f"s{S_PH}", False, 16, O.sl_h)
    E.label("F_wait2b")
    E("s_barrier")
    stamp(5)
    vd = VM()

    def dma(st, skip_w=False):
        slot = st % NS
        E(f"s_add_u32 m0, s{S_DL}, {slot * 16384}")
        E(f"s_add_u32 s{S_T0}, s{S_DB}, {st * 4096}")
        E(f"buffer_load_dwordx4 v{VB_}, {sr(WS)}, s{S_T0} offen sc1 lds")
        vd.issue(st)
        if skip_w:
            return
        E(f"s_add_u32 m0, s{S_W1K}, {slot * 16384 + 8192}")
        E(f"s_mov_b32 s{S_T0}, {st * 65536}")
        E(f"buffer_load_dwordx4 v{VW_}, {sr(WD)}, s{S_T0} offen lds")
        vd.issue(st)

    def greads(st):
        slot = st % NS
        b = 16 + 16 * (st & 1)
        vb, vw, base = (RB, RW, slot * 16384) if slot < 4 else (RB2, RW2, 0)
        L = []
        for kk in (0, 1):
            L.append(f"ds_read_b128 {vr(b+4*kk,4)}, v{vb} offset:{base + kk * 1024}")
            for q in (0, 1):
                L.append(f"ds_read_b64_tr_b16 {vr(b+8+4*kk+2*q,2)}, v{vw} offset:{base + kk * 2048 + q * 1024}")
        return L

    for t in range(O.ht_pos):
        dma(t, True)
    E("s_mov_b64 exec, 0x3fff3fff")
    E(f"buffer_load_dword v{HT}, v{HT}, {sr(WS)}, s{S_HT} offen sc1")
    E("s_mov_b64 exec, -1")
    E(f"buffer_load_dword v{GV}, v{GV}, {sr(WS)}, s{S_G} offen sc1")
    vd.issue("h", 2)
    for t in range(O.ht_pos, NS):
        dma(t, True)
    issued = NS
    E(f"s_setprio {O.prio_dn}")
    bars = [t for t in range(27) if t >= O.dn_grp_until or t % O.dn_grp == O.dn_grp - 1]
    E(f"s_waitcnt vmcnt({vd.need(*range(0, bars[0] + 1))})")
    E("s_barrier")
    [E(x) for x in greads(0)]
    for t in range(28):
        b = 16 + 16 * (t & 1)
        M = [f"v_mfma_f32_32x32x16_bf16 v[64:79], {vr(b+8+4*kk,4)}, {vr(b+4*kk,4)}, {'0' if t + kk == 0 else 'v[64:79]'}" for kk in (0, 1)]
        if t == O.dn_low:
            E(f"s_setprio {O.prio_f_late}")
        if O.dn_stamps and t in (4, 12, 20):
            stamp(10 + t // 8)
        if t in bars:
            nxt = min([x for x in bars if x > t] + [27])
            E(f"s_waitcnt vmcnt({vd.need(*range(t + 1, nxt + 1))}) lgkmcnt(0)")
            E("s_barrier")
        else:
            E("s_waitcnt lgkmcnt(0)")
        R = greads(t + 1) if t < 27 else []
        E(M[0]); [E(x) for x in R[:3]]; E(M[1]); [E(x) for x in R[3:]]
        if t in bars:
            while issued <= min(27, t + NS):
                dma(issued)
                issued += 1
    stamp(6)
    E(f"s_cmp_lg_u32 s{S_WAVE}, 0")
    E("s_cbranch_scc1 F_wait3")
    E("s_setprio 3")
    if O.o_touch:
        E(f"v_lshrrev_b32 v17, 9, v{L16}")
        E(f"v_mul_u32_u24 v17, {144 * 1024 - 32 * 1024}, v17")
        E(f"v_lshl_add_u32 v17, v{L16}, 6, v17")
        E(f"s_lshr_b32 s{S_T0}, s{S_C}, 2")
        E(f"s_lshl_b32 s{S_T0}, s{S_T0}, 7")
        E(f"s_add_u32 s{S_T0}, s{S_T0}, s{S_DB}")
        E(f"s_add_u32 s{S_T0}, s{S_T0}, {112 * 1024}")
        E("s_mov_b64 s[4:5], -1")
        E(f"s_mov_b32 s{S_SPIN}, 0x40000")
        E.label("F_pollo")
        E(f"buffer_load_dword v16, v{PFO}, {sr(WS)}, s{S_PO} offen sc1")
        E("s_waitcnt vmcnt(0)")
        E(f"v_cmp_ne_u32 vcc, s{S_TAG}, v16")
        E("s_nop 4")
        E("s_cmp_eq_u64 vcc, 0")
        E("s_cbranch_scc1 F_pollo_ok")
        E("s_andn2_b64 s[6:7], s[4:5], vcc")
        E("s_cbranch_scc0 F_pollo_n")
        E("s_mov_b64 s[4:5], vcc")
        E("s_mov_b64 exec, s[6:7]")
        E(f"buffer_load_dword v18, v17, {sr(WS)}, s{S_T0} offen sc1")
        E("s_mov_b64 exec, -1")
        E.label("F_pollo_n")
        E(f"s_sleep {O.sl_o}")
        E(f"s_sub_u32 s{S_SPIN}, s{S_SPIN}, 1")
        E(f"s_cmp_lg_u32 s{S_SPIN}, 0")
        E("s_cbranch_scc1 F_pollo")
        E.label("F_pollo_ok")
    else:
        poll("F_pollo", PFO, f"s{S_PO}", False, 16, O.sl_o)
    E.label("F_wait3")
    E("s_setprio 3")
    E("s_barrier")
    stamp(7)
    for i in range(8):
        E(f"s_add_u32 m0, s{S_OL}, {i * 2048}")
        E(f"s_add_u32 s{S_T0}, s{S_OS}, {i * 2048}")
        E(f"buffer_load_dwordx4 v{L16}, {sr(WS)}, s{S_T0} offen sc1 lds")
    E(f"v_sub_f32 v{HT}, 1.0, v{GV}")
    for i in range(16):
        E(f"v_mul_f32 v{64+i}, v{HT}, v{64+i}")
    cuts = {2: (0, 8, 16), 4: (0, 4, 8, 12, 16), 3: (0, 8, 12, 16)}[O.o_parts]
    for lo, hi in zip(cuts[:-1], cuts[1:]):
        per = hi - lo
        E(f"s_waitcnt vmcnt({8 - hi // 2})")
        E("s_barrier")
        for k in range(4):
            E(f"ds_read_b128 {vr(32 + 4*k, 4)}, v{RO} offset:{(lo + k) * 1024}")
        for k in range(per):
            E(f"s_waitcnt lgkmcnt({min(3, per - 1 - k)})")
            E(f"v_mfma_f32_32x32x16_bf16 v[16:31], {vr(wf(lo + k), 4)}, {vr(32 + 4*(k % 4), 4)}, {'0' if lo + k == 0 else 'v[16:31]'}")
            if k + 4 < per:
                E(f"ds_read_b128 {vr(32 + 4*k, 4)}, v{RO} offset:{(lo + 4 + k) * 1024}")
    stamp(8)
    E(f"s_cmp_ge_u32 s{S_WAVE}, 4")
    E("s_cbranch_scc1 F_hi")
    for hi in (0, 1):
        keep, send = (0, 8) if not hi else (8, 0)
        if hi:
            E.label("F_hi")
        E("s_nop 9")
        for i in range(8):
            E(f"v_fmac_f32 v{64+send+i}, v{GV}, v{16+send+i}")
        E(f"ds_write_b128 v{EX0}, {vr(64+send,4)}")
        E(f"ds_write_b128 v{EX0}, {vr(68+send,4)} offset:1024")
        for i in range(8):
            E(f"v_fmac_f32 v{64+keep+i}, v{GV}, v{16+keep+i}")
        E("s_waitcnt lgkmcnt(0)")
        E("s_barrier")
        E(f"ds_read_b128 v[20:23], v{EX1}")
        E(f"ds_read_b128 v[24:27], v{EX1} offset:1024")
        E("s_waitcnt lgkmcnt(1)")
        for i in range(8):
            if i == 4:
                E("s_waitcnt lgkmcnt(0)")
            E(f"v_add_f32 v{64+keep+i}, v{64+keep+i}, v{20+i}")
        for i in range(4):
            E(f"v_cvt_pk_bf16_f32 v{16+i}, v{64+keep+2*i}, v{65+keep+2*i}")
        if not hi:
            E("s_branch F_x")
    E.label("F_x")
    E("s_nop 1")
    E("v_permlane32_swap_b32 v16, v18")
    E("v_permlane32_swap_b32 v17, v19")
    E(f"buffer_store_dwordx4 v[16:19], v{OUTA}, {sr(OUT)}, s{S_OUT} offen")
    stamp(9)
    flush_stamps(range(13), "F_st")
    if O.diag_span:
        E.label("F_diag")
        E("s_memrealtime s[4:5]")
        E("s_waitcnt lgkmcnt(0)")
        E("s_sub_u32 s4, s4, s92")
        E(f"s_cmp_lt_u32 s4, {O.diag_span}")
        E("s_cbranch_scc1 F_diag")
    E("s_endpgm")


def out_addr():
    E("v_lshlrev_b32 v8, 10, v8")
    E("v_bfe_u32 v9, v0, 5, 1")
    E("v_lshl_add_u32 v8, v9, 4, v8")
    E("v_bfe_u32 v9, v0, 7, 1")
    E("v_lshl_add_u32 v8, v9, 6, v8")
    E("v_lshrrev_b32 v9, 8, v0")
    E("v_lshl_add_u32 v8, v9, 5, v8")
    E(f"s_lshl_b32 s{S_XK}, s{S_A}, 16")
    E(f"s_lshl_b32 s{S_T1}, s{S_B}, 7")
    E(f"s_add_u32 s{S_XK}, s{S_XK}, s{S_T1}")
    E(f"s_lshl_b32 s{S_T1}, s{S_WAVE}, 11")
    E(f"s_add_u32 s{S_T1}, s{S_T1}, 65536")
    E(f"s_xor_b32 s{S_T2}, s{S_T1}, 8192")
    E(f"v_add_u32 v6, s{S_T1}, v12")
    E(f"v_add_u32 v7, s{S_T2}, v12")


def voff_w():
    E("v_bfe_u32 v2, v0, 4, 1")
    E("v_lshlrev_b32 v2, 2, v2")
    E("v_xor_b32 v2, v2, v0")
    E("v_and_b32 v2, 7, v2")
    E("v_lshlrev_b32 v2, 4, v2")
    E("v_lshrrev_b32 v11, 3, v0")
    E("v_lshl_add_u32 v2, v11, 10, v2")
    E(f"s_lshr_b32 s{S_T1}, s{S_C}, 2")
    E(f"s_lshl_b32 s{S_T1}, s{S_T1}, 7")
    E(f"v_add_u32 v2, s{S_T1}, v2")


def wo_stage(batch=0):
    for i in range(8):
        E(f"s_add_u32 m0, s{S_W1K}, {i * 8192}")
        E(f"s_mov_b32 s{S_T0}, {i * 65536}")
        E(f"buffer_load_dwordx4 v{VW_}, {sr(WO)}, s{S_T0} offen lds")
        if batch and i % batch == batch - 1:
            E("s_waitcnt vmcnt(0)")


def _m_fix_base():
    E(f"s_mul_i32 s{S_XB}, s{S_A}, {288 * 1024}")
    E(f"s_add_u32 s{S_XB}, s{S_XB}, {WS_HO:#x}")


HEADER = """; Kernarg layout (88 bytes, ptrs only, base s[0:1]):
; @launch grid=(512,1,1) block=(512,1,1) lds=81920
.amdgcn_target "amdgcn-amd-amdhsa--gfx950"
.text
.globl {kn}
.p2align 8
.type {kn},@function
{kn}:
CODE_START:
"""

FOOTER = """CODE_END:
.section .rodata,"a"
.p2align 6
.amdhsa_kernel {kn}
  .amdhsa_next_free_vgpr 128
  .amdhsa_next_free_sgpr 102
  .amdhsa_accum_offset 128
  .amdhsa_group_segment_fixed_size 0
  .amdhsa_kernarg_size 88
  .amdhsa_user_sgpr_count 2
  .amdhsa_user_sgpr_kernarg_segment_ptr 1
  .amdhsa_system_sgpr_workgroup_id_x 1
.end_amdhsa_kernel
"""


def generate():
    E.L = []
    if O.scramble:
        E("s_and_b32 s3, s2, 7")
        E("s_lshl_b32 s3, s3, 3")
        E("s_bfe_u32 s4, s2, 0x30003")
        E("s_and_b32 s2, s2, 0xffffffc0")
        E("s_or_b32 s2, s2, s3")
        E("s_or_b32 s2, s2, s4")
    E("s_cmp_ge_u32 s2, 256")
    E("s_cbranch_scc1 F_entry")
    stamp(0)
    if O.only_down:
        E("s_endpgm")
    a_prologue()
    E("s_cbranch_vccnz A_vwave")
    E("s_branch A_qwave")
    E.label("F_entry")
    f_prologue()
    E.label("L_end")
    E("s_endpgm")
    E.label("A_qwave")
    a_qkv(False)
    E("s_branch A_att")
    E.label("A_vwave")
    a_qkv(True)
    E.label("A_att")
    a_attention()
    f_main()
    return HEADER.format(kn=KN) + "\n".join(E.L) + "\n" + FOOTER.format(kn=KN)


if __name__ == "__main__":
    ap = argparse.ArgumentParser()
    ap.add_argument("-o", default="k.s")
    ap.add_argument("--set", action="append", default=[])
    a = ap.parse_args()
    for kv in a.set:
        k, v = kv.split("=")
        assert hasattr(O, k), k
        setattr(O, k, type(getattr(O, k))(int(v)))
    s = generate()
    open(a.o, "w").write(s)
    sys.path.insert(0, "cdna_kernels")
    from cdna_launch import with_harness_metadata, address_register_problem
    h = a.o[:-2] + ".harness.s"
    co = a.o[:-2] + ".co"
    open(h, "w").write(with_harness_metadata(s, KN, 11, launch_lists=True))
    r = subprocess.run(["clang", "-x", "assembler", "-target", "amdgcn-amd-amdhsa", "-mcpu=gfx950", h, "-o", co],
                       capture_output=True, text=True)
    if r.returncode:
        print(r.stderr[:4000]); sys.exit(1)
    p = address_register_problem(co, KN)
    print("check:", p)
    r = subprocess.run(f"llvm-nm {co} | grep -E 'CODE_|A_qwave|A_vwave|A_att|A_loop|A_fin|A_slow|F_entry|F_main|F_pub|F_dloop|F_gate$' | sort", shell=True, capture_output=True, text=True)
    print(r.stdout)
```

```python
import sys, subprocess, argparse

NAME = "gated_mix__softmax_full_mha__swiglu_ffn__prompt"
KN = NAME + "_kernel"

WS_KV, WS_Q, WS_HO = 0, 0x400000, 0x600000
WS_G = 0xF04000
WS_FO2 = 0xF40000
WS_FKV, WS_FH, WS_FO, WS_FS = 0xF08000, 0xF0C000, 0xF20000, 0xF07000
WS_STAMP = 0x1000000
WS_SIZE = 0x1100000
QSCALE = 0x3EB8AA3B
NLOG2E = 0xBFB8AA3B
THR2 = 0x45548000


class Opt:
    stamps = False
    hint_step = 17
    f_fill_early = False
    force_slow = False
    prio_a_qkv = 3
    prio_a_att = 2
    prio_f = 0
    prio_f_late = 0
    zrows = 1
    toggle = 0
    touch_gu = 0
    touch = 0
    warm_steps = 0
    f_rot = 0
    a_exit = 0
    kv_rot = 0
    ga = 2
    gb = 3
    gc = 5
    kv_first = 2
    wd_t0 = 3
    wo_t = 1
    f_touch = 1
    f_touch2 = 99
    bal = 4
    pace_from = 99
    prio_up = -1
    prio_dn = 0
    boost_mask = 31
    prio_boost = 3
    hint1 = 11
    f_wd = 1
    pair = 1
    dn_stamps = 0
    wo_early = 1
    scramble = 0
    dbg_out = 0
    hold = 0
    kv_wait1 = 1
    piped = 0
    dn_ns = 5
    dn_grp = 2
    dn_grp_until = 16
    dn_low = 99
    twice = 0
    o_parts = 2
    x_noack = 0
    x_noex = 0
    wd_step = 13
    wd_parts = 1
    ht_pos = 2
    nt0 = 0
    order0 = 0
    diag_span = 0
    w_first = 1
    early_o = 0
    x_fail = 0
    t_rows = 256
    tlb = 0
    rf_late = 0
    bar_diag = 0
    kv_cnt = 0
    g_batch = 2
    wo_step = 9
    wo_batch = 0
    qswap = 7
    hswap = 1
    rswap = 2
    sl_o = 2
    sl_h = 2
    rperm = 0
    amap = 0
    sl_kv = 0
    sl_s = 2
    wo_late = 0
    o_touch = 0
    flip = 0
    pflip = 0
    g_step = 13
    evt = -1
    only_down = 0
    d_rot = 0
    h_touch = 1
    att_iters = 8
    prio_silu = 3
    gate_late = 1
    h_sc1 = 1
    no_f = 0
    late_iter = 99


O = Opt()


class Asm:
    def __init__(self):
        self.L = []

    def __call__(self, s):
        for x in s.strip("\n").split("\n"):
            self.L.append("    " + x.strip())

    def label(self, l):
        self.L.append(l + ":")

    def raw(self, s):
        self.L.append(s)


E = Asm()


def vr(a, n):
    return f"v[{a}:{a+n-1}]"


def srd(base, size):
    E(f"s_mov_b32 s{base+2}, {size:#x}")
    E(f"s_mov_b32 s{base+3}, 0x20000")


S_WAVE = 3
X, W1, WU, WS, DBG, WD, WO, OUT, GW = 12, 16, 20, 24, 28, 32, 36, 40, 44
def sr(b): return f"s[{b}:{b+3}]"
S_TAG = 48
S_W1K = 49
S_T0, S_T1, S_T2, S_T3 = 50, 51, 52, 53
S_XK, S_XB, S_WK, S_WB = 54, 55, 56, 57
S_CNT = 58
S_A, S_B, S_C, S_D = 59, 60, 61, 62
S_SLOT = 63
S_VM = 64
S_SPIN = 66
S_STAMP = 70


def stamp(i):
    if O.evt >= 0:
        if i == 0 or i == O.evt % 16:
            E(f"s_memrealtime s[{S_STAMP+2*i}:{S_STAMP+2*i+1}]")
            E("s_waitcnt lgkmcnt(0)")
    elif O.stamps:
        E(f"s_memrealtime s[{S_STAMP+2*i}:{S_STAMP+2*i+1}]")
        E(f"s_memtime s[68:69]")
        E("s_waitcnt lgkmcnt(0)")
        E(f"s_mov_b32 s{S_STAMP+2*i+1}, s68")


def cstamp(i):
    if O.stamps:
        E(f"s_memtime s[{S_STAMP+2*i}:{S_STAMP+2*i+1}]")
        E("s_waitcnt lgkmcnt(0)")


def flush_stamps(idx, lab):
    if O.evt >= 0 and lab[0] == "AF"[O.evt // 16]:
        i = O.evt % 16
        E(f"s_add_u32 s6, s{S_STAMP+2*i}, 6000")
        E.label(lab + "_e")
        E("s_memrealtime s[4:5]")
        E("s_waitcnt lgkmcnt(0)")
        E("s_sub_u32 s4, s4, s6")
        E("s_cmp_lt_i32 s4, 0")
        E(f"s_cbranch_scc1 {lab}_e")
    if not O.stamps:
        return
    E(f"s_cmp_lg_u32 s{S_WAVE}, 0")
    E(f"s_cbranch_scc1 {lab}")
    E(f"s_lshl_b32 s{S_T0}, s2, 7")
    E(f"s_add_u32 s{S_T0}, s{S_T0}, {WS_STAMP:#x}")
    E("s_mov_b64 exec, 1")
    E("v_mov_b32 v1, 0")
    for i in idx:
        E(f"v_mov_b32 v2, s{S_STAMP+2*i}")
        E(f"buffer_store_dword v2, v1, {sr(WS)}, s{S_T0} offen offset:{4*i}")
        E(f"v_mov_b32 v3, s{S_STAMP+2*i+1}")
        E(f"buffer_store_dword v3, v1, {sr(WS)}, s{S_T0} offen offset:{64+4*i}")
    if O.dbg_out:
        E(f"s_and_b32 s{S_T0}, s2, 255")
        E(f"s_cmp_lg_u32 s{S_T0}, 77")
        E(f"s_cbranch_scc1 {lab}_d")
        sel, base = ((0, 1, 2, 5, 6, 7), 1) if lab.startswith("A") else ((1, 2, 3, 5, 6, 7, 9), 9)
        for n, i in enumerate(sel):
            E(f"v_mov_b32 v2, s{S_STAMP+2*i}")
            if n:
                E(f"v_subrev_u32 v2, s{S_STAMP}, v2")
            E(f"buffer_store_dword v2, v1, {sr(DBG)}, 0 offen offset:{4*(base+n)}")
        if lab.startswith("A"):
            E(f"s_sub_u32 s{S_T0}, s{S_STAMP+13}, s{S_STAMP+11}")
            E(f"v_mov_b32 v2, s{S_T0}")
            E(f"buffer_store_dword v2, v1, {sr(DBG)}, 0 offen offset:28")
        E.label(lab + "_d")
    E("s_waitcnt vmcnt(0)")
    E.label(lab)


class VM:
    def __init__(self):
        self.q = []

    def issue(self, tag, n=1):
        self.q += [tag] * n

    def need(self, *tags):
        last = -1
        for i, t in enumerate(self.q):
            if t in tags:
                last = i
        for t in tags:
            assert t in self.q, t
        return len(self.q) - 1 - last


def poll(lab, voff_reg, soff, piped=False, dst=11, sleep=2):
    E(f"s_mov_b32 s{S_SPIN}, 0x40000")
    if piped:
        regs = (11, 9, 15)
        for r in regs[:2]:
            E(f"buffer_load_dword v{r}, v{voff_reg}, {sr(WS)}, {soff} offen sc1")
            E("s_sleep 2")
        E.label(lab)
        for i in range(3):
            E(f"buffer_load_dword v{regs[(i + 2) % 3]}, v{voff_reg}, {sr(WS)}, {soff} offen sc1")
            E("s_waitcnt vmcnt(2)")
            E(f"v_cmp_ne_u32 vcc, s{S_TAG}, v{regs[i]}")
            E("s_nop 4")
            E("s_cmp_eq_u64 vcc, 0")
            E(f"s_cbranch_scc1 {lab}_ok")
            E("s_sleep 1")
    else:
        E.label(lab)
        E(f"buffer_load_dword v{dst}, v{voff_reg}, {sr(WS)}, {soff} offen sc1")
        E("s_waitcnt vmcnt(0)")
        E(f"v_cmp_ne_u32 vcc, s{S_TAG}, v{dst}")
        E("s_nop 4")
        E("s_cmp_eq_u64 vcc, 0")
        E(f"s_cbranch_scc1 {lab}_ok")
        E(f"s_sleep {sleep}")
    E(f"s_sub_u32 s{S_SPIN}, s{S_SPIN}, 1")
    E(f"s_cmp_lg_u32 s{S_SPIN}, 0")
    E(f"s_cbranch_scc1 {lab}")
    E.label(lab + "_ok")


def get_tag(lab, sleep=4):
    E(f"s_mov_b32 s{S_SPIN}, 0x40000")
    E("v_mov_b32 v10, 0")
    E.label(lab)
    E(f"buffer_load_dword v11, v10, {sr(DBG)}, 0 offen sc1")
    E("s_waitcnt vmcnt(0)")
    E(f"v_readfirstlane_b32 s{S_TAG}, v11")
    E("s_nop 3")
    E(f"s_cmp_lg_u32 s{S_TAG}, 0")
    E(f"s_cbranch_scc1 {lab}_ok")
    E(f"s_sleep {sleep}")
    E(f"s_sub_u32 s{S_SPIN}, s{S_SPIN}, 1")
    E(f"s_cmp_lg_u32 s{S_SPIN}, 0")
    E(f"s_cbranch_scc1 {lab}")
    E.label(lab + "_ok")


def put_flag(soff_sgpr):
    E("s_mov_b64 exec, 1")
    E("v_mov_b32 v10, 0")
    E(f"v_mov_b32 v11, s{S_TAG}")
    E(f"buffer_store_dword v11, v10, {sr(WS)}, s{soff_sgpr} offen sc0 sc1")
    E("s_mov_b64 exec, -1")


def wg_store(lab, cond, val_lines, off):
    cond()
    E(f"s_cbranch_scc1 {lab}")
    val_lines()
    E("s_mov_b64 exec, 1")
    E(f"v_mov_b32 v10, {off}")
    E(f"v_mov_b32 v11, s{S_T0}")
    E(f"buffer_store_dword v11, v10, {sr(DBG)}, 0 offen sc0 sc1")
    E("s_mov_b64 exec, -1")
    E.label(lab)


def hint(lab="A_nohint", word=0, early=None):
    E(f"s_lshr_b32 s{S_T0}, s2, 3")
    E(f"s_or_b32 s{S_T0}, s{S_T0}, s{S_WAVE}")
    E(f"s_cbranch_scc1 {lab}")
    if (O.hint_step if early is None else early) < 16:
        E(f"v_readfirstlane_b32 s{S_TAG}, v14")
        E("s_nop 3")
        E(f"s_cmp_lg_u32 s{S_TAG}, 0")
        E(f"s_cbranch_scc1 {lab}_t_ok")
        get_tag(lab + "_t")
    E(f"s_lshl_b32 s{S_T1}, s2, 7")
    E(f"s_add_u32 s{S_T1}, s{S_T1}, {WS_FS + 1024 * word:#x}")
    put_flag(S_T1)
    E.label(lab)


def wait_start(lab, word=0, tag=True):
    if tag:
        get_tag(lab + "_t", 16)
    E("v_mov_b32 v10, 0")
    E(f"s_and_b32 s{S_T0}, s2, 7")
    if O.hswap:
        E(f"s_xor_b32 s{S_T0}, s{S_T0}, {O.hswap}")
    E(f"s_lshl_b32 s{S_T0}, s{S_T0}, 7")
    E(f"s_add_u32 s{S_T0}, s{S_T0}, {WS_FS + 1024 * word:#x}")
    poll(lab, 10, f"s{S_T0}", False, 11, O.sl_s)


def dpp_max(regs):
    for ctl in ("row_shr:1", "row_shr:2", "row_shr:4", "row_shr:8",
                "row_bcast:15 row_mask:0xa", "row_bcast:31 row_mask:0xc"):
        E("s_nop 1")
        for r in regs:
            m = "" if "row_mask" in ctl else " row_mask:0xf"
            E(f"v_max_f32_dpp v{r}, v{r}, v{r} {ctl}{m} bank_mask:0xf")


A_XS, A_WS0, A_WSZ = 8192, 24576, 12288


def a_dma_x(u, vm):
    E(f"s_add_u32 m0, s{S_W1K}, {(u % 3) * A_XS}")
    E(f"s_add_u32 s{S_T0}, s{S_XB}, s{S_XK}")
    nt = "nt " if ((O.nt0 & 1) and u < 2) or (O.nt0 & 4) else ""
    E(f"buffer_load_dwordx4 v1, {sr(X)}, s{S_T0} offen {nt}lds")
    E(f"s_add_u32 s{S_XK}, s{S_XK}, 128")
    E(f"s_and_b32 s{S_XK}, s{S_XK}, 1023")
    vm.issue(("x", u))


def a_dma_w(s, vm, vwave):
    base = A_WS0 + (s % 4) * A_WSZ
    nt = "nt " if ((O.nt0 & 1) and s < 2) or (O.nt0 & 4) else ""
    E(f"s_add_u32 m0, s{S_W1K}, {base}")
    E(f"s_add_u32 s{S_T0}, s{S_WB}, s{S_WK}")
    E(f"buffer_load_dwordx4 v2, {sr(W1)}, s{S_T0} offen {nt}lds")
    vm.issue(("w", s))
    if vwave == "both":
        E(f"s_cbranch_vccz A_pw{s}")
        E(f"s_add_u32 m0, s{S_W1K}, {base + 3072}")
        E("s_nop 0")
        E(f"buffer_load_dwordx4 v2, {sr(W1)}, s{S_T0} offen offset:1024 {nt}lds")
        E.label(f"A_pw{s}")
    elif vwave:
        E(f"s_add_u32 m0, s{S_W1K}, {base + 3072}")
        E("s_nop 0")
        E(f"buffer_load_dwordx4 v2, {sr(W1)}, s{S_T0} offen offset:1024 {nt}lds")
        vm.issue(("w", s))
    E(f"s_add_u32 s{S_WK}, s{S_WK}, 98304")
    E(f"s_cmp_eq_u32 s{S_WK}, {16 * 98304}")
    E(f"s_cselect_b32 s{S_WK}, 0, s{S_WK}")


def a_prologue():
    E(f"s_load_dwordx2 s[{X}:{X+1}], s[0:1], 0")
    E(f"s_load_dwordx2 s[{W1}:{W1+1}], s[0:1], 8")
    E(f"s_load_dwordx2 s[{WS}:{WS+1}], s[0:1], 80")
    E(f"s_load_dwordx2 s[{DBG}:{DBG+1}], s[0:1], 72")
    E("v_lshrrev_b32 v8, 6, v0")
    E("v_lshrrev_b32 v9, 3, v0")
    E("v_lshrrev_b32 v10, 4, v0")
    E(f"v_readfirstlane_b32 s{S_WAVE}, v8")
    E("v_xor_b32 v11, v10, v0")
    E("v_and_b32 v11, 7, v11")
    E("v_lshlrev_b32 v11, 4, v11")
    E("v_lshl_add_u32 v1, v9, 10, v11")
    srd(X, 0x200000)
    srd(W1, 0x180000)
    E(f"s_lshr_b32 s{S_T0}, s2, 3")
    E(f"s_and_b32 s{S_T1}, s{S_T0}, 7")
    E(f"s_lshr_b32 s{S_T0}, s{S_T0}, 3")
    E(f"s_and_b32 s{S_A}, s2, 6")
    E(f"s_lshl_b32 s{S_A}, s{S_A}, 2")
    E(f"s_add_u32 s{S_A}, s{S_A}, s{S_T1}")
    if O.pflip:
        E(f"s_andn2_b32 s{S_B}, 1, s2")
    else:
        E(f"s_and_b32 s{S_B}, s2, 1")
    E(f"s_lshl_b32 s{S_B}, s{S_B}, 2")
    E(f"s_add_u32 s{S_B}, s{S_B}, s{S_T0}")
    E(f"s_lshl_b32 s{S_T0}, s{S_T0}, 1")
    E(f"s_add_u32 s{S_T0}, s{S_T0}, s{S_T1}")
    E(f"s_and_b32 s{S_T0}, s{S_T0}, 7")
    E(f"s_lshl_b32 s{S_XK}, s{S_T0}, 7")
    E(f"s_mul_i32 s{S_WK}, s{S_T0}, {2 * 98304}")
    E(f"s_lshl_b32 s{S_XB}, s{S_A}, 16")
    E(f"s_lshl_b32 s{S_WB}, s{S_B}, 7")
    E(f"s_lshl_b32 s{S_W1K}, s{S_WAVE}, 10")
    E("v_and_b32 v9, 31, v9")
    E("v_mul_u32_u24 v9, 0xc00, v9")
    E("v_and_b32 v10, 1, v10")
    E("v_lshlrev_b32 v10, 2, v10")
    E("v_xor_b32 v10, v10, v0")
    E("v_and_b32 v10, 7, v10")
    E("v_lshl_add_u32 v9, v10, 4, v9")
    E("v_lshrrev_b32 v10, 8, v0")
    E("v_lshl_add_u32 v2, v10, 10, v9")
    E("v_cmp_eq_u32 vcc, 1, v10")
    E(f"s_setprio {O.prio_a_qkv}")
    E("s_waitcnt lgkmcnt(0)")
    stamp(8)
    vm = VM()
    a_dma_x(0, vm)
    a_dma_w(0, vm, "both")
    a_dma_w(1, vm, "both")
    a_dma_x(1, vm)
    a_dma_w(2, vm, "both")
    a_dma_w(3, vm, "both")
    a_dma_x(2, vm)
    stamp(9)
    srd(WS, WS_SIZE)
    srd(DBG, 256)


def a_qkv(vwave):
    p = "AV" if vwave else "AQ"
    if O.touch:
        E(f"s_load_dwordx2 s[{WU}:{WU+1}], s[0:1], {40 if vwave else 32}")
        E(f"s_load_dwordx2 s[{WD}:{WD+1}], s[0:1], 48")
        E(f"s_load_dwordx2 s[{WO}:{WO+1}], s[0:1], 16")
        srd(WU, 512 * 3584); srd(WD, 1792 * 1024); srd(WO, 512 * 1024)
    vm = VM()
    n = 2 if vwave else 1
    for t in (("x", 0), ("w", 0), ("w", 1), ("x", 1), ("w", 2), ("w", 3), ("x", 2)):
        vm.issue(t, n if t[0] == "w" else 1)
    E("v_and_b32 v8, 31, v0")
    if vwave:
        E("v_and_b32 v9, 0x13, v8")
        E("v_lshlrev_b32 v10, 1, v8")
        E("v_and_b32 v10, 8, v10")
        E("v_or_b32 v9, v9, v10")
        E("v_lshrrev_b32 v10, 1, v8")
        E("v_and_b32 v10, 4, v10")
        E("v_or_b32 v8, v9, v10")
    E("v_lshrrev_b32 v9, 1, v8")
    E("v_and_b32 v9, 7, v9")
    E("v_bfe_u32 v10, v0, 5, 1")
    E("v_xor_b32 v9, v9, v10")
    E("v_lshlrev_b32 v9, 4, v9")
    E("v_lshl_add_u32 v9, v8, 7, v9")
    E("v_bfe_u32 v8, v0, 6, 1")
    E("v_lshl_add_u32 v3, v8, 12, v9")
    for ks in (1, 2, 3):
        E(f"v_xor_b32 v{3+ks}, {32*ks}, v3")
    E("v_bfe_u32 v8, v0, 2, 2")
    E("v_lshl_add_u32 v9, v10, 3, v8")
    E("v_lshlrev_b32 v9, 7, v9")
    E("v_bfe_u32 v10, v0, 7, 1")
    E("v_lshrrev_b32 v8, 1, v8")
    E("v_xor_b32 v8, v8, v10")
    E("v_lshl_add_u32 v9, v8, 6, v9")
    E("v_bfe_u32 v8, v0, 4, 1")
    E("v_lshl_add_u32 v9, v8, 5, v9")
    E("v_and_b32 v8, 3, v0")
    E("v_lshl_add_u32 v9, v8, 3, v9")
    E(f"v_add_u32 v7, {A_WS0}, v9")
    segs = (2,) if vwave else (0, 1)
    if O.touch_gu:
        E(f"s_lshr_b32 s{S_T0}, s2, 3")
        E(f"s_lshl_b32 s{S_T0}, s{S_T0}, 2")
        E(f"s_and_b32 s{S_T1}, s{S_WAVE}, 3")
        E(f"s_add_u32 s{S_T0}, s{S_T0}, s{S_T1}")
        E(f"s_mul_i32 s{S_T0}, s{S_T0}, {2 * 3584}")
        E(f"s_bfe_u32 s{S_T1}, s2, 0x10002")
        E(f"s_mul_i32 s{S_T1}, s{S_T1}, 1792")
        E(f"s_add_u32 s{S_T0}, s{S_T0}, s{S_T1}")
        E("v_bfe_u32 v8, v0, 4, 1")
        E("v_mul_u32_u24 v8, 3584, v8")
        E("v_and_b32 v9, 15, v0")
        E("v_lshl_add_u32 v8, v9, 7, v8")
        E(f"v_add_u32 v98, s{S_T0}, v8")

    def reads(s):
        b = 16 + 24 * (s & 1)
        L = []
        for kk in (0, 1):
            L.append(f"ds_read_b128 {vr(b+4*kk,4)}, v{3 + 2*(s&1) + kk} offset:{((s//2) % 3) * A_XS}")
            for si, sg in enumerate(segs):
                for q in (0, 1):
                    off = (s % 4) * A_WSZ + sg * 4096 + kk * 2048 + q * 512
                    L.append(f"ds_read_b64_tr_b16 {vr(b+8+8*si+4*kk+2*q,2)}, v7 offset:{off}")
        return L

    def mfmas(s):
        b = 16 + 24 * (s & 1)
        L = []
        for kk in (0, 1):
            for si, sg in enumerate(segs):
                acc = vr(64 + 16 * si, 16)
                c = "0" if (s == 0 and kk == 0) else acc
                xf, wf = vr(b + 4*kk, 4), vr(b + 8 + 8*si + 4*kk, 4)
                if vwave:
                    L.append(f"v_mfma_f32_32x32x16_bf16 {acc}, {xf}, {wf}, {c}")
                else:
                    L.append(f"v_mfma_f32_32x32x16_bf16 {acc}, {wf}, {xf}, {c}")
        return L

    if not vwave:
        def tagval():
            E(f"s_memrealtime s[{S_T0}:{S_T1}]")
            E("s_waitcnt lgkmcnt(0)")
            E(f"s_or_b32 s{S_T0}, s{S_T0}, 1")
        wg_store("A_notag", lambda: E(f"s_or_b32 s{S_T0}, s2, s{S_WAVE}"), tagval, "0")
    E(f"s_waitcnt vmcnt({vm.need(('x',0),('w',0))}) lgkmcnt(0)")
    E("s_barrier")
    stamp(1)
    for x in reads(0):
        E(x)
    for s in range(16):
        M = mfmas(s)
        if s < 15:
            E(f"s_waitcnt vmcnt({vm.need(('x',(s+1)//2),('w',s+1))}) lgkmcnt(0)")
            E("s_barrier")
            E(M.pop(0))
            R = reads(s + 1)
            per = 3
            while R or M:
                for x in R[:per]:
                    E(x)
                R = R[per:]
                if M:
                    E(M.pop(0))
            if s + 4 <= 15:
                a_dma_w(s + 4, vm, vwave)
            if s % 2 == 1 and (s + 1) // 2 + 2 <= 7:
                a_dma_x((s + 1) // 2 + 2, vm)
            if s == 1 and not vwave:
                E("v_mov_b32 v10, 0")
                E(f"buffer_load_dword v14, v10, {sr(DBG)}, 0 offen sc1")
                vm.issue("tag")
            if s == 12 and O.touch_gu:
                E("s_mov_b32 exec_hi, 0")
                E(f"buffer_load_dword v15, v98, {sr(WU)}, 0 offen")
                E("s_mov_b32 exec_hi, -1")
                vm.issue("t")
        else:
            E("s_waitcnt lgkmcnt(0)")
            for x in M:
                E(x)
        if s == O.hint_step and not vwave:
            hint()
        if s == O.hint1 and not vwave:
            hint("A_nohint1", 1, O.hint1)
        if s == O.hint_step and O.a_exit:
            E("s_endpgm")
    stamp(2)
    E(f"s_and_b32 s{S_T0}, s{S_WAVE}, 1")
    E(f"s_lshl_b32 s{S_T1}, s{S_A}, 1")
    E(f"s_add_u32 s{S_T0}, s{S_T0}, s{S_T1}")
    E(f"s_bfe_u32 s{S_T1}, s{S_WAVE}, 0x10001")
    E(f"s_lshl_b32 s{S_T2}, s{S_B}, 1")
    E(f"s_add_u32 s{S_T1}, s{S_T1}, s{S_T2}")
    E("v_and_b32 v8, 63, v0")
    if vwave:
        E("v_and_b32 v9, 15, v8")
        E("v_lshlrev_b32 v9, 4, v9")
        E("v_bfe_u32 v10, v8, 5, 1")
        E("v_lshl_add_u32 v9, v10, 8, v9")
        E("v_bfe_u32 v10, v8, 4, 1")
        E("v_lshl_add_u32 v9, v10, 17, v9")
        E(f"s_lshl_b32 s{S_T1}, s{S_T1}, 18")
        E(f"s_lshl_b32 s{S_T0}, s{S_T0}, 11")
        E(f"s_add_u32 s{S_T0}, s{S_T0}, s{S_T1}")
        E("s_nop 7")
        for i in range(8):
            E(f"v_cvt_pk_bf16_f32 v{16+i}, v{64+2*i}, v{65+2*i}")
        E(f"buffer_store_dwordx4 v[16:19], v9, {sr(WS)}, s{S_T0} offen offset:1024 sc0 sc1")
        E(f"buffer_store_dwordx4 v[20:23], v9, {sr(WS)}, s{S_T0} offen offset:1536 sc0 sc1")
    else:
        E("v_lshlrev_b32 v9, 4, v8")
        E(f"s_lshl_b32 s{S_T2}, s{S_T1}, 18")
        E(f"s_lshl_b32 s{S_T3}, s{S_T0}, 11")
        E(f"s_add_u32 s{S_T2}, s{S_T2}, s{S_T3}")
        E(f"s_lshr_b32 s{S_T3}, s{S_T2}, 1")
        E(f"s_add_u32 s{S_T3}, s{S_T3}, {WS_Q:#x}")
        E(f"s_add_u32 s{S_C}, s{S_T2}, 0x20000")
        E(f"s_add_u32 s{S_D}, s{S_T3}, 0x10000")
        E(f"s_mov_b32 s{S_CNT}, {QSCALE:#x}")
        E("s_nop 7")
        for i in range(8):
            E(f"v_cvt_pk_bf16_f32 v{16+i}, v{80+2*i}, v{81+2*i}")
        E(f"buffer_store_dwordx4 v[16:19], v9, {sr(WS)}, s{S_T2} offen sc0 sc1")
        E(f"buffer_store_dwordx4 v[20:23], v9, {sr(WS)}, s{S_C} offen sc0 sc1")
        for i in range(16):
            E(f"v_mul_f32 v{64+i}, s{S_CNT}, v{64+i}")
        for i in range(8):
            E(f"v_cvt_pk_bf16_f32 v{24+i}, v{64+2*i}, v{65+2*i}")
        E(f"buffer_store_dwordx4 v[24:27], v9, {sr(WS)}, s{S_T3} offen sc0 sc1")
        E(f"buffer_store_dwordx4 v[28:31], v9, {sr(WS)}, s{S_D} offen sc0 sc1")
        for g in range(4):
            E(f"v_mul_f32 v{32+g}, v{64+8*g}, v{64+8*g}")
        for i in range(1, 8):
            for g in range(4):
                E(f"v_fmac_f32 v{32+g}, v{64+8*g+i}, v{64+8*g+i}")
        E("s_nop 1")
        E("v_permlane32_swap_b32 v32, v33")
        E("v_permlane32_swap_b32 v34, v35")
        E("s_nop 1")
        E("v_add_f32 v32, v32, v33")
        E("v_add_f32 v33, v34, v35")
        dpp_max((32, 33))
        E(f"s_lshl_b32 s{S_T0}, s{S_B}, 11")
        E(f"s_lshl_b32 s{S_T1}, s{S_A}, 6")
        E(f"s_add_u32 s{S_T0}, s{S_T0}, s{S_T1}")
        E(f"s_lshl_b32 s{S_T1}, s{S_WAVE}, 3")
        E(f"s_add_u32 s{S_T0}, s{S_T0}, s{S_T1}")
        E(f"s_add_u32 s{S_T0}, s{S_T0}, {WS_FKV + 16:#x}")
        E("v_mov_b32 v10, 0")
        E("s_brev_b64 exec, 1")
        E(f"buffer_store_dwordx2 v[32:33], v10, {sr(WS)}, s{S_T0} offen sc0 sc1")
        E("s_mov_b64 exec, -1")


S0, S1, OA, OB, QX, QY, K0, K1, V0, V1 = 16, 32, 48, 64, 80, 84, 88, 92, 96, 104
IDX, VK, VV, VD, VKB, VVB, VT, VL = 112, 113, 114, 115, 116, 117, 118, 119
KVS = 16384


def a_kv_dma():
    E(f"s_add_u32 m0, s{S_XK}, s{S_W1K}")
    E(f"s_add_u32 s{S_T0}, s{S_WB}, s{S_WK}")
    E(f"buffer_load_dwordx4 v{VD}, {sr(WS)}, s{S_T0} offen sc1 lds")
    E(f"buffer_load_dwordx4 v{VD}, {sr(WS)}, s{S_T0} offen offset:1024 sc1 lds")
    E(f"s_add_u32 s{S_WK}, s{S_WK}, {KVS}")
    E(f"s_and_b32 s{S_WK}, s{S_WK}, {8*KVS-1:#x}")
    E(f"s_add_u32 s{S_XK}, s{S_XK}, {KVS}")
    E(f"s_cmp_eq_u32 s{S_XK}, {5*KVS}")
    E(f"s_cselect_b32 s{S_XK}, 0, s{S_XK}")


def a_attention():
    E(f"s_bfe_u32 s{S_C}, s2, 0x20001")
    if O.pflip:
        E(f"s_and_b32 s{S_T0}, s2, 1")
    else:
        E(f"s_andn2_b32 s{S_T0}, 1, s2")
    E(f"s_lshl_b32 s{S_T0}, s{S_T0}, 2")
    E(f"s_add_u32 s{S_C}, s{S_C}, s{S_T0}")
    E(f"s_lshr_b32 s{S_T0}, s2, 6")
    if O.amap:
        E(f"s_and_b32 s{S_C}, s2, 6")
        E(f"s_bfe_u32 s{S_T1}, s2, 0x10005")
        E(f"s_add_u32 s{S_C}, s{S_C}, s{S_T1}")
        E(f"s_xor_b32 s{S_C}, s{S_C}, 4")
    E(f"s_lshl_b32 s{S_D}, s{S_C}, 2")
    E(f"s_add_u32 s{S_D}, s{S_D}, s{S_T0}")
    E(f"s_lshl_b32 s{S_T0}, s{S_B}, 11")
    E(f"s_lshl_b32 s{S_T1}, s{S_A}, 6")
    E(f"s_add_u32 s{S_T0}, s{S_T0}, s{S_T1}")
    E(f"s_add_u32 s{S_XB}, s{S_T0}, {WS_FKV:#x}")
    if O.amap:
        E(f"s_bfe_u32 s{S_A}, s2, 0x20003")
        E(f"s_and_b32 s{S_T0}, s2, 1")
        E(f"s_lshl_b32 s{S_T0}, s{S_T0}, 2")
        E(f"s_add_u32 s{S_A}, s{S_A}, s{S_T0}")
    else:
        E(f"s_bfe_u32 s{S_A}, s2, 0x30003")
    E("v_and_b32 v8, 63, v0")
    E(f"v_lshlrev_b32 v{VL}, 4, v8")
    E(f"s_lshl_b32 s{S_W1K}, s{S_WAVE}, 11")
    E(f"v_add_u32 v{VD}, s{S_W1K}, v{VL}")
    E(f"s_lshl_b32 s{S_WB}, s{S_D}, 17")
    if O.kv_rot:
        E(f"s_lshl_b32 s{S_WK}, s{S_A}, 14")
    else:
        E(f"s_mov_b32 s{S_WK}, 0")
    E(f"s_mov_b32 s{S_XK}, 0")
    E(f"s_lshl_b32 s{S_T1}, s{S_A}, 3")
    E(f"s_and_b32 s{S_T2}, s{S_WAVE}, 3")
    E(f"s_lshl_b32 s{S_T2}, s{S_T2}, 1")
    E(f"s_add_u32 s{S_B}, s{S_T1}, s{S_T2}")
    E(f"s_lshl_b32 s{S_T1}, s{S_B}, 10")
    E(f"s_lshl_b32 s{S_T2}, s{S_D}, 16")
    E(f"s_add_u32 s{S_T1}, s{S_T1}, s{S_T2}")
    E(f"s_add_u32 s4, s{S_T1}, {WS_Q:#x}")
    E(f"s_lshr_b32 s{S_T3}, s{S_WAVE}, 2")
    E(f"s_add_u32 s{S_T3}, s{S_B}, s{S_T3}")
    E(f"s_mul_i32 s5, s{S_T3}, 144")
    E(f"s_add_u32 s5, s5, s{S_D}")
    E("s_lshl_b32 s5, s5, 10")
    E(f"s_add_u32 s5, s5, {WS_HO + 112*1024:#x}")
    E(f"s_lshl_b32 s6, s{S_T3}, 11")
    E(f"s_lshl_b32 s{S_T2}, s{S_D}, 6")
    E(f"s_add_u32 s6, s6, s{S_T2}")
    E(f"s_add_u32 s6, s6, {WS_FO:#x}")
    E(f"s_add_u32 s7, s6, {WS_FO2 - WS_FO:#x}")
    E(f"s_lshr_b32 s{S_T0}, s{S_WAVE}, 2")
    E(f"s_lshl_b32 s{S_T0}, s{S_T0}, 11")
    E(f"v_add_u32 v{VKB}, s{S_T0}, v{VL}")
    E("v_and_b32 v9, 15, v8")
    E("v_lshlrev_b32 v9, 4, v9")
    E("v_bfe_u32 v10, v8, 5, 1")
    E("v_lshl_add_u32 v9, v10, 8, v9")
    E(f"s_add_u32 s{S_T0}, s{S_T0}, 1024")
    E(f"v_add_u32 v{VVB}, s{S_T0}, v9")
    E(f"v_mov_b32 v{VK}, v{VKB}")
    E(f"v_mov_b32 v{VV}, v{VVB}")
    E(f"v_mov_b32 v{IDX}, 0xdddddddd")
    E("v_and_b32 v9, 27, v8")
    E("v_cmp_eq_u32 vcc, 16, v9")
    E("v_mov_b32 v9, 0x3f803f80")
    E("s_nop 0")
    E(f"v_cndmask_b32 v{V0}, 0, v9, vcc")
    for i in range(1, 16):
        E(f"v_mov_b32 v{V0+i}, v{V0}")
    if O.touch:
        E(f"s_lshr_b32 s{S_T0}, s2, 3")
        E(f"s_lshl_b32 s{S_T0}, s{S_T0}, 3")
        E(f"s_add_u32 s{S_T0}, s{S_T0}, s{S_WAVE}")
        E(f"s_lshl_b32 s{S_T0}, s{S_T0}, 11")
        E(f"v_lshlrev_b32 v{VT}, 7, v8")
        E(f"v_add_u32 v{VT}, s{S_T0}, v{VT}")
    E(f"s_mov_b32 s{S_VM}, 0xffff")
    E(f"s_mov_b32 s{S_VM+1}, 0xffff")
    E(f"s_mov_b32 s{S_SLOT}, 0")
    E(f"s_mov_b32 s{S_CNT}, 0")
    for i in range(32):
        E(f"v_mov_b32 v{OA+i}, 0")
    for i in range(8, 16):
        E(f"v_mov_b32 v{S1+i}, 0")
    E("s_waitcnt vmcnt(0)")
    E("s_barrier")
    stamp(3)
    E(f"s_cmp_lg_u32 s{S_WAVE}, 0")
    E("s_cbranch_scc1 A_wait1")
    E(f"v_readfirstlane_b32 s{S_TAG}, v14")
    E("s_nop 3")
    E(f"s_cmp_lg_u32 s{S_TAG}, 0")
    E("s_cbranch_scc1 A_tag_ok")
    get_tag("A_tag")
    put_flag(S_XB)
    E("v_and_b32 v10, 31, v0")
    E("v_lshlrev_b32 v10, 6, v10")
    E(f"s_bfe_u32 s{S_T1}, s{S_D}, 0x10001")
    E(f"s_lshl_b32 s{S_T1}, s{S_T1}, 4")
    E(f"s_add_u32 s{S_T1}, s{S_T1}, 16")
    E("v_bfe_u32 v11, v0, 5, 1")
    E(f"v_mul_u32_u24 v11, s{S_T1}, v11")
    E("v_add_u32 v10, v10, v11")
    E(f"s_lshl_b32 s{S_T0}, s{S_C}, 11")
    E(f"s_add_u32 s{S_T0}, s{S_T0}, {WS_FKV:#x}")
    E(f"s_mov_b32 s{S_SPIN}, 0x40000")
    E.label("A_pollkv")
    E(f"buffer_load_dwordx4 v[4:7], v10, {sr(WS)}, s{S_T0} offen sc1")
    E("s_waitcnt vmcnt(0)")
    E(f"v_cmp_ne_u32 vcc, s{S_TAG}, v4")
    E("s_nop 4")
    E("s_cmp_eq_u32 vcc_lo, 0")
    E("s_cbranch_scc1 A_pollkv_ok")
    E(f"s_sleep {O.sl_kv}")
    E(f"s_sub_u32 s{S_SPIN}, s{S_SPIN}, 1")
    E(f"s_cmp_lg_u32 s{S_SPIN}, 0")
    E("s_cbranch_scc1 A_pollkv")
    E.label("A_pollkv_ok")
    E("s_barrier")
    E("s_branch A_go")
    E.label("A_wait1")
    E("s_barrier")
    E.label("A_go")
    stamp(4)
    a_kv_dma()
    E(f"buffer_load_dwordx4 {vr(QX,4)}, v{VL}, {sr(WS)}, s4 offen sc1")
    E(f"buffer_load_dwordx4 {vr(QY,4)}, v{VL}, {sr(WS)}, s4 offen offset:1024 sc1")
    for c in range(1, O.kv_first):
        a_kv_dma()
    E(f"s_cmp_lg_u32 s{S_WAVE}, 0")
    E("s_cbranch_scc1 A_nored")
    E("v_max_u32 v4, v4, v6")
    E("v_max_u32 v5, v5, v7")
    for ctl in ("row_shr:1", "row_shr:2", "row_shr:4", "row_shr:8", "row_bcast:15 row_mask:0xa"):
        E("s_nop 1")
        for r in (4, 5):
            m = "" if "row_mask" in ctl else " row_mask:0xf"
            E(f"v_max_u32_dpp v{r}, v{r}, v{r} {ctl}{m} bank_mask:0xf")
    E("s_nop 0")
    E("v_mul_f32 v4, v4, v5")
    E(f"v_mov_b32 v5, s{S_TAG}")
    E(f"v_mov_b32 v6, {5 * KVS - 8}")
    E("s_brev_b64 exec, 1")
    E("ds_write_b64 v6, v[4:5]")
    E("s_mov_b64 exec, -1")
    E("s_waitcnt lgkmcnt(0)")
    E.label("A_nored")
    E(f"s_setprio {O.prio_a_att}")
    E(f"s_waitcnt vmcnt({2*O.kv_first - (4 if O.pair and not O.kv_wait1 else 2)})")
    E("s_barrier")
    stamp(5)

    def vreads(dst, off):
        E(f"s_mov_b64 exec, s[{S_VM}:{S_VM+1}]")
        E(f"ds_read_b128 {vr(dst,4)}, v{VV} offset:{off}")
        E(f"ds_read_b128 {vr(dst+4,4)}, v{VV} offset:{off+512}")
        E("s_mov_b64 exec, -1")

    E(f"ds_read_b128 {vr(K0,4)}, v{VK}")
    vreads(V0, 0)
    E(f"v_mov_b32 v6, {5 * KVS - 8}")
    E("ds_read_b64 v[4:5], v6")
    if O.early_o:
        for i in range(4):
            E(f"v_mov_b32 v{120+i}, -1")
        E(f"buffer_store_dwordx4 v[120:123], v{VL}, {sr(WS)}, s5 offen sc0 sc1")
    E("s_waitcnt lgkmcnt(0)")
    E(f"v_readfirstlane_b32 s{S_T0}, v4")
    E(f"v_readfirstlane_b32 s{S_TAG}, v5")
    E(f"v_mfma_f32_32x32x16_bf16 {vr(S0,16)}, {vr(K0,4)}, {vr(QX,4)}, 0")
    E("s_nop 3")
    E(f"s_cmp_gt_u32 s{S_T0}, {THR2:#x}")
    if O.force_slow:
        E("s_branch A_slow")
    E("s_cbranch_scc1 A_slow")
    E("s_nop 7")

    def chunk_turn():
        E("s_waitcnt vmcnt(0)")
        E("s_barrier")
        E(f"s_cmp_gt_u32 s{S_CNT}, {7 - O.kv_first}")
        lab = f"A_nf{len(E.L)}"
        E(f"s_cbranch_scc1 {lab}")
        a_kv_dma()
        E.label(lab)
        if O.touch:
            E(f"s_sub_u32 s{S_T0}, s{S_CNT}, {O.wd_t0}")
            E(f"s_lshl_b32 s{S_T0}, s{S_T0}, 19")
            E("s_mov_b64 exec, 0xffff")
            E(f"s_cmp_gt_u32 s{S_T0}, {3 << 19}")
            E(f"s_cbranch_scc1 {lab}t")
            E(f"buffer_load_dword v15, v{VT}, {sr(WD)}, s{S_T0} offen")
            E.label(lab + "t")
            E(f"s_cmp_lg_u32 s{S_CNT}, {O.wo_t}")
            E(f"s_cbranch_scc1 {lab}u")
            E(f"buffer_load_dword v15, v{VT}, {sr(WO)}, 0 offen")
            E.label(lab + "u")
            E("s_mov_b64 exec, -1")
        E(f"s_add_u32 s{S_SLOT}, s{S_SLOT}, {KVS}")
        E(f"s_cmp_eq_u32 s{S_SLOT}, {5*KVS}")
        E(f"s_cselect_b32 s{S_SLOT}, 0, s{S_SLOT}")
        E(f"v_add_u32 v{VK}, s{S_SLOT}, v{VKB}")
        E(f"v_add_u32 v{VV}, s{S_SLOT}, v{VVB}")

    NT = 16 if O.pair else 8
    RF = {0: (3, 5, 7), 1: (3, 7, 11), 2: (5, 9, 13)}[O.rf_late]

    def next_slot():
        E(f"s_add_u32 s{S_SLOT}, s{S_SLOT}, {KVS}")
        E(f"s_cmp_eq_u32 s{S_SLOT}, {5*KVS}")
        E(f"s_cselect_b32 s{S_SLOT}, 0, s{S_SLOT}")
        E(f"v_add_u32 v{VK}, s{S_SLOT}, v{VKB}")
        E(f"v_add_u32 v{VV}, s{S_SLOT}, v{VVB}")

    def refill(lab, lo, hi):
        if lo == hi:
            E(f"s_cmp_lg_u32 s{S_CNT}, {lo}")
        else:
            E(f"s_cmp_gt_u32 s{S_CNT}, {hi}")
        E(f"s_cbranch_scc1 {lab}")
        a_kv_dma()
        E.label(lab)

    if O.bar_diag:
        E("s_mov_b32 s86, 0"); E("s_mov_b32 s88, 0")
    E.raw(".p2align 6")
    E.label("A_loop")
    ga, gb, gc = O.ga, O.ga + O.gb, O.ga + O.gb + O.gc
    for t in range(NT):
        blk, kt = t & 1, (t >> 1) & 3
        Sc, Sn = (S0, S1) if blk == 0 else (S1, S0)
        Oc, On = (OA, OB) if blk == 0 else (OB, OA)
        Vk, Vo = (V0, V1) if kt & 1 == 0 else (V1, V0)
        Kk, Ko = (K0, K1) if kt & 1 == 0 else (K1, K0)
        if not O.pair:
            if t == 6:
                chunk_turn()
        elif t == 6:
            if O.kv_wait1:
                E(f"s_cmp_lg_u32 s{S_CNT}, 0")
                E("s_cbranch_scc1 A_nb")
                E(f"s_waitcnt vmcnt({2 * len([x for x in RF[:5 - O.kv_first] if x < 6])})")
                E("s_barrier")
                E.label("A_nb")
            next_slot()
        elif t == 14:
            if O.bar_diag:
                E("s_memtime s[68:69]"); E("s_waitcnt lgkmcnt(0)"); E("s_sub_u32 s86, s86, s68")
            if O.kv_cnt:
                E(f"s_cmp_eq_u32 s{S_CNT}, 0")
                E("s_cbranch_scc1 A_w2")
                E("s_waitcnt vmcnt(0)")
                E.label("A_w2")
                E("s_waitcnt vmcnt(2)")
            else:
                E("s_waitcnt vmcnt(0)")
            if O.bar_diag:
                E("s_memtime s[68:69]"); E("s_waitcnt lgkmcnt(0)"); E("s_add_u32 s86, s86, s68"); E("s_sub_u32 s88, s88, s68")
            E("s_barrier")
            if O.bar_diag:
                E("s_memtime s[68:69]"); E("s_waitcnt lgkmcnt(0)"); E("s_add_u32 s88, s88, s68")
            next_slot()
        ex = lambda a, b: [E(f"v_exp_f32 v{Sc+i}, v{Sc+i}") for i in range(a, b)]
        ph = ((t + 2) % NT) * 8 // NT
        TAB = {5: [3]*6 + [2]*5 + [1]*3 + [0]*2, 6: [3]*2 + [2]*4 + [1]*5 + [0]*5, 7: [3]*5 + [2]*5 + [1]*4 + [0]*2}
        prf = lambda ph: {0: O.prio_a_att, 4: 3 - ph // 2, 2: O.prio_a_att + (1 if ph < 4 else 0), 3: O.prio_a_att + [2, 2, 2, 1, 1, 1, 0, 0][ph]}[O.bal]
        if O.bal >= 5:
            pr, prev = TAB[O.bal][(t + 2) % NT], TAB[O.bal][(t + 1) % NT]
        else:
            pr, prev = prf(ph), prf(((t + 1) % NT) * 8 // NT)
        if O.bal and not O.toggle and pr != prev:
            E(f"s_setprio {pr}")

        def mm(x):
            if O.toggle: E(f"s_setprio {O.toggle}")
            E(x)
            if O.toggle: E(f"s_setprio {pr}")
        ex(0, ga)
        mm(f"v_smfmac_f32_32x32x32_bf16 {vr(On,16)}, {vr((Vo if blk == 0 else Vk) + 4,4)}, {vr(Sn+8,8)}, v{IDX}")
        if blk == 0:
            off = ((kt + 1) % 4) * 4096
            E(f"ds_read_b128 {vr(Ko,4)}, v{VK} offset:{off}")
            vreads(Vo, off)
        ex(ga, gb)
        if blk == 1:
            E("s_waitcnt lgkmcnt(0)")
        mm(f"v_mfma_f32_32x32x16_bf16 {vr(Sn,16)}, {vr(Kk if blk == 0 else Ko,4)}, {vr(QY if blk == 0 else QX,4)}, 0")
        ex(gb, gc)
        mm(f"v_smfmac_f32_32x32x32_bf16 {vr(Oc,16)}, {vr(Vk,4)}, {vr(Sc,8)}, v{IDX}")
        if O.pair and t == 15:
            refill("A_rf0", 0, 1)
        if O.pair and t == 1:
            refill("A_rf1", 2, 2)
        if O.pair and O.kv_first < 5 and t in RF[:5 - O.kv_first]:
            refill(f"A_rf{t}", 0, 0)
        ex(gc, 16)
    E(f"s_add_u32 s{S_CNT}, s{S_CNT}, 1")
    E(f"s_cmp_lt_u32 s{S_CNT}, {O.att_iters * 8 // NT}")
    E("s_cbranch_scc1 A_loop")
    E("s_nop 1")
    E(f"v_smfmac_f32_32x32x32_bf16 {vr(OB,16)}, {vr(V1+4,4)}, {vr(S1+8,8)}, v{IDX}")
    E.label("A_fin")
    stamp(6)
    E("s_setprio 3")
    E(f"s_lshr_b32 s{S_T3}, s{S_WAVE}, 2")
    E(f"s_lshl_b32 s{S_T1}, s{S_WAVE}, 12")
    E(f"s_xor_b32 s{S_T2}, s{S_T1}, 16384")
    E(f"v_add_u32 v10, s{S_T1}, v{VL}")
    E(f"v_add_u32 v11, s{S_T2}, v{VL}")
    E("s_nop 5")
    if O.x_noex:
        E("s_branch A_noex")
    E(f"s_cmp_lg_u32 s{S_T3}, 0")
    E("s_cbranch_scc1 A_hi")
    for i in range(3):
        E(f"ds_write_b128 v10, {vr(OB+4*i,4)} offset:{1024*i}")
    E("s_branch A_x")
    E.label("A_hi")
    for i in range(3):
        E(f"ds_write_b128 v10, {vr(OA+4*i,4)} offset:{1024*i}")
    E("s_nop 1")
    for i in range(9):
        E(f"v_mov_b32 v{OA+i}, v{OB+i}")
    E.label("A_x")
    E("s_waitcnt lgkmcnt(0)")
    E("s_barrier")
    E(f"ds_read_b128 {vr(S0+8,4)}, v11 offset:2048")
    E(f"ds_read_b128 {vr(S0,4)}, v11")
    E(f"ds_read_b128 {vr(S0+4,4)}, v11 offset:1024")
    E("s_waitcnt lgkmcnt(2)")
    E.label("A_noex")
    E(f"v_add_f32 v12, v{OA+8}, v{S0+8}")
    E("v_rcp_f32 v12, v12")
    E("s_waitcnt lgkmcnt(0)")
    for i in range(8):
        E(f"v_add_f32 v{OA+i}, v{OA+i}, v{S0+i}")
    for i in range(8):
        E(f"v_mul_f32 v{OA+i}, v12, v{OA+i}")
    for i in range(4):
        E(f"v_cvt_pk_bf16_f32 v{S1+i}, v{OA+2*i}, v{OA+2*i+1}")
    E(f"buffer_store_dwordx4 {vr(S1,4)}, v{VL}, {sr(WS)}, s5 offen sc0 sc1")
    if O.early_o:
        put_flag(6)
        stamp(7)
        E("s_waitcnt vmcnt(0)")
        put_flag(7)
    else:
        E("s_waitcnt vmcnt(0)")
        put_flag(6)
        stamp(7)
    flush_stamps(range(10), "A_st")
    E("s_endpgm")

    E.label("A_slow")
    MX, MY, T, AL = 4, 5, 6, 7
    E(f"v_mov_b32 v{MX}, 0xff7fffff")
    E(f"v_mov_b32 v{MY}, 0xff7fffff")
    E.label("A_sloop")
    E(f"s_mov_b32 s{S_T3}, 0")
    E.label("A_stile")
    E(f"ds_read_b128 {vr(K0,4)}, v{VK}")
    vreads(V0, 0)
    E(f"v_add_u32 v{VK}, 4096, v{VK}")
    E(f"v_add_u32 v{VV}, 4096, v{VV}")
    E("s_waitcnt lgkmcnt(0)")
    for (M, Q, Oc) in ((MX, QX, OA), (MY, QY, OB)):
        E(f"v_mfma_f32_32x32x16_bf16 {vr(S0,16)}, {vr(K0,4)}, {vr(Q,4)}, 0")
        E("s_nop 15")
        E(f"v_max3_f32 v{T}, v{S0}, v{S0+1}, v{M}")
        for i in range(1, 8):
            E(f"v_max3_f32 v{T}, v{S0+2*i}, v{S0+2*i+1}, v{T}")
        E(f"v_mov_b32 v{AL}, v{T}")
        E("s_nop 1")
        E(f"v_permlane32_swap_b32 v{T}, v{AL}")
        E("s_nop 1")
        E(f"v_max_f32 v{T}, v{T}, v{AL}")
        E(f"v_sub_f32 v{AL}, v{M}, v{T}")
        E(f"v_exp_f32 v{AL}, v{AL}")
        E(f"v_mov_b32 v{M}, v{T}")
        for i in range(16):
            E(f"v_sub_f32 v{S0+i}, v{S0+i}, v{T}")
        for i in range(16):
            E(f"v_exp_f32 v{S0+i}, v{S0+i}")
        for i in range(9):
            E(f"v_mul_f32 v{Oc+i}, v{AL}, v{Oc+i}")
        E("s_nop 1")
        E(f"v_smfmac_f32_32x32x32_bf16 {vr(Oc,16)}, {vr(V0,4)}, {vr(S0,8)}, v{IDX}")
        E(f"v_smfmac_f32_32x32x32_bf16 {vr(Oc,16)}, {vr(V0+4,4)}, {vr(S0+8,8)}, v{IDX}")
    E(f"s_add_u32 s{S_T3}, s{S_T3}, 1")
    E(f"s_cmp_lt_u32 s{S_T3}, 4")
    E("s_cbranch_scc1 A_stile")
    chunk_turn()
    E(f"s_add_u32 s{S_CNT}, s{S_CNT}, 1")
    E(f"s_cmp_lt_u32 s{S_CNT}, 8")
    E("s_cbranch_scc1 A_sloop")
    E(f"s_lshl_b32 s{S_T1}, s{S_WAVE}, 10")
    E(f"s_add_u32 s{S_T1}, s{S_T1}, 65536")
    E(f"s_xor_b32 s{S_T2}, s{S_T1}, 4096")
    E(f"v_add_u32 v10, s{S_T1}, v{VL}")
    E(f"v_add_u32 v11, s{S_T2}, v{VL}")
    E(f"ds_write_b64 v10, v[{MX}:{MY}]")
    E("s_waitcnt lgkmcnt(0)")
    E("s_barrier")
    E(f"ds_read_b64 v[{T}:{AL}], v11")
    E("s_waitcnt lgkmcnt(0)")
    for (M, P, Oc) in ((MX, T, OA), (MY, AL, OB)):
        E(f"v_max_f32 v{P}, v{P}, v{M}")
        E(f"v_sub_f32 v{P}, v{M}, v{P}")
        E(f"v_exp_f32 v{P}, v{P}")
        E("s_nop 0")
        for i in range(9):
            E(f"v_mul_f32 v{Oc+i}, v{P}, v{Oc+i}")
    E("s_branch A_fin")


F_XS, F_WS0, F_WSZ = 16384, 32768, 16384
WROW = 3584


def f_dma_x(u, vm):
    E(f"s_add_u32 m0, s{S_W1K}, {(u % 2) * F_XS}")
    E(f"s_add_u32 s{S_T0}, s{S_XB}, s{S_XK}")
    E(f"buffer_load_dwordx4 v1, {sr(X)}, s{S_T0} offen lds")
    E(f"s_add_u32 m0, s{S_W1K}, {(u % 2) * F_XS + 8192}")
    E(f"s_add_u32 s{S_T0}, s{S_T0}, 0x10000")
    E(f"buffer_load_dwordx4 v1, {sr(X)}, s{S_T0} offen lds")
    E(f"s_add_u32 s{S_XK}, s{S_XK}, 128")
    E(f"s_and_b32 s{S_XK}, s{S_XK}, 1023")
    vm.issue(("x", u), 2)


def f_dma_w(s, vm):
    base = F_WS0 + (s % 3) * F_WSZ
    E(f"s_add_u32 m0, s{S_W1K}, {base}")
    E("s_nop 0")
    E(f"buffer_load_dwordx4 v2, {sr(W1)}, s{S_WK} offen lds")
    E(f"s_add_u32 m0, s{S_W1K}, {base + 8192}")
    E("s_nop 0")
    E(f"buffer_load_dwordx4 v3, {sr(WU)}, s{S_WK} offen lds")
    E(f"s_add_u32 s{S_WK}, s{S_WK}, {32 * WROW}")
    E(f"s_cmp_eq_u32 s{S_WK}, {512 * WROW}")
    E(f"s_cselect_b32 s{S_WK}, 0, s{S_WK}")
    vm.issue(("w", s), 2)


def f_prologue():
    E(f"s_cmp_ge_u32 s2, {256 if O.no_f else 512}")
    E("s_cbranch_scc1 L_end")
    if O.diag_span:
        E("s_memrealtime s[92:93]")
        E("s_waitcnt lgkmcnt(0)")
    stamp(0)
    E(f"s_load_dwordx2 s[{X}:{X+1}], s[0:1], 0")
    E(f"s_load_dwordx2 s[{W1}:{W1+1}], s[0:1], 32")
    E(f"s_load_dwordx2 s[{WU}:{WU+1}], s[0:1], 40")
    E(f"s_load_dwordx2 s[{WS}:{WS+1}], s[0:1], 80")
    E(f"s_load_dwordx2 s[{DBG}:{DBG+1}], s[0:1], 72")
    E(f"s_load_dwordx2 s[{WD}:{WD+1}], s[0:1], 48")
    E(f"s_load_dwordx2 s[{WO}:{WO+1}], s[0:1], 16")
    E(f"s_load_dwordx2 s[{OUT}:{OUT+1}], s[0:1], 64")
    E(f"s_load_dwordx2 s[{GW}:{GW+1}], s[0:1], 56")
    E("v_lshrrev_b32 v8, 6, v0")
    E(f"s_bfe_u32 s{S_C}, s2, 0x50003")
    E(f"v_readfirstlane_b32 s{S_WAVE}, v8")
    E("s_getpc_b64 s[4:5]")
    E.label("F_pc")
    E(f"s_add_u32 s4, s4, CODE_START - F_pc")
    E("s_addc_u32 s5, s5, -1")
    E("s_mov_b32 s6, CODE_END - CODE_START")
    E("s_mov_b32 s7, 0x20000")
    E(f"s_lshl_b32 s{S_T0}, s{S_C}, 10")
    E(f"s_lshl_b32 s{S_T1}, s{S_WAVE}, 7")
    E(f"s_add_u32 s{S_T0}, s{S_T0}, s{S_T1}")
    E("v_mov_b32 v9, 0")
    E("s_mov_b64 exec, 1")
    E(f"buffer_load_dword v120, v9, s[4:7], s{S_T0} offen")
    E("s_mov_b64 exec, -1")
    E("s_branch F_main")


L16, VB_, VW_, RB, RW, RB2, RW2, RWO, HT, GV, OUTA, EX0, EX1, RO, PFH, PFO = range(48, 64)
S_RT, S_DL, S_DB, S_HT, S_G, S_OL, S_OS, S_OUT, S_PH, S_PO, S_H0, S_H1, S_FL = range(70, 83) if False else (8, 9, 10, 11, 67, 96, 97, 98, 99, 100, 101, 63, 62)


def g2_setup():
    E(f"s_and_b32 s{S_RT}, s2, 7")
    if O.rswap:
        E(f"s_xor_b32 s{S_RT}, s{S_RT}, {O.rswap}")
    if O.rperm == 1:
        E(f"s_add_u32 s{S_T0}, s2, 1")
        E(f"s_and_b32 s{S_T0}, s{S_T0}, 3")
        E(f"s_lshl_b32 s{S_T0}, s{S_T0}, 1")
        E(f"s_lshr_b32 s{S_RT}, s{S_RT}, 2")
        E(f"s_add_u32 s{S_RT}, s{S_RT}, s{S_T0}")
    if O.rperm == 2:
        tab = [4, 0, 6, 2, 5, 1, 7, 3]
        word = sum(v << (4 * i) for i, v in enumerate(tab))
        E(f"s_lshl_b32 s{S_T0}, s{S_RT}, 2")
        E(f"s_lshr_b32 s{S_RT}, {word:#x}, s{S_T0}")
        E(f"s_and_b32 s{S_RT}, s{S_RT}, 7")
    E(f"s_lshl_b32 s{S_RT}, s{S_RT}, 2")
    E(f"s_and_b32 s{S_T1}, s{S_C}, 3")
    E(f"s_add_u32 s{S_RT}, s{S_RT}, s{S_T1}")
    E(f"s_lshr_b32 s{S_B}, s{S_C}, 2")
    E(f"s_mul_i32 s{S_DB}, s{S_RT}, {288 * 1024}")
    E(f"s_add_u32 s{S_DB}, s{S_DB}, {WS_HO:#x}")
    E(f"v_and_b32 v{L16}, 63, v0")
    E(f"v_lshlrev_b32 v{L16}, 4, v{L16}")
    E(f"s_and_b32 s{S_T0}, s{S_WAVE}, 1")
    E(f"s_lshr_b32 s{S_T2}, s{S_WAVE}, 1")
    E(f"s_mul_i32 s{S_T1}, s{S_T0}, 144")
    E(f"s_add_u32 s{S_T1}, s{S_T1}, s{S_T2}")
    E(f"s_lshl_b32 s{S_T1}, s{S_T1}, 10")
    E(f"v_add_u32 v{VB_}, s{S_T1}, v{L16}")
    E(f"s_lshl_b32 s{S_T1}, s{S_T0}, 2")
    E(f"s_add_u32 s{S_T1}, s{S_T1}, s{S_T2}")
    E(f"s_lshl_b32 s{S_DL}, s{S_T1}, 10")
    E("v_bfe_u32 v12, v0, 4, 1")
    E("v_lshlrev_b32 v13, 2, v12")
    E("v_xor_b32 v13, v13, v0")
    E("v_and_b32 v13, 7, v13")
    E("v_lshlrev_b32 v13, 4, v13")
    E("v_lshl_add_u32 v13, v9, 10, v13")
    E(f"s_lshl_b32 s{S_T1}, s{S_B}, 7")
    E(f"v_add_u32 v{VW_}, s{S_T1}, v13")
    E(f"s_lshr_b32 s{S_T3}, s{S_WAVE}, 2")
    E(f"s_lshl_b32 s{S_T1}, s{S_T0}, 12")
    E(f"s_lshl_b32 s{S_T2}, s{S_T3}, 11")
    E(f"s_add_u32 s{S_T1}, s{S_T1}, s{S_T2}")
    E(f"v_add_u32 v{RB}, s{S_T1}, v{L16}")
    E("v_bfe_u32 v13, v0, 2, 2")
    E("v_bfe_u32 v14, v0, 5, 1")
    E("v_lshl_add_u32 v15, v14, 2, v13")
    E("v_lshlrev_b32 v15, 7, v15")
    E("v_lshrrev_b32 v13, 1, v13")
    E(f"v_bfe_u32 v{HT}, v0, 7, 1")
    E(f"v_xor_b32 v13, v13, v{HT}")
    E("v_lshl_add_u32 v15, v13, 6, v15")
    E("v_lshl_add_u32 v15, v12, 5, v15")
    E("v_and_b32 v13, 3, v0")
    E("v_lshl_add_u32 v15, v13, 3, v15")
    E(f"s_lshl_b32 s{S_T1}, s{S_T3}, 12")
    E(f"s_add_u32 s{S_T1}, s{S_T1}, 8192")
    E(f"v_add_u32 v{RW}, s{S_T1}, v15")
    E(f"v_add_u32 v{RB2}, 0x10000, v{RB}")
    E(f"v_add_u32 v{RW2}, 0x10000, v{RW}")
    E(f"s_lshl_b32 s{S_T1}, s{S_T3}, 15")
    E(f"v_add_u32 v{RWO}, s{S_T1}, v15")
    E("v_and_b32 v13, 31, v0")
    E("v_bfe_u32 v15, v0, 6, 1")
    E("v_lshl_add_u32 v13, v15, 5, v13")
    E(f"v_lshlrev_b32 v{GV}, 2, v13")
    E("v_lshlrev_b32 v13, 10, v13")
    E("v_lshl_add_u32 v13, v14, 4, v13")
    E(f"v_lshl_add_u32 v13, v{HT}, 6, v13")
    E(f"s_lshl_b32 s{S_T1}, s{S_T3}, 5")
    E(f"v_add_u32 v{OUTA}, s{S_T1}, v13")
    E(f"s_lshl_b32 s{S_OUT}, s{S_RT}, 16")
    E(f"s_lshl_b32 s{S_T1}, s{S_B}, 7")
    E(f"s_add_u32 s{S_OUT}, s{S_OUT}, s{S_T1}")
    E(f"s_lshl_b32 s{S_G}, s{S_RT}, 8")
    E(f"s_add_u32 s{S_G}, s{S_G}, {WS_G:#x}")
    E(f"s_lshl_b32 s{S_T1}, s{S_B}, 3")
    E(f"s_add_u32 s{S_T1}, s{S_T1}, s{S_WAVE}")
    E(f"s_mul_i32 s{S_T1}, s{S_T1}, 1792")
    E(f"s_add_u32 s{S_HT}, s{S_T1}, s{S_DB}")
    E("v_and_b32 v13, 15, v0")
    E(f"v_lshlrev_b32 v{PFH}, 6, v13")
    E("v_lshlrev_b32 v13, 7, v13")
    E(f"v_mul_u32_u24 v12, {144 * 1024}, v12")
    E(f"v_add_u32 v{HT}, v13, v12")
    E(f"s_lshl_b32 s{S_T1}, s{S_WAVE}, 11")
    E(f"s_add_u32 s{S_T1}, s{S_T1}, 65536")
    E(f"s_xor_b32 s{S_T2}, s{S_T1}, 8192")
    E(f"v_add_u32 v{EX0}, s{S_T1}, v{L16}")
    E(f"v_add_u32 v{EX1}, s{S_T2}, v{L16}")
    E(f"s_bfe_u32 s{S_T2}, s{S_WAVE}, 0x10001")
    E(f"s_lshl_b32 s{S_T2}, s{S_T2}, 4")
    E(f"s_add_u32 s{S_T2}, s{S_T2}, s{S_T3}")
    E(f"s_lshl_b32 s{S_OL}, s{S_T0}, 5")
    E(f"s_add_u32 s{S_OL}, s{S_OL}, s{S_T2}")
    E(f"s_lshl_b32 s{S_OL}, s{S_OL}, 10")
    E(f"s_mul_i32 s{S_T1}, s{S_T0}, 144")
    E(f"s_add_u32 s{S_T1}, s{S_T1}, s{S_T2}")
    E(f"s_add_u32 s{S_T1}, s{S_T1}, 112")
    E(f"s_lshl_b32 s{S_T1}, s{S_T1}, 10")
    E(f"s_add_u32 s{S_OS}, s{S_DB}, s{S_T1}")
    E(f"s_lshl_b32 s{S_T0}, s{S_T0}, 15")
    E(f"s_lshl_b32 s{S_T3}, s{S_T3}, 14")
    E(f"s_add_u32 s{S_T0}, s{S_T0}, s{S_T3}")
    E(f"v_add_u32 v{RO}, s{S_T0}, v{L16}")
    E(f"v_lshlrev_b32 v{PFO}, 6, v0")
    E(f"s_lshr_b32 s{S_PH}, s{S_RT}, 1")
    E(f"s_lshl_b32 s{S_PH}, s{S_PH}, 10")
    E(f"s_add_u32 s{S_PH}, s{S_PH}, {WS_FH:#x}")
    E(f"s_lshl_b32 s{S_PO}, s{S_RT}, 12")
    E(f"s_add_u32 s{S_PO}, s{S_PO}, {WS_FO:#x}")


def f_main():
    E.label("F_main")
    srd(X, 0x200000); srd(W1, 512 * WROW); srd(WU, 512 * WROW); srd(WS, WS_SIZE); srd(DBG, 256)
    srd(WD, 1792 * 1024); srd(WO, 512 * 1024); srd(OUT, 0x200000); srd(GW, 1024)
    E(f"s_lshl_b32 s{S_W1K}, s{S_WAVE}, 10")
    E(f"s_setprio {O.prio_f if O.prio_up < 0 else O.prio_up}")
    E("v_lshrrev_b32 v9, 3, v0")
    E("v_lshrrev_b32 v10, 4, v0")
    E("v_xor_b32 v11, v10, v0")
    E("v_and_b32 v11, 7, v11")
    E("v_lshlrev_b32 v11, 4, v11")
    E("v_lshl_add_u32 v1, v9, 10, v11")
    g2_setup()
    E("s_waitcnt lgkmcnt(0)")
    S_PAR, S_FA, S_B0, S_GO = S_D - 0, S_CNT, S_WB, S_VM
    S_PAR = S_VM + 1
    if O.flip:
        E(f"s_andn2_b32 s{S_PAR}, 1, s2")
    else:
        E(f"s_and_b32 s{S_PAR}, s2, 1")
    E(f"s_lshr_b32 s{S_T1}, s{S_C}, 2")
    E(f"s_lshl_b32 s{S_FA}, s{S_T1}, 3")
    E(f"s_mul_i32 s{S_T2}, s{S_T1}, 6")
    E(f"s_add_u32 s{S_T2}, s{S_T2}, 64")
    E(f"s_and_b32 s{S_T3}, s{S_T2}, 2")
    E(f"s_and_b32 s{S_T2}, s{S_T2}, 0xfc")
    E(f"s_cmp_eq_u32 s{S_PAR}, 1")
    E(f"s_cselect_b32 s{S_FA}, s{S_T2}, s{S_FA}")
    E(f"s_cselect_b32 s{S_T3}, s{S_T3}, 0")
    E(f"s_and_b32 s{S_B0}, s{S_WAVE}, 6")
    E(f"s_cmp_eq_u32 s{S_B0}, 6")
    E(f"s_cselect_b32 s{S_T2}, s{S_PAR}, 0")
    E(f"s_sub_u32 s{S_B0}, s{S_B0}, s{S_T2}")
    E(f"s_add_u32 s{S_B0}, s{S_B0}, s{S_T3}")
    E(f"s_lshl_b32 s{S_B}, s{S_PAR}, 3")
    E(f"s_add_u32 s{S_B}, s{S_B}, s{S_T1}")
    E(f"s_and_b32 s{S_T0}, s{S_C}, 3")
    E(f"s_and_b32 s{S_A}, s2, 6")
    E(f"s_lshl_b32 s{S_A}, s{S_A}, 1")
    E(f"s_add_u32 s{S_A}, s{S_A}, s{S_T0}")
    E(f"s_mov_b32 s{S_XK}, 0")
    E(f"s_mov_b32 s{S_WK}, 0")
    E(f"s_lshl_b32 s{S_XB}, s{S_A}, 17")
    E(f"s_lshl_b32 s{S_T1}, s{S_T1}, 2")
    E(f"s_and_b32 s{S_T0}, s{S_WAVE}, 3")
    E(f"s_add_u32 s{S_T1}, s{S_T1}, s{S_T0}")
    E(f"s_lshl_b32 s{S_T1}, s{S_T1}, 12")
    E(f"s_add_u32 s{S_GO}, s{S_T1}, s{S_XB}")
    E(f"s_lshl_b32 s{S_T0}, s{S_C}, 2")
    E(f"s_and_b32 s{S_T1}, s{S_WAVE}, 3")
    E(f"s_add_u32 s{S_T0}, s{S_T0}, s{S_T1}")
    E(f"s_mul_i32 s{S_T0}, s{S_T0}, {WROW}")
    E(f"s_lshl_b32 s{S_T1}, s{S_PAR}, 11")
    E(f"s_add_u32 s{S_T0}, s{S_T0}, s{S_T1}")
    E(f"s_mov_b32 s{S_T2}, {128 * WROW}")
    E("v_bfe_u32 v12, v0, 4, 1")
    E(f"v_mul_u32_u24 v12, s{S_T2}, v12")
    E("v_and_b32 v13, 15, v0")
    E("v_lshl_add_u32 v12, v13, 7, v12")
    E(f"v_add_u32 v13, s{S_T0}, v12")
    E(f"s_cmp_lt_u32 s{S_WAVE}, 4")
    E(f"s_cselect_b32 s4, s{W1}, s{WU}")
    E(f"s_cselect_b32 s5, s{W1+1}, s{WU+1}")
    E(f"s_mov_b32 s6, {512 * WROW}")
    E("s_mov_b32 s7, 0x20000")
    E(f"s_cmp_eq_u32 s{S_PAR}, 1")
    E(f"s_cselect_b32 s{S_T3}, 0x0fff0fff, -1")
    E("s_mov_b64 exec, 1")
    E(f"buffer_load_dword v127, v13, s[4:7], 0 offen")
    E("s_waitcnt vmcnt(0)")
    E(f"s_mov_b32 exec_lo, s{S_T3}")
    E(f"buffer_load_dword v127, v13, s[4:7], 0 offen")
    E("s_mov_b64 exec, -1")
    E(f"v_mul_u32_u24 v9, {WROW}, v10")
    E("v_bfe_u32 v11, v0, 1, 3")
    E("v_and_b32 v10, 3, v10")
    E("v_xor_b32 v11, v11, v10")
    E("v_lshl_add_u32 v9, v11, 5, v9")
    E("v_and_b32 v11, 1, v0")
    E("v_lshl_add_u32 v9, v11, 4, v9")
    E(f"s_lshl_b32 s{S_T0}, s{S_FA}, 5")
    E(f"v_add_u32 v2, s{S_T0}, v9")
    E("v_xor_b32 v3, 128, v9")
    E(f"v_add_u32 v3, s{S_T0}, v3")
    E("v_and_b32 v8, 31, v0")
    E("v_lshrrev_b32 v9, 1, v8")
    E("v_and_b32 v9, 7, v9")
    E("v_bfe_u32 v10, v0, 5, 1")
    E("v_xor_b32 v9, v9, v10")
    E("v_lshlrev_b32 v9, 4, v9")
    E("v_lshl_add_u32 v9, v8, 7, v9")
    E("v_bfe_u32 v8, v0, 6, 1")
    E("v_lshl_add_u32 v4, v8, 13, v9")
    for ks in (1, 2, 3):
        E(f"v_xor_b32 v{4+ks}, {32*ks}, v4")
    E("v_bfe_u32 v8, v0, 2, 2")
    E("v_lshl_add_u32 v9, v10, 3, v8")
    E("v_lshlrev_b32 v9, 8, v9")
    E("v_bfe_u32 v10, v0, 4, 1")
    E("v_lshl_add_u32 v9, v10, 13, v9")
    E("v_lshlrev_b32 v10, 2, v10")
    E("v_xor_b32 v8, v8, v10")
    E(f"v_xor_b32 v8, s{S_B0}, v8")
    E("v_lshl_add_u32 v9, v8, 5, v9")
    E("v_and_b32 v8, 3, v0")
    E("v_lshl_add_u32 v9, v8, 3, v9")
    E(f"v_add_u32 v8, {F_WS0}, v9")
    E("v_xor_b32 v9, 32, v8")
    E(f"s_and_b32 s{S_T0}, s{S_WAVE}, 1")
    E(f"s_lshl_b32 s{S_T0}, s{S_T0}, 1")
    E(f"s_lshl_b32 s{S_T1}, s{S_A}, 2")
    E(f"s_add_u32 s{S_T0}, s{S_T0}, s{S_T1}")
    E(f"s_mul_i32 s{S_T0}, s{S_T0}, 144")
    E(f"s_add_u32 s{S_T0}, s{S_T0}, s{S_FA}")
    E(f"s_add_u32 s{S_T0}, s{S_T0}, s{S_B0}")
    E(f"s_lshl_b32 s{S_T0}, s{S_T0}, 10")
    E(f"s_add_u32 s{S_H0}, s{S_T0}, {WS_HO:#x}")
    E(f"s_add_u32 s{S_H1}, s{S_H0}, {144 * 1024}")
    E(f"s_lshl_b32 s{S_T0}, s{S_A}, 10")
    E(f"s_lshl_b32 s{S_T1}, s{S_B}, 6")
    E(f"s_add_u32 s{S_T0}, s{S_T0}, s{S_T1}")
    E(f"s_add_u32 s{S_FL}, s{S_T0}, {WS_FH:#x}")
    E("v_mov_b32 v12, 1.0")
    E(f"v_lshlrev_b32 v13, 3, v{L16}")
    E("v_and_b32 v14, 0xf0, v48")
    E("v_bfe_u32 v15, v0, 4, 2")
    E(f"s_cmp_lg_u32 s{S_WAVE}, 0")
    E("s_cbranch_scc1 F_go")
    wait_start("F_tag", 1)
    E.label("F_go")
    E("s_barrier")
    vm0 = VM()
    f_dma_x(0, vm0); f_dma_w(0, vm0); f_dma_w(1, vm0); f_dma_x(1, vm0); f_dma_w(2, vm0)
    stamp(1)
    prio = lambda s: O.prio_boost if (O.boost_mask >> s) & 1 else O.prio_f
    E(f"s_setprio {prio(0)}")
    E(f"s_waitcnt vmcnt({vm0.need(('x',0),('w',0))})")
    E("s_barrier")
    stamp(2)
    E(f"s_lshr_b32 s{S_T0}, s{S_WAVE}, 2")
    E(f"s_and_b32 s{S_T0}, s{S_T0}, s{S_PAR}")
    E("s_cbranch_scc1 F_one")

    def up(nb):
        vm = VM()
        vm.q = list(vm0.q)

        def reads(s, kk):
            b = 16 + 16 * kk
            u = s // 2
            L = []
            for i in (0, 1):
                L.append(f"ds_read_b128 {vr(b+4*i,4)}, v{4 + 2*(s&1) + kk} offset:{(u % 2) * F_XS + i * 4096}")
                if i < nb:
                    for q in (0, 1):
                        L.append(f"ds_read_b64_tr_b16 {vr(b+8+4*i+2*q,2)}, v{8+i} offset:{(s % 3) * F_WSZ + kk * 4096 + q * 1024}")
            return L

        def mfmas(s, kk):
            b = 16 + 16 * kk
            L = []
            for rbk, bb in ((0, 0), (0, 1), (1, 1), (1, 0)):
                if bb < nb:
                    acc = vr(64 + 16 * (2 * rbk + bb), 16)
                    c = "0" if (s == 0 and kk == 0) else acc
                    L.append(f"v_mfma_f32_32x32x16_bf16 {acc}, {vr(b+8+4*bb,4)}, {vr(b+4*rbk,4)}, {c}")
            return L

        [E(x) for x in reads(0, 0)]
        for s in range(16):
            if s and prio(s) != prio(s - 1):
                E(f"s_setprio {prio(s)}")
            M, R = mfmas(s, 0), reads(s, 1)
            E("s_waitcnt lgkmcnt(0)")
            E(M[0]); [E(x) for x in R[:3]]; E(M[1]); [E(x) for x in R[3:]]; [E(x) for x in M[2:]]
            M = mfmas(s, 1)
            if s == 15:
                E("s_waitcnt lgkmcnt(0)")
                [E(x) for x in M]
                break
            E(f"s_waitcnt vmcnt({vm.need(('x',(s+1)//2),('w',s+1))}) lgkmcnt(0)")
            E("s_barrier")
            R = reads(s + 1, 0)
            E(M[0]); [E(x) for x in R[:3]]; E(M[1]); [E(x) for x in R[3:]]; [E(x) for x in M[2:3]]
            if s + 3 <= 15:
                f_dma_w(s + 3, vm)
            [E(x) for x in M[3:]]
            if s % 2 == 1 and (s + 1) // 2 + 1 <= 7:
                f_dma_x((s + 1) // 2 + 1, vm)
            if s in (O.wd_step, O.wo_step):
                wd = s == O.wd_step
                E(f"s_lshl_b32 s{S_T0}, s{S_C}, 3")
                E(f"s_add_u32 s{S_T0}, s{S_T0}, s{S_WAVE}")
                E(f"s_mul_i32 s{S_T0}, s{S_T0}, {7168 if wd else 2048}")
                E("s_mov_b32 exec_hi, 0xffffff" if wd else "s_mov_b64 exec, 0xffff")
                E(f"buffer_load_dword v11, v13, {sr(WD if wd else WO)}, s{S_T0} offen")
                E("s_mov_b64 exec, -1")
                vm.issue("wd")
            if s == O.g_step and nb == 1:
                assert max(O.wd_step, O.wo_step % 99) <= O.g_step and O.g_step >= 13
                E("v_lshl_add_u32 v10, v15, 10, v14")
                for i in range(4):
                    E(f"buffer_load_dwordx4 {vr(80+4*i,4)}, v10, {sr(X)}, s{S_GO} offen offset:{256*i}")
                for i in range(4):
                    E(f"buffer_load_dwordx4 {vr(112+4*i,4)}, v14, {sr(GW)}, 0 offen offset:{256*i}")
                vm.issue("g", 8)
            if s in (3, 7, 11) and not O.dn_stamps:
                stamp(10 + s // 4)
        stamp(3)
        E(f"s_setprio {O.prio_silu}")
        E("s_barrier")
        wo_stage()
        E(f"s_mov_b32 s{S_T2}, {NLOG2E:#x}")
        E(f"s_mov_b32 s{S_T3}, {NLOG2E:#x}")
        for tl in range(4):
            if (tl & 1) >= nb:
                continue
            a = 64 + 16 * tl
            t = 16 + 8 * (tl & 1)
            pk = 32 + 4 * tl
            for i in range(4):
                E(f"v_pk_mul_f32 {vr(t+2*i,2)}, {vr(a+2*i,2)}, s[{S_T2}:{S_T3}]")
            for i in range(8):
                E(f"v_exp_f32 v{t+i}, v{t+i}")
            for i in range(4):
                E(f"v_pk_mul_f32 {vr(a+2*i,2)}, {vr(a+2*i,2)}, {vr(a+8+2*i,2)}")
            for i in range(4):
                E(f"v_pk_add_f32 {vr(t+2*i,2)}, {vr(t+2*i,2)}, v[12:13] op_sel_hi:[1,0]")
            for i in range(8):
                E(f"v_rcp_f32 v{t+i}, v{t+i}")
            E("s_nop 0")
            for i in range(4):
                E(f"v_pk_mul_f32 {vr(a+2*i,2)}, {vr(a+2*i,2)}, {vr(t+2*i,2)}")
            for i in range(4):
                E(f"v_cvt_pk_bf16_f32 v{pk+i}, v{a+2*i}, v{a+2*i+1}")
            E(f"buffer_store_dwordx4 {vr(pk,4)}, v{L16}, {sr(WS)}, s{(S_H0, S_H1)[tl >> 1]} offen offset:{(tl & 1) * 1024} sc0 sc1")
        if nb == 1:
            E("v_mov_b32 v12, 0")
            E("v_mov_b32 v13, 0")
            E("s_waitcnt vmcnt(10)")
            for i in range(16):
                E(f"v_dot2_f32_bf16 v{12 + (i & 1)}, v{80+i}, v{112+i}, v{12 + (i & 1)}")
            E("s_nop 2")
            E("v_add_f32 v12, v12, v13")
            for ctl in ("quad_perm:[1,0,3,2]", "quad_perm:[2,3,0,1]", "row_half_mirror", "row_mirror"):
                E("s_nop 1")
                E(f"v_add_f32_dpp v12, v12, v12 {ctl} row_mask:0xf bank_mask:0xf")
            E(f"v_mul_f32 v12, {NLOG2E:#x}, v12")
            E("v_exp_f32 v12, v12")
            E(f"s_lshr_b32 s{S_T0}, s{S_GO}, 8")
            E("v_add_f32 v12, 1.0, v12")
            E("v_rcp_f32 v12, v12")
            E("v_lshlrev_b32 v11, 2, v15")
            E(f"s_add_u32 s{S_T0}, s{S_T0}, {WS_G:#x}")
            E("s_mov_b32 exec_lo, 0x10001")
            E("s_mov_b32 exec_hi, 0x10001")
            E(f"buffer_store_dword v12, v11, {sr(WS)}, s{S_T0} offen sc0 sc1")
            E("s_mov_b64 exec, -1")

    up(2)
    E("s_branch F_pub")
    E.label("F_one")
    up(1)
    E.label("F_pub")
    E("s_waitcnt vmcnt(0)")
    E.label("F_pub2")
    E("s_barrier")
    stamp(4)
    E(f"s_cmp_lg_u32 s{S_WAVE}, 0")
    E("s_cbranch_scc1 F_wait2")
    put_flag(S_FL)
    E("s_nop 0")
    E.label("F_wait2")
    if O.wo_late:
        E("s_waitcnt vmcnt(0)")
        E("s_barrier")
    wf = lambda k: (4 * k) if k < 4 else (80 + 4 * (k - 4))
    for k in range(16):
        for q in (0, 1):
            E(f"ds_read_b64_tr_b16 {vr(wf(k) + 2*q, 2)}, v{RWO} offset:{k * 2048 + q * 1024}")
    NS = O.dn_ns
    E("s_waitcnt lgkmcnt(0)")
    E("s_barrier")
    for st in range(NS):
        E(f"s_add_u32 m0, s{S_W1K}, {st * 16384 + 8192}")
        E(f"s_mov_b32 s{S_T0}, {st * 65536}")
        E(f"buffer_load_dwordx4 v{VW_}, {sr(WD)}, s{S_T0} offen lds")
    E(f"s_cmp_lg_u32 s{S_WAVE}, 0")
    E("s_cbranch_scc1 F_wait2b")
    poll("F_pollh", PFH, f"s{S_PH}", False, 16, O.sl_h)
    E.label("F_wait2b")
    E("s_barrier")
    stamp(5)
    vd = VM()

    def dma(st, skip_w=False):
        slot = st % NS
        E(f"s_add_u32 m0, s{S_DL}, {slot * 16384}")
        E(f"s_add_u32 s{S_T0}, s{S_DB}, {st * 4096}")
        E(f"buffer_load_dwordx4 v{VB_}, {sr(WS)}, s{S_T0} offen sc1 lds")
        vd.issue(st)
        if skip_w:
            return
        E(f"s_add_u32 m0, s{S_W1K}, {slot * 16384 + 8192}")
        E(f"s_mov_b32 s{S_T0}, {st * 65536}")
        E(f"buffer_load_dwordx4 v{VW_}, {sr(WD)}, s{S_T0} offen lds")
        vd.issue(st)

    def greads(st):
        slot = st % NS
        b = 16 + 16 * (st & 1)
        vb, vw, base = (RB, RW, slot * 16384) if slot < 4 else (RB2, RW2, 0)
        L = []
        for kk in (0, 1):
            L.append(f"ds_read_b128 {vr(b+4*kk,4)}, v{vb} offset:{base + kk * 1024}")
            for q in (0, 1):
                L.append(f"ds_read_b64_tr_b16 {vr(b+8+4*kk+2*q,2)}, v{vw} offset:{base + kk * 2048 + q * 1024}")
        return L

    for t in range(O.ht_pos):
        dma(t, True)
    E("s_mov_b64 exec, 0x3fff3fff")
    E(f"buffer_load_dword v{HT}, v{HT}, {sr(WS)}, s{S_HT} offen sc1")
    E("s_mov_b64 exec, -1")
    E(f"buffer_load_dword v{GV}, v{GV}, {sr(WS)}, s{S_G} offen sc1")
    vd.issue("h", 2)
    for t in range(O.ht_pos, NS):
        dma(t, True)
    issued = NS
    E(f"s_setprio {O.prio_dn}")
    bars = [t for t in range(27) if t >= O.dn_grp_until or t % O.dn_grp == O.dn_grp - 1]
    E(f"s_waitcnt vmcnt({vd.need(*range(0, bars[0] + 1))})")
    E("s_barrier")
    [E(x) for x in greads(0)]
    for t in range(28):
        b = 16 + 16 * (t & 1)
        M = [f"v_mfma_f32_32x32x16_bf16 v[64:79], {vr(b+8+4*kk,4)}, {vr(b+4*kk,4)}, {'0' if t + kk == 0 else 'v[64:79]'}" for kk in (0, 1)]
        if t == O.dn_low:
            E(f"s_setprio {O.prio_f_late}")
        if O.dn_stamps and t in (4, 12, 20):
            stamp(10 + t // 8)
        if t in bars:
            nxt = min([x for x in bars if x > t] + [27])
            E(f"s_waitcnt vmcnt({vd.need(*range(t + 1, nxt + 1))}) lgkmcnt(0)")
            E("s_barrier")
        else:
            E("s_waitcnt lgkmcnt(0)")
        R = greads(t + 1) if t < 27 else []
        E(M[0]); [E(x) for x in R[:3]]; E(M[1]); [E(x) for x in R[3:]]
        if t in bars:
            while issued <= min(27, t + NS):
                dma(issued)
                issued += 1
    stamp(6)
    E(f"s_cmp_lg_u32 s{S_WAVE}, 0")
    E("s_cbranch_scc1 F_wait3")
    E("s_setprio 3")
    if O.o_touch:
        E(f"v_lshrrev_b32 v17, 9, v{L16}")
        E(f"v_mul_u32_u24 v17, {144 * 1024 - 32 * 1024}, v17")
        E(f"v_lshl_add_u32 v17, v{L16}, 6, v17")
        E(f"s_lshr_b32 s{S_T0}, s{S_C}, 2")
        E(f"s_lshl_b32 s{S_T0}, s{S_T0}, 7")
        E(f"s_add_u32 s{S_T0}, s{S_T0}, s{S_DB}")
        E(f"s_add_u32 s{S_T0}, s{S_T0}, {112 * 1024}")
        E("s_mov_b64 s[4:5], -1")
        E(f"s_mov_b32 s{S_SPIN}, 0x40000")
        E.label("F_pollo")
        E(f"buffer_load_dword v16, v{PFO}, {sr(WS)}, s{S_PO} offen sc1")
        E("s_waitcnt vmcnt(0)")
        E(f"v_cmp_ne_u32 vcc, s{S_TAG}, v16")
        E("s_nop 4")
        E("s_cmp_eq_u64 vcc, 0")
        E("s_cbranch_scc1 F_pollo_ok")
        E("s_andn2_b64 s[6:7], s[4:5], vcc")
        E("s_cbranch_scc0 F_pollo_n")
        E("s_mov_b64 s[4:5], vcc")
        E("s_mov_b64 exec, s[6:7]")
        E(f"buffer_load_dword v18, v17, {sr(WS)}, s{S_T0} offen sc1")
        E("s_mov_b64 exec, -1")
        E.label("F_pollo_n")
        E(f"s_sleep {O.sl_o}")
        E(f"s_sub_u32 s{S_SPIN}, s{S_SPIN}, 1")
        E(f"s_cmp_lg_u32 s{S_SPIN}, 0")
        E("s_cbranch_scc1 F_pollo")
        E.label("F_pollo_ok")
    else:
        poll("F_pollo", PFO, f"s{S_PO}", False, 16, O.sl_o)
    E.label("F_wait3")
    E("s_setprio 3")
    E("s_barrier")
    stamp(7)
    for i in range(8):
        E(f"s_add_u32 m0, s{S_OL}, {i * 2048}")
        E(f"s_add_u32 s{S_T0}, s{S_OS}, {i * 2048}")
        E(f"buffer_load_dwordx4 v{L16}, {sr(WS)}, s{S_T0} offen sc1 lds")
    E(f"v_sub_f32 v{HT}, 1.0, v{GV}")
    for i in range(16):
        E(f"v_mul_f32 v{64+i}, v{HT}, v{64+i}")
    cuts = {2: (0, 8, 16), 4: (0, 4, 8, 12, 16), 3: (0, 8, 12, 16)}[O.o_parts]
    for lo, hi in zip(cuts[:-1], cuts[1:]):
        per = hi - lo
        E(f"s_waitcnt vmcnt({8 - hi // 2})")
        E("s_barrier")
        for k in range(4):
            E(f"ds_read_b128 {vr(32 + 4*k, 4)}, v{RO} offset:{(lo + k) * 1024}")
        for k in range(per):
            E(f"s_waitcnt lgkmcnt({min(3, per - 1 - k)})")
            E(f"v_mfma_f32_32x32x16_bf16 v[16:31], {vr(wf(lo + k), 4)}, {vr(32 + 4*(k % 4), 4)}, {'0' if lo + k == 0 else 'v[16:31]'}")
            if k + 4 < per:
                E(f"ds_read_b128 {vr(32 + 4*k, 4)}, v{RO} offset:{(lo + 4 + k) * 1024}")
    stamp(8)
    E(f"s_cmp_ge_u32 s{S_WAVE}, 4")
    E("s_cbranch_scc1 F_hi")
    for hi in (0, 1):
        keep, send = (0, 8) if not hi else (8, 0)
        if hi:
            E.label("F_hi")
        E("s_nop 9")
        for i in range(8):
            E(f"v_fmac_f32 v{64+send+i}, v{GV}, v{16+send+i}")
        E(f"ds_write_b128 v{EX0}, {vr(64+send,4)}")
        E(f"ds_write_b128 v{EX0}, {vr(68+send,4)} offset:1024")
        for i in range(8):
            E(f"v_fmac_f32 v{64+keep+i}, v{GV}, v{16+keep+i}")
        E("s_waitcnt lgkmcnt(0)")
        E("s_barrier")
        E(f"ds_read_b128 v[20:23], v{EX1}")
        E(f"ds_read_b128 v[24:27], v{EX1} offset:1024")
        E("s_waitcnt lgkmcnt(1)")
        for i in range(8):
            if i == 4:
                E("s_waitcnt lgkmcnt(0)")
            E(f"v_add_f32 v{64+keep+i}, v{64+keep+i}, v{20+i}")
        for i in range(4):
            E(f"v_cvt_pk_bf16_f32 v{16+i}, v{64+keep+2*i}, v{65+keep+2*i}")
        if not hi:
            E("s_branch F_x")
    E.label("F_x")
    E("s_nop 1")
    E("v_permlane32_swap_b32 v16, v18")
    E("v_permlane32_swap_b32 v17, v19")
    E(f"buffer_store_dwordx4 v[16:19], v{OUTA}, {sr(OUT)}, s{S_OUT} offen")
    stamp(9)
    flush_stamps(range(13), "F_st")
    if O.diag_span:
        E.label("F_diag")
        E("s_memrealtime s[4:5]")
        E("s_waitcnt lgkmcnt(0)")
        E("s_sub_u32 s4, s4, s92")
        E(f"s_cmp_lt_u32 s4, {O.diag_span}")
        E("s_cbranch_scc1 F_diag")
    E("s_endpgm")


def out_addr():
    E("v_lshlrev_b32 v8, 10, v8")
    E("v_bfe_u32 v9, v0, 5, 1")
    E("v_lshl_add_u32 v8, v9, 4, v8")
    E("v_bfe_u32 v9, v0, 7, 1")
    E("v_lshl_add_u32 v8, v9, 6, v8")
    E("v_lshrrev_b32 v9, 8, v0")
    E("v_lshl_add_u32 v8, v9, 5, v8")
    E(f"s_lshl_b32 s{S_XK}, s{S_A}, 16")
    E(f"s_lshl_b32 s{S_T1}, s{S_B}, 7")
    E(f"s_add_u32 s{S_XK}, s{S_XK}, s{S_T1}")
    E(f"s_lshl_b32 s{S_T1}, s{S_WAVE}, 11")
    E(f"s_add_u32 s{S_T1}, s{S_T1}, 65536")
    E(f"s_xor_b32 s{S_T2}, s{S_T1}, 8192")
    E(f"v_add_u32 v6, s{S_T1}, v12")
    E(f"v_add_u32 v7, s{S_T2}, v12")


def voff_w():
    E("v_bfe_u32 v2, v0, 4, 1")
    E("v_lshlrev_b32 v2, 2, v2")
    E("v_xor_b32 v2, v2, v0")
    E("v_and_b32 v2, 7, v2")
    E("v_lshlrev_b32 v2, 4, v2")
    E("v_lshrrev_b32 v11, 3, v0")
    E("v_lshl_add_u32 v2, v11, 10, v2")
    E(f"s_lshr_b32 s{S_T1}, s{S_C}, 2")
    E(f"s_lshl_b32 s{S_T1}, s{S_T1}, 7")
    E(f"v_add_u32 v2, s{S_T1}, v2")


def wo_stage(batch=0):
    for i in range(8):
        E(f"s_add_u32 m0, s{S_W1K}, {i * 8192}")
        E(f"s_mov_b32 s{S_T0}, {i * 65536}")
        E(f"buffer_load_dwordx4 v{VW_}, {sr(WO)}, s{S_T0} offen lds")
        if batch and i % batch == batch - 1:
            E("s_waitcnt vmcnt(0)")


def _m_fix_base():
    E(f"s_mul_i32 s{S_XB}, s{S_A}, {288 * 1024}")
    E(f"s_add_u32 s{S_XB}, s{S_XB}, {WS_HO:#x}")


HEADER = """; Kernarg layout (88 bytes, ptrs only, base s[0:1]):
; @launch grid=(512,1,1) block=(512,1,1) lds=81920
.amdgcn_target "amdgcn-amd-amdhsa--gfx950"
.text
.globl {kn}
.p2align 8
.type {kn},@function
{kn}:
CODE_START:
"""

FOOTER = """CODE_END:
.section .rodata,"a"
.p2align 6
.amdhsa_kernel {kn}
  .amdhsa_next_free_vgpr 128
  .amdhsa_next_free_sgpr 102
  .amdhsa_accum_offset 128
  .amdhsa_group_segment_fixed_size 0
  .amdhsa_kernarg_size 88
  .amdhsa_user_sgpr_count 2
  .amdhsa_user_sgpr_kernarg_segment_ptr 1
  .amdhsa_system_sgpr_workgroup_id_x 1
.end_amdhsa_kernel
"""


def generate():
    E.L = []
    if O.scramble:
        E("s_and_b32 s3, s2, 7")
        E("s_lshl_b32 s3, s3, 3")
        E("s_bfe_u32 s4, s2, 0x30003")
        E("s_and_b32 s2, s2, 0xffffffc0")
        E("s_or_b32 s2, s2, s3")
        E("s_or_b32 s2, s2, s4")
    E("s_cmp_ge_u32 s2, 256")
    E("s_cbranch_scc1 F_entry")
    stamp(0)
    if O.only_down:
        E("s_endpgm")
    a_prologue()
    E("s_cbranch_vccnz A_vwave")
    E("s_branch A_qwave")
    E.label("F_entry")
    f_prologue()
    E.label("L_end")
    E("s_endpgm")
    E.label("A_qwave")
    a_qkv(False)
    E("s_branch A_att")
    E.label("A_vwave")
    a_qkv(True)
    E.label("A_att")
    a_attention()
    f_main()
    return HEADER.format(kn=KN) + "\n".join(E.L) + "\n" + FOOTER.format(kn=KN)


if __name__ == "__main__":
    ap = argparse.ArgumentParser()
    ap.add_argument("-o", default="k.s")
    ap.add_argument("--set", action="append", default=[])
    a = ap.parse_args()
    for kv in a.set:
        k, v = kv.split("=")
        assert hasattr(O, k), k
        setattr(O, k, type(getattr(O, k))(int(v)))
    s = generate()
    open(a.o, "w").write(s)
    sys.path.insert(0, "cdna_kernels")
    from cdna_launch import with_harness_metadata, address_register_problem
    h = a.o[:-2] + ".harness.s"
    co = a.o[:-2] + ".co"
    open(h, "w").write(with_harness_metadata(s, KN, 11, launch_lists=True))
    r = subprocess.run(["clang", "-x", "assembler", "-target", "amdgcn-amd-amdhsa", "-mcpu=gfx950", h, "-o", co],
                       capture_output=True, text=True)
    if r.returncode:
        print(r.stderr[:4000]); sys.exit(1)
    p = address_register_problem(co, KN)
    print("check:", p)
    r = subprocess.run(f"llvm-nm {co} | grep -E 'CODE_|A_qwave|A_vwave|A_att|A_loop|A_fin|A_slow|F_entry|F_main|F_pub|F_dloop|F_gate$' | sort", shell=True, capture_output=True, text=True)
    print(r.stdout)
```

```python
import sys, subprocess, argparse

NAME = "gated_mix__softmax_full_mha__swiglu_ffn__prompt"
KN = NAME + "_kernel"

WS_KV, WS_Q, WS_HO = 0, 0x400000, 0x600000
WS_G = 0xF04000
WS_FO2 = 0xF40000
WS_FKV, WS_FH, WS_FO, WS_FS = 0xF08000, 0xF0C000, 0xF20000, 0xF07000
WS_STAMP = 0x1000000
WS_SIZE = 0x1100000
QSCALE = 0x3EB8AA3B
NLOG2E = 0xBFB8AA3B
THR2 = 0x45548000


class Opt:
    stamps = False
    hint_step = 17
    f_fill_early = False
    force_slow = False
    prio_a_qkv = 3
    prio_a_att = 0
    prio_f = 0
    prio_f_late = 0
    zrows = 1
    toggle = 0
    touch_gu = 0
    touch = 0
    warm_steps = 0
    f_rot = 0
    a_exit = 0
    kv_rot = 0
    ga = 3
    gb = 5
    gc = 5
    kv_first = 2
    wd_t0 = 3
    wo_t = 1
    f_touch = 1
    f_touch2 = 99
    bal = 3
    pace_from = 99
    prio_up = -1
    prio_dn = 0
    boost_mask = 31
    prio_boost = 3
    hint1 = 11
    f_wd = 1
    pair = 1
    dn_stamps = 0
    wo_early = 1
    scramble = 0
    dbg_out = 0
    hold = 0
    kv_wait1 = 1
    piped = 0
    dn_ns = 5
    dn_grp = 2
    dn_grp_until = 16
    dn_low = 99
    twice = 0
    o_parts = 2
    x_noack = 0
    x_noex = 0
    wd_step = 13
    wd_parts = 1
    ht_pos = 2
    nt0 = 0
    order0 = 0
    diag_span = 0
    w_first = 1
    early_o = 0
    x_fail = 0
    t_rows = 256
    tlb = 0
    rf_late = 0
    bar_diag = 0
    kv_cnt = 0
    g_batch = 2
    wo_step = 9
    wo_batch = 0
    qswap = 7
    hswap = 1
    rswap = 2
    sl_o = 2
    sl_h = 2
    rperm = 0
    amap = 0
    sl_kv = 0
    sl_s = 2
    wo_late = 0
    o_touch = 0
    flip = 0
    pflip = 0
    g_step = 13
    evt = -1
    only_down = 0
    d_rot = 0
    h_touch = 1
    att_iters = 8
    prio_silu = 3
    gate_late = 1
    h_sc1 = 1
    no_f = 0
    late_iter = 99


O = Opt()


class Asm:
    def __init__(self):
        self.L = []

    def __call__(self, s):
        for x in s.strip("\n").split("\n"):
            self.L.append("    " + x.strip())

    def label(self, l):
        self.L.append(l + ":")

    def raw(self, s):
        self.L.append(s)


E = Asm()


def vr(a, n):
    return f"v[{a}:{a+n-1}]"


def srd(base, size):
    E(f"s_mov_b32 s{base+2}, {size:#x}")
    E(f"s_mov_b32 s{base+3}, 0x20000")


S_WAVE = 3
X, W1, WU, WS, DBG, WD, WO, OUT, GW = 12, 16, 20, 24, 28, 32, 36, 40, 44
def sr(b): return f"s[{b}:{b+3}]"
S_TAG = 48
S_W1K = 49
S_T0, S_T1, S_T2, S_T3 = 50, 51, 52, 53
S_XK, S_XB, S_WK, S_WB = 54, 55, 56, 57
S_CNT = 58
S_A, S_B, S_C, S_D = 59, 60, 61, 62
S_SLOT = 63
S_VM = 64
S_SPIN = 66
S_STAMP = 70


def stamp(i):
    if O.evt >= 0:
        if i == 0 or i == O.evt % 16:
            E(f"s_memrealtime s[{S_STAMP+2*i}:{S_STAMP+2*i+1}]")
            E("s_waitcnt lgkmcnt(0)")
    elif O.stamps:
        E(f"s_memrealtime s[{S_STAMP+2*i}:{S_STAMP+2*i+1}]")
        E(f"s_memtime s[68:69]")
        E("s_waitcnt lgkmcnt(0)")
        E(f"s_mov_b32 s{S_STAMP+2*i+1}, s68")


def cstamp(i):
    if O.stamps:
        E(f"s_memtime s[{S_STAMP+2*i}:{S_STAMP+2*i+1}]")
        E("s_waitcnt lgkmcnt(0)")


def flush_stamps(idx, lab):
    if O.evt >= 0 and lab[0] == "AF"[O.evt // 16]:
        i = O.evt % 16
        E(f"s_add_u32 s6, s{S_STAMP+2*i}, 6000")
        E.label(lab + "_e")
        E("s_memrealtime s[4:5]")
        E("s_waitcnt lgkmcnt(0)")
        E("s_sub_u32 s4, s4, s6")
        E("s_cmp_lt_i32 s4, 0")
        E(f"s_cbranch_scc1 {lab}_e")
    if not O.stamps:
        return
    E(f"s_cmp_lg_u32 s{S_WAVE}, 0")
    E(f"s_cbranch_scc1 {lab}")
    E(f"s_lshl_b32 s{S_T0}, s2, 7")
    E(f"s_add_u32 s{S_T0}, s{S_T0}, {WS_STAMP:#x}")
    E("s_mov_b64 exec, 1")
    E("v_mov_b32 v1, 0")
    for i in idx:
        E(f"v_mov_b32 v2, s{S_STAMP+2*i}")
        E(f"buffer_store_dword v2, v1, {sr(WS)}, s{S_T0} offen offset:{4*i}")
        E(f"v_mov_b32 v3, s{S_STAMP+2*i+1}")
        E(f"buffer_store_dword v3, v1, {sr(WS)}, s{S_T0} offen offset:{64+4*i}")
    if O.dbg_out:
        E(f"s_and_b32 s{S_T0}, s2, 255")
        E(f"s_cmp_lg_u32 s{S_T0}, 77")
        E(f"s_cbranch_scc1 {lab}_d")
        sel, base = ((0, 1, 2, 5, 6, 7), 1) if lab.startswith("A") else ((1, 2, 3, 5, 6, 7, 9), 9)
        for n, i in enumerate(sel):
            E(f"v_mov_b32 v2, s{S_STAMP+2*i}")
            if n:
                E(f"v_subrev_u32 v2, s{S_STAMP}, v2")
            E(f"buffer_store_dword v2, v1, {sr(DBG)}, 0 offen offset:{4*(base+n)}")
        if lab.startswith("A"):
            E(f"s_sub_u32 s{S_T0}, s{S_STAMP+13}, s{S_STAMP+11}")
            E(f"v_mov_b32 v2, s{S_T0}")
            E(f"buffer_store_dword v2, v1, {sr(DBG)}, 0 offen offset:28")
        E.label(lab + "_d")
    E("s_waitcnt vmcnt(0)")
    E.label(lab)


class VM:
    def __init__(self):
        self.q = []

    def issue(self, tag, n=1):
        self.q += [tag] * n

    def need(self, *tags):
        last = -1
        for i, t in enumerate(self.q):
            if t in tags:
                last = i
        for t in tags:
            assert t in self.q, t
        return len(self.q) - 1 - last


def poll(lab, voff_reg, soff, piped=False, dst=11, sleep=2):
    E(f"s_mov_b32 s{S_SPIN}, 0x40000")
    if piped:
        regs = (11, 9, 15)
        for r in regs[:2]:
            E(f"buffer_load_dword v{r}, v{voff_reg}, {sr(WS)}, {soff} offen sc1")
            E("s_sleep 2")
        E.label(lab)
        for i in range(3):
            E(f"buffer_load_dword v{regs[(i + 2) % 3]}, v{voff_reg}, {sr(WS)}, {soff} offen sc1")
            E("s_waitcnt vmcnt(2)")
            E(f"v_cmp_ne_u32 vcc, s{S_TAG}, v{regs[i]}")
            E("s_nop 4")
            E("s_cmp_eq_u64 vcc, 0")
            E(f"s_cbranch_scc1 {lab}_ok")
            E("s_sleep 1")
    else:
        E.label(lab)
        E(f"buffer_load_dword v{dst}, v{voff_reg}, {sr(WS)}, {soff} offen sc1")
        E("s_waitcnt vmcnt(0)")
        E(f"v_cmp_ne_u32 vcc, s{S_TAG}, v{dst}")
        E("s_nop 4")
        E("s_cmp_eq_u64 vcc, 0")
        E(f"s_cbranch_scc1 {lab}_ok")
        E(f"s_sleep {sleep}")
    E(f"s_sub_u32 s{S_SPIN}, s{S_SPIN}, 1")
    E(f"s_cmp_lg_u32 s{S_SPIN}, 0")
    E(f"s_cbranch_scc1 {lab}")
    E.label(lab + "_ok")


def get_tag(lab, sleep=4):
    E(f"s_mov_b32 s{S_SPIN}, 0x40000")
    E("v_mov_b32 v10, 0")
    E.label(lab)
    E(f"buffer_load_dword v11, v10, {sr(DBG)}, 0 offen sc1")
    E("s_waitcnt vmcnt(0)")
    E(f"v_readfirstlane_b32 s{S_TAG}, v11")
    E("s_nop 3")
    E(f"s_cmp_lg_u32 s{S_TAG}, 0")
    E(f"s_cbranch_scc1 {lab}_ok")
    E(f"s_sleep {sleep}")
    E(f"s_sub_u32 s{S_SPIN}, s{S_SPIN}, 1")
    E(f"s_cmp_lg_u32 s{S_SPIN}, 0")
    E(f"s_cbranch_scc1 {lab}")
    E.label(lab + "_ok")


def put_flag(soff_sgpr):
    E("s_mov_b64 exec, 1")
    E("v_mov_b32 v10, 0")
    E(f"v_mov_b32 v11, s{S_TAG}")
    E(f"buffer_store_dword v11, v10, {sr(WS)}, s{soff_sgpr} offen sc0 sc1")
    E("s_mov_b64 exec, -1")


def wg_store(lab, cond, val_lines, off):
    cond()
    E(f"s_cbranch_scc1 {lab}")
    val_lines()
    E("s_mov_b64 exec, 1")
    E(f"v_mov_b32 v10, {off}")
    E(f"v_mov_b32 v11, s{S_T0}")
    E(f"buffer_store_dword v11, v10, {sr(DBG)}, 0 offen sc0 sc1")
    E("s_mov_b64 exec, -1")
    E.label(lab)


def hint(lab="A_nohint", word=0, early=None):
    E(f"s_lshr_b32 s{S_T0}, s2, 3")
    E(f"s_or_b32 s{S_T0}, s{S_T0}, s{S_WAVE}")
    E(f"s_cbranch_scc1 {lab}")
    if (O.hint_step if early is None else early) < 16:
        E(f"v_readfirstlane_b32 s{S_TAG}, v14")
        E("s_nop 3")
        E(f"s_cmp_lg_u32 s{S_TAG}, 0")
        E(f"s_cbranch_scc1 {lab}_t_ok")
        get_tag(lab + "_t")
    E(f"s_lshl_b32 s{S_T1}, s2, 7")
    E(f"s_add_u32 s{S_T1}, s{S_T1}, {WS_FS + 1024 * word:#x}")
    put_flag(S_T1)
    E.label(lab)


def wait_start(lab, word=0, tag=True):
    if tag:
        get_tag(lab + "_t", 16)
    E("v_mov_b32 v10, 0")
    E(f"s_and_b32 s{S_T0}, s2, 7")
    if O.hswap:
        E(f"s_xor_b32 s{S_T0}, s{S_T0}, {O.hswap}")
    E(f"s_lshl_b32 s{S_T0}, s{S_T0}, 7")
    E(f"s_add_u32 s{S_T0}, s{S_T0}, {WS_FS + 1024 * word:#x}")
    poll(lab, 10, f"s{S_T0}", False, 11, O.sl_s)


def dpp_max(regs):
    for ctl in ("row_shr:1", "row_shr:2", "row_shr:4", "row_shr:8",
                "row_bcast:15 row_mask:0xa", "row_bcast:31 row_mask:0xc"):
        E("s_nop 1")
        for r in regs:
            m = "" if "row_mask" in ctl else " row_mask:0xf"
            E(f"v_max_f32_dpp v{r}, v{r}, v{r} {ctl}{m} bank_mask:0xf")


A_XS, A_WS0, A_WSZ = 8192, 24576, 12288


def a_dma_x(u, vm):
    E(f"s_add_u32 m0, s{S_W1K}, {(u % 3) * A_XS}")
    E(f"s_add_u32 s{S_T0}, s{S_XB}, s{S_XK}")
    nt = "nt " if ((O.nt0 & 1) and u < 2) or (O.nt0 & 4) else ""
    E(f"buffer_load_dwordx4 v1, {sr(X)}, s{S_T0} offen {nt}lds")
    E(f"s_add_u32 s{S_XK}, s{S_XK}, 128")
    E(f"s_and_b32 s{S_XK}, s{S_XK}, 1023")
    vm.issue(("x", u))


def a_dma_w(s, vm, vwave):
    base = A_WS0 + (s % 4) * A_WSZ
    nt = "nt " if ((O.nt0 & 1) and s < 2) or (O.nt0 & 4) else ""
    E(f"s_add_u32 m0, s{S_W1K}, {base}")
    E(f"s_add_u32 s{S_T0}, s{S_WB}, s{S_WK}")
    E(f"buffer_load_dwordx4 v2, {sr(W1)}, s{S_T0} offen {nt}lds")
    vm.issue(("w", s))
    if vwave == "both":
        E(f"s_cbranch_vccz A_pw{s}")
        E(f"s_add_u32 m0, s{S_W1K}, {base + 3072}")
        E("s_nop 0")
        E(f"buffer_load_dwordx4 v2, {sr(W1)}, s{S_T0} offen offset:1024 {nt}lds")
        E.label(f"A_pw{s}")
    elif vwave:
        E(f"s_add_u32 m0, s{S_W1K}, {base + 3072}")
        E("s_nop 0")
        E(f"buffer_load_dwordx4 v2, {sr(W1)}, s{S_T0} offen offset:1024 {nt}lds")
        vm.issue(("w", s))
    E(f"s_add_u32 s{S_WK}, s{S_WK}, 98304")
    E(f"s_cmp_eq_u32 s{S_WK}, {16 * 98304}")
    E(f"s_cselect_b32 s{S_WK}, 0, s{S_WK}")


def a_prologue():
    E(f"s_load_dwordx2 s[{X}:{X+1}], s[0:1], 0")
    E(f"s_load_dwordx2 s[{W1}:{W1+1}], s[0:1], 8")
    E(f"s_load_dwordx2 s[{WS}:{WS+1}], s[0:1], 80")
    E(f"s_load_dwordx2 s[{DBG}:{DBG+1}], s[0:1], 72")
    E("v_lshrrev_b32 v8, 6, v0")
    E("v_lshrrev_b32 v9, 3, v0")
    E("v_lshrrev_b32 v10, 4, v0")
    E(f"v_readfirstlane_b32 s{S_WAVE}, v8")
    E("v_xor_b32 v11, v10, v0")
    E("v_and_b32 v11, 7, v11")
    E("v_lshlrev_b32 v11, 4, v11")
    E("v_lshl_add_u32 v1, v9, 10, v11")
    srd(X, 0x200000)
    srd(W1, 0x180000)
    E(f"s_lshr_b32 s{S_T0}, s2, 3")
    E(f"s_and_b32 s{S_T1}, s{S_T0}, 7")
    E(f"s_lshr_b32 s{S_T0}, s{S_T0}, 3")
    E(f"s_and_b32 s{S_A}, s2, 6")
    E(f"s_lshl_b32 s{S_A}, s{S_A}, 2")
    E(f"s_add_u32 s{S_A}, s{S_A}, s{S_T1}")
    if O.pflip:
        E(f"s_andn2_b32 s{S_B}, 1, s2")
    else:
        E(f"s_and_b32 s{S_B}, s2, 1")
    E(f"s_lshl_b32 s{S_B}, s{S_B}, 2")
    E(f"s_add_u32 s{S_B}, s{S_B}, s{S_T0}")
    E(f"s_lshl_b32 s{S_T0}, s{S_T0}, 1")
    E(f"s_add_u32 s{S_T0}, s{S_T0}, s{S_T1}")
    E(f"s_and_b32 s{S_T0}, s{S_T0}, 7")
    E(f"s_lshl_b32 s{S_XK}, s{S_T0}, 7")
    E(f"s_mul_i32 s{S_WK}, s{S_T0}, {2 * 98304}")
    E(f"s_lshl_b32 s{S_XB}, s{S_A}, 16")
    E(f"s_lshl_b32 s{S_WB}, s{S_B}, 7")
    E(f"s_lshl_b32 s{S_W1K}, s{S_WAVE}, 10")
    E("v_and_b32 v9, 31, v9")
    E("v_mul_u32_u24 v9, 0xc00, v9")
    E("v_and_b32 v10, 1, v10")
    E("v_lshlrev_b32 v10, 2, v10")
    E("v_xor_b32 v10, v10, v0")
    E("v_and_b32 v10, 7, v10")
    E("v_lshl_add_u32 v9, v10, 4, v9")
    E("v_lshrrev_b32 v10, 8, v0")
    E("v_lshl_add_u32 v2, v10, 10, v9")
    E("v_cmp_eq_u32 vcc, 1, v10")
    E(f"s_setprio {O.prio_a_qkv}")
    E("s_waitcnt lgkmcnt(0)")
    stamp(8)
    vm = VM()
    a_dma_x(0, vm)
    a_dma_w(0, vm, "both")
    a_dma_w(1, vm, "both")
    a_dma_x(1, vm)
    a_dma_w(2, vm, "both")
    a_dma_w(3, vm, "both")
    a_dma_x(2, vm)
    stamp(9)
    srd(WS, WS_SIZE)
    srd(DBG, 256)


def a_qkv(vwave):
    p = "AV" if vwave else "AQ"
    if O.touch:
        E(f"s_load_dwordx2 s[{WU}:{WU+1}], s[0:1], {40 if vwave else 32}")
        E(f"s_load_dwordx2 s[{WD}:{WD+1}], s[0:1], 48")
        E(f"s_load_dwordx2 s[{WO}:{WO+1}], s[0:1], 16")
        srd(WU, 512 * 3584); srd(WD, 1792 * 1024); srd(WO, 512 * 1024)
    vm = VM()
    n = 2 if vwave else 1
    for t in (("x", 0), ("w", 0), ("w", 1), ("x", 1), ("w", 2), ("w", 3), ("x", 2)):
        vm.issue(t, n if t[0] == "w" else 1)
    E("v_and_b32 v8, 31, v0")
    if vwave:
        E("v_and_b32 v9, 0x13, v8")
        E("v_lshlrev_b32 v10, 1, v8")
        E("v_and_b32 v10, 8, v10")
        E("v_or_b32 v9, v9, v10")
        E("v_lshrrev_b32 v10, 1, v8")
        E("v_and_b32 v10, 4, v10")
        E("v_or_b32 v8, v9, v10")
    E("v_lshrrev_b32 v9, 1, v8")
    E("v_and_b32 v9, 7, v9")
    E("v_bfe_u32 v10, v0, 5, 1")
    E("v_xor_b32 v9, v9, v10")
    E("v_lshlrev_b32 v9, 4, v9")
    E("v_lshl_add_u32 v9, v8, 7, v9")
    E("v_bfe_u32 v8, v0, 6, 1")
    E("v_lshl_add_u32 v3, v8, 12, v9")
    for ks in (1, 2, 3):
        E(f"v_xor_b32 v{3+ks}, {32*ks}, v3")
    E("v_bfe_u32 v8, v0, 2, 2")
    E("v_lshl_add_u32 v9, v10, 3, v8")
    E("v_lshlrev_b32 v9, 7, v9")
    E("v_bfe_u32 v10, v0, 7, 1")
    E("v_lshrrev_b32 v8, 1, v8")
    E("v_xor_b32 v8, v8, v10")
    E("v_lshl_add_u32 v9, v8, 6, v9")
    E("v_bfe_u32 v8, v0, 4, 1")
    E("v_lshl_add_u32 v9, v8, 5, v9")
    E("v_and_b32 v8, 3, v0")
    E("v_lshl_add_u32 v9, v8, 3, v9")
    E(f"v_add_u32 v7, {A_WS0}, v9")
    segs = (2,) if vwave else (0, 1)
    if O.touch_gu:
        E(f"s_lshr_b32 s{S_T0}, s2, 3")
        E(f"s_lshl_b32 s{S_T0}, s{S_T0}, 2")
        E(f"s_and_b32 s{S_T1}, s{S_WAVE}, 3")
        E(f"s_add_u32 s{S_T0}, s{S_T0}, s{S_T1}")
        E(f"s_mul_i32 s{S_T0}, s{S_T0}, {2 * 3584}")
        E(f"s_bfe_u32 s{S_T1}, s2, 0x10002")
        E(f"s_mul_i32 s{S_T1}, s{S_T1}, 1792")
        E(f"s_add_u32 s{S_T0}, s{S_T0}, s{S_T1}")
        E("v_bfe_u32 v8, v0, 4, 1")
        E("v_mul_u32_u24 v8, 3584, v8")
        E("v_and_b32 v9, 15, v0")
        E("v_lshl_add_u32 v8, v9, 7, v8")
        E(f"v_add_u32 v98, s{S_T0}, v8")

    def reads(s):
        b = 16 + 24 * (s & 1)
        L = []
        for kk in (0, 1):
            L.append(f"ds_read_b128 {vr(b+4*kk,4)}, v{3 + 2*(s&1) + kk} offset:{((s//2) % 3) * A_XS}")
            for si, sg in enumerate(segs):
                for q in (0, 1):
                    off = (s % 4) * A_WSZ + sg * 4096 + kk * 2048 + q * 512
                    L.append(f"ds_read_b64_tr_b16 {vr(b+8+8*si+4*kk+2*q,2)}, v7 offset:{off}")
        return L

    def mfmas(s):
        b = 16 + 24 * (s & 1)
        L = []
        for kk in (0, 1):
            for si, sg in enumerate(segs):
                acc = vr(64 + 16 * si, 16)
                c = "0" if (s == 0 and kk == 0) else acc
                xf, wf = vr(b + 4*kk, 4), vr(b + 8 + 8*si + 4*kk, 4)
                if vwave:
                    L.append(f"v_mfma_f32_32x32x16_bf16 {acc}, {xf}, {wf}, {c}")
                else:
                    L.append(f"v_mfma_f32_32x32x16_bf16 {acc}, {wf}, {xf}, {c}")
        return L

    if not vwave:
        def tagval():
            E(f"s_memrealtime s[{S_T0}:{S_T1}]")
            E("s_waitcnt lgkmcnt(0)")
            E(f"s_or_b32 s{S_T0}, s{S_T0}, 1")
        wg_store("A_notag", lambda: E(f"s_or_b32 s{S_T0}, s2, s{S_WAVE}"), tagval, "0")
    E(f"s_waitcnt vmcnt({vm.need(('x',0),('w',0))}) lgkmcnt(0)")
    E("s_barrier")
    stamp(1)
    for x in reads(0):
        E(x)
    for s in range(16):
        M = mfmas(s)
        if s < 15:
            E(f"s_waitcnt vmcnt({vm.need(('x',(s+1)//2),('w',s+1))}) lgkmcnt(0)")
            E("s_barrier")
            E(M.pop(0))
            R = reads(s + 1)
            per = 3
            while R or M:
                for x in R[:per]:
                    E(x)
                R = R[per:]
                if M:
                    E(M.pop(0))
            if s + 4 <= 15:
                a_dma_w(s + 4, vm, vwave)
            if s % 2 == 1 and (s + 1) // 2 + 2 <= 7:
                a_dma_x((s + 1) // 2 + 2, vm)
            if s == 1 and not vwave:
                E("v_mov_b32 v10, 0")
                E(f"buffer_load_dword v14, v10, {sr(DBG)}, 0 offen sc1")
                vm.issue("tag")
            if s == 12 and O.touch_gu:
                E("s_mov_b32 exec_hi, 0")
                E(f"buffer_load_dword v15, v98, {sr(WU)}, 0 offen")
                E("s_mov_b32 exec_hi, -1")
                vm.issue("t")
        else:
            E("s_waitcnt lgkmcnt(0)")
            for x in M:
                E(x)
        if s == O.hint_step and not vwave:
            hint()
        if s == O.hint1 and not vwave:
            hint("A_nohint1", 1, O.hint1)
        if s == O.hint_step and O.a_exit:
            E("s_endpgm")
    stamp(2)
    E(f"s_and_b32 s{S_T0}, s{S_WAVE}, 1")
    E(f"s_lshl_b32 s{S_T1}, s{S_A}, 1")
    E(f"s_add_u32 s{S_T0}, s{S_T0}, s{S_T1}")
    E(f"s_bfe_u32 s{S_T1}, s{S_WAVE}, 0x10001")
    E(f"s_lshl_b32 s{S_T2}, s{S_B}, 1")
    E(f"s_add_u32 s{S_T1}, s{S_T1}, s{S_T2}")
    E("v_and_b32 v8, 63, v0")
    if vwave:
        E("v_and_b32 v9, 15, v8")
        E("v_lshlrev_b32 v9, 4, v9")
        E("v_bfe_u32 v10, v8, 5, 1")
        E("v_lshl_add_u32 v9, v10, 8, v9")
        E("v_bfe_u32 v10, v8, 4, 1")
        E("v_lshl_add_u32 v9, v10, 17, v9")
        E(f"s_lshl_b32 s{S_T1}, s{S_T1}, 18")
        E(f"s_lshl_b32 s{S_T0}, s{S_T0}, 11")
        E(f"s_add_u32 s{S_T0}, s{S_T0}, s{S_T1}")
        E("s_nop 7")
        for i in range(8):
            E(f"v_cvt_pk_bf16_f32 v{16+i}, v{64+2*i}, v{65+2*i}")
        E(f"buffer_store_dwordx4 v[16:19], v9, {sr(WS)}, s{S_T0} offen offset:1024 sc0 sc1")
        E(f"buffer_store_dwordx4 v[20:23], v9, {sr(WS)}, s{S_T0} offen offset:1536 sc0 sc1")
    else:
        E("v_lshlrev_b32 v9, 4, v8")
        E(f"s_lshl_b32 s{S_T2}, s{S_T1}, 18")
        E(f"s_lshl_b32 s{S_T3}, s{S_T0}, 11")
        E(f"s_add_u32 s{S_T2}, s{S_T2}, s{S_T3}")
        E(f"s_lshr_b32 s{S_T3}, s{S_T2}, 1")
        E(f"s_add_u32 s{S_T3}, s{S_T3}, {WS_Q:#x}")
        E(f"s_add_u32 s{S_C}, s{S_T2}, 0x20000")
        E(f"s_add_u32 s{S_D}, s{S_T3}, 0x10000")
        E(f"s_mov_b32 s{S_CNT}, {QSCALE:#x}")
        E("s_nop 7")
        for i in range(8):
            E(f"v_cvt_pk_bf16_f32 v{16+i}, v{80+2*i}, v{81+2*i}")
        E(f"buffer_store_dwordx4 v[16:19], v9, {sr(WS)}, s{S_T2} offen sc0 sc1")
        E(f"buffer_store_dwordx4 v[20:23], v9, {sr(WS)}, s{S_C} offen sc0 sc1")
        for i in range(16):
            E(f"v_mul_f32 v{64+i}, s{S_CNT}, v{64+i}")
        for i in range(8):
            E(f"v_cvt_pk_bf16_f32 v{24+i}, v{64+2*i}, v{65+2*i}")
        E(f"buffer_store_dwordx4 v[24:27], v9, {sr(WS)}, s{S_T3} offen sc0 sc1")
        E(f"buffer_store_dwordx4 v[28:31], v9, {sr(WS)}, s{S_D} offen sc0 sc1")
        for g in range(4):
            E(f"v_mul_f32 v{32+g}, v{64+8*g}, v{64+8*g}")
        for i in range(1, 8):
            for g in range(4):
                E(f"v_fmac_f32 v{32+g}, v{64+8*g+i}, v{64+8*g+i}")
        E("s_nop 1")
        E("v_permlane32_swap_b32 v32, v33")
        E("v_permlane32_swap_b32 v34, v35")
        E("s_nop 1")
        E("v_add_f32 v32, v32, v33")
        E("v_add_f32 v33, v34, v35")
        dpp_max((32, 33))
        E(f"s_lshl_b32 s{S_T0}, s{S_B}, 11")
        E(f"s_lshl_b32 s{S_T1}, s{S_A}, 6")
        E(f"s_add_u32 s{S_T0}, s{S_T0}, s{S_T1}")
        E(f"s_lshl_b32 s{S_T1}, s{S_WAVE}, 3")
        E(f"s_add_u32 s{S_T0}, s{S_T0}, s{S_T1}")
        E(f"s_add_u32 s{S_T0}, s{S_T0}, {WS_FKV + 16:#x}")
        E("v_mov_b32 v10, 0")
        E("s_brev_b64 exec, 1")
        E(f"buffer_store_dwordx2 v[32:33], v10, {sr(WS)}, s{S_T0} offen sc0 sc1")
        E("s_mov_b64 exec, -1")


S0, S1, OA, OB, QX, QY, K0, K1, V0, V1 = 16, 32, 48, 64, 80, 84, 88, 92, 96, 104
IDX, VK, VV, VD, VKB, VVB, VT, VL = 112, 113, 114, 115, 116, 117, 118, 119
KVS = 16384


def a_kv_dma():
    E(f"s_add_u32 m0, s{S_XK}, s{S_W1K}")
    E(f"s_add_u32 s{S_T0}, s{S_WB}, s{S_WK}")
    E(f"buffer_load_dwordx4 v{VD}, {sr(WS)}, s{S_T0} offen sc1 lds")
    E(f"buffer_load_dwordx4 v{VD}, {sr(WS)}, s{S_T0} offen offset:1024 sc1 lds")
    E(f"s_add_u32 s{S_WK}, s{S_WK}, {KVS}")
    E(f"s_and_b32 s{S_WK}, s{S_WK}, {8*KVS-1:#x}")
    E(f"s_add_u32 s{S_XK}, s{S_XK}, {KVS}")
    E(f"s_cmp_eq_u32 s{S_XK}, {5*KVS}")
    E(f"s_cselect_b32 s{S_XK}, 0, s{S_XK}")


def a_attention():
    E(f"s_bfe_u32 s{S_C}, s2, 0x20001")
    if O.pflip:
        E(f"s_and_b32 s{S_T0}, s2, 1")
    else:
        E(f"s_andn2_b32 s{S_T0}, 1, s2")
    E(f"s_lshl_b32 s{S_T0}, s{S_T0}, 2")
    E(f"s_add_u32 s{S_C}, s{S_C}, s{S_T0}")
    E(f"s_lshr_b32 s{S_T0}, s2, 6")
    if O.amap:
        E(f"s_and_b32 s{S_C}, s2, 6")
        E(f"s_bfe_u32 s{S_T1}, s2, 0x10005")
        E(f"s_add_u32 s{S_C}, s{S_C}, s{S_T1}")
        E(f"s_xor_b32 s{S_C}, s{S_C}, 4")
    E(f"s_lshl_b32 s{S_D}, s{S_C}, 2")
    E(f"s_add_u32 s{S_D}, s{S_D}, s{S_T0}")
    E(f"s_lshl_b32 s{S_T0}, s{S_B}, 11")
    E(f"s_lshl_b32 s{S_T1}, s{S_A}, 6")
    E(f"s_add_u32 s{S_T0}, s{S_T0}, s{S_T1}")
    E(f"s_add_u32 s{S_XB}, s{S_T0}, {WS_FKV:#x}")
    if O.amap:
        E(f"s_bfe_u32 s{S_A}, s2, 0x20003")
        E(f"s_and_b32 s{S_T0}, s2, 1")
        E(f"s_lshl_b32 s{S_T0}, s{S_T0}, 2")
        E(f"s_add_u32 s{S_A}, s{S_A}, s{S_T0}")
    else:
        E(f"s_bfe_u32 s{S_A}, s2, 0x30003")
    E("v_and_b32 v8, 63, v0")
    E(f"v_lshlrev_b32 v{VL}, 4, v8")
    E(f"s_lshl_b32 s{S_W1K}, s{S_WAVE}, 11")
    E(f"v_add_u32 v{VD}, s{S_W1K}, v{VL}")
    E(f"s_lshl_b32 s{S_WB}, s{S_D}, 17")
    if O.kv_rot:
        E(f"s_lshl_b32 s{S_WK}, s{S_A}, 14")
    else:
        E(f"s_mov_b32 s{S_WK}, 0")
    E(f"s_mov_b32 s{S_XK}, 0")
    E(f"s_lshl_b32 s{S_T1}, s{S_A}, 3")
    E(f"s_and_b32 s{S_T2}, s{S_WAVE}, 3")
    E(f"s_lshl_b32 s{S_T2}, s{S_T2}, 1")
    E(f"s_add_u32 s{S_B}, s{S_T1}, s{S_T2}")
    E(f"s_lshl_b32 s{S_T1}, s{S_B}, 10")
    E(f"s_lshl_b32 s{S_T2}, s{S_D}, 16")
    E(f"s_add_u32 s{S_T1}, s{S_T1}, s{S_T2}")
    E(f"s_add_u32 s4, s{S_T1}, {WS_Q:#x}")
    E(f"s_lshr_b32 s{S_T3}, s{S_WAVE}, 2")
    E(f"s_add_u32 s{S_T3}, s{S_B}, s{S_T3}")
    E(f"s_mul_i32 s5, s{S_T3}, 144")
    E(f"s_add_u32 s5, s5, s{S_D}")
    E("s_lshl_b32 s5, s5, 10")
    E(f"s_add_u32 s5, s5, {WS_HO + 112*1024:#x}")
    E(f"s_lshl_b32 s6, s{S_T3}, 11")
    E(f"s_lshl_b32 s{S_T2}, s{S_D}, 6")
    E(f"s_add_u32 s6, s6, s{S_T2}")
    E(f"s_add_u32 s6, s6, {WS_FO:#x}")
    E(f"s_add_u32 s7, s6, {WS_FO2 - WS_FO:#x}")
    E(f"s_lshr_b32 s{S_T0}, s{S_WAVE}, 2")
    E(f"s_lshl_b32 s{S_T0}, s{S_T0}, 11")
    E(f"v_add_u32 v{VKB}, s{S_T0}, v{VL}")
    E("v_and_b32 v9, 15, v8")
    E("v_lshlrev_b32 v9, 4, v9")
    E("v_bfe_u32 v10, v8, 5, 1")
    E("v_lshl_add_u32 v9, v10, 8, v9")
    E(f"s_add_u32 s{S_T0}, s{S_T0}, 1024")
    E(f"v_add_u32 v{VVB}, s{S_T0}, v9")
    E(f"v_mov_b32 v{VK}, v{VKB}")
    E(f"v_mov_b32 v{VV}, v{VVB}")
    E(f"v_mov_b32 v{IDX}, 0xdddddddd")
    E("v_and_b32 v9, 27, v8")
    E("v_cmp_eq_u32 vcc, 16, v9")
    E("v_mov_b32 v9, 0x3f803f80")
    E("s_nop 0")
    E(f"v_cndmask_b32 v{V0}, 0, v9, vcc")
    for i in range(1, 16):
        E(f"v_mov_b32 v{V0+i}, v{V0}")
    if O.touch:
        E(f"s_lshr_b32 s{S_T0}, s2, 3")
        E(f"s_lshl_b32 s{S_T0}, s{S_T0}, 3")
        E(f"s_add_u32 s{S_T0}, s{S_T0}, s{S_WAVE}")
        E(f"s_lshl_b32 s{S_T0}, s{S_T0}, 11")
        E(f"v_lshlrev_b32 v{VT}, 7, v8")
        E(f"v_add_u32 v{VT}, s{S_T0}, v{VT}")
    E(f"s_mov_b32 s{S_VM}, 0xffff")
    E(f"s_mov_b32 s{S_VM+1}, 0xffff")
    E(f"s_mov_b32 s{S_SLOT}, 0")
    E(f"s_mov_b32 s{S_CNT}, 0")
    for i in range(32):
        E(f"v_mov_b32 v{OA+i}, 0")
    for i in range(8, 16):
        E(f"v_mov_b32 v{S1+i}, 0")
    E("s_waitcnt vmcnt(0)")
    E("s_barrier")
    stamp(3)
    E(f"s_cmp_lg_u32 s{S_WAVE}, 0")
    E("s_cbranch_scc1 A_wait1")
    E(f"v_readfirstlane_b32 s{S_TAG}, v14")
    E("s_nop 3")
    E(f"s_cmp_lg_u32 s{S_TAG}, 0")
    E("s_cbranch_scc1 A_tag_ok")
    get_tag("A_tag")
    put_flag(S_XB)
    E("v_and_b32 v10, 31, v0")
    E("v_lshlrev_b32 v10, 6, v10")
    E(f"s_bfe_u32 s{S_T1}, s{S_D}, 0x10001")
    E(f"s_lshl_b32 s{S_T1}, s{S_T1}, 4")
    E(f"s_add_u32 s{S_T1}, s{S_T1}, 16")
    E("v_bfe_u32 v11, v0, 5, 1")
    E(f"v_mul_u32_u24 v11, s{S_T1}, v11")
    E("v_add_u32 v10, v10, v11")
    E(f"s_lshl_b32 s{S_T0}, s{S_C}, 11")
    E(f"s_add_u32 s{S_T0}, s{S_T0}, {WS_FKV:#x}")
    E(f"s_mov_b32 s{S_SPIN}, 0x40000")
    E.label("A_pollkv")
    E(f"buffer_load_dwordx4 v[4:7], v10, {sr(WS)}, s{S_T0} offen sc1")
    E("s_waitcnt vmcnt(0)")
    E(f"v_cmp_ne_u32 vcc, s{S_TAG}, v4")
    E("s_nop 4")
    E("s_cmp_eq_u32 vcc_lo, 0")
    E("s_cbranch_scc1 A_pollkv_ok")
    E(f"s_sleep {O.sl_kv}")
    E(f"s_sub_u32 s{S_SPIN}, s{S_SPIN}, 1")
    E(f"s_cmp_lg_u32 s{S_SPIN}, 0")
    E("s_cbranch_scc1 A_pollkv")
    E.label("A_pollkv_ok")
    E("s_barrier")
    E("s_branch A_go")
    E.label("A_wait1")
    E("s_barrier")
    E.label("A_go")
    stamp(4)
    a_kv_dma()
    E(f"buffer_load_dwordx4 {vr(QX,4)}, v{VL}, {sr(WS)}, s4 offen sc1")
    E(f"buffer_load_dwordx4 {vr(QY,4)}, v{VL}, {sr(WS)}, s4 offen offset:1024 sc1")
    for c in range(1, O.kv_first):
        a_kv_dma()
    E(f"s_cmp_lg_u32 s{S_WAVE}, 0")
    E("s_cbranch_scc1 A_nored")
    E("v_max_u32 v4, v4, v6")
    E("v_max_u32 v5, v5, v7")
    for ctl in ("row_shr:1", "row_shr:2", "row_shr:4", "row_shr:8", "row_bcast:15 row_mask:0xa"):
        E("s_nop 1")
        for r in (4, 5):
            m = "" if "row_mask" in ctl else " row_mask:0xf"
            E(f"v_max_u32_dpp v{r}, v{r}, v{r} {ctl}{m} bank_mask:0xf")
    E("s_nop 0")
    E("v_mul_f32 v4, v4, v5")
    E(f"v_mov_b32 v5, s{S_TAG}")
    E(f"v_mov_b32 v6, {5 * KVS - 8}")
    E("s_brev_b64 exec, 1")
    E("ds_write_b64 v6, v[4:5]")
    E("s_mov_b64 exec, -1")
    E("s_waitcnt lgkmcnt(0)")
    E.label("A_nored")
    E(f"s_setprio {O.prio_a_att}")
    E(f"s_waitcnt vmcnt({2*O.kv_first - (4 if O.pair and not O.kv_wait1 else 2)})")
    E("s_barrier")
    stamp(5)

    def vreads(dst, off):
        E(f"s_mov_b64 exec, s[{S_VM}:{S_VM+1}]")
        E(f"ds_read_b128 {vr(dst,4)}, v{VV} offset:{off}")
        E(f"ds_read_b128 {vr(dst+4,4)}, v{VV} offset:{off+512}")
        E("s_mov_b64 exec, -1")

    E(f"ds_read_b128 {vr(K0,4)}, v{VK}")
    vreads(V0, 0)
    E(f"v_mov_b32 v6, {5 * KVS - 8}")
    E("ds_read_b64 v[4:5], v6")
    if O.early_o:
        for i in range(4):
            E(f"v_mov_b32 v{120+i}, -1")
        E(f"buffer_store_dwordx4 v[120:123], v{VL}, {sr(WS)}, s5 offen sc0 sc1")
    E("s_waitcnt lgkmcnt(0)")
    E(f"v_readfirstlane_b32 s{S_T0}, v4")
    E(f"v_readfirstlane_b32 s{S_TAG}, v5")
    E(f"v_mfma_f32_32x32x16_bf16 {vr(S0,16)}, {vr(K0,4)}, {vr(QX,4)}, 0")
    E("s_nop 3")
    E(f"s_cmp_gt_u32 s{S_T0}, {THR2:#x}")
    if O.force_slow:
        E("s_branch A_slow")
    E("s_cbranch_scc1 A_slow")
    E("s_nop 7")

    def chunk_turn():
        E("s_waitcnt vmcnt(0)")
        E("s_barrier")
        E(f"s_cmp_gt_u32 s{S_CNT}, {7 - O.kv_first}")
        lab = f"A_nf{len(E.L)}"
        E(f"s_cbranch_scc1 {lab}")
        a_kv_dma()
        E.label(lab)
        if O.touch:
            E(f"s_sub_u32 s{S_T0}, s{S_CNT}, {O.wd_t0}")
            E(f"s_lshl_b32 s{S_T0}, s{S_T0}, 19")
            E("s_mov_b64 exec, 0xffff")
            E(f"s_cmp_gt_u32 s{S_T0}, {3 << 19}")
            E(f"s_cbranch_scc1 {lab}t")
            E(f"buffer_load_dword v15, v{VT}, {sr(WD)}, s{S_T0} offen")
            E.label(lab + "t")
            E(f"s_cmp_lg_u32 s{S_CNT}, {O.wo_t}")
            E(f"s_cbranch_scc1 {lab}u")
            E(f"buffer_load_dword v15, v{VT}, {sr(WO)}, 0 offen")
            E.label(lab + "u")
            E("s_mov_b64 exec, -1")
        E(f"s_add_u32 s{S_SLOT}, s{S_SLOT}, {KVS}")
        E(f"s_cmp_eq_u32 s{S_SLOT}, {5*KVS}")
        E(f"s_cselect_b32 s{S_SLOT}, 0, s{S_SLOT}")
        E(f"v_add_u32 v{VK}, s{S_SLOT}, v{VKB}")
        E(f"v_add_u32 v{VV}, s{S_SLOT}, v{VVB}")

    NT = 16 if O.pair else 8
    RF = {0: (3, 5, 7), 1: (3, 7, 11), 2: (5, 9, 13)}[O.rf_late]

    def next_slot():
        E(f"s_add_u32 s{S_SLOT}, s{S_SLOT}, {KVS}")
        E(f"s_cmp_eq_u32 s{S_SLOT}, {5*KVS}")
        E(f"s_cselect_b32 s{S_SLOT}, 0, s{S_SLOT}")
        E(f"v_add_u32 v{VK}, s{S_SLOT}, v{VKB}")
        E(f"v_add_u32 v{VV}, s{S_SLOT}, v{VVB}")

    def refill(lab, lo, hi):
        if lo == hi:
            E(f"s_cmp_lg_u32 s{S_CNT}, {lo}")
        else:
            E(f"s_cmp_gt_u32 s{S_CNT}, {hi}")
        E(f"s_cbranch_scc1 {lab}")
        a_kv_dma()
        E.label(lab)

    if O.bar_diag:
        E("s_mov_b32 s86, 0"); E("s_mov_b32 s88, 0")
    E.raw(".p2align 6")
    E.label("A_loop")
    ga, gb, gc = O.ga, O.ga + O.gb, O.ga + O.gb + O.gc
    for t in range(NT):
        blk, kt = t & 1, (t >> 1) & 3
        Sc, Sn = (S0, S1) if blk == 0 else (S1, S0)
        Oc, On = (OA, OB) if blk == 0 else (OB, OA)
        Vk, Vo = (V0, V1) if kt & 1 == 0 else (V1, V0)
        Kk, Ko = (K0, K1) if kt & 1 == 0 else (K1, K0)
        if not O.pair:
            if t == 6:
                chunk_turn()
        elif t == 6:
            if O.kv_wait1:
                E(f"s_cmp_lg_u32 s{S_CNT}, 0")
                E("s_cbranch_scc1 A_nb")
                E(f"s_waitcnt vmcnt({2 * len([x for x in RF[:5 - O.kv_first] if x < 6])})")
                E("s_barrier")
                E.label("A_nb")
            next_slot()
        elif t == 14:
            if O.bar_diag:
                E("s_memtime s[68:69]"); E("s_waitcnt lgkmcnt(0)"); E("s_sub_u32 s86, s86, s68")
            if O.kv_cnt:
                E(f"s_cmp_eq_u32 s{S_CNT}, 0")
                E("s_cbranch_scc1 A_w2")
                E("s_waitcnt vmcnt(0)")
                E.label("A_w2")
                E("s_waitcnt vmcnt(2)")
            else:
                E("s_waitcnt vmcnt(0)")
            if O.bar_diag:
                E("s_memtime s[68:69]"); E("s_waitcnt lgkmcnt(0)"); E("s_add_u32 s86, s86, s68"); E("s_sub_u32 s88, s88, s68")
            E("s_barrier")
            if O.bar_diag:
                E("s_memtime s[68:69]"); E("s_waitcnt lgkmcnt(0)"); E("s_add_u32 s88, s88, s68")
            next_slot()
        ex = lambda a, b: [E(f"v_exp_f32 v{Sc+i}, v{Sc+i}") for i in range(a, b)]
        ph = ((t + 2) % NT) * 8 // NT
        TAB = {5: [3]*6 + [2]*5 + [1]*3 + [0]*2, 6: [3]*2 + [2]*4 + [1]*5 + [0]*5, 7: [3]*5 + [2]*5 + [1]*4 + [0]*2}
        prf = lambda ph: {0: O.prio_a_att, 4: 3 - ph // 2, 2: O.prio_a_att + (1 if ph < 4 else 0), 3: O.prio_a_att + [2, 2, 2, 1, 1, 1, 0, 0][ph]}[O.bal]
        if O.bal >= 5:
            pr, prev = TAB[O.bal][(t + 2) % NT], TAB[O.bal][(t + 1) % NT]
        else:
            pr, prev = prf(ph), prf(((t + 1) % NT) * 8 // NT)
        if O.bal and not O.toggle and pr != prev:
            E(f"s_setprio {pr}")

        def mm(x):
            if O.toggle: E(f"s_setprio {O.toggle}")
            E(x)
            if O.toggle: E(f"s_setprio {pr}")
        ex(0, ga)
        mm(f"v_smfmac_f32_32x32x32_bf16 {vr(On,16)}, {vr((Vo if blk == 0 else Vk) + 4,4)}, {vr(Sn+8,8)}, v{IDX}")
        if blk == 0:
            off = ((kt + 1) % 4) * 4096
            E(f"ds_read_b128 {vr(Ko,4)}, v{VK} offset:{off}")
            vreads(Vo, off)
        ex(ga, gb)
        if blk == 1:
            E("s_waitcnt lgkmcnt(0)")
        mm(f"v_mfma_f32_32x32x16_bf16 {vr(Sn,16)}, {vr(Kk if blk == 0 else Ko,4)}, {vr(QY if blk == 0 else QX,4)}, 0")
        ex(gb, gc)
        mm(f"v_smfmac_f32_32x32x32_bf16 {vr(Oc,16)}, {vr(Vk,4)}, {vr(Sc,8)}, v{IDX}")
        if O.pair and t == 15:
            refill("A_rf0", 0, 1)
        if O.pair and t == 1:
            refill("A_rf1", 2, 2)
        if O.pair and O.kv_first < 5 and t in RF[:5 - O.kv_first]:
            refill(f"A_rf{t}", 0, 0)
        ex(gc, 16)
    E(f"s_add_u32 s{S_CNT}, s{S_CNT}, 1")
    E(f"s_cmp_lt_u32 s{S_CNT}, {O.att_iters * 8 // NT}")
    E("s_cbranch_scc1 A_loop")
    E("s_nop 1")
    E(f"v_smfmac_f32_32x32x32_bf16 {vr(OB,16)}, {vr(V1+4,4)}, {vr(S1+8,8)}, v{IDX}")
    E.label("A_fin")
    stamp(6)
    E("s_setprio 3")
    E(f"s_lshr_b32 s{S_T3}, s{S_WAVE}, 2")
    E(f"s_lshl_b32 s{S_T1}, s{S_WAVE}, 12")
    E(f"s_xor_b32 s{S_T2}, s{S_T1}, 16384")
    E(f"v_add_u32 v10, s{S_T1}, v{VL}")
    E(f"v_add_u32 v11, s{S_T2}, v{VL}")
    E("s_nop 5")
    if O.x_noex:
        E("s_branch A_noex")
    E(f"s_cmp_lg_u32 s{S_T3}, 0")
    E("s_cbranch_scc1 A_hi")
    for i in range(3):
        E(f"ds_write_b128 v10, {vr(OB+4*i,4)} offset:{1024*i}")
    E("s_branch A_x")
    E.label("A_hi")
    for i in range(3):
        E(f"ds_write_b128 v10, {vr(OA+4*i,4)} offset:{1024*i}")
    E("s_nop 1")
    for i in range(9):
        E(f"v_mov_b32 v{OA+i}, v{OB+i}")
    E.label("A_x")
    E("s_waitcnt lgkmcnt(0)")
    E("s_barrier")
    E(f"ds_read_b128 {vr(S0+8,4)}, v11 offset:2048")
    E(f"ds_read_b128 {vr(S0,4)}, v11")
    E(f"ds_read_b128 {vr(S0+4,4)}, v11 offset:1024")
    E("s_waitcnt lgkmcnt(2)")
    E.label("A_noex")
    E(f"v_add_f32 v12, v{OA+8}, v{S0+8}")
    E("v_rcp_f32 v12, v12")
    E("s_waitcnt lgkmcnt(0)")
    for i in range(8):
        E(f"v_add_f32 v{OA+i}, v{OA+i}, v{S0+i}")
    for i in range(8):
        E(f"v_mul_f32 v{OA+i}, v12, v{OA+i}")
    for i in range(4):
        E(f"v_cvt_pk_bf16_f32 v{S1+i}, v{OA+2*i}, v{OA+2*i+1}")
    E(f"buffer_store_dwordx4 {vr(S1,4)}, v{VL}, {sr(WS)}, s5 offen sc0 sc1")
    if O.early_o:
        put_flag(6)
        stamp(7)
        E("s_waitcnt vmcnt(0)")
        put_flag(7)
    else:
        E("s_waitcnt vmcnt(0)")
        put_flag(6)
        stamp(7)
    flush_stamps(range(10), "A_st")
    E("s_endpgm")

    E.label("A_slow")
    MX, MY, T, AL = 4, 5, 6, 7
    E(f"v_mov_b32 v{MX}, 0xff7fffff")
    E(f"v_mov_b32 v{MY}, 0xff7fffff")
    E.label("A_sloop")
    E(f"s_mov_b32 s{S_T3}, 0")
    E.label("A_stile")
    E(f"ds_read_b128 {vr(K0,4)}, v{VK}")
    vreads(V0, 0)
    E(f"v_add_u32 v{VK}, 4096, v{VK}")
    E(f"v_add_u32 v{VV}, 4096, v{VV}")
    E("s_waitcnt lgkmcnt(0)")
    for (M, Q, Oc) in ((MX, QX, OA), (MY, QY, OB)):
        E(f"v_mfma_f32_32x32x16_bf16 {vr(S0,16)}, {vr(K0,4)}, {vr(Q,4)}, 0")
        E("s_nop 15")
        E(f"v_max3_f32 v{T}, v{S0}, v{S0+1}, v{M}")
        for i in range(1, 8):
            E(f"v_max3_f32 v{T}, v{S0+2*i}, v{S0+2*i+1}, v{T}")
        E(f"v_mov_b32 v{AL}, v{T}")
        E("s_nop 1")
        E(f"v_permlane32_swap_b32 v{T}, v{AL}")
        E("s_nop 1")
        E(f"v_max_f32 v{T}, v{T}, v{AL}")
        E(f"v_sub_f32 v{AL}, v{M}, v{T}")
        E(f"v_exp_f32 v{AL}, v{AL}")
        E(f"v_mov_b32 v{M}, v{T}")
        for i in range(16):
            E(f"v_sub_f32 v{S0+i}, v{S0+i}, v{T}")
        for i in range(16):
            E(f"v_exp_f32 v{S0+i}, v{S0+i}")
        for i in range(9):
            E(f"v_mul_f32 v{Oc+i}, v{AL}, v{Oc+i}")
        E("s_nop 1")
        E(f"v_smfmac_f32_32x32x32_bf16 {vr(Oc,16)}, {vr(V0,4)}, {vr(S0,8)}, v{IDX}")
        E(f"v_smfmac_f32_32x32x32_bf16 {vr(Oc,16)}, {vr(V0+4,4)}, {vr(S0+8,8)}, v{IDX}")
    E(f"s_add_u32 s{S_T3}, s{S_T3}, 1")
    E(f"s_cmp_lt_u32 s{S_T3}, 4")
    E("s_cbranch_scc1 A_stile")
    chunk_turn()
    E(f"s_add_u32 s{S_CNT}, s{S_CNT}, 1")
    E(f"s_cmp_lt_u32 s{S_CNT}, 8")
    E("s_cbranch_scc1 A_sloop")
    E(f"s_lshl_b32 s{S_T1}, s{S_WAVE}, 10")
    E(f"s_add_u32 s{S_T1}, s{S_T1}, 65536")
    E(f"s_xor_b32 s{S_T2}, s{S_T1}, 4096")
    E(f"v_add_u32 v10, s{S_T1}, v{VL}")
    E(f"v_add_u32 v11, s{S_T2}, v{VL}")
    E(f"ds_write_b64 v10, v[{MX}:{MY}]")
    E("s_waitcnt lgkmcnt(0)")
    E("s_barrier")
    E(f"ds_read_b64 v[{T}:{AL}], v11")
    E("s_waitcnt lgkmcnt(0)")
    for (M, P, Oc) in ((MX, T, OA), (MY, AL, OB)):
        E(f"v_max_f32 v{P}, v{P}, v{M}")
        E(f"v_sub_f32 v{P}, v{M}, v{P}")
        E(f"v_exp_f32 v{P}, v{P}")
        E("s_nop 0")
        for i in range(9):
            E(f"v_mul_f32 v{Oc+i}, v{P}, v{Oc+i}")
    E("s_branch A_fin")


F_XS, F_WS0, F_WSZ = 16384, 32768, 16384
WROW = 3584


def f_dma_x(u, vm):
    E(f"s_add_u32 m0, s{S_W1K}, {(u % 2) * F_XS}")
    E(f"s_add_u32 s{S_T0}, s{S_XB}, s{S_XK}")
    E(f"buffer_load_dwordx4 v1, {sr(X)}, s{S_T0} offen lds")
    E(f"s_add_u32 m0, s{S_W1K}, {(u % 2) * F_XS + 8192}")
    E(f"s_add_u32 s{S_T0}, s{S_T0}, 0x10000")
    E(f"buffer_load_dwordx4 v1, {sr(X)}, s{S_T0} offen lds")
    E(f"s_add_u32 s{S_XK}, s{S_XK}, 128")
    E(f"s_and_b32 s{S_XK}, s{S_XK}, 1023")
    vm.issue(("x", u), 2)


def f_dma_w(s, vm):
    base = F_WS0 + (s % 3) * F_WSZ
    E(f"s_add_u32 m0, s{S_W1K}, {base}")
    E("s_nop 0")
    E(f"buffer_load_dwordx4 v2, {sr(W1)}, s{S_WK} offen lds")
    E(f"s_add_u32 m0, s{S_W1K}, {base + 8192}")
    E("s_nop 0")
    E(f"buffer_load_dwordx4 v3, {sr(WU)}, s{S_WK} offen lds")
    E(f"s_add_u32 s{S_WK}, s{S_WK}, {32 * WROW}")
    E(f"s_cmp_eq_u32 s{S_WK}, {512 * WROW}")
    E(f"s_cselect_b32 s{S_WK}, 0, s{S_WK}")
    vm.issue(("w", s), 2)


def f_prologue():
    E(f"s_cmp_ge_u32 s2, {256 if O.no_f else 512}")
    E("s_cbranch_scc1 L_end")
    if O.diag_span:
        E("s_memrealtime s[92:93]")
        E("s_waitcnt lgkmcnt(0)")
    stamp(0)
    E(f"s_load_dwordx2 s[{X}:{X+1}], s[0:1], 0")
    E(f"s_load_dwordx2 s[{W1}:{W1+1}], s[0:1], 32")
    E(f"s_load_dwordx2 s[{WU}:{WU+1}], s[0:1], 40")
    E(f"s_load_dwordx2 s[{WS}:{WS+1}], s[0:1], 80")
    E(f"s_load_dwordx2 s[{DBG}:{DBG+1}], s[0:1], 72")
    E(f"s_load_dwordx2 s[{WD}:{WD+1}], s[0:1], 48")
    E(f"s_load_dwordx2 s[{WO}:{WO+1}], s[0:1], 16")
    E(f"s_load_dwordx2 s[{OUT}:{OUT+1}], s[0:1], 64")
    E(f"s_load_dwordx2 s[{GW}:{GW+1}], s[0:1], 56")
    E("v_lshrrev_b32 v8, 6, v0")
    E(f"s_bfe_u32 s{S_C}, s2, 0x50003")
    E(f"v_readfirstlane_b32 s{S_WAVE}, v8")
    E("s_getpc_b64 s[4:5]")
    E.label("F_pc")
    E(f"s_add_u32 s4, s4, CODE_START - F_pc")
    E("s_addc_u32 s5, s5, -1")
    E("s_mov_b32 s6, CODE_END - CODE_START")
    E("s_mov_b32 s7, 0x20000")
    E(f"s_lshl_b32 s{S_T0}, s{S_C}, 10")
    E(f"s_lshl_b32 s{S_T1}, s{S_WAVE}, 7")
    E(f"s_add_u32 s{S_T0}, s{S_T0}, s{S_T1}")
    E("v_mov_b32 v9, 0")
    E("s_mov_b64 exec, 1")
    E(f"buffer_load_dword v120, v9, s[4:7], s{S_T0} offen")
    E("s_mov_b64 exec, -1")
    E("s_branch F_main")


L16, VB_, VW_, RB, RW, RB2, RW2, RWO, HT, GV, OUTA, EX0, EX1, RO, PFH, PFO = range(48, 64)
S_RT, S_DL, S_DB, S_HT, S_G, S_OL, S_OS, S_OUT, S_PH, S_PO, S_H0, S_H1, S_FL = range(70, 83) if False else (8, 9, 10, 11, 67, 96, 97, 98, 99, 100, 101, 63, 62)


def g2_setup():
    E(f"s_and_b32 s{S_RT}, s2, 7")
    if O.rswap:
        E(f"s_xor_b32 s{S_RT}, s{S_RT}, {O.rswap}")
    if O.rperm == 1:
        E(f"s_add_u32 s{S_T0}, s2, 1")
        E(f"s_and_b32 s{S_T0}, s{S_T0}, 3")
        E(f"s_lshl_b32 s{S_T0}, s{S_T0}, 1")
        E(f"s_lshr_b32 s{S_RT}, s{S_RT}, 2")
        E(f"s_add_u32 s{S_RT}, s{S_RT}, s{S_T0}")
    if O.rperm == 2:
        tab = [4, 0, 6, 2, 5, 1, 7, 3]
        word = sum(v << (4 * i) for i, v in enumerate(tab))
        E(f"s_lshl_b32 s{S_T0}, s{S_RT}, 2")
        E(f"s_lshr_b32 s{S_RT}, {word:#x}, s{S_T0}")
        E(f"s_and_b32 s{S_RT}, s{S_RT}, 7")
    E(f"s_lshl_b32 s{S_RT}, s{S_RT}, 2")
    E(f"s_and_b32 s{S_T1}, s{S_C}, 3")
    E(f"s_add_u32 s{S_RT}, s{S_RT}, s{S_T1}")
    E(f"s_lshr_b32 s{S_B}, s{S_C}, 2")
    E(f"s_mul_i32 s{S_DB}, s{S_RT}, {288 * 1024}")
    E(f"s_add_u32 s{S_DB}, s{S_DB}, {WS_HO:#x}")
    E(f"v_and_b32 v{L16}, 63, v0")
    E(f"v_lshlrev_b32 v{L16}, 4, v{L16}")
    E(f"s_and_b32 s{S_T0}, s{S_WAVE}, 1")
    E(f"s_lshr_b32 s{S_T2}, s{S_WAVE}, 1")
    E(f"s_mul_i32 s{S_T1}, s{S_T0}, 144")
    E(f"s_add_u32 s{S_T1}, s{S_T1}, s{S_T2}")
    E(f"s_lshl_b32 s{S_T1}, s{S_T1}, 10")
    E(f"v_add_u32 v{VB_}, s{S_T1}, v{L16}")
    E(f"s_lshl_b32 s{S_T1}, s{S_T0}, 2")
    E(f"s_add_u32 s{S_T1}, s{S_T1}, s{S_T2}")
    E(f"s_lshl_b32 s{S_DL}, s{S_T1}, 10")
    E("v_bfe_u32 v12, v0, 4, 1")
    E("v_lshlrev_b32 v13, 2, v12")
    E("v_xor_b32 v13, v13, v0")
    E("v_and_b32 v13, 7, v13")
    E("v_lshlrev_b32 v13, 4, v13")
    E("v_lshl_add_u32 v13, v9, 10, v13")
    E(f"s_lshl_b32 s{S_T1}, s{S_B}, 7")
    E(f"v_add_u32 v{VW_}, s{S_T1}, v13")
    E(f"s_lshr_b32 s{S_T3}, s{S_WAVE}, 2")
    E(f"s_lshl_b32 s{S_T1}, s{S_T0}, 12")
    E(f"s_lshl_b32 s{S_T2}, s{S_T3}, 11")
    E(f"s_add_u32 s{S_T1}, s{S_T1}, s{S_T2}")
    E(f"v_add_u32 v{RB}, s{S_T1}, v{L16}")
    E("v_bfe_u32 v13, v0, 2, 2")
    E("v_bfe_u32 v14, v0, 5, 1")
    E("v_lshl_add_u32 v15, v14, 2, v13")
    E("v_lshlrev_b32 v15, 7, v15")
    E("v_lshrrev_b32 v13, 1, v13")
    E(f"v_bfe_u32 v{HT}, v0, 7, 1")
    E(f"v_xor_b32 v13, v13, v{HT}")
    E("v_lshl_add_u32 v15, v13, 6, v15")
    E("v_lshl_add_u32 v15, v12, 5, v15")
    E("v_and_b32 v13, 3, v0")
    E("v_lshl_add_u32 v15, v13, 3, v15")
    E(f"s_lshl_b32 s{S_T1}, s{S_T3}, 12")
    E(f"s_add_u32 s{S_T1}, s{S_T1}, 8192")
    E(f"v_add_u32 v{RW}, s{S_T1}, v15")
    E(f"v_add_u32 v{RB2}, 0x10000, v{RB}")
    E(f"v_add_u32 v{RW2}, 0x10000, v{RW}")
    E(f"s_lshl_b32 s{S_T1}, s{S_T3}, 15")
    E(f"v_add_u32 v{RWO}, s{S_T1}, v15")
    E("v_and_b32 v13, 31, v0")
    E("v_bfe_u32 v15, v0, 6, 1")
    E("v_lshl_add_u32 v13, v15, 5, v13")
    E(f"v_lshlrev_b32 v{GV}, 2, v13")
    E("v_lshlrev_b32 v13, 10, v13")
    E("v_lshl_add_u32 v13, v14, 4, v13")
    E(f"v_lshl_add_u32 v13, v{HT}, 6, v13")
    E(f"s_lshl_b32 s{S_T1}, s{S_T3}, 5")
    E(f"v_add_u32 v{OUTA}, s{S_T1}, v13")
    E(f"s_lshl_b32 s{S_OUT}, s{S_RT}, 16")
    E(f"s_lshl_b32 s{S_T1}, s{S_B}, 7")
    E(f"s_add_u32 s{S_OUT}, s{S_OUT}, s{S_T1}")
    E(f"s_lshl_b32 s{S_G}, s{S_RT}, 8")
    E(f"s_add_u32 s{S_G}, s{S_G}, {WS_G:#x}")
    E(f"s_lshl_b32 s{S_T1}, s{S_B}, 3")
    E(f"s_add_u32 s{S_T1}, s{S_T1}, s{S_WAVE}")
    E(f"s_mul_i32 s{S_T1}, s{S_T1}, 1792")
    E(f"s_add_u32 s{S_HT}, s{S_T1}, s{S_DB}")
    E("v_and_b32 v13, 15, v0")
    E(f"v_lshlrev_b32 v{PFH}, 6, v13")
    E("v_lshlrev_b32 v13, 7, v13")
    E(f"v_mul_u32_u24 v12, {144 * 1024}, v12")
    E(f"v_add_u32 v{HT}, v13, v12")
    E(f"s_lshl_b32 s{S_T1}, s{S_WAVE}, 11")
    E(f"s_add_u32 s{S_T1}, s{S_T1}, 65536")
    E(f"s_xor_b32 s{S_T2}, s{S_T1}, 8192")
    E(f"v_add_u32 v{EX0}, s{S_T1}, v{L16}")
    E(f"v_add_u32 v{EX1}, s{S_T2}, v{L16}")
    E(f"s_bfe_u32 s{S_T2}, s{S_WAVE}, 0x10001")
    E(f"s_lshl_b32 s{S_T2}, s{S_T2}, 4")
    E(f"s_add_u32 s{S_T2}, s{S_T2}, s{S_T3}")
    E(f"s_lshl_b32 s{S_OL}, s{S_T0}, 5")
    E(f"s_add_u32 s{S_OL}, s{S_OL}, s{S_T2}")
    E(f"s_lshl_b32 s{S_OL}, s{S_OL}, 10")
    E(f"s_mul_i32 s{S_T1}, s{S_T0}, 144")
    E(f"s_add_u32 s{S_T1}, s{S_T1}, s{S_T2}")
    E(f"s_add_u32 s{S_T1}, s{S_T1}, 112")
    E(f"s_lshl_b32 s{S_T1}, s{S_T1}, 10")
    E(f"s_add_u32 s{S_OS}, s{S_DB}, s{S_T1}")
    E(f"s_lshl_b32 s{S_T0}, s{S_T0}, 15")
    E(f"s_lshl_b32 s{S_T3}, s{S_T3}, 14")
    E(f"s_add_u32 s{S_T0}, s{S_T0}, s{S_T3}")
    E(f"v_add_u32 v{RO}, s{S_T0}, v{L16}")
    E(f"v_lshlrev_b32 v{PFO}, 6, v0")
    E(f"s_lshr_b32 s{S_PH}, s{S_RT}, 1")
    E(f"s_lshl_b32 s{S_PH}, s{S_PH}, 10")
    E(f"s_add_u32 s{S_PH}, s{S_PH}, {WS_FH:#x}")
    E(f"s_lshl_b32 s{S_PO}, s{S_RT}, 12")
    E(f"s_add_u32 s{S_PO}, s{S_PO}, {WS_FO:#x}")


def f_main():
    E.raw("; ---- FFN role: gate/up projection + SiLU, gate, down projection, output projection, gated mix")
    E.label("F_main")
    srd(X, 0x200000); srd(W1, 512 * WROW); srd(WU, 512 * WROW); srd(WS, WS_SIZE); srd(DBG, 256)
    srd(WD, 1792 * 1024); srd(WO, 512 * 1024); srd(OUT, 0x200000); srd(GW, 1024)
    E(f"s_lshl_b32 s{S_W1K}, s{S_WAVE}, 10")
    E(f"s_setprio {O.prio_f if O.prio_up < 0 else O.prio_up}")
    E("v_lshrrev_b32 v9, 3, v0")
    E("v_lshrrev_b32 v10, 4, v0")
    E("v_xor_b32 v11, v10, v0")
    E("v_and_b32 v11, 7, v11")
    E("v_lshlrev_b32 v11, 4, v11")
    E("v_lshl_add_u32 v1, v9, 10, v11")
    g2_setup()
    E("s_waitcnt lgkmcnt(0)")
    S_PAR, S_FA, S_B0, S_GO = S_D - 0, S_CNT, S_WB, S_VM
    S_PAR = S_VM + 1
    if O.flip:
        E(f"s_andn2_b32 s{S_PAR}, 1, s2")
    else:
        E(f"s_and_b32 s{S_PAR}, s2, 1")
    E(f"s_lshr_b32 s{S_T1}, s{S_C}, 2")
    E(f"s_lshl_b32 s{S_FA}, s{S_T1}, 3")
    E(f"s_mul_i32 s{S_T2}, s{S_T1}, 6")
    E(f"s_add_u32 s{S_T2}, s{S_T2}, 64")
    E(f"s_and_b32 s{S_T3}, s{S_T2}, 2")
    E(f"s_and_b32 s{S_T2}, s{S_T2}, 0xfc")
    E(f"s_cmp_eq_u32 s{S_PAR}, 1")
    E(f"s_cselect_b32 s{S_FA}, s{S_T2}, s{S_FA}")
    E(f"s_cselect_b32 s{S_T3}, s{S_T3}, 0")
    E(f"s_and_b32 s{S_B0}, s{S_WAVE}, 6")
    E(f"s_cmp_eq_u32 s{S_B0}, 6")
    E(f"s_cselect_b32 s{S_T2}, s{S_PAR}, 0")
    E(f"s_sub_u32 s{S_B0}, s{S_B0}, s{S_T2}")
    E(f"s_add_u32 s{S_B0}, s{S_B0}, s{S_T3}")
    E(f"s_lshl_b32 s{S_B}, s{S_PAR}, 3")
    E(f"s_add_u32 s{S_B}, s{S_B}, s{S_T1}")
    E(f"s_and_b32 s{S_T0}, s{S_C}, 3")
    E(f"s_and_b32 s{S_A}, s2, 6")
    E(f"s_lshl_b32 s{S_A}, s{S_A}, 1")
    E(f"s_add_u32 s{S_A}, s{S_A}, s{S_T0}")
    E(f"s_mov_b32 s{S_XK}, 0")
    E(f"s_mov_b32 s{S_WK}, 0")
    E(f"s_lshl_b32 s{S_XB}, s{S_A}, 17")
    E(f"s_lshl_b32 s{S_T1}, s{S_T1}, 2")
    E(f"s_and_b32 s{S_T0}, s{S_WAVE}, 3")
    E(f"s_add_u32 s{S_T1}, s{S_T1}, s{S_T0}")
    E(f"s_lshl_b32 s{S_T1}, s{S_T1}, 12")
    E(f"s_add_u32 s{S_GO}, s{S_T1}, s{S_XB}")
    E(f"s_lshl_b32 s{S_T0}, s{S_C}, 2")
    E(f"s_and_b32 s{S_T1}, s{S_WAVE}, 3")
    E(f"s_add_u32 s{S_T0}, s{S_T0}, s{S_T1}")
    E(f"s_mul_i32 s{S_T0}, s{S_T0}, {WROW}")
    E(f"s_lshl_b32 s{S_T1}, s{S_PAR}, 11")
    E(f"s_add_u32 s{S_T0}, s{S_T0}, s{S_T1}")
    E(f"s_mov_b32 s{S_T2}, {128 * WROW}")
    E("v_bfe_u32 v12, v0, 4, 1")
    E(f"v_mul_u32_u24 v12, s{S_T2}, v12")
    E("v_and_b32 v13, 15, v0")
    E("v_lshl_add_u32 v12, v13, 7, v12")
    E(f"v_add_u32 v13, s{S_T0}, v12")
    E(f"s_cmp_lt_u32 s{S_WAVE}, 4")
    E(f"s_cselect_b32 s4, s{W1}, s{WU}")
    E(f"s_cselect_b32 s5, s{W1+1}, s{WU+1}")
    E(f"s_mov_b32 s6, {512 * WROW}")
    E("s_mov_b32 s7, 0x20000")
    E(f"s_cmp_eq_u32 s{S_PAR}, 1")
    E(f"s_cselect_b32 s{S_T3}, 0x0fff0fff, -1")
    E("s_mov_b64 exec, 1")
    E(f"buffer_load_dword v127, v13, s[4:7], 0 offen")
    E("s_waitcnt vmcnt(0)")
    E(f"s_mov_b32 exec_lo, s{S_T3}")
    E(f"buffer_load_dword v127, v13, s[4:7], 0 offen")
    E("s_mov_b64 exec, -1")
    E(f"v_mul_u32_u24 v9, {WROW}, v10")
    E("v_bfe_u32 v11, v0, 1, 3")
    E("v_and_b32 v10, 3, v10")
    E("v_xor_b32 v11, v11, v10")
    E("v_lshl_add_u32 v9, v11, 5, v9")
    E("v_and_b32 v11, 1, v0")
    E("v_lshl_add_u32 v9, v11, 4, v9")
    E(f"s_lshl_b32 s{S_T0}, s{S_FA}, 5")
    E(f"v_add_u32 v2, s{S_T0}, v9")
    E("v_xor_b32 v3, 128, v9")
    E(f"v_add_u32 v3, s{S_T0}, v3")
    E("v_and_b32 v8, 31, v0")
    E("v_lshrrev_b32 v9, 1, v8")
    E("v_and_b32 v9, 7, v9")
    E("v_bfe_u32 v10, v0, 5, 1")
    E("v_xor_b32 v9, v9, v10")
    E("v_lshlrev_b32 v9, 4, v9")
    E("v_lshl_add_u32 v9, v8, 7, v9")
    E("v_bfe_u32 v8, v0, 6, 1")
    E("v_lshl_add_u32 v4, v8, 13, v9")
    for ks in (1, 2, 3):
        E(f"v_xor_b32 v{4+ks}, {32*ks}, v4")
    E("v_bfe_u32 v8, v0, 2, 2")
    E("v_lshl_add_u32 v9, v10, 3, v8")
    E("v_lshlrev_b32 v9, 8, v9")
    E("v_bfe_u32 v10, v0, 4, 1")
    E("v_lshl_add_u32 v9, v10, 13, v9")
    E("v_lshlrev_b32 v10, 2, v10")
    E("v_xor_b32 v8, v8, v10")
    E(f"v_xor_b32 v8, s{S_B0}, v8")
    E("v_lshl_add_u32 v9, v8, 5, v9")
    E("v_and_b32 v8, 3, v0")
    E("v_lshl_add_u32 v9, v8, 3, v9")
    E(f"v_add_u32 v8, {F_WS0}, v9")
    E("v_xor_b32 v9, 32, v8")
    E(f"s_and_b32 s{S_T0}, s{S_WAVE}, 1")
    E(f"s_lshl_b32 s{S_T0}, s{S_T0}, 1")
    E(f"s_lshl_b32 s{S_T1}, s{S_A}, 2")
    E(f"s_add_u32 s{S_T0}, s{S_T0}, s{S_T1}")
    E(f"s_mul_i32 s{S_T0}, s{S_T0}, 144")
    E(f"s_add_u32 s{S_T0}, s{S_T0}, s{S_FA}")
    E(f"s_add_u32 s{S_T0}, s{S_T0}, s{S_B0}")
    E(f"s_lshl_b32 s{S_T0}, s{S_T0}, 10")
    E(f"s_add_u32 s{S_H0}, s{S_T0}, {WS_HO:#x}")
    E(f"s_add_u32 s{S_H1}, s{S_H0}, {144 * 1024}")
    E(f"s_lshl_b32 s{S_T0}, s{S_A}, 10")
    E(f"s_lshl_b32 s{S_T1}, s{S_B}, 6")
    E(f"s_add_u32 s{S_T0}, s{S_T0}, s{S_T1}")
    E(f"s_add_u32 s{S_FL}, s{S_T0}, {WS_FH:#x}")
    E("v_mov_b32 v12, 1.0")
    E(f"v_lshlrev_b32 v13, 3, v{L16}")
    E("v_and_b32 v14, 0xf0, v48")
    E("v_bfe_u32 v15, v0, 4, 2")
    E(f"s_cmp_lg_u32 s{S_WAVE}, 0")
    E("s_cbranch_scc1 F_go")
    wait_start("F_tag", 1)
    E.label("F_go")
    E("s_barrier")
    vm0 = VM()
    f_dma_x(0, vm0); f_dma_w(0, vm0); f_dma_w(1, vm0); f_dma_x(1, vm0); f_dma_w(2, vm0)
    stamp(1)
    prio = lambda s: O.prio_boost if (O.boost_mask >> s) & 1 else O.prio_f
    E(f"s_setprio {prio(0)}")
    E(f"s_waitcnt vmcnt({vm0.need(('x',0),('w',0))})")
    E("s_barrier")
    stamp(2)
    E(f"s_lshr_b32 s{S_T0}, s{S_WAVE}, 2")
    E(f"s_and_b32 s{S_T0}, s{S_T0}, s{S_PAR}")
    E("s_cbranch_scc1 F_one")

    def up(nb):
        vm = VM()
        vm.q = list(vm0.q)

        def reads(s, kk):
            b = 16 + 16 * kk
            u = s // 2
            L = []
            for i in (0, 1):
                L.append(f"ds_read_b128 {vr(b+4*i,4)}, v{4 + 2*(s&1) + kk} offset:{(u % 2) * F_XS + i * 4096}")
                if i < nb:
                    for q in (0, 1):
                        L.append(f"ds_read_b64_tr_b16 {vr(b+8+4*i+2*q,2)}, v{8+i} offset:{(s % 3) * F_WSZ + kk * 4096 + q * 1024}")
            return L

        def mfmas(s, kk):
            b = 16 + 16 * kk
            L = []
            for rbk, bb in ((0, 0), (0, 1), (1, 1), (1, 0)):
                if bb < nb:
                    acc = vr(64 + 16 * (2 * rbk + bb), 16)
                    c = "0" if (s == 0 and kk == 0) else acc
                    L.append(f"v_mfma_f32_32x32x16_bf16 {acc}, {vr(b+8+4*bb,4)}, {vr(b+4*rbk,4)}, {c}")
            return L

        [E(x) for x in reads(0, 0)]
        for s in range(16):
            if s and prio(s) != prio(s - 1):
                E(f"s_setprio {prio(s)}")
            M, R = mfmas(s, 0), reads(s, 1)
            E("s_waitcnt lgkmcnt(0)")
            E(M[0]); [E(x) for x in R[:3]]; E(M[1]); [E(x) for x in R[3:]]; [E(x) for x in M[2:]]
            M = mfmas(s, 1)
            if s == 15:
                E("s_waitcnt lgkmcnt(0)")
                [E(x) for x in M]
                break
            E(f"s_waitcnt vmcnt({vm.need(('x',(s+1)//2),('w',s+1))}) lgkmcnt(0)")
            E("s_barrier")
            R = reads(s + 1, 0)
            E(M[0]); [E(x) for x in R[:3]]; E(M[1]); [E(x) for x in R[3:]]; [E(x) for x in M[2:3]]
            if s + 3 <= 15:
                f_dma_w(s + 3, vm)
            [E(x) for x in M[3:]]
            if s % 2 == 1 and (s + 1) // 2 + 1 <= 7:
                f_dma_x((s + 1) // 2 + 1, vm)
            if s in (O.wd_step, O.wo_step):
                wd = s == O.wd_step
                E(f"s_lshl_b32 s{S_T0}, s{S_C}, 3")
                E(f"s_add_u32 s{S_T0}, s{S_T0}, s{S_WAVE}")
                E(f"s_mul_i32 s{S_T0}, s{S_T0}, {7168 if wd else 2048}")
                E("s_mov_b32 exec_hi, 0xffffff" if wd else "s_mov_b64 exec, 0xffff")
                E(f"buffer_load_dword v11, v13, {sr(WD if wd else WO)}, s{S_T0} offen")
                E("s_mov_b64 exec, -1")
                vm.issue("wd")
            if s == O.g_step and nb == 1:
                assert max(O.wd_step, O.wo_step % 99) <= O.g_step and O.g_step >= 13
                E("v_lshl_add_u32 v10, v15, 10, v14")
                for i in range(4):
                    E(f"buffer_load_dwordx4 {vr(80+4*i,4)}, v10, {sr(X)}, s{S_GO} offen offset:{256*i}")
                for i in range(4):
                    E(f"buffer_load_dwordx4 {vr(112+4*i,4)}, v14, {sr(GW)}, 0 offen offset:{256*i}")
                vm.issue("g", 8)
            if s in (3, 7, 11) and not O.dn_stamps:
                stamp(10 + s // 4)
        stamp(3)
        E(f"s_setprio {O.prio_silu}")
        E("s_barrier")
        wo_stage()
        E(f"s_mov_b32 s{S_T2}, {NLOG2E:#x}")
        E(f"s_mov_b32 s{S_T3}, {NLOG2E:#x}")
        for tl in range(4):
            if (tl & 1) >= nb:
                continue
            a = 64 + 16 * tl
            t = 16 + 8 * (tl & 1)
            pk = 32 + 4 * tl
            for i in range(4):
                E(f"v_pk_mul_f32 {vr(t+2*i,2)}, {vr(a+2*i,2)}, s[{S_T2}:{S_T3}]")
            for i in range(8):
                E(f"v_exp_f32 v{t+i}, v{t+i}")
            for i in range(4):
                E(f"v_pk_mul_f32 {vr(a+2*i,2)}, {vr(a+2*i,2)}, {vr(a+8+2*i,2)}")
            for i in range(4):
                E(f"v_pk_add_f32 {vr(t+2*i,2)}, {vr(t+2*i,2)}, v[12:13] op_sel_hi:[1,0]")
            for i in range(8):
                E(f"v_rcp_f32 v{t+i}, v{t+i}")
            E("s_nop 0")
            for i in range(4):
                E(f"v_pk_mul_f32 {vr(a+2*i,2)}, {vr(a+2*i,2)}, {vr(t+2*i,2)}")
            for i in range(4):
                E(f"v_cvt_pk_bf16_f32 v{pk+i}, v{a+2*i}, v{a+2*i+1}")
            E(f"buffer_store_dwordx4 {vr(pk,4)}, v{L16}, {sr(WS)}, s{(S_H0, S_H1)[tl >> 1]} offen offset:{(tl & 1) * 1024} sc0 sc1")
        if nb == 1:
            E("v_mov_b32 v12, 0")
            E("v_mov_b32 v13, 0")
            E("s_waitcnt vmcnt(10)")
            for i in range(16):
                E(f"v_dot2_f32_bf16 v{12 + (i & 1)}, v{80+i}, v{112+i}, v{12 + (i & 1)}")
            E("s_nop 2")
            E("v_add_f32 v12, v12, v13")
            for ctl in ("quad_perm:[1,0,3,2]", "quad_perm:[2,3,0,1]", "row_half_mirror", "row_mirror"):
                E("s_nop 1")
                E(f"v_add_f32_dpp v12, v12, v12 {ctl} row_mask:0xf bank_mask:0xf")
            E(f"v_mul_f32 v12, {NLOG2E:#x}, v12")
            E("v_exp_f32 v12, v12")
            E(f"s_lshr_b32 s{S_T0}, s{S_GO}, 8")
            E("v_add_f32 v12, 1.0, v12")
            E("v_rcp_f32 v12, v12")
            E("v_lshlrev_b32 v11, 2, v15")
            E(f"s_add_u32 s{S_T0}, s{S_T0}, {WS_G:#x}")
            E("s_mov_b32 exec_lo, 0x10001")
            E("s_mov_b32 exec_hi, 0x10001")
            E(f"buffer_store_dword v12, v11, {sr(WS)}, s{S_T0} offen sc0 sc1")
            E("s_mov_b64 exec, -1")

    up(2)
    E("s_branch F_pub")
    E.label("F_one")
    up(1)
    E.label("F_pub")
    E("s_waitcnt vmcnt(0)")
    E.label("F_pub2")
    E("s_barrier")
    stamp(4)
    E(f"s_cmp_lg_u32 s{S_WAVE}, 0")
    E("s_cbranch_scc1 F_wait2")
    put_flag(S_FL)
    E("s_nop 0")
    E.label("F_wait2")
    if O.wo_late:
        E("s_waitcnt vmcnt(0)")
        E("s_barrier")
    wf = lambda k: (4 * k) if k < 4 else (80 + 4 * (k - 4))
    for k in range(16):
        for q in (0, 1):
            E(f"ds_read_b64_tr_b16 {vr(wf(k) + 2*q, 2)}, v{RWO} offset:{k * 2048 + q * 1024}")
    NS = O.dn_ns
    E("s_waitcnt lgkmcnt(0)")
    E("s_barrier")
    for st in range(NS):
        E(f"s_add_u32 m0, s{S_W1K}, {st * 16384 + 8192}")
        E(f"s_mov_b32 s{S_T0}, {st * 65536}")
        E(f"buffer_load_dwordx4 v{VW_}, {sr(WD)}, s{S_T0} offen lds")
    E(f"s_cmp_lg_u32 s{S_WAVE}, 0")
    E("s_cbranch_scc1 F_wait2b")
    poll("F_pollh", PFH, f"s{S_PH}", False, 16, O.sl_h)
    E.label("F_wait2b")
    E("s_barrier")
    stamp(5)
    vd = VM()

    def dma(st, skip_w=False):
        slot = st % NS
        E(f"s_add_u32 m0, s{S_DL}, {slot * 16384}")
        E(f"s_add_u32 s{S_T0}, s{S_DB}, {st * 4096}")
        E(f"buffer_load_dwordx4 v{VB_}, {sr(WS)}, s{S_T0} offen sc1 lds")
        vd.issue(st)
        if skip_w:
            return
        E(f"s_add_u32 m0, s{S_W1K}, {slot * 16384 + 8192}")
        E(f"s_mov_b32 s{S_T0}, {st * 65536}")
        E(f"buffer_load_dwordx4 v{VW_}, {sr(WD)}, s{S_T0} offen lds")
        vd.issue(st)

    def greads(st):
        slot = st % NS
        b = 16 + 16 * (st & 1)
        vb, vw, base = (RB, RW, slot * 16384) if slot < 4 else (RB2, RW2, 0)
        L = []
        for kk in (0, 1):
            L.append(f"ds_read_b128 {vr(b+4*kk,4)}, v{vb} offset:{base + kk * 1024}")
            for q in (0, 1):
                L.append(f"ds_read_b64_tr_b16 {vr(b+8+4*kk+2*q,2)}, v{vw} offset:{base + kk * 2048 + q * 1024}")
        return L

    for t in range(O.ht_pos):
        dma(t, True)
    E("s_mov_b64 exec, 0x3fff3fff")
    E(f"buffer_load_dword v{HT}, v{HT}, {sr(WS)}, s{S_HT} offen sc1")
    E("s_mov_b64 exec, -1")
    E(f"buffer_load_dword v{GV}, v{GV}, {sr(WS)}, s{S_G} offen sc1")
    vd.issue("h", 2)
    for t in range(O.ht_pos, NS):
        dma(t, True)
    issued = NS
    E(f"s_setprio {O.prio_dn}")
    bars = [t for t in range(27) if t >= O.dn_grp_until or t % O.dn_grp == O.dn_grp - 1]
    E(f"s_waitcnt vmcnt({vd.need(*range(0, bars[0] + 1))})")
    E("s_barrier")
    [E(x) for x in greads(0)]
    for t in range(28):
        b = 16 + 16 * (t & 1)
        M = [f"v_mfma_f32_32x32x16_bf16 v[64:79], {vr(b+8+4*kk,4)}, {vr(b+4*kk,4)}, {'0' if t + kk == 0 else 'v[64:79]'}" for kk in (0, 1)]
        if t == O.dn_low:
            E(f"s_setprio {O.prio_f_late}")
        if O.dn_stamps and t in (4, 12, 20):
            stamp(10 + t // 8)
        if t in bars:
            nxt = min([x for x in bars if x > t] + [27])
            E(f"s_waitcnt vmcnt({vd.need(*range(t + 1, nxt + 1))}) lgkmcnt(0)")
            E("s_barrier")
        else:
            E("s_waitcnt lgkmcnt(0)")
        R = greads(t + 1) if t < 27 else []
        E(M[0]); [E(x) for x in R[:3]]; E(M[1]); [E(x) for x in R[3:]]
        if t in bars:
            while issued <= min(27, t + NS):
                dma(issued)
                issued += 1
    stamp(6)
    E(f"s_cmp_lg_u32 s{S_WAVE}, 0")
    E("s_cbranch_scc1 F_wait3")
    E("s_setprio 3")
    if O.o_touch:
        E(f"v_lshrrev_b32 v17, 9, v{L16}")
        E(f"v_mul_u32_u24 v17, {144 * 1024 - 32 * 1024}, v17")
        E(f"v_lshl_add_u32 v17, v{L16}, 6, v17")
        E(f"s_lshr_b32 s{S_T0}, s{S_C}, 2")
        E(f"s_lshl_b32 s{S_T0}, s{S_T0}, 7")
        E(f"s_add_u32 s{S_T0}, s{S_T0}, s{S_DB}")
        E(f"s_add_u32 s{S_T0}, s{S_T0}, {112 * 1024}")
        E("s_mov_b64 s[4:5], -1")
        E(f"s_mov_b32 s{S_SPIN}, 0x40000")
        E.label("F_pollo")
        E(f"buffer_load_dword v16, v{PFO}, {sr(WS)}, s{S_PO} offen sc1")
        E("s_waitcnt vmcnt(0)")
        E(f"v_cmp_ne_u32 vcc, s{S_TAG}, v16")
        E("s_nop 4")
        E("s_cmp_eq_u64 vcc, 0")
        E("s_cbranch_scc1 F_pollo_ok")
        E("s_andn2_b64 s[6:7], s[4:5], vcc")
        E("s_cbranch_scc0 F_pollo_n")
        E("s_mov_b64 s[4:5], vcc")
        E("s_mov_b64 exec, s[6:7]")
        E(f"buffer_load_dword v18, v17, {sr(WS)}, s{S_T0} offen sc1")
        E("s_mov_b64 exec, -1")
        E.label("F_pollo_n")
        E(f"s_sleep {O.sl_o}")
        E(f"s_sub_u32 s{S_SPIN}, s{S_SPIN}, 1")
        E(f"s_cmp_lg_u32 s{S_SPIN}, 0")
        E("s_cbranch_scc1 F_pollo")
        E.label("F_pollo_ok")
    else:
        poll("F_pollo", PFO, f"s{S_PO}", False, 16, O.sl_o)
    E.label("F_wait3")
    E("s_setprio 3")
    E("s_barrier")
    stamp(7)
    for i in range(8):
        E(f"s_add_u32 m0, s{S_OL}, {i * 2048}")
        E(f"s_add_u32 s{S_T0}, s{S_OS}, {i * 2048}")
        E(f"buffer_load_dwordx4 v{L16}, {sr(WS)}, s{S_T0} offen sc1 lds")
    E(f"v_sub_f32 v{HT}, 1.0, v{GV}")
    for i in range(16):
        E(f"v_mul_f32 v{64+i}, v{HT}, v{64+i}")
    cuts = {2: (0, 8, 16), 4: (0, 4, 8, 12, 16), 3: (0, 8, 12, 16)}[O.o_parts]
    for lo, hi in zip(cuts[:-1], cuts[1:]):
        per = hi - lo
        E(f"s_waitcnt vmcnt({8 - hi // 2})")
        E("s_barrier")
        for k in range(4):
            E(f"ds_read_b128 {vr(32 + 4*k, 4)}, v{RO} offset:{(lo + k) * 1024}")
        for k in range(per):
            E(f"s_waitcnt lgkmcnt({min(3, per - 1 - k)})")
            E(f"v_mfma_f32_32x32x16_bf16 v[16:31], {vr(wf(lo + k), 4)}, {vr(32 + 4*(k % 4), 4)}, {'0' if lo + k == 0 else 'v[16:31]'}")
            if k + 4 < per:
                E(f"ds_read_b128 {vr(32 + 4*k, 4)}, v{RO} offset:{(lo + 4 + k) * 1024}")
    stamp(8)
    E(f"s_cmp_ge_u32 s{S_WAVE}, 4")
    E("s_cbranch_scc1 F_hi")
    for hi in (0, 1):
        keep, send = (0, 8) if not hi else (8, 0)
        if hi:
            E.label("F_hi")
        E("s_nop 9")
        for i in range(8):
            E(f"v_fmac_f32 v{64+send+i}, v{GV}, v{16+send+i}")
        E(f"ds_write_b128 v{EX0}, {vr(64+send,4)}")
        E(f"ds_write_b128 v{EX0}, {vr(68+send,4)} offset:1024")
        for i in range(8):
            E(f"v_fmac_f32 v{64+keep+i}, v{GV}, v{16+keep+i}")
        E("s_waitcnt lgkmcnt(0)")
        E("s_barrier")
        E(f"ds_read_b128 v[20:23], v{EX1}")
        E(f"ds_read_b128 v[24:27], v{EX1} offset:1024")
        E("s_waitcnt lgkmcnt(1)")
        for i in range(8):
            if i == 4:
                E("s_waitcnt lgkmcnt(0)")
            E(f"v_add_f32 v{64+keep+i}, v{64+keep+i}, v{20+i}")
        for i in range(4):
            E(f"v_cvt_pk_bf16_f32 v{16+i}, v{64+keep+2*i}, v{65+keep+2*i}")
        if not hi:
            E("s_branch F_x")
    E.label("F_x")
    E("s_nop 1")
    E("v_permlane32_swap_b32 v16, v18")
    E("v_permlane32_swap_b32 v17, v19")
    E(f"buffer_store_dwordx4 v[16:19], v{OUTA}, {sr(OUT)}, s{S_OUT} offen")
    stamp(9)
    flush_stamps(range(13), "F_st")
    if O.diag_span:
        E.label("F_diag")
        E("s_memrealtime s[4:5]")
        E("s_waitcnt lgkmcnt(0)")
        E("s_sub_u32 s4, s4, s92")
        E(f"s_cmp_lt_u32 s4, {O.diag_span}")
        E("s_cbranch_scc1 F_diag")
    E("s_endpgm")


def out_addr():
    E("v_lshlrev_b32 v8, 10, v8")
    E("v_bfe_u32 v9, v0, 5, 1")
    E("v_lshl_add_u32 v8, v9, 4, v8")
    E("v_bfe_u32 v9, v0, 7, 1")
    E("v_lshl_add_u32 v8, v9, 6, v8")
    E("v_lshrrev_b32 v9, 8, v0")
    E("v_lshl_add_u32 v8, v9, 5, v8")
    E(f"s_lshl_b32 s{S_XK}, s{S_A}, 16")
    E(f"s_lshl_b32 s{S_T1}, s{S_B}, 7")
    E(f"s_add_u32 s{S_XK}, s{S_XK}, s{S_T1}")
    E(f"s_lshl_b32 s{S_T1}, s{S_WAVE}, 11")
    E(f"s_add_u32 s{S_T1}, s{S_T1}, 65536")
    E(f"s_xor_b32 s{S_T2}, s{S_T1}, 8192")
    E(f"v_add_u32 v6, s{S_T1}, v12")
    E(f"v_add_u32 v7, s{S_T2}, v12")


def voff_w():
    E("v_bfe_u32 v2, v0, 4, 1")
    E("v_lshlrev_b32 v2, 2, v2")
    E("v_xor_b32 v2, v2, v0")
    E("v_and_b32 v2, 7, v2")
    E("v_lshlrev_b32 v2, 4, v2")
    E("v_lshrrev_b32 v11, 3, v0")
    E("v_lshl_add_u32 v2, v11, 10, v2")
    E(f"s_lshr_b32 s{S_T1}, s{S_C}, 2")
    E(f"s_lshl_b32 s{S_T1}, s{S_T1}, 7")
    E(f"v_add_u32 v2, s{S_T1}, v2")


def wo_stage(batch=0):
    for i in range(8):
        E(f"s_add_u32 m0, s{S_W1K}, {i * 8192}")
        E(f"s_mov_b32 s{S_T0}, {i * 65536}")
        E(f"buffer_load_dwordx4 v{VW_}, {sr(WO)}, s{S_T0} offen lds")
        if batch and i % batch == batch - 1:
            E("s_waitcnt vmcnt(0)")


def _m_fix_base():
    E(f"s_mul_i32 s{S_XB}, s{S_A}, {288 * 1024}")
    E(f"s_add_u32 s{S_XB}, s{S_XB}, {WS_HO:#x}")


HEADER = """; Kernarg layout (88 bytes, ptrs only, base s[0:1]):
; @launch grid=(512,1,1) block=(512,1,1) lds=81920
.amdgcn_target "amdgcn-amd-amdhsa--gfx950"
.text
.globl {kn}
.p2align 8
.type {kn},@function
{kn}:
CODE_START:
"""

FOOTER = """CODE_END:
.section .rodata,"a"
.p2align 6
.amdhsa_kernel {kn}
  .amdhsa_next_free_vgpr 128
  .amdhsa_next_free_sgpr 102
  .amdhsa_accum_offset 128
  .amdhsa_group_segment_fixed_size 0
  .amdhsa_kernarg_size 88
  .amdhsa_user_sgpr_count 2
  .amdhsa_user_sgpr_kernarg_segment_ptr 1
  .amdhsa_system_sgpr_workgroup_id_x 1
.end_amdhsa_kernel
"""


def generate():
    E.L = []
    if O.scramble:
        E("s_and_b32 s3, s2, 7")
        E("s_lshl_b32 s3, s3, 3")
        E("s_bfe_u32 s4, s2, 0x30003")
        E("s_and_b32 s2, s2, 0xffffffc0")
        E("s_or_b32 s2, s2, s3")
        E("s_or_b32 s2, s2, s4")
    E("s_cmp_ge_u32 s2, 256")
    E("s_cbranch_scc1 F_entry")
    stamp(0)
    if O.only_down:
        E("s_endpgm")
    a_prologue()
    E("s_cbranch_vccnz A_vwave")
    E("s_branch A_qwave")
    E.label("F_entry")
    f_prologue()
    E.label("L_end")
    E("s_endpgm")
    E.label("A_qwave")
    a_qkv(False)
    E("s_branch A_att")
    E.label("A_vwave")
    a_qkv(True)
    E.label("A_att")
    a_attention()
    f_main()
    return HEADER.format(kn=KN) + "\n".join(E.L) + "\n" + FOOTER.format(kn=KN)


if __name__ == "__main__":
    ap = argparse.ArgumentParser()
    ap.add_argument("-o", default="k.s")
    ap.add_argument("--set", action="append", default=[])
    a = ap.parse_args()
    for kv in a.set:
        k, v = kv.split("=")
        assert hasattr(O, k), k
        setattr(O, k, type(getattr(O, k))(int(v)))
    s = generate()
    open(a.o, "w").write(s)
    sys.path.insert(0, "cdna_kernels")
    from cdna_launch import with_harness_metadata, address_register_problem
    h = a.o[:-2] + ".harness.s"
    co = a.o[:-2] + ".co"
    open(h, "w").write(with_harness_metadata(s, KN, 11, launch_lists=True))
    r = subprocess.run(["clang", "-x", "assembler", "-target", "amdgcn-amd-amdhsa", "-mcpu=gfx950", h, "-o", co],
                       capture_output=True, text=True)
    if r.returncode:
        print(r.stderr[:4000]); sys.exit(1)
    p = address_register_problem(co, KN)
    print("check:", p)
    r = subprocess.run(f"llvm-nm {co} | grep -E 'CODE_|A_qwave|A_vwave|A_att|A_loop|A_fin|A_slow|F_entry|F_main|F_pub|F_dloop|F_gate$' | sort", shell=True, capture_output=True, text=True)
    print(r.stdout)
```

```python
import sys, subprocess, argparse

NAME = "gated_mix__softmax_full_mha__swiglu_ffn__prompt"
KN = NAME + "_kernel"

WS_KV, WS_Q, WS_HO = 0, 0x400000, 0x600000
WS_G = 0xF04000
WS_FO2 = 0xF40000
WS_FKV, WS_FH, WS_FO, WS_FS = 0xF08000, 0xF0C000, 0xF20000, 0xF07000
WS_STAMP = 0x1000000
WS_SIZE = 0x1100000
QSCALE = 0x3EB8AA3B
NLOG2E = 0xBFB8AA3B
THR2 = 0x45548000


class Opt:
    stamps = False
    hint_step = 17
    f_fill_early = False
    force_slow = False
    prio_a_qkv = 3
    prio_a_att = 0
    prio_f = 0
    prio_f_late = 0
    zrows = 1
    toggle = 0
    touch_gu = 0
    touch = 0
    warm_steps = 0
    f_rot = 0
    a_exit = 0
    kv_rot = 0
    ga = 3
    gb = 5
    gc = 5
    kv_first = 2
    wd_t0 = 3
    wo_t = 1
    f_touch = 1
    f_touch2 = 99
    bal = 3
    pace_from = 99
    prio_up = -1
    prio_dn = 0
    boost_mask = 31
    prio_boost = 3
    hint1 = 11
    f_wd = 1
    pair = 1
    dn_stamps = 0
    wo_early = 1
    scramble = 0
    dbg_out = 0
    hold = 0
    kv_wait1 = 1
    piped = 0
    dn_ns = 5
    dn_grp = 2
    dn_grp_until = 16
    dn_low = 99
    twice = 0
    o_parts = 2
    x_noack = 0
    x_noex = 0
    wd_step = 13
    wd_parts = 1
    ht_pos = 2
    nt0 = 0
    order0 = 0
    diag_span = 0
    w_first = 1
    early_o = 0
    x_fail = 0
    t_rows = 256
    tlb = 0
    rf_late = 0
    bar_diag = 0
    kv_cnt = 0
    g_batch = 2
    wo_step = 9
    wo_batch = 0
    qswap = 7
    hswap = 1
    rswap = 2
    sl_o = 2
    sl_h = 2
    rperm = 0
    amap = 0
    sl_kv = 0
    sl_s = 2
    wo_late = 0
    o_touch = 0
    flip = 0
    pflip = 0
    g_step = 13
    evt = -1
    even_until = 0
    qx = 0
    t_wait = 0
    t_full = 0
    g2_late = 1
    t_row0 = 0
    only_down = 0
    d_rot = 0
    h_touch = 1
    att_iters = 8
    prio_silu = 3
    gate_late = 1
    h_sc1 = 1
    no_f = 0
    late_iter = 99


O = Opt()


class Asm:
    def __init__(self):
        self.L = []

    def __call__(self, s):
        for x in s.strip("\n").split("\n"):
            self.L.append("    " + x.strip())

    def label(self, l):
        self.L.append(l + ":")

    def raw(self, s):
        self.L.append(s)


E = Asm()


def vr(a, n):
    return f"v[{a}:{a+n-1}]"


def srd(base, size):
    E(f"s_mov_b32 s{base+2}, {size:#x}")
    E(f"s_mov_b32 s{base+3}, 0x20000")


S_WAVE = 3
X, W1, WU, WS, DBG, WD, WO, OUT, GW = 12, 16, 20, 24, 28, 32, 36, 40, 44
def sr(b): return f"s[{b}:{b+3}]"
S_TAG = 48
S_W1K = 49
S_T0, S_T1, S_T2, S_T3 = 50, 51, 52, 53
S_XK, S_XB, S_WK, S_WB = 54, 55, 56, 57
S_CNT = 58
S_A, S_B, S_C, S_D = 59, 60, 61, 62
S_SLOT = 63
S_VM = 64
S_SPIN = 66
S_STAMP = 70


def stamp(i):
    if O.evt >= 0:
        if i == 0 or i == O.evt % 16:
            E(f"s_memrealtime s[{S_STAMP+2*i}:{S_STAMP+2*i+1}]")
            E("s_waitcnt lgkmcnt(0)")
    elif O.stamps:
        E(f"s_memrealtime s[{S_STAMP+2*i}:{S_STAMP+2*i+1}]")
        E(f"s_memtime s[68:69]")
        E("s_waitcnt lgkmcnt(0)")
        E(f"s_mov_b32 s{S_STAMP+2*i+1}, s68")


def cstamp(i):
    if O.stamps:
        E(f"s_memtime s[{S_STAMP+2*i}:{S_STAMP+2*i+1}]")
        E("s_waitcnt lgkmcnt(0)")


def flush_stamps(idx, lab):
    if O.evt >= 0 and lab[0] == "AF"[O.evt // 16]:
        i = O.evt % 16
        E(f"s_add_u32 s6, s{S_STAMP+2*i}, 6000")
        E.label(lab + "_e")
        E("s_memrealtime s[4:5]")
        E("s_waitcnt lgkmcnt(0)")
        E("s_sub_u32 s4, s4, s6")
        E("s_cmp_lt_i32 s4, 0")
        E(f"s_cbranch_scc1 {lab}_e")
    if not O.stamps:
        return
    E(f"s_cmp_lg_u32 s{S_WAVE}, 0")
    E(f"s_cbranch_scc1 {lab}")
    E(f"s_lshl_b32 s{S_T0}, s2, 7")
    E(f"s_add_u32 s{S_T0}, s{S_T0}, {WS_STAMP:#x}")
    E("s_mov_b64 exec, 1")
    E("v_mov_b32 v1, 0")
    for i in idx:
        E(f"v_mov_b32 v2, s{S_STAMP+2*i}")
        E(f"buffer_store_dword v2, v1, {sr(WS)}, s{S_T0} offen offset:{4*i}")
        E(f"v_mov_b32 v3, s{S_STAMP+2*i+1}")
        E(f"buffer_store_dword v3, v1, {sr(WS)}, s{S_T0} offen offset:{64+4*i}")
    if O.dbg_out:
        E(f"s_and_b32 s{S_T0}, s2, 255")
        E(f"s_cmp_lg_u32 s{S_T0}, 77")
        E(f"s_cbranch_scc1 {lab}_d")
        sel, base = ((0, 1, 2, 5, 6, 7), 1) if lab.startswith("A") else ((1, 2, 3, 5, 6, 7, 9), 9)
        for n, i in enumerate(sel):
            E(f"v_mov_b32 v2, s{S_STAMP+2*i}")
            if n:
                E(f"v_subrev_u32 v2, s{S_STAMP}, v2")
            E(f"buffer_store_dword v2, v1, {sr(DBG)}, 0 offen offset:{4*(base+n)}")
        if lab.startswith("A"):
            E(f"s_sub_u32 s{S_T0}, s{S_STAMP+13}, s{S_STAMP+11}")
            E(f"v_mov_b32 v2, s{S_T0}")
            E(f"buffer_store_dword v2, v1, {sr(DBG)}, 0 offen offset:28")
        E.label(lab + "_d")
    E("s_waitcnt vmcnt(0)")
    E.label(lab)


class VM:
    def __init__(self):
        self.q = []

    def issue(self, tag, n=1):
        self.q += [tag] * n

    def need(self, *tags):
        last = -1
        for i, t in enumerate(self.q):
            if t in tags:
                last = i
        for t in tags:
            assert t in self.q, t
        return len(self.q) - 1 - last


def poll(lab, voff_reg, soff, piped=False, dst=11, sleep=2):
    E(f"s_mov_b32 s{S_SPIN}, 0x40000")
    if piped:
        regs = (11, 9, 15)
        for r in regs[:2]:
            E(f"buffer_load_dword v{r}, v{voff_reg}, {sr(WS)}, {soff} offen sc1")
            E("s_sleep 2")
        E.label(lab)
        for i in range(3):
            E(f"buffer_load_dword v{regs[(i + 2) % 3]}, v{voff_reg}, {sr(WS)}, {soff} offen sc1")
            E("s_waitcnt vmcnt(2)")
            E(f"v_cmp_ne_u32 vcc, s{S_TAG}, v{regs[i]}")
            E("s_nop 4")
            E("s_cmp_eq_u64 vcc, 0")
            E(f"s_cbranch_scc1 {lab}_ok")
            E("s_sleep 1")
    else:
        E.label(lab)
        E(f"buffer_load_dword v{dst}, v{voff_reg}, {sr(WS)}, {soff} offen sc1")
        E("s_waitcnt vmcnt(0)")
        E(f"v_cmp_ne_u32 vcc, s{S_TAG}, v{dst}")
        E("s_nop 4")
        E("s_cmp_eq_u64 vcc, 0")
        E(f"s_cbranch_scc1 {lab}_ok")
        E(f"s_sleep {sleep}")
    E(f"s_sub_u32 s{S_SPIN}, s{S_SPIN}, 1")
    E(f"s_cmp_lg_u32 s{S_SPIN}, 0")
    E(f"s_cbranch_scc1 {lab}")
    E.label(lab + "_ok")


def get_tag(lab, sleep=4):
    E(f"s_mov_b32 s{S_SPIN}, 0x40000")
    E("v_mov_b32 v10, 0")
    E.label(lab)
    E(f"buffer_load_dword v11, v10, {sr(DBG)}, 0 offen sc1")
    E("s_waitcnt vmcnt(0)")
    E(f"v_readfirstlane_b32 s{S_TAG}, v11")
    E("s_nop 3")
    E(f"s_cmp_lg_u32 s{S_TAG}, 0")
    E(f"s_cbranch_scc1 {lab}_ok")
    E(f"s_sleep {sleep}")
    E(f"s_sub_u32 s{S_SPIN}, s{S_SPIN}, 1")
    E(f"s_cmp_lg_u32 s{S_SPIN}, 0")
    E(f"s_cbranch_scc1 {lab}")
    E.label(lab + "_ok")


def put_flag(soff_sgpr):
    E("s_mov_b64 exec, 1")
    E("v_mov_b32 v10, 0")
    E(f"v_mov_b32 v11, s{S_TAG}")
    E(f"buffer_store_dword v11, v10, {sr(WS)}, s{soff_sgpr} offen sc0 sc1")
    E("s_mov_b64 exec, -1")


def wg_store(lab, cond, val_lines, off):
    cond()
    E(f"s_cbranch_scc1 {lab}")
    val_lines()
    E("s_mov_b64 exec, 1")
    E(f"v_mov_b32 v10, {off}")
    E(f"v_mov_b32 v11, s{S_T0}")
    E(f"buffer_store_dword v11, v10, {sr(DBG)}, 0 offen sc0 sc1")
    E("s_mov_b64 exec, -1")
    E.label(lab)


def hint(lab="A_nohint", word=0, early=None):
    E(f"s_lshr_b32 s{S_T0}, s2, 3")
    E(f"s_or_b32 s{S_T0}, s{S_T0}, s{S_WAVE}")
    E(f"s_cbranch_scc1 {lab}")
    if (O.hint_step if early is None else early) < 16:
        E(f"v_readfirstlane_b32 s{S_TAG}, v14")
        E("s_nop 3")
        E(f"s_cmp_lg_u32 s{S_TAG}, 0")
        E(f"s_cbranch_scc1 {lab}_t_ok")
        get_tag(lab + "_t")
    E(f"s_lshl_b32 s{S_T1}, s2, 7")
    E(f"s_add_u32 s{S_T1}, s{S_T1}, {WS_FS + 1024 * word:#x}")
    put_flag(S_T1)
    E.label(lab)


def wait_start(lab, word=0, tag=True):
    if tag:
        get_tag(lab + "_t", 16)
    E("v_mov_b32 v10, 0")
    E(f"s_and_b32 s{S_T0}, s2, 7")
    if O.hswap:
        E(f"s_xor_b32 s{S_T0}, s{S_T0}, {O.hswap}")
    E(f"s_lshl_b32 s{S_T0}, s{S_T0}, 7")
    E(f"s_add_u32 s{S_T0}, s{S_T0}, {WS_FS + 1024 * word:#x}")
    poll(lab, 10, f"s{S_T0}", False, 11, O.sl_s)


def dpp_max(regs):
    for ctl in ("row_shr:1", "row_shr:2", "row_shr:4", "row_shr:8",
                "row_bcast:15 row_mask:0xa", "row_bcast:31 row_mask:0xc"):
        E("s_nop 1")
        for r in regs:
            m = "" if "row_mask" in ctl else " row_mask:0xf"
            E(f"v_max_f32_dpp v{r}, v{r}, v{r} {ctl}{m} bank_mask:0xf")


A_XS, A_WS0, A_WSZ = 8192, 24576, 12288


def a_dma_x(u, vm):
    E(f"s_add_u32 m0, s{S_W1K}, {(u % 3) * A_XS}")
    E(f"s_add_u32 s{S_T0}, s{S_XB}, s{S_XK}")
    nt = "nt " if ((O.nt0 & 1) and u < 2) or (O.nt0 & 4) else ""
    E(f"buffer_load_dwordx4 v1, {sr(X)}, s{S_T0} offen {nt}lds")
    E(f"s_add_u32 s{S_XK}, s{S_XK}, 128")
    E(f"s_and_b32 s{S_XK}, s{S_XK}, 1023")
    vm.issue(("x", u))


def a_dma_w(s, vm, vwave):
    base = A_WS0 + (s % 4) * A_WSZ
    nt = "nt " if ((O.nt0 & 1) and s < 2) or (O.nt0 & 4) else ""
    E(f"s_add_u32 m0, s{S_W1K}, {base}")
    E(f"s_add_u32 s{S_T0}, s{S_WB}, s{S_WK}")
    E(f"buffer_load_dwordx4 v2, {sr(W1)}, s{S_T0} offen {nt}lds")
    vm.issue(("w", s))
    if vwave == "both":
        E(f"s_cbranch_vccz A_pw{s}")
        E(f"s_add_u32 m0, s{S_W1K}, {base + 3072}")
        E("s_nop 0")
        E(f"buffer_load_dwordx4 v2, {sr(W1)}, s{S_T0} offen offset:1024 {nt}lds")
        E.label(f"A_pw{s}")
    elif vwave:
        E(f"s_add_u32 m0, s{S_W1K}, {base + 3072}")
        E("s_nop 0")
        E(f"buffer_load_dwordx4 v2, {sr(W1)}, s{S_T0} offen offset:1024 {nt}lds")
        vm.issue(("w", s))
    E(f"s_add_u32 s{S_WK}, s{S_WK}, 98304")
    E(f"s_cmp_eq_u32 s{S_WK}, {16 * 98304}")
    E(f"s_cselect_b32 s{S_WK}, 0, s{S_WK}")


def a_prologue():
    E(f"s_load_dwordx2 s[{X}:{X+1}], s[0:1], 0")
    E(f"s_load_dwordx2 s[{W1}:{W1+1}], s[0:1], 8")
    E(f"s_load_dwordx2 s[{WS}:{WS+1}], s[0:1], 80")
    E(f"s_load_dwordx2 s[{DBG}:{DBG+1}], s[0:1], 72")
    E("v_lshrrev_b32 v8, 6, v0")
    E("v_lshrrev_b32 v9, 3, v0")
    E("v_lshrrev_b32 v10, 4, v0")
    E(f"v_readfirstlane_b32 s{S_WAVE}, v8")
    E("v_xor_b32 v11, v10, v0")
    E("v_and_b32 v11, 7, v11")
    E("v_lshlrev_b32 v11, 4, v11")
    E("v_lshl_add_u32 v1, v9, 10, v11")
    srd(X, 0x200000)
    srd(W1, 0x180000)
    E(f"s_lshr_b32 s{S_T0}, s2, 3")
    E(f"s_and_b32 s{S_T1}, s{S_T0}, 7")
    E(f"s_lshr_b32 s{S_T0}, s{S_T0}, 3")
    E(f"s_and_b32 s{S_A}, s2, 6")
    E(f"s_lshl_b32 s{S_A}, s{S_A}, 2")
    E(f"s_add_u32 s{S_A}, s{S_A}, s{S_T1}")
    if O.pflip:
        E(f"s_andn2_b32 s{S_B}, 1, s2")
    else:
        E(f"s_and_b32 s{S_B}, s2, 1")
    E(f"s_lshl_b32 s{S_B}, s{S_B}, 2")
    E(f"s_add_u32 s{S_B}, s{S_B}, s{S_T0}")
    E(f"s_lshl_b32 s{S_T0}, s{S_T0}, 1")
    E(f"s_add_u32 s{S_T0}, s{S_T0}, s{S_T1}")
    E(f"s_and_b32 s{S_T0}, s{S_T0}, 7")
    E(f"s_lshl_b32 s{S_XK}, s{S_T0}, 7")
    E(f"s_mul_i32 s{S_WK}, s{S_T0}, {2 * 98304}")
    E(f"s_lshl_b32 s{S_XB}, s{S_A}, 16")
    E(f"s_lshl_b32 s{S_WB}, s{S_B}, 7")
    E(f"s_lshl_b32 s{S_W1K}, s{S_WAVE}, 10")
    E("v_and_b32 v9, 31, v9")
    E("v_mul_u32_u24 v9, 0xc00, v9")
    E("v_and_b32 v10, 1, v10")
    E("v_lshlrev_b32 v10, 2, v10")
    E("v_xor_b32 v10, v10, v0")
    E("v_and_b32 v10, 7, v10")
    E("v_lshl_add_u32 v9, v10, 4, v9")
    E("v_lshrrev_b32 v10, 8, v0")
    E("v_lshl_add_u32 v2, v10, 10, v9")
    E("v_cmp_eq_u32 vcc, 1, v10")
    E(f"s_setprio {O.prio_a_qkv}")
    E("s_waitcnt lgkmcnt(0)")
    stamp(8)
    vm = VM()
    a_dma_x(0, vm)
    a_dma_w(0, vm, "both")
    a_dma_w(1, vm, "both")
    a_dma_x(1, vm)
    a_dma_w(2, vm, "both")
    a_dma_w(3, vm, "both")
    a_dma_x(2, vm)
    stamp(9)
    srd(WS, WS_SIZE)
    srd(DBG, 256)


def a_qkv(vwave):
    p = "AV" if vwave else "AQ"
    if O.touch:
        E(f"s_load_dwordx2 s[{WU}:{WU+1}], s[0:1], {40 if vwave else 32}")
        E(f"s_load_dwordx2 s[{WD}:{WD+1}], s[0:1], 48")
        E(f"s_load_dwordx2 s[{WO}:{WO+1}], s[0:1], 16")
        srd(WU, 512 * 3584); srd(WD, 1792 * 1024); srd(WO, 512 * 1024)
    vm = VM()
    n = 2 if vwave else 1
    for t in (("x", 0), ("w", 0), ("w", 1), ("x", 1), ("w", 2), ("w", 3), ("x", 2)):
        vm.issue(t, n if t[0] == "w" else 1)
    E("v_and_b32 v8, 31, v0")
    if vwave:
        E("v_and_b32 v9, 0x13, v8")
        E("v_lshlrev_b32 v10, 1, v8")
        E("v_and_b32 v10, 8, v10")
        E("v_or_b32 v9, v9, v10")
        E("v_lshrrev_b32 v10, 1, v8")
        E("v_and_b32 v10, 4, v10")
        E("v_or_b32 v8, v9, v10")
    E("v_lshrrev_b32 v9, 1, v8")
    E("v_and_b32 v9, 7, v9")
    E("v_bfe_u32 v10, v0, 5, 1")
    E("v_xor_b32 v9, v9, v10")
    E("v_lshlrev_b32 v9, 4, v9")
    E("v_lshl_add_u32 v9, v8, 7, v9")
    E("v_bfe_u32 v8, v0, 6, 1")
    E("v_lshl_add_u32 v3, v8, 12, v9")
    for ks in (1, 2, 3):
        E(f"v_xor_b32 v{3+ks}, {32*ks}, v3")
    E("v_bfe_u32 v8, v0, 2, 2")
    E("v_lshl_add_u32 v9, v10, 3, v8")
    E("v_lshlrev_b32 v9, 7, v9")
    E("v_bfe_u32 v10, v0, 7, 1")
    E("v_lshrrev_b32 v8, 1, v8")
    E("v_xor_b32 v8, v8, v10")
    E("v_lshl_add_u32 v9, v8, 6, v9")
    E("v_bfe_u32 v8, v0, 4, 1")
    E("v_lshl_add_u32 v9, v8, 5, v9")
    E("v_and_b32 v8, 3, v0")
    E("v_lshl_add_u32 v9, v8, 3, v9")
    E(f"v_add_u32 v7, {A_WS0}, v9")
    segs = (2,) if vwave else (0, 1)
    if O.touch_gu:
        E(f"s_lshr_b32 s{S_T0}, s2, 3")
        E(f"s_lshl_b32 s{S_T0}, s{S_T0}, 2")
        E(f"s_and_b32 s{S_T1}, s{S_WAVE}, 3")
        E(f"s_add_u32 s{S_T0}, s{S_T0}, s{S_T1}")
        E(f"s_mul_i32 s{S_T0}, s{S_T0}, {2 * 3584}")
        E(f"s_bfe_u32 s{S_T1}, s2, 0x10002")
        E(f"s_mul_i32 s{S_T1}, s{S_T1}, 1792")
        E(f"s_add_u32 s{S_T0}, s{S_T0}, s{S_T1}")
        E("v_bfe_u32 v8, v0, 4, 1")
        E("v_mul_u32_u24 v8, 3584, v8")
        E("v_and_b32 v9, 15, v0")
        E("v_lshl_add_u32 v8, v9, 7, v8")
        E(f"v_add_u32 v98, s{S_T0}, v8")

    def reads(s):
        b = 16 + 24 * (s & 1)
        L = []
        for kk in (0, 1):
            L.append(f"ds_read_b128 {vr(b+4*kk,4)}, v{3 + 2*(s&1) + kk} offset:{((s//2) % 3) * A_XS}")
            for si, sg in enumerate(segs):
                for q in (0, 1):
                    off = (s % 4) * A_WSZ + sg * 4096 + kk * 2048 + q * 512
                    L.append(f"ds_read_b64_tr_b16 {vr(b+8+8*si+4*kk+2*q,2)}, v7 offset:{off}")
        return L

    def mfmas(s):
        b = 16 + 24 * (s & 1)
        L = []
        for kk in (0, 1):
            for si, sg in enumerate(segs):
                acc = vr(64 + 16 * si, 16)
                c = "0" if (s == 0 and kk == 0) else acc
                xf, wf = vr(b + 4*kk, 4), vr(b + 8 + 8*si + 4*kk, 4)
                if vwave:
                    L.append(f"v_mfma_f32_32x32x16_bf16 {acc}, {xf}, {wf}, {c}")
                else:
                    L.append(f"v_mfma_f32_32x32x16_bf16 {acc}, {wf}, {xf}, {c}")
        return L

    if not vwave:
        def tagval():
            E(f"s_memrealtime s[{S_T0}:{S_T1}]")
            E("s_waitcnt lgkmcnt(0)")
            E(f"s_or_b32 s{S_T0}, s{S_T0}, 1")
        wg_store("A_notag", lambda: E(f"s_or_b32 s{S_T0}, s2, s{S_WAVE}"), tagval, "0")
    E(f"s_waitcnt vmcnt({vm.need(('x',0),('w',0))}) lgkmcnt(0)")
    E("s_barrier")
    stamp(1)
    for x in reads(0):
        E(x)
    for s in range(16):
        M = mfmas(s)
        if s < 15:
            E(f"s_waitcnt vmcnt({vm.need(('x',(s+1)//2),('w',s+1))}) lgkmcnt(0)")
            E("s_barrier")
            E(M.pop(0))
            R = reads(s + 1)
            per = 3
            while R or M:
                for x in R[:per]:
                    E(x)
                R = R[per:]
                if M:
                    E(M.pop(0))
            if s + 4 <= 15:
                a_dma_w(s + 4, vm, vwave)
            if s % 2 == 1 and (s + 1) // 2 + 2 <= 7:
                a_dma_x((s + 1) // 2 + 2, vm)
            if s == 1 and not vwave:
                E("v_mov_b32 v10, 0")
                E(f"buffer_load_dword v14, v10, {sr(DBG)}, 0 offen sc1")
                vm.issue("tag")
            if s == 12 and O.touch_gu:
                E("s_mov_b32 exec_hi, 0")
                E(f"buffer_load_dword v15, v98, {sr(WU)}, 0 offen")
                E("s_mov_b32 exec_hi, -1")
                vm.issue("t")
        else:
            E("s_waitcnt lgkmcnt(0)")
            for x in M:
                E(x)
        if s == O.hint_step and not vwave:
            hint()
        if s == O.hint1 and not vwave:
            hint("A_nohint1", 1, O.hint1)
        if s == O.hint_step and O.a_exit:
            E("s_endpgm")
    stamp(2)
    E(f"s_and_b32 s{S_T0}, s{S_WAVE}, 1")
    E(f"s_lshl_b32 s{S_T1}, s{S_A}, 1")
    E(f"s_add_u32 s{S_T0}, s{S_T0}, s{S_T1}")
    E(f"s_bfe_u32 s{S_T1}, s{S_WAVE}, 0x10001")
    E(f"s_lshl_b32 s{S_T2}, s{S_B}, 1")
    E(f"s_add_u32 s{S_T1}, s{S_T1}, s{S_T2}")
    E("v_and_b32 v8, 63, v0")
    if vwave:
        E("v_and_b32 v9, 15, v8")
        E("v_lshlrev_b32 v9, 4, v9")
        E("v_bfe_u32 v10, v8, 5, 1")
        E("v_lshl_add_u32 v9, v10, 8, v9")
        E("v_bfe_u32 v10, v8, 4, 1")
        E("v_lshl_add_u32 v9, v10, 17, v9")
        E(f"s_lshl_b32 s{S_T1}, s{S_T1}, 18")
        E(f"s_lshl_b32 s{S_T0}, s{S_T0}, 11")
        E(f"s_add_u32 s{S_T0}, s{S_T0}, s{S_T1}")
        E("s_nop 7")
        for i in range(8):
            E(f"v_cvt_pk_bf16_f32 v{16+i}, v{64+2*i}, v{65+2*i}")
        E(f"buffer_store_dwordx4 v[16:19], v9, {sr(WS)}, s{S_T0} offen offset:1024 sc0 sc1")
        E(f"buffer_store_dwordx4 v[20:23], v9, {sr(WS)}, s{S_T0} offen offset:1536 sc0 sc1")
    else:
        E("v_lshlrev_b32 v9, 4, v8")
        E(f"s_lshl_b32 s{S_T2}, s{S_T1}, 18")
        E(f"s_lshl_b32 s{S_T3}, s{S_T0}, 11")
        E(f"s_add_u32 s{S_T2}, s{S_T2}, s{S_T3}")
        E(f"s_lshr_b32 s{S_T3}, s{S_T2}, 1")
        E(f"s_add_u32 s{S_T3}, s{S_T3}, {WS_Q:#x}")
        E(f"s_add_u32 s{S_C}, s{S_T2}, 0x20000")
        E(f"s_add_u32 s{S_D}, s{S_T3}, 0x10000")
        E(f"s_mov_b32 s{S_CNT}, {QSCALE:#x}")
        E("s_nop 7")
        for i in range(8):
            E(f"v_cvt_pk_bf16_f32 v{16+i}, v{80+2*i}, v{81+2*i}")
        E(f"buffer_store_dwordx4 v[16:19], v9, {sr(WS)}, s{S_T2} offen sc0 sc1")
        E(f"buffer_store_dwordx4 v[20:23], v9, {sr(WS)}, s{S_C} offen sc0 sc1")
        for i in range(16):
            E(f"v_mul_f32 v{64+i}, s{S_CNT}, v{64+i}")
        for i in range(8):
            E(f"v_cvt_pk_bf16_f32 v{24+i}, v{64+2*i}, v{65+2*i}")
        E(f"buffer_store_dwordx4 v[24:27], v9, {sr(WS)}, s{S_T3} offen sc0 sc1")
        E(f"buffer_store_dwordx4 v[28:31], v9, {sr(WS)}, s{S_D} offen sc0 sc1")
        for g in range(4):
            E(f"v_mul_f32 v{32+g}, v{64+8*g}, v{64+8*g}")
        for i in range(1, 8):
            for g in range(4):
                E(f"v_fmac_f32 v{32+g}, v{64+8*g+i}, v{64+8*g+i}")
        E("s_nop 1")
        E("v_permlane32_swap_b32 v32, v33")
        E("v_permlane32_swap_b32 v34, v35")
        E("s_nop 1")
        E("v_add_f32 v32, v32, v33")
        E("v_add_f32 v33, v34, v35")
        dpp_max((32, 33))
        E(f"s_lshl_b32 s{S_T0}, s{S_B}, 11")
        E(f"s_lshl_b32 s{S_T1}, s{S_A}, 6")
        E(f"s_add_u32 s{S_T0}, s{S_T0}, s{S_T1}")
        E(f"s_lshl_b32 s{S_T1}, s{S_WAVE}, 3")
        E(f"s_add_u32 s{S_T0}, s{S_T0}, s{S_T1}")
        E(f"s_add_u32 s{S_T0}, s{S_T0}, {WS_FKV + 16:#x}")
        E("v_mov_b32 v10, 0")
        E("s_brev_b64 exec, 1")
        E(f"buffer_store_dwordx2 v[32:33], v10, {sr(WS)}, s{S_T0} offen sc0 sc1")
        E("s_mov_b64 exec, -1")


S0, S1, OA, OB, QX, QY, K0, K1, V0, V1 = 16, 32, 48, 64, 80, 84, 88, 92, 96, 104
IDX, VK, VV, VD, VKB, VVB, VT, VL = 112, 113, 114, 115, 116, 117, 118, 119
KVS = 16384


def a_kv_dma():
    E(f"s_add_u32 m0, s{S_XK}, s{S_W1K}")
    E(f"s_add_u32 s{S_T0}, s{S_WB}, s{S_WK}")
    E(f"buffer_load_dwordx4 v{VD}, {sr(WS)}, s{S_T0} offen sc1 lds")
    E(f"buffer_load_dwordx4 v{VD}, {sr(WS)}, s{S_T0} offen offset:1024 sc1 lds")
    E(f"s_add_u32 s{S_WK}, s{S_WK}, {KVS}")
    E(f"s_and_b32 s{S_WK}, s{S_WK}, {8*KVS-1:#x}")
    E(f"s_add_u32 s{S_XK}, s{S_XK}, {KVS}")
    E(f"s_cmp_eq_u32 s{S_XK}, {5*KVS}")
    E(f"s_cselect_b32 s{S_XK}, 0, s{S_XK}")


def a_attention():
    E(f"s_bfe_u32 s{S_C}, s2, 0x20001")
    if O.qx:
        E(f"s_xor_b32 s{S_C}, s{S_C}, {O.qx}")
    if O.pflip:
        E(f"s_and_b32 s{S_T0}, s2, 1")
    else:
        E(f"s_andn2_b32 s{S_T0}, 1, s2")
    E(f"s_lshl_b32 s{S_T0}, s{S_T0}, 2")
    E(f"s_add_u32 s{S_C}, s{S_C}, s{S_T0}")
    E(f"s_lshr_b32 s{S_T0}, s2, 6")
    if O.amap:
        E(f"s_and_b32 s{S_C}, s2, 6")
        E(f"s_bfe_u32 s{S_T1}, s2, 0x10005")
        E(f"s_add_u32 s{S_C}, s{S_C}, s{S_T1}")
        E(f"s_xor_b32 s{S_C}, s{S_C}, 4")
    E(f"s_lshl_b32 s{S_D}, s{S_C}, 2")
    E(f"s_add_u32 s{S_D}, s{S_D}, s{S_T0}")
    E(f"s_lshl_b32 s{S_T0}, s{S_B}, 11")
    E(f"s_lshl_b32 s{S_T1}, s{S_A}, 6")
    E(f"s_add_u32 s{S_T0}, s{S_T0}, s{S_T1}")
    E(f"s_add_u32 s{S_XB}, s{S_T0}, {WS_FKV:#x}")
    if O.amap:
        E(f"s_bfe_u32 s{S_A}, s2, 0x20003")
        E(f"s_and_b32 s{S_T0}, s2, 1")
        E(f"s_lshl_b32 s{S_T0}, s{S_T0}, 2")
        E(f"s_add_u32 s{S_A}, s{S_A}, s{S_T0}")
    else:
        E(f"s_bfe_u32 s{S_A}, s2, 0x30003")
    E("v_and_b32 v8, 63, v0")
    E(f"v_lshlrev_b32 v{VL}, 4, v8")
    E(f"s_lshl_b32 s{S_W1K}, s{S_WAVE}, 11")
    E(f"v_add_u32 v{VD}, s{S_W1K}, v{VL}")
    E(f"s_lshl_b32 s{S_WB}, s{S_D}, 17")
    if O.kv_rot:
        E(f"s_lshl_b32 s{S_WK}, s{S_A}, 14")
    else:
        E(f"s_mov_b32 s{S_WK}, 0")
    E(f"s_mov_b32 s{S_XK}, 0")
    E(f"s_lshl_b32 s{S_T1}, s{S_A}, 3")
    E(f"s_and_b32 s{S_T2}, s{S_WAVE}, 3")
    E(f"s_lshl_b32 s{S_T2}, s{S_T2}, 1")
    E(f"s_add_u32 s{S_B}, s{S_T1}, s{S_T2}")
    E(f"s_lshl_b32 s{S_T1}, s{S_B}, 10")
    E(f"s_lshl_b32 s{S_T2}, s{S_D}, 16")
    E(f"s_add_u32 s{S_T1}, s{S_T1}, s{S_T2}")
    E(f"s_add_u32 s4, s{S_T1}, {WS_Q:#x}")
    E(f"s_lshr_b32 s{S_T3}, s{S_WAVE}, 2")
    E(f"s_add_u32 s{S_T3}, s{S_B}, s{S_T3}")
    E(f"s_mul_i32 s5, s{S_T3}, 144")
    E(f"s_add_u32 s5, s5, s{S_D}")
    E("s_lshl_b32 s5, s5, 10")
    E(f"s_add_u32 s5, s5, {WS_HO + 112*1024:#x}")
    E(f"s_lshl_b32 s6, s{S_T3}, 11")
    E(f"s_lshl_b32 s{S_T2}, s{S_D}, 6")
    E(f"s_add_u32 s6, s6, s{S_T2}")
    E(f"s_add_u32 s6, s6, {WS_FO:#x}")
    E(f"s_add_u32 s7, s6, {WS_FO2 - WS_FO:#x}")
    E(f"s_lshr_b32 s{S_T0}, s{S_WAVE}, 2")
    E(f"s_lshl_b32 s{S_T0}, s{S_T0}, 11")
    E(f"v_add_u32 v{VKB}, s{S_T0}, v{VL}")
    E("v_and_b32 v9, 15, v8")
    E("v_lshlrev_b32 v9, 4, v9")
    E("v_bfe_u32 v10, v8, 5, 1")
    E("v_lshl_add_u32 v9, v10, 8, v9")
    E(f"s_add_u32 s{S_T0}, s{S_T0}, 1024")
    E(f"v_add_u32 v{VVB}, s{S_T0}, v9")
    E(f"v_mov_b32 v{VK}, v{VKB}")
    E(f"v_mov_b32 v{VV}, v{VVB}")
    E(f"v_mov_b32 v{IDX}, 0xdddddddd")
    E("v_and_b32 v9, 27, v8")
    E("v_cmp_eq_u32 vcc, 16, v9")
    E("v_mov_b32 v9, 0x3f803f80")
    E("s_nop 0")
    E(f"v_cndmask_b32 v{V0}, 0, v9, vcc")
    for i in range(1, 16):
        E(f"v_mov_b32 v{V0+i}, v{V0}")
    if O.touch:
        E(f"s_lshr_b32 s{S_T0}, s2, 3")
        E(f"s_lshl_b32 s{S_T0}, s{S_T0}, 3")
        E(f"s_add_u32 s{S_T0}, s{S_T0}, s{S_WAVE}")
        E(f"s_lshl_b32 s{S_T0}, s{S_T0}, 11")
        E(f"v_lshlrev_b32 v{VT}, 7, v8")
        E(f"v_add_u32 v{VT}, s{S_T0}, v{VT}")
    E(f"s_mov_b32 s{S_VM}, 0xffff")
    E(f"s_mov_b32 s{S_VM+1}, 0xffff")
    E(f"s_mov_b32 s{S_SLOT}, 0")
    E(f"s_mov_b32 s{S_CNT}, 0")
    for i in range(32):
        E(f"v_mov_b32 v{OA+i}, 0")
    for i in range(8, 16):
        E(f"v_mov_b32 v{S1+i}, 0")
    E("s_waitcnt vmcnt(0)")
    E("s_barrier")
    stamp(3)
    E(f"s_cmp_lg_u32 s{S_WAVE}, 0")
    E("s_cbranch_scc1 A_wait1")
    E(f"v_readfirstlane_b32 s{S_TAG}, v14")
    E("s_nop 3")
    E(f"s_cmp_lg_u32 s{S_TAG}, 0")
    E("s_cbranch_scc1 A_tag_ok")
    get_tag("A_tag")
    put_flag(S_XB)
    E("v_and_b32 v10, 31, v0")
    E("v_lshlrev_b32 v10, 6, v10")
    E(f"s_bfe_u32 s{S_T1}, s{S_D}, 0x10001")
    E(f"s_lshl_b32 s{S_T1}, s{S_T1}, 4")
    E(f"s_add_u32 s{S_T1}, s{S_T1}, 16")
    E("v_bfe_u32 v11, v0, 5, 1")
    E(f"v_mul_u32_u24 v11, s{S_T1}, v11")
    E("v_add_u32 v10, v10, v11")
    E(f"s_lshl_b32 s{S_T0}, s{S_C}, 11")
    E(f"s_add_u32 s{S_T0}, s{S_T0}, {WS_FKV:#x}")
    E(f"s_mov_b32 s{S_SPIN}, 0x40000")
    E.label("A_pollkv")
    E(f"buffer_load_dwordx4 v[4:7], v10, {sr(WS)}, s{S_T0} offen sc1")
    E("s_waitcnt vmcnt(0)")
    E(f"v_cmp_ne_u32 vcc, s{S_TAG}, v4")
    E("s_nop 4")
    E("s_cmp_eq_u32 vcc_lo, 0")
    E("s_cbranch_scc1 A_pollkv_ok")
    E(f"s_sleep {O.sl_kv}")
    E(f"s_sub_u32 s{S_SPIN}, s{S_SPIN}, 1")
    E(f"s_cmp_lg_u32 s{S_SPIN}, 0")
    E("s_cbranch_scc1 A_pollkv")
    E.label("A_pollkv_ok")
    E("s_barrier")
    E("s_branch A_go")
    E.label("A_wait1")
    E("s_barrier")
    E.label("A_go")
    stamp(4)
    a_kv_dma()
    E(f"buffer_load_dwordx4 {vr(QX,4)}, v{VL}, {sr(WS)}, s4 offen sc1")
    E(f"buffer_load_dwordx4 {vr(QY,4)}, v{VL}, {sr(WS)}, s4 offen offset:1024 sc1")
    for c in range(1, O.kv_first):
        a_kv_dma()
    E(f"s_cmp_lg_u32 s{S_WAVE}, 0")
    E("s_cbranch_scc1 A_nored")
    E("v_max_u32 v4, v4, v6")
    E("v_max_u32 v5, v5, v7")
    for ctl in ("row_shr:1", "row_shr:2", "row_shr:4", "row_shr:8", "row_bcast:15 row_mask:0xa"):
        E("s_nop 1")
        for r in (4, 5):
            m = "" if "row_mask" in ctl else " row_mask:0xf"
            E(f"v_max_u32_dpp v{r}, v{r}, v{r} {ctl}{m} bank_mask:0xf")
    E("s_nop 0")
    E("v_mul_f32 v4, v4, v5")
    E(f"v_mov_b32 v5, s{S_TAG}")
    E(f"v_mov_b32 v6, {5 * KVS - 8}")
    E("s_brev_b64 exec, 1")
    E("ds_write_b64 v6, v[4:5]")
    E("s_mov_b64 exec, -1")
    E("s_waitcnt lgkmcnt(0)")
    E.label("A_nored")
    E(f"s_setprio {O.prio_a_att}")
    E(f"s_waitcnt vmcnt({2*O.kv_first - (4 if O.pair and not O.kv_wait1 else 2)})")
    E("s_barrier")
    stamp(5)

    def vreads(dst, off):
        E(f"s_mov_b64 exec, s[{S_VM}:{S_VM+1}]")
        E(f"ds_read_b128 {vr(dst,4)}, v{VV} offset:{off}")
        E(f"ds_read_b128 {vr(dst+4,4)}, v{VV} offset:{off+512}")
        E("s_mov_b64 exec, -1")

    E(f"ds_read_b128 {vr(K0,4)}, v{VK}")
    vreads(V0, 0)
    E(f"v_mov_b32 v6, {5 * KVS - 8}")
    E("ds_read_b64 v[4:5], v6")
    if O.early_o:
        for i in range(4):
            E(f"v_mov_b32 v{120+i}, -1")
        E(f"buffer_store_dwordx4 v[120:123], v{VL}, {sr(WS)}, s5 offen sc0 sc1")
    E("s_waitcnt lgkmcnt(0)")
    E(f"v_readfirstlane_b32 s{S_T0}, v4")
    E(f"v_readfirstlane_b32 s{S_TAG}, v5")
    E(f"v_mfma_f32_32x32x16_bf16 {vr(S0,16)}, {vr(K0,4)}, {vr(QX,4)}, 0")
    E("s_nop 3")
    E(f"s_cmp_gt_u32 s{S_T0}, {THR2:#x}")
    if O.force_slow:
        E("s_branch A_slow")
    E("s_cbranch_scc1 A_slow")
    E("s_nop 7")

    def chunk_turn():
        E("s_waitcnt vmcnt(0)")
        E("s_barrier")
        E(f"s_cmp_gt_u32 s{S_CNT}, {7 - O.kv_first}")
        lab = f"A_nf{len(E.L)}"
        E(f"s_cbranch_scc1 {lab}")
        a_kv_dma()
        E.label(lab)
        if O.touch:
            E(f"s_sub_u32 s{S_T0}, s{S_CNT}, {O.wd_t0}")
            E(f"s_lshl_b32 s{S_T0}, s{S_T0}, 19")
            E("s_mov_b64 exec, 0xffff")
            E(f"s_cmp_gt_u32 s{S_T0}, {3 << 19}")
            E(f"s_cbranch_scc1 {lab}t")
            E(f"buffer_load_dword v15, v{VT}, {sr(WD)}, s{S_T0} offen")
            E.label(lab + "t")
            E(f"s_cmp_lg_u32 s{S_CNT}, {O.wo_t}")
            E(f"s_cbranch_scc1 {lab}u")
            E(f"buffer_load_dword v15, v{VT}, {sr(WO)}, 0 offen")
            E.label(lab + "u")
            E("s_mov_b64 exec, -1")
        E(f"s_add_u32 s{S_SLOT}, s{S_SLOT}, {KVS}")
        E(f"s_cmp_eq_u32 s{S_SLOT}, {5*KVS}")
        E(f"s_cselect_b32 s{S_SLOT}, 0, s{S_SLOT}")
        E(f"v_add_u32 v{VK}, s{S_SLOT}, v{VKB}")
        E(f"v_add_u32 v{VV}, s{S_SLOT}, v{VVB}")

    NT = 16 if O.pair else 8
    RF = {0: (3, 5, 7), 1: (3, 7, 11), 2: (5, 9, 13)}[O.rf_late]

    def next_slot():
        E(f"s_add_u32 s{S_SLOT}, s{S_SLOT}, {KVS}")
        E(f"s_cmp_eq_u32 s{S_SLOT}, {5*KVS}")
        E(f"s_cselect_b32 s{S_SLOT}, 0, s{S_SLOT}")
        E(f"v_add_u32 v{VK}, s{S_SLOT}, v{VKB}")
        E(f"v_add_u32 v{VV}, s{S_SLOT}, v{VVB}")

    def refill(lab, lo, hi):
        if lo == hi:
            E(f"s_cmp_lg_u32 s{S_CNT}, {lo}")
        else:
            E(f"s_cmp_gt_u32 s{S_CNT}, {hi}")
        E(f"s_cbranch_scc1 {lab}")
        a_kv_dma()
        E.label(lab)

    if O.bar_diag:
        E("s_mov_b32 s86, 0"); E("s_mov_b32 s88, 0")
    E.raw(".p2align 6")
    E.label("A_loop")
    ga, gb, gc = O.ga, O.ga + O.gb, O.ga + O.gb + O.gc
    for t in range(NT):
        blk, kt = t & 1, (t >> 1) & 3
        Sc, Sn = (S0, S1) if blk == 0 else (S1, S0)
        Oc, On = (OA, OB) if blk == 0 else (OB, OA)
        Vk, Vo = (V0, V1) if kt & 1 == 0 else (V1, V0)
        Kk, Ko = (K0, K1) if kt & 1 == 0 else (K1, K0)
        if not O.pair:
            if t == 6:
                chunk_turn()
        elif t == 6:
            if O.kv_wait1:
                E(f"s_cmp_lg_u32 s{S_CNT}, 0")
                E("s_cbranch_scc1 A_nb")
                E(f"s_waitcnt vmcnt({2 * len([x for x in RF[:5 - O.kv_first] if x < 6])})")
                E("s_barrier")
                E.label("A_nb")
            next_slot()
        elif t == 14:
            if O.bar_diag:
                E("s_memtime s[68:69]"); E("s_waitcnt lgkmcnt(0)"); E("s_sub_u32 s86, s86, s68")
            if O.kv_cnt:
                E(f"s_cmp_eq_u32 s{S_CNT}, 0")
                E("s_cbranch_scc1 A_w2")
                E("s_waitcnt vmcnt(0)")
                E.label("A_w2")
                E("s_waitcnt vmcnt(2)")
            else:
                E("s_waitcnt vmcnt(0)")
            if O.bar_diag:
                E("s_memtime s[68:69]"); E("s_waitcnt lgkmcnt(0)"); E("s_add_u32 s86, s86, s68"); E("s_sub_u32 s88, s88, s68")
            E("s_barrier")
            if O.bar_diag:
                E("s_memtime s[68:69]"); E("s_waitcnt lgkmcnt(0)"); E("s_add_u32 s88, s88, s68")
            next_slot()
        ex = lambda a, b: [E(f"v_exp_f32 v{Sc+i}, v{Sc+i}") for i in range(a, b)]
        ph = ((t + 2) % NT) * 8 // NT
        TAB = {5: [3]*6 + [2]*5 + [1]*3 + [0]*2, 6: [3]*2 + [2]*4 + [1]*5 + [0]*5, 7: [3]*5 + [2]*5 + [1]*4 + [0]*2}
        prf = lambda ph: {0: O.prio_a_att, 4: 3 - ph // 2, 2: O.prio_a_att + (1 if ph < 4 else 0), 3: O.prio_a_att + [2, 2, 2, 1, 1, 1, 0, 0][ph]}[O.bal]
        if O.bal >= 5:
            pr, prev = TAB[O.bal][(t + 2) % NT], TAB[O.bal][(t + 1) % NT]
        else:
            pr, prev = prf(ph), prf(((t + 1) % NT) * 8 // NT)
        if O.bal and not O.toggle and pr != prev:
            E(f"s_setprio {pr}")

        def mm(x):
            if O.toggle: E(f"s_setprio {O.toggle}")
            E(x)
            if O.toggle: E(f"s_setprio {pr}")
        ex(0, ga)
        mm(f"v_smfmac_f32_32x32x32_bf16 {vr(On,16)}, {vr((Vo if blk == 0 else Vk) + 4,4)}, {vr(Sn+8,8)}, v{IDX}")
        if blk == 0:
            off = ((kt + 1) % 4) * 4096
            E(f"ds_read_b128 {vr(Ko,4)}, v{VK} offset:{off}")
            vreads(Vo, off)
        ex(ga, gb)
        if blk == 1:
            E("s_waitcnt lgkmcnt(0)")
        mm(f"v_mfma_f32_32x32x16_bf16 {vr(Sn,16)}, {vr(Kk if blk == 0 else Ko,4)}, {vr(QY if blk == 0 else QX,4)}, 0")
        ex(gb, gc)
        mm(f"v_smfmac_f32_32x32x32_bf16 {vr(Oc,16)}, {vr(Vk,4)}, {vr(Sc,8)}, v{IDX}")
        if O.pair and t == 15:
            refill("A_rf0", 0, 1)
        if O.pair and t == 1:
            refill("A_rf1", 2, 2)
        if O.pair and O.kv_first < 5 and t in RF[:5 - O.kv_first]:
            refill(f"A_rf{t}", 0, 0)
        ex(gc, 16)
    E(f"s_add_u32 s{S_CNT}, s{S_CNT}, 1")
    E(f"s_cmp_lt_u32 s{S_CNT}, {O.att_iters * 8 // NT}")
    E("s_cbranch_scc1 A_loop")
    E("s_nop 1")
    E(f"v_smfmac_f32_32x32x32_bf16 {vr(OB,16)}, {vr(V1+4,4)}, {vr(S1+8,8)}, v{IDX}")
    E.label("A_fin")
    stamp(6)
    E("s_setprio 3")
    E(f"s_lshr_b32 s{S_T3}, s{S_WAVE}, 2")
    E(f"s_lshl_b32 s{S_T1}, s{S_WAVE}, 12")
    E(f"s_xor_b32 s{S_T2}, s{S_T1}, 16384")
    E(f"v_add_u32 v10, s{S_T1}, v{VL}")
    E(f"v_add_u32 v11, s{S_T2}, v{VL}")
    E("s_nop 5")
    if O.x_noex:
        E("s_branch A_noex")
    E(f"s_cmp_lg_u32 s{S_T3}, 0")
    E("s_cbranch_scc1 A_hi")
    for i in range(3):
        E(f"ds_write_b128 v10, {vr(OB+4*i,4)} offset:{1024*i}")
    E("s_branch A_x")
    E.label("A_hi")
    for i in range(3):
        E(f"ds_write_b128 v10, {vr(OA+4*i,4)} offset:{1024*i}")
    E("s_nop 1")
    for i in range(9):
        E(f"v_mov_b32 v{OA+i}, v{OB+i}")
    E.label("A_x")
    E("s_waitcnt lgkmcnt(0)")
    E("s_barrier")
    E(f"ds_read_b128 {vr(S0+8,4)}, v11 offset:2048")
    E(f"ds_read_b128 {vr(S0,4)}, v11")
    E(f"ds_read_b128 {vr(S0+4,4)}, v11 offset:1024")
    E("s_waitcnt lgkmcnt(2)")
    E.label("A_noex")
    E(f"v_add_f32 v12, v{OA+8}, v{S0+8}")
    E("v_rcp_f32 v12, v12")
    E("s_waitcnt lgkmcnt(0)")
    for i in range(8):
        E(f"v_add_f32 v{OA+i}, v{OA+i}, v{S0+i}")
    for i in range(8):
        E(f"v_mul_f32 v{OA+i}, v12, v{OA+i}")
    for i in range(4):
        E(f"v_cvt_pk_bf16_f32 v{S1+i}, v{OA+2*i}, v{OA+2*i+1}")
    E(f"buffer_store_dwordx4 {vr(S1,4)}, v{VL}, {sr(WS)}, s5 offen sc0 sc1")
    if O.early_o:
        put_flag(6)
        stamp(7)
        E("s_waitcnt vmcnt(0)")
        put_flag(7)
    else:
        E("s_waitcnt vmcnt(0)")
        put_flag(6)
        stamp(7)
    flush_stamps(range(10), "A_st")
    E("s_endpgm")

    E.label("A_slow")
    MX, MY, T, AL = 4, 5, 6, 7
    E(f"v_mov_b32 v{MX}, 0xff7fffff")
    E(f"v_mov_b32 v{MY}, 0xff7fffff")
    E.label("A_sloop")
    E(f"s_mov_b32 s{S_T3}, 0")
    E.label("A_stile")
    E(f"ds_read_b128 {vr(K0,4)}, v{VK}")
    vreads(V0, 0)
    E(f"v_add_u32 v{VK}, 4096, v{VK}")
    E(f"v_add_u32 v{VV}, 4096, v{VV}")
    E("s_waitcnt lgkmcnt(0)")
    for (M, Q, Oc) in ((MX, QX, OA), (MY, QY, OB)):
        E(f"v_mfma_f32_32x32x16_bf16 {vr(S0,16)}, {vr(K0,4)}, {vr(Q,4)}, 0")
        E("s_nop 15")
        E(f"v_max3_f32 v{T}, v{S0}, v{S0+1}, v{M}")
        for i in range(1, 8):
            E(f"v_max3_f32 v{T}, v{S0+2*i}, v{S0+2*i+1}, v{T}")
        E(f"v_mov_b32 v{AL}, v{T}")
        E("s_nop 1")
        E(f"v_permlane32_swap_b32 v{T}, v{AL}")
        E("s_nop 1")
        E(f"v_max_f32 v{T}, v{T}, v{AL}")
        E(f"v_sub_f32 v{AL}, v{M}, v{T}")
        E(f"v_exp_f32 v{AL}, v{AL}")
        E(f"v_mov_b32 v{M}, v{T}")
        for i in range(16):
            E(f"v_sub_f32 v{S0+i}, v{S0+i}, v{T}")
        for i in range(16):
            E(f"v_exp_f32 v{S0+i}, v{S0+i}")
        for i in range(9):
            E(f"v_mul_f32 v{Oc+i}, v{AL}, v{Oc+i}")
        E("s_nop 1")
        E(f"v_smfmac_f32_32x32x32_bf16 {vr(Oc,16)}, {vr(V0,4)}, {vr(S0,8)}, v{IDX}")
        E(f"v_smfmac_f32_32x32x32_bf16 {vr(Oc,16)}, {vr(V0+4,4)}, {vr(S0+8,8)}, v{IDX}")
    E(f"s_add_u32 s{S_T3}, s{S_T3}, 1")
    E(f"s_cmp_lt_u32 s{S_T3}, 4")
    E("s_cbranch_scc1 A_stile")
    chunk_turn()
    E(f"s_add_u32 s{S_CNT}, s{S_CNT}, 1")
    E(f"s_cmp_lt_u32 s{S_CNT}, 8")
    E("s_cbranch_scc1 A_sloop")
    E(f"s_lshl_b32 s{S_T1}, s{S_WAVE}, 10")
    E(f"s_add_u32 s{S_T1}, s{S_T1}, 65536")
    E(f"s_xor_b32 s{S_T2}, s{S_T1}, 4096")
    E(f"v_add_u32 v10, s{S_T1}, v{VL}")
    E(f"v_add_u32 v11, s{S_T2}, v{VL}")
    E(f"ds_write_b64 v10, v[{MX}:{MY}]")
    E("s_waitcnt lgkmcnt(0)")
    E("s_barrier")
    E(f"ds_read_b64 v[{T}:{AL}], v11")
    E("s_waitcnt lgkmcnt(0)")
    for (M, P, Oc) in ((MX, T, OA), (MY, AL, OB)):
        E(f"v_max_f32 v{P}, v{P}, v{M}")
        E(f"v_sub_f32 v{P}, v{M}, v{P}")
        E(f"v_exp_f32 v{P}, v{P}")
        E("s_nop 0")
        for i in range(9):
            E(f"v_mul_f32 v{Oc+i}, v{P}, v{Oc+i}")
    E("s_branch A_fin")


F_XS, F_WS0, F_WSZ = 16384, 32768, 16384
WROW = 3584


def f_dma_x(u, vm):
    E(f"s_add_u32 m0, s{S_W1K}, {(u % 2) * F_XS}")
    E(f"s_add_u32 s{S_T0}, s{S_XB}, s{S_XK}")
    E(f"buffer_load_dwordx4 v1, {sr(X)}, s{S_T0} offen lds")
    E(f"s_add_u32 m0, s{S_W1K}, {(u % 2) * F_XS + 8192}")
    E(f"s_add_u32 s{S_T0}, s{S_T0}, 0x10000")
    E(f"buffer_load_dwordx4 v1, {sr(X)}, s{S_T0} offen lds")
    E(f"s_add_u32 s{S_XK}, s{S_XK}, 128")
    E(f"s_and_b32 s{S_XK}, s{S_XK}, 1023")
    vm.issue(("x", u), 2)


def f_dma_w(s, vm):
    base = F_WS0 + (s % 3) * F_WSZ
    E(f"s_add_u32 m0, s{S_W1K}, {base}")
    E("s_nop 0")
    E(f"buffer_load_dwordx4 v2, {sr(W1)}, s{S_WK} offen lds")
    E(f"s_add_u32 m0, s{S_W1K}, {base + 8192}")
    E("s_nop 0")
    E(f"buffer_load_dwordx4 v3, {sr(WU)}, s{S_WK} offen lds")
    E(f"s_add_u32 s{S_WK}, s{S_WK}, {32 * WROW}")
    E(f"s_cmp_eq_u32 s{S_WK}, {512 * WROW}")
    E(f"s_cselect_b32 s{S_WK}, 0, s{S_WK}")
    vm.issue(("w", s), 2)


def f_prologue():
    E(f"s_cmp_ge_u32 s2, {256 if O.no_f else 512}")
    E("s_cbranch_scc1 L_end")
    if O.diag_span:
        E("s_memrealtime s[92:93]")
        E("s_waitcnt lgkmcnt(0)")
    stamp(0)
    E(f"s_load_dwordx2 s[{X}:{X+1}], s[0:1], 0")
    E(f"s_load_dwordx2 s[{W1}:{W1+1}], s[0:1], 32")
    E(f"s_load_dwordx2 s[{WU}:{WU+1}], s[0:1], 40")
    E(f"s_load_dwordx2 s[{WS}:{WS+1}], s[0:1], 80")
    E(f"s_load_dwordx2 s[{DBG}:{DBG+1}], s[0:1], 72")
    E(f"s_load_dwordx2 s[{WD}:{WD+1}], s[0:1], 48")
    E(f"s_load_dwordx2 s[{WO}:{WO+1}], s[0:1], 16")
    E(f"s_load_dwordx2 s[{OUT}:{OUT+1}], s[0:1], 64")
    E(f"s_load_dwordx2 s[{GW}:{GW+1}], s[0:1], 56")
    E("v_lshrrev_b32 v8, 6, v0")
    E(f"s_bfe_u32 s{S_C}, s2, 0x50003")
    E(f"v_readfirstlane_b32 s{S_WAVE}, v8")
    E("s_getpc_b64 s[4:5]")
    E.label("F_pc")
    E(f"s_add_u32 s4, s4, CODE_START - F_pc")
    E("s_addc_u32 s5, s5, -1")
    E("s_mov_b32 s6, CODE_END - CODE_START")
    E("s_mov_b32 s7, 0x20000")
    E(f"s_lshl_b32 s{S_T0}, s{S_C}, 10")
    E(f"s_lshl_b32 s{S_T1}, s{S_WAVE}, 7")
    E(f"s_add_u32 s{S_T0}, s{S_T0}, s{S_T1}")
    E("v_mov_b32 v9, 0")
    E("s_mov_b64 exec, 1")
    E(f"buffer_load_dword v120, v9, s[4:7], s{S_T0} offen")
    E("s_mov_b64 exec, -1")
    E("s_branch F_main")


L16, VB_, VW_, RB, RW, RB2, RW2, RWO, HT, GV, OUTA, EX0, EX1, RO, PFH, PFO = range(48, 64)
S_RT, S_DL, S_DB, S_HT, S_G, S_OL, S_OS, S_OUT, S_PH, S_PO, S_H0, S_H1, S_FL = range(70, 83) if False else (8, 9, 10, 11, 67, 96, 97, 98, 99, 100, 101, 63, 62)


def g2_setup():
    E(f"s_and_b32 s{S_RT}, s2, 7")
    if O.rswap:
        E(f"s_xor_b32 s{S_RT}, s{S_RT}, {O.rswap}")
    if O.rperm == 1:
        E(f"s_add_u32 s{S_T0}, s2, 1")
        E(f"s_and_b32 s{S_T0}, s{S_T0}, 3")
        E(f"s_lshl_b32 s{S_T0}, s{S_T0}, 1")
        E(f"s_lshr_b32 s{S_RT}, s{S_RT}, 2")
        E(f"s_add_u32 s{S_RT}, s{S_RT}, s{S_T0}")
    if O.rperm == 2:
        tab = [4, 0, 6, 2, 5, 1, 7, 3]
        word = sum(v << (4 * i) for i, v in enumerate(tab))
        E(f"s_lshl_b32 s{S_T0}, s{S_RT}, 2")
        E(f"s_lshr_b32 s{S_RT}, {word:#x}, s{S_T0}")
        E(f"s_and_b32 s{S_RT}, s{S_RT}, 7")
    E(f"s_lshl_b32 s{S_RT}, s{S_RT}, 2")
    E(f"s_and_b32 s{S_T1}, s{S_C}, 3")
    E(f"s_add_u32 s{S_RT}, s{S_RT}, s{S_T1}")
    E(f"s_lshr_b32 s{S_B}, s{S_C}, 2")
    E(f"s_mul_i32 s{S_DB}, s{S_RT}, {288 * 1024}")
    E(f"s_add_u32 s{S_DB}, s{S_DB}, {WS_HO:#x}")
    E(f"v_and_b32 v{L16}, 63, v0")
    E(f"v_lshlrev_b32 v{L16}, 4, v{L16}")
    E(f"s_and_b32 s{S_T0}, s{S_WAVE}, 1")
    E(f"s_lshr_b32 s{S_T2}, s{S_WAVE}, 1")
    E(f"s_mul_i32 s{S_T1}, s{S_T0}, 144")
    E(f"s_add_u32 s{S_T1}, s{S_T1}, s{S_T2}")
    E(f"s_lshl_b32 s{S_T1}, s{S_T1}, 10")
    E(f"v_add_u32 v{VB_}, s{S_T1}, v{L16}")
    E(f"s_lshl_b32 s{S_T1}, s{S_T0}, 2")
    E(f"s_add_u32 s{S_T1}, s{S_T1}, s{S_T2}")
    E(f"s_lshl_b32 s{S_DL}, s{S_T1}, 10")
    E("v_bfe_u32 v12, v0, 4, 1")
    E("v_lshlrev_b32 v13, 2, v12")
    E("v_xor_b32 v13, v13, v0")
    E("v_and_b32 v13, 7, v13")
    E("v_lshlrev_b32 v13, 4, v13")
    E("v_lshl_add_u32 v13, v9, 10, v13")
    E(f"s_lshl_b32 s{S_T1}, s{S_B}, 7")
    E(f"v_add_u32 v{VW_}, s{S_T1}, v13")
    E(f"s_lshr_b32 s{S_T3}, s{S_WAVE}, 2")
    E(f"s_lshl_b32 s{S_T1}, s{S_T0}, 12")
    E(f"s_lshl_b32 s{S_T2}, s{S_T3}, 11")
    E(f"s_add_u32 s{S_T1}, s{S_T1}, s{S_T2}")
    E(f"v_add_u32 v{RB}, s{S_T1}, v{L16}")
    E("v_bfe_u32 v13, v0, 2, 2")
    E("v_bfe_u32 v14, v0, 5, 1")
    E("v_lshl_add_u32 v15, v14, 2, v13")
    E("v_lshlrev_b32 v15, 7, v15")
    E("v_lshrrev_b32 v13, 1, v13")
    E(f"v_bfe_u32 v{HT}, v0, 7, 1")
    E(f"v_xor_b32 v13, v13, v{HT}")
    E("v_lshl_add_u32 v15, v13, 6, v15")
    E("v_lshl_add_u32 v15, v12, 5, v15")
    E("v_and_b32 v13, 3, v0")
    E("v_lshl_add_u32 v15, v13, 3, v15")
    E(f"s_lshl_b32 s{S_T1}, s{S_T3}, 12")
    E(f"s_add_u32 s{S_T1}, s{S_T1}, 8192")
    E(f"v_add_u32 v{RW}, s{S_T1}, v15")
    E(f"v_add_u32 v{RB2}, 0x10000, v{RB}")
    E(f"v_add_u32 v{RW2}, 0x10000, v{RW}")
    E(f"s_lshl_b32 s{S_T1}, s{S_T3}, 15")
    E(f"v_add_u32 v{RWO}, s{S_T1}, v15")
    E("v_and_b32 v13, 31, v0")
    E("v_bfe_u32 v15, v0, 6, 1")
    E("v_lshl_add_u32 v13, v15, 5, v13")
    E(f"v_lshlrev_b32 v{GV}, 2, v13")
    E("v_lshlrev_b32 v13, 10, v13")
    E("v_lshl_add_u32 v13, v14, 4, v13")
    E(f"v_lshl_add_u32 v13, v{HT}, 6, v13")
    E(f"s_lshl_b32 s{S_T1}, s{S_T3}, 5")
    E(f"v_add_u32 v{OUTA}, s{S_T1}, v13")
    E(f"s_lshl_b32 s{S_OUT}, s{S_RT}, 16")
    E(f"s_lshl_b32 s{S_T1}, s{S_B}, 7")
    E(f"s_add_u32 s{S_OUT}, s{S_OUT}, s{S_T1}")
    E(f"s_lshl_b32 s{S_G}, s{S_RT}, 8")
    E(f"s_add_u32 s{S_G}, s{S_G}, {WS_G:#x}")
    E(f"s_lshl_b32 s{S_T1}, s{S_B}, 3")
    E(f"s_add_u32 s{S_T1}, s{S_T1}, s{S_WAVE}")
    E(f"s_mul_i32 s{S_T1}, s{S_T1}, 1792")
    E(f"s_add_u32 s{S_HT}, s{S_T1}, s{S_DB}")
    E("v_and_b32 v13, 15, v0")
    E(f"v_lshlrev_b32 v{PFH}, 6, v13")
    E("v_lshlrev_b32 v13, 7, v13")
    E(f"v_mul_u32_u24 v12, {144 * 1024}, v12")
    E(f"v_add_u32 v{HT}, v13, v12")
    E(f"s_lshl_b32 s{S_T1}, s{S_WAVE}, 11")
    E(f"s_add_u32 s{S_T1}, s{S_T1}, 65536")
    E(f"s_xor_b32 s{S_T2}, s{S_T1}, 8192")
    E(f"v_add_u32 v{EX0}, s{S_T1}, v{L16}")
    E(f"v_add_u32 v{EX1}, s{S_T2}, v{L16}")
    E(f"s_bfe_u32 s{S_T2}, s{S_WAVE}, 0x10001")
    E(f"s_lshl_b32 s{S_T2}, s{S_T2}, 4")
    E(f"s_add_u32 s{S_T2}, s{S_T2}, s{S_T3}")
    E(f"s_lshl_b32 s{S_OL}, s{S_T0}, 5")
    E(f"s_add_u32 s{S_OL}, s{S_OL}, s{S_T2}")
    E(f"s_lshl_b32 s{S_OL}, s{S_OL}, 10")
    E(f"s_mul_i32 s{S_T1}, s{S_T0}, 144")
    E(f"s_add_u32 s{S_T1}, s{S_T1}, s{S_T2}")
    E(f"s_add_u32 s{S_T1}, s{S_T1}, 112")
    E(f"s_lshl_b32 s{S_T1}, s{S_T1}, 10")
    E(f"s_add_u32 s{S_OS}, s{S_DB}, s{S_T1}")
    E(f"s_lshl_b32 s{S_T0}, s{S_T0}, 15")
    E(f"s_lshl_b32 s{S_T3}, s{S_T3}, 14")
    E(f"s_add_u32 s{S_T0}, s{S_T0}, s{S_T3}")
    E(f"v_add_u32 v{RO}, s{S_T0}, v{L16}")
    E(f"v_lshlrev_b32 v{PFO}, 6, v0")
    E(f"s_lshr_b32 s{S_PH}, s{S_RT}, 1")
    E(f"s_lshl_b32 s{S_PH}, s{S_PH}, 10")
    E(f"s_add_u32 s{S_PH}, s{S_PH}, {WS_FH:#x}")
    E(f"s_lshl_b32 s{S_PO}, s{S_RT}, 12")
    E(f"s_add_u32 s{S_PO}, s{S_PO}, {WS_FO:#x}")


def f_main():
    E.raw("; ---- FFN role: gate/up projection + SiLU, gate, down projection, output projection, gated mix")
    E.label("F_main")
    srd(X, 0x200000); srd(W1, 512 * WROW); srd(WU, 512 * WROW); srd(WS, WS_SIZE); srd(DBG, 256)
    srd(WD, 1792 * 1024); srd(WO, 512 * 1024); srd(OUT, 0x200000); srd(GW, 1024)
    E(f"s_lshl_b32 s{S_W1K}, s{S_WAVE}, 10")
    E(f"s_setprio {O.prio_f if O.prio_up < 0 else O.prio_up}")
    E("v_lshrrev_b32 v9, 3, v0")
    E("v_lshrrev_b32 v10, 4, v0")
    E("v_xor_b32 v11, v10, v0")
    E("v_and_b32 v11, 7, v11")
    E("v_lshlrev_b32 v11, 4, v11")
    E("v_lshl_add_u32 v1, v9, 10, v11")
    if not O.g2_late:
        g2_setup()
    E("s_waitcnt lgkmcnt(0)")
    S_PAR, S_FA, S_B0, S_GO = S_D - 0, S_CNT, S_WB, S_VM
    S_PAR = S_VM + 1
    if O.flip:
        E(f"s_andn2_b32 s{S_PAR}, 1, s2")
    else:
        E(f"s_and_b32 s{S_PAR}, s2, 1")
    E(f"s_lshr_b32 s{S_T1}, s{S_C}, 2")
    E(f"s_lshl_b32 s{S_FA}, s{S_T1}, 3")
    E(f"s_mul_i32 s{S_T2}, s{S_T1}, 6")
    E(f"s_add_u32 s{S_T2}, s{S_T2}, 64")
    E(f"s_and_b32 s{S_T3}, s{S_T2}, 2")
    E(f"s_and_b32 s{S_T2}, s{S_T2}, 0xfc")
    E(f"s_cmp_eq_u32 s{S_PAR}, 1")
    E(f"s_cselect_b32 s{S_FA}, s{S_T2}, s{S_FA}")
    E(f"s_cselect_b32 s{S_T3}, s{S_T3}, 0")
    E(f"s_and_b32 s{S_B0}, s{S_WAVE}, 6")
    E(f"s_cmp_eq_u32 s{S_B0}, 6")
    E(f"s_cselect_b32 s{S_T2}, s{S_PAR}, 0")
    E(f"s_sub_u32 s{S_B0}, s{S_B0}, s{S_T2}")
    E(f"s_add_u32 s{S_B0}, s{S_B0}, s{S_T3}")
    E(f"s_lshl_b32 s{S_B}, s{S_PAR}, 3")
    E(f"s_add_u32 s{S_B}, s{S_B}, s{S_T1}")
    E(f"s_and_b32 s{S_T0}, s{S_C}, 3")
    E(f"s_and_b32 s{S_A}, s2, 6")
    E(f"s_lshl_b32 s{S_A}, s{S_A}, 1")
    E(f"s_add_u32 s{S_A}, s{S_A}, s{S_T0}")
    E(f"s_mov_b32 s{S_XK}, 0")
    E(f"s_mov_b32 s{S_WK}, 0")
    E(f"s_lshl_b32 s{S_XB}, s{S_A}, 17")
    E(f"s_lshl_b32 s{S_T1}, s{S_T1}, 2")
    E(f"s_and_b32 s{S_T0}, s{S_WAVE}, 3")
    E(f"s_add_u32 s{S_T1}, s{S_T1}, s{S_T0}")
    E(f"s_lshl_b32 s{S_T1}, s{S_T1}, 12")
    E(f"s_add_u32 s{S_GO}, s{S_T1}, s{S_XB}")
    E(f"s_lshl_b32 s{S_T0}, s{S_C}, 2")
    E(f"s_and_b32 s{S_T1}, s{S_WAVE}, 3")
    E(f"s_add_u32 s{S_T0}, s{S_T0}, s{S_T1}")
    E(f"s_mul_i32 s{S_T0}, s{S_T0}, {WROW}")
    E(f"s_lshl_b32 s{S_T1}, s{S_PAR}, 11")
    E(f"s_add_u32 s{S_T0}, s{S_T0}, s{S_T1}")
    if O.t_row0:
        E(f"s_add_u32 s{S_T0}, s{S_T0}, {O.t_row0 * WROW}")
    E(f"s_mov_b32 s{S_T2}, {128 * WROW}")
    E("v_bfe_u32 v12, v0, 4, 2")
    E(f"v_mul_u32_u24 v12, s{S_T2}, v12")
    E("v_and_b32 v13, 15, v0")
    E("v_lshl_add_u32 v12, v13, 7, v12")
    E(f"v_add_u32 v13, s{S_T0}, v12")
    E(f"s_cmp_lt_u32 s{S_WAVE}, 4")
    E(f"s_cselect_b32 s4, s{W1}, s{WU}")
    E(f"s_cselect_b32 s5, s{W1+1}, s{WU+1}")
    E(f"s_mov_b32 s6, {512 * WROW}")
    E("s_mov_b32 s7, 0x20000")
    E(f"s_cmp_eq_u32 s{S_PAR}, 1")
    E(f"s_cselect_b32 s{S_T3}, 0x0fff0fff, -1")
    E("s_mov_b64 exec, 1")
    for i in range(O.t_wait):
        E(f"buffer_load_dword v127, v13, s[4:7], 0 offen offset:{128 * i}")
        E("s_waitcnt vmcnt(0)")
    E(f"s_mov_b32 exec_lo, s{S_T3}")
    if O.t_full == 3:
        E(f"s_and_b32 exec_lo, s{S_T3}, 0xffff")
    if O.t_full == 1:
        E(f"s_mov_b32 exec_hi, s{S_T3}")
    if O.t_full == 2:
        E(f"s_and_b32 exec_hi, s{S_T3}, 0xffff")
    E(f"buffer_load_dword v127, v13, s[4:7], 0 offen")
    E("s_mov_b64 exec, -1")
    if O.g2_late:
        E(f"s_mov_b32 s{S_XK}, s{S_B}")
        g2_setup()
        E(f"s_mov_b32 s{S_B}, s{S_XK}")
        E(f"s_mov_b32 s{S_XK}, 0")
    E(f"v_mul_u32_u24 v9, {WROW}, v10")
    E("v_bfe_u32 v11, v0, 1, 3")
    E("v_and_b32 v10, 3, v10")
    E("v_xor_b32 v11, v11, v10")
    E("v_lshl_add_u32 v9, v11, 5, v9")
    E("v_and_b32 v11, 1, v0")
    E("v_lshl_add_u32 v9, v11, 4, v9")
    E(f"s_lshl_b32 s{S_T0}, s{S_FA}, 5")
    E(f"v_add_u32 v2, s{S_T0}, v9")
    E("v_xor_b32 v3, 128, v9")
    E(f"v_add_u32 v3, s{S_T0}, v3")
    E("v_and_b32 v8, 31, v0")
    E("v_lshrrev_b32 v9, 1, v8")
    E("v_and_b32 v9, 7, v9")
    E("v_bfe_u32 v10, v0, 5, 1")
    E("v_xor_b32 v9, v9, v10")
    E("v_lshlrev_b32 v9, 4, v9")
    E("v_lshl_add_u32 v9, v8, 7, v9")
    E("v_bfe_u32 v8, v0, 6, 1")
    E("v_lshl_add_u32 v4, v8, 13, v9")
    for ks in (1, 2, 3):
        E(f"v_xor_b32 v{4+ks}, {32*ks}, v4")
    E("v_bfe_u32 v8, v0, 2, 2")
    E("v_lshl_add_u32 v9, v10, 3, v8")
    E("v_lshlrev_b32 v9, 8, v9")
    E("v_bfe_u32 v10, v0, 4, 1")
    E("v_lshl_add_u32 v9, v10, 13, v9")
    E("v_lshlrev_b32 v10, 2, v10")
    E("v_xor_b32 v8, v8, v10")
    E(f"v_xor_b32 v8, s{S_B0}, v8")
    E("v_lshl_add_u32 v9, v8, 5, v9")
    E("v_and_b32 v8, 3, v0")
    E("v_lshl_add_u32 v9, v8, 3, v9")
    E(f"v_add_u32 v8, {F_WS0}, v9")
    E("v_xor_b32 v9, 32, v8")
    E(f"s_and_b32 s{S_T0}, s{S_WAVE}, 1")
    E(f"s_lshl_b32 s{S_T0}, s{S_T0}, 1")
    E(f"s_lshl_b32 s{S_T1}, s{S_A}, 2")
    E(f"s_add_u32 s{S_T0}, s{S_T0}, s{S_T1}")
    E(f"s_mul_i32 s{S_T0}, s{S_T0}, 144")
    E(f"s_add_u32 s{S_T0}, s{S_T0}, s{S_FA}")
    E(f"s_add_u32 s{S_T0}, s{S_T0}, s{S_B0}")
    E(f"s_lshl_b32 s{S_T0}, s{S_T0}, 10")
    E(f"s_add_u32 s{S_H0}, s{S_T0}, {WS_HO:#x}")
    E(f"s_add_u32 s{S_H1}, s{S_H0}, {144 * 1024}")
    E(f"s_lshl_b32 s{S_T0}, s{S_A}, 10")
    E(f"s_lshl_b32 s{S_T1}, s{S_B}, 6")
    E(f"s_add_u32 s{S_T0}, s{S_T0}, s{S_T1}")
    E(f"s_add_u32 s{S_FL}, s{S_T0}, {WS_FH:#x}")
    E("v_mov_b32 v12, 1.0")
    E(f"v_lshlrev_b32 v13, 3, v{L16}")
    E("v_and_b32 v14, 0xf0, v48")
    E("v_bfe_u32 v15, v0, 4, 2")
    E(f"s_cmp_lg_u32 s{S_WAVE}, 0")
    E("s_cbranch_scc1 F_go")
    wait_start("F_tag", 1)
    E.label("F_go")
    E("s_barrier")
    vm0 = VM()
    f_dma_x(0, vm0); f_dma_w(0, vm0); f_dma_w(1, vm0); f_dma_x(1, vm0); f_dma_w(2, vm0)
    stamp(1)
    prio = lambda s: O.prio_boost if (O.boost_mask >> s) & 1 else O.prio_f
    E(f"s_setprio {prio(0)}")
    E(f"s_waitcnt vmcnt({vm0.need(('x',0),('w',0))})")
    E("s_barrier")
    stamp(2)
    E(f"s_lshr_b32 s{S_T0}, s{S_WAVE}, 2")
    E(f"s_and_b32 s{S_T0}, s{S_T0}, s{S_PAR}")
    E("s_cbranch_scc1 F_one")

    def up(nb):
        vm = VM()
        vm.q = list(vm0.q)

        def reads(s, kk):
            b = 16 + 16 * kk
            u = s // 2
            L = []
            for i in (0, 1):
                L.append(f"ds_read_b128 {vr(b+4*i,4)}, v{4 + 2*(s&1) + kk} offset:{(u % 2) * F_XS + i * 4096}")
                if i < nb:
                    for q in (0, 1):
                        L.append(f"ds_read_b64_tr_b16 {vr(b+8+4*i+2*q,2)}, v{8+i} offset:{(s % 3) * F_WSZ + kk * 4096 + q * 1024}")
            return L

        def mfmas(s, kk):
            b = 16 + 16 * kk
            L = []
            for rbk, bb in ((0, 0), (0, 1), (1, 1), (1, 0)):
                if bb < nb:
                    acc = vr(64 + 16 * (2 * rbk + bb), 16)
                    c = "0" if (s == 0 and kk == 0) else acc
                    L.append(f"v_mfma_f32_32x32x16_bf16 {acc}, {vr(b+8+4*bb,4)}, {vr(b+4*rbk,4)}, {c}")
            return L

        [E(x) for x in reads(0, 0)]
        for s in range(16):
            if s and prio(s) != prio(s - 1):
                if O.even_until > s and nb == 2:
                    E(f"s_cmp_eq_u32 s{S_PAR}, 0")
                    E(f"s_cbranch_scc1 F_keep{s}")
                E(f"s_setprio {prio(s)}")
                if O.even_until > s and nb == 2:
                    E.label(f"F_keep{s}")
            if s and s == O.even_until:
                E(f"s_setprio {prio(s)}")
            M, R = mfmas(s, 0), reads(s, 1)
            E("s_waitcnt lgkmcnt(0)")
            E(M[0]); [E(x) for x in R[:3]]; E(M[1]); [E(x) for x in R[3:]]; [E(x) for x in M[2:]]
            M = mfmas(s, 1)
            if s == 15:
                E("s_waitcnt lgkmcnt(0)")
                [E(x) for x in M]
                break
            E(f"s_waitcnt vmcnt({vm.need(('x',(s+1)//2),('w',s+1))}) lgkmcnt(0)")
            E("s_barrier")
            R = reads(s + 1, 0)
            E(M[0]); [E(x) for x in R[:3]]; E(M[1]); [E(x) for x in R[3:]]; [E(x) for x in M[2:3]]
            if s + 3 <= 15:
                f_dma_w(s + 3, vm)
            [E(x) for x in M[3:]]
            if s % 2 == 1 and (s + 1) // 2 + 1 <= 7:
                f_dma_x((s + 1) // 2 + 1, vm)
            if s in (O.wd_step, O.wo_step):
                wd = s == O.wd_step
                E(f"s_lshl_b32 s{S_T0}, s{S_C}, 3")
                E(f"s_add_u32 s{S_T0}, s{S_T0}, s{S_WAVE}")
                E(f"s_mul_i32 s{S_T0}, s{S_T0}, {7168 if wd else 2048}")
                E("s_mov_b32 exec_hi, 0xffffff" if wd else "s_mov_b64 exec, 0xffff")
                E(f"buffer_load_dword v11, v13, {sr(WD if wd else WO)}, s{S_T0} offen")
                E("s_mov_b64 exec, -1")
                vm.issue("wd")
            if s == O.g_step and nb == 1:
                assert max(O.wd_step, O.wo_step % 99) <= O.g_step and O.g_step >= 13
                E("v_lshl_add_u32 v10, v15, 10, v14")
                for i in range(4):
                    E(f"buffer_load_dwordx4 {vr(80+4*i,4)}, v10, {sr(X)}, s{S_GO} offen offset:{256*i}")
                for i in range(4):
                    E(f"buffer_load_dwordx4 {vr(112+4*i,4)}, v14, {sr(GW)}, 0 offen offset:{256*i}")
                vm.issue("g", 8)
            if s in (3, 7, 11) and not O.dn_stamps:
                stamp(10 + s // 4)
        stamp(3)
        E(f"s_setprio {O.prio_silu}")
        E("s_barrier")
        wo_stage()
        E(f"s_mov_b32 s{S_T2}, {NLOG2E:#x}")
        E(f"s_mov_b32 s{S_T3}, {NLOG2E:#x}")
        for tl in range(4):
            if (tl & 1) >= nb:
                continue
            a = 64 + 16 * tl
            t = 16 + 8 * (tl & 1)
            pk = 32 + 4 * tl
            for i in range(4):
                E(f"v_pk_mul_f32 {vr(t+2*i,2)}, {vr(a+2*i,2)}, s[{S_T2}:{S_T3}]")
            for i in range(8):
                E(f"v_exp_f32 v{t+i}, v{t+i}")
            for i in range(4):
                E(f"v_pk_mul_f32 {vr(a+2*i,2)}, {vr(a+2*i,2)}, {vr(a+8+2*i,2)}")
            for i in range(4):
                E(f"v_pk_add_f32 {vr(t+2*i,2)}, {vr(t+2*i,2)}, v[12:13] op_sel_hi:[1,0]")
            for i in range(8):
                E(f"v_rcp_f32 v{t+i}, v{t+i}")
            E("s_nop 0")
            for i in range(4):
                E(f"v_pk_mul_f32 {vr(a+2*i,2)}, {vr(a+2*i,2)}, {vr(t+2*i,2)}")
            for i in range(4):
                E(f"v_cvt_pk_bf16_f32 v{pk+i}, v{a+2*i}, v{a+2*i+1}")
            E(f"buffer_store_dwordx4 {vr(pk,4)}, v{L16}, {sr(WS)}, s{(S_H0, S_H1)[tl >> 1]} offen offset:{(tl & 1) * 1024} sc0 sc1")
        if nb == 1:
            E("v_mov_b32 v12, 0")
            E("v_mov_b32 v13, 0")
            E("s_waitcnt vmcnt(10)")
            for i in range(16):
                E(f"v_dot2_f32_bf16 v{12 + (i & 1)}, v{80+i}, v{112+i}, v{12 + (i & 1)}")
            E("s_nop 2")
            E("v_add_f32 v12, v12, v13")
            for ctl in ("quad_perm:[1,0,3,2]", "quad_perm:[2,3,0,1]", "row_half_mirror", "row_mirror"):
                E("s_nop 1")
                E(f"v_add_f32_dpp v12, v12, v12 {ctl} row_mask:0xf bank_mask:0xf")
            E(f"v_mul_f32 v12, {NLOG2E:#x}, v12")
            E("v_exp_f32 v12, v12")
            E(f"s_lshr_b32 s{S_T0}, s{S_GO}, 8")
            E("v_add_f32 v12, 1.0, v12")
            E("v_rcp_f32 v12, v12")
            E("v_lshlrev_b32 v11, 2, v15")
            E(f"s_add_u32 s{S_T0}, s{S_T0}, {WS_G:#x}")
            E("s_mov_b32 exec_lo, 0x10001")
            E("s_mov_b32 exec_hi, 0x10001")
            E(f"buffer_store_dword v12, v11, {sr(WS)}, s{S_T0} offen sc0 sc1")
            E("s_mov_b64 exec, -1")

    up(2)
    E("s_branch F_pub")
    E.label("F_one")
    up(1)
    E.label("F_pub")
    E("s_waitcnt vmcnt(0)")
    E.label("F_pub2")
    E("s_barrier")
    stamp(4)
    E(f"s_cmp_lg_u32 s{S_WAVE}, 0")
    E("s_cbranch_scc1 F_wait2")
    put_flag(S_FL)
    E("s_nop 0")
    E.label("F_wait2")
    if O.wo_late:
        E("s_waitcnt vmcnt(0)")
        E("s_barrier")
    wf = lambda k: (4 * k) if k < 4 else (80 + 4 * (k - 4))
    for k in range(16):
        for q in (0, 1):
            E(f"ds_read_b64_tr_b16 {vr(wf(k) + 2*q, 2)}, v{RWO} offset:{k * 2048 + q * 1024}")
    NS = O.dn_ns
    E("s_waitcnt lgkmcnt(0)")
    E("s_barrier")
    for st in range(NS):
        E(f"s_add_u32 m0, s{S_W1K}, {st * 16384 + 8192}")
        E(f"s_mov_b32 s{S_T0}, {st * 65536}")
        E(f"buffer_load_dwordx4 v{VW_}, {sr(WD)}, s{S_T0} offen lds")
    E(f"s_cmp_lg_u32 s{S_WAVE}, 0")
    E("s_cbranch_scc1 F_wait2b")
    poll("F_pollh", PFH, f"s{S_PH}", False, 16, O.sl_h)
    E.label("F_wait2b")
    E("s_barrier")
    stamp(5)
    vd = VM()

    def dma(st, skip_w=False):
        slot = st % NS
        E(f"s_add_u32 m0, s{S_DL}, {slot * 16384}")
        E(f"s_add_u32 s{S_T0}, s{S_DB}, {st * 4096}")
        E(f"buffer_load_dwordx4 v{VB_}, {sr(WS)}, s{S_T0} offen sc1 lds")
        vd.issue(st)
        if skip_w:
            return
        E(f"s_add_u32 m0, s{S_W1K}, {slot * 16384 + 8192}")
        E(f"s_mov_b32 s{S_T0}, {st * 65536}")
        E(f"buffer_load_dwordx4 v{VW_}, {sr(WD)}, s{S_T0} offen lds")
        vd.issue(st)

    def greads(st):
        slot = st % NS
        b = 16 + 16 * (st & 1)
        vb, vw, base = (RB, RW, slot * 16384) if slot < 4 else (RB2, RW2, 0)
        L = []
        for kk in (0, 1):
            L.append(f"ds_read_b128 {vr(b+4*kk,4)}, v{vb} offset:{base + kk * 1024}")
            for q in (0, 1):
                L.append(f"ds_read_b64_tr_b16 {vr(b+8+4*kk+2*q,2)}, v{vw} offset:{base + kk * 2048 + q * 1024}")
        return L

    for t in range(O.ht_pos):
        dma(t, True)
    E("s_mov_b64 exec, 0x3fff3fff")
    E(f"buffer_load_dword v{HT}, v{HT}, {sr(WS)}, s{S_HT} offen sc1")
    E("s_mov_b64 exec, -1")
    E(f"buffer_load_dword v{GV}, v{GV}, {sr(WS)}, s{S_G} offen sc1")
    vd.issue("h", 2)
    for t in range(O.ht_pos, NS):
        dma(t, True)
    issued = NS
    E(f"s_setprio {O.prio_dn}")
    bars = [t for t in range(27) if t >= O.dn_grp_until or t % O.dn_grp == O.dn_grp - 1]
    E(f"s_waitcnt vmcnt({vd.need(*range(0, bars[0] + 1))})")
    E("s_barrier")
    [E(x) for x in greads(0)]
    for t in range(28):
        b = 16 + 16 * (t & 1)
        M = [f"v_mfma_f32_32x32x16_bf16 v[64:79], {vr(b+8+4*kk,4)}, {vr(b+4*kk,4)}, {'0' if t + kk == 0 else 'v[64:79]'}" for kk in (0, 1)]
        if t == O.dn_low:
            E(f"s_setprio {O.prio_f_late}")
        if O.dn_stamps and t in (4, 12, 20):
            stamp(10 + t // 8)
        if t in bars:
            nxt = min([x for x in bars if x > t] + [27])
            E(f"s_waitcnt vmcnt({vd.need(*range(t + 1, nxt + 1))}) lgkmcnt(0)")
            E("s_barrier")
        else:
            E("s_waitcnt lgkmcnt(0)")
        R = greads(t + 1) if t < 27 else []
        E(M[0]); [E(x) for x in R[:3]]; E(M[1]); [E(x) for x in R[3:]]
        if t in bars:
            while issued <= min(27, t + NS):
                dma(issued)
                issued += 1
    stamp(6)
    E(f"s_cmp_lg_u32 s{S_WAVE}, 0")
    E("s_cbranch_scc1 F_wait3")
    E("s_setprio 3")
    if O.o_touch:
        E(f"v_lshrrev_b32 v17, 9, v{L16}")
        E(f"v_mul_u32_u24 v17, {144 * 1024 - 32 * 1024}, v17")
        E(f"v_lshl_add_u32 v17, v{L16}, 6, v17")
        E(f"s_lshr_b32 s{S_T0}, s{S_C}, 2")
        E(f"s_lshl_b32 s{S_T0}, s{S_T0}, 7")
        E(f"s_add_u32 s{S_T0}, s{S_T0}, s{S_DB}")
        E(f"s_add_u32 s{S_T0}, s{S_T0}, {112 * 1024}")
        E("s_mov_b64 s[4:5], -1")
        E(f"s_mov_b32 s{S_SPIN}, 0x40000")
        E.label("F_pollo")
        E(f"buffer_load_dword v16, v{PFO}, {sr(WS)}, s{S_PO} offen sc1")
        E("s_waitcnt vmcnt(0)")
        E(f"v_cmp_ne_u32 vcc, s{S_TAG}, v16")
        E("s_nop 4")
        E("s_cmp_eq_u64 vcc, 0")
        E("s_cbranch_scc1 F_pollo_ok")
        E("s_andn2_b64 s[6:7], s[4:5], vcc")
        E("s_cbranch_scc0 F_pollo_n")
        E("s_mov_b64 s[4:5], vcc")
        E("s_mov_b64 exec, s[6:7]")
        E(f"buffer_load_dword v18, v17, {sr(WS)}, s{S_T0} offen sc1")
        E("s_mov_b64 exec, -1")
        E.label("F_pollo_n")
        E(f"s_sleep {O.sl_o}")
        E(f"s_sub_u32 s{S_SPIN}, s{S_SPIN}, 1")
        E(f"s_cmp_lg_u32 s{S_SPIN}, 0")
        E("s_cbranch_scc1 F_pollo")
        E.label("F_pollo_ok")
    else:
        poll("F_pollo", PFO, f"s{S_PO}", False, 16, O.sl_o)
    E.label("F_wait3")
    E("s_setprio 3")
    E("s_barrier")
    stamp(7)
    for i in range(8):
        E(f"s_add_u32 m0, s{S_OL}, {i * 2048}")
        E(f"s_add_u32 s{S_T0}, s{S_OS}, {i * 2048}")
        E(f"buffer_load_dwordx4 v{L16}, {sr(WS)}, s{S_T0} offen sc1 lds")
    E(f"v_sub_f32 v{HT}, 1.0, v{GV}")
    for i in range(16):
        E(f"v_mul_f32 v{64+i}, v{HT}, v{64+i}")
    cuts = {2: (0, 8, 16), 4: (0, 4, 8, 12, 16), 3: (0, 8, 12, 16)}[O.o_parts]
    for lo, hi in zip(cuts[:-1], cuts[1:]):
        per = hi - lo
        E(f"s_waitcnt vmcnt({8 - hi // 2})")
        E("s_barrier")
        for k in range(4):
            E(f"ds_read_b128 {vr(32 + 4*k, 4)}, v{RO} offset:{(lo + k) * 1024}")
        for k in range(per):
            E(f"s_waitcnt lgkmcnt({min(3, per - 1 - k)})")
            E(f"v_mfma_f32_32x32x16_bf16 v[16:31], {vr(wf(lo + k), 4)}, {vr(32 + 4*(k % 4), 4)}, {'0' if lo + k == 0 else 'v[16:31]'}")
            if k + 4 < per:
                E(f"ds_read_b128 {vr(32 + 4*k, 4)}, v{RO} offset:{(lo + 4 + k) * 1024}")
    stamp(8)
    E(f"s_cmp_ge_u32 s{S_WAVE}, 4")
    E("s_cbranch_scc1 F_hi")
    for hi in (0, 1):
        keep, send = (0, 8) if not hi else (8, 0)
        if hi:
            E.label("F_hi")
        E("s_nop 9")
        for i in range(8):
            E(f"v_fmac_f32 v{64+send+i}, v{GV}, v{16+send+i}")
        E(f"ds_write_b128 v{EX0}, {vr(64+send,4)}")
        E(f"ds_write_b128 v{EX0}, {vr(68+send,4)} offset:1024")
        for i in range(8):
            E(f"v_fmac_f32 v{64+keep+i}, v{GV}, v{16+keep+i}")
        E("s_waitcnt lgkmcnt(0)")
        E("s_barrier")
        E(f"ds_read_b128 v[20:23], v{EX1}")
        E(f"ds_read_b128 v[24:27], v{EX1} offset:1024")
        E("s_waitcnt lgkmcnt(1)")
        for i in range(8):
            if i == 4:
                E("s_waitcnt lgkmcnt(0)")
            E(f"v_add_f32 v{64+keep+i}, v{64+keep+i}, v{20+i}")
        for i in range(4):
            E(f"v_cvt_pk_bf16_f32 v{16+i}, v{64+keep+2*i}, v{65+keep+2*i}")
        if not hi:
            E("s_branch F_x")
    E.label("F_x")
    E("s_nop 1")
    E("v_permlane32_swap_b32 v16, v18")
    E("v_permlane32_swap_b32 v17, v19")
    E(f"buffer_store_dwordx4 v[16:19], v{OUTA}, {sr(OUT)}, s{S_OUT} offen")
    stamp(9)
    flush_stamps(range(13), "F_st")
    if O.diag_span:
        E.label("F_diag")
        E("s_memrealtime s[4:5]")
        E("s_waitcnt lgkmcnt(0)")
        E("s_sub_u32 s4, s4, s92")
        E(f"s_cmp_lt_u32 s4, {O.diag_span}")
        E("s_cbranch_scc1 F_diag")
    E("s_endpgm")


def out_addr():
    E("v_lshlrev_b32 v8, 10, v8")
    E("v_bfe_u32 v9, v0, 5, 1")
    E("v_lshl_add_u32 v8, v9, 4, v8")
    E("v_bfe_u32 v9, v0, 7, 1")
    E("v_lshl_add_u32 v8, v9, 6, v8")
    E("v_lshrrev_b32 v9, 8, v0")
    E("v_lshl_add_u32 v8, v9, 5, v8")
    E(f"s_lshl_b32 s{S_XK}, s{S_A}, 16")
    E(f"s_lshl_b32 s{S_T1}, s{S_B}, 7")
    E(f"s_add_u32 s{S_XK}, s{S_XK}, s{S_T1}")
    E(f"s_lshl_b32 s{S_T1}, s{S_WAVE}, 11")
    E(f"s_add_u32 s{S_T1}, s{S_T1}, 65536")
    E(f"s_xor_b32 s{S_T2}, s{S_T1}, 8192")
    E(f"v_add_u32 v6, s{S_T1}, v12")
    E(f"v_add_u32 v7, s{S_T2}, v12")


def voff_w():
    E("v_bfe_u32 v2, v0, 4, 1")
    E("v_lshlrev_b32 v2, 2, v2")
    E("v_xor_b32 v2, v2, v0")
    E("v_and_b32 v2, 7, v2")
    E("v_lshlrev_b32 v2, 4, v2")
    E("v_lshrrev_b32 v11, 3, v0")
    E("v_lshl_add_u32 v2, v11, 10, v2")
    E(f"s_lshr_b32 s{S_T1}, s{S_C}, 2")
    E(f"s_lshl_b32 s{S_T1}, s{S_T1}, 7")
    E(f"v_add_u32 v2, s{S_T1}, v2")


def wo_stage(batch=0):
    for i in range(8):
        E(f"s_add_u32 m0, s{S_W1K}, {i * 8192}")
        E(f"s_mov_b32 s{S_T0}, {i * 65536}")
        E(f"buffer_load_dwordx4 v{VW_}, {sr(WO)}, s{S_T0} offen lds")
        if batch and i % batch == batch - 1:
            E("s_waitcnt vmcnt(0)")


def _m_fix_base():
    E(f"s_mul_i32 s{S_XB}, s{S_A}, {288 * 1024}")
    E(f"s_add_u32 s{S_XB}, s{S_XB}, {WS_HO:#x}")


HEADER = """; Kernarg layout (88 bytes, ptrs only, base s[0:1]):
; @launch grid=(512,1,1) block=(512,1,1) lds=81920
.amdgcn_target "amdgcn-amd-amdhsa--gfx950"
.text
.globl {kn}
.p2align 8
.type {kn},@function
{kn}:
CODE_START:
"""

FOOTER = """CODE_END:
.section .rodata,"a"
.p2align 6
.amdhsa_kernel {kn}
  .amdhsa_next_free_vgpr 128
  .amdhsa_next_free_sgpr 102
  .amdhsa_accum_offset 128
  .amdhsa_group_segment_fixed_size 0
  .amdhsa_kernarg_size 88
  .amdhsa_user_sgpr_count 2
  .amdhsa_user_sgpr_kernarg_segment_ptr 1
  .amdhsa_system_sgpr_workgroup_id_x 1
.end_amdhsa_kernel
"""


def generate():
    E.L = []
    if O.scramble:
        E("s_and_b32 s3, s2, 7")
        E("s_lshl_b32 s3, s3, 3")
        E("s_bfe_u32 s4, s2, 0x30003")
        E("s_and_b32 s2, s2, 0xffffffc0")
        E("s_or_b32 s2, s2, s3")
        E("s_or_b32 s2, s2, s4")
    E("s_cmp_ge_u32 s2, 256")
    E("s_cbranch_scc1 F_entry")
    stamp(0)
    if O.only_down:
        E("s_endpgm")
    a_prologue()
    E("s_cbranch_vccnz A_vwave")
    E("s_branch A_qwave")
    E.label("F_entry")
    f_prologue()
    E.label("L_end")
    E("s_endpgm")
    E.label("A_qwave")
    a_qkv(False)
    E("s_branch A_att")
    E.label("A_vwave")
    a_qkv(True)
    E.label("A_att")
    a_attention()
    f_main()
    return HEADER.format(kn=KN) + "\n".join(E.L) + "\n" + FOOTER.format(kn=KN)


if __name__ == "__main__":
    ap = argparse.ArgumentParser()
    ap.add_argument("-o", default="k.s")
    ap.add_argument("--set", action="append", default=[])
    a = ap.parse_args()
    for kv in a.set:
        k, v = kv.split("=")
        assert hasattr(O, k), k
        setattr(O, k, type(getattr(O, k))(int(v)))
    s = generate()
    open(a.o, "w").write(s)
    sys.path.insert(0, "cdna_kernels")
    from cdna_launch import with_harness_metadata, address_register_problem
    h = a.o[:-2] + ".harness.s"
    co = a.o[:-2] + ".co"
    open(h, "w").write(with_harness_metadata(s, KN, 11, launch_lists=True))
    r = subprocess.run(["clang", "-x", "assembler", "-target", "amdgcn-amd-amdhsa", "-mcpu=gfx950", h, "-o", co],
                       capture_output=True, text=True)
    if r.returncode:
        print(r.stderr[:4000]); sys.exit(1)
    p = address_register_problem(co, KN)
    print("check:", p)
    r = subprocess.run(f"llvm-nm {co} | grep -E 'CODE_|A_qwave|A_vwave|A_att|A_loop|A_fin|A_slow|F_entry|F_main|F_pub|F_dloop|F_gate$' | sort", shell=True, capture_output=True, text=True)
    print(r.stdout)
```
